```python
import torch

def _softmax(x, axis=-1):
    return torch.softmax(x, dim=axis)

def _gelu(x):
    return torch.nn.functional.gelu(x, approximate='tanh')

def _silu(x):
    return torch.nn.functional.silu(x)

def _sigmoid(x):
    return torch.sigmoid(x)

def _layernorm(x, axis=-1, eps=1e-05):
    m = x.mean(dim=axis, keepdim=True)
    v = x.var(dim=axis, keepdim=True, unbiased=False)
    return (x - m) / torch.sqrt(v + eps)

def _scatter_add(tgt, idx, src, axis=0):
    return tgt.clone().index_add_(axis, idx, src)

def _segment_sum(src, seg, n):
    out = torch.zeros((n,) + src.shape[1:], dtype=src.dtype)
    return out.index_add_(0, seg, src)

def _pad(x, pw):
    flat = tuple((v for pair in reversed(pw) for v in pair))
    return torch.nn.functional.pad(x, flat)
kernel_name = 'adaLN_cond__sliding_block_cached__glu_gated_glu__decode'

def setup_inputs():

    _w = lambda a: (lambda t: t.to(torch.bfloat16) if t.is_floating_point() else t)(torch.as_tensor(a))

    def _A_setup():
        B, Sq, D = (8, 1, 512)
        Hq, Hkv, Sk, Dh = (32, 32, 4096, 128)
        assert Hq % Hkv == 0, (Hq, Hkv)
        return {'x': _w((lambda *s: torch.randn(*s, dtype=torch.bfloat16) * 0.05)(B, Sq, D)), 'k_cache': _w((lambda *s: torch.randn(*s, dtype=torch.bfloat16) * 3.2)(B, Hkv, Sk, Dh)), 'v_cache': _w((lambda *s: torch.randn(*s, dtype=torch.bfloat16) * 0.4)(B, Hkv, Sk, Dh)), 'wq': _w((lambda *s: torch.randn(*s, dtype=torch.bfloat16) * 3.2)(D, Hq * Dh) * D ** (-0.5)), 'wo': _w((lambda *s: torch.randn(*s, dtype=torch.bfloat16) * 0.4)(Hq * Dh, D) * (Hq * Dh) ** (-0.5))}
    _A_in = _A_setup()

    def _B_setup():
        B, S, D, F = (8, 1, 512, 1376)
        return {'x': _w((lambda *s: torch.randn(*s, dtype=torch.bfloat16) * 0.05)(B, S, D)), 'w_gate': _w((lambda *s: torch.randn(*s, dtype=torch.bfloat16) * 0.05)(D, F)), 'w_up': _w((lambda *s: torch.randn(*s, dtype=torch.bfloat16) * 0.05)(D, F)), 'w_down': _w((lambda *s: torch.randn(*s, dtype=torch.bfloat16) * 0.05)(F, D))}
    _B_in = _B_setup()
    return {'A_x': _A_in['x'], 'A_k_cache': _A_in['k_cache'], 'A_v_cache': _A_in['v_cache'], 'A_wq': _A_in['wq'], 'A_wo': _A_in['wo'], 'B_x': _B_in['x'], 'B_w_gate': _B_in['w_gate'], 'B_w_up': _B_in['w_up'], 'B_w_down': _B_in['w_down'], 'c': _w((lambda *s: torch.randn(*s, dtype=torch.bfloat16) * 0.1)(8, 512) * 8.0), 'w_mod': _w((lambda *s: torch.randn(*s, dtype=torch.bfloat16) * 0.1)(512, 6 * 512) * 512 ** (-0.5) * 8.0)}

def reference(A_x, A_k_cache, A_v_cache, A_wq, A_wo, B_x, B_w_gate, B_w_up, B_w_down, c, w_mod):

    def _A_ref(x, k_cache, v_cache, wq, wo):
        B, Sq, D = x.shape
        Hq, Dh = (32, 128)
        Hkv, Sk = (k_cache.shape[1], k_cache.shape[2])
        W = min(4096, max(256, Sk // 4))
        rep = Hq // Hkv
        q = (lambda x, *d: x.permute(*d))((x @ wq).reshape(B, Sq, Hq, Dh), 0, 2, 1, 3)
        k = (lambda x, n, axis: torch.repeat_interleave(x, n, dim=axis))(k_cache[:, :, Sk - W:, :], rep, axis=1)
        v = (lambda x, n, axis: torch.repeat_interleave(x, n, dim=axis))(v_cache[:, :, Sk - W:, :], rep, axis=1)
        scores = torch.einsum('bhqd,bhkd->bhqk', q, k) * Dh ** (-0.5)
        p = _softmax(scores, axis=-1)
        o = torch.einsum('bhqk,bhkd->bhqd', p, v)
        return (lambda x, *d: x.permute(*d))(o, 0, 2, 1, 3).reshape(B, Sq, Hq * Dh) @ wo

    def _B_ref(x, w_gate, w_up, w_down):
        g = torch.einsum('bsd,df->bsf', x, w_gate)
        u = torch.einsum('bsd,df->bsf', x, w_up)
        h = _sigmoid(g) * u
        return torch.einsum('bsf,fd->bsd', h, w_down)
    x = A_x
    mod = (_silu(c) @ w_mod).reshape(c.shape[0], 6, 1, -1)
    sa, ca, ga, sb, cb, gb = (mod[:, 0].clone(), mod[:, 1].clone(), mod[:, 2].clone(), mod[:, 3].clone(), mod[:, 4].clone(), mod[:, 5].clone())
    h = _layernorm(x, axis=-1) * (1 + ca) + sa
    x = x + ga * _A_ref(h, A_k_cache, A_v_cache, A_wq, A_wo)
    h = _layernorm(x, axis=-1) * (1 + cb) + sb
    x = x + gb * _B_ref(h, B_w_gate, B_w_up, B_w_down)
    return x
```

```python
import re

TRANS = ("v_exp_f32", "v_log_f32", "v_rcp_f32", "v_rsq_f32", "v_sqrt_f32", "v_sin_f32", "v_cos_f32", "v_rcp_iflag_f32")
REG_RE = re.compile(r"^(-|\|)?(abs\()?([vsa])(\d+|\[(\d+):(\d+)\])\)?\|?$")

def regs_of(tok):
    tok = tok.strip()
    if tok in ("vcc", "vcc_lo", "vcc_hi"): return {"vcc"}
    if tok in ("exec", "exec_lo", "exec_hi"): return {"exec"}
    if tok == "m0": return {"m0"}
    m = REG_RE.match(tok)
    if not m: return set()
    k = m.group(3)
    if m.group(5) is not None:
        return {f"{k}{i}" for i in range(int(m.group(5)), int(m.group(6)) + 1)}
    return {f"{k}{m.group(4)}"}

def split_ops(s):
    out, depth, cur = [], 0, ""
    for ch in s:
        if ch in "[(": depth += 1
        if ch in "])": depth -= 1
        if ch == "," and depth == 0:
            out.append(cur.strip()); cur = ""
        else:
            cur += ch
    if cur.strip(): out.append(cur.strip())
    return out

class Ins:
    def __init__(self, text):
        self.text = text
        t = text.split(";")[0].strip()
        self.is_label = t.endswith(":")
        self.is_dir = t.startswith(".") or t == ""
        self.mn = ""; self.w = set(); self.r = set(); self.ops = []
        self.srcA = set(); self.srcB = set(); self.srcC = set()
        if self.is_label or self.is_dir: return
        parts = t.split(None, 1)
        self.mn = mn = parts[0]
        rest = parts[1] if len(parts) > 1 else ""
        ops = split_ops(rest)
        if ops:
            last = ops[-1].split()
            ops[-1] = last[0]; self.mods = " ".join(last[1:])
        else:
            self.mods = ""
        self.ops = ops
        R = [regs_of(o) for o in ops]
        self.valu = mn.startswith("v_") and not mn.startswith("v_mfma")
        self.mfma = mn.startswith("v_mfma")
        self.vmem = mn.startswith(("buffer_", "global_", "flat_"))
        self.ds = mn.startswith("ds_")
        self.salu = mn.startswith("s_")
        self.dpp = "_dpp" in mn or any(k in self.mods for k in ("quad_perm", "row_shl", "row_shr", "row_ror", "row_bcast", "row_newbcast", "row_mirror", "row_half_mirror"))
        self.trans = mn.replace("_e32", "").replace("_e64", "") in TRANS
        self.dot = mn.startswith("v_dot")
        self.perml = mn.startswith("v_permlane")
        self.rdlane = mn.startswith(("v_readlane", "v_readfirstlane"))
        if self.mfma:
            self.w = R[0]; self.srcA = R[1]; self.srcB = R[2]; self.srcC = R[3]; self.r = R[1] | R[2] | R[3]
        elif self.valu:
            if mn.startswith(("v_permlane16_swap", "v_permlane32_swap", "v_swap")):
                self.w = R[0] | R[1]; self.r = R[0] | R[1]
            elif mn.startswith(("v_add_co", "v_sub_co", "v_addc_co", "v_subb_co", "v_subrev_co", "v_div_scale", "v_mad_u64")):
                self.w = R[0] | R[1]; self.r = set().union(*R[2:])
            else:
                self.w = R[0]; self.r = set().union(*R[1:]) if len(R) > 1 else set()
                if mn.startswith(("v_fmac", "v_dot2c", "v_writelane")) or self.dpp or "UNUSED_PRESERVE" in self.mods:
                    self.r |= R[0]
                if mn.startswith("v_cndmask") and len(ops) == 3: self.r |= {"vcc"}
                if mn.startswith("v_div_fmas"): self.r |= {"vcc"}
        elif self.vmem:
            isload = "_load" in mn and " lds" not in " " + self.mods and "_lds_" not in mn
            ret = "_atomic" in mn and "sc0" in self.mods.split()
            if isload or ret:
                self.w = R[0]; self.r = set().union(*R[1:])
            else:
                self.r = set().union(*R)
            self.widestore = ("_store" in mn) and mn.endswith(("x3", "x4"))
            if self.widestore:
                self.sdata = R[0] if mn.startswith("buffer_") else R[1]
        elif self.ds:
            if mn.startswith(("ds_read", "ds_bpermute", "ds_permute", "ds_swizzle")) or "_rtn" in mn:
                self.w = R[0]; self.r = set().union(*R[1:])
            else:
                self.r = set().union(*R)
        elif self.salu:
            if mn.startswith(("s_cmp", "s_cbranch", "s_branch", "s_waitcnt", "s_nop", "s_barrier", "s_sleep", "s_endpgm", "s_setprio", "s_bitcmp")):
                self.r = set().union(*R) if R else set()
            else:
                self.w = R[0] if R else set(); self.r = set().union(*R[1:]) if len(R) > 1 else set()

    def states(self):
        if self.is_label or self.is_dir: return 0
        if self.mn == "s_nop": return int(self.ops[0], 0) + 1
        return 1

def passes(mn):
    if "32x32x16" in mn or "32x32x8" in mn: return 8
    if "16x16x4_f32" in mn: return 8
    if "4x4x4" in mn: return 2
    return 4

def need(p, c):
    n = 0
    vw = {x for x in p.w if x[0] in "va" and x != "vcc"}
    sw = {x for x in p.w if x[0] == "s" or x == "vcc"}
    if p.valu:
        if c.vmem and (sw & c.r): n = max(n, 5)
        if c.valu and c.dpp and (vw & c.r): n = max(n, 2)
        if c.valu and (sw & c.r): n = max(n, 4 if c.rdlane else 2)
        if c.valu and c.rdlane and (vw & c.r): n = max(n, 1)
        if p.trans and (c.valu or c.mfma) and not c.trans and (vw & c.r): n = max(n, 1)
        if p.trans and c.trans and (vw & c.r): n = max(n, 1)
        if c.valu and c.perml and (vw & c.r): n = max(n, 2)
        if c.mfma and (vw & c.r): n = max(n, 2)
        if "sdwa" in p.mn and "dst_sel:DWORD" not in p.mods and c.valu and (vw & (c.r | c.w)): n = max(n, 1)
        if p.dot:
            if vw & (c.r | c.w):
                same = c.mn == p.mn and c.valu and not (vw & (regs_of(c.ops[1]) | regs_of(c.ops[2])))
                if not same: n = max(n, 3)
        if c.salu and (sw & c.r) and not c.mn.startswith("s_cbranch"): n = max(n, 1)
    if p.vmem and getattr(p, "widestore", False) and (c.valu or c.mfma or c.vmem or c.ds) and (p.sdata & c.w): n = max(n, 2)
    if p.mfma:
        ps = passes(p.mn)
        f32 = "_f32" == p.mn[-4:] and p.mn.count("f32") == 2
        far = {2: 5, 4: 8, 8: 12, 16: 20}[ps] if not f32 else {2: 4, 4: 6, 8: 10, 16: 18}[ps]
        if c.mfma:
            if vw & (c.srcA | c.srcB): n = max(n, far)
            if vw & c.srcC:
                if not (c.srcC == vw and passes(c.mn) == ps): n = max(n, {2: 4, 4: 6, 8: 10, 16: 18}[ps])
                elif ps == 2: n = max(n, 2)
            elif vw & c.w: n = max(n, far)
        elif (c.valu or c.vmem or c.ds) and (vw & (c.r | c.w)): n = max(n, far)
        if c.valu and (p.srcC & c.w): n = max(n, {2: 1, 4: 3, 8: 7, 16: 15}[ps])
    if p.salu and "m0" in p.w and (c.vmem and ("lds" in c.mods.split() or "_lds_" in c.mn)): n = max(n, 1)
    return n

def fix_hazards(lines, window=24):
    out = []
    for text in lines:
        for t in text.split("\n"):
            c = Ins(t)
            if not (c.is_label or c.is_dir):
                dist = 0; req = 0
                for p in reversed(out[-3 * window:]):
                    if p.is_label or p.is_dir: continue
                    if p.mn in ("s_branch", "s_endpgm", "s_setpc_b64"): break
                    k = need(p, c)
                    if k - dist > req: req = k - dist
                    dist += p.states()
                    if dist >= window: break
                while req > 0:
                    k = min(req, 16)
                    out.append(Ins(f"  s_nop {k-1}"))
                    req -= k
            out.append(c)
    return "\n".join(i.text for i in out) + "\n"
```

```python
import sys, struct
from asmlib import fix_hazards

KNAME = "adaLN_cond__sliding_block_cached__glu_gated_glu__decode_kernel"

HEADER = """; Kernarg layout for this problem (112 bytes, ptrs only, base s[0:1]):
"""

WS_MOD, WS_ACC, WS_INBOX, WS_DUMP, WS_STAMP = 0x0, 0x10000, 0x20000, 0x100000, 0x20000000
F_H, F_Q, F_Q2, F_ST, F_O, F_MOD, F_MOD2, F_C = 0, 4, 8, 12, 16, 20, 24, 28
L_STATS, L_HBUF, L_QP, L_QB, L_OP, L_OB = 0x40, 0x100, 0x500, 0xD00, 0xE00, 0x1E00
L_MODR, L_H2, L_X1, L_GUP, L_HH, L_MODP = 0x2200, 0x4A00, 0x5200, 0x5A00, 0x6A00, 0x7000
LDS_BYTES = 0xB000

def f2u(x): return struct.unpack("<I", struct.pack("<f", x))[0]
LOG2E = f2u(1.4426950408889634)
SCALE = f2u(128 ** -0.5)

sX, sK, sV, sWQ, sWO, sG, sU, sDN, sC, sWM, sOUT, sDBG, sWS = 4, 6, 8, 10, 12, 16, 18, 20, 22, 24, 26, 28, 30
sWAVE, sXCD, sIDX, sB, sJ, sH, sSL, sFFN = 32, 33, 34, 35, 36, 37, 38, 39
sOFF = 40
SRDA, SRDB = 48, 52
sPLO, sPHI, sGUARD, sLOG2E = 62, 63, 64, 66
sHW = 67
vLANE, vL16, vG, vJ, vZ, vONE = 0, 1, 2, 3, 38, 39

def sp(r): return f"s[{r}:{r+1}]"
def sq(r): return f"s[{r}:{r+3}]"
def vp(r): return f"v[{r}:{r+1}]"
def vq(r): return f"v[{r}:{r+3}]"

class Gen:
    def __init__(self, **cfg):
        self.c = dict(D=3, HD=3, HD0=6, HDO=3, P0=12, stamps=False, dump=False, guard=400000, pref=True,
                      inbox_sleep=6, hint_sleep=2, Dodd=None)
        self.c.update(cfg)
        self.L = []
        self.nlab = 0

    def A(self, s): self.L.append(s)
    def lab(self, base):
        self.nlab += 1
        return f"L_{base}_{self.nlab}"
    def stamp(self, k):
        if self.c["stamps"]: self.A(f"  s_memrealtime s[{70+2*k}:{71+2*k}]")
    def guard(self):
        if self.c["guard"]:
            self.A(f"  s_add_u32 s{sGUARD}, s{sGUARD}, 1\n  s_cmp_gt_u32 s{sGUARD}, {self.c['guard']}\n  s_cbranch_scc1 L_exit")
    def exec1(self): self.A("  s_mov_b64 exec, 1")
    def execall(self): self.A("  s_mov_b64 exec, -1")

    def lds_spin(self, off, target, tmp, sleep=1):
        l = self.lab("spin"); d = self.lab("spun")
        self.A(f"{l}:")
        self.A(f"  ds_read_b32 v{tmp}, v{vZ} offset:{off}\n  s_waitcnt lgkmcnt(0)\n  v_readfirstlane_b32 s60, v{tmp}")
        self.A(f"  s_cmp_ge_u32 s60, {target}\n  s_cbranch_scc1 {d}")
        self.guard()
        if sleep: self.A(f"  s_sleep {sleep}")
        self.A(f"  s_branch {l}\n{d}:")

    def lds_inc(self, off):
        self.exec1(); self.A(f"  ds_add_u32 v{vZ}, v{vONE} offset:{off}"); self.execall()

    def dumpv(self, reg, n, base, sidx=None, stride=0, tmp=36):
        if not self.c["dump"]: return
        A = self.A
        if sidx is not None:
            A(f"  s_mul_i32 s68, s{sidx}, {stride}\n  s_add_u32 s68, s68, {WS_DUMP + base}")
        else:
            A(f"  s_mov_b32 s68, {WS_DUMP + base}")
        A(f"  v_lshlrev_b32 v{tmp}, {dict([(1,2),(2,3),(4,4)])[n]}, v{vLANE}\n  v_add_u32 v{tmp}, s68, v{tmp}")
        op = {1: "dword", 2: "dwordx2", 4: "dwordx4"}[n]
        r = f"v{reg}" if n == 1 else f"v[{reg}:{reg+n-1}]"
        A(f"  global_store_{op} v{tmp}, {r}, {sp(sWS)}\n  s_waitcnt vmcnt(0)")

    def rnd1(self, x, t):
        self.A(f"  v_cvt_pk_bf16_f32 v{t}, v{x}, v{x}\n  v_and_b32 v{x}, 0xffff0000, v{t}")
    def rnd2(self, x, y, t):
        self.A(f"  v_cvt_pk_bf16_f32 v{t}, v{x}, v{y}\n  v_lshlrev_b32 v{x}, 16, v{t}\n  v_and_b32 v{y}, 0xffff0000, v{t}")
    def rnd8(self, X, T):
        for i in range(4): self.A(f"  v_cvt_pk_bf16_f32 v{T+i}, v{X+2*i}, v{X+2*i+1}")
        self.unpack8(T, X)
    def unpack8(self, src, dst):
        for i in range(4):
            self.A(f"  v_lshlrev_b32 v{dst+2*i}, 16, v{src+i}\n  v_and_b32 v{dst+2*i+1}, 0xffff0000, v{src+i}")
    def wave_reduce(self, op, regs, full=True):
        steps = []
        if full: steps += ["quad_perm:[1,0,3,2] row_mask:0xf bank_mask:0xf", "quad_perm:[2,3,0,1] row_mask:0xf bank_mask:0xf"]
        steps += ["row_ror:4 row_mask:0xf bank_mask:0xf", "row_ror:8 row_mask:0xf bank_mask:0xf",
                  "row_bcast:15 row_mask:0xa bank_mask:0xf", "row_bcast:31 row_mask:0xc bank_mask:0xf"]
        for s in steps:
            for r in regs: self.A(f"  {op}_dpp v{r}, v{r}, v{r} {s}")

    def layernorm(self, X, T, S):
        A = self.A
        A(f"  v_readfirstlane_b32 s60, v{X}")
        for i in range(8): A(f"  v_subrev_f32 v{T+i}, s60, v{X+i}")
        A(f"  v_add_f32 v{S}, v{T}, v{T+1}\n  v_mul_f32 v{S+1}, v{T}, v{T}")
        A(f"  v_fmac_f32 v{S+1}, v{T+1}, v{T+1}")
        for i in range(2, 8): A(f"  v_add_f32 v{S}, v{S}, v{T+i}\n  v_fmac_f32 v{S+1}, v{T+i}, v{T+i}")
        self.wave_reduce("v_add_f32", [S, S + 1])
        A(f"  v_readlane_b32 s61, v{S}, 63\n  v_readlane_b32 s65, v{S+1}, 63")
        inv = f2u(1.0 / 512)
        A(f"  v_mov_b32 v{S+2}, {inv:#x}")
        A(f"  v_mul_f32 v{S}, s61, v{S+2}\n  v_mul_f32 v{S+1}, s65, v{S+2}")
        A(f"  v_fma_f32 v{S+1}, -v{S}, v{S}, v{S+1}\n  v_add_f32 v{S}, s60, v{S}\n  v_max_f32 v{S+1}, 0, v{S+1}")
        self.rnd2(S, S + 1, S + 2)
        A(f"  v_add_f32 v{S+1}, {f2u(1e-5):#x}, v{S+1}")
        for i in range(8): A(f"  v_sub_f32 v{X+i}, v{X+i}, v{S}")
        self.rnd1(S + 1, S + 2)
        A(f"  v_sqrt_f32 v{S+1}, v{S+1}")
        self.rnd8(X, T)
        self.rnd1(S + 1, S + 2)
        A(f"  v_rcp_f32 v{S+2}, v{S+1}")
        A(f"  v_fma_f32 v{S+3}, -v{S+1}, v{S+2}, 1.0\n  v_fmac_f32 v{S+2}, v{S+3}, v{S+2}")
        for i in range(8): A(f"  v_mul_f32 v{T+i}, v{X+i}, v{S+2}")
        for i in range(8): A(f"  v_fma_f32 v{X+i}, -v{T+i}, v{S+1}, v{X+i}")
        for i in range(8): A(f"  v_fma_f32 v{X+i}, v{X+i}, v{S+2}, v{T+i}")
        self.rnd8(X, T)

    def transpose_block(self, B, t0, t1):
        A = self.A
        R = lambda e, t: B + 4 * e + t
        lo = lambda d, a, b: A(f"  v_perm_b32 v{d}, v{b}, v{a}, s{sPLO}")
        hi = lambda d, a, b: A(f"  v_perm_b32 v{d}, v{b}, v{a}, s{sPHI}")
        for p in range(4):
            a, b = R(2 * p, p), R(2 * p + 1, p)
            lo(t0, a, b); hi(b, a, b); A(f"  v_mov_b32 v{a}, v{t0}")
            for t in range(p + 1, 4):
                a, b, c, d = R(2 * p, t), R(2 * p + 1, t), R(2 * t, p), R(2 * t + 1, p)
                lo(t0, a, b); hi(t1, a, b); lo(a, c, d); hi(b, c, d)
                A(f"  v_mov_b32 v{c}, v{t0}\n  v_mov_b32 v{d}, v{t1}")

    def transpose_x2(self, Rb, Bb):
        for c in range(4):
            for p in range(4):
                a, b = Rb + 2 * (2 * p) + (c >> 1), Rb + 2 * (2 * p + 1) + (c >> 1)
                self.A(f"  v_perm_b32 v{Bb+4*c+p}, v{b}, v{a}, s{sPHI if c & 1 else sPLO}")

    def gemv32(self):
        res = []
        for c in range(8):
            Dc = 24 if c == 0 else 40 + 4 * (c - 1)
            for m in range(4):
                self.A(f"  v_mfma_f32_16x16x32_bf16 {vq(Dc)}, {vq(8+4*m)}, {vq(40+32*m+4*c)}, {'0' if m == 0 else vq(Dc)}")
            res.append(Dc)
        return res

    def wload32(self, srd, steps, D, hook=None, D2=None, P=None):
        A = self.A
        done = 0
        for i in range(32):
            if hook is not None and i == P:
                hook()
            d = D2 if (D2 is not None and i >= P) else D
            if i >= d: A(f"  s_waitcnt vmcnt({d-1})")
            A(f"  buffer_load_dwordx4 {vq(40+4*i)}, v4, {sq(srd)}, s40 offen nt")
            if i < 31: A(f"  s_add_u32 s40, s40, {steps[i]}")
            landed = i - d + 1 if i >= d else 0
            if landed >= 8 * (done + 1):
                self.transpose_block(40 + 32 * done, 5, 6); done += 1
        while done < 4:
            A(f"  s_waitcnt vmcnt({8*(3-done)})")
            self.transpose_block(40 + 32 * done, 5, 6); done += 1

    def streamer(self, D, tag):
        A = self.A; c = self.c
        T = lambda n: 40 + 4 * n
        issued = []
        def issue(name, srd, n):
            A(f"  buffer_load_dwordx4 {vq(T(n))}, v{vL16}, {sq(srd)}, s{sOFF + (n >> 2)} offen offset:{1024*(n&3)} nt")
            issued.append(name)
        def pace():
            if len(issued) >= D: A(f"  s_waitcnt vmcnt({D-1})")
        def waitfor(name):
            A(f"  s_waitcnt vmcnt({len(issued) - 1 - issued.index(name)})")
        for n in range(32):
            pace(); issue(f"K{n}", SRDA, n)
            if n == D - 1:
                A("  s_barrier")
                A(f"  v_lshrrev_b32 v12, 1, v{vJ}\n  v_and_b32 v13, 1, v{vJ}\n  v_mov_b32 v14, 0xffff\n  v_lshlrev_b32 v13, 4, v13\n  v_lshlrev_b32 v14, v13, v14")
                for j in range(4):
                    A(f"  v_cmp_eq_u32 vcc, {j}, v12\n  v_cndmask_b32 v{4+j}, 0, v14, vcc")
        self.stamp(1)
        self.lds_spin(F_Q2, 1, 12)
        self.stamp(2)
        A(f"  v_lshlrev_b32 v12, 4, v{vJ}\n  ds_read_b128 {vq(8)}, v12 offset:{L_QB}\n  s_waitcnt lgkmcnt(0)")
        def qk(G):
            z = 18 + G
            for r in range(4):
                for t in range(4):
                    A(f"  v_dot2_f32_bf16 v{12+t}, v{T(4*G+t)+r}, v{8+r}, {'0' if r == 0 else f'v{12+t}'}")
            A(f"  v_add_f32_dpp v16, v12, v12 row_ror:8 row_mask:0xf bank_mask:0x3")
            A(f"  v_add_f32_dpp v17, v14, v14 row_ror:8 row_mask:0xf bank_mask:0x3")
            A(f"  v_add_f32_dpp v16, v13, v13 row_ror:8 row_mask:0xf bank_mask:0xc")
            A(f"  v_add_f32_dpp v17, v15, v15 row_ror:8 row_mask:0xf bank_mask:0xc")
            A(f"  v_add_f32_dpp v{z}, v16, v16 row_shl:4 row_mask:0xf bank_mask:0x5")
            A(f"  v_add_f32_dpp v{z}, v17, v17 row_shr:4 row_mask:0xf bank_mask:0xa")
            A(f"  v_add_f32_dpp v{z}, v{z}, v{z} quad_perm:[1,0,3,2] row_mask:0xf bank_mask:0xf")
            A(f"  v_add_f32_dpp v{z}, v{z}, v{z} quad_perm:[2,3,0,1] row_mask:0xf bank_mask:0xf")
        nv = 0
        def nextv():
            nonlocal nv
            pace(); issue(f"V{nv}", SRDB, nv); nv += 1
        qk(0)
        groups = list(range(1, 7))
        per = -(-len(groups) // D)
        for i in range(D):
            nextv()
            for G in groups[i * per:(i + 1) * per]: qk(G)
        qk(7)
        A(f"  s_mov_b32 s60, {SCALE:#x}")
        for i in range(4): self.rnd2(18 + 2 * i, 19 + 2 * i, 12 + i)
        for i in range(8): A(f"  v_mul_f32 v{18+i}, s60, v{18+i}")
        for i in range(4): self.rnd2(18 + 2 * i, 19 + 2 * i, 12 + i)
        A("  v_max3_f32 v12, v18, v19, v20\n  v_max3_f32 v13, v21, v22, v23\n  v_max3_f32 v12, v12, v24, v25\n  v_max_f32 v12, v12, v13")
        self.wave_reduce("v_max_f32", [12], full=False)
        A("  v_readlane_b32 s61, v12, 63")
        for i in range(8): A(f"  v_subrev_f32 v{26+i}, s61, v{18+i}")
        for i in range(8): A(f"  v_mul_f32 v{26+i}, s{sLOG2E}, v{26+i}")
        for i in range(8): A(f"  v_exp_f32 v{26+i}, v{26+i}")
        A("  v_add_f32 v13, v26, v27\n  v_add_f32 v14, v28, v29\n  v_add_f32 v15, v30, v31\n  v_add_f32 v16, v32, v33")
        A("  v_add_f32 v13, v13, v14\n  v_add_f32 v15, v15, v16\n  v_add_f32 v13, v13, v15")
        self.wave_reduce("v_add_f32", [13], full=False)
        A(f"  s_lshl_b32 s60, s{sWAVE}, 3\n  v_mov_b32 v14, s60")
        A("  s_mov_b32 exec_lo, 0\n  s_mov_b32 exec_hi, 0x80000000")
        A(f"  ds_write_b64 v14, v[12:13] offset:{L_STATS}\n  ds_add_u32 v{vZ}, v{vONE} offset:{F_ST}")
        self.execall()
        nextv(); nextv()
        self.lds_spin(F_ST, 8, 12)
        A(f"  v_and_b32 v14, 7, v{vLANE}\n  v_lshlrev_b32 v14, 3, v14\n  ds_read_b64 v[12:13], v14 offset:{L_STATS}\n  s_waitcnt lgkmcnt(0)")
        red8 = ["quad_perm:[1,0,3,2]", "quad_perm:[2,3,0,1]", "row_ror:4"]
        A("  v_mov_b32 v14, v12")
        for s in red8: A(f"  v_max_f32_dpp v14, v14, v14 {s} row_mask:0xf bank_mask:0xf")
        A(f"  v_sub_f32 v12, v12, v14\n  v_mul_f32 v12, s{sLOG2E}, v12\n  v_exp_f32 v12, v12")
        for i in range(8): A(f"  v_sub_f32 v{26+i}, v{18+i}, v14")
        A("  v_mul_f32 v13, v13, v12")
        for i in range(8): A(f"  v_mul_f32 v{26+i}, s{sLOG2E}, v{26+i}")
        for s in red8: A(f"  v_add_f32_dpp v13, v13, v13 {s} row_mask:0xf bank_mask:0xf")
        for i in range(8): A(f"  v_exp_f32 v{26+i}, v{26+i}")
        A("  v_rcp_f32 v15, v13\n  v_fma_f32 v16, -v13, v15, 1.0\n  v_fmac_f32 v15, v16, v15")
        if c["dump"]:
            for i in range(8):
                A(f"  s_lshl_b32 s69, s2, 3\n  s_add_u32 s69, s69, s{sWAVE}\n  s_lshl_b32 s69, s69, 3\n  s_add_u32 s69, s69, {i}")
                self.dumpv(18 + i, 1, 0x100000, 69, 256, tmp=36)
        for i in range(8): A(f"  v_mul_f32 v{26+i}, v{26+i}, v15")
        for i in range(8): A(f"  v_cvt_pk_bf16_f32 v{18+i}, v{26+i}, v{26+i}")
        self.stamp(3)
        npv = 0
        def pv():
            nonlocal npv
            n = npv; npv += 1
            Ab = 26 + 4 * (n & 1)
            bank = [0, 2, 1, 3][n & 3]
            for j in range(4):
                A(f"  v_and_b32_dpp v{Ab+j}, v{18+(n>>2)}, v{4+j} row_newbcast:{4*bank} row_mask:0xf bank_mask:0xf")
            A(f"  v_mfma_f32_16x16x32_bf16 {vq(34)}, {vq(Ab)}, {vq(T(n))}, {'0' if n == 0 else vq(34)}")
        while nv < 32:
            nextv()
            landed = nv - D
            k = 0
            while npv < landed and k < 3:
                pv(); k += 1
        self.stamp(4)
        while npv < 32:
            waitfor(f"V{npv}"); pv()
        A(f"  v_lshlrev_b32 v12, 5, v{vJ}\n  v_lshl_add_u32 v12, v{vG}, 4, v12\n  s_lshl_b32 s60, s{sWAVE}, 9\n  v_add_u32 v12, s60, v12")
        A("  s_mov_b32 exec_hi, 0")
        A(f"  ds_write_b128 v12, {vq(34)} offset:{L_OP}")
        self.lds_inc(F_O)
        self.stamp(5)
        A(f"  s_branch L_sffn")

    def streamer_ffn(self):
        A = self.A
        A("L_sffn:")
        A(f"  s_cmp_eq_u32 s{sFFN}, 0\n  s_cbranch_scc1 L_exit")
        A(f"  v_cmp_gt_u32 vcc, 8, v{vJ}")
        A(f"  v_mov_b32 v12, s{sU}\n  v_mov_b32 v13, s{sU+1}\n  v_mov_b32 v14, s{sG}\n  v_mov_b32 v15, s{sG+1}")
        A(f"  v_cndmask_b32 v162, v12, v14, vcc\n  v_cndmask_b32 v163, v13, v15, vcc")
        A(f"  s_lshl_b32 s60, s{sWAVE}, 6\n  v_lshl_add_u32 v12, v{vG}, 3, s60\n  v_mul_u32_u24 v12, 2752, v12")
        A(f"  v_and_b32 v13, 7, v{vJ}\n  v_lshl_add_u32 v12, v13, 3, v12\n  s_lshl_b32 s60, s{sSL}, 6\n  v_add_u32 v12, s60, v12\n  v_mov_b32 v13, 0")
        A(f"  v_lshl_add_u64 v[162:163], v[162:163], 0, v[12:13]")
        A(f"  s_mov_b32 s60, 5504\n  s_mov_b32 s61, 0\n  s_mov_b32 s68, {2752*26}\n  s_mov_b32 s69, 0")
        A(f"  s_mov_b32 s{SRDA}, s{sDN}\n  s_mov_b32 s{SRDA+1}, s{sDN+1}\n  s_mov_b32 s{SRDA+2}, 1409024\n  s_mov_b32 s{SRDA+3}, 0x20000")
        A(f"  v_lshlrev_b32 v164, 13, v{vG}\n  v_lshl_add_u32 v164, v{vJ}, 3, v164")
        A(f"  s_lshl_b32 s40, s{sSL}, 15\n  s_lshl_b32 s41, s{sWAVE}, 7\n  s_add_u32 s40, s40, s41\n  s_add_u32 s41, s40, 4096")
        for m in range(2):
            for e in range(0, 8, 2):
                r = 40 + 16 * m + 2 * e
                A(f"  global_load_dwordx2 {vp(r)}, v[162:163], off nt\n  global_load_dwordx2 {vp(r+2)}, v[162:163], off offset:2752 nt")
                if not (m == 1 and e == 6):
                    A(f"  v_lshl_add_u64 v[162:163], v[162:163], 0, {'s[68:69]' if e == 6 else 's[60:61]'}")
        for e in range(8):
            A(f"  buffer_load_dwordx2 {vp(72+2*e)}, v164, {sq(SRDA)}, s{40 + (e >> 2)} offen offset:{1024*(e&3)} nt")
        A(f"  v_and_b32 v12, 1, v{vJ}\n  v_lshlrev_b32 v165, 10, v12\n  v_lshl_add_u32 v165, v{vG}, 4, v165\n  s_lshl_b32 s60, s{sWAVE}, 7\n  v_add_u32 v165, s60, v165")
        A(f"  v_lshlrev_b32 v166, 6, v12\n  v_lshl_add_u32 v166, v{vG}, 4, v166")
        A(f"  v_lshlrev_b32 v167, 5, v{vJ}\n  v_lshl_add_u32 v167, v{vG}, 3, v167\n  s_lshl_b32 s60, s{sWAVE}, 9\n  v_add_u32 v167, s60, v167")
        A(f"  s_lshl_b32 s60, s{sJ}, 5\n  s_lshl_b32 s61, s{sWAVE}, 2\n  s_add_u32 s60, s60, s61\n  v_add_u32 v164, s60, v{vG}\n  v_mul_u32_u24 v164, 6144, v164")
        A(f"  s_lshl_b32 s60, s{sSL}, 7\n  s_add_u32 s60, s60, {WS_INBOX}\n  v_lshl_add_u32 v12, v{vJ}, 3, s60\n  v_add_u32 v164, v12, v164")
        A("  s_waitcnt vmcnt(16)"); self.transpose_x2(40, 88)
        A("  s_waitcnt vmcnt(8)"); self.transpose_x2(56, 104)
        A("  s_waitcnt vmcnt(0)"); self.transpose_x2(72, 120)
        self.stamp(6)
        A("  s_barrier")
        A(f"  ds_read_b128 {vq(136)}, v165 offset:{L_H2}\n  ds_read_b128 {vq(140)}, v165 offset:{L_H2+64}")
        A("  s_waitcnt lgkmcnt(1)")
        for cc in range(4): A(f"  v_mfma_f32_16x16x32_bf16 {vq(144+4*cc)}, {vq(136)}, {vq(88+4*cc)}, 0")
        A("  s_waitcnt lgkmcnt(0)")
        for cc in range(4): A(f"  v_mfma_f32_16x16x32_bf16 {vq(144+4*cc)}, {vq(140)}, {vq(104+4*cc)}, {vq(144+4*cc)}")
        def select():
            for g in range(1, 4):
                for r in range(2):
                    A(f"  v_mov_b32_dpp v{144+r}, v{144+4*g+r} quad_perm:[0,1,2,3] row_mask:{1<<g:#x} bank_mask:0xf")
        select()
        A(f"  ds_write_b64 v167, v[144:145] offset:{L_GUP}\n  s_waitcnt lgkmcnt(0)")
        A("  s_barrier")
        A("  s_barrier")
        A(f"  ds_read_b128 {vq(136)}, v166 offset:{L_HH}\n  s_waitcnt lgkmcnt(0)")
        for cc in range(4): A(f"  v_mfma_f32_16x16x32_bf16 {vq(144+4*cc)}, {vq(136)}, {vq(120+4*cc)}, 0")
        select()
        A("  v_min_u32 v144, -2, v144\n  v_min_u32 v145, -2, v145")
        A(f"  global_store_dwordx2 v164, v[144:145], {sp(sWS)} sc1")
        self.stamp(7)
        A("  s_branch L_exit")

    def mod_stage(self):
        A = self.A
        A(f"  s_sub_u32 s41, 31, s{sIDX}\n  s_lshl_b32 s41, s41, 2\n  s_lshr_b32 s60, s{sXCD}, 1\n  s_add_u32 s41, s41, s60")
        A(f"  v_and_b32 v4, 7, v{vJ}\n  v_lshrrev_b32 v5, 3, v{vJ}\n  v_lshlrev_b32 v6, 10, v4\n  v_lshl_add_u32 v6, v5, 6, v6\n  v_lshl_add_u32 v6, v{vG}, 4, v6")
        A(f"  s_lshl_b32 s60, s{sHW}, 8\n  v_add_u32 v6, s60, v6")
        A(f"  global_load_dwordx4 {vq(8)}, v6, {sp(sC)}\n  global_load_dwordx4 {vq(12)}, v6, {sp(sC)} offset:128")
        A(f"  s_mov_b32 s{SRDA}, s{sWM}\n  s_mov_b32 s{SRDA+1}, s{sWM+1}\n  s_mov_b32 s{SRDA+2}, 3145728\n  s_mov_b32 s{SRDA+3}, 0x20000")
        A(f"  v_lshlrev_b32 v7, 5, v5\n  v_lshl_add_u32 v7, v{vG}, 3, v7\n  v_mul_u32_u24 v7, 6144, v7\n  v_lshl_add_u32 v7, v4, 4, v7")
        A(f"  s_mul_i32 s40, s{sHW}, {128*6144}\n  s_lshl_b32 s60, s41, 7\n  s_add_u32 s40, s40, s60")
        for i in range(16):
            A(f"  buffer_load_dwordx4 {vq(40+4*i)}, v7, {sq(SRDA)}, s40 offen nt")
            if i < 15: A(f"  s_add_u32 s40, s40, {6144 if i != 7 else 6144*57}")
        A("  s_barrier")
        A(f"  s_lshl_b32 s60, s{sHW}, 12\n  v_lshlrev_b32 v28, 11, v5\n  v_lshl_add_u32 v28, v4, 8, v28\n  v_and_b32 v29, 1, v{vG}\n  v_lshl_add_u32 v28, v29, 4, v28\n  v_add_u32 v28, s60, v28")
        A(f"  v_lshrrev_b32 v29, 1, v{vG}\n  v_cmp_eq_u32 s[42:43], v29, v5")
        A("  s_waitcnt vmcnt(16)")
        for i in range(8):
            r = 8 + i
            A(f"  v_lshlrev_b32 v16, 16, v{r}\n  v_and_b32 v17, 0xffff0000, v{r}")
            A(f"  v_mul_f32 v18, s{sLOG2E}, v16\n  v_mul_f32 v19, s{sLOG2E}, v17")
            A(f"  v_exp_f32 v18, -v18\n  v_exp_f32 v19, -v19")
            A(f"  v_add_f32 v18, 1.0, v18\n  v_add_f32 v19, 1.0, v19\n  v_rcp_f32 v18, v18\n  v_rcp_f32 v19, v19")
            A(f"  v_mul_f32 v16, v16, v18\n  v_mul_f32 v17, v17, v19\n  v_cvt_pk_bf16_f32 v{r}, v16, v17")
        A("  s_waitcnt vmcnt(8)"); self.transpose_block(40, 5, 6)
        A("  s_waitcnt vmcnt(0)"); self.transpose_block(72, 5, 6)
        for cc in range(8):
            A(f"  v_mfma_f32_16x16x32_bf16 {vq(104+4*cc)}, {vq(8)}, {vq(40+4*cc)}, 0")
        for cc in range(8):
            A(f"  v_mfma_f32_16x16x32_bf16 {vq(104+4*cc)}, {vq(12)}, {vq(72+4*cc)}, {vq(104+4*cc)}")
        A("  s_mov_b64 exec, s[42:43]")
        for cc in range(8):
            A(f"  ds_write_b128 v28, {vq(104+4*cc)} offset:{L_MODP + 32*cc}")
        self.lds_inc(F_MOD)
        A(f"  v_and_b32 v4, 31, v{vLANE}\n  v_lshrrev_b32 v5, 5, v{vLANE}\n  v_lshlrev_b32 v6, 6, v4\n  v_lshl_add_u32 v6, v5, 2, v6\n  s_lshl_b32 s60, s{sHW}, 3\n  s_add_u32 s60, s60, {L_MODP}\n  v_add_u32 v6, s60, v6")
        self.lds_spin(F_MOD, 4, 7)
        for part in range(8):
            if part: A(f"  v_add_u32 v6, 2048, v6")
            A(f"  ds_read2_b32 {vp(8+2*part)}, v6 offset0:0 offset1:8")
        A(f"  s_lshl_b32 s60, s{sHW}, 1\n  v_add_u32 v5, s60, v5\n  v_mul_u32_u24 v5, 6144, v5\n  v_lshl_add_u32 v5, v4, 2, v5\n  s_lshl_b32 s60, s41, 7\n  s_add_u32 s60, s60, {WS_MOD}\n  v_add_u32 v5, s60, v5")
        A("  s_waitcnt lgkmcnt(0)")
        for part in range(1, 8):
            A(f"  v_add_f32 v8, v8, v{8+2*part}\n  v_add_f32 v9, v9, v{9+2*part}")
        A(f"  v_cvt_pk_bf16_f32 v8, v8, v9\n  global_store_dword v5, v8, {sp(sWS)} sc1\n  s_waitcnt vmcnt(0)")
        self.exec1()
        A(f"  ds_add_rtn_u32 v7, v{vZ}, v{vONE} offset:{F_MOD2}\n  s_waitcnt lgkmcnt(0)\n  v_readfirstlane_b32 s60, v7")
        l = self.lab("nolast")
        A(f"  s_cmp_lg_u32 s60, 3\n  s_cbranch_scc1 {l}")
        A(f"  s_cmp_lt_u32 s41, 16\n  s_cselect_b32 s60, 0, 4\n  v_mov_b32 v7, s60\n  global_atomic_add v7, v{vONE}, {sp(sDBG)} sc1")
        A(f"{l}:"); self.execall()

    def h0_comm(self):
        A = self.A
        A("  s_waitcnt vmcnt(0)")
        self.unpack8(28, 8)
        self.layernorm(8, 16, 24)
        self.stamp(1)
        l = self.lab("pollA"); d = self.lab("gotA")
        self.exec1()
        A(f"{l}:\n  global_load_dword v28, v{vZ}, {sp(sDBG)} sc1\n  s_waitcnt vmcnt(0)\n  v_readfirstlane_b32 s60, v28\n  s_cmp_ge_u32 s60, 16\n  s_cbranch_scc1 {d}")
        self.guard()
        A(f"  s_sleep 16\n  s_branch {l}\n{d}:"); self.execall()
        self.stamp(2)
        A(f"  s_mul_i32 s60, s{sB}, 6144\n  s_add_u32 s60, s60, {WS_MOD}\n  v_add_u32 v36, s60, v{vL16}")
        A(f"  global_load_dwordx4 {vq(28)}, v36, {sp(sWS)} sc1\n  global_load_dwordx4 {vq(32)}, v36, {sp(sWS)} offset:1024 sc1\n  s_waitcnt vmcnt(0)")
        self.unpack8(32, 16)
        for i in range(8): A(f"  v_add_f32 v{16+i}, 1.0, v{16+i}")
        self.rnd8(16, 24)
        for i in range(8): A(f"  v_mul_f32 v{8+i}, v{8+i}, v{16+i}")
        self.rnd8(8, 24)
        self.unpack8(28, 16)
        for i in range(8): A(f"  v_add_f32 v{8+i}, v{8+i}, v{16+i}")
        for i in range(4): A(f"  v_cvt_pk_bf16_f32 v{24+i}, v{8+2*i}, v{9+2*i}")
        A(f"  ds_write_b128 v{vL16}, {vq(24)} offset:{L_HBUF}")
        self.lds_inc(F_H)
        self.dumpv(24, 4, 0x0, 2, 1024)
        self.stamp(3)

    def helper(self):
        A = self.A; c = self.c
        A("L_helper:")
        A(f"  s_sub_u32 s{sHW}, s{sWAVE}, 8")
        l = self.lab("h3")
        A(f"  s_cmp_lg_u32 s{sHW}, 3\n  s_cbranch_scc1 {l}")
        A(f"  v_lshlrev_b32 v4, 2, v{vLANE}\n  ds_write_b32 v4, v{vZ}\n  s_waitcnt lgkmcnt(0)\n{l}:")
        if c["pref"]:
            l = self.lab("nopref")
            A(f"  s_cmp_lg_u32 s{sHW}, 2\n  s_cbranch_scc1 {l}\n  s_cmp_ge_u32 s{sIDX}, 2\n  s_cbranch_scc1 {l}")
            A(f"  s_getpc_b64 s[60:61]\nL_pc:\n  s_sub_u32 s60, s60, L_pc-{KNAME}\n  s_subb_u32 s61, s61, 0")
            A("  PREFETCH")
            A(f"{l}:")
        A("  s_waitcnt lgkmcnt(0)")
        A(f"  s_bitcmp1_b32 s{sXCD}, 0\n  s_cbranch_scc1 L_noprod\n  s_cmp_lt_u32 s{sIDX}, 20\n  s_cbranch_scc1 L_noprod")
        self.mod_stage()
        A("  s_branch L_wq")
        A("L_noprod:\n  s_barrier")
        A("L_wq:")
        l = self.lab("noinit"); l2 = self.lab("nozero")
        A(f"  s_cmp_lg_u32 s{sHW}, 1\n  s_cbranch_scc1 {l}\n  s_cmp_eq_u32 s{sFFN}, 0\n  s_cbranch_scc1 {l}\n  s_cmp_ge_u32 s{sSL}, 32\n  s_cbranch_scc1 {l}")
        A("  v_mov_b32 v8, -1\n  v_mov_b32 v9, -1\n  v_mov_b32 v10, -1\n  v_mov_b32 v11, -1")
        A(f"  s_lshl_b32 s60, s{sJ}, 5\n  s_add_u32 s60, s60, s{sSL}\n  s_mul_i32 s60, s60, 6144\n  s_add_u32 s60, s60, {WS_INBOX + 2048}\n  v_add_u32 v4, s60, v{vL16}")
        for i in range(6): A(f"  global_store_dwordx4 v4, {vq(8)}, {sp(sWS)} offset:{1024*i - 2048} sc1")
        A(f"  s_cmp_ge_u32 s{sSL}, 8\n  s_cbranch_scc1 {l2}")
        A("  v_mov_b32 v12, 0\n  v_mov_b32 v13, 0\n  v_mov_b32 v14, 0\n  v_mov_b32 v15, 0")
        A(f"  s_lshl_b32 s60, s{sJ}, 3\n  s_add_u32 s60, s60, s{sSL}\n  s_lshl_b32 s60, s60, 10\n  s_add_u32 s60, s60, {WS_ACC}\n  v_add_u32 v4, s60, v{vL16}")
        A(f"  global_store_dwordx4 v4, {vq(12)}, {sp(sWS)} sc1")
        A(f"{l2}:\n  s_waitcnt vmcnt(0)")
        self.exec1(); A(f"  global_atomic_add v{vZ}, v{vONE}, {sp(sDBG)} offset:128 sc1"); self.execall()
        A(f"{l}:")
        A(f"  s_mov_b32 s{SRDA}, s{sWQ}\n  s_mov_b32 s{SRDA+1}, s{sWQ+1}\n  s_mov_b32 s{SRDA+2}, 4194304\n  s_mov_b32 s{SRDA+3}, 0x20000")
        A(f"  v_lshlrev_b32 v4, 4, v{vJ}\n  v_lshl_add_u32 v4, v{vG}, 16, v4")
        A(f"  s_lshl_b32 s40, s{sHW}, 20\n  s_lshl_b32 s60, s{sH}, 8\n  s_add_u32 s40, s40, s60")
        steps = [8192 if i % 8 < 7 else 8192 * 25 for i in range(32)]
        A(f"  s_cmp_lg_u32 s{sHW}, 0\n  s_cbranch_scc1 L_wq123")
        A(f"  s_lshl_b32 s60, s{sB}, 10\n  v_add_u32 v36, s60, v{vL16}\n  global_load_dwordx4 {vq(28)}, v36, {sp(sX)}")
        self.wload32(SRDA, steps, c["HD"], hook=self.h0_comm, D2=c["HD0"], P=c["P0"])
        A("  s_branch L_q")
        A("L_wq123:")
        self.wload32(SRDA, steps, c["HD"])
        A("L_q:")
        self.stamp(4)
        self.lds_spin(F_H, 1, 7)
        A(f"  s_lshl_b32 s60, s{sHW}, 8\n  v_lshl_add_u32 v4, v{vG}, 4, s60")
        for m in range(4): A(f"  ds_read_b128 {vq(8+4*m)}, v4 offset:{L_HBUF + 64*m}")
        A(f"  s_lshl_b32 s60, s{sHW}, 9\n  v_lshl_add_u32 v5, v{vJ}, 5, s60\n  v_add_u32 v5, {L_QP}, v5")
        A("  s_waitcnt lgkmcnt(0)")
        res = self.gemv32()
        A("  s_mov_b64 exec, 0xffff")
        for cc in range(0, 8, 2):
            A(f"  ds_write2_b32 v5, v{res[cc]}, v{res[cc+1]} offset0:{cc} offset1:{cc+1}")
        self.exec1()
        A(f"  ds_add_rtn_u32 v7, v{vZ}, v{vONE} offset:{F_Q}\n  s_waitcnt lgkmcnt(0)\n  v_readfirstlane_b32 s60, v7")
        self.execall()
        l = self.lab("notlastq")
        A(f"  s_cmp_lg_u32 s60, 3\n  s_cbranch_scc1 {l}")
        A(f"  v_lshlrev_b32 v4, 3, v{vLANE}")
        for part in range(4): A(f"  ds_read_b64 {vp(8+2*part)}, v4 offset:{L_QP + 512*part}")
        A(f"  v_lshlrev_b32 v4, 2, v{vLANE}\n  s_waitcnt lgkmcnt(0)")
        A("  v_add_f32 v8, v8, v10\n  v_add_f32 v9, v9, v11\n  v_add_f32 v12, v12, v14\n  v_add_f32 v13, v13, v15\n  v_add_f32 v8, v8, v12\n  v_add_f32 v9, v9, v13")
        A(f"  v_cvt_pk_bf16_f32 v8, v8, v9\n  ds_write_b32 v4, v8 offset:{L_QB}")
        self.lds_inc(F_Q2)
        self.dumpv(8, 1, 0x40000, 2, 256)
        A(f"{l}:")
        self.stamp(5)
        l = self.lab("noBC"); lp = self.lab("pollBC"); ld = self.lab("gotBC")
        A(f"  s_cmp_lg_u32 s{sHW}, 0\n  s_cbranch_scc1 {l}")
        A(f"  v_mul_u32_u24 v4, 124, v{vLANE}\n  v_add_u32 v4, 4, v4\n  v_mul_u32_u24 v5, 96, v{vLANE}\n  v_add_u32 v5, 32, v5\n  s_mov_b64 exec, 3")
        A(f"{lp}:\n  global_load_dword v6, v4, {sp(sDBG)} sc1\n  s_waitcnt vmcnt(0)\n  v_cmp_ne_u32 vcc, v5, v6\n  s_cbranch_vccz {ld}")
        self.guard()
        A(f"  s_sleep 16\n  s_branch {lp}\n{ld}:")
        self.lds_inc(F_C)
        A(f"{l}:")
        l = self.lab("norows")
        A(f"  s_cmp_ge_u32 s{sHW}, 2\n  s_cbranch_scc1 {l}\n  s_cmp_eq_u32 s{sFFN}, 0\n  s_cbranch_scc1 {l}")
        self.lds_spin(F_C, 1, 7, sleep=4)
        A(f"  s_lshl_b32 s41, s{sJ}, 1\n  s_add_u32 s41, s41, s{sHW}")
        A(f"  s_lshl_b32 s60, s41, 10\n  v_add_u32 v4, s60, v{vL16}\n  global_load_dwordx4 {vq(8)}, v4, {sp(sX)}")
        A(f"  s_mul_i32 s60, s41, 6144\n  s_add_u32 s60, s60, {WS_MOD + 2048}\n  v_add_u32 v4, s60, v{vL16}")
        for i in range(4): A(f"  global_load_dwordx4 {vq(12+4*i)}, v4, {sp(sWS)} offset:{1024*i} sc1")
        A(f"  s_mul_i32 s60, s{sHW}, 5120\n  v_add_u32 v4, s60, v{vL16}\n  s_waitcnt vmcnt(0)")
        for i in range(5): A(f"  ds_write_b128 v4, {vq(8+4*i)} offset:{L_MODR + 1024*i}")
        A(f"{l}:")
        A(f"  s_mov_b32 s{SRDA}, s{sWO}\n  s_mov_b32 s{SRDA+1}, s{sWO+1}\n  s_mov_b32 s{SRDA+2}, 4194304\n  s_mov_b32 s{SRDA+3}, 0x20000")
        A(f"  v_lshlrev_b32 v4, 4, v{vJ}\n  v_lshl_add_u32 v4, v{vG}, 13, v4")
        A(f"  s_lshl_b32 s40, s{sH}, 17\n  s_lshl_b32 s60, s{sHW}, 8\n  s_add_u32 s40, s40, s60")
        steps = [1024 if i % 8 < 7 else 1024 * 25 for i in range(32)]
        self.wload32(SRDA, steps, c["HDO"])
        if c["pref"]:
            l = self.lab("nopref2")
            A(f"  s_cmp_lg_u32 s{sHW}, 2\n  s_cbranch_scc1 {l}\n  s_cmp_ge_u32 s{sIDX}, 2\n  s_cbranch_scc1 {l}")
            A(f"  s_getpc_b64 s[60:61]\nL_pc2:\n  s_sub_u32 s60, s60, L_pc2-{KNAME}\n  s_subb_u32 s61, s61, 0")
            A("  PREFETCH2")
            A(f"{l}:")
        self.lds_spin(F_C, 1, 7, sleep=4)
        A(f"  v_lshlrev_b32 v28, 3, v{vLANE}")
        A(f"  s_lshl_b32 s60, s{sHW}, 8\n  v_lshl_add_u32 v29, v{vLANE}, 2, s60\n  v_lshl_add_u32 v30, v{vG}, 4, s60")
        A(f"  v_lshrrev_b32 v31, 2, v{vLANE}\n  v_and_b32 v32, 3, v{vLANE}\n  v_lshl_add_u32 v31, v32, 4, v31\n  v_lshlrev_b32 v31, 2, v31")
        A(f"  s_lshl_b32 s61, s{sB}, 12\n  s_add_u32 s61, s61, {WS_ACC}\n  v_add_u32 v32, s61, v29\n  v_mov_b32 v36, s61")
        A(f"  v_mov_b32 v33, 1.0\n  v_mov_b32 v34, 1.0\n  v_mov_b32 v35, 1.0\n  v_mov_b32_dpp v35, v{vZ} quad_perm:[0,1,2,3] row_mask:0x4 bank_mask:0xf")
        self.stamp(6)
        self.lds_spin(F_O, 8, 7, sleep=1)
        l = self.lab("nohint")
        A(f"  s_cmp_lg_u32 s{sHW}, 2\n  s_cbranch_scc1 {l}")
        self.exec1(); A(f"  global_atomic_add v36, v{vONE}, {sp(sWS)} offset:3072 sc1"); self.execall()
        A(f"{l}:")
        for part in range(8): A(f"  ds_read_b64 {vp(8+2*part)}, v28 offset:{L_OP + 512*part}")
        A("  s_waitcnt lgkmcnt(4)")
        A("  v_add_f32 v8, v8, v10\n  v_add_f32 v9, v9, v11\n  v_add_f32 v12, v12, v14\n  v_add_f32 v13, v13, v15\n  v_add_f32 v8, v8, v12\n  v_add_f32 v9, v9, v13")
        A("  s_waitcnt lgkmcnt(0)")
        A("  v_add_f32 v16, v16, v18\n  v_add_f32 v17, v17, v19\n  v_add_f32 v20, v20, v22\n  v_add_f32 v21, v21, v23\n  v_add_f32 v16, v16, v20\n  v_add_f32 v17, v17, v21")
        A(f"  v_add_f32 v8, v8, v16\n  v_add_f32 v9, v9, v17\n  v_cvt_pk_bf16_f32 v7, v8, v9\n  ds_write_b32 v29, v7 offset:{L_OB}")
        for m in range(4): A(f"  ds_read_b128 {vq(8+4*m)}, v30 offset:{L_OB + 64*m}")
        A("  s_waitcnt lgkmcnt(0)")
        res = self.gemv32()
        for k in range(3):
            for g in range(3):
                if 3 * k + g < 8:
                    A(f"  v_mov_b32_dpp v{33+k}, v{res[3*k+g]} quad_perm:[0,1,2,3] row_mask:{1<<g:#x} bank_mask:0xf")
        for k in range(3): A(f"  ds_bpermute_b32 v{33+k}, v31, v{33+k}")
        for k in range(3):
            A(f"  s_waitcnt lgkmcnt({2-k})\n  global_atomic_add_f32 v32, v{33+k}, {sp(sWS)} offset:{1024*k}")
        self.stamp(7)
        if c["dump"]:
            l = self.lab("nodumpo")
            A(f"  s_cmp_lg_u32 s{sHW}, 3\n  s_cbranch_scc1 {l}")
            self.dumpv(7, 1, 0x50000, 2, 256)
            A(f"{l}:")
        A(f"  s_cmp_ge_u32 s{sHW}, 2\n  s_cbranch_scc1 L_exit\n  s_cmp_eq_u32 s{sFFN}, 0\n  s_cbranch_scc1 L_exit")
        A(f"  s_mul_i32 s60, s{sHW}, 5120\n  v_add_u32 v4, s60, v{vL16}")
        for i in range(4): A(f"  ds_read_b128 {vq(72+4*i)}, v4 offset:{L_MODR + 1024*i}")
        A(f"  s_lshl_b32 s41, s{sJ}, 1\n  s_add_u32 s41, s41, s{sHW}\n  s_lshl_b32 s41, s41, 12\n  s_add_u32 s41, s41, {WS_ACC}\n  v_add_u32 v5, s41, v{vL16}\n  v_mov_b32 v6, s41")
        A(f"  s_lshl_b32 s60, s{sHW}, 10\n  v_add_u32 v4, s60, v{vL16}")
        A("  s_waitcnt lgkmcnt(0)")
        self.unpack8(72, 88); self.unpack8(76, 96); self.unpack8(80, 104); self.unpack8(84, 112)
        for i in range(8): A(f"  v_add_f32 v{112+i}, 1.0, v{112+i}")
        self.rnd8(112, 72)
        lp = self.lab("pollH"); ld = self.lab("gotH")
        self.exec1()
        A(f"{lp}:\n  global_load_dword v7, v6, {sp(sWS)} offset:3072 sc1\n  s_waitcnt vmcnt(0)\n  v_readfirstlane_b32 s60, v7\n  s_cmp_ge_u32 s60, 32\n  s_cbranch_scc1 {ld}")
        self.guard()
        A(f"  s_sleep {c['hint_sleep']}\n  s_branch {lp}\n{ld}:"); self.execall()
        self.stamp(1)
        lp = self.lab("pollF"); ld = self.lab("gotF")
        A(f"{lp}:")
        for k in range(3): A(f"  global_load_dwordx4 {vq(120+4*k)}, v5, {sp(sWS)} offset:{1024*k} sc1")
        A("  s_waitcnt vmcnt(0)\n  v_min3_f32 v7, v123, v127, v131\n  v_cmp_neq_f32 vcc, 0x42000000, v7")
        A(f"  s_cbranch_vccz {ld}")
        self.guard()
        A(f"  s_branch {lp}\n{ld}:")
        self.stamp(2)
        src = [120, 121, 122, 124, 125, 126, 128, 129]
        for i in range(4): A(f"  v_cvt_pk_bf16_f32 v{16+i}, v{src[2*i]}, v{src[2*i+1]}")
        self.unpack8(16, 8)
        for i in range(8): A(f"  v_mul_f32 v{8+i}, v{96+i}, v{8+i}")
        self.rnd8(8, 16)
        for i in range(8): A(f"  v_add_f32 v{8+i}, v{88+i}, v{8+i}")
        for i in range(4): A(f"  v_cvt_pk_bf16_f32 v{28+i}, v{8+2*i}, v{9+2*i}")
        self.unpack8(28, 8)
        A(f"  ds_write_b128 v4, {vq(28)} offset:{L_X1}")
        self.layernorm(8, 16, 24)
        for i in range(8): A(f"  v_mul_f32 v{8+i}, v{8+i}, v{112+i}")
        self.rnd8(8, 16)
        for i in range(8): A(f"  v_add_f32 v{8+i}, v{8+i}, v{104+i}")
        for i in range(4): A(f"  v_cvt_pk_bf16_f32 v{24+i}, v{8+2*i}, v{9+2*i}")
        A(f"  ds_write_b128 v4, {vq(24)} offset:{L_H2}\n  s_waitcnt lgkmcnt(0)")
        self.stamp(3)
        A("  s_barrier")
        if c["dump"]:
            A(f"  s_lshl_b32 s69, s2, 1\n  s_add_u32 s69, s69, s{sHW}")
            self.dumpv(24, 4, 0x60000, 69, 1024)
        A(f"  s_cmp_eq_u32 s{sHW}, 0\n  s_cbranch_scc1 L_reducer")
        A(f"  s_cmp_ge_u32 s{sSL}, 32\n  s_cbranch_scc1 L_exit")
        A(f"  v_and_b32 v4, 7, v{vLANE}\n  v_lshrrev_b32 v5, 1, v{vG}\n  v_lshl_add_u32 v4, v4, 1, v5\n  v_lshlrev_b32 v4, 3, v4")
        A(f"  s_lshr_b32 s60, s{sSL}, 2\n  s_lshl_b32 s60, s60, 7\n  s_and_b32 s61, s{sSL}, 3\n  s_lshl_b32 s61, s61, 1\n  s_add_u32 s60, s60, s61\n  v_add_u32 v4, s60, v4")
        A(f"  v_and_b32 v5, 1, v{vG}\n  v_lshl_add_u32 v6, v5, 10, v4\n  v_mul_u32_u24 v7, 5120, v5\n  v_add_u32 v7, v7, v4")
        A(f"  ds_read_u16 v40, v6 offset:{L_X1}\n  ds_read_u16 v41, v7 offset:{L_MODR + 4096}")
        A(f"  s_lshl_b32 s60, s{sJ}, 11\n  v_add_u32 v6, s60, v6")
        A(f"  s_lshl_b32 s60, s{sJ}, 5\n  s_add_u32 s60, s60, s{sSL}\n  s_mul_i32 s60, s60, 6144\n  s_add_u32 s60, s60, {WS_INBOX + 2048}\n  v_add_u32 v5, s60, v{vL16}")
        A("  v_mov_b32 v28, 0\n  v_mov_b32 v29, 0\n  v_mov_b32 v30, 0\n  v_mov_b32 v31, 0")
        A("  s_waitcnt lgkmcnt(0)\n  v_lshlrev_b32 v40, 16, v40\n  v_lshlrev_b32 v41, 16, v41")
        A("  s_barrier\n  s_barrier")
        if c["inbox_sleep"]: A(f"  s_sleep {c['inbox_sleep']}")
        lp = self.lab("pollI"); ld = self.lab("gotI")
        A(f"{lp}:")
        for i in range(5): A(f"  global_load_dwordx4 {vq(8+4*i)}, v5, {sp(sWS)} offset:{1024*i - 2048} sc1")
        A(f"  s_mov_b64 exec, 0xffffff\n  global_load_dwordx4 {vq(28)}, v5, {sp(sWS)} offset:3072 sc1"); self.execall()
        A("  s_waitcnt vmcnt(0)\n  v_max3_u32 v7, v8, v9, v10")
        for r in range(11, 31, 2): A(f"  v_max3_u32 v7, v7, v{r}, v{r+1}")
        A(f"  v_max_u32 v7, v7, v31\n  v_cmp_eq_u32 vcc, -1, v7\n  s_cbranch_vccz {ld}")
        self.guard()
        A(f"  s_branch {lp}\n{ld}:")
        self.stamp(4)
        for j in range(4):
            A(f"  v_add_f32 v{8+j}, v{8+j}, v{12+j}\n  v_add_f32 v{16+j}, v{16+j}, v{20+j}\n  v_add_f32 v{24+j}, v{24+j}, v{28+j}")
        for j in range(4): A(f"  v_add_f32 v{8+j}, v{8+j}, v{16+j}")
        for j in range(4): A(f"  v_add_f32 v{8+j}, v{8+j}, v{24+j}")
        A("  v_permlane16_swap_b32 v8, v9\n  v_permlane16_swap_b32 v10, v11\n  v_add_f32 v8, v8, v9\n  v_add_f32 v10, v10, v11")
        A("  v_permlane32_swap_b32 v8, v10\n  v_add_f32 v8, v8, v10\n  v_add_f32_dpp v8, v8, v8 row_ror:8 row_mask:0xf bank_mask:0xf")
        self.rnd1(8, 9)
        A("  v_mul_f32 v8, v41, v8"); self.rnd1(8, 9)
        A("  v_add_f32 v8, v40, v8\n  v_cvt_pk_bf16_f32 v8, v8, v8")
        A("  s_mov_b32 exec_lo, 0x00ff00ff\n  s_mov_b32 exec_hi, 0x00ff00ff")
        A(f"  global_store_short v6, v8, {sp(sOUT)} sc1")
        self.execall()
        self.stamp(5)
        A("  s_branch L_exit")
        A("L_reducer:")
        A(f"  v_lshlrev_b32 v4, 2, v{vLANE}\n  v_add_u32 v4, {L_GUP}, v4")
        A(f"  v_and_b32 v5, 1, v{vLANE}\n  v_lshlrev_b32 v5, 6, v5\n  v_and_b32 v6, 62, v{vLANE}\n  v_add_u32 v5, v5, v6")
        A("  s_barrier")
        for w in range(8): A(f"  ds_read2st64_b32 {vp(8+2*w)}, v4 offset0:{2*w} offset1:{2*w+1}")
        A("  s_waitcnt lgkmcnt(4)")
        A("  v_add_f32 v8, v8, v10\n  v_add_f32 v9, v9, v11\n  v_add_f32 v12, v12, v14\n  v_add_f32 v13, v13, v15\n  v_add_f32 v8, v8, v12\n  v_add_f32 v9, v9, v13")
        A("  s_waitcnt lgkmcnt(0)")
        A("  v_add_f32 v16, v16, v18\n  v_add_f32 v17, v17, v19\n  v_add_f32 v20, v20, v22\n  v_add_f32 v21, v21, v23\n  v_add_f32 v16, v16, v20\n  v_add_f32 v17, v17, v21")
        A("  v_add_f32 v8, v8, v16\n  v_add_f32 v9, v9, v17")
        self.rnd2(8, 9, 10)
        A(f"  v_mul_f32 v8, s{sLOG2E}, v8\n  v_exp_f32 v8, -v8\n  v_add_f32 v8, 1.0, v8\n  v_rcp_f32 v8, v8")
        self.rnd1(8, 10)
        A(f"  v_mul_f32 v8, v8, v9\n  v_cvt_pk_bf16_f32 v8, v8, v8\n  ds_write_b16 v5, v8 offset:{L_HH}\n  s_waitcnt lgkmcnt(0)")
        A("  s_barrier")
        self.stamp(4)
        self.dumpv(8, 1, 0xE0000, 2, 256)
        A("  s_branch L_exit")

    def build(self):
        A = self.A; c = self.c
        A(f"{KNAME}:")
        if c["stamps"]:
            for k in range(1, 8): A(f"  s_mov_b64 s[{70+2*k}:{71+2*k}], 0")
        self.stamp(0)
        A("  s_cmp_ge_u32 s2, 256\n  s_cbranch_scc1 L_end")
        A("  s_load_dwordx16 s[4:19], s[0:1], 0\n  s_load_dwordx8 s[20:27], s[0:1], 64\n  s_load_dwordx4 s[28:31], s[0:1], 96")
        A(f"  v_lshrrev_b32 v2, 6, v0\n  v_and_b32 v0, 63, v0\n  v_readfirstlane_b32 s{sWAVE}, v2")
        A(f"  s_and_b32 s{sXCD}, s2, 7\n  s_lshr_b32 s{sIDX}, s2, 3\n  s_lshr_b32 s{sB}, s{sIDX}, 2\n  s_and_b32 s{sJ}, s{sIDX}, 3")
        A(f"  s_lshl_b32 s{sH}, s{sXCD}, 2\n  s_add_u32 s{sH}, s{sH}, s{sJ}")
        A(f"  v_lshlrev_b32 v{vL16}, 4, v0\n  v_lshrrev_b32 v{vG}, 4, v0\n  v_and_b32 v{vJ}, 15, v0\n  v_mov_b32 v{vZ}, 0\n  v_mov_b32 v{vONE}, 1")
        A(f"  s_add_u32 s60, s{sXCD}, 1\n  s_lshr_b32 s60, s60, 1\n  s_mul_i32 s{sSL}, s{sXCD}, 5\n  s_add_u32 s{sSL}, s{sSL}, s60\n  s_add_u32 s{sSL}, s{sSL}, s{sB}")
        A(f"  s_and_b32 s60, s{sXCD}, 1\n  s_sub_u32 s60, 6, s60\n  s_cmp_lt_u32 s{sB}, s60\n  s_cselect_b32 s{sFFN}, 1, 0\n  s_cmp_lt_u32 s{sSL}, 43\n  s_cselect_b32 s{sFFN}, s{sFFN}, 0")
        A(f"  s_mov_b32 s{sGUARD}, 0\n  s_mov_b32 s{sPLO}, 0x05040100\n  s_mov_b32 s{sPHI}, 0x07060302\n  s_mov_b32 s{sLOG2E}, {LOG2E:#x}")
        A(f"  s_cmp_ge_u32 s{sWAVE}, 8\n  s_cbranch_scc1 L_helper")
        A(f"  s_lshl_b32 s60, s{sB}, 5\n  s_add_u32 s60, s60, s{sH}\n  s_lshl_b32 s60, s60, 20\n  s_add_u32 s60, s60, 0xC0000")
        A(f"  s_lshl_b32 s{sOFF}, s{sWAVE}, 12")
        for G in range(1, 8): A(f"  s_add_u32 s{sOFF+G}, s{sOFF}, {G*32768}")
        A(f"  s_mov_b32 s{SRDA+2}, 0x40000\n  s_mov_b32 s{SRDA+3}, 0x20000\n  s_mov_b32 s{SRDB+2}, 0x40000\n  s_mov_b32 s{SRDB+3}, 0x20000")
        A("  s_waitcnt lgkmcnt(0)")
        A(f"  s_add_u32 s{SRDA}, s{sK}, s60\n  s_addc_u32 s{SRDA+1}, s{sK+1}, 0\n  s_add_u32 s{SRDB}, s{sV}, s60\n  s_addc_u32 s{SRDB+1}, s{sV+1}, 0")
        if c["Dodd"]:
            A(f"  s_bitcmp1_b32 s{sXCD}, 0\n  s_cbranch_scc1 L_sodd")
        self.streamer(c["D"], "e")
        if c["Dodd"]:
            A("L_sodd:")
            self.streamer(c["Dodd"], "o")
        self.streamer_ffn()
        self.helper()
        A("L_exit:")
        if c["stamps"]:
            A("  s_mov_b64 exec, 1\n  s_waitcnt lgkmcnt(0)")
            A(f"  s_mul_i32 s60, s2, 12\n  s_add_u32 s60, s60, s{sWAVE}\n  s_lshl_b32 s60, s60, 6\n  s_add_u32 s60, s60, {WS_STAMP}\n  v_mov_b32 v4, s60")
            for k in range(8):
                A(f"  v_mov_b32 v6, s{70+2*k}\n  v_mov_b32 v7, s{71+2*k}\n  global_store_dwordx2 v4, v[6:7], {sp(sWS)} offset:{8*k}")
        A("L_end:\n  s_endpgm")
        body = fix_hazards(self.L)
        est = sum(8 for ln in body.split("\n") if ln.strip() and not ln.strip().endswith(":"))
        nk = c.get("prefkib") or 24
        def pf(n0, n1):
            o = []
            cur = 0
            for i in range(n0, n1):
                while i * 1024 - cur > 3072:
                    o.append("  s_add_u32 s60, s60, 4096\n  s_addc_u32 s61, s61, 0"); cur += 4096
                o.append(f"  global_load_dword v37, v{vL16}, s[60:61] offset:{i*1024-cur}")
            return "\n".join(o)
        body = body.replace("  PREFETCH2", pf(0, nk) + "\n  s_waitcnt vmcnt(0)").replace("  PREFETCH", pf(0, nk))
        out = HEADER + f"; @launch grid=(256,1,1) block=(768,1,1) lds={LDS_BYTES}\n"
        out += '.amdgcn_target "amdgcn-amd-amdhsa--gfx950"\n.text\n'
        out += f".globl {KNAME}\n.p2align 8\n.type {KNAME},@function\n" + body
        out += f"  .fill 64, 4, 0xbf800000\nL_codeend:\n.if (L_codeend - {KNAME}) < {nk*1024}\n.fill ({nk*1024} - (L_codeend - {KNAME}))/4, 4, 0xbf800000\n.endif\n"
        out += f""".section .rodata,"a"
.p2align 6
.amdhsa_kernel {KNAME}
  .amdhsa_next_free_vgpr 168
  .amdhsa_next_free_sgpr 96
  .amdhsa_accum_offset 168
  .amdhsa_group_segment_fixed_size 0
  .amdhsa_kernarg_size 112
  .amdhsa_user_sgpr_count 2
  .amdhsa_user_sgpr_kernarg_segment_ptr 1
  .amdhsa_system_sgpr_workgroup_id_x 1
  .amdhsa_float_denorm_mode_32 3
.end_amdhsa_kernel
"""
        return out

def gen(**cfg): return Gen(**cfg).build()

if __name__ == "__main__":
    import json
    cfg = json.loads(sys.argv[2]) if len(sys.argv) > 2 else {}
    open(sys.argv[1], "w").write(gen(**cfg))
```

```python
import sys, struct
from asmlib import fix_hazards

KNAME = "adaLN_cond__sliding_block_cached__glu_gated_glu__decode_kernel"

HEADER = """; Kernarg layout for this problem (112 bytes, ptrs only, base s[0:1]):
;   offset  32: d_in[4] A_wo  shape=(4096, 512) dtype=bfloat16
;   offset  80: d_in[10] w_mod  shape=(512, 3072) dtype=bfloat16
;   offset 104: d_ws      workspace
; One workgroup per (batch, head): 8 streamer waves (K/V -> registers, QK, softmax, PV, then the GLU slice)
; and 4 helper waves (adaLN modulation, q projection, output projection, cross-workgroup hand-offs).
"""

WS_MOD, WS_STAT, WS_MARK, WS_ACC, WS_QTAG, WS_HINT, WS_INBOX, WS_QIN, WS_DUMP, WS_STAMP = 0x0, 0xC000, 0xD000, 0x10000, 0x18000, 0x20000, 0x40000, 0x1C0000, 0x200000, 0x20000000
F_H, F_Q, F_Q2, F_ST, F_O, F_MOD, F_MOD2, F_C, F_P, F_W, F_K, F_A, F_R, F_N = 0, 4, 8, 12, 16, 20, 24, 28, 32, 36, 40, 44, 48, 52
L_STATS, L_QB, L_OP, L_OB, L_HBUF, L_QP = 0x40, 0x100, 0x200, 0x1200, 0x2A00, 0x3200
L_MODR, L_H2, L_X1, L_GUP, L_HH, L_MODP = 0x2200, 0x4A00, 0x5200, 0x5A00, 0x6A00, 0x7000
L_V = 0x7000

def f2u(x): return struct.unpack("<I", struct.pack("<f", x))[0]
INB = 11264
TAGX = 0x5bd1e995
LOG2E = f2u(1.4426950408889634)
SCALE = f2u(128 ** -0.5)

sX, sK, sV, sWQ, sWO, sG, sU, sDN, sC, sWM, sOUT, sDBG, sWS = 4, 6, 8, 10, 12, 16, 18, 20, 22, 24, 26, 28, 30
sWAVE, sXCD, sIDX, sB, sJ, sH, sSL, sFFN = 32, 33, 34, 35, 36, 37, 38, 39
sOFF = 40
SRDA, SRDB = 48, 52
sPLO, sPHI, sGUARD, sLOG2E = 62, 63, 64, 66
sHW = 67
vLANE, vL16, vG, vJ, vZ, vONE = 0, 1, 2, 3, 38, 39

def sp(r): return f"s[{r}:{r+1}]"
def sq(r): return f"s[{r}:{r+3}]"
def vp(r): return f"v[{r}:{r+1}]"
def vq(r): return f"v[{r}:{r+3}]"

class Gen:
    def __init__(self, **cfg):
        self.c = dict(D=3, HD=3, HD0=6, HDO=3, P0=24, stamps=False, dump=False, guard=400000, pref=True,
                      inbox_sleep=6, hint_sleep=2, Dodd=None, pref2=True, prefwg=16, prefkib=26, hint_at=28, poll_sleep=8, NV=16, depth=[2.75, 2.75, 3.5, 3.5], FD=3, NF0=0, HDOf=1.5, H0D=4, H0D1=2, prio=2, nowo=False, wo_at=6, abl=None, init_mode='full', ablD=7, H0DQ=18, H0pre=True, fillD=4, nofill=False, q_sleep0=8, q_sleep=8, a_sleep=16, xskip=[], plainA=True, down_late=True, wofl=' nt', tlb=0, modlag=2, HDf=3.0, ffnfl=' nt', HDP=2, HDPf=1.75, PQ=20)
        self.c.update(cfg)
        self.L = []
        self.nlab = 0

    def A(self, s): self.L.append(s)
    def lab(self, base):
        self.nlab += 1
        return f"L_{base}_{self.nlab}"
    def stamp(self, k):
        if self.c["stamps"]: self.A(f"  s_memrealtime s[{70+2*k}:{71+2*k}]")
    def cstamp(self, k):
        if self.c["stamps"]:
            self.A(f"  s_waitcnt lgkmcnt(0)\n  s_mul_i32 s{70+2*k}, s{sGUARD}, 100\n  s_add_u32 s{70+2*k}, s{70+2*k}, s70\n  s_addc_u32 s{71+2*k}, s71, 0")
    def guard(self):
        if self.c["guard"]:
            self.A(f"  s_add_u32 s{sGUARD}, s{sGUARD}, 1\n  s_cmp_gt_u32 s{sGUARD}, {self.c['guard']}\n  s_cbranch_scc1 L_exit")
    def exec1(self): self.A("  s_mov_b64 exec, 1")
    def execall(self): self.A("  s_mov_b64 exec, -1")

    def lds_spin(self, off, target, tmp, sleep=1):
        l = self.lab("spin"); d = self.lab("spun")
        self.A(f"{l}:")
        self.A(f"  ds_read_b32 v{tmp}, v{vZ} offset:{off}\n  s_waitcnt lgkmcnt(0)\n  v_readfirstlane_b32 s60, v{tmp}")
        self.A(f"  s_cmp_ge_u32 s60, {target}\n  s_cbranch_scc1 {d}")
        self.guard()
        if sleep: self.A(f"  s_sleep {sleep}")
        self.A(f"  s_branch {l}\n{d}:")

    def lds_inc(self, off):
        self.exec1(); self.A(f"  ds_add_u32 v{vZ}, v{vONE} offset:{off}"); self.execall()

    def dumpv(self, reg, n, base, sidx=None, stride=0, tmp=36):
        if not self.c["dump"]: return
        A = self.A
        if sidx is not None:
            A(f"  s_mul_i32 s68, s{sidx}, {stride}\n  s_add_u32 s68, s68, {WS_DUMP + base}")
        else:
            A(f"  s_mov_b32 s68, {WS_DUMP + base}")
        A(f"  v_lshlrev_b32 v{tmp}, {dict([(1,2),(2,3),(4,4)])[n]}, v{vLANE}\n  v_add_u32 v{tmp}, s68, v{tmp}")
        op = {1: "dword", 2: "dwordx2", 4: "dwordx4"}[n]
        r = f"v{reg}" if n == 1 else f"v[{reg}:{reg+n-1}]"
        A(f"  global_store_{op} v{tmp}, {r}, {sp(sWS)}\n  s_waitcnt vmcnt(0)")

    def prefetch(self, wait=False):
        A = self.A
        l = self.lab("nopref"); lp = self.lab("pref"); pc = self.lab("pc")
        A(f"  s_cmp_lg_u32 s{sWAVE}, 10\n  s_cbranch_scc1 {l}\n  s_cmp_ge_u32 s2, {self.c['prefwg']}\n  s_cbranch_scc1 {l}")
        A(f"  s_getpc_b64 s[60:61]\n{pc}:\n  s_sub_u32 s60, s60, {pc}-{KNAME}\n  s_subb_u32 s61, s61, 0\n  v_mov_b32 v36, v{vL16}\n  s_mov_b32 s65, {self.c['prefkib']}")
        A(f"{lp}:\n  global_load_dword v37, v36, s[60:61]\n  v_add_u32 v36, 1024, v36\n  s_sub_u32 s65, s65, 1\n  s_cmp_lg_u32 s65, 0\n  s_cbranch_scc1 {lp}")
        if wait: A("  s_waitcnt vmcnt(0)")
        A(f"{l}:")

    def rnd1(self, x, t):
        self.A(f"  v_cvt_pk_bf16_f32 v{t}, v{x}, v{x}\n  v_and_b32 v{x}, 0xffff0000, v{t}")
    def rnd2(self, x, y, t):
        self.A(f"  v_cvt_pk_bf16_f32 v{t}, v{x}, v{y}\n  v_lshlrev_b32 v{x}, 16, v{t}\n  v_and_b32 v{y}, 0xffff0000, v{t}")
    def rnd8(self, X, T):
        for i in range(4): self.A(f"  v_cvt_pk_bf16_f32 v{T+i}, v{X+2*i}, v{X+2*i+1}")
        self.unpack8(T, X)
    def unpack8(self, src, dst):
        for i in range(4):
            self.A(f"  v_lshlrev_b32 v{dst+2*i}, 16, v{src+i}\n  v_and_b32 v{dst+2*i+1}, 0xffff0000, v{src+i}")
    def wave_reduce(self, op, regs, full=True):
        steps = []
        if full: steps += ["quad_perm:[1,0,3,2] row_mask:0xf bank_mask:0xf", "quad_perm:[2,3,0,1] row_mask:0xf bank_mask:0xf"]
        steps += ["row_ror:4 row_mask:0xf bank_mask:0xf", "row_ror:8 row_mask:0xf bank_mask:0xf",
                  "row_bcast:15 row_mask:0xa bank_mask:0xf", "row_bcast:31 row_mask:0xc bank_mask:0xf"]
        for s in steps:
            for r in regs: self.A(f"  {op}_dpp v{r}, v{r}, v{r} {s}")

    def layernorm(self, X, T, S):
        A = self.A
        A(f"  v_readfirstlane_b32 s60, v{X}")
        for i in range(8): A(f"  v_subrev_f32 v{T+i}, s60, v{X+i}")
        A(f"  v_add_f32 v{S}, v{T}, v{T+1}\n  v_mul_f32 v{S+1}, v{T}, v{T}")
        A(f"  v_fmac_f32 v{S+1}, v{T+1}, v{T+1}")
        for i in range(2, 8): A(f"  v_add_f32 v{S}, v{S}, v{T+i}\n  v_fmac_f32 v{S+1}, v{T+i}, v{T+i}")
        self.wave_reduce("v_add_f32", [S, S + 1])
        A(f"  v_readlane_b32 s61, v{S}, 63\n  v_readlane_b32 s65, v{S+1}, 63")
        inv = f2u(1.0 / 512)
        A(f"  v_mov_b32 v{S+2}, {inv:#x}")
        A(f"  v_mul_f32 v{S}, s61, v{S+2}\n  v_mul_f32 v{S+1}, s65, v{S+2}")
        A(f"  v_fma_f32 v{S+1}, -v{S}, v{S}, v{S+1}\n  v_add_f32 v{S}, s60, v{S}\n  v_max_f32 v{S+1}, 0, v{S+1}")
        self.rnd2(S, S + 1, S + 2)
        A(f"  v_add_f32 v{S+1}, {f2u(1e-5):#x}, v{S+1}")
        for i in range(8): A(f"  v_sub_f32 v{X+i}, v{X+i}, v{S}")
        self.rnd1(S + 1, S + 2)
        A(f"  v_sqrt_f32 v{S+1}, v{S+1}")
        self.rnd8(X, T)
        self.rnd1(S + 1, S + 2)
        A(f"  v_rcp_f32 v{S+2}, v{S+1}")
        A(f"  v_fma_f32 v{S+3}, -v{S+1}, v{S+2}, 1.0\n  v_fmac_f32 v{S+2}, v{S+3}, v{S+2}")
        for i in range(8): A(f"  v_mul_f32 v{T+i}, v{X+i}, v{S+2}")
        for i in range(8): A(f"  v_fma_f32 v{X+i}, -v{T+i}, v{S+1}, v{X+i}")
        for i in range(8): A(f"  v_fma_f32 v{X+i}, v{X+i}, v{S+2}, v{T+i}")
        self.rnd8(X, T)

    def transpose_block(self, B, t0, t1):
        A = self.A
        R = lambda e, t: B + 4 * e + t
        lo = lambda d, a, b: A(f"  v_perm_b32 v{d}, v{b}, v{a}, s{sPLO}")
        hi = lambda d, a, b: A(f"  v_perm_b32 v{d}, v{b}, v{a}, s{sPHI}")
        for p in range(4):
            a, b = R(2 * p, p), R(2 * p + 1, p)
            lo(t0, a, b); hi(b, a, b); A(f"  v_mov_b32 v{a}, v{t0}")
            for t in range(p + 1, 4):
                a, b, c, d = R(2 * p, t), R(2 * p + 1, t), R(2 * t, p), R(2 * t + 1, p)
                lo(t0, a, b); hi(t1, a, b); lo(a, c, d); hi(b, c, d)
                A(f"  v_mov_b32 v{c}, v{t0}\n  v_mov_b32 v{d}, v{t1}")

    def transpose_x2(self, Rb, Bb):
        for c in range(4):
            for p in range(4):
                a, b = Rb + 2 * (2 * p) + (c >> 1), Rb + 2 * (2 * p + 1) + (c >> 1)
                self.A(f"  v_perm_b32 v{Bb+4*c+p}, v{b}, v{a}, s{sPHI if c & 1 else sPLO}")

    def gemv32(self):
        res = []
        for c in range(8):
            Dc = 24 if c == 0 else 40 + 4 * (c - 1)
            for m in range(4):
                self.A(f"  v_mfma_f32_16x16x32_bf16 {vq(Dc)}, {vq(8+4*m)}, {vq(40+32*m+4*c)}, {'0' if m == 0 else vq(Dc)}")
            res.append(Dc)
        return res

    def wload32(self, srd, steps, D, frac=None, hooks=None):
        A = self.A
        done = 0
        for i in range(32):
            dd = D
            if frac is not None and int((i + 1) * (D - frac)) != int(i * (D - frac)): dd = D - 1
            if i >= dd: A(f"  s_waitcnt vmcnt({dd-1})")
            if hooks and i in hooks: hooks[i]()
            A(f"  buffer_load_dwordx4 {vq(40+4*i)}, v4, {sq(srd)}, s40 offen{self.c['wofl']}")
            if i < 31: A(f"  s_add_u32 s40, s40, {steps[i]}")
            landed = i - D + 1 if i >= D else 0
            if landed >= 8 * (done + 1):
                self.transpose_block(40 + 32 * done, 5, 6); done += 1
        while done < 4:
            A(f"  s_waitcnt vmcnt({8*(3-done)})")
            self.transpose_block(40 + 32 * done, 5, 6); done += 1

    def init_duty(self, wave):
        A = self.A
        l2 = self.lab("inited"); l3 = self.lab("noinit")
        A(f"  s_cmp_lg_u32 s{sWAVE}, {wave}\n  s_cbranch_scc1 {l3}")
        mark = len(self.L)
        A("  v_mov_b32 v8, -1\n  v_mov_b32 v9, -1\n  v_mov_b32 v10, -1\n  v_mov_b32 v11, -1")
        A(f"  s_lshl_b32 s60, s2, 12\n  s_add_u32 s60, s60, {WS_QIN}\n  v_add_u32 v5, s60, v{vL16}")
        for i in range(4): A(f"  global_store_dwordx4 v5, {vq(8)}, {sp(sWS)} offset:{1024*i} sc1")
        A(f"  s_cmp_eq_u32 s{sFFN}, 0\n  s_cbranch_scc1 {l2}\n  s_cmp_ge_u32 s{sSL}, 32\n  s_cbranch_scc1 {l2}")
        A(f"  s_lshl_b32 s60, s{sJ}, 5\n  s_add_u32 s60, s60, s{sSL}\n  s_mul_i32 s60, s60, 6144\n  s_add_u32 s60, s60, {WS_INBOX + 2048}\n  v_add_u32 v5, s60, v{vL16}")
        for i in range(6): A(f"  global_store_dwordx4 v5, {vq(8)}, {sp(sWS)} offset:{1024*i - 2048} sc1")
        A(f"  s_cmp_ge_u32 s{sSL}, 8\n  s_cbranch_scc1 {l2}")
        A("  v_mov_b32 v12, 0\n  v_mov_b32 v13, 0\n  v_mov_b32 v14, 0\n  v_mov_b32 v15, 0")
        A(f"  s_lshl_b32 s60, s{sJ}, 3\n  s_add_u32 s60, s60, s{sSL}\n  s_lshl_b32 s60, s60, 10\n  s_add_u32 s60, s60, {WS_ACC}\n  v_add_u32 v5, s60, v{vL16}")
        A(f"  global_store_dwordx4 v5, {vq(12)}, {sp(sWS)} sc1")
        if self.c["init_mode"] == "nostore": self.L[mark:] = []
        A(f"{l2}:\n  s_waitcnt vmcnt(0)")
        if self.c["init_mode"] != "noticket":
            A(f"  s_mov_b32 s65, 1\n  s_atomic_add s65, {sp(sDBG)}, 0x4 glc\n  s_waitcnt lgkmcnt(0)")
            A(f"  s_cmp_lg_u32 s65, 255\n  s_cbranch_scc1 {l3}\n  s_mov_b32 s65, 1\n  s_atomic_add s65, {sp(sDBG)}, 0x84")
        A(f"{l3}:")

    def streamer(self, D, tag):
        A = self.A; c = self.c
        T = lambda n: 40 + 4 * n
        issued = []
        def issue(name, srd, n):
            A(f"  buffer_load_dwordx4 {vq(T(n))}, v{vL16}, {sq(srd)}, s{sOFF + (n >> 2)} offen offset:{1024*(n&3)} nt")
            issued.append(name)
        def pace():
            n = len(issued)
            if n >= D: A(f"  s_waitcnt vmcnt({D-1})")
            if n >= D - 2 and n < 64:
                l = self.lab("pc")
                A(f"  s_bitcmp1_b64 s[58:59], {n}\n  s_cbranch_scc0 {l}\n  s_waitcnt vmcnt({D-2})")
                A(f"  s_bitcmp1_b64 s[14:15], {n}\n  s_cbranch_scc0 {l}\n  s_waitcnt vmcnt({D-3})\n{l}:")
        def waitfor(name):
            A(f"  s_waitcnt vmcnt({len(issued) - 1 - issued.index(name)})")
        lnp = self.lab("noprod"); lj = self.lab("joined")
        NJ = D + c["modlag"]
        A(f"  s_cmp_ge_u32 s57, {48 if (c['abl'] is None or 'mod' in c['abl']) else 0}\n  s_cbranch_scc1 {lnp}")
        self.mod_loads()
        A("  s_barrier")
        self.stamp(8)
        self.mod_compute_a()
        A(f"  s_waitcnt vmcnt({c['prio']})")
        for n in range(D - 1): issue(f"K{n}", SRDA, n)
        A(f"  s_load_dword s3, {sp(sDBG)}, 0x80")
        A(f"  s_waitcnt vmcnt({D-1})")
        self.stamp(9)
        self.mod_compute_b()
        for n in range(D - 1, NJ):
            A(f"  s_waitcnt vmcnt({D-1})"); issue(f"K{n}", SRDA, n)
        self.mod_compute_c()
        self.stamp(14)
        if c["wo_at"] is not None and c["wo_at"] < NJ: self.lds_inc(F_K)
        A(f"  s_branch {lj}\n{lnp}:")
        issued.clear()
        for n in range(32):
            if n == NJ: A(f"{lj}:")
            pace(); issue(f"K{n}", SRDA, n)
            if n == 0: self.stamp(8)
            if n in (4, 8, 16, 24): self.stamp({4: 10, 8: 11, 16: 12, 24: 13}[n])
            if n == c["wo_at"]: self.lds_inc(F_K)
            if n == D - 3:
                A("  s_barrier")
                self.stamp(9)
            if n == NJ:
                A(f"  v_lshrrev_b32 v12, 1, v{vJ}\n  v_and_b32 v13, 1, v{vJ}\n  v_mov_b32 v14, 0xffff\n  v_lshlrev_b32 v13, 4, v13\n  v_lshlrev_b32 v14, v13, v14")
                for j in range(4):
                    A(f"  v_cmp_eq_u32 vcc, {j}, v12\n  v_cndmask_b32 v{4+j}, 0, v14, vcc")
        NV = c["NV"]
        slot = lambda n: T(32 - NV + n) if n < NV else T(n - NV)
        l = self.lab("nomodchk")
        A(f"  s_cmp_ge_u32 s57, {48 if (c['abl'] is None or 'mod' in c['abl']) else 0}\n  s_cbranch_scc1 {l}")
        self.lds_spin(F_MOD2, 8, 12)
        A(f"{l}:")
        for n in range(NV):
            if n % 4 == 0: A(f"  s_add_u32 m0, s56, {4096 * (n // 4)}")
            pace()
            A(f"  buffer_load_dwordx4 v{vL16}, {sq(SRDB)}, s{sOFF + (n >> 2)} offen offset:{1024*(n&3)} nt lds")
            issued.append(f"V{n}")
        self.stamp(1)
        self.lds_spin(F_Q2, 1, 12)
        self.stamp(2)
        A(f"  v_lshlrev_b32 v12, 4, v{vJ}\n  ds_read_b128 {vq(8)}, v12 offset:{L_QB}\n  s_waitcnt lgkmcnt(0)")
        def qk(G):
            z = 18 + G
            for r in range(4):
                for t in range(4):
                    A(f"  v_dot2_f32_bf16 v{12+t}, v{T(4*G+t)+r}, v{8+r}, {'0' if r == 0 else f'v{12+t}'}")
            A(f"  v_add_f32_dpp v16, v12, v12 row_ror:8 row_mask:0xf bank_mask:0x3")
            A(f"  v_add_f32_dpp v17, v14, v14 row_ror:8 row_mask:0xf bank_mask:0x3")
            A(f"  v_add_f32_dpp v16, v13, v13 row_ror:8 row_mask:0xf bank_mask:0xc")
            A(f"  v_add_f32_dpp v17, v15, v15 row_ror:8 row_mask:0xf bank_mask:0xc")
            A(f"  v_add_f32_dpp v{z}, v16, v16 row_shl:4 row_mask:0xf bank_mask:0x5")
            A(f"  v_add_f32_dpp v{z}, v17, v17 row_shr:4 row_mask:0xf bank_mask:0xa")
            A(f"  v_add_f32_dpp v{z}, v{z}, v{z} quad_perm:[1,0,3,2] row_mask:0xf bank_mask:0xf")
            A(f"  v_add_f32_dpp v{z}, v{z}, v{z} quad_perm:[2,3,0,1] row_mask:0xf bank_mask:0xf")
        nv = NV
        def nextv():
            nonlocal nv
            pace()
            A(f"  buffer_load_dwordx4 {vq(slot(nv))}, v{vL16}, {sq(SRDB)}, s{sOFF + (nv >> 2)} offen offset:{1024*(nv&3)} nt")
            issued.append(f"V{nv}"); nv += 1
        qk(0)
        groups = list(range(1, 7))
        per = -(-len(groups) // D)
        for i in range(D):
            nextv()
            for G in groups[i * per:(i + 1) * per]: qk(G)
        qk(7)
        if NV:
            A(f"  v_add_u32 v34, s56, v{vL16}")
            for n in range(NV): A(f"  ds_read_b128 {vq(slot(n))}, v34 offset:{1024*n}")
        A(f"  s_mov_b32 s60, {SCALE:#x}")
        for i in range(4): self.rnd2(18 + 2 * i, 19 + 2 * i, 12 + i)
        for i in range(8): A(f"  v_mul_f32 v{18+i}, s60, v{18+i}")
        for i in range(4): self.rnd2(18 + 2 * i, 19 + 2 * i, 12 + i)
        A("  v_max3_f32 v12, v18, v19, v20\n  v_max3_f32 v13, v21, v22, v23\n  v_max3_f32 v12, v12, v24, v25\n  v_max_f32 v12, v12, v13")
        self.wave_reduce("v_max_f32", [12], full=False)
        A("  v_readlane_b32 s61, v12, 63")
        for i in range(8): A(f"  v_subrev_f32 v{26+i}, s61, v{18+i}")
        for i in range(8): A(f"  v_mul_f32 v{26+i}, s{sLOG2E}, v{26+i}")
        for i in range(8): A(f"  v_exp_f32 v{26+i}, v{26+i}")
        A("  v_add_f32 v13, v26, v27\n  v_add_f32 v14, v28, v29\n  v_add_f32 v15, v30, v31\n  v_add_f32 v16, v32, v33")
        A("  v_add_f32 v13, v13, v14\n  v_add_f32 v15, v15, v16\n  v_add_f32 v13, v13, v15")
        self.wave_reduce("v_add_f32", [13], full=False)
        A(f"  s_lshl_b32 s60, s{sWAVE}, 3\n  v_mov_b32 v14, s60")
        A("  s_mov_b32 exec_lo, 0\n  s_mov_b32 exec_hi, 0x80000000")
        A(f"  ds_write_b64 v14, v[12:13] offset:{L_STATS}\n  ds_add_u32 v{vZ}, v{vONE} offset:{F_ST}")
        self.execall()
        nextv(); nextv()
        self.lds_spin(F_ST, 8, 12)
        A(f"  v_and_b32 v14, 7, v{vLANE}\n  v_lshlrev_b32 v14, 3, v14\n  ds_read_b64 v[12:13], v14 offset:{L_STATS}\n  s_waitcnt lgkmcnt(0)")
        red8 = ["quad_perm:[1,0,3,2]", "quad_perm:[2,3,0,1]", "row_ror:4"]
        A("  v_mov_b32 v14, v12")
        for s in red8: A(f"  v_max_f32_dpp v14, v14, v14 {s} row_mask:0xf bank_mask:0xf")
        A(f"  v_sub_f32 v12, v12, v14\n  v_mul_f32 v12, s{sLOG2E}, v12\n  v_exp_f32 v12, v12")
        for i in range(8): A(f"  v_sub_f32 v{26+i}, v{18+i}, v14")
        A("  v_mul_f32 v13, v13, v12")
        for i in range(8): A(f"  v_mul_f32 v{26+i}, s{sLOG2E}, v{26+i}")
        for s in red8: A(f"  v_add_f32_dpp v13, v13, v13 {s} row_mask:0xf bank_mask:0xf")
        for i in range(8): A(f"  v_exp_f32 v{26+i}, v{26+i}")
        A("  v_rcp_f32 v15, v13\n  v_fma_f32 v16, -v13, v15, 1.0\n  v_fmac_f32 v15, v16, v15")
        if c["dump"]:
            for i in range(8):
                A(f"  s_lshl_b32 s69, s2, 3\n  s_add_u32 s69, s69, s{sWAVE}\n  s_lshl_b32 s69, s69, 3\n  s_add_u32 s69, s69, {i}")
                self.dumpv(18 + i, 1, 0x100000, 69, 256, tmp=36)
        for i in range(8): A(f"  v_mul_f32 v{26+i}, v{26+i}, v15")
        for i in range(8): A(f"  v_cvt_pk_bf16_f32 v{18+i}, v{26+i}, v{26+i}")
        self.stamp(3)
        npv = 0
        def pv():
            nonlocal npv
            n = npv; npv += 1
            Ab = 26 + 4 * (n & 1)
            bank = [0, 2, 1, 3][n & 3]
            for j in range(4):
                A(f"  v_and_b32_dpp v{Ab+j}, v{18+(n>>2)}, v{4+j} row_newbcast:{4*bank} row_mask:0xf bank_mask:0xf")
            A(f"  v_mfma_f32_16x16x32_bf16 {vq(34)}, {vq(Ab)}, {vq(slot(n))}, {'0' if n == 0 else vq(34)}")
            if n == c["hint_at"]: self.lds_inc(F_P)
        self.ffn_addr()
        def vstep():
            nextv()
            landed = nv - D
            k = 0
            while npv < landed and k < 3:
                pv(); k += 1
        def finish():
            while npv < 32:
                waitfor(f"V{npv}"); pv()
            A(f"  v_lshlrev_b32 v12, 5, v{vJ}\n  v_lshl_add_u32 v12, v{vG}, 4, v12\n  s_lshl_b32 s60, s{sWAVE}, 9\n  v_add_u32 v12, s60, v12")
            A("  s_mov_b32 exec_hi, 0")
            A(f"  ds_write_b128 v12, {vq(34)} offset:{L_OP}")
            self.lds_inc(F_O)
            self.stamp(5)
        NF0 = c["NF0"]
        while nv < 32 - NF0: vstep()
        assert npv >= NV or NF0 == 0, (npv, NV)
        lf = self.lab("vffn")
        if c["abl"] is None and "T" not in c["xskip"]: A(f"  s_cmp_lg_u32 s{sFFN}, 0\n  s_cbranch_scc1 {lf}")
        st = (nv, npv, list(issued))
        while nv < 32: vstep()
        self.stamp(4)
        finish()
        A("  s_branch L_exit")
        A(f"{lf}:")
        nv, npv = st[0], st[1]; issued[:] = st[2]
        nf = 0
        while nv < 32:
            waitfor(f"V{nv - (D - 1)}")
            A(f"  buffer_load_dwordx4 {vq(slot(nv))}, v{vL16}, {sq(SRDB)}, s{sOFF + (nv >> 2)} offen offset:{1024*(nv&3)} nt")
            issued.append(f"V{nv}"); nv += 1
            self.ffn_load(nf); issued.append(f"F{nf}"); nf += 1
            k = 0
            while npv < nv - D + 1 and k < 3:
                pv(); k += 1
        self.stamp(4)
        finish()
        FD = c["FD"]
        while nf < FD:
            self.ffn_load(nf); issued.append(f"F{nf}"); nf += 1
        self.lds_spin(F_A, 4, 12)
        while nf < 16:
            self.ffn_load(nf); issued.append(f"F{nf}"); nf += 1
        self.ffn_lds_addr()
        waitfor("F7"); self.transpose_x2(120, 40)
        if c["down_late"]: self.lds_spin(F_R, 2, 12)
        while nf < 24:
            self.ffn_load(nf); issued.append(f"F{nf}"); nf += 1
        waitfor("F15"); self.transpose_x2(136, 56)

    def ffn_addr(self):
        A = self.A
        A(f"  v_cmp_gt_u32 vcc, 8, v{vJ}")
        A(f"  v_mov_b32 v12, s{sU}\n  v_mov_b32 v13, s{sU+1}\n  v_mov_b32 v14, s{sG}\n  v_mov_b32 v15, s{sG+1}")
        A(f"  v_cndmask_b32 v8, v12, v14, vcc\n  v_cndmask_b32 v9, v13, v15, vcc")
        A(f"  s_lshr_b32 s16, s{sJ}, 1\n  s_and_b32 s17, s{sJ}, 1")
        A(f"  s_lshl_b32 s60, s{sWAVE}, 6\n  s_lshl_b32 s61, s16, 5\n  s_add_u32 s60, s60, s61\n  s_lshl_b32 s61, s17, 2\n  s_add_u32 s60, s60, s61")
        A(f"  v_lshl_add_u32 v12, v{vG}, 3, s60\n  v_mul_u32_u24 v12, 2752, v12")
        A(f"  v_and_b32 v13, 7, v{vJ}\n  v_lshl_add_u32 v12, v13, 3, v12\n  s_lshl_b32 s60, s{sSL}, 6\n  v_add_u32 v12, s60, v12\n  v_mov_b32 v13, 0")
        A(f"  v_lshl_add_u64 v[8:9], v[8:9], 0, v[12:13]")
        A(f"  s_mov_b32 s10, 5504\n  s_mov_b32 s11, 0")
        A(f"  s_cmp_eq_u32 s17, 0\n  s_cselect_b32 s60, 4, -4\n  s_cmp_eq_u32 s16, 0\n  s_cselect_b32 s61, 32, -32")
        A(f"  s_sub_i32 s61, s61, s60\n  s_sub_i32 s60, s60, 2\n  s_sub_i32 s61, s61, 2")
        A(f"  s_mul_i32 s12, s60, 2752\n  s_ashr_i32 s13, s12, 31\n  s_mul_i32 s6, s61, 2752\n  s_ashr_i32 s7, s6, 31")
        A(f"  s_mov_b32 s{SRDA}, s{sDN}\n  s_mov_b32 s{SRDA+1}, s{sDN+1}\n  s_mov_b32 s{SRDA+2}, 1409024\n  s_mov_b32 s{SRDA+3}, 0x20000")
        A(f"  v_lshlrev_b32 v10, 13, v{vG}\n  v_lshl_add_u32 v10, v{vJ}, 3, v10")
        A(f"  s_lshl_b32 s18, s{sSL}, 15\n  s_lshl_b32 s19, s{sWAVE}, 7\n  s_add_u32 s18, s18, s19\n  s_add_u32 s19, s18, 4096")

    def ffn_load(self, i):
        A = self.A
        if i < 16:
            A(f"  global_load_dwordx2 {vp(120+2*i)}, v[8:9], off{' offset:2752' if i & 1 else ''}{self.c['ffnfl']}")
            if i & 1 and i < 15:
                step = "s[10:11]" if (i & 3) == 1 else ("s[6:7]" if i == 7 else "s[12:13]")
                A(f"  v_lshl_add_u64 v[8:9], v[8:9], 0, {step}")
        else:
            e = i - 16
            A(f"  buffer_load_dwordx2 {vp(152+2*e)}, v10, {sq(SRDA)}, s{18 + (e >> 2)} offen offset:{1024*(e&3)}{self.c['ffnfl']}")

    def ffn_lds_addr(self):
        A = self.A
        A(f"  v_and_b32 v12, 1, v{vJ}\n  v_lshlrev_b32 v112, 10, v12\n  v_lshl_add_u32 v112, v{vG}, 4, v112\n  s_lshl_b32 s60, s{sWAVE}, 7\n  v_add_u32 v112, s60, v112")
        A(f"  s_lshl_b32 s60, s16, 6\n  s_lshl_b32 s61, s17, 3\n  s_add_u32 s60, s60, s61\n  v_add_u32 v112, s60, v112")
        A(f"  v_xor_b32 v113, 8, v112\n  v_xor_b32 v114, 64, v112\n  v_xor_b32 v115, 0x48, v112")
        A(f"  v_lshlrev_b32 v116, 6, v12\n  v_lshl_add_u32 v116, v{vG}, 4, v116")
        A(f"  v_lshlrev_b32 v117, 5, v{vJ}\n  v_lshl_add_u32 v117, v{vG}, 3, v117\n  s_lshl_b32 s60, s{sWAVE}, 9\n  v_add_u32 v117, s60, v117")
        A(f"  s_lshl_b32 s60, s{sJ}, 5\n  s_lshl_b32 s61, s{sWAVE}, 2\n  s_add_u32 s60, s60, s61\n  v_add_u32 v118, s60, v{vG}\n  v_mul_u32_u24 v118, {INB}, v118")
        A(f"  s_lshl_b32 s60, s{sSL}, 8\n  s_add_u32 s60, s60, {WS_INBOX}\n  v_lshl_add_u32 v12, v{vJ}, 4, s60\n  v_add_u32 v118, v12, v118")
        A(f"  ds_read_b32 v119, v{vZ} offset:{F_N}")

    def streamer_ffn(self):
        A = self.A
        self.stamp(6)
        A("  s_barrier")
        for i in range(4): A(f"  ds_read_b64 {vp(88+2*i)}, v{112+i} offset:{L_H2}")
        A("  s_waitcnt lgkmcnt(2)")
        for cc in range(4): A(f"  v_mfma_f32_16x16x32_bf16 {vq(96+4*cc)}, {vq(88)}, {vq(40+4*cc)}, 0")
        A("  s_waitcnt lgkmcnt(0)")
        for cc in range(4): A(f"  v_mfma_f32_16x16x32_bf16 {vq(96+4*cc)}, {vq(92)}, {vq(56+4*cc)}, {vq(96+4*cc)}")
        def select():
            for g in range(1, 4):
                for r in range(2):
                    A(f"  v_mov_b32_dpp v{96+r}, v{96+4*g+r} quad_perm:[0,1,2,3] row_mask:{1<<g:#x} bank_mask:0xf")
        select()
        A(f"  ds_write_b64 v117, v[96:97] offset:{L_GUP}\n  s_waitcnt lgkmcnt(0)")
        A("  s_barrier")
        A("  s_waitcnt vmcnt(0)"); self.transpose_x2(152, 72)
        A("  s_barrier")
        A(f"  ds_read_b128 {vq(88)}, v116 offset:{L_HH}\n  s_waitcnt lgkmcnt(0)")
        for cc in range(4): A(f"  v_mfma_f32_16x16x32_bf16 {vq(96+4*cc)}, {vq(88)}, {vq(72+4*cc)}, 0")
        select()
        A(f"  v_mov_b32 v98, v119\n  v_xor_b32 v99, {TAGX:#x}, v119")
        A(f"  global_store_dwordx4 v118, {vq(96)}, {sp(sWS)} sc1")
        self.stamp(7)
        A("  s_branch L_exit")

    def mod_loads(self):
        A = self.A
        A(f"  v_and_b32 v4, 7, v{vJ}\n  v_lshrrev_b32 v5, 3, v{vJ}\n  v_lshlrev_b32 v6, 10, v4\n  v_lshl_add_u32 v6, v5, 6, v6\n  v_lshl_add_u32 v6, v{vG}, 4, v6")
        A(f"  s_lshl_b32 s60, s{sWAVE}, 7\n  v_add_u32 v6, s60, v6")
        A(f"  global_load_dwordx4 {vq(8)}, v6, {sp(sC)}")
        A(f"  v_lshlrev_b32 v7, 5, v5\n  v_lshl_add_u32 v7, v{vG}, 3, v7\n  v_mul_u32_u24 v7, 6144, v7\n  v_lshl_add_u32 v7, v4, 4, v7")
        A(f"  s_mul_i32 s60, s{sWAVE}, {64*6144}\n  s_lshl_b32 s61, s57, 7\n  s_add_u32 s60, s60, s61\n  v_add_u32 v7, s60, v7")
        for i in range(8):
            A(f"  global_load_dwordx4 {vq(136+4*i)}, v7, {sp(sWM)} nt")
            if i < 7: A(f"  v_add_u32 v7, 6144, v7")

    def mod_compute_a(self):
        A = self.A
        A(f"  s_lshl_b32 s60, s{sWAVE}, 12\n  s_add_u32 s60, s60, {L_V}\n  v_lshlrev_b32 v28, 11, v5\n  v_lshl_add_u32 v28, v4, 8, v28\n  v_and_b32 v29, 1, v{vG}\n  v_lshl_add_u32 v28, v29, 4, v28\n  v_add_u32 v28, s60, v28")
        A(f"  v_lshrrev_b32 v29, 1, v{vG}\n  v_cmp_eq_u32 s[68:69], v29, v5")
        A("  s_waitcnt vmcnt(8)")
        for i in range(4):
            r = 8 + i
            A(f"  v_lshlrev_b32 v16, 16, v{r}\n  v_and_b32 v17, 0xffff0000, v{r}")
            A(f"  v_mul_f32 v18, s{sLOG2E}, v16\n  v_mul_f32 v19, s{sLOG2E}, v17")
            A(f"  v_exp_f32 v18, -v18\n  v_exp_f32 v19, -v19")
            A(f"  v_add_f32 v18, 1.0, v18\n  v_add_f32 v19, 1.0, v19\n  v_rcp_f32 v18, v18\n  v_rcp_f32 v19, v19")
            A(f"  v_mul_f32 v16, v16, v18\n  v_mul_f32 v17, v17, v19\n  v_cvt_pk_bf16_f32 v{r}, v16, v17")

    def mod_compute_b(self):
        A = self.A
        self.transpose_block(136, 5, 6)
        for cc in range(8):
            A(f"  v_mfma_f32_16x16x32_bf16 {vq(104+4*cc)}, {vq(8)}, {vq(136+4*cc)}, 0")
        A("  s_mov_b64 exec, s[68:69]")
        for cc in range(8):
            A(f"  ds_write_b128 v28, {vq(104+4*cc)} offset:{32*cc}")
        self.lds_inc(F_MOD)

    def mod_compute_c(self):
        A = self.A
        A(f"  v_and_b32 v4, 31, v{vLANE}\n  v_lshrrev_b32 v5, 5, v{vLANE}\n  v_lshlrev_b32 v6, 6, v4\n  v_lshl_add_u32 v6, v5, 14, v6\n  s_lshl_b32 s60, s{sWAVE}, 2\n  s_add_u32 s60, s60, {L_V}\n  v_add_u32 v6, s60, v6")
        A(f"  s_mul_i32 s60, s{sWAVE}, 6144\n  s_lshl_b32 s61, s57, 7\n  s_add_u32 s60, s60, s61\n  s_add_u32 s60, s60, {WS_MOD}\n  v_lshl_add_u32 v5, v4, 2, s60")
        self.lds_spin(F_MOD, 8, 7)
        for part in range(8):
            if part: A(f"  v_add_u32 v6, 2048, v6")
            A(f"  ds_read2_b32 {vp(8+2*part)}, v6 offset0:0 offset1:8")
        l = self.lab("pollSN"); d = self.lab("gotSN")
        A(f"{l}:\n  s_cmp_lg_u32 s3, 0\n  s_cbranch_scc1 {d}")
        self.guard()
        A(f"  s_load_dword s3, {sp(sDBG)}, 0x80 glc\n  s_waitcnt lgkmcnt(0)\n  s_branch {l}\n{d}:")
        A("  s_waitcnt lgkmcnt(0)")
        self.lds_inc(F_MOD2)
        for part in range(1, 8):
            A(f"  v_add_f32 v8, v8, v{8+2*part}\n  v_add_f32 v9, v9, v{9+2*part}")
        A("  v_mov_b32 v10, v8\n  v_mov_b32 v11, v9\n  v_permlane32_swap_b32 v10, v8\n  v_permlane32_swap_b32 v11, v9\n  v_add_f32 v8, v8, v10\n  v_add_f32 v9, v9, v11")
        A(f"  v_cvt_pk_bf16_f32 v8, v8, v9\n  s_mov_b32 exec_hi, 0\n  global_store_dword v5, v8, {sp(sWS)} sc1")
        self.execall()
        A("  v_mov_b32 v9, v8")
        for st in ("quad_perm:[1,0,3,2]", "quad_perm:[2,3,0,1]", "row_ror:4", "row_ror:8"):
            A(f"  v_xor_b32_dpp v9, v9, v9 {st} row_mask:0xf bank_mask:0xf")
        A("  v_mov_b32 v10, v9\n  v_permlane16_swap_b32 v10, v9\n  v_bitop3_b32 v9, v9, v10, s3 bitop3:0x96")
        A(f"  s_lshl_b32 s60, s{sWAVE}, 8\n  s_lshl_b32 s61, s57, 2\n  s_add_u32 s60, s60, s61\n  s_add_u32 s60, s60, {WS_MARK}\n  v_mov_b32 v5, s60")
        self.exec1(); A(f"  global_store_dword v5, v9, {sp(sWS)} sc1"); self.execall()

    def check_lines(self, data, tags, tmp):
        A = self.A
        n = len(data)
        for k in range(n): A(f"  v_xor_b32 v{tmp+k}, v{data[k]}, v{data[k]+1}")
        for k in range(n): A(f"  v_bitop3_b32 v{tmp+k}, v{tmp+k}, v{data[k]+2}, v{data[k]+3} bitop3:0x96")
        for st in ("quad_perm:[1,0,3,2]", "quad_perm:[2,3,0,1]", "row_half_mirror"):
            for k in range(n): A(f"  v_xor_b32_dpp v{tmp+k}, v{tmp+k}, v{tmp+k} {st} row_mask:0xf bank_mask:0xf")
        for k in range(n): A(f"  v_bitop3_b32 v{tmp+k}, v{tmp+k}, v{tags[k]}, s44 bitop3:0x96")
        for k in range(1, n): A(f"  v_or_b32 v{tmp}, v{tmp}, v{tmp+k}")
        A(f"  v_cmp_ne_u32 vcc, 0, v{tmp}")

    def get_flag(self, tmp, off, sreg, expect=None):
        A = self.A
        l = self.lab("pollN"); d = self.lab("gotN")
        cmp = f"s_cmp_lg_u32 s{sreg}, 0" if expect is None else f"s_cmp_eq_u32 s{sreg}, {expect}"
        self.exec1()
        A(f"  global_load_dword v{tmp}, v{vZ}, {sp(sDBG)} offset:{off}")
        A(f"{l}:\n  s_waitcnt vmcnt(0)\n  v_readfirstlane_b32 s{sreg}, v{tmp}\n  {cmp}\n  s_cbranch_scc1 {d}")
        self.guard()
        A(f"  s_sleep {self.c['poll_sleep']}\n  global_load_dword v{tmp}, v{vZ}, {sp(sDBG)} offset:{off} sc1\n  s_branch {l}\n{d}:"); self.execall()
    def get_nonce(self, tmp): self.get_flag(tmp, 128, 44)

    def xor_rows(self, r, t):
        A = self.A
        A(f"  v_mov_b32 v{t}, v{r}\n  v_permlane16_swap_b32 v{t}, v{r}\n  v_xor_b32 v{r}, v{r}, v{t}")
        A(f"  v_mov_b32 v{t}, v{r}\n  v_permlane32_swap_b32 v{t}, v{r}\n  v_xor_b32 v{r}, v{r}, v{t}")

    def allreduce8(self, r, t, op="v_add_f32"):
        A = self.A
        A(f"  {op}_dpp v{r}, v{r}, v{r} row_ror:8 row_mask:0xf bank_mask:0xf")
        A(f"  v_mov_b32 v{t}, v{r}\n  v_permlane16_swap_b32 v{t}, v{r}\n  {op} v{r}, v{r}, v{t}")
        A(f"  v_mov_b32 v{t}, v{r}\n  v_permlane32_swap_b32 v{t}, v{r}\n  {op} v{r}, v{r}, v{t}")

    def h0_issue(self, fl):
        A = self.A
        A(f"  global_load_dwordx4 {vq(28)}, v36, {sp(sWS)}{fl}\n  global_load_dwordx4 {vq(32)}, v36, {sp(sWS)} offset:1024{fl}")
        A(f"  global_load_dword v24, v37, {sp(sWS)}{fl}\n  global_load_dword v25, v37, {sp(sWS)} offset:32{fl}")

    def h0_finish(self):
        A = self.A; c = self.c
        l = self.lab("chkA"); d = self.lab("gotA")
        A(f"{l}:")
        self.check_lines([28, 32], [24, 25], 26)
        A(f"  s_cbranch_vccz {d}")
        self.guard()
        A(f"  s_sleep {c['a_sleep']}")
        self.h0_issue(" sc1")
        A(f"  s_waitcnt vmcnt(0)\n  s_branch {l}\n{d}:")
        self.stamp(2); self.cstamp(14)
        self.unpack8(32, 16)
        for i in range(8): A(f"  v_add_f32 v{16+i}, 1.0, v{16+i}")
        self.rnd8(16, 24)
        for i in range(8): A(f"  v_mul_f32 v{8+i}, v{8+i}, v{16+i}")
        self.rnd8(8, 24)
        self.unpack8(28, 16)
        for i in range(8): A(f"  v_add_f32 v{8+i}, v{8+i}, v{16+i}")
        for i in range(4): A(f"  v_cvt_pk_bf16_f32 v{24+i}, v{8+2*i}, v{9+2*i}")
        A(f"  v_add_u32 v16, s47, v{vL16}\n  ds_write_b128 v16, {vq(24)} offset:{L_HBUF}")
        self.lds_inc(F_H)
        if c["dump"]:
            l = self.lab("nodh"); A(f"  s_cmp_lg_u32 s{sHW}, 0\n  s_cbranch_scc1 {l}"); self.dumpv(24, 4, 0x0, 2, 1024); A(f"{l}:")
        self.stamp(3)

    def helper(self):
        A = self.A; c = self.c
        A("L_helper:")
        self.stamp(8)
        A(f"  s_sub_u32 s{sHW}, s{sWAVE}, 8")
        l = self.lab("h3")
        A(f"  s_cmp_lg_u32 s{sHW}, 3\n  s_cbranch_scc1 {l}")
        A(f"  v_lshlrev_b32 v4, 2, v{vLANE}\n  ds_write_b32 v4, v{vZ}\n  s_waitcnt lgkmcnt(0)\n{l}:")
        A("  s_waitcnt lgkmcnt(0)")
        if c["tlb"]:
            l = self.lab("notlb")
            A(f"  s_cmp_lg_u32 s{sHW}, 2\n  s_cbranch_scc1 {l}")
            self.exec1()
            A(f"  s_lshl_b32 s60, s{sB}, 5\n  s_add_u32 s60, s60, s{sH}\n  s_lshl_b32 s60, s60, 20\n  s_add_u32 s60, s60, 0xC0000\n  v_mov_b32 v4, s60")
            A(f"  global_load_dword v40, v4, {sp(sV)} nt")
            A(f"  s_lshl_b32 s60, s2, 12\n  s_add_u32 s60, s60, {WS_QIN}\n  v_mov_b32 v5, s60\n  global_load_dword v41, v5, {sp(sWS)} nt")
            A(f"  s_lshl_b32 s60, s{sH}, 17\n  v_mov_b32 v6, s60\n  global_load_dword v42, v6, {sp(sWO)} nt")
            A(f"  s_lshl_b32 s60, s2, 2\n  s_and_b32 s60, s60, 0xfc\n  v_mov_b32 v7, s60")
            A(f"  global_load_dword v43, v7, {sp(sDBG)}")
            if c["tlb"] > 1:
                A(f"  s_lshl_b32 s60, s2, 7\n  v_mov_b32 v8, s60")
                for k, p in enumerate((sG, sU, sDN, sWS)): A(f"  global_load_dword v{44+k}, v8, {sp(p)} nt")
                A(f"  v_add_u32 v8, 0x100000, v8")
                for k, p in enumerate((sG, sU, sDN)): A(f"  global_load_dword v{48+k}, v8, {sp(p)} nt")
                A(f"  s_lshl_b32 s60, s2, 5\n  v_mov_b32 v9, s60\n  global_load_dword v52, v9, {sp(sOUT)} nt")
            self.execall()
            A(f"{l}:")
        l = self.lab("nononce")
        A(f"  s_cmp_lg_u32 s2, 0\n  s_cbranch_scc1 {l}\n  s_cmp_lg_u32 s{sHW}, 1\n  s_cbranch_scc1 {l}")
        A(f"  s_memrealtime s[42:43]\n  s_waitcnt lgkmcnt(0)\n  s_or_b32 s42, s42, 1\n  v_mov_b32 v6, s42")
        self.exec1(); A(f"  global_store_dword v{vZ}, v6, {sp(sDBG)} offset:128 sc1"); self.execall()
        A(f"{l}:")
        A("  s_barrier")
        abl = c["abl"]
        if abl is not None:
            if "init" in abl: self.init_duty(11)
            l = self.lab("abl")
            A(f"  s_cmp_lg_u32 s{sHW}, 0\n  s_cbranch_scc1 {l}")
            self.lds_inc(F_Q2)
            if "h0l" in abl:
                A(f"  v_and_b32 v5, 7, v{vJ}\n  v_lshrrev_b32 v6, 3, v{vJ}\n  v_lshl_add_u32 v7, v{vG}, 1, v6\n  v_lshlrev_b32 v7, 4, v7\n  v_lshl_add_u32 v7, v5, 10, v7")
                if "nox" not in abl:
                    for i in range(8): A(f"  global_load_dwordx4 {vq(40+4*i)}, v7, {sp(sX)} offset:{128*i} nt")
                A(f"  s_mov_b32 s{SRDB}, s{sWQ}\n  s_mov_b32 s{SRDB+1}, s{sWQ+1}\n  s_mov_b32 s{SRDB+2}, 4194304\n  s_mov_b32 s{SRDB+3}, 0x20000")
                A(f"  v_lshlrev_b32 v7, 4, v{vJ}\n  v_lshl_add_u32 v7, v{vG}, 16, v7")
                A(f"  s_lshl_b32 s41, s{sB}, 19\n  s_lshl_b32 s60, s{sH}, 8\n  s_add_u32 s41, s41, s60")
                for i in range(0 if "nowq" in abl else 16):
                    A(f"  s_waitcnt vmcnt({c['ablD']})")
                    A(f"  buffer_load_dwordx4 {vq(104+4*i)}, v7, {sq(SRDB)}, s41 offen nt")
                    if i < 15: A(f"  s_add_u32 s41, s41, {8192 if i != 7 else 8192*25}")
                A("  s_waitcnt vmcnt(0)")
            if "poll" in abl:
                lp = self.lab("ablp")
                self.exec1()
                A(f"  s_mov_b32 s65, 12\n{lp}:\n  global_load_dwordx2 v[24:25], v{vZ}, {sp(sDBG)} offset:128 sc1\n  s_waitcnt vmcnt(0)\n  s_sleep {c['poll_sleep']}\n s_sub_u32 s65, s65, 1\n s_cmp_lg_u32 s65, 0\n s_cbranch_scc1 {lp}")
                self.execall()
            A(f"{l}:")
            if "wqr" in abl:
                A(f"  s_mov_b32 s{SRDA}, s{sWQ}\n  s_mov_b32 s{SRDA+1}, s{sWQ+1}\n  s_mov_b32 s{SRDA+2}, 4194304\n  s_mov_b32 s{SRDA+3}, 0x20000")
                A(f"  v_lshlrev_b32 v4, 4, v{vJ}\n  v_lshl_add_u32 v4, v{vG}, 16, v4")
                A(f"  s_lshl_b32 s40, s{sHW}, 20\n  s_lshl_b32 s60, s{sH}, 8\n  s_add_u32 s40, s40, s60")
                self.wload32(SRDA, [8192 if i % 8 < 7 else 8192 * 25 for i in range(32)], c["HDO"], frac=c["HDOf"])
                self.stamp(5)
            if "wo" in abl:
                A(f"  s_mov_b32 s{SRDA}, s{sWO}\n  s_mov_b32 s{SRDA+1}, s{sWO+1}\n  s_mov_b32 s{SRDA+2}, 4194304\n  s_mov_b32 s{SRDA+3}, 0x20000")
                A(f"  v_lshlrev_b32 v4, 4, v{vJ}\n  v_lshl_add_u32 v4, v{vG}, 13, v4")
                A(f"  s_lshl_b32 s40, s{sH}, 17\n  s_lshl_b32 s60, s{sHW}, 8\n  s_add_u32 s40, s40, s60")
                self.wload32(SRDA, [1024 if i % 8 < 7 else 1024 * 25 for i in range(32)], c["HDO"], frac=c["HDOf"])
                self.stamp(6)
            A("  s_branch L_exit")
        A(f"  s_mov_b32 s{SRDA}, s{sWQ}\n  s_mov_b32 s{SRDA+1}, s{sWQ+1}\n  s_mov_b32 s{SRDA+2}, 4194304\n  s_mov_b32 s{SRDA+3}, 0x20000")
        A(f"  v_lshlrev_b32 v4, 4, v{vJ}\n  v_lshl_add_u32 v4, v{vG}, 16, v4")
        A(f"  s_lshl_b32 s40, s{sHW}, 20\n  s_lshl_b32 s60, s{sH}, 8\n  s_add_u32 s40, s40, s60")
        steps = [8192 if i % 8 < 7 else 8192 * 25 for i in range(32)]
        A(f"  s_cmp_lt_u32 s57, 48\n  s_cbranch_scc1 L_prodh")
        A(f"  s_sub_u32 s60, s57, 48\n  s_cmp_lt_u32 s60, 48\n  s_cselect_b32 s45, 1, 0")
        A(f"  s_cmp_gt_u32 s{sHW}, s45\n  s_cbranch_scc1 L_wq123")
        A(f"  s_mul_i32 s46, s{sHW}, 3\n  s_add_u32 s46, s46, s{sB}\n  s_lshl_b32 s47, s{sHW}, 10")
        A(f"  s_lshl_b32 s60, s46, 10\n  v_add_u32 v36, s60, v{vL16}\n  global_load_dwordx4 {vq(28)}, v36, {sp(sX)}")
        A(f"  s_mul_i32 s60, s46, 6144\n  s_add_u32 s60, s60, {WS_MOD}\n  v_add_u32 v36, s60, v{vL16}")
        A(f"  s_lshl_b32 s60, s46, 8\n  s_add_u32 s60, s60, {WS_MARK}\n  v_lshrrev_b32 v37, 3, v{vLANE}\n  v_lshl_add_u32 v37, v37, 2, s60")
        HD = c["HD"]
        def ln():
            self.unpack8(28, 8); self.layernorm(8, 16, 24)
            A(f"  s_load_dword s44, {sp(sDBG)}, 0x80")
        def gather():
            l = self.lab("pollHN"); d = self.lab("gotHN")
            A(f"  s_waitcnt lgkmcnt(0)\n{l}:\n  s_cmp_lg_u32 s44, 0\n  s_cbranch_scc1 {d}")
            self.guard()
            A(f"  s_load_dword s44, {sp(sDBG)}, 0x80 glc\n  s_waitcnt lgkmcnt(0)\n  s_branch {l}\n{d}:")
            self.stamp(1)
            self.h0_issue("")
            A(f"  v_mov_b32 v26, s44\n  ds_write_b32 v{vZ}, v26 offset:{F_N}")
        self.wload32(SRDA, steps, HD, frac=c["HDf"], hooks={HD + 3: ln, c["P0"]: gather, c["P0"] + HD: self.h0_finish})
        A("  s_branch L_q")
        A("L_wq123:")
        l = self.lab("nozero")
        A(f"  s_cmp_lg_u32 s{sHW}, 3\n  s_cbranch_scc1 {l}\n  s_cmp_lt_u32 s57, 256\n  s_cbranch_scc1 {l}\n  s_cmp_ge_u32 s57, {256+8}\n  s_cbranch_scc1 {l}")
        A("  v_mov_b32 v12, 0\n  v_mov_b32 v13, 0\n  v_mov_b32 v14, 0\n  v_mov_b32 v15, 0")
        A(f"  s_sub_u32 s61, s57, 256\n  s_lshl_b32 s60, s61, 12\n  s_add_u32 s60, s60, {WS_ACC}\n  v_add_u32 v5, s60, v{vL16}")
        for i in range(4): A(f"  global_store_dwordx4 v5, {vq(12)}, {sp(sWS)} offset:{1024*i} sc1")
        A(f"{l}:")
        self.wload32(SRDA, steps, HD, frac=c["HDf"])
        A("L_q:")
        self.stamp(4)
        A("  s_add_u32 s61, s45, 1")
        self.lds_spin(F_H, "s61", 7)
        A(f"  s_lshl_b32 s60, s{sHW}, 8\n  v_lshl_add_u32 v4, v{vG}, 4, s60\n  v_and_b32 v5, s45, v{vJ}\n  v_lshl_add_u32 v4, v5, 10, v4")
        for m in range(4): A(f"  ds_read_b128 {vq(8+4*m)}, v4 offset:{L_HBUF + 64*m}")
        A(f"  ds_read_b32 v7, v{vZ} offset:{F_N}")
        A(f"  s_lshl_b32 s60, s{sHW}, 10\n  v_lshl_add_u32 v5, v{vJ}, 5, s60\n  v_add_u32 v5, {L_QP}, v5")
        A(f"  s_mov_b32 s{SRDA}, s{sWO}\n  s_mov_b32 s{SRDA+1}, s{sWO+1}\n  s_mov_b32 s{SRDA+2}, 4194304\n  s_mov_b32 s{SRDA+3}, 0x20000")
        A(f"  s_lshl_b32 s40, s{sH}, 17\n  s_lshl_b32 s60, s{sHW}, 8\n  s_add_u32 s40, s40, s60")
        A("  s_waitcnt lgkmcnt(0)")
        A(f"  v_readfirstlane_b32 s44, v7\n  v_lshlrev_b32 v4, 4, v{vJ}\n  v_lshl_add_u32 v4, v{vG}, 13, v4")
        res = self.gemv32()
        A("  s_mov_b64 exec, 0xffff")
        for cc in range(0, 8, 2):
            A(f"  ds_write2_b32 v5, v{res[cc]}, v{res[cc+1]} offset0:{cc} offset1:{cc+1}")
            A(f"  ds_write2_b32 v5, v{res[cc]+1}, v{res[cc+1]+1} offset0:{128+cc} offset1:{129+cc}")
        self.exec1()
        A(f"  ds_add_rtn_u32 v7, v{vZ}, v{vONE} offset:{F_Q}\n  s_waitcnt lgkmcnt(0)\n  v_readfirstlane_b32 s60, v7")
        self.execall()
        l = self.lab("notlastq")
        A(f"  s_cmp_lg_u32 s60, 3\n  s_cbranch_scc1 {l}")
        A(f"  v_lshlrev_b32 v6, 3, v{vLANE}")
        for part in range(4): A(f"  ds_read_b64 {vp(8+2*part)}, v6 offset:{L_QP + 1024*part}")
        for part in range(4): A(f"  ds_read_b64 {vp(16+2*part)}, v6 offset:{L_QP + 1024*part + 512}")
        A(f"  s_add_u32 s60, s2, 96\n  s_lshl_b32 s60, s60, 9\n  s_add_u32 s60, s60, {WS_QIN}\n  v_add_u32 v7, s60, v6")
        A(f"  v_lshlrev_b32 v6, 2, v{vLANE}\n  s_waitcnt lgkmcnt(4)")
        A("  v_add_f32 v8, v8, v10\n  v_add_f32 v9, v9, v11\n  v_add_f32 v12, v12, v14\n  v_add_f32 v13, v13, v15\n  v_add_f32 v8, v8, v12\n  v_add_f32 v9, v9, v13")
        A(f"  v_cvt_pk_bf16_f32 v8, v8, v9\n  ds_write_b32 v6, v8 offset:{L_QB}")
        self.lds_inc(F_Q2)
        l2 = self.lab("nodon")
        A(f"  s_cmp_eq_u32 s45, 0\n  s_cbranch_scc1 {l2}\n  s_waitcnt lgkmcnt(0)")
        A("  v_add_f32 v16, v16, v18\n  v_add_f32 v17, v17, v19\n  v_add_f32 v20, v20, v22\n  v_add_f32 v21, v21, v23\n  v_add_f32 v16, v16, v20\n  v_add_f32 v17, v17, v21")
        A(f"  v_cvt_pk_bf16_f32 v16, v16, v17\n  v_mov_b32 v17, s44\n  global_store_dwordx2 v7, v[16:17], {sp(sWS)} sc1\n{l2}:")
        self.dumpv(8, 1, 0x80000, 2, 256)
        A(f"{l}:")
        self.stamp(5)
        l = self.lab("notick")
        A(f"  s_cmp_lg_u32 s{sHW}, 3\n  s_cbranch_scc1 {l}\n  s_cmp_lt_u32 s57, 256\n  s_cbranch_scc1 {l}\n  s_cmp_ge_u32 s57, {256+8}\n  s_cbranch_scc1 {l}")
        A(f"  s_mov_b32 s65, 1\n  s_atomic_add s65, {sp(sDBG)}, 0x8 glc\n  s_waitcnt lgkmcnt(0)\n  s_cmp_lg_u32 s65, 7\n  s_cbranch_scc1 {l}\n  v_mov_b32 v6, s44")
        self.exec1(); A(f"  global_store_dword v{vZ}, v6, {sp(sDBG)} offset:136 sc1"); self.execall()
        A(f"{l}:")
        steps = [1024 if i % 8 < 7 else 1024 * 25 for i in range(32)]
        self.wload32(SRDA, steps, c["HDO"], frac=c["HDOf"])
        A("  s_branch L_wo")
        A("L_prodh:")
        A(f"  s_mov_b32 s{SRDA}, s{sWO}\n  s_mov_b32 s{SRDA+1}, s{sWO+1}\n  s_mov_b32 s{SRDA+2}, 4194304\n  s_mov_b32 s{SRDA+3}, 0x20000")
        A(f"  s_lshl_b32 s40, s{sH}, 17\n  s_lshl_b32 s60, s{sHW}, 8\n  s_add_u32 s40, s40, s60")
        A(f"  v_lshlrev_b32 v4, 4, v{vJ}\n  v_lshl_add_u32 v4, v{vG}, 13, v4")
        def recvq():
            l0 = self.lab("noq"); l = self.lab("pollPN"); d = self.lab("gotPN"); lq = self.lab("pollPQ"); dq = self.lab("gotPQ")
            A(f"  s_cmp_lg_u32 s{sHW}, 0\n  s_cbranch_scc1 {l0}")
            A(f"  s_load_dword s44, {sp(sDBG)}, 0x80\n  s_waitcnt lgkmcnt(0)\n{l}:\n  s_cmp_lg_u32 s44, 0\n  s_cbranch_scc1 {d}")
            self.guard()
            A(f"  s_load_dword s44, {sp(sDBG)}, 0x80 glc\n  s_waitcnt lgkmcnt(0)\n  s_branch {l}\n{d}:")
            A(f"  v_mov_b32 v26, s44\n  ds_write_b32 v{vZ}, v26 offset:{F_N}")
            A(f"  s_lshl_b32 s60, s2, 9\n  s_add_u32 s60, s60, {WS_QIN}\n  v_lshl_add_u32 v7, v{vLANE}, 3, s60\n  s_add_u32 s61, s60, 4")
            A(f"{lq}:\n  s_load_dword s60, {sp(sWS)}, s61 glc\n  s_waitcnt lgkmcnt(0)\n  s_cmp_eq_u32 s60, s44\n  s_cbranch_scc0 {lq}_r")
            A(f"  global_load_dwordx2 v[8:9], v7, {sp(sWS)} sc1\n  s_waitcnt vmcnt(0)\n  v_cmp_ne_u32 vcc, s44, v9\n  s_cbranch_vccz {dq}")
            A(f"{lq}_r:")
            self.guard()
            A(f"  s_sleep {c['q_sleep']}\n  s_branch {lq}\n{dq}:")
            A(f"  v_lshlrev_b32 v7, 2, v{vLANE}\n  ds_write_b32 v7, v8 offset:{L_QB}")
            self.lds_inc(F_Q2)
            self.stamp(5)
            self.dumpv(8, 1, 0x80000, 2, 256)
            A(f"{l0}:")
        self.wload32(SRDA, steps, c["HDP"], frac=c["HDPf"], hooks={c["PQ"]: recvq})
        self.lds_spin(F_Q2, 1, 7, sleep=4)
        A(f"  ds_read_b32 v7, v{vZ} offset:{F_N}\n  s_waitcnt lgkmcnt(0)\n  v_readfirstlane_b32 s44, v7")
        A("L_wo:")
        A(f"  s_cmp_lg_u32 s{sHW}, 1\n  s_cbranch_scc1 L_wodone")
        self.get_flag(7, 136, 45, expect="s44")
        self.lds_inc(F_C)
        A("L_wodone:")
        if c["pref2"] and "T" not in c["xskip"]:
            self.prefetch(wait=True)
        self.lds_spin(F_C, 1, 7, sleep=4)
        A(f"  v_lshlrev_b32 v28, 3, v{vLANE}")
        A(f"  s_lshl_b32 s60, s{sHW}, 8\n  v_lshl_add_u32 v29, v{vLANE}, 2, s60\n  v_lshl_add_u32 v30, v{vG}, 4, s60")
        A(f"  v_lshrrev_b32 v31, 2, v{vLANE}\n  v_and_b32 v32, 3, v{vLANE}\n  v_lshl_add_u32 v31, v32, 4, v31\n  v_lshlrev_b32 v31, 2, v31")
        A(f"  s_lshl_b32 s61, s{sB}, 12\n  s_add_u32 s61, s61, {WS_ACC}\n  v_add_u32 v32, s61, v29")
        A(f"  s_mul_i32 s60, s{sB}, {64*128}\n  s_add_u32 s60, s60, {WS_HINT}\n  v_lshl_add_u32 v36, v{vLANE}, 7, s60")
        A(f"  v_mov_b32 v37, s44")
        A(f"  v_mov_b32 v33, 1.0\n  v_mov_b32 v34, 1.0\n  v_mov_b32 v35, 1.0\n  v_mov_b32_dpp v35, v{vZ} quad_perm:[0,1,2,3] row_mask:0x4 bank_mask:0xf")
        self.stamp(6)
        if "T" in c["xskip"]: A("  s_branch L_exit")
        l = self.lab("nohint")
        A(f"  s_cmp_lg_u32 s{sHW}, 2\n  s_cbranch_scc1 {l}")
        self.lds_spin(F_P, 8, 7, sleep=1)
        A(f"  s_add_u32 s42, s61, 3072\n  s_mov_b32 s65, 1\n  s_atomic_add s65, {sp(sWS)}, s42 glc\n  s_waitcnt lgkmcnt(0)\n  s_cmp_lg_u32 s65, 31\n  s_cbranch_scc1 {l}")
        A(f"  s_mov_b32 exec_hi, 0x7ff\n  global_store_dword v36, v37, {sp(sWS)} sc1"); self.execall()
        A(f"{l}:")
        self.lds_spin(F_O, 8, 7, sleep=1)
        self.stamp(9)
        for part in range(8): A(f"  ds_read_b64 {vp(8+2*part)}, v28 offset:{L_OP + 512*part}")
        A("  s_waitcnt lgkmcnt(4)")
        A("  v_add_f32 v8, v8, v10\n  v_add_f32 v9, v9, v11\n  v_add_f32 v12, v12, v14\n  v_add_f32 v13, v13, v15\n  v_add_f32 v8, v8, v12\n  v_add_f32 v9, v9, v13")
        A("  s_waitcnt lgkmcnt(0)")
        A("  v_add_f32 v16, v16, v18\n  v_add_f32 v17, v17, v19\n  v_add_f32 v20, v20, v22\n  v_add_f32 v21, v21, v23\n  v_add_f32 v16, v16, v20\n  v_add_f32 v17, v17, v21")
        A(f"  v_add_f32 v8, v8, v16\n  v_add_f32 v9, v9, v17\n  v_cvt_pk_bf16_f32 v7, v8, v9\n  ds_write_b32 v29, v7 offset:{L_OB}")
        for m in range(4): A(f"  ds_read_b128 {vq(8+4*m)}, v30 offset:{L_OB + 64*m}")
        A("  s_waitcnt lgkmcnt(0)")
        self.stamp(10)
        res = self.gemv32()
        self.stamp(11)
        for k in range(3):
            for g in range(3):
                if 3 * k + g < 8:
                    A(f"  v_mov_b32_dpp v{33+k}, v{res[3*k+g]} quad_perm:[0,1,2,3] row_mask:{1<<g:#x} bank_mask:0xf")
        for k in range(3): A(f"  ds_bpermute_b32 v{33+k}, v31, v{33+k}")
        for k in range(3):
            A(f"  s_waitcnt lgkmcnt({2-k})\n  global_atomic_add_f32 v32, v{33+k}, {sp(sWS)} offset:{1024*k}")
        self.lds_inc(F_A)
        self.stamp(7)
        if c["dump"]:
            l = self.lab("nodumpo")
            A(f"  s_cmp_lg_u32 s{sHW}, 3\n  s_cbranch_scc1 {l}")
            self.dumpv(7, 1, 0x90000, 2, 256)
            A(f"{l}:")
        A(f"  s_cmp_ge_u32 s{sHW}, 2\n  s_cbranch_scc1 L_exit\n  s_cmp_eq_u32 s{sFFN}, 0\n  s_cbranch_scc1 L_exit")
        A(f"  s_lshl_b32 s41, s{sJ}, 1\n  s_add_u32 s41, s41, s{sHW}")
        A(f"  s_mul_i32 s60, s41, 6144\n  s_add_u32 s60, s60, {WS_MOD + 2048}\n  v_add_u32 v8, s60, v{vL16}")
        A(f"  s_lshl_b32 s60, s41, 8\n  s_add_u32 s60, s60, {WS_MARK + 64}\n  v_lshrrev_b32 v9, 3, v{vLANE}\n  v_lshl_add_u32 v9, v9, 2, s60")
        def rowloads(fl):
            for i in range(4): A(f"  global_load_dwordx4 {vq(76+4*i if i < 3 else 132)}, v8, {sp(sWS)} offset:{1024*i}{fl}")
            for i in range(4): A(f"  global_load_dword v{12+i}, v9, {sp(sWS)} offset:{32*i}{fl}")
        rowloads("")
        A(f"  s_lshl_b32 s60, s41, 10\n  v_add_u32 v4, s60, v{vL16}\n  global_load_dwordx4 {vq(72)}, v4, {sp(sX)}")
        A(f"  s_lshl_b32 s41, s{sJ}, 1\n  s_add_u32 s41, s41, s{sHW}\n  s_lshl_b32 s41, s41, 12\n  s_add_u32 s41, s41, {WS_ACC}\n  v_add_u32 v5, s41, v{vL16}\n  v_mov_b32 v6, s41")
        A(f"  s_lshl_b32 s60, s{sHW}, 10\n  v_add_u32 v4, s60, v{vL16}")
        lr = self.lab("chkR"); dr = self.lab("gotR")
        A(f"{lr}:\n  s_waitcnt vmcnt(0)")
        self.check_lines([76, 80, 84, 132], [12, 13, 14, 15], 16)
        A(f"  s_cbranch_vccz {dr}")
        self.guard()
        rowloads(" sc1")
        A(f"  s_branch {lr}\n{dr}:")
        A(f"  ds_write_b128 v4, {vq(132)} offset:{L_MODR}")
        self.unpack8(72, 88); self.unpack8(76, 96); self.unpack8(80, 104); self.unpack8(84, 112)
        for i in range(8): A(f"  v_add_f32 v{112+i}, 1.0, v{112+i}")
        self.rnd8(112, 72)
        lp = self.lab("pollH"); ld = self.lab("gotH")
        A(f"  s_lshl_b32 s45, s{sJ}, 1\n  s_add_u32 s45, s45, s{sHW}\n  s_lshl_b32 s45, s45, 6\n  s_add_u32 s45, s45, s{sSL}\n  s_lshl_b32 s45, s45, 7\n  s_add_u32 s45, s45, {WS_HINT}")
        A(f"{lp}:\n  s_load_dword s60, {sp(sWS)}, s45 glc\n  s_waitcnt lgkmcnt(0)\n  s_cmp_eq_u32 s60, s44\n  s_cbranch_scc1 {ld}")
        self.guard()
        if c["hint_sleep"]: A(f"  s_sleep {c['hint_sleep']}")
        A(f"  s_branch {lp}\n{ld}:")
        self.stamp(1)
        lp = self.lab("pollF"); ld = self.lab("gotF")
        for k in range(3): A(f"  global_load_dwordx4 {vq(120+4*k)}, v5, {sp(sWS)} offset:{1024*k} sc1")
        self.lds_inc(F_R)
        A(f"{lp}:")
        A("  s_waitcnt vmcnt(0)\n  v_min3_f32 v7, v123, v127, v131\n  v_cmp_neq_f32 vcc, 0x42000000, v7")
        A(f"  s_cbranch_vccz {ld}")
        self.guard()
        for k in range(3): A(f"  global_load_dwordx4 {vq(120+4*k)}, v5, {sp(sWS)} offset:{1024*k} sc1")
        A(f"  s_branch {lp}\n{ld}:")
        self.stamp(2)
        src = [120, 121, 122, 124, 125, 126, 128, 129]
        for i in range(4): A(f"  v_cvt_pk_bf16_f32 v{16+i}, v{src[2*i]}, v{src[2*i+1]}")
        self.unpack8(16, 8)
        for i in range(8): A(f"  v_mul_f32 v{8+i}, v{96+i}, v{8+i}")
        self.rnd8(8, 16)
        for i in range(8): A(f"  v_add_f32 v{8+i}, v{88+i}, v{8+i}")
        for i in range(4): A(f"  v_cvt_pk_bf16_f32 v{28+i}, v{8+2*i}, v{9+2*i}")
        self.unpack8(28, 8)
        A(f"  ds_write_b128 v4, {vq(28)} offset:{L_X1}")
        self.layernorm(8, 16, 24)
        for i in range(8): A(f"  v_mul_f32 v{8+i}, v{8+i}, v{112+i}")
        self.rnd8(8, 16)
        for i in range(8): A(f"  v_add_f32 v{8+i}, v{8+i}, v{104+i}")
        for i in range(4): A(f"  v_cvt_pk_bf16_f32 v{24+i}, v{8+2*i}, v{9+2*i}")
        A(f"  ds_write_b128 v4, {vq(24)} offset:{L_H2}\n  s_waitcnt lgkmcnt(0)")
        self.stamp(3)
        A("  s_barrier")
        if c["dump"]:
            A(f"  s_lshl_b32 s69, s2, 1\n  s_add_u32 s69, s69, s{sHW}")
            self.dumpv(24, 4, 0x600000, 69, 1024)
        A(f"  s_cmp_eq_u32 s{sHW}, 0\n  s_cbranch_scc1 L_reducer")
        A(f"  s_cmp_ge_u32 s{sSL}, 32\n  s_cbranch_scc1 L_exit")
        A(f"  s_lshr_b32 s60, s{sSL}, 2\n  s_lshl_b32 s60, s60, 7\n  s_and_b32 s61, s{sSL}, 3\n  s_lshl_b32 s61, s61, 1\n  s_add_u32 s60, s60, s61\n  v_lshl_add_u32 v4, v{vJ}, 3, s60")
        A(f"  v_and_b32 v5, 1, v{vG}\n  v_lshl_add_u32 v6, v5, 10, v4")
        A(f"  ds_read_u16 v40, v6 offset:{L_X1}\n  ds_read_u16 v41, v6 offset:{L_MODR}")
        A(f"  s_lshl_b32 s60, s{sJ}, 11\n  v_add_u32 v6, s60, v6")
        A(f"  s_lshl_b32 s60, s{sJ}, 5\n  s_add_u32 s60, s60, s{sSL}\n  s_mul_i32 s60, s60, {INB}\n  s_add_u32 s60, s60, {WS_INBOX + 4096}\n  v_add_u32 v5, s60, v{vL16}\n  v_add_u32 v7, 4096, v5")
        A(f"  s_xor_b32 s45, s44, {TAGX:#x}\n  v_mov_b32 v84, 0\n  v_mov_b32 v85, 0\n  v_mov_b32 v86, s44\n  v_mov_b32 v87, s45")
        A("  s_waitcnt lgkmcnt(0)\n  v_lshlrev_b32 v40, 16, v40\n  v_lshlrev_b32 v41, 16, v41")
        A("  s_barrier\n  s_barrier")
        if c["inbox_sleep"]: A(f"  s_sleep {c['inbox_sleep']}")
        lp = self.lab("pollI"); ld = self.lab("gotI")
        A(f"{lp}:")
        for i in range(10): A(f"  global_load_dwordx4 {vq(44+4*i)}, v{5 if i < 8 else 7}, {sp(sWS)} offset:{1024*i - (4096 if i < 8 else 8192)} sc1")
        A(f"  s_mov_b32 exec_hi, 0xffff\n  global_load_dwordx4 {vq(84)}, v7, {sp(sWS)} offset:2048 sc1"); self.execall()
        for i in range(11):
            q = 44 + 4 * i
            A(f"  s_waitcnt vmcnt({10-i})")
            if i == 0:
                A(f"  v_xor_b32 v10, s44, v{q+2}\n  v_xor_b32 v11, s45, v{q+3}\n  v_mov_b32 v8, v{q}\n  v_mov_b32 v9, v{q+1}")
            else:
                A(f"  v_bitop3_b32 v10, v10, v{q+2}, s44 bitop3:0xf6\n  v_bitop3_b32 v11, v11, v{q+3}, s45 bitop3:0xf6\n  v_add_f32 v8, v8, v{q}\n  v_add_f32 v9, v9, v{q+1}")
        A(f"  v_or_b32 v10, v10, v11\n  v_cmp_ne_u32 vcc, 0, v10\n  s_cbranch_vccz {ld}")
        self.guard()
        A(f"  s_branch {lp}\n{ld}:")
        self.stamp(4)
        A("  v_permlane16_swap_b32 v8, v9\n  v_add_f32 v8, v8, v9\n  v_mov_b32 v9, v8\n  v_permlane32_swap_b32 v9, v8\n  v_add_f32 v8, v8, v9")
        self.rnd1(8, 9)
        A("  v_mul_f32 v8, v41, v8"); self.rnd1(8, 9)
        A("  v_add_f32 v8, v40, v8\n  v_cvt_pk_bf16_f32 v8, v8, v8")
        A("  s_mov_b32 exec_hi, 0")
        A(f"  global_store_short v6, v8, {sp(sOUT)} sc1")
        self.execall()
        self.stamp(5)
        A("  s_branch L_exit")
        A("L_reducer:")
        A(f"  v_lshlrev_b32 v4, 2, v{vLANE}\n  v_add_u32 v4, {L_GUP}, v4")
        A(f"  v_and_b32 v5, 1, v{vLANE}\n  v_lshlrev_b32 v5, 6, v5\n  v_and_b32 v6, 62, v{vLANE}\n  v_add_u32 v5, v5, v6")
        A("  s_barrier")
        for w in range(8): A(f"  ds_read2st64_b32 {vp(8+2*w)}, v4 offset0:{2*w} offset1:{2*w+1}")
        A("  s_waitcnt lgkmcnt(4)")
        A("  v_add_f32 v8, v8, v10\n  v_add_f32 v9, v9, v11\n  v_add_f32 v12, v12, v14\n  v_add_f32 v13, v13, v15\n  v_add_f32 v8, v8, v12\n  v_add_f32 v9, v9, v13")
        A("  s_waitcnt lgkmcnt(0)")
        A("  v_add_f32 v16, v16, v18\n  v_add_f32 v17, v17, v19\n  v_add_f32 v20, v20, v22\n  v_add_f32 v21, v21, v23\n  v_add_f32 v16, v16, v20\n  v_add_f32 v17, v17, v21")
        A("  v_add_f32 v8, v8, v16\n  v_add_f32 v9, v9, v17")
        self.rnd2(8, 9, 10)
        A(f"  v_mul_f32 v8, s{sLOG2E}, v8\n  v_exp_f32 v8, -v8\n  v_add_f32 v8, 1.0, v8\n  v_rcp_f32 v8, v8")
        self.rnd1(8, 10)
        A(f"  v_mul_f32 v8, v8, v9\n  v_cvt_pk_bf16_f32 v8, v8, v8\n  ds_write_b16 v5, v8 offset:{L_HH}\n  s_waitcnt lgkmcnt(0)")
        A("  s_barrier")
        self.stamp(4)
        self.dumpv(8, 1, 0xE0000, 2, 256)
        A("  s_branch L_exit")

    def build(self):
        A = self.A; c = self.c
        A(f"{KNAME}:")
        if c["stamps"]:
            for k in range(1, 16): A(f"  s_mov_b64 s[{70+2*k}:{71+2*k}], 0")
        self.stamp(0)
        A("  s_cmp_ge_u32 s2, 256\n  s_cbranch_scc1 L_end")
        A("  s_load_dwordx16 s[4:19], s[0:1], 0\n  s_load_dwordx8 s[20:27], s[0:1], 64\n  s_load_dwordx4 s[28:31], s[0:1], 96")
        A(f"  v_lshrrev_b32 v2, 6, v0\n  v_and_b32 v0, 63, v0\n  v_readfirstlane_b32 s{sWAVE}, v2")
        A(f"  v_lshlrev_b32 v{vL16}, 4, v0")
        if c["pref"]: self.prefetch()
        A(f"  s_and_b32 s{sXCD}, s2, 7\n  s_lshr_b32 s{sIDX}, s2, 3\n  s_lshr_b32 s{sB}, s{sIDX}, 2\n  s_and_b32 s{sJ}, s{sIDX}, 3")
        A(f"  s_lshl_b32 s{sH}, s{sXCD}, 2\n  s_add_u32 s{sH}, s{sH}, s{sJ}")
        A(f"  v_lshrrev_b32 v{vG}, 4, v0\n  v_and_b32 v{vJ}, 15, v0\n  v_mov_b32 v{vZ}, 0\n  v_mov_b32 v{vONE}, 1")
        A(f"  s_lshr_b32 s61, s{sXCD}, 1\n  s_mul_i32 s{sSL}, s{sXCD}, 5\n  s_add_u32 s{sSL}, s{sSL}, s61\n  s_add_u32 s{sSL}, s{sSL}, s{sB}\n  s_sub_u32 s{sSL}, s{sSL}, 1")
        A(f"  s_and_b32 s60, s{sXCD}, 1\n  s_add_u32 s65, s60, 5\n  s_cmp_lt_u32 s{sB}, s65\n  s_cselect_b32 s{sFFN}, 1, 0\n  s_cmp_lt_u32 s{sSL}, 43\n  s_cselect_b32 s{sFFN}, s{sFFN}, 0")
        A(f"  s_sub_u32 s57, 31, s{sIDX}\n  s_lshl_b32 s57, s57, 2\n  s_add_u32 s57, s57, s61\n  s_lshl_b32 s60, s60, 8\n  s_add_u32 s57, s57, s60")
        if "M" in c["xskip"]: A("  s_cmp_lt_u32 s57, 48\n  s_cselect_b32 s57, 100, s57")
        if "F" in c["xskip"]: A("  s_cmp_ge_u32 s57, 256\n  s_cselect_b32 s57, 100, s57")
        A(f"  s_mov_b32 s{sGUARD}, 0\n  s_mov_b32 s{sPLO}, 0x05040100\n  s_mov_b32 s{sPHI}, 0x07060302\n  s_mov_b32 s{sLOG2E}, {LOG2E:#x}")
        A(f"  s_cmp_ge_u32 s{sWAVE}, 8\n  s_cbranch_scc1 L_helper")
        A(f"  s_lshl_b32 s60, s{sB}, 5\n  s_add_u32 s60, s60, s{sH}\n  s_lshl_b32 s60, s60, 20\n  s_add_u32 s60, s60, 0xC0000")
        A(f"  s_lshl_b32 s{sOFF}, s{sWAVE}, 12\n  s_mul_i32 s56, s{sWAVE}, {c['NV']*1024}\n  s_add_u32 s56, s56, {L_V}")
        for G in range(1, 8): A(f"  s_add_u32 s{sOFF+G}, s{sOFF}, {G*32768}")
        A(f"  s_mov_b32 s{SRDA+2}, 0x40000\n  s_mov_b32 s{SRDA+3}, 0x20000\n  s_mov_b32 s{SRDB+2}, 0x40000\n  s_mov_b32 s{SRDB+3}, 0x20000")
        A("  s_waitcnt lgkmcnt(0)")
        def mask(fr):
            m = 0; acc = 0.5
            for n in range(64):
                acc += fr
                if acc >= 1.0 - 1e-9: m |= 1 << n; acc -= 1.0
            return m
        D = c["D"]
        m1 = [mask(min(1.0, D - d)) for d in c["depth"]]
        m2 = [mask(max(0.0, D - 1 - d)) for d in c["depth"]]
        for reg, ms in ((58, m1), (14, m2)):
            A(f"  s_bitcmp1_b32 s{sXCD}, 0")
            for half in range(2):
                w = [(m >> (32 * half)) & 0xffffffff for m in ms]
                A(f"  s_mov_b32 s{reg+half}, {w[0]:#x}\n  s_cselect_b32 s{reg+half}, {w[1]:#x}, s{reg+half}")
                A(f"  s_mov_b32 s{68+half}, {w[2]:#x}\n  s_cselect_b32 s{68+half}, {w[3]:#x}, s{68+half}")
            A(f"  s_cmp_lt_u32 s57, 48\n  s_cselect_b64 s[{reg}:{reg+1}], s[68:69], s[{reg}:{reg+1}]")
        A("  s_waitcnt lgkmcnt(0)")
        A(f"  s_add_u32 s{SRDA}, s{sK}, s60\n  s_addc_u32 s{SRDA+1}, s{sK+1}, 0\n  s_add_u32 s{SRDB}, s{sV}, s60\n  s_addc_u32 s{SRDB+1}, s{sV+1}, 0")
        if c["Dodd"]:
            A(f"  s_bitcmp1_b32 s{sXCD}, 0\n  s_cbranch_scc1 L_sodd")
        self.streamer(c["D"], "e")
        if c["Dodd"]:
            A("L_sodd:")
            self.streamer(c["Dodd"], "o")
        self.streamer_ffn()
        self.helper()
        A("L_exit:")
        if c["stamps"]:
            A("  s_mov_b64 exec, 1\n  s_waitcnt lgkmcnt(0)")
            A(f"  s_mul_i32 s60, s2, 12\n  s_add_u32 s60, s60, s{sWAVE}\n  s_lshl_b32 s60, s60, 7\n  s_add_u32 s60, s60, {WS_STAMP}\n  v_mov_b32 v4, s60")
            for k in range(16):
                A(f"  v_mov_b32 v6, s{70+2*k}\n  v_mov_b32 v7, s{71+2*k}\n  global_store_dwordx2 v4, v[6:7], {sp(sWS)} offset:{8*k}")
        A("L_end:\n  s_endpgm")
        body = fix_hazards(self.L)
        nk = c["prefkib"]
        out = HEADER + f"; @launch grid=(256,1,1) block=(768,1,1) lds={L_V + 8192*c['NV']}\n"
        out += '.amdgcn_target "amdgcn-amd-amdhsa--gfx950"\n.text\n'
        out += f".globl {KNAME}\n.p2align 8\n.type {KNAME},@function\n" + body
        out += f"  .fill 64, 4, 0xbf800000\nL_codeend:\n.if (L_codeend - {KNAME}) < {nk*1024}\n.fill ({nk*1024} - (L_codeend - {KNAME}))/4, 4, 0xbf800000\n.endif\n"
        out += f""".section .rodata,"a"
.p2align 6
.amdhsa_kernel {KNAME}
  .amdhsa_next_free_vgpr 168
  .amdhsa_next_free_sgpr 102
  .amdhsa_accum_offset 168
  .amdhsa_group_segment_fixed_size 0
  .amdhsa_kernarg_size 112
  .amdhsa_user_sgpr_count 2
  .amdhsa_user_sgpr_kernarg_segment_ptr 1
  .amdhsa_system_sgpr_workgroup_id_x 1
  .amdhsa_float_denorm_mode_32 3
.end_amdhsa_kernel
"""
        return out

def gen(**cfg): return Gen(**cfg).build()

if __name__ == "__main__":
    import json
    cfg = json.loads(sys.argv[2]) if len(sys.argv) > 2 else {}
    open(sys.argv[1], "w").write(gen(**cfg))
```

```python
import sys, struct
from asmlib import fix_hazards

KNAME = "adaLN_cond__sliding_block_cached__glu_gated_glu__decode_kernel"

HEADER = """; Kernarg layout for this problem (112 bytes, ptrs only, base s[0:1]):
;   offset  32: d_in[4] A_wo  shape=(4096, 512) dtype=bfloat16
;   offset  80: d_in[10] w_mod  shape=(512, 3072) dtype=bfloat16
;   offset 104: d_ws      workspace
; One workgroup per (batch, head): 8 streamer waves (K/V -> registers, QK, softmax, PV, then the GLU slice)
; and 4 helper waves (adaLN modulation, q projection, output projection, cross-workgroup hand-offs).
"""

WS_MOD, WS_STAT, WS_MARK, WS_ACC, WS_QTAG, WS_HINT, WS_INBOX, WS_QIN, WS_DUMP, WS_STAMP = 0x0, 0xC000, 0xD000, 0x10000, 0x18000, 0x20000, 0x40000, 0x1C0000, 0x200000, 0x20000000
F_H, F_Q, F_Q2, F_ST, F_O, F_MOD, F_MOD2, F_C, F_P, F_W, F_K, F_A, F_R, F_N = 0, 4, 8, 12, 16, 20, 24, 28, 32, 36, 40, 44, 48, 52
L_STATS, L_QB, L_OP, L_OB, L_HBUF, L_QP = 0x40, 0x100, 0x200, 0x1200, 0x2A00, 0x3200
L_MODR, L_H2, L_X1, L_GUP, L_HH, L_MODP = 0x2200, 0x4A00, 0x5200, 0x5A00, 0x6A00, 0x7000
L_V = 0x7000

def f2u(x): return struct.unpack("<I", struct.pack("<f", x))[0]
INB = 11264
TAGX = 0x5bd1e995
LOG2E = f2u(1.4426950408889634)
SCALE = f2u(128 ** -0.5)

sX, sK, sV, sWQ, sWO, sG, sU, sDN, sC, sWM, sOUT, sDBG, sWS = 4, 6, 8, 10, 12, 16, 18, 20, 22, 24, 26, 28, 30
sWAVE, sXCD, sIDX, sB, sJ, sH, sSL, sFFN = 32, 33, 34, 35, 36, 37, 38, 39
sOFF = 40
SRDA, SRDB = 48, 52
sPLO, sPHI, sGUARD, sLOG2E = 62, 63, 64, 66
sHW = 67
vLANE, vL16, vG, vJ, vZ, vONE = 0, 1, 2, 3, 38, 39

def sp(r): return f"s[{r}:{r+1}]"
def sq(r): return f"s[{r}:{r+3}]"
def vp(r): return f"v[{r}:{r+1}]"
def vq(r): return f"v[{r}:{r+3}]"

class Gen:
    def __init__(self, **cfg):
        self.c = dict(D=3, HD=3, HD0=6, HDO=3, P0=24, stamps=False, dump=False, guard=400000, pref=True,
                      inbox_sleep=6, hint_sleep=2, Dodd=None, pref2=True, prefwg=16, prefkib=26, hint_at=28, poll_sleep=8, NV=16, depth=[2.75, 2.75, 3.5, 3.5], FD=3, NF0=0, HDOf=1.5, H0D=4, H0D1=2, prio=2, nowo=False, wo_at=6, abl=None, init_mode='full', ablD=7, H0DQ=18, H0pre=True, fillD=4, nofill=False, q_sleep0=8, q_sleep=8, a_sleep=16, xskip=[], plainA=True, down_late=True, wofl=' nt', tlb=0, modlag=2, HDf=3.0, ffnfl=' nt', HDP=2, HDPf=1.75, PQ=20, kfl=' nt', vfl=' nt')
        self.c.update(cfg)
        self.L = []
        self.nlab = 0

    def A(self, s): self.L.append(s)
    def lab(self, base):
        self.nlab += 1
        return f"L_{base}_{self.nlab}"
    def stamp(self, k):
        if self.c["stamps"]: self.A(f"  s_memrealtime s[{70+2*k}:{71+2*k}]")
    def cstamp(self, k):
        if self.c["stamps"]:
            self.A(f"  s_waitcnt lgkmcnt(0)\n  s_mul_i32 s{70+2*k}, s{sGUARD}, 100\n  s_add_u32 s{70+2*k}, s{70+2*k}, s70\n  s_addc_u32 s{71+2*k}, s71, 0")
    def guard(self):
        if self.c["guard"]:
            self.A(f"  s_add_u32 s{sGUARD}, s{sGUARD}, 1\n  s_cmp_gt_u32 s{sGUARD}, {self.c['guard']}\n  s_cbranch_scc1 L_exit")
    def exec1(self): self.A("  s_mov_b64 exec, 1")
    def execall(self): self.A("  s_mov_b64 exec, -1")

    def lds_spin(self, off, target, tmp, sleep=1):
        l = self.lab("spin"); d = self.lab("spun")
        self.A(f"{l}:")
        self.A(f"  ds_read_b32 v{tmp}, v{vZ} offset:{off}\n  s_waitcnt lgkmcnt(0)\n  v_readfirstlane_b32 s60, v{tmp}")
        self.A(f"  s_cmp_ge_u32 s60, {target}\n  s_cbranch_scc1 {d}")
        self.guard()
        if sleep: self.A(f"  s_sleep {sleep}")
        self.A(f"  s_branch {l}\n{d}:")

    def lds_inc(self, off):
        self.exec1(); self.A(f"  ds_add_u32 v{vZ}, v{vONE} offset:{off}"); self.execall()

    def dumpv(self, reg, n, base, sidx=None, stride=0, tmp=36):
        if not self.c["dump"]: return
        A = self.A
        if sidx is not None:
            A(f"  s_mul_i32 s68, s{sidx}, {stride}\n  s_add_u32 s68, s68, {WS_DUMP + base}")
        else:
            A(f"  s_mov_b32 s68, {WS_DUMP + base}")
        A(f"  v_lshlrev_b32 v{tmp}, {dict([(1,2),(2,3),(4,4)])[n]}, v{vLANE}\n  v_add_u32 v{tmp}, s68, v{tmp}")
        op = {1: "dword", 2: "dwordx2", 4: "dwordx4"}[n]
        r = f"v{reg}" if n == 1 else f"v[{reg}:{reg+n-1}]"
        A(f"  global_store_{op} v{tmp}, {r}, {sp(sWS)}\n  s_waitcnt vmcnt(0)")

    def prefetch(self, wait=False):
        A = self.A
        l = self.lab("nopref"); lp = self.lab("pref"); pc = self.lab("pc")
        A(f"  s_cmp_lg_u32 s{sWAVE}, 10\n  s_cbranch_scc1 {l}\n  s_cmp_ge_u32 s2, {self.c['prefwg']}\n  s_cbranch_scc1 {l}")
        A(f"  s_getpc_b64 s[60:61]\n{pc}:\n  s_sub_u32 s60, s60, {pc}-{KNAME}\n  s_subb_u32 s61, s61, 0\n  v_mov_b32 v36, v{vL16}\n  s_mov_b32 s65, {self.c['prefkib']}")
        A(f"{lp}:\n  global_load_dword v37, v36, s[60:61]\n  v_add_u32 v36, 1024, v36\n  s_sub_u32 s65, s65, 1\n  s_cmp_lg_u32 s65, 0\n  s_cbranch_scc1 {lp}")
        if wait: A("  s_waitcnt vmcnt(0)")
        A(f"{l}:")

    def rnd1(self, x, t):
        self.A(f"  v_cvt_pk_bf16_f32 v{t}, v{x}, v{x}\n  v_and_b32 v{x}, 0xffff0000, v{t}")
    def rnd2(self, x, y, t):
        self.A(f"  v_cvt_pk_bf16_f32 v{t}, v{x}, v{y}\n  v_lshlrev_b32 v{x}, 16, v{t}\n  v_and_b32 v{y}, 0xffff0000, v{t}")
    def rnd8(self, X, T):
        for i in range(4): self.A(f"  v_cvt_pk_bf16_f32 v{T+i}, v{X+2*i}, v{X+2*i+1}")
        self.unpack8(T, X)
    def unpack8(self, src, dst):
        for i in range(4):
            self.A(f"  v_lshlrev_b32 v{dst+2*i}, 16, v{src+i}\n  v_and_b32 v{dst+2*i+1}, 0xffff0000, v{src+i}")
    def wave_reduce(self, op, regs, full=True):
        steps = []
        if full: steps += ["quad_perm:[1,0,3,2] row_mask:0xf bank_mask:0xf", "quad_perm:[2,3,0,1] row_mask:0xf bank_mask:0xf"]
        steps += ["row_ror:4 row_mask:0xf bank_mask:0xf", "row_ror:8 row_mask:0xf bank_mask:0xf",
                  "row_bcast:15 row_mask:0xa bank_mask:0xf", "row_bcast:31 row_mask:0xc bank_mask:0xf"]
        for s in steps:
            for r in regs: self.A(f"  {op}_dpp v{r}, v{r}, v{r} {s}")

    def layernorm(self, X, T, S):
        A = self.A
        A(f"  v_readfirstlane_b32 s60, v{X}")
        for i in range(8): A(f"  v_subrev_f32 v{T+i}, s60, v{X+i}")
        A(f"  v_add_f32 v{S}, v{T}, v{T+1}\n  v_mul_f32 v{S+1}, v{T}, v{T}")
        A(f"  v_fmac_f32 v{S+1}, v{T+1}, v{T+1}")
        for i in range(2, 8): A(f"  v_add_f32 v{S}, v{S}, v{T+i}\n  v_fmac_f32 v{S+1}, v{T+i}, v{T+i}")
        self.wave_reduce("v_add_f32", [S, S + 1])
        A(f"  v_readlane_b32 s61, v{S}, 63\n  v_readlane_b32 s65, v{S+1}, 63")
        inv = f2u(1.0 / 512)
        A(f"  v_mov_b32 v{S+2}, {inv:#x}")
        A(f"  v_mul_f32 v{S}, s61, v{S+2}\n  v_mul_f32 v{S+1}, s65, v{S+2}")
        A(f"  v_fma_f32 v{S+1}, -v{S}, v{S}, v{S+1}\n  v_add_f32 v{S}, s60, v{S}\n  v_max_f32 v{S+1}, 0, v{S+1}")
        self.rnd2(S, S + 1, S + 2)
        A(f"  v_add_f32 v{S+1}, {f2u(1e-5):#x}, v{S+1}")
        for i in range(8): A(f"  v_sub_f32 v{X+i}, v{X+i}, v{S}")
        self.rnd1(S + 1, S + 2)
        A(f"  v_sqrt_f32 v{S+1}, v{S+1}")
        self.rnd8(X, T)
        self.rnd1(S + 1, S + 2)
        A(f"  v_rcp_f32 v{S+2}, v{S+1}")
        A(f"  v_fma_f32 v{S+3}, -v{S+1}, v{S+2}, 1.0\n  v_fmac_f32 v{S+2}, v{S+3}, v{S+2}")
        for i in range(8): A(f"  v_mul_f32 v{T+i}, v{X+i}, v{S+2}")
        for i in range(8): A(f"  v_fma_f32 v{X+i}, -v{T+i}, v{S+1}, v{X+i}")
        for i in range(8): A(f"  v_fma_f32 v{X+i}, v{X+i}, v{S+2}, v{T+i}")
        self.rnd8(X, T)

    def transpose_block(self, B, t0, t1):
        A = self.A
        R = lambda e, t: B + 4 * e + t
        lo = lambda d, a, b: A(f"  v_perm_b32 v{d}, v{b}, v{a}, s{sPLO}")
        hi = lambda d, a, b: A(f"  v_perm_b32 v{d}, v{b}, v{a}, s{sPHI}")
        for p in range(4):
            a, b = R(2 * p, p), R(2 * p + 1, p)
            lo(t0, a, b); hi(b, a, b); A(f"  v_mov_b32 v{a}, v{t0}")
            for t in range(p + 1, 4):
                a, b, c, d = R(2 * p, t), R(2 * p + 1, t), R(2 * t, p), R(2 * t + 1, p)
                lo(t0, a, b); hi(t1, a, b); lo(a, c, d); hi(b, c, d)
                A(f"  v_mov_b32 v{c}, v{t0}\n  v_mov_b32 v{d}, v{t1}")

    def transpose_x2(self, Rb, Bb):
        for c in range(4):
            for p in range(4):
                a, b = Rb + 2 * (2 * p) + (c >> 1), Rb + 2 * (2 * p + 1) + (c >> 1)
                self.A(f"  v_perm_b32 v{Bb+4*c+p}, v{b}, v{a}, s{sPHI if c & 1 else sPLO}")

    def gemv32(self):
        res = []
        for c in range(8):
            Dc = 24 if c == 0 else 40 + 4 * (c - 1)
            for m in range(4):
                self.A(f"  v_mfma_f32_16x16x32_bf16 {vq(Dc)}, {vq(8+4*m)}, {vq(40+32*m+4*c)}, {'0' if m == 0 else vq(Dc)}")
            res.append(Dc)
        return res

    def wload32(self, srd, steps, D, frac=None, hooks=None):
        A = self.A
        done = 0
        for i in range(32):
            dd = D
            if frac is not None and int((i + 1) * (D - frac)) != int(i * (D - frac)): dd = D - 1
            if i >= dd: A(f"  s_waitcnt vmcnt({dd-1})")
            if hooks and i in hooks: hooks[i]()
            A(f"  buffer_load_dwordx4 {vq(40+4*i)}, v4, {sq(srd)}, s40 offen{self.c['wofl']}")
            if i < 31: A(f"  s_add_u32 s40, s40, {steps[i]}")
            landed = i - D + 1 if i >= D else 0
            if landed >= 8 * (done + 1):
                self.transpose_block(40 + 32 * done, 5, 6); done += 1
        while done < 4:
            A(f"  s_waitcnt vmcnt({8*(3-done)})")
            self.transpose_block(40 + 32 * done, 5, 6); done += 1

    def init_duty(self, wave):
        A = self.A
        l2 = self.lab("inited"); l3 = self.lab("noinit")
        A(f"  s_cmp_lg_u32 s{sWAVE}, {wave}\n  s_cbranch_scc1 {l3}")
        mark = len(self.L)
        A("  v_mov_b32 v8, -1\n  v_mov_b32 v9, -1\n  v_mov_b32 v10, -1\n  v_mov_b32 v11, -1")
        A(f"  s_lshl_b32 s60, s2, 12\n  s_add_u32 s60, s60, {WS_QIN}\n  v_add_u32 v5, s60, v{vL16}")
        for i in range(4): A(f"  global_store_dwordx4 v5, {vq(8)}, {sp(sWS)} offset:{1024*i} sc1")
        A(f"  s_cmp_eq_u32 s{sFFN}, 0\n  s_cbranch_scc1 {l2}\n  s_cmp_ge_u32 s{sSL}, 32\n  s_cbranch_scc1 {l2}")
        A(f"  s_lshl_b32 s60, s{sJ}, 5\n  s_add_u32 s60, s60, s{sSL}\n  s_mul_i32 s60, s60, 6144\n  s_add_u32 s60, s60, {WS_INBOX + 2048}\n  v_add_u32 v5, s60, v{vL16}")
        for i in range(6): A(f"  global_store_dwordx4 v5, {vq(8)}, {sp(sWS)} offset:{1024*i - 2048} sc1")
        A(f"  s_cmp_ge_u32 s{sSL}, 8\n  s_cbranch_scc1 {l2}")
        A("  v_mov_b32 v12, 0\n  v_mov_b32 v13, 0\n  v_mov_b32 v14, 0\n  v_mov_b32 v15, 0")
        A(f"  s_lshl_b32 s60, s{sJ}, 3\n  s_add_u32 s60, s60, s{sSL}\n  s_lshl_b32 s60, s60, 10\n  s_add_u32 s60, s60, {WS_ACC}\n  v_add_u32 v5, s60, v{vL16}")
        A(f"  global_store_dwordx4 v5, {vq(12)}, {sp(sWS)} sc1")
        if self.c["init_mode"] == "nostore": self.L[mark:] = []
        A(f"{l2}:\n  s_waitcnt vmcnt(0)")
        if self.c["init_mode"] != "noticket":
            A(f"  s_mov_b32 s65, 1\n  s_atomic_add s65, {sp(sDBG)}, 0x4 glc\n  s_waitcnt lgkmcnt(0)")
            A(f"  s_cmp_lg_u32 s65, 255\n  s_cbranch_scc1 {l3}\n  s_mov_b32 s65, 1\n  s_atomic_add s65, {sp(sDBG)}, 0x84")
        A(f"{l3}:")

    def streamer(self, D, tag):
        A = self.A; c = self.c
        T = lambda n: 40 + 4 * n
        issued = []
        def issue(name, srd, n):
            A(f"  buffer_load_dwordx4 {vq(T(n))}, v{vL16}, {sq(srd)}, s{sOFF + (n >> 2)} offen offset:{1024*(n&3)}{c['kfl']}")
            issued.append(name)
        def pace():
            n = len(issued)
            if n >= D: A(f"  s_waitcnt vmcnt({D-1})")
            if n >= D - 2 and n < 64:
                l = self.lab("pc")
                A(f"  s_bitcmp1_b64 s[58:59], {n}\n  s_cbranch_scc0 {l}\n  s_waitcnt vmcnt({D-2})")
                A(f"  s_bitcmp1_b64 s[14:15], {n}\n  s_cbranch_scc0 {l}\n  s_waitcnt vmcnt({D-3})\n{l}:")
        def waitfor(name):
            A(f"  s_waitcnt vmcnt({len(issued) - 1 - issued.index(name)})")
        lnp = self.lab("noprod"); lj = self.lab("joined")
        NJ = D + c["modlag"]
        A(f"  s_cmp_ge_u32 s57, {48 if (c['abl'] is None or 'mod' in c['abl']) else 0}\n  s_cbranch_scc1 {lnp}")
        self.mod_loads()
        A("  s_barrier")
        self.stamp(8)
        self.mod_compute_a()
        A(f"  s_waitcnt vmcnt({c['prio']})")
        for n in range(D - 1): issue(f"K{n}", SRDA, n)
        A(f"  s_load_dword s3, {sp(sDBG)}, 0x80")
        A(f"  s_waitcnt vmcnt({D-1})")
        self.stamp(9)
        self.mod_compute_b()
        for n in range(D - 1, NJ):
            A(f"  s_waitcnt vmcnt({D-1})"); issue(f"K{n}", SRDA, n)
        self.mod_compute_c()
        self.stamp(14)
        if c["wo_at"] is not None and c["wo_at"] < NJ: self.lds_inc(F_K)
        A(f"  s_branch {lj}\n{lnp}:")
        issued.clear()
        for n in range(32):
            if n == NJ: A(f"{lj}:")
            pace(); issue(f"K{n}", SRDA, n)
            if n == 0: self.stamp(8)
            if n in (4, 8, 16, 24): self.stamp({4: 10, 8: 11, 16: 12, 24: 13}[n])
            if n == c["wo_at"]: self.lds_inc(F_K)
            if n == D - 3:
                A("  s_barrier")
                self.stamp(9)
            if n == NJ:
                A(f"  v_lshrrev_b32 v12, 1, v{vJ}\n  v_and_b32 v13, 1, v{vJ}\n  v_mov_b32 v14, 0xffff\n  v_lshlrev_b32 v13, 4, v13\n  v_lshlrev_b32 v14, v13, v14")
                for j in range(4):
                    A(f"  v_cmp_eq_u32 vcc, {j}, v12\n  v_cndmask_b32 v{4+j}, 0, v14, vcc")
        NV = c["NV"]
        slot = lambda n: T(32 - NV + n) if n < NV else T(n - NV)
        l = self.lab("nomodchk")
        A(f"  s_cmp_ge_u32 s57, {48 if (c['abl'] is None or 'mod' in c['abl']) else 0}\n  s_cbranch_scc1 {l}")
        self.lds_spin(F_MOD2, 8, 12)
        A(f"{l}:")
        for n in range(NV):
            if n % 4 == 0: A(f"  s_add_u32 m0, s56, {4096 * (n // 4)}")
            pace()
            A(f"  buffer_load_dwordx4 v{vL16}, {sq(SRDB)}, s{sOFF + (n >> 2)} offen offset:{1024*(n&3)}{c['vfl']} lds")
            issued.append(f"V{n}")
        self.stamp(1)
        self.lds_spin(F_Q2, 1, 12)
        self.stamp(2)
        A(f"  v_lshlrev_b32 v12, 4, v{vJ}\n  ds_read_b128 {vq(8)}, v12 offset:{L_QB}\n  s_waitcnt lgkmcnt(0)")
        def qk(G):
            z = 18 + G
            for r in range(4):
                for t in range(4):
                    A(f"  v_dot2_f32_bf16 v{12+t}, v{T(4*G+t)+r}, v{8+r}, {'0' if r == 0 else f'v{12+t}'}")
            A(f"  v_add_f32_dpp v16, v12, v12 row_ror:8 row_mask:0xf bank_mask:0x3")
            A(f"  v_add_f32_dpp v17, v14, v14 row_ror:8 row_mask:0xf bank_mask:0x3")
            A(f"  v_add_f32_dpp v16, v13, v13 row_ror:8 row_mask:0xf bank_mask:0xc")
            A(f"  v_add_f32_dpp v17, v15, v15 row_ror:8 row_mask:0xf bank_mask:0xc")
            A(f"  v_add_f32_dpp v{z}, v16, v16 row_shl:4 row_mask:0xf bank_mask:0x5")
            A(f"  v_add_f32_dpp v{z}, v17, v17 row_shr:4 row_mask:0xf bank_mask:0xa")
            A(f"  v_add_f32_dpp v{z}, v{z}, v{z} quad_perm:[1,0,3,2] row_mask:0xf bank_mask:0xf")
            A(f"  v_add_f32_dpp v{z}, v{z}, v{z} quad_perm:[2,3,0,1] row_mask:0xf bank_mask:0xf")
        nv = NV
        def nextv():
            nonlocal nv
            pace()
            A(f"  buffer_load_dwordx4 {vq(slot(nv))}, v{vL16}, {sq(SRDB)}, s{sOFF + (nv >> 2)} offen offset:{1024*(nv&3)}{c['vfl']}")
            issued.append(f"V{nv}"); nv += 1
        qk(0)
        groups = list(range(1, 7))
        per = -(-len(groups) // D)
        for i in range(D):
            nextv()
            for G in groups[i * per:(i + 1) * per]: qk(G)
        qk(7)
        if NV:
            A(f"  v_add_u32 v34, s56, v{vL16}")
            for n in range(NV): A(f"  ds_read_b128 {vq(slot(n))}, v34 offset:{1024*n}")
        A(f"  s_mov_b32 s60, {SCALE:#x}")
        for i in range(4): self.rnd2(18 + 2 * i, 19 + 2 * i, 12 + i)
        for i in range(8): A(f"  v_mul_f32 v{18+i}, s60, v{18+i}")
        for i in range(4): self.rnd2(18 + 2 * i, 19 + 2 * i, 12 + i)
        A("  v_max3_f32 v12, v18, v19, v20\n  v_max3_f32 v13, v21, v22, v23\n  v_max3_f32 v12, v12, v24, v25\n  v_max_f32 v12, v12, v13")
        self.wave_reduce("v_max_f32", [12], full=False)
        A("  v_readlane_b32 s61, v12, 63")
        for i in range(8): A(f"  v_subrev_f32 v{26+i}, s61, v{18+i}")
        for i in range(8): A(f"  v_mul_f32 v{26+i}, s{sLOG2E}, v{26+i}")
        for i in range(8): A(f"  v_exp_f32 v{26+i}, v{26+i}")
        A("  v_add_f32 v13, v26, v27\n  v_add_f32 v14, v28, v29\n  v_add_f32 v15, v30, v31\n  v_add_f32 v16, v32, v33")
        A("  v_add_f32 v13, v13, v14\n  v_add_f32 v15, v15, v16\n  v_add_f32 v13, v13, v15")
        self.wave_reduce("v_add_f32", [13], full=False)
        A(f"  s_lshl_b32 s60, s{sWAVE}, 3\n  v_mov_b32 v14, s60")
        A("  s_mov_b32 exec_lo, 0\n  s_mov_b32 exec_hi, 0x80000000")
        A(f"  ds_write_b64 v14, v[12:13] offset:{L_STATS}\n  ds_add_u32 v{vZ}, v{vONE} offset:{F_ST}")
        self.execall()
        nextv(); nextv()
        self.lds_spin(F_ST, 8, 12)
        A(f"  v_and_b32 v14, 7, v{vLANE}\n  v_lshlrev_b32 v14, 3, v14\n  ds_read_b64 v[12:13], v14 offset:{L_STATS}\n  s_waitcnt lgkmcnt(0)")
        red8 = ["quad_perm:[1,0,3,2]", "quad_perm:[2,3,0,1]", "row_ror:4"]
        A("  v_mov_b32 v14, v12")
        for s in red8: A(f"  v_max_f32_dpp v14, v14, v14 {s} row_mask:0xf bank_mask:0xf")
        A(f"  v_sub_f32 v12, v12, v14\n  v_mul_f32 v12, s{sLOG2E}, v12\n  v_exp_f32 v12, v12")
        for i in range(8): A(f"  v_sub_f32 v{26+i}, v{18+i}, v14")
        A("  v_mul_f32 v13, v13, v12")
        for i in range(8): A(f"  v_mul_f32 v{26+i}, s{sLOG2E}, v{26+i}")
        for s in red8: A(f"  v_add_f32_dpp v13, v13, v13 {s} row_mask:0xf bank_mask:0xf")
        for i in range(8): A(f"  v_exp_f32 v{26+i}, v{26+i}")
        A("  v_rcp_f32 v15, v13\n  v_fma_f32 v16, -v13, v15, 1.0\n  v_fmac_f32 v15, v16, v15")
        if c["dump"]:
            for i in range(8):
                A(f"  s_lshl_b32 s69, s2, 3\n  s_add_u32 s69, s69, s{sWAVE}\n  s_lshl_b32 s69, s69, 3\n  s_add_u32 s69, s69, {i}")
                self.dumpv(18 + i, 1, 0x100000, 69, 256, tmp=36)
        for i in range(8): A(f"  v_mul_f32 v{26+i}, v{26+i}, v15")
        for i in range(8): A(f"  v_cvt_pk_bf16_f32 v{18+i}, v{26+i}, v{26+i}")
        self.stamp(3)
        npv = 0
        def pv():
            nonlocal npv
            n = npv; npv += 1
            Ab = 26 + 4 * (n & 1)
            bank = [0, 2, 1, 3][n & 3]
            for j in range(4):
                A(f"  v_and_b32_dpp v{Ab+j}, v{18+(n>>2)}, v{4+j} row_newbcast:{4*bank} row_mask:0xf bank_mask:0xf")
            A(f"  v_mfma_f32_16x16x32_bf16 {vq(34)}, {vq(Ab)}, {vq(slot(n))}, {'0' if n == 0 else vq(34)}")
            if n == c["hint_at"]: self.lds_inc(F_P)
        self.ffn_addr()
        def vstep():
            nextv()
            landed = nv - D
            k = 0
            while npv < landed and k < 3:
                pv(); k += 1
        def finish():
            while npv < 32:
                waitfor(f"V{npv}"); pv()
            A(f"  v_lshlrev_b32 v12, 5, v{vJ}\n  v_lshl_add_u32 v12, v{vG}, 4, v12\n  s_lshl_b32 s60, s{sWAVE}, 9\n  v_add_u32 v12, s60, v12")
            A("  s_mov_b32 exec_hi, 0")
            A(f"  ds_write_b128 v12, {vq(34)} offset:{L_OP}")
            self.lds_inc(F_O)
            self.stamp(5)
        NF0 = c["NF0"]
        while nv < 32 - NF0: vstep()
        assert npv >= NV or NF0 == 0, (npv, NV)
        lf = self.lab("vffn")
        if c["abl"] is None and "T" not in c["xskip"]: A(f"  s_cmp_lg_u32 s{sFFN}, 0\n  s_cbranch_scc1 {lf}")
        st = (nv, npv, list(issued))
        while nv < 32: vstep()
        self.stamp(4)
        finish()
        A("  s_branch L_exit")
        A(f"{lf}:")
        nv, npv = st[0], st[1]; issued[:] = st[2]
        nf = 0
        while nv < 32:
            waitfor(f"V{nv - (D - 1)}")
            A(f"  buffer_load_dwordx4 {vq(slot(nv))}, v{vL16}, {sq(SRDB)}, s{sOFF + (nv >> 2)} offen offset:{1024*(nv&3)}{c['vfl']}")
            issued.append(f"V{nv}"); nv += 1
            self.ffn_load(nf); issued.append(f"F{nf}"); nf += 1
            k = 0
            while npv < nv - D + 1 and k < 3:
                pv(); k += 1
        self.stamp(4)
        finish()
        FD = c["FD"]
        while nf < FD:
            self.ffn_load(nf); issued.append(f"F{nf}"); nf += 1
        self.lds_spin(F_A, 4, 12)
        while nf < 16:
            self.ffn_load(nf); issued.append(f"F{nf}"); nf += 1
        self.ffn_lds_addr()
        waitfor("F7"); self.transpose_x2(120, 40)
        if c["down_late"]: self.lds_spin(F_R, 2, 12)
        while nf < 24:
            self.ffn_load(nf); issued.append(f"F{nf}"); nf += 1
        waitfor("F15"); self.transpose_x2(136, 56)

    def ffn_addr(self):
        A = self.A
        A(f"  v_cmp_gt_u32 vcc, 8, v{vJ}")
        A(f"  v_mov_b32 v12, s{sU}\n  v_mov_b32 v13, s{sU+1}\n  v_mov_b32 v14, s{sG}\n  v_mov_b32 v15, s{sG+1}")
        A(f"  v_cndmask_b32 v8, v12, v14, vcc\n  v_cndmask_b32 v9, v13, v15, vcc")
        A(f"  s_lshr_b32 s16, s{sJ}, 1\n  s_and_b32 s17, s{sJ}, 1")
        A(f"  s_lshl_b32 s60, s{sWAVE}, 6\n  s_lshl_b32 s61, s16, 5\n  s_add_u32 s60, s60, s61\n  s_lshl_b32 s61, s17, 2\n  s_add_u32 s60, s60, s61")
        A(f"  v_lshl_add_u32 v12, v{vG}, 3, s60\n  v_mul_u32_u24 v12, 2752, v12")
        A(f"  v_and_b32 v13, 7, v{vJ}\n  v_lshl_add_u32 v12, v13, 3, v12\n  s_lshl_b32 s60, s{sSL}, 6\n  v_add_u32 v12, s60, v12\n  v_mov_b32 v13, 0")
        A(f"  v_lshl_add_u64 v[8:9], v[8:9], 0, v[12:13]")
        A(f"  s_mov_b32 s10, 5504\n  s_mov_b32 s11, 0")
        A(f"  s_cmp_eq_u32 s17, 0\n  s_cselect_b32 s60, 4, -4\n  s_cmp_eq_u32 s16, 0\n  s_cselect_b32 s61, 32, -32")
        A(f"  s_sub_i32 s61, s61, s60\n  s_sub_i32 s60, s60, 2\n  s_sub_i32 s61, s61, 2")
        A(f"  s_mul_i32 s12, s60, 2752\n  s_ashr_i32 s13, s12, 31\n  s_mul_i32 s6, s61, 2752\n  s_ashr_i32 s7, s6, 31")
        A(f"  s_mov_b32 s{SRDA}, s{sDN}\n  s_mov_b32 s{SRDA+1}, s{sDN+1}\n  s_mov_b32 s{SRDA+2}, 1409024\n  s_mov_b32 s{SRDA+3}, 0x20000")
        A(f"  v_lshlrev_b32 v10, 13, v{vG}\n  v_lshl_add_u32 v10, v{vJ}, 3, v10")
        A(f"  s_lshl_b32 s18, s{sSL}, 15\n  s_lshl_b32 s19, s{sWAVE}, 7\n  s_add_u32 s18, s18, s19\n  s_add_u32 s19, s18, 4096")

    def ffn_load(self, i):
        A = self.A
        if i < 16:
            A(f"  global_load_dwordx2 {vp(120+2*i)}, v[8:9], off{' offset:2752' if i & 1 else ''}{self.c['ffnfl']}")
            if i & 1 and i < 15:
                step = "s[10:11]" if (i & 3) == 1 else ("s[6:7]" if i == 7 else "s[12:13]")
                A(f"  v_lshl_add_u64 v[8:9], v[8:9], 0, {step}")
        else:
            e = i - 16
            A(f"  buffer_load_dwordx2 {vp(152+2*e)}, v10, {sq(SRDA)}, s{18 + (e >> 2)} offen offset:{1024*(e&3)}{self.c['ffnfl']}")

    def ffn_lds_addr(self):
        A = self.A
        A(f"  v_and_b32 v12, 1, v{vJ}\n  v_lshlrev_b32 v112, 10, v12\n  v_lshl_add_u32 v112, v{vG}, 4, v112\n  s_lshl_b32 s60, s{sWAVE}, 7\n  v_add_u32 v112, s60, v112")
        A(f"  s_lshl_b32 s60, s16, 6\n  s_lshl_b32 s61, s17, 3\n  s_add_u32 s60, s60, s61\n  v_add_u32 v112, s60, v112")
        A(f"  v_xor_b32 v113, 8, v112\n  v_xor_b32 v114, 64, v112\n  v_xor_b32 v115, 0x48, v112")
        A(f"  v_lshlrev_b32 v116, 6, v12\n  v_lshl_add_u32 v116, v{vG}, 4, v116")
        A(f"  v_lshlrev_b32 v117, 5, v{vJ}\n  v_lshl_add_u32 v117, v{vG}, 3, v117\n  s_lshl_b32 s60, s{sWAVE}, 9\n  v_add_u32 v117, s60, v117")
        A(f"  s_lshl_b32 s60, s{sJ}, 5\n  s_lshl_b32 s61, s{sWAVE}, 2\n  s_add_u32 s60, s60, s61\n  v_add_u32 v118, s60, v{vG}\n  v_mul_u32_u24 v118, {INB}, v118")
        A(f"  s_lshl_b32 s60, s{sSL}, 8\n  s_add_u32 s60, s60, {WS_INBOX}\n  v_lshl_add_u32 v12, v{vJ}, 4, s60\n  v_add_u32 v118, v12, v118")
        A(f"  ds_read_b32 v119, v{vZ} offset:{F_N}")

    def streamer_ffn(self):
        A = self.A
        self.stamp(6)
        A("  s_barrier")
        for i in range(4): A(f"  ds_read_b64 {vp(88+2*i)}, v{112+i} offset:{L_H2}")
        A("  s_waitcnt lgkmcnt(2)")
        for cc in range(4): A(f"  v_mfma_f32_16x16x32_bf16 {vq(96+4*cc)}, {vq(88)}, {vq(40+4*cc)}, 0")
        A("  s_waitcnt lgkmcnt(0)")
        for cc in range(4): A(f"  v_mfma_f32_16x16x32_bf16 {vq(96+4*cc)}, {vq(92)}, {vq(56+4*cc)}, {vq(96+4*cc)}")
        def select():
            for g in range(1, 4):
                for r in range(2):
                    A(f"  v_mov_b32_dpp v{96+r}, v{96+4*g+r} quad_perm:[0,1,2,3] row_mask:{1<<g:#x} bank_mask:0xf")
        select()
        A(f"  ds_write_b64 v117, v[96:97] offset:{L_GUP}\n  s_waitcnt lgkmcnt(0)")
        A("  s_barrier")
        A("  s_waitcnt vmcnt(0)"); self.transpose_x2(152, 72)
        A("  s_barrier")
        A(f"  ds_read_b128 {vq(88)}, v116 offset:{L_HH}\n  s_waitcnt lgkmcnt(0)")
        for cc in range(4): A(f"  v_mfma_f32_16x16x32_bf16 {vq(96+4*cc)}, {vq(88)}, {vq(72+4*cc)}, 0")
        select()
        A(f"  v_mov_b32 v98, v119\n  v_xor_b32 v99, {TAGX:#x}, v119")
        A(f"  global_store_dwordx4 v118, {vq(96)}, {sp(sWS)} sc1")
        self.stamp(7)
        A("  s_branch L_exit")

    def mod_loads(self):
        A = self.A
        A(f"  v_and_b32 v4, 7, v{vJ}\n  v_lshrrev_b32 v5, 3, v{vJ}\n  v_lshlrev_b32 v6, 10, v4\n  v_lshl_add_u32 v6, v5, 6, v6\n  v_lshl_add_u32 v6, v{vG}, 4, v6")
        A(f"  s_lshl_b32 s60, s{sWAVE}, 7\n  v_add_u32 v6, s60, v6")
        A(f"  global_load_dwordx4 {vq(8)}, v6, {sp(sC)}")
        A(f"  v_lshlrev_b32 v7, 5, v5\n  v_lshl_add_u32 v7, v{vG}, 3, v7\n  v_mul_u32_u24 v7, 6144, v7\n  v_lshl_add_u32 v7, v4, 4, v7")
        A(f"  s_mul_i32 s60, s{sWAVE}, {64*6144}\n  s_lshl_b32 s61, s57, 7\n  s_add_u32 s60, s60, s61\n  v_add_u32 v7, s60, v7")
        for i in range(8):
            A(f"  global_load_dwordx4 {vq(136+4*i)}, v7, {sp(sWM)} nt")
            if i < 7: A(f"  v_add_u32 v7, 6144, v7")

    def mod_compute_a(self):
        A = self.A
        A(f"  s_lshl_b32 s60, s{sWAVE}, 12\n  s_add_u32 s60, s60, {L_V}\n  v_lshlrev_b32 v28, 11, v5\n  v_lshl_add_u32 v28, v4, 8, v28\n  v_and_b32 v29, 1, v{vG}\n  v_lshl_add_u32 v28, v29, 4, v28\n  v_add_u32 v28, s60, v28")
        A(f"  v_lshrrev_b32 v29, 1, v{vG}\n  v_cmp_eq_u32 s[68:69], v29, v5")
        A("  s_waitcnt vmcnt(8)")
        for i in range(4):
            r = 8 + i
            A(f"  v_lshlrev_b32 v16, 16, v{r}\n  v_and_b32 v17, 0xffff0000, v{r}")
            A(f"  v_mul_f32 v18, s{sLOG2E}, v16\n  v_mul_f32 v19, s{sLOG2E}, v17")
            A(f"  v_exp_f32 v18, -v18\n  v_exp_f32 v19, -v19")
            A(f"  v_add_f32 v18, 1.0, v18\n  v_add_f32 v19, 1.0, v19\n  v_rcp_f32 v18, v18\n  v_rcp_f32 v19, v19")
            A(f"  v_mul_f32 v16, v16, v18\n  v_mul_f32 v17, v17, v19\n  v_cvt_pk_bf16_f32 v{r}, v16, v17")

    def mod_compute_b(self):
        A = self.A
        self.transpose_block(136, 5, 6)
        for cc in range(8):
            A(f"  v_mfma_f32_16x16x32_bf16 {vq(104+4*cc)}, {vq(8)}, {vq(136+4*cc)}, 0")
        A("  s_mov_b64 exec, s[68:69]")
        for cc in range(8):
            A(f"  ds_write_b128 v28, {vq(104+4*cc)} offset:{32*cc}")
        self.lds_inc(F_MOD)

    def mod_compute_c(self):
        A = self.A
        A(f"  v_and_b32 v4, 31, v{vLANE}\n  v_lshrrev_b32 v5, 5, v{vLANE}\n  v_lshlrev_b32 v6, 6, v4\n  v_lshl_add_u32 v6, v5, 14, v6\n  s_lshl_b32 s60, s{sWAVE}, 2\n  s_add_u32 s60, s60, {L_V}\n  v_add_u32 v6, s60, v6")
        A(f"  s_mul_i32 s60, s{sWAVE}, 6144\n  s_lshl_b32 s61, s57, 7\n  s_add_u32 s60, s60, s61\n  s_add_u32 s60, s60, {WS_MOD}\n  v_lshl_add_u32 v5, v4, 2, s60")
        self.lds_spin(F_MOD, 8, 7)
        for part in range(8):
            if part: A(f"  v_add_u32 v6, 2048, v6")
            A(f"  ds_read2_b32 {vp(8+2*part)}, v6 offset0:0 offset1:8")
        l = self.lab("pollSN"); d = self.lab("gotSN")
        A(f"{l}:\n  s_cmp_lg_u32 s3, 0\n  s_cbranch_scc1 {d}")
        self.guard()
        A(f"  s_load_dword s3, {sp(sDBG)}, 0x80 glc\n  s_waitcnt lgkmcnt(0)\n  s_branch {l}\n{d}:")
        A("  s_waitcnt lgkmcnt(0)")
        self.lds_inc(F_MOD2)
        for part in range(1, 8):
            A(f"  v_add_f32 v8, v8, v{8+2*part}\n  v_add_f32 v9, v9, v{9+2*part}")
        A("  v_mov_b32 v10, v8\n  v_mov_b32 v11, v9\n  v_permlane32_swap_b32 v10, v8\n  v_permlane32_swap_b32 v11, v9\n  v_add_f32 v8, v8, v10\n  v_add_f32 v9, v9, v11")
        A(f"  v_cvt_pk_bf16_f32 v8, v8, v9\n  s_mov_b32 exec_hi, 0\n  global_store_dword v5, v8, {sp(sWS)} sc1")
        self.execall()
        A("  v_mov_b32 v9, v8")
        for st in ("quad_perm:[1,0,3,2]", "quad_perm:[2,3,0,1]", "row_ror:4", "row_ror:8"):
            A(f"  v_xor_b32_dpp v9, v9, v9 {st} row_mask:0xf bank_mask:0xf")
        A("  v_mov_b32 v10, v9\n  v_permlane16_swap_b32 v10, v9\n  v_bitop3_b32 v9, v9, v10, s3 bitop3:0x96")
        A(f"  s_lshl_b32 s60, s{sWAVE}, 8\n  s_lshl_b32 s61, s57, 2\n  s_add_u32 s60, s60, s61\n  s_add_u32 s60, s60, {WS_MARK}\n  v_mov_b32 v5, s60")
        self.exec1(); A(f"  global_store_dword v5, v9, {sp(sWS)} sc1"); self.execall()

    def check_lines(self, data, tags, tmp):
        A = self.A
        n = len(data)
        for k in range(n): A(f"  v_xor_b32 v{tmp+k}, v{data[k]}, v{data[k]+1}")
        for k in range(n): A(f"  v_bitop3_b32 v{tmp+k}, v{tmp+k}, v{data[k]+2}, v{data[k]+3} bitop3:0x96")
        for st in ("quad_perm:[1,0,3,2]", "quad_perm:[2,3,0,1]", "row_half_mirror"):
            for k in range(n): A(f"  v_xor_b32_dpp v{tmp+k}, v{tmp+k}, v{tmp+k} {st} row_mask:0xf bank_mask:0xf")
        for k in range(n): A(f"  v_bitop3_b32 v{tmp+k}, v{tmp+k}, v{tags[k]}, s44 bitop3:0x96")
        for k in range(1, n): A(f"  v_or_b32 v{tmp}, v{tmp}, v{tmp+k}")
        A(f"  v_cmp_ne_u32 vcc, 0, v{tmp}")

    def get_flag(self, tmp, off, sreg, expect=None):
        A = self.A
        l = self.lab("pollN"); d = self.lab("gotN")
        cmp = f"s_cmp_lg_u32 s{sreg}, 0" if expect is None else f"s_cmp_eq_u32 s{sreg}, {expect}"
        self.exec1()
        A(f"  global_load_dword v{tmp}, v{vZ}, {sp(sDBG)} offset:{off}")
        A(f"{l}:\n  s_waitcnt vmcnt(0)\n  v_readfirstlane_b32 s{sreg}, v{tmp}\n  {cmp}\n  s_cbranch_scc1 {d}")
        self.guard()
        A(f"  s_sleep {self.c['poll_sleep']}\n  global_load_dword v{tmp}, v{vZ}, {sp(sDBG)} offset:{off} sc1\n  s_branch {l}\n{d}:"); self.execall()
    def get_nonce(self, tmp): self.get_flag(tmp, 128, 44)

    def xor_rows(self, r, t):
        A = self.A
        A(f"  v_mov_b32 v{t}, v{r}\n  v_permlane16_swap_b32 v{t}, v{r}\n  v_xor_b32 v{r}, v{r}, v{t}")
        A(f"  v_mov_b32 v{t}, v{r}\n  v_permlane32_swap_b32 v{t}, v{r}\n  v_xor_b32 v{r}, v{r}, v{t}")

    def allreduce8(self, r, t, op="v_add_f32"):
        A = self.A
        A(f"  {op}_dpp v{r}, v{r}, v{r} row_ror:8 row_mask:0xf bank_mask:0xf")
        A(f"  v_mov_b32 v{t}, v{r}\n  v_permlane16_swap_b32 v{t}, v{r}\n  {op} v{r}, v{r}, v{t}")
        A(f"  v_mov_b32 v{t}, v{r}\n  v_permlane32_swap_b32 v{t}, v{r}\n  {op} v{r}, v{r}, v{t}")

    def h0_issue(self, fl):
        A = self.A
        A(f"  global_load_dwordx4 {vq(28)}, v36, {sp(sWS)}{fl}\n  global_load_dwordx4 {vq(32)}, v36, {sp(sWS)} offset:1024{fl}")
        A(f"  global_load_dword v24, v37, {sp(sWS)}{fl}\n  global_load_dword v25, v37, {sp(sWS)} offset:32{fl}")

    def h0_finish(self):
        A = self.A; c = self.c
        l = self.lab("chkA"); d = self.lab("gotA")
        A(f"{l}:")
        self.check_lines([28, 32], [24, 25], 26)
        A(f"  s_cbranch_vccz {d}")
        self.guard()
        A(f"  s_sleep {c['a_sleep']}")
        self.h0_issue(" sc1")
        A(f"  s_waitcnt vmcnt(0)\n  s_branch {l}\n{d}:")
        self.stamp(2); self.cstamp(14)
        self.unpack8(32, 16)
        for i in range(8): A(f"  v_add_f32 v{16+i}, 1.0, v{16+i}")
        self.rnd8(16, 24)
        for i in range(8): A(f"  v_mul_f32 v{8+i}, v{8+i}, v{16+i}")
        self.rnd8(8, 24)
        self.unpack8(28, 16)
        for i in range(8): A(f"  v_add_f32 v{8+i}, v{8+i}, v{16+i}")
        for i in range(4): A(f"  v_cvt_pk_bf16_f32 v{24+i}, v{8+2*i}, v{9+2*i}")
        A(f"  v_add_u32 v16, s47, v{vL16}\n  ds_write_b128 v16, {vq(24)} offset:{L_HBUF}")
        self.lds_inc(F_H)
        if c["dump"]:
            l = self.lab("nodh"); A(f"  s_cmp_lg_u32 s{sHW}, 0\n  s_cbranch_scc1 {l}"); self.dumpv(24, 4, 0x0, 2, 1024); A(f"{l}:")
        self.stamp(3)

    def helper(self):
        A = self.A; c = self.c
        A("L_helper:")
        self.stamp(8)
        A(f"  s_sub_u32 s{sHW}, s{sWAVE}, 8")
        l = self.lab("h3")
        A(f"  s_cmp_lg_u32 s{sHW}, 3\n  s_cbranch_scc1 {l}")
        A(f"  v_lshlrev_b32 v4, 2, v{vLANE}\n  ds_write_b32 v4, v{vZ}\n  s_waitcnt lgkmcnt(0)\n{l}:")
        A("  s_waitcnt lgkmcnt(0)")
        if c["tlb"]:
            l = self.lab("notlb")
            A(f"  s_cmp_lg_u32 s{sHW}, 2\n  s_cbranch_scc1 {l}")
            self.exec1()
            A(f"  s_lshl_b32 s60, s{sB}, 5\n  s_add_u32 s60, s60, s{sH}\n  s_lshl_b32 s60, s60, 20\n  s_add_u32 s60, s60, 0xC0000\n  v_mov_b32 v4, s60")
            A(f"  global_load_dword v40, v4, {sp(sV)} nt")
            A(f"  s_lshl_b32 s60, s2, 12\n  s_add_u32 s60, s60, {WS_QIN}\n  v_mov_b32 v5, s60\n  global_load_dword v41, v5, {sp(sWS)} nt")
            A(f"  s_lshl_b32 s60, s{sH}, 17\n  v_mov_b32 v6, s60\n  global_load_dword v42, v6, {sp(sWO)} nt")
            A(f"  s_lshl_b32 s60, s2, 2\n  s_and_b32 s60, s60, 0xfc\n  v_mov_b32 v7, s60")
            A(f"  global_load_dword v43, v7, {sp(sDBG)}")
            if c["tlb"] > 1:
                A(f"  s_lshl_b32 s60, s2, 7\n  v_mov_b32 v8, s60")
                for k, p in enumerate((sG, sU, sDN, sWS)): A(f"  global_load_dword v{44+k}, v8, {sp(p)} nt")
                A(f"  v_add_u32 v8, 0x100000, v8")
                for k, p in enumerate((sG, sU, sDN)): A(f"  global_load_dword v{48+k}, v8, {sp(p)} nt")
                A(f"  s_lshl_b32 s60, s2, 5\n  v_mov_b32 v9, s60\n  global_load_dword v52, v9, {sp(sOUT)} nt")
            self.execall()
            A(f"{l}:")
        l = self.lab("nononce")
        A(f"  s_cmp_lg_u32 s2, 0\n  s_cbranch_scc1 {l}\n  s_cmp_lg_u32 s{sHW}, 1\n  s_cbranch_scc1 {l}")
        A(f"  s_memrealtime s[42:43]\n  s_waitcnt lgkmcnt(0)\n  s_or_b32 s42, s42, 1\n  v_mov_b32 v6, s42")
        self.exec1(); A(f"  global_store_dword v{vZ}, v6, {sp(sDBG)} offset:128 sc1"); self.execall()
        A(f"{l}:")
        A("  s_barrier")
        abl = c["abl"]
        if abl is not None:
            if "init" in abl: self.init_duty(11)
            l = self.lab("abl")
            A(f"  s_cmp_lg_u32 s{sHW}, 0\n  s_cbranch_scc1 {l}")
            self.lds_inc(F_Q2)
            if "h0l" in abl:
                A(f"  v_and_b32 v5, 7, v{vJ}\n  v_lshrrev_b32 v6, 3, v{vJ}\n  v_lshl_add_u32 v7, v{vG}, 1, v6\n  v_lshlrev_b32 v7, 4, v7\n  v_lshl_add_u32 v7, v5, 10, v7")
                if "nox" not in abl:
                    for i in range(8): A(f"  global_load_dwordx4 {vq(40+4*i)}, v7, {sp(sX)} offset:{128*i} nt")
                A(f"  s_mov_b32 s{SRDB}, s{sWQ}\n  s_mov_b32 s{SRDB+1}, s{sWQ+1}\n  s_mov_b32 s{SRDB+2}, 4194304\n  s_mov_b32 s{SRDB+3}, 0x20000")
                A(f"  v_lshlrev_b32 v7, 4, v{vJ}\n  v_lshl_add_u32 v7, v{vG}, 16, v7")
                A(f"  s_lshl_b32 s41, s{sB}, 19\n  s_lshl_b32 s60, s{sH}, 8\n  s_add_u32 s41, s41, s60")
                for i in range(0 if "nowq" in abl else 16):
                    A(f"  s_waitcnt vmcnt({c['ablD']})")
                    A(f"  buffer_load_dwordx4 {vq(104+4*i)}, v7, {sq(SRDB)}, s41 offen nt")
                    if i < 15: A(f"  s_add_u32 s41, s41, {8192 if i != 7 else 8192*25}")
                A("  s_waitcnt vmcnt(0)")
            if "poll" in abl:
                lp = self.lab("ablp")
                self.exec1()
                A(f"  s_mov_b32 s65, 12\n{lp}:\n  global_load_dwordx2 v[24:25], v{vZ}, {sp(sDBG)} offset:128 sc1\n  s_waitcnt vmcnt(0)\n  s_sleep {c['poll_sleep']}\n s_sub_u32 s65, s65, 1\n s_cmp_lg_u32 s65, 0\n s_cbranch_scc1 {lp}")
                self.execall()
            A(f"{l}:")
            if "wqr" in abl:
                A(f"  s_mov_b32 s{SRDA}, s{sWQ}\n  s_mov_b32 s{SRDA+1}, s{sWQ+1}\n  s_mov_b32 s{SRDA+2}, 4194304\n  s_mov_b32 s{SRDA+3}, 0x20000")
                A(f"  v_lshlrev_b32 v4, 4, v{vJ}\n  v_lshl_add_u32 v4, v{vG}, 16, v4")
                A(f"  s_lshl_b32 s40, s{sHW}, 20\n  s_lshl_b32 s60, s{sH}, 8\n  s_add_u32 s40, s40, s60")
                self.wload32(SRDA, [8192 if i % 8 < 7 else 8192 * 25 for i in range(32)], c["HDO"], frac=c["HDOf"])
                self.stamp(5)
            if "wo" in abl:
                A(f"  s_mov_b32 s{SRDA}, s{sWO}\n  s_mov_b32 s{SRDA+1}, s{sWO+1}\n  s_mov_b32 s{SRDA+2}, 4194304\n  s_mov_b32 s{SRDA+3}, 0x20000")
                A(f"  v_lshlrev_b32 v4, 4, v{vJ}\n  v_lshl_add_u32 v4, v{vG}, 13, v4")
                A(f"  s_lshl_b32 s40, s{sH}, 17\n  s_lshl_b32 s60, s{sHW}, 8\n  s_add_u32 s40, s40, s60")
                self.wload32(SRDA, [1024 if i % 8 < 7 else 1024 * 25 for i in range(32)], c["HDO"], frac=c["HDOf"])
                self.stamp(6)
            A("  s_branch L_exit")
        A(f"  s_mov_b32 s{SRDA}, s{sWQ}\n  s_mov_b32 s{SRDA+1}, s{sWQ+1}\n  s_mov_b32 s{SRDA+2}, 4194304\n  s_mov_b32 s{SRDA+3}, 0x20000")
        A(f"  v_lshlrev_b32 v4, 4, v{vJ}\n  v_lshl_add_u32 v4, v{vG}, 16, v4")
        A(f"  s_lshl_b32 s40, s{sHW}, 20\n  s_lshl_b32 s60, s{sH}, 8\n  s_add_u32 s40, s40, s60")
        steps = [8192 if i % 8 < 7 else 8192 * 25 for i in range(32)]
        A(f"  s_cmp_lt_u32 s57, 48\n  s_cbranch_scc1 L_prodh")
        A(f"  s_sub_u32 s60, s57, 48\n  s_cmp_lt_u32 s60, 48\n  s_cselect_b32 s45, 1, 0")
        A(f"  s_cmp_gt_u32 s{sHW}, s45\n  s_cbranch_scc1 L_wq123")
        A(f"  s_mul_i32 s46, s{sHW}, 3\n  s_add_u32 s46, s46, s{sB}\n  s_lshl_b32 s47, s{sHW}, 10")
        A(f"  s_lshl_b32 s60, s46, 10\n  v_add_u32 v36, s60, v{vL16}\n  global_load_dwordx4 {vq(28)}, v36, {sp(sX)}")
        A(f"  s_mul_i32 s60, s46, 6144\n  s_add_u32 s60, s60, {WS_MOD}\n  v_add_u32 v36, s60, v{vL16}")
        A(f"  s_lshl_b32 s60, s46, 8\n  s_add_u32 s60, s60, {WS_MARK}\n  v_lshrrev_b32 v37, 3, v{vLANE}\n  v_lshl_add_u32 v37, v37, 2, s60")
        HD = c["HD"]
        def ln():
            self.unpack8(28, 8); self.layernorm(8, 16, 24)
            A(f"  s_load_dword s44, {sp(sDBG)}, 0x80")
        def gather():
            l = self.lab("pollHN"); d = self.lab("gotHN")
            A(f"  s_waitcnt lgkmcnt(0)\n{l}:\n  s_cmp_lg_u32 s44, 0\n  s_cbranch_scc1 {d}")
            self.guard()
            A(f"  s_load_dword s44, {sp(sDBG)}, 0x80 glc\n  s_waitcnt lgkmcnt(0)\n  s_branch {l}\n{d}:")
            self.stamp(1)
            self.h0_issue("")
            A(f"  v_mov_b32 v26, s44\n  ds_write_b32 v{vZ}, v26 offset:{F_N}")
        self.wload32(SRDA, steps, HD, frac=c["HDf"], hooks={HD + 3: ln, c["P0"]: gather, c["P0"] + HD: self.h0_finish})
        A("  s_branch L_q")
        A("L_wq123:")
        l = self.lab("nozero")
        A(f"  s_cmp_lg_u32 s{sHW}, 3\n  s_cbranch_scc1 {l}\n  s_cmp_lt_u32 s57, 256\n  s_cbranch_scc1 {l}\n  s_cmp_ge_u32 s57, {256+8}\n  s_cbranch_scc1 {l}")
        A("  v_mov_b32 v12, 0\n  v_mov_b32 v13, 0\n  v_mov_b32 v14, 0\n  v_mov_b32 v15, 0")
        A(f"  s_sub_u32 s61, s57, 256\n  s_lshl_b32 s60, s61, 12\n  s_add_u32 s60, s60, {WS_ACC}\n  v_add_u32 v5, s60, v{vL16}")
        for i in range(4): A(f"  global_store_dwordx4 v5, {vq(12)}, {sp(sWS)} offset:{1024*i} sc1")
        A(f"{l}:")
        self.wload32(SRDA, steps, HD, frac=c["HDf"])
        A("L_q:")
        self.stamp(4)
        A("  s_add_u32 s61, s45, 1")
        self.lds_spin(F_H, "s61", 7)
        A(f"  s_lshl_b32 s60, s{sHW}, 8\n  v_lshl_add_u32 v4, v{vG}, 4, s60\n  v_and_b32 v5, s45, v{vJ}\n  v_lshl_add_u32 v4, v5, 10, v4")
        for m in range(4): A(f"  ds_read_b128 {vq(8+4*m)}, v4 offset:{L_HBUF + 64*m}")
        A(f"  ds_read_b32 v7, v{vZ} offset:{F_N}")
        A(f"  s_lshl_b32 s60, s{sHW}, 10\n  v_lshl_add_u32 v5, v{vJ}, 5, s60\n  v_add_u32 v5, {L_QP}, v5")
        A(f"  s_mov_b32 s{SRDA}, s{sWO}\n  s_mov_b32 s{SRDA+1}, s{sWO+1}\n  s_mov_b32 s{SRDA+2}, 4194304\n  s_mov_b32 s{SRDA+3}, 0x20000")
        A(f"  s_lshl_b32 s40, s{sH}, 17\n  s_lshl_b32 s60, s{sHW}, 8\n  s_add_u32 s40, s40, s60")
        A("  s_waitcnt lgkmcnt(0)")
        A(f"  v_readfirstlane_b32 s44, v7\n  v_lshlrev_b32 v4, 4, v{vJ}\n  v_lshl_add_u32 v4, v{vG}, 13, v4")
        res = self.gemv32()
        A("  s_mov_b64 exec, 0xffff")
        for cc in range(0, 8, 2):
            A(f"  ds_write2_b32 v5, v{res[cc]}, v{res[cc+1]} offset0:{cc} offset1:{cc+1}")
            A(f"  ds_write2_b32 v5, v{res[cc]+1}, v{res[cc+1]+1} offset0:{128+cc} offset1:{129+cc}")
        self.exec1()
        A(f"  ds_add_rtn_u32 v7, v{vZ}, v{vONE} offset:{F_Q}\n  s_waitcnt lgkmcnt(0)\n  v_readfirstlane_b32 s60, v7")
        self.execall()
        l = self.lab("notlastq")
        A(f"  s_cmp_lg_u32 s60, 3\n  s_cbranch_scc1 {l}")
        A(f"  v_lshlrev_b32 v6, 3, v{vLANE}")
        for part in range(4): A(f"  ds_read_b64 {vp(8+2*part)}, v6 offset:{L_QP + 1024*part}")
        for part in range(4): A(f"  ds_read_b64 {vp(16+2*part)}, v6 offset:{L_QP + 1024*part + 512}")
        A(f"  s_add_u32 s60, s2, 96\n  s_lshl_b32 s60, s60, 9\n  s_add_u32 s60, s60, {WS_QIN}\n  v_add_u32 v7, s60, v6")
        A(f"  v_lshlrev_b32 v6, 2, v{vLANE}\n  s_waitcnt lgkmcnt(4)")
        A("  v_add_f32 v8, v8, v10\n  v_add_f32 v9, v9, v11\n  v_add_f32 v12, v12, v14\n  v_add_f32 v13, v13, v15\n  v_add_f32 v8, v8, v12\n  v_add_f32 v9, v9, v13")
        A(f"  v_cvt_pk_bf16_f32 v8, v8, v9\n  ds_write_b32 v6, v8 offset:{L_QB}")
        self.lds_inc(F_Q2)
        l2 = self.lab("nodon")
        A(f"  s_cmp_eq_u32 s45, 0\n  s_cbranch_scc1 {l2}\n  s_waitcnt lgkmcnt(0)")
        A("  v_add_f32 v16, v16, v18\n  v_add_f32 v17, v17, v19\n  v_add_f32 v20, v20, v22\n  v_add_f32 v21, v21, v23\n  v_add_f32 v16, v16, v20\n  v_add_f32 v17, v17, v21")
        A(f"  v_cvt_pk_bf16_f32 v16, v16, v17\n  v_mov_b32 v17, s44\n  global_store_dwordx2 v7, v[16:17], {sp(sWS)} sc1\n{l2}:")
        self.dumpv(8, 1, 0x80000, 2, 256)
        A(f"{l}:")
        self.stamp(5)
        l = self.lab("notick")
        A(f"  s_cmp_lg_u32 s{sHW}, 3\n  s_cbranch_scc1 {l}\n  s_cmp_lt_u32 s57, 256\n  s_cbranch_scc1 {l}\n  s_cmp_ge_u32 s57, {256+8}\n  s_cbranch_scc1 {l}")
        A(f"  s_mov_b32 s65, 1\n  s_atomic_add s65, {sp(sDBG)}, 0x8 glc\n  s_waitcnt lgkmcnt(0)\n  s_cmp_lg_u32 s65, 7\n  s_cbranch_scc1 {l}\n  v_mov_b32 v6, s44")
        self.exec1(); A(f"  global_store_dword v{vZ}, v6, {sp(sDBG)} offset:136 sc1"); self.execall()
        A(f"{l}:")
        steps = [1024 if i % 8 < 7 else 1024 * 25 for i in range(32)]
        self.wload32(SRDA, steps, c["HDO"], frac=c["HDOf"])
        A("  s_branch L_wo")
        A("L_prodh:")
        A(f"  s_mov_b32 s{SRDA}, s{sWO}\n  s_mov_b32 s{SRDA+1}, s{sWO+1}\n  s_mov_b32 s{SRDA+2}, 4194304\n  s_mov_b32 s{SRDA+3}, 0x20000")
        A(f"  s_lshl_b32 s40, s{sH}, 17\n  s_lshl_b32 s60, s{sHW}, 8\n  s_add_u32 s40, s40, s60")
        A(f"  v_lshlrev_b32 v4, 4, v{vJ}\n  v_lshl_add_u32 v4, v{vG}, 13, v4")
        def recvq():
            l0 = self.lab("noq"); l = self.lab("pollPN"); d = self.lab("gotPN"); lq = self.lab("pollPQ"); dq = self.lab("gotPQ")
            A(f"  s_cmp_lg_u32 s{sHW}, 0\n  s_cbranch_scc1 {l0}")
            A(f"  s_load_dword s44, {sp(sDBG)}, 0x80\n  s_waitcnt lgkmcnt(0)\n{l}:\n  s_cmp_lg_u32 s44, 0\n  s_cbranch_scc1 {d}")
            self.guard()
            A(f"  s_load_dword s44, {sp(sDBG)}, 0x80 glc\n  s_waitcnt lgkmcnt(0)\n  s_branch {l}\n{d}:")
            A(f"  v_mov_b32 v26, s44\n  ds_write_b32 v{vZ}, v26 offset:{F_N}")
            A(f"  s_lshl_b32 s60, s2, 9\n  s_add_u32 s60, s60, {WS_QIN}\n  v_lshl_add_u32 v7, v{vLANE}, 3, s60\n  s_add_u32 s61, s60, 4")
            A(f"{lq}:\n  s_load_dword s60, {sp(sWS)}, s61 glc\n  s_waitcnt lgkmcnt(0)\n  s_cmp_eq_u32 s60, s44\n  s_cbranch_scc0 {lq}_r")
            A(f"  global_load_dwordx2 v[8:9], v7, {sp(sWS)} sc1\n  s_waitcnt vmcnt(0)\n  v_cmp_ne_u32 vcc, s44, v9\n  s_cbranch_vccz {dq}")
            A(f"{lq}_r:")
            self.guard()
            A(f"  s_sleep {c['q_sleep']}\n  s_branch {lq}\n{dq}:")
            A(f"  v_lshlrev_b32 v7, 2, v{vLANE}\n  ds_write_b32 v7, v8 offset:{L_QB}")
            self.lds_inc(F_Q2)
            self.stamp(5)
            self.dumpv(8, 1, 0x80000, 2, 256)
            A(f"{l0}:")
        self.wload32(SRDA, steps, c["HDP"], frac=c["HDPf"], hooks={c["PQ"]: recvq})
        self.lds_spin(F_Q2, 1, 7, sleep=4)
        A(f"  ds_read_b32 v7, v{vZ} offset:{F_N}\n  s_waitcnt lgkmcnt(0)\n  v_readfirstlane_b32 s44, v7")
        A("L_wo:")
        A(f"  s_cmp_lg_u32 s{sHW}, 1\n  s_cbranch_scc1 L_wodone")
        self.get_flag(7, 136, 45, expect="s44")
        self.lds_inc(F_C)
        A("L_wodone:")
        if c["pref2"] and "T" not in c["xskip"]:
            self.prefetch(wait=True)
        self.lds_spin(F_C, 1, 7, sleep=4)
        A(f"  v_lshlrev_b32 v28, 3, v{vLANE}")
        A(f"  s_lshl_b32 s60, s{sHW}, 8\n  v_lshl_add_u32 v29, v{vLANE}, 2, s60\n  v_lshl_add_u32 v30, v{vG}, 4, s60")
        A(f"  v_lshrrev_b32 v31, 2, v{vLANE}\n  v_and_b32 v32, 3, v{vLANE}\n  v_lshl_add_u32 v31, v32, 4, v31\n  v_lshlrev_b32 v31, 2, v31")
        A(f"  s_lshl_b32 s61, s{sB}, 12\n  s_add_u32 s61, s61, {WS_ACC}\n  v_add_u32 v32, s61, v29")
        A(f"  s_mul_i32 s60, s{sB}, {64*128}\n  s_add_u32 s60, s60, {WS_HINT}\n  v_lshl_add_u32 v36, v{vLANE}, 7, s60")
        A(f"  v_mov_b32 v37, s44")
        A(f"  v_mov_b32 v33, 1.0\n  v_mov_b32 v34, 1.0\n  v_mov_b32 v35, 1.0\n  v_mov_b32_dpp v35, v{vZ} quad_perm:[0,1,2,3] row_mask:0x4 bank_mask:0xf")
        self.stamp(6)
        if "T" in c["xskip"]: A("  s_branch L_exit")
        l = self.lab("nohint")
        A(f"  s_cmp_lg_u32 s{sHW}, 2\n  s_cbranch_scc1 {l}")
        self.lds_spin(F_P, 8, 7, sleep=1)
        A(f"  s_add_u32 s42, s61, 3072\n  s_mov_b32 s65, 1\n  s_atomic_add s65, {sp(sWS)}, s42 glc\n  s_waitcnt lgkmcnt(0)\n  s_cmp_lg_u32 s65, 31\n  s_cbranch_scc1 {l}")
        A(f"  s_mov_b32 exec_hi, 0x7ff\n  global_store_dword v36, v37, {sp(sWS)} sc1"); self.execall()
        A(f"{l}:")
        self.lds_spin(F_O, 8, 7, sleep=1)
        self.stamp(9)
        for part in range(8): A(f"  ds_read_b64 {vp(8+2*part)}, v28 offset:{L_OP + 512*part}")
        A("  s_waitcnt lgkmcnt(4)")
        A("  v_add_f32 v8, v8, v10\n  v_add_f32 v9, v9, v11\n  v_add_f32 v12, v12, v14\n  v_add_f32 v13, v13, v15\n  v_add_f32 v8, v8, v12\n  v_add_f32 v9, v9, v13")
        A("  s_waitcnt lgkmcnt(0)")
        A("  v_add_f32 v16, v16, v18\n  v_add_f32 v17, v17, v19\n  v_add_f32 v20, v20, v22\n  v_add_f32 v21, v21, v23\n  v_add_f32 v16, v16, v20\n  v_add_f32 v17, v17, v21")
        A(f"  v_add_f32 v8, v8, v16\n  v_add_f32 v9, v9, v17\n  v_cvt_pk_bf16_f32 v7, v8, v9\n  ds_write_b32 v29, v7 offset:{L_OB}")
        for m in range(4): A(f"  ds_read_b128 {vq(8+4*m)}, v30 offset:{L_OB + 64*m}")
        A("  s_waitcnt lgkmcnt(0)")
        self.stamp(10)
        res = self.gemv32()
        self.stamp(11)
        for k in range(3):
            for g in range(3):
                if 3 * k + g < 8:
                    A(f"  v_mov_b32_dpp v{33+k}, v{res[3*k+g]} quad_perm:[0,1,2,3] row_mask:{1<<g:#x} bank_mask:0xf")
        for k in range(3): A(f"  ds_bpermute_b32 v{33+k}, v31, v{33+k}")
        for k in range(3):
            A(f"  s_waitcnt lgkmcnt({2-k})\n  global_atomic_add_f32 v32, v{33+k}, {sp(sWS)} offset:{1024*k}")
        self.lds_inc(F_A)
        self.stamp(7)
        if c["dump"]:
            l = self.lab("nodumpo")
            A(f"  s_cmp_lg_u32 s{sHW}, 3\n  s_cbranch_scc1 {l}")
            self.dumpv(7, 1, 0x90000, 2, 256)
            A(f"{l}:")
        A(f"  s_cmp_ge_u32 s{sHW}, 2\n  s_cbranch_scc1 L_exit\n  s_cmp_eq_u32 s{sFFN}, 0\n  s_cbranch_scc1 L_exit")
        A(f"  s_lshl_b32 s41, s{sJ}, 1\n  s_add_u32 s41, s41, s{sHW}")
        A(f"  s_mul_i32 s60, s41, 6144\n  s_add_u32 s60, s60, {WS_MOD + 2048}\n  v_add_u32 v8, s60, v{vL16}")
        A(f"  s_lshl_b32 s60, s41, 8\n  s_add_u32 s60, s60, {WS_MARK + 64}\n  v_lshrrev_b32 v9, 3, v{vLANE}\n  v_lshl_add_u32 v9, v9, 2, s60")
        def rowloads(fl):
            for i in range(4): A(f"  global_load_dwordx4 {vq(76+4*i if i < 3 else 132)}, v8, {sp(sWS)} offset:{1024*i}{fl}")
            for i in range(4): A(f"  global_load_dword v{12+i}, v9, {sp(sWS)} offset:{32*i}{fl}")
        rowloads("")
        A(f"  s_lshl_b32 s60, s41, 10\n  v_add_u32 v4, s60, v{vL16}\n  global_load_dwordx4 {vq(72)}, v4, {sp(sX)}")
        A(f"  s_lshl_b32 s41, s{sJ}, 1\n  s_add_u32 s41, s41, s{sHW}\n  s_lshl_b32 s41, s41, 12\n  s_add_u32 s41, s41, {WS_ACC}\n  v_add_u32 v5, s41, v{vL16}\n  v_mov_b32 v6, s41")
        A(f"  s_lshl_b32 s60, s{sHW}, 10\n  v_add_u32 v4, s60, v{vL16}")
        lr = self.lab("chkR"); dr = self.lab("gotR")
        A(f"{lr}:\n  s_waitcnt vmcnt(0)")
        self.check_lines([76, 80, 84, 132], [12, 13, 14, 15], 16)
        A(f"  s_cbranch_vccz {dr}")
        self.guard()
        rowloads(" sc1")
        A(f"  s_branch {lr}\n{dr}:")
        A(f"  ds_write_b128 v4, {vq(132)} offset:{L_MODR}")
        self.unpack8(72, 88); self.unpack8(76, 96); self.unpack8(80, 104); self.unpack8(84, 112)
        for i in range(8): A(f"  v_add_f32 v{112+i}, 1.0, v{112+i}")
        self.rnd8(112, 72)
        lp = self.lab("pollH"); ld = self.lab("gotH")
        A(f"  s_lshl_b32 s45, s{sJ}, 1\n  s_add_u32 s45, s45, s{sHW}\n  s_lshl_b32 s45, s45, 6\n  s_add_u32 s45, s45, s{sSL}\n  s_lshl_b32 s45, s45, 7\n  s_add_u32 s45, s45, {WS_HINT}")
        A(f"{lp}:\n  s_load_dword s60, {sp(sWS)}, s45 glc\n  s_waitcnt lgkmcnt(0)\n  s_cmp_eq_u32 s60, s44\n  s_cbranch_scc1 {ld}")
        self.guard()
        if c["hint_sleep"]: A(f"  s_sleep {c['hint_sleep']}")
        A(f"  s_branch {lp}\n{ld}:")
        self.stamp(1)
        lp = self.lab("pollF"); ld = self.lab("gotF")
        for k in range(3): A(f"  global_load_dwordx4 {vq(120+4*k)}, v5, {sp(sWS)} offset:{1024*k} sc1")
        self.lds_inc(F_R)
        A(f"{lp}:")
        A("  s_waitcnt vmcnt(0)\n  v_min3_f32 v7, v123, v127, v131\n  v_cmp_neq_f32 vcc, 0x42000000, v7")
        A(f"  s_cbranch_vccz {ld}")
        self.guard()
        for k in range(3): A(f"  global_load_dwordx4 {vq(120+4*k)}, v5, {sp(sWS)} offset:{1024*k} sc1")
        A(f"  s_branch {lp}\n{ld}:")
        self.stamp(2)
        src = [120, 121, 122, 124, 125, 126, 128, 129]
        for i in range(4): A(f"  v_cvt_pk_bf16_f32 v{16+i}, v{src[2*i]}, v{src[2*i+1]}")
        self.unpack8(16, 8)
        for i in range(8): A(f"  v_mul_f32 v{8+i}, v{96+i}, v{8+i}")
        self.rnd8(8, 16)
        for i in range(8): A(f"  v_add_f32 v{8+i}, v{88+i}, v{8+i}")
        for i in range(4): A(f"  v_cvt_pk_bf16_f32 v{28+i}, v{8+2*i}, v{9+2*i}")
        self.unpack8(28, 8)
        A(f"  ds_write_b128 v4, {vq(28)} offset:{L_X1}")
        self.layernorm(8, 16, 24)
        for i in range(8): A(f"  v_mul_f32 v{8+i}, v{8+i}, v{112+i}")
        self.rnd8(8, 16)
        for i in range(8): A(f"  v_add_f32 v{8+i}, v{8+i}, v{104+i}")
        for i in range(4): A(f"  v_cvt_pk_bf16_f32 v{24+i}, v{8+2*i}, v{9+2*i}")
        A(f"  ds_write_b128 v4, {vq(24)} offset:{L_H2}\n  s_waitcnt lgkmcnt(0)")
        self.stamp(3)
        A("  s_barrier")
        if c["dump"]:
            A(f"  s_lshl_b32 s69, s2, 1\n  s_add_u32 s69, s69, s{sHW}")
            self.dumpv(24, 4, 0x600000, 69, 1024)
        A(f"  s_cmp_eq_u32 s{sHW}, 0\n  s_cbranch_scc1 L_reducer")
        A(f"  s_cmp_ge_u32 s{sSL}, 32\n  s_cbranch_scc1 L_exit")
        A(f"  s_lshr_b32 s60, s{sSL}, 2\n  s_lshl_b32 s60, s60, 7\n  s_and_b32 s61, s{sSL}, 3\n  s_lshl_b32 s61, s61, 1\n  s_add_u32 s60, s60, s61\n  v_lshl_add_u32 v4, v{vJ}, 3, s60")
        A(f"  v_and_b32 v5, 1, v{vG}\n  v_lshl_add_u32 v6, v5, 10, v4")
        A(f"  ds_read_u16 v40, v6 offset:{L_X1}\n  ds_read_u16 v41, v6 offset:{L_MODR}")
        A(f"  s_lshl_b32 s60, s{sJ}, 11\n  v_add_u32 v6, s60, v6")
        A(f"  s_lshl_b32 s60, s{sJ}, 5\n  s_add_u32 s60, s60, s{sSL}\n  s_mul_i32 s60, s60, {INB}\n  s_add_u32 s60, s60, {WS_INBOX + 4096}\n  v_add_u32 v5, s60, v{vL16}\n  v_add_u32 v7, 4096, v5")
        A(f"  s_xor_b32 s45, s44, {TAGX:#x}\n  v_mov_b32 v84, 0\n  v_mov_b32 v85, 0\n  v_mov_b32 v86, s44\n  v_mov_b32 v87, s45")
        A("  s_waitcnt lgkmcnt(0)\n  v_lshlrev_b32 v40, 16, v40\n  v_lshlrev_b32 v41, 16, v41")
        A("  s_barrier\n  s_barrier")
        if c["inbox_sleep"]: A(f"  s_sleep {c['inbox_sleep']}")
        lp = self.lab("pollI"); ld = self.lab("gotI")
        A(f"{lp}:")
        for i in range(10): A(f"  global_load_dwordx4 {vq(44+4*i)}, v{5 if i < 8 else 7}, {sp(sWS)} offset:{1024*i - (4096 if i < 8 else 8192)} sc1")
        A(f"  s_mov_b32 exec_hi, 0xffff\n  global_load_dwordx4 {vq(84)}, v7, {sp(sWS)} offset:2048 sc1"); self.execall()
        for i in range(11):
            q = 44 + 4 * i
            A(f"  s_waitcnt vmcnt({10-i})")
            if i == 0:
                A(f"  v_xor_b32 v10, s44, v{q+2}\n  v_xor_b32 v11, s45, v{q+3}\n  v_mov_b32 v8, v{q}\n  v_mov_b32 v9, v{q+1}")
            else:
                A(f"  v_bitop3_b32 v10, v10, v{q+2}, s44 bitop3:0xf6\n  v_bitop3_b32 v11, v11, v{q+3}, s45 bitop3:0xf6\n  v_add_f32 v8, v8, v{q}\n  v_add_f32 v9, v9, v{q+1}")
        A(f"  v_or_b32 v10, v10, v11\n  v_cmp_ne_u32 vcc, 0, v10\n  s_cbranch_vccz {ld}")
        self.guard()
        A(f"  s_branch {lp}\n{ld}:")
        self.stamp(4)
        A("  v_permlane16_swap_b32 v8, v9\n  v_add_f32 v8, v8, v9\n  v_mov_b32 v9, v8\n  v_permlane32_swap_b32 v9, v8\n  v_add_f32 v8, v8, v9")
        self.rnd1(8, 9)
        A("  v_mul_f32 v8, v41, v8"); self.rnd1(8, 9)
        A("  v_add_f32 v8, v40, v8\n  v_cvt_pk_bf16_f32 v8, v8, v8")
        A("  s_mov_b32 exec_hi, 0")
        A(f"  global_store_short v6, v8, {sp(sOUT)} sc1")
        self.execall()
        self.stamp(5)
        A("  s_branch L_exit")
        A("L_reducer:")
        A(f"  v_lshlrev_b32 v4, 2, v{vLANE}\n  v_add_u32 v4, {L_GUP}, v4")
        A(f"  v_and_b32 v5, 1, v{vLANE}\n  v_lshlrev_b32 v5, 6, v5\n  v_and_b32 v6, 62, v{vLANE}\n  v_add_u32 v5, v5, v6")
        A("  s_barrier")
        for w in range(8): A(f"  ds_read2st64_b32 {vp(8+2*w)}, v4 offset0:{2*w} offset1:{2*w+1}")
        A("  s_waitcnt lgkmcnt(4)")
        A("  v_add_f32 v8, v8, v10\n  v_add_f32 v9, v9, v11\n  v_add_f32 v12, v12, v14\n  v_add_f32 v13, v13, v15\n  v_add_f32 v8, v8, v12\n  v_add_f32 v9, v9, v13")
        A("  s_waitcnt lgkmcnt(0)")
        A("  v_add_f32 v16, v16, v18\n  v_add_f32 v17, v17, v19\n  v_add_f32 v20, v20, v22\n  v_add_f32 v21, v21, v23\n  v_add_f32 v16, v16, v20\n  v_add_f32 v17, v17, v21")
        A("  v_add_f32 v8, v8, v16\n  v_add_f32 v9, v9, v17")
        self.rnd2(8, 9, 10)
        A(f"  v_mul_f32 v8, s{sLOG2E}, v8\n  v_exp_f32 v8, -v8\n  v_add_f32 v8, 1.0, v8\n  v_rcp_f32 v8, v8")
        self.rnd1(8, 10)
        A(f"  v_mul_f32 v8, v8, v9\n  v_cvt_pk_bf16_f32 v8, v8, v8\n  ds_write_b16 v5, v8 offset:{L_HH}\n  s_waitcnt lgkmcnt(0)")
        A("  s_barrier")
        self.stamp(4)
        self.dumpv(8, 1, 0xE0000, 2, 256)
        A("  s_branch L_exit")

    def build(self):
        A = self.A; c = self.c
        A(f"{KNAME}:")
        if c["stamps"]:
            for k in range(1, 16): A(f"  s_mov_b64 s[{70+2*k}:{71+2*k}], 0")
        self.stamp(0)
        A("  s_cmp_ge_u32 s2, 256\n  s_cbranch_scc1 L_end")
        A("  s_load_dwordx16 s[4:19], s[0:1], 0\n  s_load_dwordx8 s[20:27], s[0:1], 64\n  s_load_dwordx4 s[28:31], s[0:1], 96")
        A(f"  v_lshrrev_b32 v2, 6, v0\n  v_and_b32 v0, 63, v0\n  v_readfirstlane_b32 s{sWAVE}, v2")
        A(f"  v_lshlrev_b32 v{vL16}, 4, v0")
        if c["pref"]: self.prefetch()
        A(f"  s_and_b32 s{sXCD}, s2, 7\n  s_lshr_b32 s{sIDX}, s2, 3\n  s_lshr_b32 s{sB}, s{sIDX}, 2\n  s_and_b32 s{sJ}, s{sIDX}, 3")
        A(f"  s_lshl_b32 s{sH}, s{sXCD}, 2\n  s_add_u32 s{sH}, s{sH}, s{sJ}")
        A(f"  v_lshrrev_b32 v{vG}, 4, v0\n  v_and_b32 v{vJ}, 15, v0\n  v_mov_b32 v{vZ}, 0\n  v_mov_b32 v{vONE}, 1")
        A(f"  s_lshr_b32 s61, s{sXCD}, 1\n  s_mul_i32 s{sSL}, s{sXCD}, 5\n  s_add_u32 s{sSL}, s{sSL}, s61\n  s_add_u32 s{sSL}, s{sSL}, s{sB}\n  s_sub_u32 s{sSL}, s{sSL}, 1")
        A(f"  s_and_b32 s60, s{sXCD}, 1\n  s_add_u32 s65, s60, 5\n  s_cmp_lt_u32 s{sB}, s65\n  s_cselect_b32 s{sFFN}, 1, 0\n  s_cmp_lt_u32 s{sSL}, 43\n  s_cselect_b32 s{sFFN}, s{sFFN}, 0")
        A(f"  s_sub_u32 s57, 31, s{sIDX}\n  s_lshl_b32 s57, s57, 2\n  s_add_u32 s57, s57, s61\n  s_lshl_b32 s60, s60, 8\n  s_add_u32 s57, s57, s60")
        if "M" in c["xskip"]: A("  s_cmp_lt_u32 s57, 48\n  s_cselect_b32 s57, 100, s57")
        if "F" in c["xskip"]: A("  s_cmp_ge_u32 s57, 256\n  s_cselect_b32 s57, 100, s57")
        A(f"  s_mov_b32 s{sGUARD}, 0\n  s_mov_b32 s{sPLO}, 0x05040100\n  s_mov_b32 s{sPHI}, 0x07060302\n  s_mov_b32 s{sLOG2E}, {LOG2E:#x}")
        A(f"  s_cmp_ge_u32 s{sWAVE}, 8\n  s_cbranch_scc1 L_helper")
        A(f"  s_lshl_b32 s60, s{sB}, 5\n  s_add_u32 s60, s60, s{sH}\n  s_lshl_b32 s60, s60, 20\n  s_add_u32 s60, s60, 0xC0000")
        A(f"  s_lshl_b32 s{sOFF}, s{sWAVE}, 12\n  s_mul_i32 s56, s{sWAVE}, {c['NV']*1024}\n  s_add_u32 s56, s56, {L_V}")
        for G in range(1, 8): A(f"  s_add_u32 s{sOFF+G}, s{sOFF}, {G*32768}")
        A(f"  s_mov_b32 s{SRDA+2}, 0x40000\n  s_mov_b32 s{SRDA+3}, 0x20000\n  s_mov_b32 s{SRDB+2}, 0x40000\n  s_mov_b32 s{SRDB+3}, 0x20000")
        A("  s_waitcnt lgkmcnt(0)")
        def mask(fr):
            m = 0; acc = 0.5
            for n in range(64):
                acc += fr
                if acc >= 1.0 - 1e-9: m |= 1 << n; acc -= 1.0
            return m
        D = c["D"]
        m1 = [mask(min(1.0, D - d)) for d in c["depth"]]
        m2 = [mask(max(0.0, D - 1 - d)) for d in c["depth"]]
        for reg, ms in ((58, m1), (14, m2)):
            A(f"  s_bitcmp1_b32 s{sXCD}, 0")
            for half in range(2):
                w = [(m >> (32 * half)) & 0xffffffff for m in ms]
                A(f"  s_mov_b32 s{reg+half}, {w[0]:#x}\n  s_cselect_b32 s{reg+half}, {w[1]:#x}, s{reg+half}")
                A(f"  s_mov_b32 s{68+half}, {w[2]:#x}\n  s_cselect_b32 s{68+half}, {w[3]:#x}, s{68+half}")
            A(f"  s_cmp_lt_u32 s57, 48\n  s_cselect_b64 s[{reg}:{reg+1}], s[68:69], s[{reg}:{reg+1}]")
        A("  s_waitcnt lgkmcnt(0)")
        A(f"  s_add_u32 s{SRDA}, s{sK}, s60\n  s_addc_u32 s{SRDA+1}, s{sK+1}, 0\n  s_add_u32 s{SRDB}, s{sV}, s60\n  s_addc_u32 s{SRDB+1}, s{sV+1}, 0")
        if c["Dodd"]:
            A(f"  s_bitcmp1_b32 s{sXCD}, 0\n  s_cbranch_scc1 L_sodd")
        self.streamer(c["D"], "e")
        if c["Dodd"]:
            A("L_sodd:")
            self.streamer(c["Dodd"], "o")
        self.streamer_ffn()
        self.helper()
        A("L_exit:")
        if c["stamps"]:
            A("  s_mov_b64 exec, 1\n  s_waitcnt lgkmcnt(0)")
            A(f"  s_mul_i32 s60, s2, 12\n  s_add_u32 s60, s60, s{sWAVE}\n  s_lshl_b32 s60, s60, 7\n  s_add_u32 s60, s60, {WS_STAMP}\n  v_mov_b32 v4, s60")
            for k in range(16):
                A(f"  v_mov_b32 v6, s{70+2*k}\n  v_mov_b32 v7, s{71+2*k}\n  global_store_dwordx2 v4, v[6:7], {sp(sWS)} offset:{8*k}")
        A("L_end:\n  s_endpgm")
        body = fix_hazards(self.L)
        nk = c["prefkib"]
        out = HEADER + f"; @launch grid=(256,1,1) block=(768,1,1) lds={L_V + 8192*c['NV']}\n"
        out += '.amdgcn_target "amdgcn-amd-amdhsa--gfx950"\n.text\n'
        out += f".globl {KNAME}\n.p2align 8\n.type {KNAME},@function\n" + body
        out += f"  .fill 64, 4, 0xbf800000\nL_codeend:\n.if (L_codeend - {KNAME}) < {nk*1024}\n.fill ({nk*1024} - (L_codeend - {KNAME}))/4, 4, 0xbf800000\n.endif\n"
        out += f""".section .rodata,"a"
.p2align 6
.amdhsa_kernel {KNAME}
  .amdhsa_next_free_vgpr 168
  .amdhsa_next_free_sgpr 102
  .amdhsa_accum_offset 168
  .amdhsa_group_segment_fixed_size 0
  .amdhsa_kernarg_size 112
  .amdhsa_user_sgpr_count 2
  .amdhsa_user_sgpr_kernarg_segment_ptr 1
  .amdhsa_system_sgpr_workgroup_id_x 1
  .amdhsa_float_denorm_mode_32 3
.end_amdhsa_kernel
"""
        return out

def gen(**cfg): return Gen(**cfg).build()

if __name__ == "__main__":
    import json
    cfg = json.loads(sys.argv[2]) if len(sys.argv) > 2 else {}
    open(sys.argv[1], "w").write(gen(**cfg))
```

```python
import sys, struct
from asmlib import fix_hazards

KNAME = "adaLN_cond__sliding_block_cached__glu_gated_glu__decode_kernel"

HEADER = """; Kernarg layout for this problem (112 bytes, ptrs only, base s[0:1]):
;   offset  32: d_in[4] A_wo  shape=(4096, 512) dtype=bfloat16
;   offset  80: d_in[10] w_mod  shape=(512, 3072) dtype=bfloat16
;   offset 104: d_ws      workspace
; One workgroup per (batch, head): 8 streamer waves (K/V -> registers, QK, softmax, PV, then the GLU slice)
; and 4 helper waves (adaLN modulation, q projection, output projection, cross-workgroup hand-offs).
"""

WS_MOD, WS_STAT, WS_MARK, WS_ACC, WS_QTAG, WS_HINT, WS_INBOX, WS_QIN, WS_DUMP, WS_STAMP = 0x0, 0xC000, 0xD000, 0x10000, 0x18000, 0x20000, 0x40000, 0x1C0000, 0x200000, 0x20000000
F_H, F_Q, F_Q2, F_ST, F_O, F_MOD, F_MOD2, F_C, F_P, F_W, F_K, F_A, F_R, F_N = 0, 4, 8, 12, 16, 20, 24, 28, 32, 36, 40, 44, 48, 52
L_STATS, L_QB, L_OP, L_OB, L_HBUF, L_QP = 0x40, 0x100, 0x200, 0x1200, 0x1600, 0x2600
L_MODR, L_H2, L_X1, L_GUP, L_HH, L_MODP = 0x2200, 0x4A00, 0x5200, 0x5A00, 0x6A00, 0x7000
L_V = 0x7000
L_ROWS = 0x1600

def f2u(x): return struct.unpack("<I", struct.pack("<f", x))[0]
INB = 11264
TAGX = 0x5bd1e995
LOG2E = f2u(1.4426950408889634)
SCALE = f2u(128 ** -0.5)

sX, sK, sV, sWQ, sWO, sG, sU, sDN, sC, sWM, sOUT, sDBG, sWS = 4, 6, 8, 10, 12, 16, 18, 20, 22, 24, 26, 28, 30
sWAVE, sXCD, sIDX, sB, sJ, sH, sSL, sFFN = 32, 33, 34, 35, 36, 37, 38, 39
sOFF = 40
SRDA, SRDB = 48, 52
sPLO, sPHI, sGUARD, sLOG2E = 62, 63, 64, 66
sHW = 67
vLANE, vL16, vG, vJ, vZ, vONE = 0, 1, 2, 3, 38, 39

def sp(r): return f"s[{r}:{r+1}]"
def sq(r): return f"s[{r}:{r+3}]"
def vp(r): return f"v[{r}:{r+1}]"
def vq(r): return f"v[{r}:{r+3}]"

class Gen:
    def __init__(self, **cfg):
        self.c = dict(D=4, HD=4, HD0=6, HDO=4, P0=24, stamps=False, dump=False, guard=400000, pref=True,
                      inbox_sleep=6, hint_sleep=2, Dodd=None, pref2=False, prefwg=16, prefkib=26, hint_at=28, poll_sleep=8, NV=16, depth=[3, 3, 3.5, 3.5], FD=4, NF0=0, HDOf=4, H0D=4, H0D1=2, prio=2, nowo=False, wo_at=None, abl=None, init_mode='full', ablD=7, H0DQ=18, H0pre=True, fillD=4, nofill=False, q_sleep0=8, q_sleep=8, a_sleep=16, xskip=[], plainA=True, down_late=False, wofl='', tlb=0, modlag=2, HDf=4, ffnfl='', HDP=2, HDPf=1.75, PQ=20, kfl=' nt', vfl=' nt', hmap=0, wqpat=32, full_sleep=0, hint_lag=3, PB=2, fmode='flood', PR=8, wqpf=3, wqpfD=16, wqfl='', wqx=0, sprint=64, gate=False, oadd=False, fast0=True, read_delay=16)
        self.c.update(cfg)
        self.L = []
        self.nlab = 0

    def A(self, s): self.L.append(s)
    def lab(self, base):
        self.nlab += 1
        return f"L_{base}_{self.nlab}"
    def stamp(self, k):
        if self.c["stamps"]: self.A(f"  s_memrealtime s[{70+2*k}:{71+2*k}]")
    def cstamp(self, k):
        if self.c["stamps"]:
            self.A(f"  s_waitcnt lgkmcnt(0)\n  s_mul_i32 s{70+2*k}, s{sGUARD}, 100\n  s_add_u32 s{70+2*k}, s{70+2*k}, s70\n  s_addc_u32 s{71+2*k}, s71, 0")
    def guard(self):
        if self.c["guard"]:
            self.A(f"  s_add_u32 s{sGUARD}, s{sGUARD}, 1\n  s_cmp_gt_u32 s{sGUARD}, {self.c['guard']}\n  s_cbranch_scc1 L_exit")
    def exec1(self): self.A("  s_mov_b64 exec, 1")
    def execall(self): self.A("  s_mov_b64 exec, -1")

    def lds_spin(self, off, target, tmp, sleep=1):
        l = self.lab("spin"); d = self.lab("spun")
        self.A(f"{l}:")
        self.A(f"  ds_read_b32 v{tmp}, v{vZ} offset:{off}\n  s_waitcnt lgkmcnt(0)\n  v_readfirstlane_b32 s60, v{tmp}")
        self.A(f"  s_cmp_ge_u32 s60, {target}\n  s_cbranch_scc1 {d}")
        self.guard()
        if sleep: self.A(f"  s_sleep {sleep}")
        self.A(f"  s_branch {l}\n{d}:")

    def lds_inc(self, off):
        self.exec1(); self.A(f"  ds_add_u32 v{vZ}, v{vONE} offset:{off}"); self.execall()

    def dumpv(self, reg, n, base, sidx=None, stride=0, tmp=36):
        if not self.c["dump"]: return
        A = self.A
        if sidx is not None:
            A(f"  s_mul_i32 s68, s{sidx}, {stride}\n  s_add_u32 s68, s68, {WS_DUMP + base}")
        else:
            A(f"  s_mov_b32 s68, {WS_DUMP + base}")
        A(f"  v_lshlrev_b32 v{tmp}, {dict([(1,2),(2,3),(4,4)])[n]}, v{vLANE}\n  v_add_u32 v{tmp}, s68, v{tmp}")
        op = {1: "dword", 2: "dwordx2", 4: "dwordx4"}[n]
        r = f"v{reg}" if n == 1 else f"v[{reg}:{reg+n-1}]"
        A(f"  global_store_{op} v{tmp}, {r}, {sp(sWS)}\n  s_waitcnt vmcnt(0)")

    def prefetch(self, wait=False):
        A = self.A
        l = self.lab("nopref"); lp = self.lab("pref"); pc = self.lab("pc")
        A(f"  s_cmp_lg_u32 s{sWAVE}, 10\n  s_cbranch_scc1 {l}\n  s_cmp_ge_u32 s2, {self.c['prefwg']}\n  s_cbranch_scc1 {l}")
        A(f"  s_getpc_b64 s[60:61]\n{pc}:\n  s_sub_u32 s60, s60, {pc}-{KNAME}\n  s_subb_u32 s61, s61, 0\n  v_mov_b32 v36, v{vL16}\n  s_mov_b32 s65, {self.c['prefkib']}")
        A(f"{lp}:\n  global_load_dword v35, v36, s[60:61]\n  v_add_u32 v36, 1024, v36\n  s_sub_u32 s65, s65, 1\n  s_cmp_lg_u32 s65, 0\n  s_cbranch_scc1 {lp}")
        if wait: A("  s_waitcnt vmcnt(0)")
        A(f"{l}:")

    def rnd1(self, x, t):
        self.A(f"  v_cvt_pk_bf16_f32 v{t}, v{x}, v{x}\n  v_and_b32 v{x}, 0xffff0000, v{t}")
    def rnd2(self, x, y, t):
        self.A(f"  v_cvt_pk_bf16_f32 v{t}, v{x}, v{y}\n  v_lshlrev_b32 v{x}, 16, v{t}\n  v_and_b32 v{y}, 0xffff0000, v{t}")
    def rnd8(self, X, T):
        for i in range(4): self.A(f"  v_cvt_pk_bf16_f32 v{T+i}, v{X+2*i}, v{X+2*i+1}")
        self.unpack8(T, X)
    def unpack8(self, src, dst):
        for i in range(4):
            self.A(f"  v_lshlrev_b32 v{dst+2*i}, 16, v{src+i}\n  v_and_b32 v{dst+2*i+1}, 0xffff0000, v{src+i}")
    def wave_reduce(self, op, regs, full=True):
        steps = []
        if full: steps += ["quad_perm:[1,0,3,2] row_mask:0xf bank_mask:0xf", "quad_perm:[2,3,0,1] row_mask:0xf bank_mask:0xf"]
        steps += ["row_ror:4 row_mask:0xf bank_mask:0xf", "row_ror:8 row_mask:0xf bank_mask:0xf",
                  "row_bcast:15 row_mask:0xa bank_mask:0xf", "row_bcast:31 row_mask:0xc bank_mask:0xf"]
        for s in steps:
            for r in regs: self.A(f"  {op}_dpp v{r}, v{r}, v{r} {s}")

    def layernorm(self, X, T, S):
        A = self.A
        A(f"  v_readfirstlane_b32 s60, v{X}")
        for i in range(8): A(f"  v_subrev_f32 v{T+i}, s60, v{X+i}")
        A(f"  v_add_f32 v{S}, v{T}, v{T+1}\n  v_mul_f32 v{S+1}, v{T}, v{T}")
        A(f"  v_fmac_f32 v{S+1}, v{T+1}, v{T+1}")
        for i in range(2, 8): A(f"  v_add_f32 v{S}, v{S}, v{T+i}\n  v_fmac_f32 v{S+1}, v{T+i}, v{T+i}")
        self.wave_reduce("v_add_f32", [S, S + 1])
        A(f"  v_readlane_b32 s61, v{S}, 63\n  v_readlane_b32 s65, v{S+1}, 63")
        inv = f2u(1.0 / 512)
        A(f"  v_mov_b32 v{S+2}, {inv:#x}")
        A(f"  v_mul_f32 v{S}, s61, v{S+2}\n  v_mul_f32 v{S+1}, s65, v{S+2}")
        A(f"  v_fma_f32 v{S+1}, -v{S}, v{S}, v{S+1}\n  v_add_f32 v{S}, s60, v{S}\n  v_max_f32 v{S+1}, 0, v{S+1}")
        self.rnd2(S, S + 1, S + 2)
        A(f"  v_add_f32 v{S+1}, {f2u(1e-5):#x}, v{S+1}")
        for i in range(8): A(f"  v_sub_f32 v{X+i}, v{X+i}, v{S}")
        self.rnd1(S + 1, S + 2)
        A(f"  v_sqrt_f32 v{S+1}, v{S+1}")
        self.rnd8(X, T)
        self.rnd1(S + 1, S + 2)
        A(f"  v_rcp_f32 v{S+2}, v{S+1}")
        A(f"  v_fma_f32 v{S+3}, -v{S+1}, v{S+2}, 1.0\n  v_fmac_f32 v{S+2}, v{S+3}, v{S+2}")
        for i in range(8): A(f"  v_mul_f32 v{T+i}, v{X+i}, v{S+2}")
        for i in range(8): A(f"  v_fma_f32 v{X+i}, -v{T+i}, v{S+1}, v{X+i}")
        for i in range(8): A(f"  v_fma_f32 v{X+i}, v{X+i}, v{S+2}, v{T+i}")
        self.rnd8(X, T)

    def transpose_block(self, B, t0, t1):
        A = self.A
        R = lambda e, t: B + 4 * e + t
        lo = lambda d, a, b: A(f"  v_perm_b32 v{d}, v{b}, v{a}, s{sPLO}")
        hi = lambda d, a, b: A(f"  v_perm_b32 v{d}, v{b}, v{a}, s{sPHI}")
        for p in range(4):
            a, b = R(2 * p, p), R(2 * p + 1, p)
            lo(t0, a, b); hi(b, a, b); A(f"  v_mov_b32 v{a}, v{t0}")
            for t in range(p + 1, 4):
                a, b, c, d = R(2 * p, t), R(2 * p + 1, t), R(2 * t, p), R(2 * t + 1, p)
                lo(t0, a, b); hi(t1, a, b); lo(a, c, d); hi(b, c, d)
                A(f"  v_mov_b32 v{c}, v{t0}\n  v_mov_b32 v{d}, v{t1}")

    def transpose_x2(self, Rb, Bb):
        for c in range(4):
            for p in range(4):
                a, b = Rb + 2 * (2 * p) + (c >> 1), Rb + 2 * (2 * p + 1) + (c >> 1)
                self.A(f"  v_perm_b32 v{Bb+4*c+p}, v{b}, v{a}, s{sPHI if c & 1 else sPLO}")

    def gemv32(self):
        res = []
        for c in range(8):
            Dc = 24 if c == 0 else 40 + 4 * (c - 1)
            for m in range(4):
                self.A(f"  v_mfma_f32_16x16x32_bf16 {vq(Dc)}, {vq(8+4*m)}, {vq(40+32*m+4*c)}, {'0' if m == 0 else vq(Dc)}")
            res.append(Dc)
        return res

    def wload32(self, srd, steps, D, frac=None, hooks=None, fl=None):
        A = self.A
        done = 0
        for i in range(32):
            dd = D
            if frac is not None and int((i + 1) * (D - frac)) != int(i * (D - frac)): dd = D - 1
            if i >= dd: A(f"  s_waitcnt vmcnt({dd-1})")
            if hooks and i in hooks: hooks[i]()
            A(f"  buffer_load_dwordx4 {vq(40+4*i)}, v4, {sq(srd)}, s40 offen{self.c['wofl'] if fl is None else fl}")
            if i < 31: A(f"  s_add_u32 s40, s40, {steps[i]}")
            landed = i - D + 1 if i >= D else 0
            if landed >= 8 * (done + 1):
                self.transpose_block(40 + 32 * done, 5, 6); done += 1
        while done < 4:
            A(f"  s_waitcnt vmcnt({8*(3-done)})")
            self.transpose_block(40 + 32 * done, 5, 6); done += 1

    def init_duty(self, wave):
        A = self.A
        l2 = self.lab("inited"); l3 = self.lab("noinit")
        A(f"  s_cmp_lg_u32 s{sWAVE}, {wave}\n  s_cbranch_scc1 {l3}")
        mark = len(self.L)
        A("  v_mov_b32 v8, -1\n  v_mov_b32 v9, -1\n  v_mov_b32 v10, -1\n  v_mov_b32 v11, -1")
        A(f"  s_lshl_b32 s60, s2, 12\n  s_add_u32 s60, s60, {WS_QIN}\n  v_add_u32 v5, s60, v{vL16}")
        for i in range(4): A(f"  global_store_dwordx4 v5, {vq(8)}, {sp(sWS)} offset:{1024*i} sc1")
        A(f"  s_cmp_eq_u32 s{sFFN}, 0\n  s_cbranch_scc1 {l2}\n  s_cmp_ge_u32 s{sSL}, 32\n  s_cbranch_scc1 {l2}")
        A(f"  s_lshl_b32 s60, s{sJ}, 5\n  s_add_u32 s60, s60, s{sSL}\n  s_mul_i32 s60, s60, 6144\n  s_add_u32 s60, s60, {WS_INBOX + 2048}\n  v_add_u32 v5, s60, v{vL16}")
        for i in range(6): A(f"  global_store_dwordx4 v5, {vq(8)}, {sp(sWS)} offset:{1024*i - 2048} sc1")
        A(f"  s_cmp_ge_u32 s{sSL}, 8\n  s_cbranch_scc1 {l2}")
        A("  v_mov_b32 v12, 0\n  v_mov_b32 v13, 0\n  v_mov_b32 v14, 0\n  v_mov_b32 v15, 0")
        A(f"  s_lshl_b32 s60, s{sJ}, 3\n  s_add_u32 s60, s60, s{sSL}\n  s_lshl_b32 s60, s60, 10\n  s_add_u32 s60, s60, {WS_ACC}\n  v_add_u32 v5, s60, v{vL16}")
        A(f"  global_store_dwordx4 v5, {vq(12)}, {sp(sWS)} sc1")
        if self.c["init_mode"] == "nostore": self.L[mark:] = []
        A(f"{l2}:\n  s_waitcnt vmcnt(0)")
        if self.c["init_mode"] != "noticket":
            A(f"  s_mov_b32 s65, 1\n  s_atomic_add s65, {sp(sDBG)}, 0x4 glc\n  s_waitcnt lgkmcnt(0)")
            A(f"  s_cmp_lg_u32 s65, 255\n  s_cbranch_scc1 {l3}\n  s_mov_b32 s65, 1\n  s_atomic_add s65, {sp(sDBG)}, 0x84")
        A(f"{l3}:")

    def streamer(self, D, tag):
        A = self.A; c = self.c
        T = lambda n: 40 + 4 * n
        issued = []
        def issue(name, srd, n):
            A(f"  buffer_load_dwordx4 {vq(T(n))}, v{vL16}, {sq(srd)}, s{sOFF + (n >> 2)} offen offset:{1024*(n&3)}{c['kfl']}")
            issued.append(name)
        def pace():
            n = len(issued)
            if n >= D: A(f"  s_waitcnt vmcnt({D-1})")
            if n >= D - 2 and n < 64:
                l = self.lab("pc")
                A(f"  s_bitcmp1_b64 s[58:59], {n}\n  s_cbranch_scc0 {l}\n  s_waitcnt vmcnt({D-2})")
                A(f"  s_bitcmp1_b64 s[14:15], {n}\n  s_cbranch_scc0 {l}\n  s_waitcnt vmcnt({D-3})\n{l}:")
        def waitfor(name):
            A(f"  s_waitcnt vmcnt({len(issued) - 1 - issued.index(name)})")
        lnp = self.lab("noprod"); lj = self.lab("joined")
        NJ = D + c["modlag"]
        A(f"  s_cmp_ge_u32 s57, {48 if (c['abl'] is None or 'mod' in c['abl']) else 0}\n  s_cbranch_scc1 {lnp}")
        self.mod_loads()
        A("  s_barrier")
        self.mod_compute_a()
        A(f"  s_waitcnt vmcnt({c['prio']})")
        E = 2 if c["fast0"] else 0
        for n in range(E, D - 1): issue(f"K{n}", SRDA, n)
        A(f"  s_load_dword s3, {sp(sDBG)}, 0x80")
        A(f"  s_waitcnt vmcnt({D-1-E})")
        self.stamp(9)
        self.mod_compute_b()
        for n in range(D - 1, NJ):
            A(f"  s_waitcnt vmcnt({D-1})"); issue(f"K{n}", SRDA, n)
        self.mod_compute_c()
        self.stamp(14)
        if c["wo_at"] is not None and c["wo_at"] < NJ: self.lds_inc(F_K)
        A(f"  s_branch {lj}\n{lnp}:")
        issued.clear()
        for n in range(32):
            if n == NJ: A(f"{lj}:")
            if n < E: issued.append(f"K{n}")
            else: pace(); issue(f"K{n}", SRDA, n)
            if n == 0 and not E: self.stamp(8)
            if n in (4, 8, 16, 24): self.stamp({4: 10, 8: 11, 16: 12, 24: 13}[n])
            if n == c["wo_at"]: self.lds_inc(F_K)
            if n == D - 3:
                A("  s_barrier")
                self.stamp(9)
            if n == NJ:
                A(f"  v_lshrrev_b32 v12, 1, v{vJ}\n  v_and_b32 v13, 1, v{vJ}\n  v_mov_b32 v14, 0xffff\n  v_lshlrev_b32 v13, 4, v13\n  v_lshlrev_b32 v14, v13, v14")
                for j in range(4):
                    A(f"  v_cmp_eq_u32 vcc, {j}, v12\n  v_cndmask_b32 v{4+j}, 0, v14, vcc")
        NV = c["NV"]
        slot = lambda n: T(32 - NV + n) if n < NV else T(n - NV)
        l = self.lab("nomodchk")
        A(f"  s_cmp_ge_u32 s57, {48 if (c['abl'] is None or 'mod' in c['abl']) else 0}\n  s_cbranch_scc1 {l}")
        self.lds_spin(F_MOD2, 8, 12)
        A(f"{l}:")
        for n in range(NV):
            if n % 4 == 0: A(f"  s_add_u32 m0, s56, {4096 * (n // 4)}")
            pace()
            A(f"  buffer_load_dwordx4 v{vL16}, {sq(SRDB)}, s{sOFF + (n >> 2)} offen offset:{1024*(n&3)}{c['vfl']} lds")
            issued.append(f"V{n}")
        self.stamp(1)
        self.lds_spin(F_Q2, 1, 12)
        self.stamp(2)
        A(f"  v_lshlrev_b32 v12, 4, v{vJ}\n  ds_read_b128 {vq(8)}, v12 offset:{L_QB}\n  s_waitcnt lgkmcnt(0)")
        def qk(G):
            z = 18 + G
            for r in range(4):
                for t in range(4):
                    A(f"  v_dot2_f32_bf16 v{12+t}, v{T(4*G+t)+r}, v{8+r}, {'0' if r == 0 else f'v{12+t}'}")
            A(f"  v_add_f32_dpp v16, v12, v12 row_ror:8 row_mask:0xf bank_mask:0x3")
            A(f"  v_add_f32_dpp v17, v14, v14 row_ror:8 row_mask:0xf bank_mask:0x3")
            A(f"  v_add_f32_dpp v16, v13, v13 row_ror:8 row_mask:0xf bank_mask:0xc")
            A(f"  v_add_f32_dpp v17, v15, v15 row_ror:8 row_mask:0xf bank_mask:0xc")
            A(f"  v_add_f32_dpp v{z}, v16, v16 row_shl:4 row_mask:0xf bank_mask:0x5")
            A(f"  v_add_f32_dpp v{z}, v17, v17 row_shr:4 row_mask:0xf bank_mask:0xa")
            A(f"  v_add_f32_dpp v{z}, v{z}, v{z} quad_perm:[1,0,3,2] row_mask:0xf bank_mask:0xf")
            A(f"  v_add_f32_dpp v{z}, v{z}, v{z} quad_perm:[2,3,0,1] row_mask:0xf bank_mask:0xf")
        nv = NV
        def nextv():
            nonlocal nv
            pace()
            A(f"  buffer_load_dwordx4 {vq(slot(nv))}, v{vL16}, {sq(SRDB)}, s{sOFF + (nv >> 2)} offen offset:{1024*(nv&3)}{c['vfl']}")
            issued.append(f"V{nv}"); nv += 1
        qk(0)
        groups = list(range(1, 7))
        per = -(-len(groups) // D)
        for i in range(D):
            nextv()
            for G in groups[i * per:(i + 1) * per]: qk(G)
        qk(7)
        if NV:
            A(f"  v_add_u32 v34, s56, v{vL16}")
            for n in range(NV): A(f"  ds_read_b128 {vq(slot(n))}, v34 offset:{1024*n}")
        A(f"  s_mov_b32 s60, {SCALE:#x}")
        for i in range(4): self.rnd2(18 + 2 * i, 19 + 2 * i, 12 + i)
        for i in range(8): A(f"  v_mul_f32 v{18+i}, s60, v{18+i}")
        for i in range(4): self.rnd2(18 + 2 * i, 19 + 2 * i, 12 + i)
        A("  v_max3_f32 v12, v18, v19, v20\n  v_max3_f32 v13, v21, v22, v23\n  v_max3_f32 v12, v12, v24, v25\n  v_max_f32 v12, v12, v13")
        self.wave_reduce("v_max_f32", [12], full=False)
        A("  v_readlane_b32 s61, v12, 63")
        for i in range(8): A(f"  v_subrev_f32 v{26+i}, s61, v{18+i}")
        for i in range(8): A(f"  v_mul_f32 v{26+i}, s{sLOG2E}, v{26+i}")
        for i in range(8): A(f"  v_exp_f32 v{26+i}, v{26+i}")
        A("  v_add_f32 v13, v26, v27\n  v_add_f32 v14, v28, v29\n  v_add_f32 v15, v30, v31\n  v_add_f32 v16, v32, v33")
        A("  v_add_f32 v13, v13, v14\n  v_add_f32 v15, v15, v16\n  v_add_f32 v13, v13, v15")
        self.wave_reduce("v_add_f32", [13], full=False)
        A(f"  s_lshl_b32 s60, s{sWAVE}, 3\n  v_mov_b32 v14, s60")
        A("  s_mov_b32 exec_lo, 0\n  s_mov_b32 exec_hi, 0x80000000")
        A(f"  ds_write_b64 v14, v[12:13] offset:{L_STATS}\n  ds_add_u32 v{vZ}, v{vONE} offset:{F_ST}")
        self.execall()
        nextv(); nextv()
        self.lds_spin(F_ST, 8, 12)
        A(f"  v_and_b32 v14, 7, v{vLANE}\n  v_lshlrev_b32 v14, 3, v14\n  ds_read_b64 v[12:13], v14 offset:{L_STATS}\n  s_waitcnt lgkmcnt(0)")
        red8 = ["quad_perm:[1,0,3,2]", "quad_perm:[2,3,0,1]", "row_ror:4"]
        A("  v_mov_b32 v14, v12")
        for s in red8: A(f"  v_max_f32_dpp v14, v14, v14 {s} row_mask:0xf bank_mask:0xf")
        A(f"  v_sub_f32 v12, v12, v14\n  v_mul_f32 v12, s{sLOG2E}, v12\n  v_exp_f32 v12, v12")
        for i in range(8): A(f"  v_sub_f32 v{26+i}, v{18+i}, v14")
        A("  v_mul_f32 v13, v13, v12")
        for i in range(8): A(f"  v_mul_f32 v{26+i}, s{sLOG2E}, v{26+i}")
        for s in red8: A(f"  v_add_f32_dpp v13, v13, v13 {s} row_mask:0xf bank_mask:0xf")
        for i in range(8): A(f"  v_exp_f32 v{26+i}, v{26+i}")
        A("  v_rcp_f32 v15, v13\n  v_fma_f32 v16, -v13, v15, 1.0\n  v_fmac_f32 v15, v16, v15")
        if c["dump"]:
            for i in range(8):
                A(f"  s_lshl_b32 s69, s2, 3\n  s_add_u32 s69, s69, s{sWAVE}\n  s_lshl_b32 s69, s69, 3\n  s_add_u32 s69, s69, {i}")
                self.dumpv(18 + i, 1, 0x100000, 69, 256, tmp=36)
        for i in range(8): A(f"  v_mul_f32 v{26+i}, v{26+i}, v15")
        for i in range(8): A(f"  v_cvt_pk_bf16_f32 v{18+i}, v{26+i}, v{26+i}")
        self.stamp(3)
        npv = 0
        def pv():
            nonlocal npv
            n = npv; npv += 1
            Ab = 26 + 4 * (n & 1)
            bank = [0, 2, 1, 3][n & 3]
            for j in range(4):
                A(f"  v_and_b32_dpp v{Ab+j}, v{18+(n>>2)}, v{4+j} row_newbcast:{4*bank} row_mask:0xf bank_mask:0xf")
            A(f"  v_mfma_f32_16x16x32_bf16 {vq(34)}, {vq(Ab)}, {vq(slot(n))}, {'0' if n == 0 else vq(34)}")
            if n == c["hint_at"]:
                l = self.lab("ht")
                self.exec1()
                A(f"  ds_add_rtn_u32 v12, v{vZ}, v{vONE} offset:{F_P}\n  s_mov_b32 s5, 0\n  s_waitcnt lgkmcnt(0)\n  v_readfirstlane_b32 s60, v12")
                self.execall()
                A(f"  s_cmp_lg_u32 s60, 7\n  s_cbranch_scc1 {l}")
                A(f"  s_lshl_b32 s60, s{sB}, 12\n  s_add_u32 s60, s60, {WS_ACC + 3072}\n  s_mov_b32 s5, 1\n  s_atomic_add s5, {sp(sWS)}, s60 glc\n{l}:")
            if n == c["hint_at"] + c["hint_lag"]:
                l = self.lab("hf")
                A(f"  s_waitcnt lgkmcnt(0)\n  s_cmp_lg_u32 s5, 31\n  s_cbranch_scc1 {l}")
                A(f"  s_mul_i32 s60, s{sB}, {64*128}\n  s_add_u32 s60, s60, {WS_HINT}\n  v_lshl_add_u32 v12, v{vLANE}, 7, s60")
                A(f"  s_mov_b32 exec_hi, 0x7ff\n  global_store_dword v12, v11, {sp(sWS)} sc1"); self.execall()
                A(f"{l}:")
        self.ffn_addr()
        self.lds_spin(F_C, 1, 12)
        A(f"  ds_read_b32 v11, v{vZ} offset:{F_N}")
        def vstep():
            nextv()
            landed = nv - D
            k = 0
            while npv < landed and k < 3:
                pv(); k += 1
        def finish():
            while npv < 32:
                waitfor(f"V{npv}"); pv()
            A(f"  v_lshlrev_b32 v12, 5, v{vJ}\n  v_lshl_add_u32 v13, v{vG}, 4, v12\n  s_lshl_b32 s60, s{sWAVE}, 9\n  v_add_u32 v12, s60, v13")
            A("  s_mov_b32 exec_hi, 0")
            if c["oadd"]:
                for r in range(4): A(f"  ds_add_f32 v13, v{34+r} offset:{L_OP + 4*r}")
            else:
                A(f"  ds_write_b128 v12, {vq(34)} offset:{L_OP}")
            self.lds_inc(F_O)
            self.stamp(5)
        NF0 = c["NF0"]
        while nv < 32 - NF0: vstep()
        assert npv >= NV or NF0 == 0, (npv, NV)
        lf = self.lab("vffn")
        if c["abl"] is None and "T" not in c["xskip"]: A(f"  s_cmp_lg_u32 s{sFFN}, 0\n  s_cbranch_scc1 {lf}")
        st = (nv, npv, list(issued))
        while nv < 32: vstep()
        self.stamp(4)
        finish()
        A("  s_branch L_exit")
        A(f"{lf}:")
        nv, npv = st[0], st[1]; issued[:] = st[2]
        nf = 0
        while nv < 32:
            waitfor(f"V{nv - (D - 1)}")
            A(f"  buffer_load_dwordx4 {vq(slot(nv))}, v{vL16}, {sq(SRDB)}, s{sOFF + (nv >> 2)} offen offset:{1024*(nv&3)}{c['vfl']}")
            issued.append(f"V{nv}"); nv += 1
            self.ffn_load(nf); issued.append(f"F{nf}"); nf += 1
            k = 0
            while npv < nv - D + 1 and k < 3:
                pv(); k += 1
        self.stamp(4)
        finish()
        FD = c["FD"]
        if c["fmode"] == "paced":
            while nf < 24:
                if nf >= FD: waitfor(f"F{nf - FD}")
                self.ffn_load(nf); issued.append(f"F{nf}"); nf += 1
                if nf == FD: self.ffn_lds_addr()
                if nf == 8 + FD: self.transpose_x2(120, 40)
                if nf == 16 + FD: self.stamp(15); self.transpose_x2(136, 56)
            return
        while nf < FD:
            self.ffn_load(nf); issued.append(f"F{nf}"); nf += 1
        self.lds_spin(F_A, 4, 12)
        self.stamp(10)
        while nf < 16:
            self.ffn_load(nf); issued.append(f"F{nf}"); nf += 1
        self.ffn_lds_addr()
        if c["stamps"]: waitfor("F15"); self.stamp(15)
        waitfor("F7"); self.transpose_x2(120, 40)
        if c["down_late"]: self.lds_spin(F_R, 2, 12)
        while nf < 24:
            self.ffn_load(nf); issued.append(f"F{nf}"); nf += 1
        waitfor("F15"); self.transpose_x2(136, 56)

    def ffn_addr(self):
        A = self.A
        A(f"  v_cmp_gt_u32 vcc, 8, v{vJ}")
        A(f"  v_mov_b32 v12, s{sU}\n  v_mov_b32 v13, s{sU+1}\n  v_mov_b32 v14, s{sG}\n  v_mov_b32 v15, s{sG+1}")
        A(f"  v_cndmask_b32 v8, v12, v14, vcc\n  v_cndmask_b32 v9, v13, v15, vcc")
        A(f"  s_lshr_b32 s16, s{sJ}, 1\n  s_and_b32 s17, s{sJ}, 1")
        A(f"  s_lshl_b32 s60, s{sWAVE}, 6\n  s_lshl_b32 s61, s16, 5\n  s_add_u32 s60, s60, s61\n  s_lshl_b32 s61, s17, 2\n  s_add_u32 s60, s60, s61")
        A(f"  v_lshl_add_u32 v12, v{vG}, 3, s60\n  v_mul_u32_u24 v12, 2752, v12")
        A(f"  v_and_b32 v13, 7, v{vJ}\n  v_lshl_add_u32 v12, v13, 3, v12\n  s_lshl_b32 s60, s{sSL}, 6\n  v_add_u32 v12, s60, v12\n  v_mov_b32 v13, 0")
        A(f"  v_lshl_add_u64 v[8:9], v[8:9], 0, v[12:13]")
        A(f"  s_mov_b32 s10, 5504\n  s_mov_b32 s11, 0")
        A(f"  s_cmp_eq_u32 s17, 0\n  s_cselect_b32 s60, 4, -4\n  s_cmp_eq_u32 s16, 0\n  s_cselect_b32 s61, 32, -32")
        A(f"  s_sub_i32 s61, s61, s60\n  s_sub_i32 s60, s60, 2\n  s_sub_i32 s61, s61, 2")
        A(f"  s_mul_i32 s12, s60, 2752\n  s_ashr_i32 s13, s12, 31\n  s_mul_i32 s6, s61, 2752\n  s_ashr_i32 s7, s6, 31")
        A(f"  s_mov_b32 s{SRDA}, s{sDN}\n  s_mov_b32 s{SRDA+1}, s{sDN+1}\n  s_mov_b32 s{SRDA+2}, 1409024\n  s_mov_b32 s{SRDA+3}, 0x20000")
        A(f"  v_lshlrev_b32 v10, 13, v{vG}\n  v_lshl_add_u32 v10, v{vJ}, 3, v10")
        A(f"  s_lshl_b32 s18, s{sSL}, 15\n  s_lshl_b32 s19, s{sWAVE}, 7\n  s_add_u32 s18, s18, s19\n  s_add_u32 s19, s18, 4096")

    def ffn_load(self, i):
        A = self.A
        if "W" in self.c["xskip"]:
            A(f"  global_load_dword v17, v{vZ}, {sp(sC)}"); return
        if i < 16:
            A(f"  global_load_dwordx2 {vp(120+2*i)}, v[8:9], off{' offset:2752' if i & 1 else ''}{self.c['ffnfl']}")
            if i & 1 and i < 15:
                step = "s[10:11]" if (i & 3) == 1 else ("s[6:7]" if i == 7 else "s[12:13]")
                A(f"  v_lshl_add_u64 v[8:9], v[8:9], 0, {step}")
        else:
            e = i - 16
            A(f"  buffer_load_dwordx2 {vp(152+2*e)}, v10, {sq(SRDA)}, s{18 + (e >> 2)} offen offset:{1024*(e&3)}{self.c['ffnfl']}")

    def ffn_lds_addr(self):
        A = self.A
        A(f"  v_and_b32 v12, 1, v{vJ}\n  v_lshlrev_b32 v112, 10, v12\n  v_lshl_add_u32 v112, v{vG}, 4, v112\n  s_lshl_b32 s60, s{sWAVE}, 7\n  v_add_u32 v112, s60, v112")
        A(f"  s_lshl_b32 s60, s16, 6\n  s_lshl_b32 s61, s17, 3\n  s_add_u32 s60, s60, s61\n  v_add_u32 v112, s60, v112")
        A(f"  v_xor_b32 v113, 8, v112\n  v_xor_b32 v114, 64, v112\n  v_xor_b32 v115, 0x48, v112")
        A(f"  v_lshlrev_b32 v116, 6, v12\n  v_lshl_add_u32 v116, v{vG}, 4, v116")
        A(f"  v_lshlrev_b32 v117, 5, v{vJ}\n  v_lshl_add_u32 v117, v{vG}, 3, v117\n  s_lshl_b32 s60, s{sWAVE}, 9\n  v_add_u32 v117, s60, v117")
        A(f"  s_lshl_b32 s60, s{sJ}, 5\n  s_lshl_b32 s61, s{sWAVE}, 2\n  s_add_u32 s60, s60, s61\n  v_add_u32 v118, s60, v{vG}\n  v_mul_u32_u24 v118, {INB}, v118")
        A(f"  s_lshl_b32 s60, s{sSL}, 8\n  s_add_u32 s60, s60, {WS_INBOX}\n  v_lshl_add_u32 v12, v{vJ}, 4, s60\n  v_add_u32 v118, v12, v118")

    def streamer_ffn(self):
        A = self.A
        self.stamp(6)
        A("  s_barrier")
        for i in range(4): A(f"  ds_read_b64 {vp(88+2*i)}, v{112+i} offset:{L_H2}")
        A("  s_waitcnt lgkmcnt(2)")
        for cc in range(4): A(f"  v_mfma_f32_16x16x32_bf16 {vq(96+4*cc)}, {vq(88)}, {vq(40+4*cc)}, 0")
        A("  s_waitcnt lgkmcnt(0)")
        for cc in range(4): A(f"  v_mfma_f32_16x16x32_bf16 {vq(96+4*cc)}, {vq(92)}, {vq(56+4*cc)}, {vq(96+4*cc)}")
        def select():
            for g in range(1, 4):
                for r in range(2):
                    A(f"  v_mov_b32_dpp v{96+r}, v{96+4*g+r} quad_perm:[0,1,2,3] row_mask:{1<<g:#x} bank_mask:0xf")
        select()
        A(f"  ds_write_b64 v117, v[96:97] offset:{L_GUP}\n  s_waitcnt lgkmcnt(0)")
        A("  s_barrier")
        A("  s_waitcnt vmcnt(0)"); self.transpose_x2(152, 72)
        A("  s_barrier")
        A(f"  ds_read_b128 {vq(88)}, v116 offset:{L_HH}\n  s_waitcnt lgkmcnt(0)")
        for cc in range(4): A(f"  v_mfma_f32_16x16x32_bf16 {vq(96+4*cc)}, {vq(88)}, {vq(72+4*cc)}, 0")
        select()
        A(f"  v_mov_b32 v98, v11\n  v_xor_b32 v99, {TAGX:#x}, v11")
        A(f"  global_store_dwordx4 v118, {vq(96)}, {sp(sWS)} sc1")
        self.stamp(7)
        A("  s_branch L_exit")

    def mod_loads(self):
        A = self.A
        A(f"  v_and_b32 v4, 7, v{vJ}\n  v_lshrrev_b32 v5, 3, v{vJ}\n  v_lshlrev_b32 v6, 10, v4\n  v_lshl_add_u32 v6, v5, 6, v6\n  v_lshl_add_u32 v6, v{vG}, 4, v6")
        A(f"  s_lshl_b32 s60, s{sWAVE}, 7\n  v_add_u32 v6, s60, v6")
        A(f"  global_load_dwordx4 {vq(8)}, v6, {sp(sC)}")
        A(f"  v_lshlrev_b32 v7, 5, v5\n  v_lshl_add_u32 v7, v{vG}, 3, v7\n  v_mul_u32_u24 v7, 6144, v7\n  v_lshl_add_u32 v7, v4, 4, v7")
        A(f"  s_mul_i32 s60, s{sWAVE}, {64*6144}\n  s_lshl_b32 s61, s57, 7\n  s_add_u32 s60, s60, s61\n  v_add_u32 v7, s60, v7")
        for i in range(8):
            A(f"  global_load_dwordx4 {vq(136+4*i)}, v7, {sp(sWM)} nt")
            if i < 7: A(f"  v_add_u32 v7, 6144, v7")

    def mod_compute_a(self):
        A = self.A
        A(f"  s_lshl_b32 s60, s{sWAVE}, 12\n  s_add_u32 s60, s60, {L_V}\n  v_lshlrev_b32 v28, 11, v5\n  v_lshl_add_u32 v28, v4, 8, v28\n  v_and_b32 v29, 1, v{vG}\n  v_lshl_add_u32 v28, v29, 4, v28\n  v_add_u32 v28, s60, v28")
        A(f"  v_lshrrev_b32 v29, 1, v{vG}\n  v_cmp_eq_u32 s[68:69], v29, v5")
        A("  s_waitcnt vmcnt(8)")
        for i in range(4):
            r = 8 + i
            A(f"  v_lshlrev_b32 v16, 16, v{r}\n  v_and_b32 v17, 0xffff0000, v{r}")
            A(f"  v_mul_f32 v18, s{sLOG2E}, v16\n  v_mul_f32 v19, s{sLOG2E}, v17")
            A(f"  v_exp_f32 v18, -v18\n  v_exp_f32 v19, -v19")
            A(f"  v_add_f32 v18, 1.0, v18\n  v_add_f32 v19, 1.0, v19\n  v_rcp_f32 v18, v18\n  v_rcp_f32 v19, v19")
            A(f"  v_mul_f32 v16, v16, v18\n  v_mul_f32 v17, v17, v19\n  v_cvt_pk_bf16_f32 v{r}, v16, v17")

    def mod_compute_b(self):
        A = self.A
        self.transpose_block(136, 5, 6)
        for cc in range(8):
            A(f"  v_mfma_f32_16x16x32_bf16 {vq(104+4*cc)}, {vq(8)}, {vq(136+4*cc)}, 0")
        A("  s_mov_b64 exec, s[68:69]")
        for cc in range(8):
            A(f"  ds_write_b128 v28, {vq(104+4*cc)} offset:{32*cc}")
        self.lds_inc(F_MOD)

    def mod_compute_c(self):
        A = self.A
        A(f"  v_and_b32 v4, 31, v{vLANE}\n  v_lshrrev_b32 v5, 5, v{vLANE}\n  v_lshlrev_b32 v6, 6, v4\n  v_lshl_add_u32 v6, v5, 14, v6\n  s_lshl_b32 s60, s{sWAVE}, 2\n  s_add_u32 s60, s60, {L_V}\n  v_add_u32 v6, s60, v6")
        A(f"  s_mul_i32 s60, s{sWAVE}, 6144\n  s_lshl_b32 s61, s57, 7\n  s_add_u32 s60, s60, s61\n  s_add_u32 s60, s60, {WS_MOD}\n  v_lshl_add_u32 v5, v4, 2, s60")
        self.lds_spin(F_MOD, 8, 7)
        for part in range(8):
            if part: A(f"  v_add_u32 v6, 2048, v6")
            A(f"  ds_read2_b32 {vp(8+2*part)}, v6 offset0:0 offset1:8")
        l = self.lab("pollSN"); d = self.lab("gotSN")
        A(f"{l}:\n  s_cmp_lg_u32 s3, 0\n  s_cbranch_scc1 {d}")
        self.guard()
        A(f"  s_load_dword s3, {sp(sDBG)}, 0x80 glc\n  s_waitcnt lgkmcnt(0)\n  s_branch {l}\n{d}:")
        A("  s_waitcnt lgkmcnt(0)")
        self.lds_inc(F_MOD2)
        for part in range(1, 8):
            A(f"  v_add_f32 v8, v8, v{8+2*part}\n  v_add_f32 v9, v9, v{9+2*part}")
        A("  v_mov_b32 v10, v8\n  v_mov_b32 v11, v9\n  v_permlane32_swap_b32 v10, v8\n  v_permlane32_swap_b32 v11, v9\n  v_add_f32 v8, v8, v10\n  v_add_f32 v9, v9, v11")
        A(f"  v_cvt_pk_bf16_f32 v8, v8, v9\n  s_mov_b32 exec_hi, 0\n  global_store_dword v5, v8, {sp(sWS)} sc1")
        self.execall()
        A("  v_mov_b32 v9, v8")
        for st in ("quad_perm:[1,0,3,2]", "quad_perm:[2,3,0,1]", "row_ror:4", "row_ror:8"):
            A(f"  v_xor_b32_dpp v9, v9, v9 {st} row_mask:0xf bank_mask:0xf")
        A("  v_mov_b32 v10, v9\n  v_permlane16_swap_b32 v10, v9\n  v_bitop3_b32 v9, v9, v10, s3 bitop3:0x96")
        A(f"  s_lshl_b32 s60, s{sWAVE}, 8\n  s_lshl_b32 s61, s57, 2\n  s_add_u32 s60, s60, s61\n  s_add_u32 s60, s60, {WS_MARK}\n  v_mov_b32 v5, s60")
        self.exec1(); A(f"  global_store_dword v5, v9, {sp(sWS)} sc1"); self.execall()

    def check_lines(self, data, tags, tmp):
        A = self.A
        n = len(data)
        for k in range(n): A(f"  v_xor_b32 v{tmp+k}, v{data[k]}, v{data[k]+1}")
        for k in range(n): A(f"  v_bitop3_b32 v{tmp+k}, v{tmp+k}, v{data[k]+2}, v{data[k]+3} bitop3:0x96")
        for st in ("quad_perm:[1,0,3,2]", "quad_perm:[2,3,0,1]", "row_half_mirror"):
            for k in range(n): A(f"  v_xor_b32_dpp v{tmp+k}, v{tmp+k}, v{tmp+k} {st} row_mask:0xf bank_mask:0xf")
        for k in range(n): A(f"  v_bitop3_b32 v{tmp+k}, v{tmp+k}, v{tags[k]}, s44 bitop3:0x96")
        for k in range(1, n): A(f"  v_or_b32 v{tmp}, v{tmp}, v{tmp+k}")
        A(f"  v_cmp_ne_u32 vcc, 0, v{tmp}")

    def get_flag(self, tmp, off, sreg, expect=None):
        A = self.A
        l = self.lab("pollN"); d = self.lab("gotN")
        cmp = f"s_cmp_lg_u32 s{sreg}, 0" if expect is None else f"s_cmp_eq_u32 s{sreg}, {expect}"
        self.exec1()
        A(f"  global_load_dword v{tmp}, v{vZ}, {sp(sDBG)} offset:{off}")
        A(f"{l}:\n  s_waitcnt vmcnt(0)\n  v_readfirstlane_b32 s{sreg}, v{tmp}\n  {cmp}\n  s_cbranch_scc1 {d}")
        self.guard()
        A(f"  s_sleep {self.c['poll_sleep']}\n  global_load_dword v{tmp}, v{vZ}, {sp(sDBG)} offset:{off} sc1\n  s_branch {l}\n{d}:"); self.execall()
    def get_nonce(self, tmp): self.get_flag(tmp, 128, 44)

    def xor_rows(self, r, t):
        A = self.A
        A(f"  v_mov_b32 v{t}, v{r}\n  v_permlane16_swap_b32 v{t}, v{r}\n  v_xor_b32 v{r}, v{r}, v{t}")
        A(f"  v_mov_b32 v{t}, v{r}\n  v_permlane32_swap_b32 v{t}, v{r}\n  v_xor_b32 v{r}, v{r}, v{t}")

    def allreduce8(self, r, t, op="v_add_f32"):
        A = self.A
        A(f"  {op}_dpp v{r}, v{r}, v{r} row_ror:8 row_mask:0xf bank_mask:0xf")
        A(f"  v_mov_b32 v{t}, v{r}\n  v_permlane16_swap_b32 v{t}, v{r}\n  {op} v{r}, v{r}, v{t}")
        A(f"  v_mov_b32 v{t}, v{r}\n  v_permlane32_swap_b32 v{t}, v{r}\n  {op} v{r}, v{r}, v{t}")

    def wq_pattern(self):
        p = self.c["wqpat"]
        if p == 8: return 16, [8192 if i % 8 < 7 else 8192 * 25 for i in range(32)]
        if p == 32: return 18, [8192] * 32
        if p == 1: return 13, [8192 * 4] * 32
        if p == 33: return 18, [8192 * 5 if i % 8 < 7 else (1 << 32) - 8192 * 27 for i in range(32)]
        if p == 16: return 17, [8192 if i % 16 < 15 else 8192 * 49 for i in range(32)]

    def h0_issue(self, fl):
        A = self.A
        A(f"  global_load_dwordx4 {vq(28)}, v36, {sp(sWS)}{fl}\n  global_load_dwordx4 {vq(32)}, v36, {sp(sWS)} offset:1024{fl}")
        A(f"  global_load_dword v24, v37, {sp(sWS)}{fl}\n  global_load_dword v25, v37, {sp(sWS)} offset:32{fl}")

    def h0_finish(self):
        A = self.A; c = self.c
        l = self.lab("chkA"); d = self.lab("gotA")
        A(f"{l}:")
        self.check_lines([28, 32], [24, 25], 26)
        A(f"  s_cbranch_vccz {d}")
        self.guard()
        A(f"  s_sleep {c['a_sleep']}")
        self.h0_issue(" sc1")
        A(f"  s_waitcnt vmcnt(0)\n  s_branch {l}\n{d}:")
        self.stamp(2); self.cstamp(14)
        self.unpack8(32, 16)
        for i in range(8): A(f"  v_add_f32 v{16+i}, 1.0, v{16+i}")
        self.rnd8(16, 24)
        for i in range(8): A(f"  v_mul_f32 v{8+i}, v{8+i}, v{16+i}")
        self.rnd8(8, 24)
        self.unpack8(28, 16)
        for i in range(8): A(f"  v_add_f32 v{8+i}, v{8+i}, v{16+i}")
        for i in range(4): A(f"  v_cvt_pk_bf16_f32 v{24+i}, v{8+2*i}, v{9+2*i}")
        A(f"  v_add_u32 v16, s47, v{vL16}\n  ds_write_b128 v16, {vq(24)} offset:{L_HBUF}")
        self.lds_inc(F_H)
        if c["dump"]:
            l = self.lab("nodh"); A(f"  s_cmp_lg_u32 s{sHW}, 0\n  s_cbranch_scc1 {l}"); self.dumpv(24, 4, 0x0, 2, 1024); A(f"{l}:")
        self.stamp(3)

    def helper(self):
        A = self.A; c = self.c
        A("L_helper:")
        self.stamp(8)
        A(f"  s_sub_u32 s{sHW}, s{sWAVE}, 8")
        l = self.lab("h3")
        A(f"  s_cmp_lg_u32 s{sHW}, 3\n  s_cbranch_scc1 {l}")
        A(f"  v_lshlrev_b32 v4, 2, v{vLANE}\n  ds_write_b32 v4, v{vZ}\n  ds_write_b32 v4, v{vZ} offset:{L_OP}\n  ds_write_b32 v4, v{vZ} offset:{L_OP+256}\n  s_waitcnt lgkmcnt(0)\n{l}:")
        A("  s_waitcnt lgkmcnt(0)")
        if c["tlb"]:
            l = self.lab("notlb")
            A(f"  s_cmp_lg_u32 s{sHW}, 2\n  s_cbranch_scc1 {l}")
            self.exec1()
            A(f"  s_lshl_b32 s60, s{sB}, 5\n  s_add_u32 s60, s60, s{sH}\n  s_lshl_b32 s60, s60, 20\n  s_add_u32 s60, s60, 0xC0000\n  v_mov_b32 v4, s60")
            A(f"  global_load_dword v40, v4, {sp(sV)} nt")
            A(f"  s_lshl_b32 s60, s2, 12\n  s_add_u32 s60, s60, {WS_QIN}\n  v_mov_b32 v5, s60\n  global_load_dword v41, v5, {sp(sWS)} nt")
            A(f"  s_lshl_b32 s60, s{sH}, 17\n  v_mov_b32 v6, s60\n  global_load_dword v42, v6, {sp(sWO)} nt")
            A(f"  s_lshl_b32 s60, s2, 2\n  s_and_b32 s60, s60, 0xfc\n  v_mov_b32 v7, s60")
            A(f"  global_load_dword v43, v7, {sp(sDBG)}")
            if c["tlb"] > 1:
                A(f"  s_lshl_b32 s60, s2, 7\n  v_mov_b32 v8, s60")
                for k, p in enumerate((sG, sU, sDN, sWS)): A(f"  global_load_dword v{44+k}, v8, {sp(p)} nt")
                A(f"  v_add_u32 v8, 0x100000, v8")
                for k, p in enumerate((sG, sU, sDN)): A(f"  global_load_dword v{48+k}, v8, {sp(p)} nt")
                A(f"  s_lshl_b32 s60, s2, 5\n  v_mov_b32 v9, s60\n  global_load_dword v52, v9, {sp(sOUT)} nt")
            self.execall()
            A(f"{l}:")
        if c["wqpf"]:
            l = self.lab("nowqpf")
            A(f"  s_cmp_lg_u32 s{sHW}, {c['wqpf']}\n  s_cbranch_scc1 {l}")
            A(f"  s_lshl_b32 s60, s{sIDX}, 17\n  s_lshl_b32 s61, s{sXCD}, 10\n  s_add_u32 s60, s60, s61\n  v_add_u32 v4, s60, v{vL16}")
            for i in range(16):
                if i >= c["wqpfD"]: A(f"  s_waitcnt vmcnt({c['wqpfD']-1})")
                A(f"  global_load_dword v35, v4, {sp(sWQ)}")
                if i < 15: A("  v_add_u32 v4, 8192, v4")
            A(f"{l}:")
        l = self.lab("nononce")
        A(f"  s_cmp_lg_u32 s2, 0\n  s_cbranch_scc1 {l}\n  s_cmp_lg_u32 s{sHW}, 1\n  s_cbranch_scc1 {l}")
        A(f"  s_memrealtime s[42:43]\n  s_waitcnt lgkmcnt(0)\n  s_or_b32 s42, s42, 1\n  v_mov_b32 v6, s42")
        self.exec1(); A(f"  global_store_dword v{vZ}, v6, {sp(sDBG)} offset:128 sc1"); self.execall()
        A(f"{l}:")
        A("  s_barrier")
        abl = c["abl"]
        if abl is not None:
            if "init" in abl: self.init_duty(11)
            l = self.lab("abl")
            A(f"  s_cmp_lg_u32 s{sHW}, 0\n  s_cbranch_scc1 {l}")
            self.lds_inc(F_Q2); self.lds_inc(F_C)
            if "h0l" in abl:
                A(f"  v_and_b32 v5, 7, v{vJ}\n  v_lshrrev_b32 v6, 3, v{vJ}\n  v_lshl_add_u32 v7, v{vG}, 1, v6\n  v_lshlrev_b32 v7, 4, v7\n  v_lshl_add_u32 v7, v5, 10, v7")
                if "nox" not in abl:
                    for i in range(8): A(f"  global_load_dwordx4 {vq(40+4*i)}, v7, {sp(sX)} offset:{128*i} nt")
                A(f"  s_mov_b32 s{SRDB}, s{sWQ}\n  s_mov_b32 s{SRDB+1}, s{sWQ+1}\n  s_mov_b32 s{SRDB+2}, 4194304\n  s_mov_b32 s{SRDB+3}, 0x20000")
                A(f"  v_lshlrev_b32 v7, 4, v{vJ}\n  v_lshl_add_u32 v7, v{vG}, 16, v7")
                A(f"  s_lshl_b32 s41, s{sB}, 19\n  s_lshl_b32 s60, s{sH}, 8\n  s_add_u32 s41, s41, s60")
                for i in range(0 if "nowq" in abl else 16):
                    A(f"  s_waitcnt vmcnt({c['ablD']})")
                    A(f"  buffer_load_dwordx4 {vq(104+4*i)}, v7, {sq(SRDB)}, s41 offen nt")
                    if i < 15: A(f"  s_add_u32 s41, s41, {8192 if i != 7 else 8192*25}")
                A("  s_waitcnt vmcnt(0)")
            if "poll" in abl:
                lp = self.lab("ablp")
                self.exec1()
                A(f"  s_mov_b32 s65, 12\n{lp}:\n  global_load_dwordx2 v[24:25], v{vZ}, {sp(sDBG)} offset:128 sc1\n  s_waitcnt vmcnt(0)\n  s_sleep {c['poll_sleep']}\n s_sub_u32 s65, s65, 1\n s_cmp_lg_u32 s65, 0\n s_cbranch_scc1 {lp}")
                self.execall()
            A(f"{l}:")
            if "wqr" in abl:
                A(f"  s_mov_b32 s{SRDA}, s{sWQ}\n  s_mov_b32 s{SRDA+1}, s{sWQ+1}\n  s_mov_b32 s{SRDA+2}, 4194304\n  s_mov_b32 s{SRDA+3}, 0x20000")
                sh, steps_ = self.wq_pattern()
                A(f"  v_lshlrev_b32 v4, 4, v{vJ}\n  v_lshl_add_u32 v4, v{vG}, {sh}, v4")
                A(f"  s_lshl_b32 s40, s{sHW}, 20\n  s_xor_b32 s60, s{sH}, {c['wqx']}\n  s_lshl_b32 s60, s60, 8\n  s_add_u32 s40, s40, s60")
                self.wload32(SRDA, steps_, c["HDO"], frac=c["HDOf"], fl=c["wqfl"])
                self.stamp(5)
            if "wo" in abl:
                A(f"  s_mov_b32 s{SRDA}, s{sWO}\n  s_mov_b32 s{SRDA+1}, s{sWO+1}\n  s_mov_b32 s{SRDA+2}, 4194304\n  s_mov_b32 s{SRDA+3}, 0x20000")
                A(f"  v_lshlrev_b32 v4, 4, v{vJ}\n  v_lshl_add_u32 v4, v{vG}, 13, v4")
                A(f"  s_lshl_b32 s40, s{sH}, 17\n  s_lshl_b32 s60, s{sHW}, 8\n  s_add_u32 s40, s40, s60")
                self.wload32(SRDA, [1024 if i % 8 < 7 else 1024 * 25 for i in range(32)], c["HDO"], frac=c["HDOf"])
                self.stamp(6)
            A("  s_branch L_exit")
        A(f"  s_mov_b32 s{SRDA}, s{sWQ}\n  s_mov_b32 s{SRDA+1}, s{sWQ+1}\n  s_mov_b32 s{SRDA+2}, 4194304\n  s_mov_b32 s{SRDA+3}, 0x20000")
        sh, steps = self.wq_pattern()
        A(f"  v_lshlrev_b32 v4, 4, v{vJ}\n  v_lshl_add_u32 v4, v{vG}, {sh}, v4")
        A(f"  s_lshl_b32 s40, s{sHW}, 20\n  s_lshl_b32 s60, s{sH}, 8\n  s_add_u32 s40, s40, s60")
        A(f"  s_cmp_lt_u32 s57, 48\n  s_cbranch_scc1 L_prodh")
        A(f"  s_cmp_eq_u32 s57, 64\n  s_cselect_b32 s45, 3, 0")
        A(f"  s_cmp_gt_u32 s{sHW}, s45\n  s_cbranch_scc1 L_wq123")
        A(f"  s_lshl_b32 s46, s{sHW}, 1\n  s_add_u32 s46, s46, s{sB}\n  s_lshl_b32 s47, s{sHW}, 10")
        A(f"  s_lshl_b32 s60, s46, 10\n  v_add_u32 v36, s60, v{vL16}\n  global_load_dwordx4 {vq(28)}, v36, {sp(sX)}")
        A(f"  s_mul_i32 s60, s46, 6144\n  s_add_u32 s60, s60, {WS_MOD}\n  v_add_u32 v36, s60, v{vL16}")
        A(f"  s_lshl_b32 s60, s46, 8\n  s_add_u32 s60, s60, {WS_MARK}\n  v_lshrrev_b32 v37, 3, v{vLANE}\n  v_lshl_add_u32 v37, v37, 2, s60")
        HD = c["HD"]
        def ln():
            self.unpack8(28, 8); self.layernorm(8, 16, 24)
            A(f"  s_load_dword s44, {sp(sDBG)}, 0x80")
        def gather():
            l = self.lab("pollHN"); d = self.lab("gotHN")
            A(f"  s_waitcnt lgkmcnt(0)\n{l}:\n  s_cmp_lg_u32 s44, 0\n  s_cbranch_scc1 {d}")
            self.guard()
            A(f"  s_load_dword s44, {sp(sDBG)}, 0x80 glc\n  s_waitcnt lgkmcnt(0)\n  s_branch {l}\n{d}:")
            self.stamp(1)
            self.h0_issue("")
            A(f"  v_mov_b32 v26, s44\n  ds_write_b32 v{vZ}, v26 offset:{F_N}")
        self.wload32(SRDA, steps, HD, frac=c["HDf"], hooks={HD + 3: ln, c["P0"]: gather, c["P0"] + HD: self.h0_finish}, fl=c["wqfl"])
        A("  s_branch L_q")
        A("L_wq123:")
        l = self.lab("nozero")
        A(f"  s_cmp_lg_u32 s{sHW}, 3\n  s_cbranch_scc1 {l}\n  s_cmp_lt_u32 s57, 256\n  s_cbranch_scc1 {l}\n  s_cmp_ge_u32 s57, {256+8}\n  s_cbranch_scc1 {l}")
        A("  v_mov_b32 v12, 0\n  v_mov_b32 v13, 0\n  v_mov_b32 v14, 0\n  v_mov_b32 v15, 0")
        A(f"  s_sub_u32 s61, s57, 256\n  s_lshl_b32 s60, s61, 12\n  s_add_u32 s60, s60, {WS_ACC}\n  v_add_u32 v5, s60, v{vL16}")
        for i in range(4): A(f"  global_store_dwordx4 v5, {vq(12)}, {sp(sWS)} offset:{1024*i} sc1")
        A(f"{l}:")
        def ticket():
            l = self.lab("notick"); lp = self.lab("pollZN"); d = self.lab("gotZN")
            A(f"  s_cmp_lg_u32 s{sHW}, 3\n  s_cbranch_scc1 {l}\n  s_cmp_lt_u32 s57, 256\n  s_cbranch_scc1 {l}\n  s_cmp_ge_u32 s57, {256+8}\n  s_cbranch_scc1 {l}")
            A(f"  s_mov_b32 s65, 1\n  s_atomic_add s65, {sp(sDBG)}, 0x8 glc\n  s_waitcnt lgkmcnt(0)\n  s_cmp_lg_u32 s65, 7\n  s_cbranch_scc1 {l}")
            A(f"{lp}:\n  s_load_dword s44, {sp(sDBG)}, 0x80 glc\n  s_waitcnt lgkmcnt(0)\n  s_cmp_lg_u32 s44, 0\n  s_cbranch_scc1 {d}")
            self.guard()
            A(f"  s_branch {lp}\n{d}:\n  v_mov_b32 v7, s44")
            self.exec1(); A(f"  global_store_dword v{vZ}, v7, {sp(sDBG)} offset:136 sc1"); self.execall()
            A(f"{l}:")
        self.wload32(SRDA, steps, HD, frac=c["HDf"], hooks={HD + 2: ticket}, fl=c["wqfl"])
        A("L_q:")
        self.stamp(4)
        A("  s_add_u32 s61, s45, 1")
        self.lds_spin(F_H, "s61", 7)
        p32 = c["wqpat"] == 32
        A(f"  s_lshl_b32 s60, s{sHW}, 8\n  v_lshl_add_u32 v4, v{vG}, {6 if p32 else 4}, s60\n  v_and_b32 v5, s45, v{vJ}\n  v_lshl_add_u32 v4, v5, 10, v4")
        for m in range(4): A(f"  ds_read_b128 {vq(8+4*m)}, v4 offset:{L_HBUF + (16 if p32 else 64)*m}")
        A(f"  ds_read_b32 v7, v{vZ} offset:{F_N}")
        A(f"  s_lshl_b32 s60, s{sHW}, 11\n  v_lshl_add_u32 v5, v{vJ}, 5, s60\n  v_add_u32 v5, {L_QP}, v5")
        A(f"  s_mov_b32 s{SRDA}, s{sWO}\n  s_mov_b32 s{SRDA+1}, s{sWO+1}\n  s_mov_b32 s{SRDA+2}, 4194304\n  s_mov_b32 s{SRDA+3}, 0x20000")
        A(f"  s_lshl_b32 s40, s{sH}, 17\n  s_lshl_b32 s60, s{sHW}, 8\n  s_add_u32 s40, s40, s60")
        A("  s_waitcnt lgkmcnt(0)")
        A(f"  v_readfirstlane_b32 s44, v7\n  v_lshlrev_b32 v4, 4, v{vJ}\n  v_lshl_add_u32 v4, v{vG}, 13, v4")
        res = self.gemv32()
        A("  s_mov_b64 exec, 0xffff")
        for cc in range(0, 8, 2):
            A(f"  ds_write2_b32 v5, v{res[cc]}, v{res[cc+1]} offset0:{cc} offset1:{cc+1}")
        l = self.lab("onerow")
        A(f"  s_cmp_eq_u32 s45, 0\n  s_cbranch_scc1 {l}")
        for r in range(1, 4):
            A(f"  v_add_u32 v5, 512, v5")
            for cc in range(0, 8, 2):
                A(f"  ds_write2_b32 v5, v{res[cc]+r}, v{res[cc+1]+r} offset0:{cc} offset1:{cc+1}")
        A(f"{l}:")
        self.exec1()
        A(f"  ds_add_rtn_u32 v7, v{vZ}, v{vONE} offset:{F_Q}\n  s_waitcnt lgkmcnt(0)\n  v_readfirstlane_b32 s60, v7")
        self.execall()
        l = self.lab("notlastq")
        A(f"  s_cmp_lg_u32 s60, 3\n  s_cbranch_scc1 {l}")
        A(f"  v_lshlrev_b32 v6, 3, v{vLANE}")
        for part in range(4): A(f"  ds_read_b64 {vp(8+2*part)}, v6 offset:{L_QP + 2048*part}")
        A(f"  s_lshl_b32 s60, s2, 9\n  s_add_u32 s60, s60, {WS_QIN}\n  v_add_u32 v7, s60, v6")
        A(f"  v_lshlrev_b32 v5, 2, v{vLANE}\n  s_waitcnt lgkmcnt(0)")
        A("  v_add_f32 v8, v8, v10\n  v_add_f32 v9, v9, v11\n  v_add_f32 v12, v12, v14\n  v_add_f32 v13, v13, v15\n  v_add_f32 v8, v8, v12\n  v_add_f32 v9, v9, v13")
        A(f"  v_cvt_pk_bf16_f32 v8, v8, v9\n  ds_write_b32 v5, v8 offset:{L_QB}")
        l2 = self.lab("nodon")
        A(f"  s_cmp_eq_u32 s45, 0\n  s_cbranch_scc1 {l2}")
        for r in range(1, 4):
            for part in range(4): A(f"  ds_read_b64 {vp(16+2*part)}, v6 offset:{L_QP + 2048*part + 512*r}")
            A(f"  v_add_u32 v7, {64*512}, v7\n  s_waitcnt lgkmcnt(0)")
            A("  v_add_f32 v16, v16, v18\n  v_add_f32 v17, v17, v19\n  v_add_f32 v20, v20, v22\n  v_add_f32 v21, v21, v23\n  v_add_f32 v16, v16, v20\n  v_add_f32 v17, v17, v21")
            A(f"  v_cvt_pk_bf16_f32 v{24+2*r}, v16, v17\n  v_mov_b32 v{25+2*r}, s44\n  global_store_dwordx2 v7, {vp(24+2*r)}, {sp(sWS)} sc1")
        A(f"{l2}:")
        self.lds_inc(F_Q2)
        self.dumpv(8, 1, 0x80000, 2, 256)
        A(f"{l}:")
        self.stamp(5)
        steps = [1024 if i % 8 < 7 else 1024 * 25 for i in range(32)]
        def chkB():
            l0 = self.lab("noB")
            A(f"  s_cmp_lg_u32 s{sHW}, 1\n  s_cbranch_scc1 {l0}")
            self.get_flag(7, 136, 45, expect="s44")
            self.lds_inc(F_C)
            A(f"{l0}:")
        def rowloads(fl):
            for i in range(4): A(f"  global_load_dwordx4 {vq(12+4*i)}, v36, {sp(sWS)} offset:{1024*i}{fl}")
            for i in range(4): A(f"  global_load_dword v{28+i}, v37, {sp(sWS)} offset:{32*i}{fl}")
        def rows_a():
            l = self.lab("norows")
            A(f"  s_cmp_ge_u32 s{sHW}, 2\n  s_cbranch_scc1 {l}\n  s_cmp_eq_u32 s{sFFN}, 0\n  s_cbranch_scc1 {l}")
            A(f"  s_lshl_b32 s41, s{sJ}, 1\n  s_add_u32 s41, s41, s{sHW}")
            A(f"  s_mul_i32 s60, s41, 6144\n  s_add_u32 s60, s60, {WS_MOD + 2048}\n  v_add_u32 v36, s60, v{vL16}")
            A(f"  s_lshl_b32 s60, s41, 8\n  s_add_u32 s60, s60, {WS_MARK + 64}\n  v_lshrrev_b32 v37, 3, v{vLANE}\n  v_lshl_add_u32 v37, v37, 2, s60")
            rowloads("")
            A(f"  s_lshl_b32 s60, s41, 10\n  v_add_u32 v7, s60, v{vL16}\n  global_load_dwordx4 {vq(8)}, v7, {sp(sX)}")
            A(f"{l}:")
        def rows_b():
            l = self.lab("norows2")
            A(f"  s_cmp_ge_u32 s{sHW}, 2\n  s_cbranch_scc1 {l}\n  s_cmp_eq_u32 s{sFFN}, 0\n  s_cbranch_scc1 {l}")
            lr = self.lab("chkR"); dr = self.lab("gotR")
            A(f"{lr}:")
            self.check_lines([12, 16, 20, 24], [28, 29, 30, 31], 32)
            A(f"  s_cbranch_vccz {dr}")
            self.guard()
            rowloads(" sc1")
            A(f"  s_waitcnt vmcnt(0)\n  s_branch {lr}\n{dr}:")
            self.unpack8(20, 28)
            for i in range(8): A(f"  v_add_f32 v{28+i}, 1.0, v{28+i}")
            for i in range(4): A(f"  v_cvt_pk_bf16_f32 v{20+i}, v{28+2*i}, v{29+2*i}")
            self.lds_spin(F_Q2, 1, 7)
            A(f"  s_mul_i32 s60, s{sHW}, 5120\n  v_add_u32 v36, s60, v{vL16}")
            for i in range(5): A(f"  ds_write_b128 v36, {vq(8+4*i)} offset:{L_ROWS + 1024*i}")
            A(f"{l}:")
        self.wload32(SRDA, steps, c["HDO"], frac=c["HDOf"], hooks={c["PB"]: chkB, c["PR"]: rows_a, c["PR"] + c["HDO"]: rows_b})
        A("  s_branch L_wo")
        A("L_prodh:")
        A(f"  s_mov_b32 s{SRDA}, s{sWO}\n  s_mov_b32 s{SRDA+1}, s{sWO+1}\n  s_mov_b32 s{SRDA+2}, 4194304\n  s_mov_b32 s{SRDA+3}, 0x20000")
        A(f"  s_lshl_b32 s40, s{sH}, 17\n  s_lshl_b32 s60, s{sHW}, 8\n  s_add_u32 s40, s40, s60")
        A(f"  v_lshlrev_b32 v4, 4, v{vJ}\n  v_lshl_add_u32 v4, v{vG}, 13, v4")
        def recvq():
            l0 = self.lab("noq"); l = self.lab("pollPN"); d = self.lab("gotPN"); lq = self.lab("pollPQ"); dq = self.lab("gotPQ")
            A(f"  s_cmp_lg_u32 s{sHW}, 0\n  s_cbranch_scc1 {l0}")
            A(f"  s_load_dword s44, {sp(sDBG)}, 0x80\n  s_waitcnt lgkmcnt(0)\n{l}:\n  s_cmp_lg_u32 s44, 0\n  s_cbranch_scc1 {d}")
            self.guard()
            A(f"  s_load_dword s44, {sp(sDBG)}, 0x80 glc\n  s_waitcnt lgkmcnt(0)\n  s_branch {l}\n{d}:")
            A(f"  v_mov_b32 v26, s44\n  ds_write_b32 v{vZ}, v26 offset:{F_N}")
            A(f"  s_lshl_b32 s60, s2, 9\n  s_add_u32 s60, s60, {WS_QIN}\n  v_lshl_add_u32 v7, v{vLANE}, 3, s60\n  s_add_u32 s61, s60, 4")
            A(f"{lq}:\n  s_load_dword s60, {sp(sWS)}, s61 glc\n  s_waitcnt lgkmcnt(0)\n  s_cmp_eq_u32 s60, s44\n  s_cbranch_scc0 {lq}_r")
            A(f"  global_load_dwordx2 v[8:9], v7, {sp(sWS)} sc1\n  s_waitcnt vmcnt(0)\n  v_cmp_ne_u32 vcc, s44, v9\n  s_cbranch_vccz {dq}")
            A(f"{lq}_r:")
            self.guard()
            A(f"  s_sleep {c['q_sleep']}\n  s_branch {lq}\n{dq}:")
            A(f"  v_lshlrev_b32 v7, 2, v{vLANE}\n  ds_write_b32 v7, v8 offset:{L_QB}")
            self.lds_inc(F_Q2)
            self.stamp(5)
            self.dumpv(8, 1, 0x80000, 2, 256)
            self.get_flag(7, 136, 45, expect="s44")
            self.lds_inc(F_C)
            A(f"{l0}:")
        self.wload32(SRDA, steps, c["HDP"], frac=c["HDPf"], hooks={c["PQ"]: recvq})
        self.lds_spin(F_Q2, 1, 7, sleep=4)
        A(f"  ds_read_b32 v7, v{vZ} offset:{F_N}\n  s_waitcnt lgkmcnt(0)\n  v_readfirstlane_b32 s44, v7")
        A("L_wo:")
        A("L_wodone:")
        if c["pref2"] and "T" not in c["xskip"]:
            self.prefetch(wait=True)
        self.lds_spin(F_C, 1, 7, sleep=4)
        A(f"  v_lshlrev_b32 v28, {5 if c['oadd'] else 3}, v{vG if c['oadd'] else vLANE}")
        A(f"  s_lshl_b32 s60, s{sHW}, 8\n  v_lshl_add_u32 v29, v{vLANE}, 2, s60\n  v_lshl_add_u32 v30, v{vG}, 4, s60")
        A(f"  v_lshrrev_b32 v31, 2, v{vLANE}\n  v_and_b32 v32, 3, v{vLANE}\n  v_lshl_add_u32 v31, v32, 4, v31\n  v_lshlrev_b32 v36, 2, v31")
        A(f"  s_lshl_b32 s61, s{sB}, 12\n  s_add_u32 s61, s61, {WS_ACC}\n  v_add_u32 v32, s61, v29")
        A(f"  v_mov_b32 v33, 1.0\n  v_mov_b32 v34, 1.0\n  v_mov_b32 v35, 1.0\n  v_mov_b32_dpp v35, v{vZ} quad_perm:[0,1,2,3] row_mask:0x4 bank_mask:0xf")
        self.stamp(6)
        if "T" in c["xskip"]: A("  s_branch L_exit")
        self.lds_spin(F_O, 8, 7, sleep=1)
        self.stamp(9)
        if c["oadd"]:
            rd = lambda q, off: A(f"  ds_read_b128 {vq(q)}, v28 offset:{L_OP + off}")
            rd(12, 0); rd(16, 16); rd(20, 128); rd(24, 144); rd(4, 256)
            A(f"  s_waitcnt lgkmcnt(3)")
            for i in range(4): A(f"  v_cvt_pk_bf16_f32 v{8+i}, v{12+2*i}, v{13+2*i}")
            A(f"  s_waitcnt lgkmcnt(1)")
            for i in range(4): A(f"  v_cvt_pk_bf16_f32 v{12+i}, v{20+2*i}, v{21+2*i}")
            rd(16, 272); rd(20, 384); rd(24, 400)
            self.stamp(10)
            res = [28] + [40 + 4 * k for k in range(7)]
            for m, Am in enumerate((8, 12, 4, 16)):
                for cc in range(8):
                    A(f"  v_mfma_f32_16x16x32_bf16 {vq(res[cc])}, {vq(Am)}, {vq(40+32*m+4*cc)}, {'0' if m == 0 else vq(res[cc])}")
                    if m == 0 and cc == 5:
                        A(f"  s_waitcnt lgkmcnt(0)")
                        A("  v_cvt_pk_bf16_f32 v4, v4, v5\n  v_cvt_pk_bf16_f32 v5, v6, v7\n  v_cvt_pk_bf16_f32 v6, v16, v17\n  v_cvt_pk_bf16_f32 v7, v18, v19")
                    if m == 1 and cc == 1:
                        for i in range(4): A(f"  v_cvt_pk_bf16_f32 v{16+i}, v{20+2*i}, v{21+2*i}")
        else:
            for part in range(8): A(f"  ds_read_b64 {vp(8+2*part)}, v28 offset:{L_OP + 512*part}")
            A("  s_waitcnt lgkmcnt(4)")
            A("  v_add_f32 v8, v8, v10\n  v_add_f32 v9, v9, v11\n  v_add_f32 v12, v12, v14\n  v_add_f32 v13, v13, v15\n  v_add_f32 v8, v8, v12\n  v_add_f32 v9, v9, v13")
            A("  s_waitcnt lgkmcnt(0)")
            A("  v_add_f32 v16, v16, v18\n  v_add_f32 v17, v17, v19\n  v_add_f32 v20, v20, v22\n  v_add_f32 v21, v21, v23\n  v_add_f32 v16, v16, v20\n  v_add_f32 v17, v17, v21")
            A(f"  v_add_f32 v8, v8, v16\n  v_add_f32 v9, v9, v17\n  v_cvt_pk_bf16_f32 v7, v8, v9\n  ds_write_b32 v29, v7 offset:{L_OB}")
            for m in range(4): A(f"  ds_read_b128 {vq(8+4*m)}, v30 offset:{L_OB + 64*m}")
            A("  s_waitcnt lgkmcnt(0)")
            self.stamp(10)
            res = self.gemv32()
        self.stamp(11)
        for k in range(3):
            for g in range(3):
                if 3 * k + g < 8:
                    A(f"  v_mov_b32_dpp v{33+k}, v{res[3*k+g]} quad_perm:[0,1,2,3] row_mask:{1<<g:#x} bank_mask:0xf")
        for k in range(3): A(f"  ds_bpermute_b32 v{33+k}, v36, v{33+k}")
        for k in range(3):
            A(f"  s_waitcnt lgkmcnt({2-k})\n  global_atomic_add_f32 v32, v{33+k}, {sp(sWS)} offset:{1024*k}")
        if c["gate"]:
            l = self.lab("g01")
            A(f"  s_cmp_lt_u32 s{sHW}, 2\n  s_cbranch_scc1 {l}")
            self.lds_inc(F_A)
            A(f"{l}:")
        else:
            self.lds_inc(F_A)
        self.stamp(7)
        if c["dump"] and not c["oadd"]:
            l = self.lab("nodumpo")
            A(f"  s_cmp_lg_u32 s{sHW}, 3\n  s_cbranch_scc1 {l}")
            self.dumpv(7, 1, 0x90000, 2, 256)
            A(f"{l}:")
        A(f"  s_cmp_ge_u32 s{sHW}, 2\n  s_cbranch_scc1 L_exit\n  s_cmp_eq_u32 s{sFFN}, 0\n  s_cbranch_scc1 L_exit")
        A(f"  s_lshl_b32 s45, s{sJ}, 1\n  s_add_u32 s45, s45, s{sHW}\n  s_lshl_b32 s45, s45, 6\n  s_add_u32 s45, s45, s{sSL}\n  s_lshl_b32 s45, s45, 7\n  s_add_u32 s45, s45, {WS_HINT}")
        A(f"  s_load_dword s61, {sp(sWS)}, s45 glc")
        A(f"  s_mul_i32 s60, s{sHW}, 5120\n  v_add_u32 v4, s60, v{vL16}")
        for i in range(4): A(f"  ds_read_b128 {vq(72+4*i)}, v4 offset:{L_ROWS + 1024*i}")
        A(f"  s_lshl_b32 s41, s{sJ}, 1\n  s_add_u32 s41, s41, s{sHW}\n  s_lshl_b32 s41, s41, 12\n  s_add_u32 s41, s41, {WS_ACC}\n  v_add_u32 v5, s41, v{vL16}\n  v_mov_b32 v6, s41")
        A(f"  s_lshl_b32 s60, s{sHW}, 10\n  v_add_u32 v4, s60, v{vL16}")
        A("  s_waitcnt lgkmcnt(0)")
        self.unpack8(72, 88); self.unpack8(76, 96); self.unpack8(80, 104); self.unpack8(84, 112)
        lp = self.lab("pollH"); ld = self.lab("gotH")
        if c["gate"]:
            lg = self.lab("late")
            A(f"  s_cmp_eq_u32 s61, s44\n  s_cbranch_scc1 {lg}")
            self.lds_inc(F_A)
        A(f"{lp}:\n  s_load_dword s60, {sp(sWS)}, s45 glc\n  s_waitcnt lgkmcnt(0)\n  s_cmp_eq_u32 s60, s44\n  s_cbranch_scc1 {ld}")
        self.guard()
        if c["hint_sleep"]: A(f"  s_sleep {c['hint_sleep']}")
        A(f"  s_branch {lp}\n{ld}:")
        if c["read_delay"]: A(f"  s_sleep {c['read_delay']}")
        if c["gate"]:
            for k in range(3): A(f"  global_load_dwordx4 {vq(120+4*k)}, v5, {sp(sWS)} offset:{1024*k} sc1")
            lj = self.lab("gj")
            A(f"  s_branch {lj}\n{lg}:")
            for k in range(3): A(f"  global_load_dwordx4 {vq(120+4*k)}, v5, {sp(sWS)} offset:{1024*k} sc1")
            self.lds_inc(F_A)
            A(f"{lj}:")
        self.stamp(1)
        self.cstamp(13)
        lp = self.lab("pollF"); ld = self.lab("gotF")
        if not c["gate"]:
            for k in range(3): A(f"  global_load_dwordx4 {vq(120+4*k)}, v5, {sp(sWS)} offset:{1024*k} sc1")
        self.lds_inc(F_R)
        A(f"{lp}:")
        A("  s_waitcnt vmcnt(0)\n  v_min3_f32 v7, v123, v127, v131\n  v_cmp_neq_f32 vcc, 0x42000000, v7")
        A(f"  s_cbranch_vccz {ld}")
        self.guard()
        if c["full_sleep"]: A(f"  s_sleep {c['full_sleep']}")
        for k in range(3): A(f"  global_load_dwordx4 {vq(120+4*k)}, v5, {sp(sWS)} offset:{1024*k} sc1")
        A(f"  s_branch {lp}\n{ld}:")
        self.stamp(2)
        self.cstamp(15)
        src = [120, 121, 122, 124, 125, 126, 128, 129]
        for i in range(4): A(f"  v_cvt_pk_bf16_f32 v{16+i}, v{src[2*i]}, v{src[2*i+1]}")
        self.unpack8(16, 8)
        for i in range(8): A(f"  v_mul_f32 v{8+i}, v{96+i}, v{8+i}")
        self.rnd8(8, 16)
        for i in range(8): A(f"  v_add_f32 v{8+i}, v{88+i}, v{8+i}")
        for i in range(4): A(f"  v_cvt_pk_bf16_f32 v{28+i}, v{8+2*i}, v{9+2*i}")
        self.unpack8(28, 8)
        A(f"  ds_write_b128 v4, {vq(28)} offset:{L_X1}")
        self.layernorm(8, 16, 24)
        for i in range(8): A(f"  v_mul_f32 v{8+i}, v{8+i}, v{112+i}")
        self.rnd8(8, 16)
        for i in range(8): A(f"  v_add_f32 v{8+i}, v{8+i}, v{104+i}")
        for i in range(4): A(f"  v_cvt_pk_bf16_f32 v{24+i}, v{8+2*i}, v{9+2*i}")
        A(f"  ds_write_b128 v4, {vq(24)} offset:{L_H2}\n  s_waitcnt lgkmcnt(0)")
        self.stamp(3)
        A("  s_barrier")
        if c["dump"]:
            A(f"  s_lshl_b32 s69, s2, 1\n  s_add_u32 s69, s69, s{sHW}")
            self.dumpv(24, 4, 0x600000, 69, 1024)
        A(f"  s_cmp_eq_u32 s{sHW}, 0\n  s_cbranch_scc1 L_reducer")
        A(f"  s_cmp_ge_u32 s{sSL}, 32\n  s_cbranch_scc1 L_exit")
        A(f"  s_lshr_b32 s60, s{sSL}, 2\n  s_lshl_b32 s60, s60, 7\n  s_and_b32 s61, s{sSL}, 3\n  s_lshl_b32 s61, s61, 1\n  s_add_u32 s60, s60, s61\n  v_lshl_add_u32 v4, v{vJ}, 3, s60")
        A(f"  v_and_b32 v5, 1, v{vG}\n  v_lshl_add_u32 v6, v5, 10, v4")
        A(f"  ds_read_u16 v40, v6 offset:{L_X1}\n  v_mul_u32_u24 v7, 5120, v5\n  v_add_u32 v7, v7, v4\n  ds_read_u16 v41, v7 offset:{L_ROWS + 4096}")
        A(f"  s_lshl_b32 s60, s{sJ}, 11\n  v_add_u32 v6, s60, v6")
        A(f"  s_lshl_b32 s60, s{sJ}, 5\n  s_add_u32 s60, s60, s{sSL}\n  s_mul_i32 s60, s60, {INB}\n  s_add_u32 s60, s60, {WS_INBOX + 4096}\n  v_add_u32 v5, s60, v{vL16}\n  v_add_u32 v7, 4096, v5")
        A(f"  s_xor_b32 s45, s44, {TAGX:#x}\n  v_mov_b32 v84, 0\n  v_mov_b32 v85, 0\n  v_mov_b32 v86, s44\n  v_mov_b32 v87, s45")
        A("  s_waitcnt lgkmcnt(0)\n  v_lshlrev_b32 v40, 16, v40\n  v_lshlrev_b32 v41, 16, v41")
        A("  s_barrier\n  s_barrier")
        if c["inbox_sleep"]: A(f"  s_sleep {c['inbox_sleep']}")
        lp = self.lab("pollI"); ld = self.lab("gotI")
        A(f"{lp}:")
        for i in range(10): A(f"  global_load_dwordx4 {vq(44+4*i)}, v{5 if i < 8 else 7}, {sp(sWS)} offset:{1024*i - (4096 if i < 8 else 8192)} sc1")
        A(f"  s_mov_b32 exec_hi, 0xffff\n  global_load_dwordx4 {vq(84)}, v7, {sp(sWS)} offset:2048 sc1"); self.execall()
        for i in range(11):
            q = 44 + 4 * i
            A(f"  s_waitcnt vmcnt({10-i})")
            if i == 0:
                A(f"  v_xor_b32 v10, s44, v{q+2}\n  v_xor_b32 v11, s45, v{q+3}\n  v_mov_b32 v8, v{q}\n  v_mov_b32 v9, v{q+1}")
            else:
                A(f"  v_bitop3_b32 v10, v10, v{q+2}, s44 bitop3:0xf6\n  v_bitop3_b32 v11, v11, v{q+3}, s45 bitop3:0xf6\n  v_add_f32 v8, v8, v{q}\n  v_add_f32 v9, v9, v{q+1}")
        A(f"  v_or_b32 v10, v10, v11\n  v_cmp_ne_u32 vcc, 0, v10\n  s_cbranch_vccz {ld}")
        self.guard()
        A(f"  s_branch {lp}\n{ld}:")
        self.stamp(4)
        A("  v_permlane16_swap_b32 v8, v9\n  v_add_f32 v8, v8, v9\n  v_mov_b32 v9, v8\n  v_permlane32_swap_b32 v9, v8\n  v_add_f32 v8, v8, v9")
        self.rnd1(8, 9)
        A("  v_mul_f32 v8, v41, v8"); self.rnd1(8, 9)
        A("  v_add_f32 v8, v40, v8\n  v_cvt_pk_bf16_f32 v8, v8, v8")
        A("  s_mov_b32 exec_hi, 0")
        A(f"  global_store_short v6, v8, {sp(sOUT)} sc1")
        self.execall()
        self.stamp(5)
        A("  s_branch L_exit")
        A("L_reducer:")
        A(f"  v_lshlrev_b32 v4, 2, v{vLANE}\n  v_add_u32 v4, {L_GUP}, v4")
        A(f"  v_and_b32 v5, 1, v{vLANE}\n  v_lshlrev_b32 v5, 6, v5\n  v_and_b32 v6, 62, v{vLANE}\n  v_add_u32 v5, v5, v6")
        A("  s_barrier")
        for w in range(8): A(f"  ds_read2st64_b32 {vp(8+2*w)}, v4 offset0:{2*w} offset1:{2*w+1}")
        A("  s_waitcnt lgkmcnt(4)")
        A("  v_add_f32 v8, v8, v10\n  v_add_f32 v9, v9, v11\n  v_add_f32 v12, v12, v14\n  v_add_f32 v13, v13, v15\n  v_add_f32 v8, v8, v12\n  v_add_f32 v9, v9, v13")
        A("  s_waitcnt lgkmcnt(0)")
        A("  v_add_f32 v16, v16, v18\n  v_add_f32 v17, v17, v19\n  v_add_f32 v20, v20, v22\n  v_add_f32 v21, v21, v23\n  v_add_f32 v16, v16, v20\n  v_add_f32 v17, v17, v21")
        A("  v_add_f32 v8, v8, v16\n  v_add_f32 v9, v9, v17")
        self.rnd2(8, 9, 10)
        A(f"  v_mul_f32 v8, s{sLOG2E}, v8\n  v_exp_f32 v8, -v8\n  v_add_f32 v8, 1.0, v8\n  v_rcp_f32 v8, v8")
        self.rnd1(8, 10)
        A(f"  v_mul_f32 v8, v8, v9\n  v_cvt_pk_bf16_f32 v8, v8, v8\n  ds_write_b16 v5, v8 offset:{L_HH}\n  s_waitcnt lgkmcnt(0)")
        A("  s_barrier")
        self.stamp(4)
        self.dumpv(8, 1, 0xE0000, 2, 256)
        A("  s_branch L_exit")

    def build(self):
        A = self.A; c = self.c
        A(f"{KNAME}:")
        if c["stamps"]:
            for k in range(1, 16): A(f"  s_mov_b64 s[{70+2*k}:{71+2*k}], 0")
        self.stamp(0)
        A("  s_cmp_ge_u32 s2, 256\n  s_cbranch_scc1 L_end")
        A("  s_load_dwordx16 s[4:19], s[0:1], 0\n  s_load_dwordx8 s[20:27], s[0:1], 64\n  s_load_dwordx4 s[28:31], s[0:1], 96")
        A(f"  v_lshrrev_b32 v2, 6, v0\n  v_and_b32 v0, 63, v0\n  v_readfirstlane_b32 s{sWAVE}, v2")
        A(f"  v_lshlrev_b32 v{vL16}, 4, v0")
        A(f"  s_and_b32 s{sXCD}, s2, 7\n  s_lshr_b32 s{sIDX}, s2, 3\n  s_lshr_b32 s{sB}, s{sIDX}, 2\n  s_and_b32 s{sJ}, s{sIDX}, 3")
        if c["hmap"] == 0: A(f"  s_lshl_b32 s{sH}, s{sXCD}, 2\n  s_add_u32 s{sH}, s{sH}, s{sJ}")
        elif c["hmap"] == 1: A(f"  s_lshl_b32 s{sH}, s{sJ}, 3\n  s_add_u32 s{sH}, s{sH}, s{sXCD}")
        elif c["hmap"] == 2: A(f"  s_lshr_b32 s{sH}, s{sXCD}, 1\n  s_lshl_b32 s{sH}, s{sH}, 3\n  s_and_b32 s60, s{sXCD}, 1\n  s_add_u32 s{sH}, s{sH}, s60\n  s_lshl_b32 s60, s{sJ}, 1\n  s_add_u32 s{sH}, s{sH}, s60")
        elif c["hmap"] == 3: A(f"  s_lshl_b32 s{sH}, s{sXCD}, 2\n  s_add_u32 s60, s{sJ}, 1\n  s_and_b32 s60, s60, 3\n  s_add_u32 s{sH}, s{sH}, s60")
        if c["fast0"]:
            l = self.lab("nofast")
            A(f"  s_cmp_ge_u32 s{sWAVE}, 8\n  s_cbranch_scc1 {l}")
            A(f"  s_lshl_b32 s56, s{sB}, 5\n  s_add_u32 s56, s56, s{sH}\n  s_lshl_b32 s56, s56, 20\n  s_add_u32 s56, s56, 0xC0000\n  s_lshl_b32 s{sOFF}, s{sWAVE}, 12")
            A(f"  s_mov_b32 s{SRDA+2}, 0x40000\n  s_mov_b32 s{SRDA+3}, 0x20000\n  s_waitcnt lgkmcnt(0)\n  s_add_u32 s{SRDA}, s{sK}, s56\n  s_addc_u32 s{SRDA+1}, s{sK+1}, 0")
            for n in range(2): A(f"  buffer_load_dwordx4 {vq(40+4*n)}, v{vL16}, {sq(SRDA)}, s{sOFF} offen offset:{1024*n}{c['kfl']}")
            self.stamp(8)
            A(f"{l}:")
        if c["pref"]: self.prefetch()
        A(f"  v_mov_b32 v36, 0\n  v_mov_b32 v37, 0\n  v_lshrrev_b32 v{vG}, 4, v0\n  v_and_b32 v{vJ}, 15, v0\n  v_mov_b32 v{vZ}, 0\n  v_mov_b32 v{vONE}, 1")
        A(f"  s_mul_i32 s65, s{sB}, 3\n  s_add_u32 s65, s65, s{sJ}\n  s_lshr_b32 s60, s{sJ}, 1\n  s_sub_u32 s65, s65, s60\n  s_lshr_b32 s61, s65, 2")
        A(f"  s_lshr_b32 s60, s{sXCD}, 1\n  s_mul_i32 s{sSL}, s{sXCD}, 5\n  s_add_u32 s{sSL}, s{sSL}, s60\n  s_add_u32 s{sSL}, s{sSL}, s61\n  s_sub_u32 s{sSL}, s{sSL}, 1")
        A(f"  s_and_b32 s60, s{sXCD}, 1\n  s_add_u32 s60, s60, 5\n  s_cmp_lt_u32 s61, s60\n  s_cselect_b32 s{sFFN}, 1, 0\n  s_cmp_lt_u32 s{sSL}, 43\n  s_cselect_b32 s{sFFN}, s{sFFN}, 0")
        A(f"  s_add_u32 s60, s{sXCD}, 256\n  s_cmp_eq_u32 s{sIDX}, 28\n  s_cselect_b32 s57, s60, 100")
        A(f"  s_sub_u32 s60, s{sB}, 2\n  s_lshl_b32 s60, s60, 3\n  s_add_u32 s60, s60, s{sXCD}\n  s_cmp_lt_u32 s{sB}, 2\n  s_cselect_b32 s60, 64, s60")
        A(f"  s_cmp_eq_u32 s{sJ}, 1\n  s_cselect_b32 s57, s60, s57\n  s_cselect_b32 s{sFFN}, 0, s{sFFN}\n  s_and_b32 s{sJ}, s65, 3")
        if "M" in c["xskip"]: A("  s_cmp_lt_u32 s57, 48\n  s_cselect_b32 s57, 100, s57")
        if "F" in c["xskip"]: A("  s_cmp_ge_u32 s57, 256\n  s_cselect_b32 s57, 100, s57")
        A(f"  s_mov_b32 s{sGUARD}, 0\n  s_mov_b32 s{sPLO}, 0x05040100\n  s_mov_b32 s{sPHI}, 0x07060302\n  s_mov_b32 s{sLOG2E}, {LOG2E:#x}")
        A(f"  s_cmp_ge_u32 s{sWAVE}, 8\n  s_cbranch_scc1 L_helper")
        A(f"  s_lshl_b32 s60, s{sB}, 5\n  s_add_u32 s60, s60, s{sH}\n  s_lshl_b32 s60, s60, 20\n  s_add_u32 s60, s60, 0xC0000")
        A(f"  s_lshl_b32 s{sOFF}, s{sWAVE}, 12\n  s_mul_i32 s56, s{sWAVE}, {c['NV']*1024}\n  s_add_u32 s56, s56, {L_V}")
        for G in range(1, 8): A(f"  s_add_u32 s{sOFF+G}, s{sOFF}, {G*32768}")
        A(f"  s_mov_b32 s{SRDA+2}, 0x40000\n  s_mov_b32 s{SRDA+3}, 0x20000\n  s_mov_b32 s{SRDB+2}, 0x40000\n  s_mov_b32 s{SRDB+3}, 0x20000")
        A("  s_waitcnt lgkmcnt(0)")
        def mask(fr):
            m = 0; acc = 0.5
            for n in range(64):
                acc += fr
                if acc >= 1.0 - 1e-9:
                    acc -= 1.0
                    if n < c["sprint"]: m |= 1 << n
            return m
        D = c["D"]
        m1 = [mask(min(1.0, D - d)) for d in c["depth"]]
        m2 = [mask(max(0.0, D - 1 - d)) for d in c["depth"]]
        for reg, ms in ((58, m1), (14, m2)):
            A(f"  s_and_b32 s65, s{sH}, 3\n  s_cmp_eq_u32 s65, 1")
            for half in range(2):
                w = [(m >> (32 * half)) & 0xffffffff for m in ms]
                A(f"  s_mov_b32 s{reg+half}, {w[0]:#x}\n  s_cselect_b32 s{reg+half}, {w[1]:#x}, s{reg+half}")
                A(f"  s_mov_b32 s{68+half}, {w[2]:#x}\n  s_cselect_b32 s{68+half}, {w[3]:#x}, s{68+half}")
            A(f"  s_cmp_lt_u32 s57, 48\n  s_cselect_b64 s[{reg}:{reg+1}], s[68:69], s[{reg}:{reg+1}]")
        A("  s_waitcnt lgkmcnt(0)")
        A(f"  s_add_u32 s{SRDA}, s{sK}, s60\n  s_addc_u32 s{SRDA+1}, s{sK+1}, 0\n  s_add_u32 s{SRDB}, s{sV}, s60\n  s_addc_u32 s{SRDB+1}, s{sV+1}, 0")
        if c["Dodd"]:
            A(f"  s_bitcmp1_b32 s{sXCD}, 0\n  s_cbranch_scc1 L_sodd")
        self.streamer(c["D"], "e")
        if c["Dodd"]:
            A("L_sodd:")
            self.streamer(c["Dodd"], "o")
        self.streamer_ffn()
        self.helper()
        A("L_exit:")
        if c["stamps"]:
            A("  s_mov_b64 exec, 1\n  s_waitcnt lgkmcnt(0)")
            A(f"  s_mul_i32 s60, s2, 12\n  s_add_u32 s60, s60, s{sWAVE}\n  s_lshl_b32 s60, s60, 7\n  s_add_u32 s60, s60, {WS_STAMP}\n  v_mov_b32 v4, s60")
            for k in range(16):
                A(f"  v_mov_b32 v6, s{70+2*k}\n  v_mov_b32 v7, s{71+2*k}\n  global_store_dwordx2 v4, v[6:7], {sp(sWS)} offset:{8*k}")
        A("L_end:\n  s_endpgm")
        body = fix_hazards(self.L)
        nk = c["prefkib"]
        out = HEADER + f"; @launch grid=(256,1,1) block=(768,1,1) lds={L_V + 8192*c['NV']}\n"
        out += '.amdgcn_target "amdgcn-amd-amdhsa--gfx950"\n.text\n'
        out += f".globl {KNAME}\n.p2align 8\n.type {KNAME},@function\n" + body
        out += f"  .fill 64, 4, 0xbf800000\nL_codeend:\n.if (L_codeend - {KNAME}) < {nk*1024}\n.fill ({nk*1024} - (L_codeend - {KNAME}))/4, 4, 0xbf800000\n.endif\n"
        out += f""".section .rodata,"a"
.p2align 6
.amdhsa_kernel {KNAME}
  .amdhsa_next_free_vgpr 168
  .amdhsa_next_free_sgpr 102
  .amdhsa_accum_offset 168
  .amdhsa_group_segment_fixed_size 0
  .amdhsa_kernarg_size 112
  .amdhsa_user_sgpr_count 2
  .amdhsa_user_sgpr_kernarg_segment_ptr 1
  .amdhsa_system_sgpr_workgroup_id_x 1
  .amdhsa_float_denorm_mode_32 3
.end_amdhsa_kernel
"""
        return out

def gen(**cfg): return Gen(**cfg).build()

if __name__ == "__main__":
    import json
    cfg = json.loads(sys.argv[2]) if len(sys.argv) > 2 else {}
    open(sys.argv[1], "w").write(gen(**cfg))
```

```python
import sys, struct
from asmlib import fix_hazards

KNAME = "adaLN_cond__sliding_block_cached__glu_gated_glu__decode_kernel"

HEADER = """; Kernarg layout for this problem (112 bytes, ptrs only, base s[0:1]):
;   offset  32: d_in[4] A_wo  shape=(4096, 512) dtype=bfloat16
;   offset  80: d_in[10] w_mod  shape=(512, 3072) dtype=bfloat16
;   offset 104: d_ws      workspace
; One workgroup per (batch, head): 8 streamer waves (K/V -> registers, QK, softmax, PV, then the GLU slice)
; and 4 helper waves (adaLN modulation, q projection, output projection, cross-workgroup hand-offs).
"""

WS_MOD, WS_STAT, WS_MARK, WS_ACC, WS_QTAG, WS_HINT, WS_INBOX, WS_QIN, WS_DUMP, WS_STAMP = 0x0, 0xC000, 0xD000, 0x10000, 0x18000, 0x20000, 0x40000, 0x1C0000, 0x200000, 0x20000000
F_H, F_Q, F_Q2, F_ST, F_O, F_MOD, F_MOD2, F_C, F_P, F_W, F_K, F_A, F_R, F_N = 0, 4, 8, 12, 16, 20, 24, 28, 32, 36, 40, 44, 48, 52
L_STATS, L_QB, L_OP, L_OB, L_HBUF, L_QP = 0x40, 0x100, 0x200, 0x1200, 0x1600, 0x2600
L_MODR, L_H2, L_X1, L_GUP, L_HH, L_MODP = 0x2200, 0x4A00, 0x5200, 0x5A00, 0x6A00, 0x7000
L_V = 0x7000
L_ROWS = 0x1600

def f2u(x): return struct.unpack("<I", struct.pack("<f", x))[0]
INB = 11264
TAGX = 0x5bd1e995
LOG2E = f2u(1.4426950408889634)
SCALE = f2u(128 ** -0.5)

sX, sK, sV, sWQ, sWO, sG, sU, sDN, sC, sWM, sOUT, sDBG, sWS = 4, 6, 8, 10, 12, 16, 18, 20, 22, 24, 26, 28, 30
sWAVE, sXCD, sIDX, sB, sJ, sH, sSL, sFFN = 32, 33, 34, 35, 36, 37, 38, 39
sOFF = 40
SRDA, SRDB = 48, 52
sPLO, sPHI, sGUARD, sLOG2E = 62, 63, 64, 66
sHW = 67
vLANE, vL16, vG, vJ, vZ, vONE = 0, 1, 2, 3, 38, 39

def sp(r): return f"s[{r}:{r+1}]"
def sq(r): return f"s[{r}:{r+3}]"
def vp(r): return f"v[{r}:{r+1}]"
def vq(r): return f"v[{r}:{r+3}]"

class Gen:
    def __init__(self, **cfg):
        self.c = dict(D=4, HD=4, HD0=6, HDO=4, P0=24, stamps=False, dump=False, guard=400000, pref=False,
                      inbox_sleep=6, hint_sleep=2, Dodd=None, pref2=False, prefwg=16, prefkib=26, hint_at=28, poll_sleep=8, NV=16, depth=[3, 3, 4, 3], FD=4, NF0=0, HDOf=4, H0D=4, H0D1=2, prio=2, nowo=False, wo_at=None, abl=None, init_mode='full', ablD=7, H0DQ=18, H0pre=True, fillD=4, nofill=False, q_sleep0=8, q_sleep=8, a_sleep=16, xskip=[], plainA=True, down_late=False, wofl='', tlb=0, modlag=2, HDf=4, ffnfl='', HDP=2, HDPf=1.75, PQ=24, kfl=' nt', vfl=' nt', hmap=0, wqpat=32, full_sleep=0, hint_lag=3, PB=2, fmode='flood', PR=8, wqpf=3, wqpfD=16, wqfl='', wqx=0, sprint=64, prodb=2, o_sleep=1, depth2=[3, 3, 3.5, 3.5], dsw=34, gran=4, outfl=' sc1', gate=False, oadd=False, fast0=True, read_delay=16, barD=False, rx_sleep=8, rx_delay=16)
        self.c.update(cfg)
        self.L = []
        self.nlab = 0

    def A(self, s): self.L.append(s)
    def lab(self, base):
        self.nlab += 1
        return f"L_{base}_{self.nlab}"
    def stamp(self, k):
        if self.c["stamps"]: self.A(f"  s_memrealtime s[{70+2*k}:{71+2*k}]")
    def cstamp(self, k):
        if self.c["stamps"]:
            self.A(f"  s_waitcnt lgkmcnt(0)\n  s_mul_i32 s{70+2*k}, s{sGUARD}, 100\n  s_add_u32 s{70+2*k}, s{70+2*k}, s70\n  s_addc_u32 s{71+2*k}, s71, 0")
    def guard(self):
        if self.c["guard"]:
            self.A(f"  s_add_u32 s{sGUARD}, s{sGUARD}, 1\n  s_cmp_gt_u32 s{sGUARD}, {self.c['guard']}\n  s_cbranch_scc1 L_exit")
    def exec1(self): self.A("  s_mov_b64 exec, 1")
    def execall(self): self.A("  s_mov_b64 exec, -1")

    def lds_spin(self, off, target, tmp, sleep=1):
        l = self.lab("spin"); d = self.lab("spun")
        self.A(f"{l}:")
        self.A(f"  ds_read_b32 v{tmp}, v{vZ} offset:{off}\n  s_waitcnt lgkmcnt(0)\n  v_readfirstlane_b32 s60, v{tmp}")
        self.A(f"  s_cmp_ge_u32 s60, {target}\n  s_cbranch_scc1 {d}")
        self.guard()
        if sleep: self.A(f"  s_sleep {sleep}")
        self.A(f"  s_branch {l}\n{d}:")

    def lds_inc(self, off):
        self.exec1(); self.A(f"  ds_add_u32 v{vZ}, v{vONE} offset:{off}"); self.execall()

    def dumpv(self, reg, n, base, sidx=None, stride=0, tmp=36):
        if not self.c["dump"]: return
        A = self.A
        if sidx is not None:
            A(f"  s_mul_i32 s68, s{sidx}, {stride}\n  s_add_u32 s68, s68, {WS_DUMP + base}")
        else:
            A(f"  s_mov_b32 s68, {WS_DUMP + base}")
        A(f"  v_lshlrev_b32 v{tmp}, {dict([(1,2),(2,3),(4,4)])[n]}, v{vLANE}\n  v_add_u32 v{tmp}, s68, v{tmp}")
        op = {1: "dword", 2: "dwordx2", 4: "dwordx4"}[n]
        r = f"v{reg}" if n == 1 else f"v[{reg}:{reg+n-1}]"
        A(f"  global_store_{op} v{tmp}, {r}, {sp(sWS)}\n  s_waitcnt vmcnt(0)")

    def prefetch(self, wait=False):
        A = self.A
        l = self.lab("nopref"); lp = self.lab("pref"); pc = self.lab("pc")
        A(f"  s_cmp_lg_u32 s{sWAVE}, 10\n  s_cbranch_scc1 {l}\n  s_cmp_ge_u32 s2, {self.c['prefwg']}\n  s_cbranch_scc1 {l}")
        A(f"  s_getpc_b64 s[60:61]\n{pc}:\n  s_sub_u32 s60, s60, {pc}-{KNAME}\n  s_subb_u32 s61, s61, 0\n  v_mov_b32 v36, v{vL16}\n  s_mov_b32 s65, {self.c['prefkib']}")
        A(f"{lp}:\n  global_load_dword v35, v36, s[60:61]\n  v_add_u32 v36, 1024, v36\n  s_sub_u32 s65, s65, 1\n  s_cmp_lg_u32 s65, 0\n  s_cbranch_scc1 {lp}")
        if wait: A("  s_waitcnt vmcnt(0)")
        A(f"{l}:")

    def rnd1(self, x, t):
        self.A(f"  v_cvt_pk_bf16_f32 v{t}, v{x}, v{x}\n  v_and_b32 v{x}, 0xffff0000, v{t}")
    def rnd2(self, x, y, t):
        self.A(f"  v_cvt_pk_bf16_f32 v{t}, v{x}, v{y}\n  v_lshlrev_b32 v{x}, 16, v{t}\n  v_and_b32 v{y}, 0xffff0000, v{t}")
    def rnd8(self, X, T):
        for i in range(4): self.A(f"  v_cvt_pk_bf16_f32 v{T+i}, v{X+2*i}, v{X+2*i+1}")
        self.unpack8(T, X)
    def unpack8(self, src, dst):
        for i in range(4):
            self.A(f"  v_lshlrev_b32 v{dst+2*i}, 16, v{src+i}\n  v_and_b32 v{dst+2*i+1}, 0xffff0000, v{src+i}")
    def wave_reduce(self, op, regs, full=True):
        steps = []
        if full: steps += ["quad_perm:[1,0,3,2] row_mask:0xf bank_mask:0xf", "quad_perm:[2,3,0,1] row_mask:0xf bank_mask:0xf"]
        steps += ["row_ror:4 row_mask:0xf bank_mask:0xf", "row_ror:8 row_mask:0xf bank_mask:0xf",
                  "row_bcast:15 row_mask:0xa bank_mask:0xf", "row_bcast:31 row_mask:0xc bank_mask:0xf"]
        for s in steps:
            for r in regs: self.A(f"  {op}_dpp v{r}, v{r}, v{r} {s}")

    def pk8(self, op, D, Aq, Bq):
        for i in range(0, 8, 2): self.A(f"  v_pk_{op}_f32 {vp(D+i)}, {vp(Aq+i)}, {vp(Bq+i)}")

    def layernorm(self, X, T, S):
        A = self.A
        A(f"  v_readfirstlane_b32 s60, v{X}")
        for i in range(0, 8, 2): A(f"  v_pk_add_f32 {vp(T+i)}, {vp(X+i)}, s[60:61] op_sel_hi:[1,0] neg_lo:[0,1] neg_hi:[0,1]")
        A(f"  v_pk_add_f32 {vp(S)}, {vp(T)}, {vp(T+2)}\n  v_pk_mul_f32 {vp(S+2)}, {vp(T)}, {vp(T)}")
        A(f"  v_pk_add_f32 {vp(S)}, {vp(S)}, {vp(T+4)}\n  v_pk_fma_f32 {vp(S+2)}, {vp(T+2)}, {vp(T+2)}, {vp(S+2)}")
        A(f"  v_pk_add_f32 {vp(S)}, {vp(S)}, {vp(T+6)}\n  v_pk_fma_f32 {vp(S+2)}, {vp(T+4)}, {vp(T+4)}, {vp(S+2)}")
        A(f"  v_add_f32 v{S}, v{S}, v{S+1}\n  v_pk_fma_f32 {vp(S+2)}, {vp(T+6)}, {vp(T+6)}, {vp(S+2)}\n  v_add_f32 v{S+1}, v{S+2}, v{S+3}")
        self.wave_reduce("v_add_f32", [S, S + 1])
        A(f"  v_readlane_b32 s61, v{S}, 63\n  v_readlane_b32 s65, v{S+1}, 63")
        inv = f2u(1.0 / 512)
        A(f"  v_mov_b32 v{S+2}, {inv:#x}")
        A(f"  v_mul_f32 v{S}, s61, v{S+2}\n  v_mul_f32 v{S+1}, s65, v{S+2}")
        A(f"  v_fma_f32 v{S+1}, -v{S}, v{S}, v{S+1}\n  v_add_f32 v{S}, s60, v{S}\n  v_max_f32 v{S+1}, 0, v{S+1}")
        self.rnd2(S, S + 1, S + 2)
        A(f"  v_add_f32 v{S+1}, {f2u(1e-5):#x}, v{S+1}")
        for i in range(0, 4, 2): A(f"  v_pk_add_f32 {vp(X+i)}, {vp(X+i)}, {vp(S)} op_sel_hi:[1,0] neg_lo:[0,1] neg_hi:[0,1]")
        A(f"  v_cvt_pk_bf16_f32 v{S+2}, v{S+1}, v{S+1}")
        for i in range(4, 8, 2): A(f"  v_pk_add_f32 {vp(X+i)}, {vp(X+i)}, {vp(S)} op_sel_hi:[1,0] neg_lo:[0,1] neg_hi:[0,1]")
        A(f"  v_and_b32 v{S+1}, 0xffff0000, v{S+2}\n  v_sqrt_f32 v{S+1}, v{S+1}")
        for i in range(4): A(f"  v_cvt_pk_bf16_f32 v{T+i}, v{X+2*i}, v{X+2*i+1}")
        self.rnd1(S + 1, S + 2)
        A(f"  v_rcp_f32 v{S+2}, v{S+1}")
        self.unpack8(T, X)
        A(f"  v_fma_f32 v{S+3}, -v{S+1}, v{S+2}, 1.0\n  v_fmac_f32 v{S+2}, v{S+3}, v{S+2}")
        for i in range(0, 8, 2): A(f"  v_pk_mul_f32 {vp(T+i)}, {vp(X+i)}, {vp(S+2)} op_sel_hi:[1,0]")
        for i in range(0, 8, 2): A(f"  v_pk_fma_f32 {vp(X+i)}, {vp(T+i)}, {vp(S)}, {vp(X+i)} op_sel:[0,1,0] op_sel_hi:[1,1,1] neg_lo:[1,0,0] neg_hi:[1,0,0]")
        for i in range(0, 8, 2): A(f"  v_pk_fma_f32 {vp(X+i)}, {vp(X+i)}, {vp(S+2)}, {vp(T+i)} op_sel_hi:[1,0,1]")
        self.rnd8(X, T)

    def transpose_block(self, B, t0, t1):
        A = self.A
        R = lambda e, t: B + 4 * e + t
        lo = lambda d, a, b: A(f"  v_perm_b32 v{d}, v{b}, v{a}, s{sPLO}")
        hi = lambda d, a, b: A(f"  v_perm_b32 v{d}, v{b}, v{a}, s{sPHI}")
        for p in range(4):
            a, b = R(2 * p, p), R(2 * p + 1, p)
            lo(t0, a, b); hi(b, a, b); A(f"  v_mov_b32 v{a}, v{t0}")
            for t in range(p + 1, 4):
                a, b, c, d = R(2 * p, t), R(2 * p + 1, t), R(2 * t, p), R(2 * t + 1, p)
                lo(t0, a, b); hi(t1, a, b); lo(a, c, d); hi(b, c, d)
                A(f"  v_mov_b32 v{c}, v{t0}\n  v_mov_b32 v{d}, v{t1}")

    def transpose_x2(self, Rb, Bb):
        for c in range(4):
            for p in range(4):
                a, b = Rb + 2 * (2 * p) + (c >> 1), Rb + 2 * (2 * p + 1) + (c >> 1)
                self.A(f"  v_perm_b32 v{Bb+4*c+p}, v{b}, v{a}, s{sPHI if c & 1 else sPLO}")

    def gemv32(self):
        res = []
        for c in range(8):
            Dc = 24 if c == 0 else 40 + 4 * (c - 1)
            for m in range(4):
                self.A(f"  v_mfma_f32_16x16x32_bf16 {vq(Dc)}, {vq(8+4*m)}, {vq(40+32*m+4*c)}, {'0' if m == 0 else vq(Dc)}")
            res.append(Dc)
        return res

    def wload32(self, srd, steps, D, frac=None, hooks=None, fl=None):
        A = self.A
        done = 0
        for i in range(32):
            dd = D
            if frac is not None and int((i + 1) * (D - frac)) != int(i * (D - frac)): dd = D - 1
            if i >= dd: A(f"  s_waitcnt vmcnt({dd-1})")
            if hooks and i in hooks: hooks[i]()
            A(f"  buffer_load_dwordx4 {vq(40+4*i)}, v4, {sq(srd)}, s40 offen{self.c['wofl'] if fl is None else fl}")
            if i < 31: A(f"  s_add_u32 s40, s40, {steps[i]}")
            landed = i - D + 1 if i >= D else 0
            if landed >= 8 * (done + 1):
                self.transpose_block(40 + 32 * done, 5, 6); done += 1
        while done < 4:
            A(f"  s_waitcnt vmcnt({8*(3-done)})")
            self.transpose_block(40 + 32 * done, 5, 6); done += 1

    def init_duty(self, wave):
        A = self.A
        l2 = self.lab("inited"); l3 = self.lab("noinit")
        A(f"  s_cmp_lg_u32 s{sWAVE}, {wave}\n  s_cbranch_scc1 {l3}")
        mark = len(self.L)
        A("  v_mov_b32 v8, -1\n  v_mov_b32 v9, -1\n  v_mov_b32 v10, -1\n  v_mov_b32 v11, -1")
        A(f"  s_lshl_b32 s60, s2, 12\n  s_add_u32 s60, s60, {WS_QIN}\n  v_add_u32 v5, s60, v{vL16}")
        for i in range(4): A(f"  global_store_dwordx4 v5, {vq(8)}, {sp(sWS)} offset:{1024*i} sc1")
        A(f"  s_cmp_eq_u32 s{sFFN}, 0\n  s_cbranch_scc1 {l2}\n  s_cmp_ge_u32 s{sSL}, 32\n  s_cbranch_scc1 {l2}")
        A(f"  s_lshl_b32 s60, s{sJ}, 5\n  s_add_u32 s60, s60, s{sSL}\n  s_mul_i32 s60, s60, 6144\n  s_add_u32 s60, s60, {WS_INBOX + 2048}\n  v_add_u32 v5, s60, v{vL16}")
        for i in range(6): A(f"  global_store_dwordx4 v5, {vq(8)}, {sp(sWS)} offset:{1024*i - 2048} sc1")
        A(f"  s_cmp_ge_u32 s{sSL}, 8\n  s_cbranch_scc1 {l2}")
        A("  v_mov_b32 v12, 0\n  v_mov_b32 v13, 0\n  v_mov_b32 v14, 0\n  v_mov_b32 v15, 0")
        A(f"  s_lshl_b32 s60, s{sJ}, 3\n  s_add_u32 s60, s60, s{sSL}\n  s_lshl_b32 s60, s60, 10\n  s_add_u32 s60, s60, {WS_ACC}\n  v_add_u32 v5, s60, v{vL16}")
        A(f"  global_store_dwordx4 v5, {vq(12)}, {sp(sWS)} sc1")
        if self.c["init_mode"] == "nostore": self.L[mark:] = []
        A(f"{l2}:\n  s_waitcnt vmcnt(0)")
        if self.c["init_mode"] != "noticket":
            A(f"  s_mov_b32 s65, 1\n  s_atomic_add s65, {sp(sDBG)}, 0x4 glc\n  s_waitcnt lgkmcnt(0)")
            A(f"  s_cmp_lg_u32 s65, 255\n  s_cbranch_scc1 {l3}\n  s_mov_b32 s65, 1\n  s_atomic_add s65, {sp(sDBG)}, 0x84")
        A(f"{l3}:")

    def streamer(self, D, tag):
        A = self.A; c = self.c
        T = lambda n: 40 + 4 * n
        issued = []
        def issue(name, srd, n):
            A(f"  buffer_load_dwordx4 {vq(T(n))}, v{vL16}, {sq(srd)}, s{sOFF + (n >> 2)} offen offset:{1024*(n&3)}{c['kfl']}")
            issued.append(name)
        def pace():
            n = len(issued)
            if n >= D: A(f"  s_waitcnt vmcnt({D-1})")
            if n >= D - 2 and n < 64:
                l = self.lab("pc")
                A(f"  s_bitcmp1_b64 s[58:59], {n}\n  s_cbranch_scc0 {l}\n  s_waitcnt vmcnt({D-2})")
                A(f"  s_bitcmp1_b64 s[14:15], {n}\n  s_cbranch_scc0 {l}\n  s_waitcnt vmcnt({D-3})\n{l}:")
        def waitfor(name):
            A(f"  s_waitcnt vmcnt({len(issued) - 1 - issued.index(name)})")
        lnp = self.lab("noprod"); lj = self.lab("joined")
        NJ = D + c["modlag"]
        A(f"  s_cmp_ge_u32 s57, {48 if (c['abl'] is None or 'mod' in c['abl']) else 0}\n  s_cbranch_scc1 {lnp}")
        self.mod_loads()
        A("  s_barrier")
        self.mod_compute_a()
        A(f"  s_waitcnt vmcnt({c['prio']})")
        E = 2 if c["fast0"] else 0
        for n in range(E, D - 1): issue(f"K{n}", SRDA, n)
        A(f"  s_load_dword s3, {sp(sDBG)}, 0x80")
        A(f"  s_waitcnt vmcnt({D-1-E})")
        self.stamp(9)
        self.mod_compute_b()
        for n in range(D - 1, NJ):
            A(f"  s_waitcnt vmcnt({D-1})"); issue(f"K{n}", SRDA, n)
        self.mod_compute_c()
        self.stamp(14)
        if c["wo_at"] is not None and c["wo_at"] < NJ: self.lds_inc(F_K)
        A(f"  s_branch {lj}\n{lnp}:")
        issued.clear()
        for n in range(32):
            if n == NJ: A(f"{lj}:")
            if n < E: issued.append(f"K{n}")
            else: pace(); issue(f"K{n}", SRDA, n)
            if n == 0 and not E: self.stamp(8)
            if n in (4, 8, 16, 24): self.stamp({4: 10, 8: 11, 16: 12, 24: 13}[n])
            if n == c["wo_at"]: self.lds_inc(F_K)
            if n == D - 3:
                A("  s_barrier")
                self.stamp(9)
            if n == NJ:
                A(f"  v_lshrrev_b32 v12, 1, v{vJ}\n  v_and_b32 v13, 1, v{vJ}\n  v_mov_b32 v14, 0xffff\n  v_lshlrev_b32 v13, 4, v13\n  v_lshlrev_b32 v14, v13, v14")
                for j in range(4):
                    A(f"  v_cmp_eq_u32 vcc, {j}, v12\n  v_cndmask_b32 v{4+j}, 0, v14, vcc")
        NV = c["NV"]
        slot = lambda n: T(32 - NV + n) if n < NV else T(n - NV)
        l = self.lab("nomodchk")
        A(f"  s_cmp_ge_u32 s57, {48 if (c['abl'] is None or 'mod' in c['abl']) else 0}\n  s_cbranch_scc1 {l}")
        self.lds_spin(F_MOD2, 8, 12)
        A(f"{l}:")
        for n in range(NV):
            if n % 4 == 0: A(f"  s_add_u32 m0, s56, {4096 * (n // 4)}")
            pace()
            A(f"  buffer_load_dwordx4 v{vL16}, {sq(SRDB)}, s{sOFF + (n >> 2)} offen offset:{1024*(n&3)}{c['vfl']} lds")
            issued.append(f"V{n}")
        self.stamp(1)
        self.lds_spin(F_Q2, 1, 12)
        self.stamp(2)
        A(f"  v_lshlrev_b32 v12, 4, v{vJ}\n  ds_read_b128 {vq(8)}, v12 offset:{L_QB}\n  s_waitcnt lgkmcnt(0)")
        def qk(G):
            z = 18 + G
            for r in range(4):
                for t in range(4):
                    A(f"  v_dot2_f32_bf16 v{12+t}, v{T(4*G+t)+r}, v{8+r}, {'0' if r == 0 else f'v{12+t}'}")
            A(f"  v_add_f32_dpp v16, v12, v12 row_ror:8 row_mask:0xf bank_mask:0x3")
            A(f"  v_add_f32_dpp v17, v14, v14 row_ror:8 row_mask:0xf bank_mask:0x3")
            A(f"  v_add_f32_dpp v16, v13, v13 row_ror:8 row_mask:0xf bank_mask:0xc")
            A(f"  v_add_f32_dpp v17, v15, v15 row_ror:8 row_mask:0xf bank_mask:0xc")
            A(f"  v_add_f32_dpp v{z}, v16, v16 row_shl:4 row_mask:0xf bank_mask:0x5")
            A(f"  v_add_f32_dpp v{z}, v17, v17 row_shr:4 row_mask:0xf bank_mask:0xa")
            A(f"  v_add_f32_dpp v{z}, v{z}, v{z} quad_perm:[1,0,3,2] row_mask:0xf bank_mask:0xf")
            A(f"  v_add_f32_dpp v{z}, v{z}, v{z} quad_perm:[2,3,0,1] row_mask:0xf bank_mask:0xf")
        nv = NV
        def nextv():
            nonlocal nv
            pace()
            A(f"  buffer_load_dwordx4 {vq(slot(nv))}, v{vL16}, {sq(SRDB)}, s{sOFF + (nv >> 2)} offen offset:{1024*(nv&3)}{c['vfl']}")
            issued.append(f"V{nv}"); nv += 1
        qk(0)
        groups = list(range(1, 7))
        per = -(-len(groups) // D)
        for i in range(D):
            nextv()
            for G in groups[i * per:(i + 1) * per]: qk(G)
        qk(7)
        if NV:
            A(f"  v_add_u32 v34, s56, v{vL16}")
            for n in range(NV): A(f"  ds_read_b128 {vq(slot(n))}, v34 offset:{1024*n}")
        A(f"  s_mov_b32 s60, {SCALE:#x}")
        for i in range(4): self.rnd2(18 + 2 * i, 19 + 2 * i, 12 + i)
        for i in range(8): A(f"  v_mul_f32 v{18+i}, s60, v{18+i}")
        for i in range(4): self.rnd2(18 + 2 * i, 19 + 2 * i, 12 + i)
        A("  v_max3_f32 v12, v18, v19, v20\n  v_max3_f32 v13, v21, v22, v23\n  v_max3_f32 v12, v12, v24, v25\n  v_max_f32 v12, v12, v13")
        self.wave_reduce("v_max_f32", [12], full=False)
        A("  v_readlane_b32 s61, v12, 63")
        for i in range(8): A(f"  v_subrev_f32 v{26+i}, s61, v{18+i}")
        for i in range(8): A(f"  v_mul_f32 v{26+i}, s{sLOG2E}, v{26+i}")
        for i in range(8): A(f"  v_exp_f32 v{26+i}, v{26+i}")
        A("  v_add_f32 v13, v26, v27\n  v_add_f32 v14, v28, v29\n  v_add_f32 v15, v30, v31\n  v_add_f32 v16, v32, v33")
        A("  v_add_f32 v13, v13, v14\n  v_add_f32 v15, v15, v16\n  v_add_f32 v13, v13, v15")
        self.wave_reduce("v_add_f32", [13], full=False)
        A(f"  s_lshl_b32 s60, s{sWAVE}, 3\n  v_mov_b32 v14, s60")
        A("  s_mov_b32 exec_lo, 0\n  s_mov_b32 exec_hi, 0x80000000")
        A(f"  ds_write_b64 v14, v[12:13] offset:{L_STATS}\n  ds_add_u32 v{vZ}, v{vONE} offset:{F_ST}")
        self.execall()
        nextv(); nextv()
        self.lds_spin(F_ST, 8, 12)
        A(f"  v_and_b32 v14, 7, v{vLANE}\n  v_lshlrev_b32 v14, 3, v14\n  ds_read_b64 v[12:13], v14 offset:{L_STATS}\n  s_waitcnt lgkmcnt(0)")
        red8 = ["quad_perm:[1,0,3,2]", "quad_perm:[2,3,0,1]", "row_ror:4"]
        A("  v_mov_b32 v14, v12")
        for s in red8: A(f"  v_max_f32_dpp v14, v14, v14 {s} row_mask:0xf bank_mask:0xf")
        A(f"  v_sub_f32 v12, v12, v14\n  v_mul_f32 v12, s{sLOG2E}, v12\n  v_exp_f32 v12, v12")
        for i in range(8): A(f"  v_sub_f32 v{26+i}, v{18+i}, v14")
        A("  v_mul_f32 v13, v13, v12")
        for i in range(8): A(f"  v_mul_f32 v{26+i}, s{sLOG2E}, v{26+i}")
        for s in red8: A(f"  v_add_f32_dpp v13, v13, v13 {s} row_mask:0xf bank_mask:0xf")
        for i in range(8): A(f"  v_exp_f32 v{26+i}, v{26+i}")
        A("  v_rcp_f32 v15, v13\n  v_fma_f32 v16, -v13, v15, 1.0\n  v_fmac_f32 v15, v16, v15")
        if c["dump"]:
            for i in range(8):
                A(f"  s_lshl_b32 s69, s2, 3\n  s_add_u32 s69, s69, s{sWAVE}\n  s_lshl_b32 s69, s69, 3\n  s_add_u32 s69, s69, {i}")
                self.dumpv(18 + i, 1, 0x100000, 69, 256, tmp=36)
        for i in range(8): A(f"  v_mul_f32 v{26+i}, v{26+i}, v15")
        for i in range(8): A(f"  v_cvt_pk_bf16_f32 v{18+i}, v{26+i}, v{26+i}")
        self.stamp(3)
        npv = 0
        def pv():
            nonlocal npv
            n = npv; npv += 1
            Ab = 26 + 4 * (n & 1)
            bank = [0, 2, 1, 3][n & 3]
            for j in range(4):
                A(f"  v_and_b32_dpp v{Ab+j}, v{18+(n>>2)}, v{4+j} row_newbcast:{4*bank} row_mask:0xf bank_mask:0xf")
            A(f"  v_mfma_f32_16x16x32_bf16 {vq(34)}, {vq(Ab)}, {vq(slot(n))}, {'0' if n == 0 else vq(34)}")
            if n == c["hint_at"] and "HT" not in c["xskip"]:
                l = self.lab("ht")
                self.exec1()
                A(f"  ds_add_rtn_u32 v12, v{vZ}, v{vONE} offset:{F_P}\n  s_mov_b32 s5, 0\n  s_waitcnt lgkmcnt(0)\n  v_readfirstlane_b32 s60, v12")
                self.execall()
                A(f"  s_cmp_lg_u32 s60, 7\n  s_cbranch_scc1 {l}")
                A(f"  s_lshl_b32 s60, s{sB}, 12\n  s_add_u32 s60, s60, {WS_ACC + 3072}\n  s_mov_b32 s5, 1\n  s_atomic_add s5, {sp(sWS)}, s60 glc\n{l}:")
            if n == c["hint_at"] + c["hint_lag"] and "HT" not in c["xskip"]:
                l = self.lab("hf")
                A(f"  s_waitcnt lgkmcnt(0)\n  s_cmp_lg_u32 s5, 31\n  s_cbranch_scc1 {l}")
                A(f"  s_mul_i32 s60, s{sB}, {64*128}\n  s_add_u32 s60, s60, {WS_HINT}\n  v_lshl_add_u32 v12, v{vLANE}, 7, s60")
                A(f"  s_mov_b32 exec_hi, 0x7ff\n  global_store_dword v12, v11, {sp(sWS)} sc1"); self.execall()
                A(f"{l}:")
        self.ffn_addr()
        self.lds_spin(F_C, 1, 12)
        A(f"  ds_read_b32 v11, v{vZ} offset:{F_N}")
        def vstep():
            nextv()
            landed = nv - D
            k = 0
            while npv < landed and k < 3:
                pv(); k += 1
        def finish():
            while npv < 32:
                waitfor(f"V{npv}"); pv()
            A(f"  v_lshlrev_b32 v12, 5, v{vJ}\n  v_lshl_add_u32 v13, v{vG}, 4, v12\n  s_lshl_b32 s60, s{sWAVE}, 9\n  v_add_u32 v12, s60, v13")
            A("  s_mov_b32 exec_hi, 0")
            if c["oadd"]:
                for r in range(4): A(f"  ds_add_f32 v13, v{34+r} offset:{L_OP + 4*r}")
            else:
                A(f"  ds_write_b128 v12, {vq(34)} offset:{L_OP}")
            self.lds_inc(F_O)
            self.stamp(5)
        NF0 = c["NF0"]
        while nv < 32 - NF0: vstep()
        assert npv >= NV or NF0 == 0, (npv, NV)
        lf = self.lab("vffn")
        if c["abl"] is None and "T" not in c["xskip"]: A(f"  s_cmp_lg_u32 s{sFFN}, 0\n  s_cbranch_scc1 {lf}")
        st = (nv, npv, list(issued))
        while nv < 32: vstep()
        self.stamp(4)
        finish()
        A("  s_branch L_exit")
        A(f"{lf}:")
        nv, npv = st[0], st[1]; issued[:] = st[2]
        nf = 0
        while nv < 32:
            waitfor(f"V{nv - (D - 1)}")
            A(f"  buffer_load_dwordx4 {vq(slot(nv))}, v{vL16}, {sq(SRDB)}, s{sOFF + (nv >> 2)} offen offset:{1024*(nv&3)}{c['vfl']}")
            issued.append(f"V{nv}"); nv += 1
            self.ffn_load(nf); issued.append(f"F{nf}"); nf += 1
            k = 0
            while npv < nv - D + 1 and k < 3:
                pv(); k += 1
        self.stamp(4)
        finish()
        FD = c["FD"]
        if c["fmode"] == "paced":
            while nf < 24:
                if nf >= FD: waitfor(f"F{nf - FD}")
                self.ffn_load(nf); issued.append(f"F{nf}"); nf += 1
                if nf == FD: self.ffn_lds_addr()
                if nf == 8 + FD: self.transpose_x2(120, 40)
                if nf == 16 + FD: self.stamp(15); self.transpose_x2(136, 56)
            return
        while nf < FD:
            self.ffn_load(nf); issued.append(f"F{nf}"); nf += 1
        self.lds_spin(F_A, 4, 12)
        self.stamp(10)
        while nf < 16:
            self.ffn_load(nf); issued.append(f"F{nf}"); nf += 1
        self.ffn_lds_addr()
        if c["stamps"]: waitfor("F15"); self.stamp(15)
        waitfor("F7"); self.transpose_x2(120, 40)
        if c["down_late"]: self.lds_spin(F_R, 2, 12)
        while nf < 24:
            self.ffn_load(nf); issued.append(f"F{nf}"); nf += 1
        waitfor("F15"); self.transpose_x2(136, 56)

    def ffn_addr(self):
        A = self.A
        A(f"  v_cmp_gt_u32 vcc, 8, v{vJ}")
        A(f"  v_mov_b32 v12, s{sU}\n  v_mov_b32 v13, s{sU+1}\n  v_mov_b32 v14, s{sG}\n  v_mov_b32 v15, s{sG+1}")
        A(f"  v_cndmask_b32 v8, v12, v14, vcc\n  v_cndmask_b32 v9, v13, v15, vcc")
        A(f"  s_lshr_b32 s16, s{sJ}, 1\n  s_and_b32 s17, s{sJ}, 1")
        A(f"  s_lshl_b32 s60, s{sWAVE}, 6\n  s_lshl_b32 s61, s16, 5\n  s_add_u32 s60, s60, s61\n  s_lshl_b32 s61, s17, 2\n  s_add_u32 s60, s60, s61")
        A(f"  v_lshl_add_u32 v12, v{vG}, 3, s60\n  v_mul_u32_u24 v12, 2752, v12")
        A(f"  v_and_b32 v13, 7, v{vJ}\n  v_lshl_add_u32 v12, v13, 3, v12\n  s_lshl_b32 s60, s{sSL}, 6\n  v_add_u32 v12, s60, v12\n  v_mov_b32 v13, 0")
        A(f"  v_lshl_add_u64 v[8:9], v[8:9], 0, v[12:13]")
        A(f"  s_mov_b32 s10, 5504\n  s_mov_b32 s11, 0")
        A(f"  s_cmp_eq_u32 s17, 0\n  s_cselect_b32 s60, 4, -4\n  s_cmp_eq_u32 s16, 0\n  s_cselect_b32 s61, 32, -32")
        A(f"  s_sub_i32 s61, s61, s60\n  s_sub_i32 s60, s60, 2\n  s_sub_i32 s61, s61, 2")
        A(f"  s_mul_i32 s12, s60, 2752\n  s_ashr_i32 s13, s12, 31\n  s_mul_i32 s6, s61, 2752\n  s_ashr_i32 s7, s6, 31")
        A(f"  s_mov_b32 s{SRDA}, s{sDN}\n  s_mov_b32 s{SRDA+1}, s{sDN+1}\n  s_mov_b32 s{SRDA+2}, 1409024\n  s_mov_b32 s{SRDA+3}, 0x20000")
        A(f"  v_lshlrev_b32 v10, 13, v{vG}\n  v_lshl_add_u32 v10, v{vJ}, 3, v10")
        A(f"  s_lshl_b32 s18, s{sSL}, 15\n  s_lshl_b32 s19, s{sWAVE}, 7\n  s_add_u32 s18, s18, s19\n  s_add_u32 s19, s18, 4096")

    def ffn_load(self, i):
        A = self.A
        if "W" in self.c["xskip"]:
            A(f"  global_load_dword v17, v{vZ}, {sp(sC)}"); return
        if i < 16:
            A(f"  global_load_dwordx2 {vp(120+2*i)}, v[8:9], off{' offset:2752' if i & 1 else ''}{self.c['ffnfl']}")
            if i & 1 and i < 15:
                step = "s[10:11]" if (i & 3) == 1 else ("s[6:7]" if i == 7 else "s[12:13]")
                A(f"  v_lshl_add_u64 v[8:9], v[8:9], 0, {step}")
        else:
            e = i - 16
            A(f"  buffer_load_dwordx2 {vp(152+2*e)}, v10, {sq(SRDA)}, s{18 + (e >> 2)} offen offset:{1024*(e&3)}{self.c['ffnfl']}")

    def ffn_lds_addr(self):
        A = self.A
        A(f"  v_and_b32 v12, 1, v{vJ}\n  v_lshlrev_b32 v112, 10, v12\n  v_lshl_add_u32 v112, v{vG}, 4, v112\n  s_lshl_b32 s60, s{sWAVE}, 7\n  v_add_u32 v112, s60, v112")
        A(f"  s_lshl_b32 s60, s16, 6\n  s_lshl_b32 s61, s17, 3\n  s_add_u32 s60, s60, s61\n  v_add_u32 v112, s60, v112")
        A(f"  v_xor_b32 v113, 8, v112\n  v_xor_b32 v114, 64, v112\n  v_xor_b32 v115, 0x48, v112")
        A(f"  v_lshlrev_b32 v116, 6, v12\n  v_lshl_add_u32 v116, v{vG}, 4, v116")
        A(f"  v_lshlrev_b32 v117, 5, v{vJ}\n  v_lshl_add_u32 v117, v{vG}, 3, v117\n  s_lshl_b32 s60, s{sWAVE}, 9\n  v_add_u32 v117, s60, v117")
        A(f"  s_lshl_b32 s60, s{sJ}, 5\n  s_lshl_b32 s61, s{sWAVE}, 2\n  s_add_u32 s60, s60, s61\n  v_add_u32 v118, s60, v{vG}\n  v_mul_u32_u24 v118, {INB}, v118")
        A(f"  s_lshl_b32 s60, s{sSL}, 8\n  s_add_u32 s60, s60, {WS_INBOX}\n  v_lshl_add_u32 v12, v{vJ}, 4, s60\n  v_add_u32 v118, v12, v118")

    def streamer_ffn(self):
        A = self.A
        self.stamp(6)
        A("  s_barrier")
        for i in range(4): A(f"  ds_read_b64 {vp(88+2*i)}, v{112+i} offset:{L_H2}")
        A("  s_waitcnt lgkmcnt(2)")
        for cc in range(4): A(f"  v_mfma_f32_16x16x32_bf16 {vq(96+4*cc)}, {vq(88)}, {vq(40+4*cc)}, 0")
        A("  s_waitcnt lgkmcnt(0)")
        for cc in range(4): A(f"  v_mfma_f32_16x16x32_bf16 {vq(96+4*cc)}, {vq(92)}, {vq(56+4*cc)}, {vq(96+4*cc)}")
        def select():
            for g in range(1, 4):
                for r in range(2):
                    A(f"  v_mov_b32_dpp v{96+r}, v{96+4*g+r} quad_perm:[0,1,2,3] row_mask:{1<<g:#x} bank_mask:0xf")
        select()
        A(f"  ds_write_b64 v117, v[96:97] offset:{L_GUP}\n  s_waitcnt lgkmcnt(0)")
        A("  s_barrier")
        A("  s_waitcnt vmcnt(0)"); self.transpose_x2(152, 72)
        A("  s_barrier")
        A(f"  ds_read_b128 {vq(88)}, v116 offset:{L_HH}\n  s_waitcnt lgkmcnt(0)")
        for cc in range(4): A(f"  v_mfma_f32_16x16x32_bf16 {vq(96+4*cc)}, {vq(88)}, {vq(72+4*cc)}, 0")
        select()
        A(f"  v_mov_b32 v98, v11\n  v_xor_b32 v99, {TAGX:#x}, v11")
        A(f"  global_store_dwordx4 v118, {vq(96)}, {sp(sWS)} sc1")
        self.stamp(7)
        A("  s_branch L_exit2")

    def mod_loads(self):
        A = self.A
        A(f"  v_and_b32 v4, 7, v{vJ}\n  v_lshrrev_b32 v5, 3, v{vJ}\n  v_lshlrev_b32 v6, 10, v4\n  v_lshl_add_u32 v6, v5, 6, v6\n  v_lshl_add_u32 v6, v{vG}, 4, v6")
        A(f"  s_lshl_b32 s60, s{sWAVE}, 7\n  v_add_u32 v6, s60, v6")
        A(f"  global_load_dwordx4 {vq(8)}, v6, {sp(sC)}")
        A(f"  v_lshlrev_b32 v7, 5, v5\n  v_lshl_add_u32 v7, v{vG}, 3, v7\n  v_mul_u32_u24 v7, 6144, v7\n  v_lshl_add_u32 v7, v4, 4, v7")
        A(f"  s_mul_i32 s60, s{sWAVE}, {64*6144}\n  s_lshl_b32 s61, s57, 7\n  s_add_u32 s60, s60, s61\n  v_add_u32 v7, s60, v7")
        for i in range(8):
            A(f"  global_load_dwordx4 {vq(136+4*i)}, v7, {sp(sWM)} nt")
            if i < 7: A(f"  v_add_u32 v7, 6144, v7")

    def mod_compute_a(self):
        A = self.A
        A(f"  s_lshl_b32 s60, s{sWAVE}, 12\n  s_add_u32 s60, s60, {L_V}\n  v_lshlrev_b32 v28, 11, v5\n  v_lshl_add_u32 v28, v4, 8, v28\n  v_and_b32 v29, 1, v{vG}\n  v_lshl_add_u32 v28, v29, 4, v28\n  v_add_u32 v28, s60, v28")
        A(f"  v_lshrrev_b32 v29, 1, v{vG}\n  v_cmp_eq_u32 s[68:69], v29, v5")
        A("  s_waitcnt vmcnt(8)")
        for i in range(4):
            r = 8 + i
            A(f"  v_lshlrev_b32 v16, 16, v{r}\n  v_and_b32 v17, 0xffff0000, v{r}")
            A(f"  v_mul_f32 v18, s{sLOG2E}, v16\n  v_mul_f32 v19, s{sLOG2E}, v17")
            A(f"  v_exp_f32 v18, -v18\n  v_exp_f32 v19, -v19")
            A(f"  v_add_f32 v18, 1.0, v18\n  v_add_f32 v19, 1.0, v19\n  v_rcp_f32 v18, v18\n  v_rcp_f32 v19, v19")
            A(f"  v_mul_f32 v16, v16, v18\n  v_mul_f32 v17, v17, v19\n  v_cvt_pk_bf16_f32 v{r}, v16, v17")

    def mod_compute_b(self):
        A = self.A
        self.transpose_block(136, 5, 6)
        for cc in range(8):
            A(f"  v_mfma_f32_16x16x32_bf16 {vq(104+4*cc)}, {vq(8)}, {vq(136+4*cc)}, 0")
        A("  s_mov_b64 exec, s[68:69]")
        for cc in range(8):
            A(f"  ds_write_b128 v28, {vq(104+4*cc)} offset:{32*cc}")
        self.lds_inc(F_MOD)

    def mod_compute_c(self):
        A = self.A
        A(f"  v_and_b32 v4, 31, v{vLANE}\n  v_lshrrev_b32 v5, 5, v{vLANE}\n  v_lshlrev_b32 v6, 6, v4\n  v_lshl_add_u32 v6, v5, 14, v6\n  s_lshl_b32 s60, s{sWAVE}, 2\n  s_add_u32 s60, s60, {L_V}\n  v_add_u32 v6, s60, v6")
        A(f"  s_mul_i32 s60, s{sWAVE}, 6144\n  s_lshl_b32 s61, s57, 7\n  s_add_u32 s60, s60, s61\n  s_add_u32 s60, s60, {WS_MOD}\n  v_lshl_add_u32 v5, v4, 2, s60")
        self.lds_spin(F_MOD, 8, 7)
        for part in range(8):
            if part: A(f"  v_add_u32 v6, 2048, v6")
            A(f"  ds_read2_b32 {vp(8+2*part)}, v6 offset0:0 offset1:8")
        l = self.lab("pollSN"); d = self.lab("gotSN")
        A(f"{l}:\n  s_cmp_lg_u32 s3, 0\n  s_cbranch_scc1 {d}")
        self.guard()
        A(f"  s_load_dword s3, {sp(sDBG)}, 0x80 glc\n  s_waitcnt lgkmcnt(0)\n  s_branch {l}\n{d}:")
        A("  s_waitcnt lgkmcnt(0)")
        self.lds_inc(F_MOD2)
        for part in range(1, 8):
            A(f"  v_add_f32 v8, v8, v{8+2*part}\n  v_add_f32 v9, v9, v{9+2*part}")
        A("  v_mov_b32 v10, v8\n  v_mov_b32 v11, v9\n  v_permlane32_swap_b32 v10, v8\n  v_permlane32_swap_b32 v11, v9\n  v_add_f32 v8, v8, v10\n  v_add_f32 v9, v9, v11")
        A(f"  v_cvt_pk_bf16_f32 v8, v8, v9\n  s_mov_b32 exec_hi, 0\n  global_store_dword v5, v8, {sp(sWS)} sc1")
        self.execall()
        A("  v_mov_b32 v9, v8")
        for st in ("quad_perm:[1,0,3,2]", "quad_perm:[2,3,0,1]", "row_ror:4", "row_ror:8"):
            A(f"  v_xor_b32_dpp v9, v9, v9 {st} row_mask:0xf bank_mask:0xf")
        A("  v_mov_b32 v10, v9\n  v_permlane16_swap_b32 v10, v9\n  v_bitop3_b32 v9, v9, v10, s3 bitop3:0x96")
        A(f"  s_lshl_b32 s60, s{sWAVE}, 8\n  s_lshl_b32 s61, s57, 2\n  s_add_u32 s60, s60, s61\n  s_add_u32 s60, s60, {WS_MARK}\n  v_mov_b32 v5, s60")
        self.exec1(); A(f"  global_store_dword v5, v9, {sp(sWS)} sc1"); self.execall()

    def check_lines(self, data, tags, tmp):
        A = self.A
        n = len(data)
        for k in range(n): A(f"  v_xor_b32 v{tmp+k}, v{data[k]}, v{data[k]+1}")
        for k in range(n): A(f"  v_bitop3_b32 v{tmp+k}, v{tmp+k}, v{data[k]+2}, v{data[k]+3} bitop3:0x96")
        for st in ("quad_perm:[1,0,3,2]", "quad_perm:[2,3,0,1]", "row_half_mirror"):
            for k in range(n): A(f"  v_xor_b32_dpp v{tmp+k}, v{tmp+k}, v{tmp+k} {st} row_mask:0xf bank_mask:0xf")
        for k in range(n): A(f"  v_bitop3_b32 v{tmp+k}, v{tmp+k}, v{tags[k]}, s44 bitop3:0x96")
        for k in range(1, n): A(f"  v_or_b32 v{tmp}, v{tmp}, v{tmp+k}")
        A(f"  v_cmp_ne_u32 vcc, 0, v{tmp}")

    def get_flag(self, tmp, off, sreg, expect=None):
        A = self.A
        l = self.lab("pollN"); d = self.lab("gotN")
        cmp = f"s_cmp_lg_u32 s{sreg}, 0" if expect is None else f"s_cmp_eq_u32 s{sreg}, {expect}"
        self.exec1()
        A(f"  global_load_dword v{tmp}, v{vZ}, {sp(sDBG)} offset:{off}")
        A(f"{l}:\n  s_waitcnt vmcnt(0)\n  v_readfirstlane_b32 s{sreg}, v{tmp}\n  {cmp}\n  s_cbranch_scc1 {d}")
        self.guard()
        A(f"  s_sleep {self.c['poll_sleep']}\n  global_load_dword v{tmp}, v{vZ}, {sp(sDBG)} offset:{off} sc1\n  s_branch {l}\n{d}:"); self.execall()
    def get_nonce(self, tmp): self.get_flag(tmp, 128, 44)

    def xor_rows(self, r, t):
        A = self.A
        A(f"  v_mov_b32 v{t}, v{r}\n  v_permlane16_swap_b32 v{t}, v{r}\n  v_xor_b32 v{r}, v{r}, v{t}")
        A(f"  v_mov_b32 v{t}, v{r}\n  v_permlane32_swap_b32 v{t}, v{r}\n  v_xor_b32 v{r}, v{r}, v{t}")

    def allreduce8(self, r, t, op="v_add_f32"):
        A = self.A
        A(f"  {op}_dpp v{r}, v{r}, v{r} row_ror:8 row_mask:0xf bank_mask:0xf")
        A(f"  v_mov_b32 v{t}, v{r}\n  v_permlane16_swap_b32 v{t}, v{r}\n  {op} v{r}, v{r}, v{t}")
        A(f"  v_mov_b32 v{t}, v{r}\n  v_permlane32_swap_b32 v{t}, v{r}\n  {op} v{r}, v{r}, v{t}")

    def wq_pattern(self):
        p = self.c["wqpat"]
        if p == 8: return 16, [8192 if i % 8 < 7 else 8192 * 25 for i in range(32)]
        if p == 32: return 18, [8192] * 32
        if p == 1: return 13, [8192 * 4] * 32
        if p == 33: return 18, [8192 * 5 if i % 8 < 7 else (1 << 32) - 8192 * 27 for i in range(32)]
        if p == 16: return 17, [8192 if i % 16 < 15 else 8192 * 49 for i in range(32)]

    def h0_issue(self, fl):
        A = self.A
        if "G" in self.c["xskip"]: return
        A(f"  global_load_dwordx4 {vq(28)}, v36, {sp(sWS)}{fl}\n  global_load_dwordx4 {vq(32)}, v36, {sp(sWS)} offset:1024{fl}")
        A(f"  global_load_dword v24, v37, {sp(sWS)}{fl}\n  global_load_dword v25, v37, {sp(sWS)} offset:32{fl}")

    def h0_finish(self):
        A = self.A; c = self.c
        l = self.lab("chkA"); d = self.lab("gotA")
        A(f"{l}:")
        self.check_lines([28, 32], [24, 25], 26)
        A(f"  s_cbranch_vccz {d}" if "G" not in c["xskip"] else f"  s_branch {d}")
        self.guard()
        A(f"  s_sleep {c['a_sleep']}")
        self.h0_issue(" sc1")
        A(f"  s_waitcnt vmcnt(0)\n  s_branch {l}\n{d}:")
        self.stamp(2); self.cstamp(14)
        self.unpack8(32, 16)
        for i in range(8): A(f"  v_add_f32 v{16+i}, 1.0, v{16+i}")
        self.rnd8(16, 24)
        for i in range(8): A(f"  v_mul_f32 v{8+i}, v{8+i}, v{16+i}")
        self.rnd8(8, 24)
        self.unpack8(28, 16)
        for i in range(8): A(f"  v_add_f32 v{8+i}, v{8+i}, v{16+i}")
        for i in range(4): A(f"  v_cvt_pk_bf16_f32 v{24+i}, v{8+2*i}, v{9+2*i}")
        A(f"  v_add_u32 v16, s47, v{vL16}\n  ds_write_b128 v16, {vq(24)} offset:{L_HBUF}")
        self.lds_inc(F_H)
        if c["dump"]:
            l = self.lab("nodh"); A(f"  s_cmp_lg_u32 s{sHW}, 0\n  s_cbranch_scc1 {l}"); self.dumpv(24, 4, 0x0, 2, 1024); A(f"{l}:")
        self.stamp(3)

    def helper(self):
        A = self.A; c = self.c
        A("L_helper:")
        self.stamp(8)
        A(f"  s_sub_u32 s{sHW}, s{sWAVE}, 8")
        l = self.lab("h3")
        A(f"  s_cmp_lg_u32 s{sHW}, 3\n  s_cbranch_scc1 {l}")
        A(f"  v_lshlrev_b32 v4, 2, v{vLANE}\n  ds_write_b32 v4, v{vZ}\n  ds_write_b32 v4, v{vZ} offset:{L_OP}\n  ds_write_b32 v4, v{vZ} offset:{L_OP+256}\n  s_waitcnt lgkmcnt(0)\n{l}:")
        A("  s_waitcnt lgkmcnt(0)")
        if c["tlb"]:
            l = self.lab("notlb")
            A(f"  s_cmp_lg_u32 s{sHW}, 2\n  s_cbranch_scc1 {l}")
            self.exec1()
            A(f"  s_lshl_b32 s60, s{sB}, 5\n  s_add_u32 s60, s60, s{sH}\n  s_lshl_b32 s60, s60, 20\n  s_add_u32 s60, s60, 0xC0000\n  v_mov_b32 v4, s60")
            A(f"  global_load_dword v40, v4, {sp(sV)} nt")
            A(f"  s_lshl_b32 s60, s2, 12\n  s_add_u32 s60, s60, {WS_QIN}\n  v_mov_b32 v5, s60\n  global_load_dword v41, v5, {sp(sWS)} nt")
            A(f"  s_lshl_b32 s60, s{sH}, 17\n  v_mov_b32 v6, s60\n  global_load_dword v42, v6, {sp(sWO)} nt")
            A(f"  s_lshl_b32 s60, s2, 2\n  s_and_b32 s60, s60, 0xfc\n  v_mov_b32 v7, s60")
            A(f"  global_load_dword v43, v7, {sp(sDBG)}")
            if c["tlb"] > 1:
                A(f"  s_lshl_b32 s60, s2, 7\n  v_mov_b32 v8, s60")
                for k, p in enumerate((sG, sU, sDN, sWS)): A(f"  global_load_dword v{44+k}, v8, {sp(p)} nt")
                A(f"  v_add_u32 v8, 0x100000, v8")
                for k, p in enumerate((sG, sU, sDN)): A(f"  global_load_dword v{48+k}, v8, {sp(p)} nt")
                A(f"  s_lshl_b32 s60, s2, 5\n  v_mov_b32 v9, s60\n  global_load_dword v52, v9, {sp(sOUT)} nt")
            self.execall()
            A(f"{l}:")
        if c["wqpf"]:
            l = self.lab("nowqpf")
            A(f"  s_cmp_lg_u32 s{sHW}, {c['wqpf']}\n  s_cbranch_scc1 {l}")
            A(f"  s_lshl_b32 s60, s{sIDX}, 17\n  s_lshl_b32 s61, s{sXCD}, 10\n  s_add_u32 s60, s60, s61\n  v_add_u32 v4, s60, v{vL16}")
            for i in range(16):
                if i >= c["wqpfD"]: A(f"  s_waitcnt vmcnt({c['wqpfD']-1})")
                A(f"  global_load_dword v35, v4, {sp(sWQ)}")
                if i < 15: A("  v_add_u32 v4, 8192, v4")
            A(f"{l}:")
        l = self.lab("nononce")
        A(f"  s_cmp_lg_u32 s2, 0\n  s_cbranch_scc1 {l}\n  s_cmp_lg_u32 s{sHW}, 1\n  s_cbranch_scc1 {l}")
        A(f"  s_memrealtime s[42:43]\n  s_waitcnt lgkmcnt(0)\n  s_or_b32 s42, s42, 1\n  v_mov_b32 v6, s42")
        self.exec1(); A(f"  global_store_dword v{vZ}, v6, {sp(sDBG)} offset:128 sc1"); self.execall()
        A(f"{l}:")
        A("  s_barrier")
        abl = c["abl"]
        if abl is not None:
            if "init" in abl: self.init_duty(11)
            l = self.lab("abl")
            A(f"  s_cmp_lg_u32 s{sHW}, 0\n  s_cbranch_scc1 {l}")
            self.lds_inc(F_Q2); self.lds_inc(F_C)
            if "h0l" in abl:
                A(f"  v_and_b32 v5, 7, v{vJ}\n  v_lshrrev_b32 v6, 3, v{vJ}\n  v_lshl_add_u32 v7, v{vG}, 1, v6\n  v_lshlrev_b32 v7, 4, v7\n  v_lshl_add_u32 v7, v5, 10, v7")
                if "nox" not in abl:
                    for i in range(8): A(f"  global_load_dwordx4 {vq(40+4*i)}, v7, {sp(sX)} offset:{128*i} nt")
                A(f"  s_mov_b32 s{SRDB}, s{sWQ}\n  s_mov_b32 s{SRDB+1}, s{sWQ+1}\n  s_mov_b32 s{SRDB+2}, 4194304\n  s_mov_b32 s{SRDB+3}, 0x20000")
                A(f"  v_lshlrev_b32 v7, 4, v{vJ}\n  v_lshl_add_u32 v7, v{vG}, 16, v7")
                A(f"  s_lshl_b32 s41, s{sB}, 19\n  s_lshl_b32 s60, s{sH}, 8\n  s_add_u32 s41, s41, s60")
                for i in range(0 if "nowq" in abl else 16):
                    A(f"  s_waitcnt vmcnt({c['ablD']})")
                    A(f"  buffer_load_dwordx4 {vq(104+4*i)}, v7, {sq(SRDB)}, s41 offen nt")
                    if i < 15: A(f"  s_add_u32 s41, s41, {8192 if i != 7 else 8192*25}")
                A("  s_waitcnt vmcnt(0)")
            if "poll" in abl:
                lp = self.lab("ablp")
                self.exec1()
                A(f"  s_mov_b32 s65, 12\n{lp}:\n  global_load_dwordx2 v[24:25], v{vZ}, {sp(sDBG)} offset:128 sc1\n  s_waitcnt vmcnt(0)\n  s_sleep {c['poll_sleep']}\n s_sub_u32 s65, s65, 1\n s_cmp_lg_u32 s65, 0\n s_cbranch_scc1 {lp}")
                self.execall()
            A(f"{l}:")
            if "wqr" in abl:
                A(f"  s_mov_b32 s{SRDA}, s{sWQ}\n  s_mov_b32 s{SRDA+1}, s{sWQ+1}\n  s_mov_b32 s{SRDA+2}, 4194304\n  s_mov_b32 s{SRDA+3}, 0x20000")
                sh, steps_ = self.wq_pattern()
                A(f"  v_lshlrev_b32 v4, 4, v{vJ}\n  v_lshl_add_u32 v4, v{vG}, {sh}, v4")
                A(f"  s_lshl_b32 s40, s{sHW}, 20\n  s_xor_b32 s60, s{sH}, {c['wqx']}\n  s_lshl_b32 s60, s60, 8\n  s_add_u32 s40, s40, s60")
                self.wload32(SRDA, steps_, c["HDO"], frac=c["HDOf"], fl=c["wqfl"])
                self.stamp(5)
            if "wqh" in abl:
                lq = self.lab("noq")
                A(f"  s_cmp_ge_u32 s{sB}, 4\n  s_cbranch_scc1 {lq}")
                A(f"  s_mov_b32 s{SRDA}, s{sWQ}\n  s_mov_b32 s{SRDA+1}, s{sWQ+1}\n  s_mov_b32 s{SRDA+2}, 4194304\n  s_mov_b32 s{SRDA+3}, 0x20000")
                A(f"  v_lshlrev_b32 v4, 4, v{vJ}\n  v_lshl_add_u32 v4, v{vG}, 17, v4")
                A(f"  s_lshl_b32 s40, s{sHW}, 19\n  s_and_b32 s60, s{sB}, 1\n  s_lshl_b32 s60, s60, 21\n  s_add_u32 s40, s40, s60\n  s_lshl_b32 s60, s{sH}, 8\n  s_add_u32 s40, s40, s60")
                for i in range(16):
                    if i >= c["HD"]: A(f"  s_waitcnt vmcnt({c['HD']-1})")
                    A(f"  buffer_load_dwordx4 {vq(104+4*i)}, v4, {sq(SRDA)}, s40 offen\n  s_add_u32 s40, s40, 8192")
                self.stamp(5)
                A(f"{lq}:")
            if "wqp" in abl:
                lq = self.lab("noq")
                A(f"  s_cmp_lt_u32 s57, 48\n  s_cbranch_scc1 {lq}")
                sh, steps_ = self.wq_pattern()
                A(f"  s_mov_b32 s{SRDA}, s{sWQ}\n  s_mov_b32 s{SRDA+1}, s{sWQ+1}\n  s_mov_b32 s{SRDA+2}, 4194304\n  s_mov_b32 s{SRDA+3}, 0x20000")
                A(f"  v_lshlrev_b32 v4, 4, v{vJ}\n  v_lshl_add_u32 v4, v{vG}, {sh}, v4")
                A(f"  s_lshl_b32 s40, s{sHW}, 20\n  s_lshl_b32 s60, s{sH}, 8\n  s_add_u32 s40, s40, s60")
                self.wload32(SRDA, steps_, c["HD"], frac=c["HDf"], fl=c["wqfl"])
                self.stamp(5)
                A(f"{lq}:")
            if "wo" in abl:
                A(f"  s_mov_b32 s{SRDA}, s{sWO}\n  s_mov_b32 s{SRDA+1}, s{sWO+1}\n  s_mov_b32 s{SRDA+2}, 4194304\n  s_mov_b32 s{SRDA+3}, 0x20000")
                A(f"  v_lshlrev_b32 v4, 4, v{vJ}\n  v_lshl_add_u32 v4, v{vG}, 13, v4")
                A(f"  s_lshl_b32 s40, s{sH}, 17\n  s_lshl_b32 s60, s{sHW}, 8\n  s_add_u32 s40, s40, s60")
                self.wload32(SRDA, [1024 if i % 8 < 7 else 1024 * 25 for i in range(32)], c["HDO"], frac=c["HDOf"])
                self.stamp(6)
            A("  s_branch L_exit")
        A(f"  s_mov_b32 s{SRDA}, s{sWQ}\n  s_mov_b32 s{SRDA+1}, s{sWQ+1}\n  s_mov_b32 s{SRDA+2}, 4194304\n  s_mov_b32 s{SRDA+3}, 0x20000")
        sh, steps = self.wq_pattern()
        A(f"  v_lshlrev_b32 v4, 4, v{vJ}\n  v_lshl_add_u32 v4, v{vG}, {sh}, v4")
        A(f"  s_lshl_b32 s40, s{sHW}, 20\n  s_lshl_b32 s60, s{sH}, 8\n  s_add_u32 s40, s40, s60")
        A(f"  s_cmp_lt_u32 s57, 48\n  s_cbranch_scc1 L_prodh")
        A(f"  s_cmp_eq_u32 s57, 64\n  s_cselect_b32 s45, 3, 0")
        A(f"  s_cmp_gt_u32 s{sHW}, s45\n  s_cbranch_scc1 L_wq123")
        A(f"  s_lshl_b32 s46, s{sHW}, 1\n  s_add_u32 s46, s46, s{sB}\n  s_lshl_b32 s47, s{sHW}, 10")
        A(f"  s_lshl_b32 s60, s46, 10\n  v_add_u32 v36, s60, v{vL16}\n  global_load_dwordx4 {vq(28)}, v36, {sp(sX)}")
        A(f"  s_mul_i32 s60, s46, 6144\n  s_add_u32 s60, s60, {WS_MOD}\n  v_add_u32 v36, s60, v{vL16}")
        A(f"  s_lshl_b32 s60, s46, 8\n  s_add_u32 s60, s60, {WS_MARK}\n  v_lshrrev_b32 v37, 3, v{vLANE}\n  v_lshl_add_u32 v37, v37, 2, s60")
        HD = c["HD"]
        def ln():
            self.unpack8(28, 8); self.layernorm(8, 16, 24)
            A(f"  s_load_dword s44, {sp(sDBG)}, 0x80")
        def gather():
            l = self.lab("pollHN"); d = self.lab("gotHN")
            A(f"  s_waitcnt lgkmcnt(0)\n{l}:\n  s_cmp_lg_u32 s44, 0\n  s_cbranch_scc1 {d}")
            self.guard()
            A(f"  s_load_dword s44, {sp(sDBG)}, 0x80 glc\n  s_waitcnt lgkmcnt(0)\n  s_branch {l}\n{d}:")
            self.stamp(1)
            self.h0_issue("")
            A(f"  v_mov_b32 v26, s44\n  ds_write_b32 v{vZ}, v26 offset:{F_N}")
        self.wload32(SRDA, steps, HD, frac=c["HDf"], hooks={HD + 3: ln, c["P0"]: gather, c["P0"] + HD: self.h0_finish}, fl=c["wqfl"])
        A("  s_branch L_q")
        A("L_wq123:")
        l = self.lab("nozero")
        A(f"  s_cmp_lg_u32 s{sHW}, 3\n  s_cbranch_scc1 {l}\n  s_cmp_lt_u32 s57, 256\n  s_cbranch_scc1 {l}\n  s_cmp_ge_u32 s57, {256+8}\n  s_cbranch_scc1 {l}")
        A("  v_mov_b32 v12, 0\n  v_mov_b32 v13, 0\n  v_mov_b32 v14, 0\n  v_mov_b32 v15, 0")
        A(f"  s_sub_u32 s61, s57, 256\n  s_lshl_b32 s60, s61, 12\n  s_add_u32 s60, s60, {WS_ACC}\n  v_add_u32 v5, s60, v{vL16}")
        for i in range(4): A(f"  global_store_dwordx4 v5, {vq(12)}, {sp(sWS)} offset:{1024*i} sc1")
        A(f"{l}:")
        def ticket():
            l = self.lab("notick"); lp = self.lab("pollZN"); d = self.lab("gotZN")
            A(f"  s_cmp_lg_u32 s{sHW}, 3\n  s_cbranch_scc1 {l}\n  s_cmp_lt_u32 s57, 256\n  s_cbranch_scc1 {l}\n  s_cmp_ge_u32 s57, {256+8}\n  s_cbranch_scc1 {l}")
            A(f"  s_mov_b32 s65, 1\n  s_atomic_add s65, {sp(sDBG)}, 0x8 glc\n  s_waitcnt lgkmcnt(0)\n  s_cmp_lg_u32 s65, 7\n  s_cbranch_scc1 {l}")
            A(f"{lp}:\n  s_load_dword s44, {sp(sDBG)}, 0x80 glc\n  s_waitcnt lgkmcnt(0)\n  s_cmp_lg_u32 s44, 0\n  s_cbranch_scc1 {d}")
            self.guard()
            A(f"  s_branch {lp}\n{d}:\n  v_mov_b32 v7, s44")
            self.exec1(); A(f"  global_store_dword v{vZ}, v7, {sp(sDBG)} offset:136 sc1"); self.execall()
            A(f"{l}:")
        self.wload32(SRDA, steps, HD, frac=c["HDf"], hooks={HD + 2: ticket}, fl=c["wqfl"])
        A("L_q:")
        self.stamp(4)
        A("  s_add_u32 s61, s45, 1")
        self.lds_spin(F_H, "s61", 7)
        p32 = c["wqpat"] == 32
        A(f"  s_lshl_b32 s60, s{sHW}, 8\n  v_lshl_add_u32 v4, v{vG}, {6 if p32 else 4}, s60\n  v_and_b32 v5, s45, v{vJ}\n  v_lshl_add_u32 v4, v5, 10, v4")
        for m in range(4): A(f"  ds_read_b128 {vq(8+4*m)}, v4 offset:{L_HBUF + (16 if p32 else 64)*m}")
        A(f"  ds_read_b32 v7, v{vZ} offset:{F_N}")
        A(f"  s_lshl_b32 s60, s{sHW}, 11\n  v_lshl_add_u32 v5, v{vJ}, 5, s60\n  v_add_u32 v5, {L_QP}, v5")
        A(f"  s_mov_b32 s{SRDA}, s{sWO}\n  s_mov_b32 s{SRDA+1}, s{sWO+1}\n  s_mov_b32 s{SRDA+2}, 4194304\n  s_mov_b32 s{SRDA+3}, 0x20000")
        A(f"  s_lshl_b32 s40, s{sH}, 17\n  s_lshl_b32 s60, s{sHW}, 8\n  s_add_u32 s40, s40, s60")
        A("  s_waitcnt lgkmcnt(0)")
        A(f"  v_readfirstlane_b32 s44, v7\n  v_lshlrev_b32 v4, 4, v{vJ}\n  v_lshl_add_u32 v4, v{vG}, 13, v4")
        res = self.gemv32()
        A("  s_mov_b64 exec, 0xffff")
        for cc in range(0, 8, 2):
            A(f"  ds_write2_b32 v5, v{res[cc]}, v{res[cc+1]} offset0:{cc} offset1:{cc+1}")
        l = self.lab("onerow")
        A(f"  s_cmp_eq_u32 s45, 0\n  s_cbranch_scc1 {l}")
        for r in range(1, 4):
            A(f"  v_add_u32 v5, 512, v5")
            for cc in range(0, 8, 2):
                A(f"  ds_write2_b32 v5, v{res[cc]+r}, v{res[cc+1]+r} offset0:{cc} offset1:{cc+1}")
        A(f"{l}:")
        self.exec1()
        A(f"  ds_add_rtn_u32 v7, v{vZ}, v{vONE} offset:{F_Q}\n  s_waitcnt lgkmcnt(0)\n  v_readfirstlane_b32 s60, v7")
        self.execall()
        l = self.lab("notlastq")
        A(f"  s_cmp_lg_u32 s60, 3\n  s_cbranch_scc1 {l}")
        A(f"  v_lshlrev_b32 v6, 3, v{vLANE}")
        for part in range(4): A(f"  ds_read_b64 {vp(8+2*part)}, v6 offset:{L_QP + 2048*part}")
        A(f"  s_lshl_b32 s60, s2, 9\n  s_add_u32 s60, s60, {WS_QIN}\n  v_add_u32 v7, s60, v6")
        A(f"  v_lshlrev_b32 v5, 2, v{vLANE}\n  s_waitcnt lgkmcnt(0)")
        A("  v_add_f32 v8, v8, v10\n  v_add_f32 v9, v9, v11\n  v_add_f32 v12, v12, v14\n  v_add_f32 v13, v13, v15\n  v_add_f32 v8, v8, v12\n  v_add_f32 v9, v9, v13")
        A(f"  v_cvt_pk_bf16_f32 v8, v8, v9\n  ds_write_b32 v5, v8 offset:{L_QB}")
        l2 = self.lab("nodon")
        A(f"  s_cmp_eq_u32 s45, 0\n  s_cbranch_scc1 {l2}")
        for r in range(1, 4):
            for part in range(4): A(f"  ds_read_b64 {vp(16+2*part)}, v6 offset:{L_QP + 2048*part + 512*r}")
            A(f"  v_add_u32 v7, {64*512}, v7\n  s_waitcnt lgkmcnt(0)")
            A("  v_add_f32 v16, v16, v18\n  v_add_f32 v17, v17, v19\n  v_add_f32 v20, v20, v22\n  v_add_f32 v21, v21, v23\n  v_add_f32 v16, v16, v20\n  v_add_f32 v17, v17, v21")
            A(f"  v_cvt_pk_bf16_f32 v{24+2*r}, v16, v17\n  v_mov_b32 v{25+2*r}, s44\n  global_store_dwordx2 v7, {vp(24+2*r)}, {sp(sWS)} sc1")
        A(f"{l2}:")
        self.lds_inc(F_Q2)
        self.dumpv(8, 1, 0x80000, 2, 256)
        A(f"{l}:")
        self.stamp(5)
        steps = [1024 if i % 8 < 7 else 1024 * 25 for i in range(32)]
        def chkB():
            l0 = self.lab("noB")
            A(f"  s_cmp_lg_u32 s{sHW}, 1\n  s_cbranch_scc1 {l0}")
            if "B" not in c["xskip"]: self.get_flag(7, 136, 45, expect="s44")
            self.lds_inc(F_C)
            A(f"{l0}:")
        def rowloads(fl):
            for i in range(4): A(f"  global_load_dwordx4 {vq(12+4*i)}, v36, {sp(sWS)} offset:{1024*i}{fl}")
            for i in range(4): A(f"  global_load_dword v{28+i}, v37, {sp(sWS)} offset:{32*i}{fl}")
        def rows_a():
            if "R" in c["xskip"]: return
            l = self.lab("norows")
            A(f"  s_cmp_ge_u32 s{sHW}, 2\n  s_cbranch_scc1 {l}\n  s_cmp_eq_u32 s{sFFN}, 0\n  s_cbranch_scc1 {l}")
            A(f"  s_lshl_b32 s41, s{sJ}, 1\n  s_add_u32 s41, s41, s{sHW}")
            A(f"  s_mul_i32 s60, s41, 6144\n  s_add_u32 s60, s60, {WS_MOD + 2048}\n  v_add_u32 v36, s60, v{vL16}")
            A(f"  s_lshl_b32 s60, s41, 8\n  s_add_u32 s60, s60, {WS_MARK + 64}\n  v_lshrrev_b32 v37, 3, v{vLANE}\n  v_lshl_add_u32 v37, v37, 2, s60")
            rowloads("")
            A(f"  s_lshl_b32 s60, s41, 10\n  v_add_u32 v7, s60, v{vL16}\n  global_load_dwordx4 {vq(8)}, v7, {sp(sX)}")
            A(f"{l}:")
        def rows_b():
            if "R" in c["xskip"]: return
            l = self.lab("norows2")
            A(f"  s_cmp_ge_u32 s{sHW}, 2\n  s_cbranch_scc1 {l}\n  s_cmp_eq_u32 s{sFFN}, 0\n  s_cbranch_scc1 {l}")
            lr = self.lab("chkR"); dr = self.lab("gotR")
            A(f"{lr}:")
            self.check_lines([12, 16, 20, 24], [28, 29, 30, 31], 32)
            A(f"  s_cbranch_vccz {dr}")
            self.guard()
            rowloads(" sc1")
            A(f"  s_waitcnt vmcnt(0)\n  s_branch {lr}\n{dr}:")
            self.unpack8(20, 28)
            for i in range(8): A(f"  v_add_f32 v{28+i}, 1.0, v{28+i}")
            for i in range(4): A(f"  v_cvt_pk_bf16_f32 v{20+i}, v{28+2*i}, v{29+2*i}")
            self.lds_spin(F_Q2, 1, 7)
            A(f"  s_mul_i32 s60, s{sHW}, 5120\n  v_add_u32 v36, s60, v{vL16}")
            for i in range(5): A(f"  ds_write_b128 v36, {vq(8+4*i)} offset:{L_ROWS + 1024*i}")
            A(f"{l}:")
        self.wload32(SRDA, steps, c["HDO"], frac=c["HDOf"], hooks={c["PB"]: chkB, c["PR"]: rows_a, c["PR"] + c["HDO"]: rows_b})
        A("  s_branch L_wo")
        A("L_prodh:")
        A(f"  s_mov_b32 s{SRDA}, s{sWO}\n  s_mov_b32 s{SRDA+1}, s{sWO+1}\n  s_mov_b32 s{SRDA+2}, 4194304\n  s_mov_b32 s{SRDA+3}, 0x20000")
        A(f"  s_lshl_b32 s40, s{sH}, 17\n  s_lshl_b32 s60, s{sHW}, 8\n  s_add_u32 s40, s40, s60")
        A(f"  v_lshlrev_b32 v4, 4, v{vJ}\n  v_lshl_add_u32 v4, v{vG}, 13, v4")
        def recvq():
            l0 = self.lab("noq"); l = self.lab("pollPN"); d = self.lab("gotPN"); lq = self.lab("pollPQ"); dq = self.lab("gotPQ")
            A(f"  s_cmp_lg_u32 s{sHW}, 0\n  s_cbranch_scc1 {l0}")
            A(f"  s_load_dword s44, {sp(sDBG)}, 0x80\n  s_waitcnt lgkmcnt(0)\n{l}:\n  s_cmp_lg_u32 s44, 0\n  s_cbranch_scc1 {d}")
            self.guard()
            A(f"  s_load_dword s44, {sp(sDBG)}, 0x80 glc\n  s_waitcnt lgkmcnt(0)\n  s_branch {l}\n{d}:")
            A(f"  v_mov_b32 v26, s44\n  ds_write_b32 v{vZ}, v26 offset:{F_N}")
            A(f"  s_lshl_b32 s60, s2, 9\n  s_add_u32 s60, s60, {WS_QIN}\n  v_lshl_add_u32 v7, v{vLANE}, 3, s60\n  s_add_u32 s61, s60, 4")
            if "PQ" in c["xskip"]: A(f"  s_branch {dq}")
            A(f"{lq}:\n  s_load_dword s60, {sp(sWS)}, s61 glc\n  s_waitcnt lgkmcnt(0)\n  s_cmp_eq_u32 s60, s44\n  s_cbranch_scc0 {lq}_r")
            A(f"  global_load_dwordx2 v[8:9], v7, {sp(sWS)} sc1\n  s_waitcnt vmcnt(0)\n  v_cmp_ne_u32 vcc, s44, v9\n  s_cbranch_vccz {dq}")
            A(f"{lq}_r:")
            self.guard()
            A(f"  s_sleep {c['q_sleep']}\n  s_branch {lq}\n{dq}:")
            A(f"  v_lshlrev_b32 v7, 2, v{vLANE}\n  ds_write_b32 v7, v8 offset:{L_QB}")
            self.lds_inc(F_Q2)
            self.stamp(5)
            self.dumpv(8, 1, 0x80000, 2, 256)
            self.get_flag(7, 136, 45, expect="s44")
            self.lds_inc(F_C)
            A(f"{l0}:")
        self.wload32(SRDA, steps, c["HDP"], frac=c["HDPf"], hooks={c["PQ"]: recvq})
        self.lds_spin(F_Q2, 1, 7, sleep=4)
        A(f"  ds_read_b32 v7, v{vZ} offset:{F_N}\n  s_waitcnt lgkmcnt(0)\n  v_readfirstlane_b32 s44, v7")
        A("L_wo:")
        A("L_wodone:")
        if c["pref2"] and "T" not in c["xskip"]:
            self.prefetch(wait=True)
        self.lds_spin(F_C, 1, 7, sleep=4)
        A(f"  v_lshlrev_b32 v28, {5 if c['oadd'] else 3}, v{vG if c['oadd'] else vLANE}")
        A(f"  s_lshl_b32 s60, s{sHW}, 8\n  v_lshl_add_u32 v29, v{vLANE}, 2, s60\n  v_lshl_add_u32 v30, v{vG}, 4, s60")
        A(f"  v_lshrrev_b32 v31, 2, v{vLANE}\n  v_and_b32 v32, 3, v{vLANE}\n  v_lshl_add_u32 v31, v32, 4, v31\n  v_lshlrev_b32 v36, 2, v31")
        A(f"  s_lshl_b32 s61, s{sB}, 12\n  s_add_u32 s61, s61, {WS_ACC}\n  v_add_u32 v32, s61, v29")
        A(f"  v_mov_b32 v33, 1.0\n  v_mov_b32 v34, 1.0\n  v_mov_b32 v35, 1.0\n  v_mov_b32_dpp v35, v{vZ} quad_perm:[0,1,2,3] row_mask:0x4 bank_mask:0xf")
        self.stamp(6)
        if "T" in c["xskip"]: A("  s_branch L_exit")
        self.lds_spin(F_O, 8, 7, sleep=c['o_sleep'])
        self.stamp(9)
        if c["oadd"]:
            rd = lambda q, off: A(f"  ds_read_b128 {vq(q)}, v28 offset:{L_OP + off}")
            rd(12, 0); rd(16, 16); rd(20, 128); rd(24, 144); rd(4, 256)
            A(f"  s_waitcnt lgkmcnt(3)")
            for i in range(4): A(f"  v_cvt_pk_bf16_f32 v{8+i}, v{12+2*i}, v{13+2*i}")
            A(f"  s_waitcnt lgkmcnt(1)")
            for i in range(4): A(f"  v_cvt_pk_bf16_f32 v{12+i}, v{20+2*i}, v{21+2*i}")
            rd(16, 272); rd(20, 384); rd(24, 400)
            self.stamp(10)
            res = [28] + [40 + 4 * k for k in range(7)]
            for m, Am in enumerate((8, 12, 4, 16)):
                for cc in range(8):
                    A(f"  v_mfma_f32_16x16x32_bf16 {vq(res[cc])}, {vq(Am)}, {vq(40+32*m+4*cc)}, {'0' if m == 0 else vq(res[cc])}")
                    if m == 0 and cc == 5:
                        A(f"  s_waitcnt lgkmcnt(0)")
                        A("  v_cvt_pk_bf16_f32 v4, v4, v5\n  v_cvt_pk_bf16_f32 v5, v6, v7\n  v_cvt_pk_bf16_f32 v6, v16, v17\n  v_cvt_pk_bf16_f32 v7, v18, v19")
                    if m == 1 and cc == 1:
                        for i in range(4): A(f"  v_cvt_pk_bf16_f32 v{16+i}, v{20+2*i}, v{21+2*i}")
        else:
            for part in range(8): A(f"  ds_read_b64 {vp(8+2*part)}, v28 offset:{L_OP + 512*part}")
            A("  s_waitcnt lgkmcnt(4)")
            A("  v_add_f32 v8, v8, v10\n  v_add_f32 v9, v9, v11\n  v_add_f32 v12, v12, v14\n  v_add_f32 v13, v13, v15\n  v_add_f32 v8, v8, v12\n  v_add_f32 v9, v9, v13")
            A("  s_waitcnt lgkmcnt(0)")
            A("  v_add_f32 v16, v16, v18\n  v_add_f32 v17, v17, v19\n  v_add_f32 v20, v20, v22\n  v_add_f32 v21, v21, v23\n  v_add_f32 v16, v16, v20\n  v_add_f32 v17, v17, v21")
            A(f"  v_add_f32 v8, v8, v16\n  v_add_f32 v9, v9, v17\n  v_cvt_pk_bf16_f32 v7, v8, v9\n  ds_write_b32 v29, v7 offset:{L_OB}")
            for m in range(4): A(f"  ds_read_b128 {vq(8+4*m)}, v30 offset:{L_OB + 64*m}")
            A("  s_waitcnt lgkmcnt(0)")
            self.stamp(10)
            res = self.gemv32()
        self.stamp(11)
        for k in range(3):
            for g in range(3):
                if 3 * k + g < 8:
                    A(f"  v_mov_b32_dpp v{33+k}, v{res[3*k+g]} quad_perm:[0,1,2,3] row_mask:{1<<g:#x} bank_mask:0xf")
        for k in range(3): A(f"  ds_bpermute_b32 v{33+k}, v36, v{33+k}")
        for k in range(3):
            A(f"  s_waitcnt lgkmcnt({2-k})\n  global_atomic_add_f32 v32, v{33+k}, {sp(sWS)} offset:{1024*k}")
        if c["gate"]:
            l = self.lab("g01")
            A(f"  s_cmp_lt_u32 s{sHW}, 2\n  s_cbranch_scc1 {l}")
            self.lds_inc(F_A)
            A(f"{l}:")
        else:
            self.lds_inc(F_A)
        self.stamp(7)
        if c["dump"] and not c["oadd"]:
            l = self.lab("nodumpo")
            A(f"  s_cmp_lg_u32 s{sHW}, 3\n  s_cbranch_scc1 {l}")
            self.dumpv(7, 1, 0x90000, 2, 256)
            A(f"{l}:")
        A(f"  s_cmp_ge_u32 s{sHW}, 2\n  s_cbranch_scc1 L_exit\n  s_cmp_lt_u32 s57, 100\n  s_cbranch_scc1 L_recv\n  s_cmp_eq_u32 s{sFFN}, 0\n  s_cbranch_scc1 L_exit")
        A(f"  s_lshl_b32 s45, s{sJ}, 1\n  s_add_u32 s45, s45, s{sHW}\n  s_lshl_b32 s45, s45, 6\n  s_add_u32 s45, s45, s{sSL}\n  s_lshl_b32 s45, s45, 7\n  s_add_u32 s45, s45, {WS_HINT}")
        A(f"  s_load_dword s61, {sp(sWS)}, s45 glc")
        A(f"  s_mul_i32 s60, s{sHW}, 5120\n  v_add_u32 v4, s60, v{vL16}")
        for i in range(4): A(f"  ds_read_b128 {vq(72+4*i)}, v4 offset:{L_ROWS + 1024*i}")
        A(f"  s_lshl_b32 s41, s{sJ}, 1\n  s_add_u32 s41, s41, s{sHW}\n  s_lshl_b32 s41, s41, 12\n  s_add_u32 s41, s41, {WS_ACC}\n  v_add_u32 v5, s41, v{vL16}\n  v_mov_b32 v6, s41")
        A(f"  s_lshl_b32 s60, s{sHW}, 10\n  v_add_u32 v4, s60, v{vL16}")
        A("  s_waitcnt lgkmcnt(0)")
        self.unpack8(72, 88); self.unpack8(76, 96); self.unpack8(80, 104); self.unpack8(84, 112)
        lp = self.lab("pollH"); ld = self.lab("gotH")
        if c["gate"]:
            lg = self.lab("late")
            A(f"  s_cmp_eq_u32 s61, s44\n  s_cbranch_scc1 {lg}")
            self.lds_inc(F_A)
        A(f"{lp}:\n  s_load_dword s60, {sp(sWS)}, s45 glc\n  s_waitcnt lgkmcnt(0)\n  s_cmp_eq_u32 s60, s44\n  s_cbranch_scc1 {ld}")
        self.guard()
        if c["hint_sleep"]: A(f"  s_sleep {c['hint_sleep']}")
        A(f"  s_branch {lp}\n{ld}:")
        if c["read_delay"]: A(f"  s_sleep {c['read_delay']}")
        if c["gate"]:
            for k in range(3): A(f"  global_load_dwordx4 {vq(120+4*k)}, v5, {sp(sWS)} offset:{1024*k} sc1")
            lj = self.lab("gj")
            A(f"  s_branch {lj}\n{lg}:")
            for k in range(3): A(f"  global_load_dwordx4 {vq(120+4*k)}, v5, {sp(sWS)} offset:{1024*k} sc1")
            self.lds_inc(F_A)
            A(f"{lj}:")
        self.stamp(1)
        self.cstamp(13)
        lp = self.lab("pollF"); ld = self.lab("gotF")
        if not c["gate"]:
            for k in range(3): A(f"  global_load_dwordx4 {vq(120+4*k)}, v5, {sp(sWS)} offset:{1024*k} sc1")
        self.lds_inc(F_R)
        A(f"{lp}:")
        A("  s_waitcnt vmcnt(0)\n  v_min3_f32 v7, v123, v127, v131\n  v_cmp_neq_f32 vcc, 0x42000000, v7")
        A(f"  s_cbranch_vccz {ld}")
        self.guard()
        if c["full_sleep"]: A(f"  s_sleep {c['full_sleep']}")
        for k in range(3): A(f"  global_load_dwordx4 {vq(120+4*k)}, v5, {sp(sWS)} offset:{1024*k} sc1")
        A(f"  s_branch {lp}\n{ld}:")
        self.stamp(2)
        self.cstamp(15)
        src = [120, 121, 122, 124, 125, 126, 128, 129]
        for i in range(4): A(f"  v_cvt_pk_bf16_f32 v{16+i}, v{src[2*i]}, v{src[2*i+1]}")
        self.unpack8(16, 8)
        self.pk8("mul", 8, 96, 8)
        self.rnd8(8, 16)
        self.pk8("add", 8, 88, 8)
        for i in range(4): A(f"  v_cvt_pk_bf16_f32 v{28+i}, v{8+2*i}, v{9+2*i}")
        self.unpack8(28, 8)
        self.layernorm(8, 16, 24)
        self.pk8("mul", 8, 8, 112)
        self.rnd8(8, 16)
        self.pk8("add", 8, 8, 104)
        for i in range(4): A(f"  v_cvt_pk_bf16_f32 v{24+i}, v{8+2*i}, v{9+2*i}")
        A(f"  ds_write_b128 v4, {vq(24)} offset:{L_H2}\n  ds_write_b128 v4, {vq(28)} offset:{L_X1}\n  s_waitcnt lgkmcnt(0)")
        self.stamp(3)
        A("  s_barrier")
        if c["dump"]:
            A(f"  s_lshl_b32 s69, s2, 1\n  s_add_u32 s69, s69, s{sHW}")
            self.dumpv(24, 4, 0x600000, 69, 1024)
        A(f"  s_cmp_eq_u32 s{sHW}, 0\n  s_cbranch_scc1 L_reducer")
        A(f"  s_cmp_ge_u32 s{sSL}, 32\n  s_cbranch_scc1 {'L_h1bar' if c['stamps'] else 'L_exit'}")
        A(f"  s_lshr_b32 s60, s{sSL}, 2\n  s_lshl_b32 s60, s60, 7\n  s_and_b32 s61, s{sSL}, 3\n  s_lshl_b32 s61, s61, 1\n  s_add_u32 s60, s60, s61\n  v_lshl_add_u32 v4, v{vJ}, 3, s60")
        A(f"  ds_read_u16 v8, v4 offset:{L_X1}\n  ds_read_u16 v9, v4 offset:{L_ROWS + 4096}\n  ds_read_u16 v12, v4 offset:{L_X1 + 1024}\n  ds_read_u16 v13, v4 offset:{L_ROWS + 4096 + 5120}")
        A(f"  s_lshl_b32 s60, s{sJ}, 5\n  s_add_u32 s60, s60, s{sSL}\n  s_mul_i32 s60, s60, {INB}\n  s_add_u32 s60, s60, {WS_INBOX + 43*256}\n  v_lshl_add_u32 v5, v{vJ}, 4, s60")
        A(f"  s_xor_b32 s45, s44, {TAGX:#x}\n  v_mov_b32 v10, s44\n  v_mov_b32 v11, s45\n  s_mov_b64 exec, 0xffff\n  s_waitcnt lgkmcnt(0)\n  v_lshl_or_b32 v8, v12, 16, v8\n  v_lshl_or_b32 v9, v13, 16, v9")
        A(f"  global_store_dwordx4 v5, {vq(8)}, {sp(sWS)} sc1")
        A("L_h1bar:\n  s_barrier\n  s_barrier\n  s_branch L_exit2")
        A("L_recv:")
        A(f"  s_lshl_b32 s41, s{sB}, 3\n  s_add_u32 s41, s41, s{sXCD}\n  s_lshl_b32 s41, s41, 1\n  s_add_u32 s41, s41, s{sHW}")
        A(f"  s_mul_i32 s46, s41, {INB}\n  s_add_u32 s46, s46, {WS_INBOX}\n  s_add_u32 s47, s46, {43*256 + 8}\n  s_add_u32 s60, s46, 4096\n  v_add_u32 v5, s60, v{vL16}\n  v_add_u32 v7, 4096, v5")
        A(f"  s_lshr_b32 s60, s41, 5\n  s_lshl_b32 s60, s60, 11\n  s_bfe_u32 s61, s41, 0x30002\n  s_lshl_b32 s61, s61, 7\n  s_add_u32 s60, s60, s61\n  s_and_b32 s61, s41, 3\n  s_lshl_b32 s61, s61, 1\n  s_add_u32 s60, s60, s61")
        A(f"  v_and_b32 v4, 1, v{vG}\n  v_lshl_add_u32 v6, v{vJ}, 3, s60\n  v_lshl_add_u32 v6, v4, 10, v6\n  v_lshlrev_b32 v4, 4, v4\n  v_sub_u32 v4, 16, v4")
        A(f"  s_xor_b32 s45, s44, {TAGX:#x}")
        lp = self.lab("pollX"); ld = self.lab("gotX")
        A(f"{lp}:\n  s_load_dword s60, {sp(sWS)}, s47 glc\n  s_waitcnt lgkmcnt(0)\n  s_cmp_eq_u32 s60, s44\n  s_cbranch_scc1 {ld}")
        self.guard()
        A(f"  s_sleep {c['rx_sleep']}\n  s_branch {lp}\n{ld}:")
        self.stamp(1)
        if c["rx_delay"]: A(f"  s_sleep {c['rx_delay']}")
        lp = self.lab("pollI"); ld = self.lab("gotI")
        A(f"{lp}:")
        for i in range(11): A(f"  global_load_dwordx4 {vq(44+4*i)}, v{5 if i < 8 else 7}, {sp(sWS)} offset:{1024*i - (4096 if i < 8 else 8192)} sc1")
        for i in range(11):
            q = 44 + 4 * i
            A(f"  s_waitcnt vmcnt({10-i})")
            if i == 0:
                A(f"  v_xor_b32 v10, s44, v{q+2}\n  v_xor_b32 v11, s45, v{q+3}\n  v_mov_b32 v8, v{q}\n  v_mov_b32 v9, v{q+1}")
            else:
                A(f"  v_bitop3_b32 v10, v10, v{q+2}, s44 bitop3:0xf6\n  v_bitop3_b32 v11, v11, v{q+3}, s45 bitop3:0xf6")
                if i < 10: A(f"  v_add_f32 v8, v8, v{q}\n  v_add_f32 v9, v9, v{q+1}")
                else: A(f"  v_add_f32_dpp v8, v{q}, v8 quad_perm:[0,1,2,3] row_mask:0x7 bank_mask:0xf\n  v_add_f32_dpp v9, v{q+1}, v9 quad_perm:[0,1,2,3] row_mask:0x7 bank_mask:0xf")
        A(f"  v_or_b32 v10, v10, v11\n  v_cmp_ne_u32 vcc, 0, v10\n  s_cbranch_vccz {ld}")
        self.guard()
        A(f"  s_branch {lp}\n{ld}:")
        self.stamp(4); self.cstamp(15)
        A("  v_mov_b32 v12, v84\n  v_mov_b32 v13, v85\n  v_permlane16_swap_b32 v8, v9\n  v_permlane32_swap_b32 v12, v84\n  v_permlane32_swap_b32 v13, v85")
        A("  v_add_f32 v8, v8, v9\n  v_mov_b32 v12, v84\n  v_mov_b32 v13, v85\n  v_mov_b32 v9, v8")
        A("  v_permlane16_swap_b32 v12, v84\n  v_permlane16_swap_b32 v13, v85\n  v_permlane32_swap_b32 v9, v8")
        A("  v_lshlrev_b32 v84, v4, v84\n  v_lshlrev_b32 v85, v4, v85\n  v_add_f32 v8, v8, v9\n  v_and_b32 v84, 0xffff0000, v84\n  v_and_b32 v85, 0xffff0000, v85")
        self.rnd1(8, 9)
        A("  v_mul_f32 v8, v85, v8"); self.rnd1(8, 9)
        A("  v_add_f32 v8, v84, v8\n  v_cvt_pk_bf16_f32 v8, v8, v8")
        A("  s_mov_b32 exec_hi, 0")
        A(f"  global_store_short v6, v8, {sp(sOUT)}{c['outfl']}")
        self.execall()
        self.stamp(5)
        A("  s_branch L_exit")
        A("L_reducer:")
        A(f"  v_lshlrev_b32 v4, 2, v{vLANE}\n  v_add_u32 v4, {L_GUP}, v4")
        A(f"  v_and_b32 v5, 1, v{vLANE}\n  v_lshlrev_b32 v5, 6, v5\n  v_and_b32 v6, 62, v{vLANE}\n  v_add_u32 v5, v5, v6")
        A("  s_barrier")
        for w in range(8): A(f"  ds_read2st64_b32 {vp(8+2*w)}, v4 offset0:{2*w} offset1:{2*w+1}")
        A("  s_waitcnt lgkmcnt(4)")
        A("  v_add_f32 v8, v8, v10\n  v_add_f32 v9, v9, v11\n  v_add_f32 v12, v12, v14\n  v_add_f32 v13, v13, v15\n  v_add_f32 v8, v8, v12\n  v_add_f32 v9, v9, v13")
        A("  s_waitcnt lgkmcnt(0)")
        A("  v_add_f32 v16, v16, v18\n  v_add_f32 v17, v17, v19\n  v_add_f32 v20, v20, v22\n  v_add_f32 v21, v21, v23\n  v_add_f32 v16, v16, v20\n  v_add_f32 v17, v17, v21")
        A("  v_add_f32 v8, v8, v16\n  v_add_f32 v9, v9, v17")
        self.rnd2(8, 9, 10)
        A(f"  v_mul_f32 v8, s{sLOG2E}, v8\n  v_exp_f32 v8, -v8\n  v_add_f32 v8, 1.0, v8\n  v_rcp_f32 v8, v8")
        self.rnd1(8, 10)
        A(f"  v_mul_f32 v8, v8, v9\n  v_cvt_pk_bf16_f32 v8, v8, v8\n  ds_write_b16 v5, v8 offset:{L_HH}\n  s_waitcnt lgkmcnt(0)")
        A("  s_barrier")
        self.stamp(4)
        self.dumpv(8, 1, 0xE0000, 2, 256)
        A("  s_branch L_exit2")

    def build(self):
        A = self.A; c = self.c
        A(f"{KNAME}:")
        if c["stamps"]:
            for k in range(1, 16): A(f"  s_mov_b64 s[{70+2*k}:{71+2*k}], 0")
        self.stamp(0)
        A("  s_cmp_ge_u32 s2, 256\n  s_cbranch_scc1 L_end")
        A("  s_load_dwordx16 s[4:19], s[0:1], 0\n  s_load_dwordx8 s[20:27], s[0:1], 64\n  s_load_dwordx4 s[28:31], s[0:1], 96")
        A(f"  v_lshrrev_b32 v2, 6, v0\n  v_and_b32 v0, 63, v0\n  v_readfirstlane_b32 s{sWAVE}, v2")
        A(f"  v_lshlrev_b32 v{vL16}, 4, v0")
        A(f"  s_and_b32 s{sXCD}, s2, 7\n  s_lshr_b32 s{sIDX}, s2, 3\n  s_lshr_b32 s{sB}, s{sIDX}, 2\n  s_and_b32 s{sJ}, s{sIDX}, 3")
        if c["hmap"] == 0: A(f"  s_lshl_b32 s{sH}, s{sXCD}, 2\n  s_add_u32 s{sH}, s{sH}, s{sJ}")
        elif c["hmap"] == 1: A(f"  s_lshl_b32 s{sH}, s{sJ}, 3\n  s_add_u32 s{sH}, s{sH}, s{sXCD}")
        elif c["hmap"] == 2: A(f"  s_lshr_b32 s{sH}, s{sXCD}, 1\n  s_lshl_b32 s{sH}, s{sH}, 3\n  s_and_b32 s60, s{sXCD}, 1\n  s_add_u32 s{sH}, s{sH}, s60\n  s_lshl_b32 s60, s{sJ}, 1\n  s_add_u32 s{sH}, s{sH}, s60")
        elif c["hmap"] == 3: A(f"  s_lshl_b32 s{sH}, s{sXCD}, 2\n  s_add_u32 s60, s{sJ}, 1\n  s_and_b32 s60, s60, 3\n  s_add_u32 s{sH}, s{sH}, s60")
        if c["fast0"]:
            l = self.lab("nofast")
            A(f"  s_cmp_ge_u32 s{sWAVE}, 8\n  s_cbranch_scc1 {l}")
            A(f"  s_lshl_b32 s56, s{sB}, 5\n  s_add_u32 s56, s56, s{sH}\n  s_lshl_b32 s56, s56, 20\n  s_add_u32 s56, s56, 0xC0000\n  s_lshl_b32 s{sOFF}, s{sWAVE}, {10 + c['gran'].bit_length() - 1}")
            A(f"  s_mov_b32 s{SRDA+2}, 0x40000\n  s_mov_b32 s{SRDA+3}, 0x20000\n  s_waitcnt lgkmcnt(0)\n  s_add_u32 s{SRDA}, s{sK}, s56\n  s_addc_u32 s{SRDA+1}, s{sK+1}, 0")
            for n in range(2): A(f"  buffer_load_dwordx4 {vq(40+4*n)}, v{vL16}, {sq(SRDA)}, s{sOFF} offen offset:{1024*n}{c['kfl']}")
            self.stamp(8)
            A(f"{l}:")
        if c["pref"]: self.prefetch()
        A(f"  v_mov_b32 v36, 0\n  v_mov_b32 v37, 0\n  v_lshrrev_b32 v{vG}, 4, v0\n  v_and_b32 v{vJ}, 15, v0\n  v_mov_b32 v{vZ}, 0\n  v_mov_b32 v{vONE}, 1")
        A(f"  s_mul_i32 s65, s{sB}, 3\n  s_add_u32 s65, s65, s{sJ}\n  s_lshr_b32 s60, s{sJ}, 1\n  s_sub_u32 s65, s65, s60\n  s_lshr_b32 s61, s65, 2")
        A(f"  s_lshr_b32 s60, s{sXCD}, 1\n  s_mul_i32 s{sSL}, s{sXCD}, 5\n  s_add_u32 s{sSL}, s{sSL}, s60\n  s_add_u32 s{sSL}, s{sSL}, s61\n  s_sub_u32 s{sSL}, s{sSL}, 1")
        A(f"  s_and_b32 s60, s{sXCD}, 1\n  s_add_u32 s60, s60, 5\n  s_cmp_lt_u32 s61, s60\n  s_cselect_b32 s{sFFN}, 1, 0\n  s_cmp_lt_u32 s{sSL}, 43\n  s_cselect_b32 s{sFFN}, s{sFFN}, 0")
        A(f"  s_add_u32 s60, s{sXCD}, 256\n  s_cmp_eq_u32 s{sIDX}, 28\n  s_cselect_b32 s57, s60, 100")
        A(f"  s_sub_u32 s60, s{sB}, {c['prodb']}\n  s_lshl_b32 s60, s60, 3\n  s_add_u32 s60, s60, s{sXCD}\n  s_cmp_lt_u32 s{sB}, {c['prodb']}\n  s_cselect_b32 s60, 64, s60")
        A(f"  s_cmp_eq_u32 s{sJ}, 1\n  s_cselect_b32 s57, s60, s57\n  s_cselect_b32 s{sFFN}, 0, s{sFFN}\n  s_and_b32 s{sJ}, s65, 3")
        if "M" in c["xskip"]: A("  s_cmp_lt_u32 s57, 48\n  s_cselect_b32 s57, 100, s57")
        if "F" in c["xskip"]: A("  s_cmp_ge_u32 s57, 256\n  s_cselect_b32 s57, 100, s57")
        A(f"  s_mov_b32 s{sGUARD}, 0\n  s_mov_b32 s{sPLO}, 0x05040100\n  s_mov_b32 s{sPHI}, 0x07060302\n  s_mov_b32 s{sLOG2E}, {LOG2E:#x}")
        A(f"  s_cmp_ge_u32 s{sWAVE}, 8\n  s_cbranch_scc1 L_helper")
        A(f"  s_lshl_b32 s60, s{sB}, 5\n  s_add_u32 s60, s60, s{sH}\n  s_lshl_b32 s60, s60, 20\n  s_add_u32 s60, s60, 0xC0000")
        A(f"  s_lshl_b32 s{sOFF}, s{sWAVE}, {10 + c['gran'].bit_length() - 1}\n  s_mul_i32 s56, s{sWAVE}, {c['NV']*1024}\n  s_add_u32 s56, s56, {L_V}")
        gr = c["gran"] // 4
        for G in range(1, 8): A(f"  s_add_u32 s{sOFF+G}, s{sOFF}, {(G // gr) * 32768 * gr + (G % gr) * 4096}")
        A(f"  s_mov_b32 s{SRDA+2}, 0x40000\n  s_mov_b32 s{SRDA+3}, 0x20000\n  s_mov_b32 s{SRDB+2}, 0x40000\n  s_mov_b32 s{SRDB+3}, 0x20000")
        A("  s_waitcnt lgkmcnt(0)")
        D = c["D"]
        d2 = c["depth2"] or c["depth"]
        def mask(f1, f2):
            m = 0; acc = 0.5
            for n in range(64):
                acc += f1 if n < c["dsw"] else f2
                if acc >= 1.0 - 1e-9:
                    acc -= 1.0; m |= 1 << n
            return m
        m1 = [mask(min(1.0, D - a), min(1.0, D - b)) for a, b in zip(c["depth"], d2)]
        m2 = [mask(max(0.0, D - 1 - a), max(0.0, D - 1 - b)) & x for a, b, x in zip(c["depth"], d2, m1)]
        for reg, ms in ((58, m1), (14, m2)):
            for half in range(2):
                w = [(m >> (32 * half)) & 0xffffffff for m in ms]
                A(f"  s_bitcmp1_b32 s{sXCD}, 0\n  s_mov_b32 s{reg+half}, {w[0]:#x}\n  s_cselect_b32 s{reg+half}, {w[1]:#x}, s{reg+half}")
                A(f"  s_cmp_lt_u32 s57, 48\n  s_cselect_b32 s{reg+half}, {w[2]:#x}, s{reg+half}\n  s_cmp_eq_u32 s57, 64\n  s_cselect_b32 s{reg+half}, {w[3]:#x}, s{reg+half}")
        A("  s_waitcnt lgkmcnt(0)")
        A(f"  s_add_u32 s{SRDA}, s{sK}, s60\n  s_addc_u32 s{SRDA+1}, s{sK+1}, 0\n  s_add_u32 s{SRDB}, s{sV}, s60\n  s_addc_u32 s{SRDB+1}, s{sV+1}, 0")
        if c["Dodd"]:
            A(f"  s_bitcmp1_b32 s{sXCD}, 0\n  s_cbranch_scc1 L_sodd")
        self.streamer(c["D"], "e")
        if c["Dodd"]:
            A("L_sodd:")
            self.streamer(c["Dodd"], "o")
        self.streamer_ffn()
        self.helper()
        A("L_exit2:")
        if c["stamps"]: A("  s_sleep 100")
        A("L_exit:")
        if c["stamps"]:
            A("  s_mov_b64 exec, 1\n  s_waitcnt lgkmcnt(0)")
            A(f"  s_mul_i32 s60, s2, 12\n  s_add_u32 s60, s60, s{sWAVE}\n  s_lshl_b32 s60, s60, 7\n  s_add_u32 s60, s60, {WS_STAMP}\n  v_mov_b32 v4, s60")
            for k in range(16):
                A(f"  v_mov_b32 v6, s{70+2*k}\n  v_mov_b32 v7, s{71+2*k}\n  global_store_dwordx2 v4, v[6:7], {sp(sWS)} offset:{8*k}")
        A("L_end:\n  s_endpgm")
        body = fix_hazards(self.L)
        nk = c["prefkib"]
        out = HEADER + f"; @launch grid=(256,1,1) block=(768,1,1) lds={L_V + 8192*c['NV']}\n"
        out += '.amdgcn_target "amdgcn-amd-amdhsa--gfx950"\n.text\n'
        out += f".globl {KNAME}\n.p2align 8\n.type {KNAME},@function\n" + body
        out += f"  .fill 64, 4, 0xbf800000\nL_codeend:\n.if (L_codeend - {KNAME}) < {nk*1024}\n.fill ({nk*1024} - (L_codeend - {KNAME}))/4, 4, 0xbf800000\n.endif\n"
        out += f""".section .rodata,"a"
.p2align 6
.amdhsa_kernel {KNAME}
  .amdhsa_next_free_vgpr 168
  .amdhsa_next_free_sgpr 102
  .amdhsa_accum_offset 168
  .amdhsa_group_segment_fixed_size 0
  .amdhsa_kernarg_size 112
  .amdhsa_user_sgpr_count 2
  .amdhsa_user_sgpr_kernarg_segment_ptr 1
  .amdhsa_system_sgpr_workgroup_id_x 1
  .amdhsa_float_denorm_mode_32 3
.end_amdhsa_kernel
"""
        return out

def gen(**cfg): return Gen(**cfg).build()

if __name__ == "__main__":
    import json
    cfg = json.loads(sys.argv[2]) if len(sys.argv) > 2 else {}
    open(sys.argv[1], "w").write(gen(**cfg))
```

```python
import sys, struct
from asmlib import fix_hazards

KNAME = "adaLN_cond__sliding_block_cached__glu_gated_glu__decode_kernel"

HEADER = """; Kernarg layout for this problem (112 bytes, ptrs only, base s[0:1]):
;   offset  32: d_in[4] A_wo  shape=(4096, 512) dtype=bfloat16
;   offset  80: d_in[10] w_mod  shape=(512, 3072) dtype=bfloat16
;   offset 104: d_ws      workspace
; One workgroup per (batch, head): 8 streamer waves (K/V -> registers, QK, softmax, PV, then the GLU slice)
; and 4 helper waves (adaLN modulation, q projection, output projection, cross-workgroup hand-offs).
"""

WS_MOD, WS_STAT, WS_MARK, WS_ACC, WS_QTAG, WS_HINT, WS_INBOX, WS_QIN, WS_DUMP, WS_STAMP = 0x0, 0xC000, 0xD000, 0x10000, 0x18000, 0x20000, 0x40000, 0x1C0000, 0x200000, 0x20000000
F_H, F_Q, F_Q2, F_ST, F_O, F_MOD, F_MOD2, F_C, F_P, F_W, F_K, F_A, F_R, F_N = 0, 4, 8, 12, 16, 20, 24, 28, 32, 36, 40, 44, 48, 52
L_STATS, L_QB, L_OP, L_OB, L_HBUF, L_QP = 0x40, 0x100, 0x200, 0x1200, 0x1600, 0x2600
L_MODR, L_H2, L_X1, L_GUP, L_HH, L_MODP = 0x2200, 0x4A00, 0x5200, 0x5A00, 0x6A00, 0x7000
L_V = 0x7000
L_ROWS = 0x1600

def f2u(x): return struct.unpack("<I", struct.pack("<f", x))[0]
INB = 11264
TAGX = 0x5bd1e995
LOG2E = f2u(1.4426950408889634)
SCALE = f2u(128 ** -0.5)

sX, sK, sV, sWQ, sWO, sG, sU, sDN, sC, sWM, sOUT, sDBG, sWS = 4, 6, 8, 10, 12, 16, 18, 20, 22, 24, 26, 28, 30
sWAVE, sXCD, sIDX, sB, sJ, sH, sSL, sFFN = 32, 33, 34, 35, 36, 37, 38, 39
sOFF = 40
SRDA, SRDB = 48, 52
sPLO, sPHI, sGUARD, sLOG2E = 62, 63, 64, 66
sHW = 67
vLANE, vL16, vG, vJ, vZ, vONE = 0, 1, 2, 3, 38, 39

def sp(r): return f"s[{r}:{r+1}]"
def sq(r): return f"s[{r}:{r+3}]"
def vp(r): return f"v[{r}:{r+1}]"
def vq(r): return f"v[{r}:{r+3}]"

class Gen:
    def __init__(self, **cfg):
        self.c = dict(D=4, HD=4, HD0=6, HDO=4, P0=24, stamps=False, dump=False, guard=200000, pref=False,
                      inbox_sleep=6, hint_sleep=2, Dodd=None, pref2=False, prefwg=16, prefkib=26, hint_at=28, poll_sleep=8, NV=16, depth=[3.15, 3.15, 4, 3.15], FD=4, NF0=0, HDOf=4, H0D=4, H0D1=2, prio=2, nowo=False, wo_at=None, abl=None, init_mode='full', ablD=7, H0DQ=18, H0pre=True, fillD=4, nofill=False, q_sleep0=8, q_sleep=8, a_sleep=16, xskip=[], plainA=True, down_late=False, wofl='', tlb=0, modlag=2, HDf=4, ffnfl='', HDP=2, HDPf=1.75, PQ=24, kfl=' nt', vfl=' nt', hmap=0, wqpat=32, full_sleep=0, hint_lag=3, PB=2, fmode='flood', PR=8, wqpf=3, wqpfD=16, wqfl='', wqx=0, sprint=64, prodb=2, o_sleep=1, depth2=[3.15, 3.15, 3.6, 3.6], dsw=34, gran=4, outfl=' sc1', hprio=2, sprio=1, sprio_off=31, dry=True, prefidx=13, gate=False, oadd=False, fast0=True, read_delay=16, barD=False, rx_sleep=8, rx_delay=16)
        self.c.update(cfg)
        self.L = []
        self.nlab = 0

    def A(self, s): self.L.append(s)
    def lab(self, base):
        self.nlab += 1
        return f"L_{base}_{self.nlab}"
    def stamp(self, k):
        if self.c["stamps"]: self.A(f"  s_memrealtime s[{70+2*k}:{71+2*k}]")
    def cstamp(self, k):
        if self.c["stamps"]:
            self.A(f"  s_waitcnt lgkmcnt(0)\n  s_mul_i32 s{70+2*k}, s{sGUARD}, 100\n  s_add_u32 s{70+2*k}, s{70+2*k}, s70\n  s_addc_u32 s{71+2*k}, s71, 0")
    def guard(self):
        if self.c["guard"]:
            self.A(f"  s_add_u32 s{sGUARD}, s{sGUARD}, 1\n  s_cmp_gt_u32 s{sGUARD}, {self.c['guard']}\n  s_cbranch_scc1 L_exit")
    def exec1(self): self.A("  s_mov_b64 exec, 1")
    def execall(self): self.A("  s_mov_b64 exec, -1")

    def lds_spin(self, off, target, tmp, sleep=1):
        l = self.lab("spin"); d = self.lab("spun")
        self.A(f"{l}:")
        self.A(f"  ds_read_b32 v{tmp}, v{vZ} offset:{off}\n  s_waitcnt lgkmcnt(0)\n  v_readfirstlane_b32 s60, v{tmp}")
        self.A(f"  s_cmp_ge_u32 s60, {target}\n  s_cbranch_scc1 {d}")
        self.guard()
        if sleep: self.A(f"  s_sleep {sleep}")
        self.A(f"  s_branch {l}\n{d}:")

    def lds_inc(self, off):
        self.exec1(); self.A(f"  ds_add_u32 v{vZ}, v{vONE} offset:{off}"); self.execall()

    def dumpv(self, reg, n, base, sidx=None, stride=0, tmp=36):
        if not self.c["dump"]: return
        A = self.A
        if sidx is not None:
            A(f"  s_mul_i32 s68, s{sidx}, {stride}\n  s_add_u32 s68, s68, {WS_DUMP + base}")
        else:
            A(f"  s_mov_b32 s68, {WS_DUMP + base}")
        A(f"  v_lshlrev_b32 v{tmp}, {dict([(1,2),(2,3),(4,4)])[n]}, v{vLANE}\n  v_add_u32 v{tmp}, s68, v{tmp}")
        op = {1: "dword", 2: "dwordx2", 4: "dwordx4"}[n]
        r = f"v{reg}" if n == 1 else f"v[{reg}:{reg+n-1}]"
        A(f"  global_store_{op} v{tmp}, {r}, {sp(sWS)}\n  s_waitcnt vmcnt(0)")

    def prefetch(self, wait=False):
        A = self.A
        l = self.lab("nopref"); lp = self.lab("pref"); pc = self.lab("pc")
        A(f"  s_cmp_lg_u32 s{sWAVE}, 11\n  s_cbranch_scc1 {l}\n  s_cmp_lg_u32 s{sIDX}, {self.c['prefidx']}\n  s_cbranch_scc1 {l}")
        A(f"  s_getpc_b64 s[60:61]\n{pc}:\n  s_sub_u32 s60, s60, {pc}-{KNAME}\n  s_subb_u32 s61, s61, 0\n  v_mov_b32 v36, v{vL16}\n  s_mov_b32 s65, {self.c['prefkib']}")
        A(f"{lp}:\n  global_load_dword v35, v36, s[60:61]\n  v_add_u32 v36, 1024, v36\n  s_sub_u32 s65, s65, 1\n  s_cmp_lg_u32 s65, 0\n  s_cbranch_scc1 {lp}")
        if wait: A("  s_waitcnt vmcnt(0)")
        A(f"{l}:")

    def rnd1(self, x, t):
        self.A(f"  v_cvt_pk_bf16_f32 v{t}, v{x}, v{x}\n  v_and_b32 v{x}, 0xffff0000, v{t}")
    def rnd2(self, x, y, t):
        self.A(f"  v_cvt_pk_bf16_f32 v{t}, v{x}, v{y}\n  v_lshlrev_b32 v{x}, 16, v{t}\n  v_and_b32 v{y}, 0xffff0000, v{t}")
    def rnd8(self, X, T):
        for i in range(4): self.A(f"  v_cvt_pk_bf16_f32 v{T+i}, v{X+2*i}, v{X+2*i+1}")
        self.unpack8(T, X)
    def unpack8(self, src, dst):
        for i in range(4):
            self.A(f"  v_lshlrev_b32 v{dst+2*i}, 16, v{src+i}\n  v_and_b32 v{dst+2*i+1}, 0xffff0000, v{src+i}")
    def wave_reduce(self, op, regs, full=True):
        steps = []
        if full: steps += ["quad_perm:[1,0,3,2] row_mask:0xf bank_mask:0xf", "quad_perm:[2,3,0,1] row_mask:0xf bank_mask:0xf"]
        steps += ["row_ror:4 row_mask:0xf bank_mask:0xf", "row_ror:8 row_mask:0xf bank_mask:0xf",
                  "row_bcast:15 row_mask:0xa bank_mask:0xf", "row_bcast:31 row_mask:0xc bank_mask:0xf"]
        for s in steps:
            for r in regs: self.A(f"  {op}_dpp v{r}, v{r}, v{r} {s}")

    def pk8(self, op, D, Aq, Bq):
        for i in range(0, 8, 2): self.A(f"  v_pk_{op}_f32 {vp(D+i)}, {vp(Aq+i)}, {vp(Bq+i)}")

    def layernorm(self, X, T, S):
        A = self.A
        A(f"  v_readfirstlane_b32 s60, v{X}")
        for i in range(0, 8, 2): A(f"  v_pk_add_f32 {vp(T+i)}, {vp(X+i)}, s[60:61] op_sel_hi:[1,0] neg_lo:[0,1] neg_hi:[0,1]")
        A(f"  v_pk_add_f32 {vp(S)}, {vp(T)}, {vp(T+2)}\n  v_pk_mul_f32 {vp(S+2)}, {vp(T)}, {vp(T)}")
        A(f"  v_pk_add_f32 {vp(S)}, {vp(S)}, {vp(T+4)}\n  v_pk_fma_f32 {vp(S+2)}, {vp(T+2)}, {vp(T+2)}, {vp(S+2)}")
        A(f"  v_pk_add_f32 {vp(S)}, {vp(S)}, {vp(T+6)}\n  v_pk_fma_f32 {vp(S+2)}, {vp(T+4)}, {vp(T+4)}, {vp(S+2)}")
        A(f"  v_add_f32 v{S}, v{S}, v{S+1}\n  v_pk_fma_f32 {vp(S+2)}, {vp(T+6)}, {vp(T+6)}, {vp(S+2)}\n  v_add_f32 v{S+1}, v{S+2}, v{S+3}")
        self.wave_reduce("v_add_f32", [S, S + 1])
        A(f"  v_readlane_b32 s61, v{S}, 63\n  v_readlane_b32 s65, v{S+1}, 63")
        inv = f2u(1.0 / 512)
        A(f"  v_mov_b32 v{S+2}, {inv:#x}")
        A(f"  v_mul_f32 v{S}, s61, v{S+2}\n  v_mul_f32 v{S+1}, s65, v{S+2}")
        A(f"  v_fma_f32 v{S+1}, -v{S}, v{S}, v{S+1}\n  v_add_f32 v{S}, s60, v{S}\n  v_max_f32 v{S+1}, 0, v{S+1}")
        self.rnd2(S, S + 1, S + 2)
        A(f"  v_add_f32 v{S+1}, {f2u(1e-5):#x}, v{S+1}")
        for i in range(0, 4, 2): A(f"  v_pk_add_f32 {vp(X+i)}, {vp(X+i)}, {vp(S)} op_sel_hi:[1,0] neg_lo:[0,1] neg_hi:[0,1]")
        A(f"  v_cvt_pk_bf16_f32 v{S+2}, v{S+1}, v{S+1}")
        for i in range(4, 8, 2): A(f"  v_pk_add_f32 {vp(X+i)}, {vp(X+i)}, {vp(S)} op_sel_hi:[1,0] neg_lo:[0,1] neg_hi:[0,1]")
        A(f"  v_and_b32 v{S+1}, 0xffff0000, v{S+2}\n  v_sqrt_f32 v{S+1}, v{S+1}")
        for i in range(4): A(f"  v_cvt_pk_bf16_f32 v{T+i}, v{X+2*i}, v{X+2*i+1}")
        self.rnd1(S + 1, S + 2)
        A(f"  v_rcp_f32 v{S+2}, v{S+1}")
        self.unpack8(T, X)
        A(f"  v_fma_f32 v{S+3}, -v{S+1}, v{S+2}, 1.0\n  v_fmac_f32 v{S+2}, v{S+3}, v{S+2}")
        for i in range(0, 8, 2): A(f"  v_pk_mul_f32 {vp(T+i)}, {vp(X+i)}, {vp(S+2)} op_sel_hi:[1,0]")
        for i in range(0, 8, 2): A(f"  v_pk_fma_f32 {vp(X+i)}, {vp(T+i)}, {vp(S)}, {vp(X+i)} op_sel:[0,1,0] op_sel_hi:[1,1,1] neg_lo:[1,0,0] neg_hi:[1,0,0]")
        for i in range(0, 8, 2): A(f"  v_pk_fma_f32 {vp(X+i)}, {vp(X+i)}, {vp(S+2)}, {vp(T+i)} op_sel_hi:[1,0,1]")
        self.rnd8(X, T)

    def transpose_block(self, B, t0, t1):
        A = self.A
        R = lambda e, t: B + 4 * e + t
        lo = lambda d, a, b: A(f"  v_perm_b32 v{d}, v{b}, v{a}, s{sPLO}")
        hi = lambda d, a, b: A(f"  v_perm_b32 v{d}, v{b}, v{a}, s{sPHI}")
        for p in range(4):
            a, b = R(2 * p, p), R(2 * p + 1, p)
            lo(t0, a, b); hi(b, a, b); A(f"  v_mov_b32 v{a}, v{t0}")
            for t in range(p + 1, 4):
                a, b, c, d = R(2 * p, t), R(2 * p + 1, t), R(2 * t, p), R(2 * t + 1, p)
                lo(t0, a, b); hi(t1, a, b); lo(a, c, d); hi(b, c, d)
                A(f"  v_mov_b32 v{c}, v{t0}\n  v_mov_b32 v{d}, v{t1}")

    def transpose_x2(self, Rb, Bb):
        for c in range(4):
            for p in range(4):
                a, b = Rb + 2 * (2 * p) + (c >> 1), Rb + 2 * (2 * p + 1) + (c >> 1)
                self.A(f"  v_perm_b32 v{Bb+4*c+p}, v{b}, v{a}, s{sPHI if c & 1 else sPLO}")

    def gemv32(self):
        res = []
        for c in range(8):
            Dc = 24 if c == 0 else 40 + 4 * (c - 1)
            for m in range(4):
                self.A(f"  v_mfma_f32_16x16x32_bf16 {vq(Dc)}, {vq(8+4*m)}, {vq(40+32*m+4*c)}, {'0' if m == 0 else vq(Dc)}")
            res.append(Dc)
        return res

    def wload32(self, srd, steps, D, frac=None, hooks=None, fl=None):
        A = self.A
        done = 0
        for i in range(32):
            dd = D
            if frac is not None and int((i + 1) * (D - frac)) != int(i * (D - frac)): dd = D - 1
            if i >= dd: A(f"  s_waitcnt vmcnt({dd-1})")
            if hooks and i in hooks: hooks[i]()
            A(f"  buffer_load_dwordx4 {vq(40+4*i)}, v4, {sq(srd)}, s40 offen{self.c['wofl'] if fl is None else fl}")
            if i < 31: A(f"  s_add_u32 s40, s40, {steps[i]}")
            landed = i - D + 1 if i >= D else 0
            if landed >= 8 * (done + 1):
                self.transpose_block(40 + 32 * done, 5, 6); done += 1
        while done < 4:
            A(f"  s_waitcnt vmcnt({8*(3-done)})")
            self.transpose_block(40 + 32 * done, 5, 6); done += 1

    def init_duty(self, wave):
        A = self.A
        l2 = self.lab("inited"); l3 = self.lab("noinit")
        A(f"  s_cmp_lg_u32 s{sWAVE}, {wave}\n  s_cbranch_scc1 {l3}")
        mark = len(self.L)
        A("  v_mov_b32 v8, -1\n  v_mov_b32 v9, -1\n  v_mov_b32 v10, -1\n  v_mov_b32 v11, -1")
        A(f"  s_lshl_b32 s60, s2, 12\n  s_add_u32 s60, s60, {WS_QIN}\n  v_add_u32 v5, s60, v{vL16}")
        for i in range(4): A(f"  global_store_dwordx4 v5, {vq(8)}, {sp(sWS)} offset:{1024*i} sc1")
        A(f"  s_cmp_eq_u32 s{sFFN}, 0\n  s_cbranch_scc1 {l2}\n  s_cmp_ge_u32 s{sSL}, 32\n  s_cbranch_scc1 {l2}")
        A(f"  s_lshl_b32 s60, s{sJ}, 5\n  s_add_u32 s60, s60, s{sSL}\n  s_mul_i32 s60, s60, 6144\n  s_add_u32 s60, s60, {WS_INBOX + 2048}\n  v_add_u32 v5, s60, v{vL16}")
        for i in range(6): A(f"  global_store_dwordx4 v5, {vq(8)}, {sp(sWS)} offset:{1024*i - 2048} sc1")
        A(f"  s_cmp_ge_u32 s{sSL}, 8\n  s_cbranch_scc1 {l2}")
        A("  v_mov_b32 v12, 0\n  v_mov_b32 v13, 0\n  v_mov_b32 v14, 0\n  v_mov_b32 v15, 0")
        A(f"  s_lshl_b32 s60, s{sJ}, 3\n  s_add_u32 s60, s60, s{sSL}\n  s_lshl_b32 s60, s60, 10\n  s_add_u32 s60, s60, {WS_ACC}\n  v_add_u32 v5, s60, v{vL16}")
        A(f"  global_store_dwordx4 v5, {vq(12)}, {sp(sWS)} sc1")
        if self.c["init_mode"] == "nostore": self.L[mark:] = []
        A(f"{l2}:\n  s_waitcnt vmcnt(0)")
        if self.c["init_mode"] != "noticket":
            A(f"  s_mov_b32 s65, 1\n  s_atomic_add s65, {sp(sDBG)}, 0x4 glc\n  s_waitcnt lgkmcnt(0)")
            A(f"  s_cmp_lg_u32 s65, 255\n  s_cbranch_scc1 {l3}\n  s_mov_b32 s65, 1\n  s_atomic_add s65, {sp(sDBG)}, 0x84")
        A(f"{l3}:")

    def streamer(self, D, tag):
        A = self.A; c = self.c
        T = lambda n: 40 + 4 * n
        issued = []
        def issue(name, srd, n):
            A(f"  buffer_load_dwordx4 {vq(T(n))}, v{vL16}, {sq(srd)}, s{sOFF + (n >> 2)} offen offset:{1024*(n&3)}{c['kfl']}")
            issued.append(name)
        def pace():
            n = len(issued)
            if n >= D: A(f"  s_waitcnt vmcnt({D-1})")
            if n >= D - 2 and n < 64:
                l = self.lab("pc")
                A(f"  s_bitcmp1_b64 s[58:59], {n}\n  s_cbranch_scc0 {l}\n  s_waitcnt vmcnt({D-2})")
                A(f"  s_bitcmp1_b64 s[14:15], {n}\n  s_cbranch_scc0 {l}\n  s_waitcnt vmcnt({D-3})\n{l}:")
        def waitfor(name):
            A(f"  s_waitcnt vmcnt({len(issued) - 1 - issued.index(name)})")
        lnp = self.lab("noprod"); lj = self.lab("joined")
        NJ = D + c["modlag"]
        A(f"  s_cmp_ge_u32 s57, {48 if (c['abl'] is None or 'mod' in c['abl']) else 0}\n  s_cbranch_scc1 {lnp}")
        self.mod_loads()
        A("  s_barrier")
        self.mod_compute_a()
        A(f"  s_waitcnt vmcnt({c['prio']})")
        E = 2 if c["fast0"] else 0
        for n in range(E, D - 1): issue(f"K{n}", SRDA, n)
        A(f"  s_load_dword s3, {sp(sDBG)}, 0x80")
        A(f"  s_waitcnt vmcnt({D-1-E})")
        self.stamp(9)
        self.mod_compute_b()
        for n in range(D - 1, NJ):
            A(f"  s_waitcnt vmcnt({D-1})"); issue(f"K{n}", SRDA, n)
        self.mod_compute_c()
        self.stamp(14)
        if c["wo_at"] is not None and c["wo_at"] < NJ: self.lds_inc(F_K)
        A(f"  s_branch {lj}\n{lnp}:")
        issued.clear()
        for n in range(32):
            if n == NJ: A(f"{lj}:")
            if n < E: issued.append(f"K{n}")
            else: pace(); issue(f"K{n}", SRDA, n)
            if n == 0 and not E: self.stamp(8)
            if n in (4, 8, 16, 24): self.stamp({4: 10, 8: 11, 16: 12, 24: 13}[n])
            if n == c["wo_at"]: self.lds_inc(F_K)
            if c["sprio"] and n == c["sprio_off"]: A("  s_setprio 0")
            if n == D - 3:
                A("  s_barrier")
                self.stamp(9)
            if n == NJ:
                A(f"  v_lshrrev_b32 v12, 1, v{vJ}\n  v_and_b32 v13, 1, v{vJ}\n  v_mov_b32 v14, 0xffff\n  v_lshlrev_b32 v13, 4, v13\n  v_lshlrev_b32 v14, v13, v14")
                for j in range(4):
                    A(f"  v_cmp_eq_u32 vcc, {j}, v12\n  v_cndmask_b32 v{4+j}, 0, v14, vcc")
        NV = c["NV"]
        slot = lambda n: T(32 - NV + n) if n < NV else T(n - NV)
        l = self.lab("nomodchk")
        A(f"  s_cmp_ge_u32 s57, {48 if (c['abl'] is None or 'mod' in c['abl']) else 0}\n  s_cbranch_scc1 {l}")
        self.lds_spin(F_MOD2, 8, 12)
        A(f"{l}:")
        for n in range(NV):
            if n % 4 == 0: A(f"  s_add_u32 m0, s56, {4096 * (n // 4)}")
            pace()
            A(f"  buffer_load_dwordx4 v{vL16}, {sq(SRDB)}, s{sOFF + (n >> 2)} offen offset:{1024*(n&3)}{c['vfl']} lds")
            issued.append(f"V{n}")
        self.stamp(1)
        self.lds_spin(F_Q2, 1, 12)
        self.stamp(2)
        A(f"  v_lshlrev_b32 v12, 4, v{vJ}\n  ds_read_b128 {vq(8)}, v12 offset:{L_QB}\n  s_waitcnt lgkmcnt(0)")
        def qk(G):
            z = 18 + G
            for r in range(4):
                for t in range(4):
                    A(f"  v_dot2_f32_bf16 v{12+t}, v{T(4*G+t)+r}, v{8+r}, {'0' if r == 0 else f'v{12+t}'}")
            A(f"  v_add_f32_dpp v16, v12, v12 row_ror:8 row_mask:0xf bank_mask:0x3")
            A(f"  v_add_f32_dpp v17, v14, v14 row_ror:8 row_mask:0xf bank_mask:0x3")
            A(f"  v_add_f32_dpp v16, v13, v13 row_ror:8 row_mask:0xf bank_mask:0xc")
            A(f"  v_add_f32_dpp v17, v15, v15 row_ror:8 row_mask:0xf bank_mask:0xc")
            A(f"  v_add_f32_dpp v{z}, v16, v16 row_shl:4 row_mask:0xf bank_mask:0x5")
            A(f"  v_add_f32_dpp v{z}, v17, v17 row_shr:4 row_mask:0xf bank_mask:0xa")
            A(f"  v_add_f32_dpp v{z}, v{z}, v{z} quad_perm:[1,0,3,2] row_mask:0xf bank_mask:0xf")
            A(f"  v_add_f32_dpp v{z}, v{z}, v{z} quad_perm:[2,3,0,1] row_mask:0xf bank_mask:0xf")
        nv = NV
        def nextv():
            nonlocal nv
            pace()
            A(f"  buffer_load_dwordx4 {vq(slot(nv))}, v{vL16}, {sq(SRDB)}, s{sOFF + (nv >> 2)} offen offset:{1024*(nv&3)}{c['vfl']}")
            issued.append(f"V{nv}"); nv += 1
        qk(0)
        groups = list(range(1, 7))
        per = -(-len(groups) // D)
        for i in range(D):
            nextv()
            for G in groups[i * per:(i + 1) * per]: qk(G)
        qk(7)
        if NV:
            A(f"  v_add_u32 v34, s56, v{vL16}")
            for n in range(NV): A(f"  ds_read_b128 {vq(slot(n))}, v34 offset:{1024*n}")
        A(f"  s_mov_b32 s60, {SCALE:#x}")
        for i in range(4): self.rnd2(18 + 2 * i, 19 + 2 * i, 12 + i)
        for i in range(8): A(f"  v_mul_f32 v{18+i}, s60, v{18+i}")
        for i in range(4): self.rnd2(18 + 2 * i, 19 + 2 * i, 12 + i)
        A("  v_max3_f32 v12, v18, v19, v20\n  v_max3_f32 v13, v21, v22, v23\n  v_max3_f32 v12, v12, v24, v25\n  v_max_f32 v12, v12, v13")
        self.wave_reduce("v_max_f32", [12], full=False)
        A("  v_readlane_b32 s61, v12, 63")
        for i in range(8): A(f"  v_subrev_f32 v{26+i}, s61, v{18+i}")
        for i in range(8): A(f"  v_mul_f32 v{26+i}, s{sLOG2E}, v{26+i}")
        for i in range(8): A(f"  v_exp_f32 v{26+i}, v{26+i}")
        A("  v_add_f32 v13, v26, v27\n  v_add_f32 v14, v28, v29\n  v_add_f32 v15, v30, v31\n  v_add_f32 v16, v32, v33")
        A("  v_add_f32 v13, v13, v14\n  v_add_f32 v15, v15, v16\n  v_add_f32 v13, v13, v15")
        self.wave_reduce("v_add_f32", [13], full=False)
        A(f"  s_lshl_b32 s60, s{sWAVE}, 3\n  v_mov_b32 v14, s60")
        A("  s_mov_b32 exec_lo, 0\n  s_mov_b32 exec_hi, 0x80000000")
        A(f"  ds_write_b64 v14, v[12:13] offset:{L_STATS}\n  ds_add_u32 v{vZ}, v{vONE} offset:{F_ST}")
        self.execall()
        nextv(); nextv()
        self.lds_spin(F_ST, 8, 12)
        A(f"  v_and_b32 v14, 7, v{vLANE}\n  v_lshlrev_b32 v14, 3, v14\n  ds_read_b64 v[12:13], v14 offset:{L_STATS}\n  s_waitcnt lgkmcnt(0)")
        red8 = ["quad_perm:[1,0,3,2]", "quad_perm:[2,3,0,1]", "row_ror:4"]
        A("  v_mov_b32 v14, v12")
        for s in red8: A(f"  v_max_f32_dpp v14, v14, v14 {s} row_mask:0xf bank_mask:0xf")
        A(f"  v_sub_f32 v12, v12, v14\n  v_mul_f32 v12, s{sLOG2E}, v12\n  v_exp_f32 v12, v12")
        for i in range(8): A(f"  v_sub_f32 v{26+i}, v{18+i}, v14")
        A("  v_mul_f32 v13, v13, v12")
        for i in range(8): A(f"  v_mul_f32 v{26+i}, s{sLOG2E}, v{26+i}")
        for s in red8: A(f"  v_add_f32_dpp v13, v13, v13 {s} row_mask:0xf bank_mask:0xf")
        for i in range(8): A(f"  v_exp_f32 v{26+i}, v{26+i}")
        A("  v_rcp_f32 v15, v13\n  v_fma_f32 v16, -v13, v15, 1.0\n  v_fmac_f32 v15, v16, v15")
        if c["dump"]:
            for i in range(8):
                A(f"  s_lshl_b32 s69, s2, 3\n  s_add_u32 s69, s69, s{sWAVE}\n  s_lshl_b32 s69, s69, 3\n  s_add_u32 s69, s69, {i}")
                self.dumpv(18 + i, 1, 0x100000, 69, 256, tmp=36)
        for i in range(8): A(f"  v_mul_f32 v{26+i}, v{26+i}, v15")
        for i in range(8): A(f"  v_cvt_pk_bf16_f32 v{18+i}, v{26+i}, v{26+i}")
        self.stamp(3)
        npv = 0
        def pv():
            nonlocal npv
            n = npv; npv += 1
            Ab = 26 + 4 * (n & 1)
            bank = [0, 2, 1, 3][n & 3]
            for j in range(4):
                A(f"  v_and_b32_dpp v{Ab+j}, v{18+(n>>2)}, v{4+j} row_newbcast:{4*bank} row_mask:0xf bank_mask:0xf")
            A(f"  v_mfma_f32_16x16x32_bf16 {vq(34)}, {vq(Ab)}, {vq(slot(n))}, {'0' if n == 0 else vq(34)}")
            if n == c["hint_at"] and "HT" not in c["xskip"]:
                l = self.lab("ht")
                self.exec1()
                A(f"  ds_add_rtn_u32 v12, v{vZ}, v{vONE} offset:{F_P}\n  s_mov_b32 s5, 0\n  s_waitcnt lgkmcnt(0)\n  v_readfirstlane_b32 s60, v12")
                self.execall()
                A(f"  s_cmp_lg_u32 s60, 7\n  s_cbranch_scc1 {l}")
                A(f"  s_lshl_b32 s60, s{sB}, 12\n  s_add_u32 s60, s60, {WS_ACC + 3072}\n  s_mov_b32 s5, 1\n  s_atomic_add s5, {sp(sWS)}, s60 glc\n{l}:")
            if n == c["hint_at"] + c["hint_lag"] and "HT" not in c["xskip"]:
                l = self.lab("hf")
                A(f"  s_waitcnt lgkmcnt(0)\n  s_cmp_lg_u32 s5, 31\n  s_cbranch_scc1 {l}")
                A(f"  s_mul_i32 s60, s{sB}, {64*128}\n  s_add_u32 s60, s60, {WS_HINT}\n  v_lshl_add_u32 v12, v{vLANE}, 7, s60")
                A(f"  s_mov_b32 exec_hi, 0x7ff\n  global_store_dword v12, v11, {sp(sWS)} sc1"); self.execall()
                A(f"{l}:")
        self.ffn_addr()
        self.lds_spin(F_C, 1, 12)
        A(f"  ds_read_b32 v11, v{vZ} offset:{F_N}")
        def vstep():
            nextv()
            landed = nv - D
            k = 0
            while npv < landed and k < 3:
                pv(); k += 1
        def finish():
            while npv < 32:
                waitfor(f"V{npv}"); pv()
            A(f"  v_lshlrev_b32 v12, 5, v{vJ}\n  v_lshl_add_u32 v13, v{vG}, 4, v12\n  s_lshl_b32 s60, s{sWAVE}, 9\n  v_add_u32 v12, s60, v13")
            A("  s_mov_b32 exec_hi, 0")
            if c["oadd"]:
                for r in range(4): A(f"  ds_add_f32 v13, v{34+r} offset:{L_OP + 4*r}")
            else:
                A(f"  ds_write_b128 v12, {vq(34)} offset:{L_OP}")
            self.lds_inc(F_O)
            self.stamp(5)
        NF0 = c["NF0"]
        while nv < 32 - NF0: vstep()
        assert npv >= NV or NF0 == 0, (npv, NV)
        lf = self.lab("vffn")
        if c["abl"] is None and "T" not in c["xskip"]: A(f"  s_cmp_lg_u32 s{sFFN}, 0\n  s_cbranch_scc1 {lf}")
        st = (nv, npv, list(issued))
        while nv < 32: vstep()
        self.stamp(4)
        finish()
        A("  s_branch L_exit")
        A(f"{lf}:")
        nv, npv = st[0], st[1]; issued[:] = st[2]
        nf = 0
        while nv < 32:
            waitfor(f"V{nv - (D - 1)}")
            A(f"  buffer_load_dwordx4 {vq(slot(nv))}, v{vL16}, {sq(SRDB)}, s{sOFF + (nv >> 2)} offen offset:{1024*(nv&3)}{c['vfl']}")
            issued.append(f"V{nv}"); nv += 1
            self.ffn_load(nf); issued.append(f"F{nf}"); nf += 1
            k = 0
            while npv < nv - D + 1 and k < 3:
                pv(); k += 1
        self.stamp(4)
        finish()
        FD = c["FD"]
        if c["fmode"] == "paced":
            while nf < 24:
                if nf >= FD: waitfor(f"F{nf - FD}")
                self.ffn_load(nf); issued.append(f"F{nf}"); nf += 1
                if nf == FD: self.ffn_lds_addr()
                if nf == 8 + FD: self.transpose_x2(120, 40)
                if nf == 16 + FD: self.stamp(15); self.transpose_x2(136, 56)
            return
        while nf < FD:
            self.ffn_load(nf); issued.append(f"F{nf}"); nf += 1
        self.lds_spin(F_A, 4, 12)
        self.stamp(10)
        while nf < 16:
            self.ffn_load(nf); issued.append(f"F{nf}"); nf += 1
        self.ffn_lds_addr()
        if c["stamps"]: waitfor("F15"); self.stamp(15)
        waitfor("F7"); self.transpose_x2(120, 40)
        if c["down_late"]: self.lds_spin(F_R, 2, 12)
        while nf < 24:
            self.ffn_load(nf); issued.append(f"F{nf}"); nf += 1
        waitfor("F15"); self.transpose_x2(136, 56)

    def ffn_addr(self):
        A = self.A
        A(f"  v_cmp_gt_u32 vcc, 8, v{vJ}")
        A(f"  v_mov_b32 v12, s{sU}\n  v_mov_b32 v13, s{sU+1}\n  v_mov_b32 v14, s{sG}\n  v_mov_b32 v15, s{sG+1}")
        A(f"  v_cndmask_b32 v8, v12, v14, vcc\n  v_cndmask_b32 v9, v13, v15, vcc")
        A(f"  s_lshr_b32 s16, s{sJ}, 1\n  s_and_b32 s17, s{sJ}, 1")
        A(f"  s_lshl_b32 s60, s{sWAVE}, 6\n  s_lshl_b32 s61, s16, 5\n  s_add_u32 s60, s60, s61\n  s_lshl_b32 s61, s17, 2\n  s_add_u32 s60, s60, s61")
        A(f"  v_lshl_add_u32 v12, v{vG}, 3, s60\n  v_mul_u32_u24 v12, 2752, v12")
        A(f"  v_and_b32 v13, 7, v{vJ}\n  v_lshl_add_u32 v12, v13, 3, v12\n  s_lshl_b32 s60, s{sSL}, 6\n  v_add_u32 v12, s60, v12\n  v_mov_b32 v13, 0")
        A(f"  v_lshl_add_u64 v[8:9], v[8:9], 0, v[12:13]")
        A(f"  s_mov_b32 s10, 5504\n  s_mov_b32 s11, 0")
        A(f"  s_cmp_eq_u32 s17, 0\n  s_cselect_b32 s60, 4, -4\n  s_cmp_eq_u32 s16, 0\n  s_cselect_b32 s61, 32, -32")
        A(f"  s_sub_i32 s61, s61, s60\n  s_sub_i32 s60, s60, 2\n  s_sub_i32 s61, s61, 2")
        A(f"  s_mul_i32 s12, s60, 2752\n  s_ashr_i32 s13, s12, 31\n  s_mul_i32 s6, s61, 2752\n  s_ashr_i32 s7, s6, 31")
        A(f"  s_mov_b32 s{SRDA}, s{sDN}\n  s_mov_b32 s{SRDA+1}, s{sDN+1}\n  s_mov_b32 s{SRDA+2}, 1409024\n  s_mov_b32 s{SRDA+3}, 0x20000")
        A(f"  v_lshlrev_b32 v10, 13, v{vG}\n  v_lshl_add_u32 v10, v{vJ}, 3, v10")
        A(f"  s_lshl_b32 s18, s{sSL}, 15\n  s_lshl_b32 s19, s{sWAVE}, 7\n  s_add_u32 s18, s18, s19\n  s_add_u32 s19, s18, 4096")

    def ffn_load(self, i):
        A = self.A
        if "W" in self.c["xskip"]:
            A(f"  global_load_dword v17, v{vZ}, {sp(sC)}"); return
        if i < 16:
            A(f"  global_load_dwordx2 {vp(120+2*i)}, v[8:9], off{' offset:2752' if i & 1 else ''}{self.c['ffnfl']}")
            if i & 1 and i < 15:
                step = "s[10:11]" if (i & 3) == 1 else ("s[6:7]" if i == 7 else "s[12:13]")
                A(f"  v_lshl_add_u64 v[8:9], v[8:9], 0, {step}")
        else:
            e = i - 16
            A(f"  buffer_load_dwordx2 {vp(152+2*e)}, v10, {sq(SRDA)}, s{18 + (e >> 2)} offen offset:{1024*(e&3)}{self.c['ffnfl']}")

    def ffn_lds_addr(self):
        A = self.A
        A(f"  v_and_b32 v12, 1, v{vJ}\n  v_lshlrev_b32 v112, 10, v12\n  v_lshl_add_u32 v112, v{vG}, 4, v112\n  s_lshl_b32 s60, s{sWAVE}, 7\n  v_add_u32 v112, s60, v112")
        A(f"  s_lshl_b32 s60, s16, 6\n  s_lshl_b32 s61, s17, 3\n  s_add_u32 s60, s60, s61\n  v_add_u32 v112, s60, v112")
        A(f"  v_xor_b32 v113, 8, v112\n  v_xor_b32 v114, 64, v112\n  v_xor_b32 v115, 0x48, v112")
        A(f"  v_lshlrev_b32 v116, 6, v12\n  v_lshl_add_u32 v116, v{vG}, 4, v116")
        A(f"  v_lshlrev_b32 v117, 5, v{vJ}\n  v_lshl_add_u32 v117, v{vG}, 3, v117\n  s_lshl_b32 s60, s{sWAVE}, 9\n  v_add_u32 v117, s60, v117")
        A(f"  s_lshl_b32 s60, s{sJ}, 5\n  s_lshl_b32 s61, s{sWAVE}, 2\n  s_add_u32 s60, s60, s61\n  v_add_u32 v118, s60, v{vG}\n  v_mul_u32_u24 v118, {INB}, v118")
        A(f"  s_lshl_b32 s60, s{sSL}, 8\n  s_add_u32 s60, s60, {WS_INBOX}\n  v_lshl_add_u32 v12, v{vJ}, 4, s60\n  v_add_u32 v118, v12, v118")

    def streamer_ffn(self):
        A = self.A
        self.stamp(6)
        A("  s_barrier")
        A("L_dry_s:")
        for i in range(4): A(f"  ds_read_b64 {vp(88+2*i)}, v{112+i} offset:{L_H2}")
        A("  s_waitcnt lgkmcnt(2)")
        for cc in range(4): A(f"  v_mfma_f32_16x16x32_bf16 {vq(96+4*cc)}, {vq(88)}, {vq(40+4*cc)}, 0")
        A("  s_waitcnt lgkmcnt(0)")
        for cc in range(4): A(f"  v_mfma_f32_16x16x32_bf16 {vq(96+4*cc)}, {vq(92)}, {vq(56+4*cc)}, {vq(96+4*cc)}")
        def select():
            for g in range(1, 4):
                for r in range(2):
                    A(f"  v_mov_b32_dpp v{96+r}, v{96+4*g+r} quad_perm:[0,1,2,3] row_mask:{1<<g:#x} bank_mask:0xf")
        select()
        A(f"  ds_write_b64 v117, v[96:97] offset:{L_GUP}\n  s_waitcnt lgkmcnt(0)")
        dry = self.c["dry"]
        if dry: A("  s_cbranch_execz L_dry_s2")
        A("  s_barrier")
        A("  s_waitcnt vmcnt(0)"); self.transpose_x2(152, 72)
        A("  s_barrier")
        A("L_dry_s2:")
        A(f"  ds_read_b128 {vq(88)}, v116 offset:{L_HH}\n  s_waitcnt lgkmcnt(0)")
        for cc in range(4): A(f"  v_mfma_f32_16x16x32_bf16 {vq(96+4*cc)}, {vq(88)}, {vq(72+4*cc)}, 0")
        select()
        A(f"  v_mov_b32 v98, v11\n  v_xor_b32 v99, {TAGX:#x}, v11")
        if dry: A("  s_cbranch_execz L_exit")
        A(f"  global_store_dwordx4 v118, {vq(96)}, {sp(sWS)} sc1")
        self.stamp(7)
        A("  s_branch L_exit2")

    def mod_loads(self):
        A = self.A
        A(f"  v_and_b32 v4, 7, v{vJ}\n  v_lshrrev_b32 v5, 3, v{vJ}\n  v_lshlrev_b32 v6, 10, v4\n  v_lshl_add_u32 v6, v5, 6, v6\n  v_lshl_add_u32 v6, v{vG}, 4, v6")
        A(f"  s_lshl_b32 s60, s{sWAVE}, 7\n  v_add_u32 v6, s60, v6")
        A(f"  global_load_dwordx4 {vq(8)}, v6, {sp(sC)}")
        A(f"  v_lshlrev_b32 v7, 5, v5\n  v_lshl_add_u32 v7, v{vG}, 3, v7\n  v_mul_u32_u24 v7, 6144, v7\n  v_lshl_add_u32 v7, v4, 4, v7")
        A(f"  s_mul_i32 s60, s{sWAVE}, {64*6144}\n  s_lshl_b32 s61, s57, 7\n  s_add_u32 s60, s60, s61\n  v_add_u32 v7, s60, v7")
        for i in range(8):
            A(f"  global_load_dwordx4 {vq(136+4*i)}, v7, {sp(sWM)} nt")
            if i < 7: A(f"  v_add_u32 v7, 6144, v7")

    def mod_compute_a(self):
        A = self.A
        A(f"  s_lshl_b32 s60, s{sWAVE}, 12\n  s_add_u32 s60, s60, {L_V}\n  v_lshlrev_b32 v28, 11, v5\n  v_lshl_add_u32 v28, v4, 8, v28\n  v_and_b32 v29, 1, v{vG}\n  v_lshl_add_u32 v28, v29, 4, v28\n  v_add_u32 v28, s60, v28")
        A(f"  v_lshrrev_b32 v29, 1, v{vG}\n  v_cmp_eq_u32 s[68:69], v29, v5")
        A("  s_waitcnt vmcnt(8)")
        for i in range(4):
            r = 8 + i
            A(f"  v_lshlrev_b32 v16, 16, v{r}\n  v_and_b32 v17, 0xffff0000, v{r}")
            A(f"  v_mul_f32 v18, s{sLOG2E}, v16\n  v_mul_f32 v19, s{sLOG2E}, v17")
            A(f"  v_exp_f32 v18, -v18\n  v_exp_f32 v19, -v19")
            A(f"  v_add_f32 v18, 1.0, v18\n  v_add_f32 v19, 1.0, v19\n  v_rcp_f32 v18, v18\n  v_rcp_f32 v19, v19")
            A(f"  v_mul_f32 v16, v16, v18\n  v_mul_f32 v17, v17, v19\n  v_cvt_pk_bf16_f32 v{r}, v16, v17")

    def mod_compute_b(self):
        A = self.A
        self.transpose_block(136, 5, 6)
        for cc in range(8):
            A(f"  v_mfma_f32_16x16x32_bf16 {vq(104+4*cc)}, {vq(8)}, {vq(136+4*cc)}, 0")
        A("  s_mov_b64 exec, s[68:69]")
        for cc in range(8):
            A(f"  ds_write_b128 v28, {vq(104+4*cc)} offset:{32*cc}")
        self.lds_inc(F_MOD)

    def mod_compute_c(self):
        A = self.A
        A(f"  v_and_b32 v4, 31, v{vLANE}\n  v_lshrrev_b32 v5, 5, v{vLANE}\n  v_lshlrev_b32 v6, 6, v4\n  v_lshl_add_u32 v6, v5, 14, v6\n  s_lshl_b32 s60, s{sWAVE}, 2\n  s_add_u32 s60, s60, {L_V}\n  v_add_u32 v6, s60, v6")
        A(f"  s_mul_i32 s60, s{sWAVE}, 6144\n  s_lshl_b32 s61, s57, 7\n  s_add_u32 s60, s60, s61\n  s_add_u32 s60, s60, {WS_MOD}\n  v_lshl_add_u32 v5, v4, 2, s60")
        self.lds_spin(F_MOD, 8, 7)
        for part in range(8):
            if part: A(f"  v_add_u32 v6, 2048, v6")
            A(f"  ds_read2_b32 {vp(8+2*part)}, v6 offset0:0 offset1:8")
        l = self.lab("pollSN"); d = self.lab("gotSN")
        A(f"{l}:\n  s_cmp_lg_u32 s3, 0\n  s_cbranch_scc1 {d}")
        self.guard()
        A(f"  s_load_dword s3, {sp(sDBG)}, 0x80 glc\n  s_waitcnt lgkmcnt(0)\n  s_branch {l}\n{d}:")
        A("  s_waitcnt lgkmcnt(0)")
        self.lds_inc(F_MOD2)
        for part in range(1, 8):
            A(f"  v_add_f32 v8, v8, v{8+2*part}\n  v_add_f32 v9, v9, v{9+2*part}")
        A("  v_mov_b32 v10, v8\n  v_mov_b32 v11, v9\n  v_permlane32_swap_b32 v10, v8\n  v_permlane32_swap_b32 v11, v9\n  v_add_f32 v8, v8, v10\n  v_add_f32 v9, v9, v11")
        A(f"  v_cvt_pk_bf16_f32 v8, v8, v9\n  s_mov_b32 exec_hi, 0\n  global_store_dword v5, v8, {sp(sWS)} sc1")
        self.execall()
        A("  v_mov_b32 v9, v8")
        for st in ("quad_perm:[1,0,3,2]", "quad_perm:[2,3,0,1]", "row_ror:4", "row_ror:8"):
            A(f"  v_xor_b32_dpp v9, v9, v9 {st} row_mask:0xf bank_mask:0xf")
        A("  v_mov_b32 v10, v9\n  v_permlane16_swap_b32 v10, v9\n  v_bitop3_b32 v9, v9, v10, s3 bitop3:0x96")
        A(f"  s_lshl_b32 s60, s{sWAVE}, 8\n  s_lshl_b32 s61, s57, 2\n  s_add_u32 s60, s60, s61\n  s_add_u32 s60, s60, {WS_MARK}\n  v_mov_b32 v5, s60")
        self.exec1(); A(f"  global_store_dword v5, v9, {sp(sWS)} sc1"); self.execall()

    def check_lines(self, data, tags, tmp):
        A = self.A
        n = len(data)
        for k in range(n): A(f"  v_xor_b32 v{tmp+k}, v{data[k]}, v{data[k]+1}")
        for k in range(n): A(f"  v_bitop3_b32 v{tmp+k}, v{tmp+k}, v{data[k]+2}, v{data[k]+3} bitop3:0x96")
        for st in ("quad_perm:[1,0,3,2]", "quad_perm:[2,3,0,1]", "row_half_mirror"):
            for k in range(n): A(f"  v_xor_b32_dpp v{tmp+k}, v{tmp+k}, v{tmp+k} {st} row_mask:0xf bank_mask:0xf")
        for k in range(n): A(f"  v_bitop3_b32 v{tmp+k}, v{tmp+k}, v{tags[k]}, s44 bitop3:0x96")
        for k in range(1, n): A(f"  v_or_b32 v{tmp}, v{tmp}, v{tmp+k}")
        A(f"  v_cmp_ne_u32 vcc, 0, v{tmp}")

    def get_flag(self, tmp, off, sreg, expect=None):
        A = self.A
        l = self.lab("pollN"); d = self.lab("gotN")
        cmp = f"s_cmp_lg_u32 s{sreg}, 0" if expect is None else f"s_cmp_eq_u32 s{sreg}, {expect}"
        self.exec1()
        A(f"  global_load_dword v{tmp}, v{vZ}, {sp(sDBG)} offset:{off}")
        A(f"{l}:\n  s_waitcnt vmcnt(0)\n  v_readfirstlane_b32 s{sreg}, v{tmp}\n  {cmp}\n  s_cbranch_scc1 {d}")
        self.guard()
        A(f"  s_sleep {self.c['poll_sleep']}\n  global_load_dword v{tmp}, v{vZ}, {sp(sDBG)} offset:{off} sc1\n  s_branch {l}\n{d}:"); self.execall()
    def get_nonce(self, tmp): self.get_flag(tmp, 128, 44)

    def xor_rows(self, r, t):
        A = self.A
        A(f"  v_mov_b32 v{t}, v{r}\n  v_permlane16_swap_b32 v{t}, v{r}\n  v_xor_b32 v{r}, v{r}, v{t}")
        A(f"  v_mov_b32 v{t}, v{r}\n  v_permlane32_swap_b32 v{t}, v{r}\n  v_xor_b32 v{r}, v{r}, v{t}")

    def allreduce8(self, r, t, op="v_add_f32"):
        A = self.A
        A(f"  {op}_dpp v{r}, v{r}, v{r} row_ror:8 row_mask:0xf bank_mask:0xf")
        A(f"  v_mov_b32 v{t}, v{r}\n  v_permlane16_swap_b32 v{t}, v{r}\n  {op} v{r}, v{r}, v{t}")
        A(f"  v_mov_b32 v{t}, v{r}\n  v_permlane32_swap_b32 v{t}, v{r}\n  {op} v{r}, v{r}, v{t}")

    def wq_pattern(self):
        p = self.c["wqpat"]
        if p == 8: return 16, [8192 if i % 8 < 7 else 8192 * 25 for i in range(32)]
        if p == 32: return 18, [8192] * 32
        if p == 1: return 13, [8192 * 4] * 32
        if p == 33: return 18, [8192 * 5 if i % 8 < 7 else (1 << 32) - 8192 * 27 for i in range(32)]
        if p == 16: return 17, [8192 if i % 16 < 15 else 8192 * 49 for i in range(32)]

    def h0_issue(self, fl):
        A = self.A
        if "G" in self.c["xskip"]: return
        A(f"  global_load_dwordx4 {vq(28)}, v36, {sp(sWS)}{fl}\n  global_load_dwordx4 {vq(32)}, v36, {sp(sWS)} offset:1024{fl}")
        A(f"  global_load_dword v24, v37, {sp(sWS)}{fl}\n  global_load_dword v25, v37, {sp(sWS)} offset:32{fl}")

    def h0_finish(self):
        A = self.A; c = self.c
        l = self.lab("chkA"); d = self.lab("gotA")
        A(f"{l}:")
        self.check_lines([28, 32], [24, 25], 26)
        A(f"  s_cbranch_vccz {d}" if "G" not in c["xskip"] else f"  s_branch {d}")
        self.guard()
        A(f"  s_sleep {c['a_sleep']}")
        self.h0_issue(" sc1")
        A(f"  s_waitcnt vmcnt(0)\n  s_branch {l}\n{d}:")
        self.stamp(2); self.cstamp(14)
        self.unpack8(32, 16)
        for i in range(8): A(f"  v_add_f32 v{16+i}, 1.0, v{16+i}")
        self.rnd8(16, 24)
        for i in range(8): A(f"  v_mul_f32 v{8+i}, v{8+i}, v{16+i}")
        self.rnd8(8, 24)
        self.unpack8(28, 16)
        for i in range(8): A(f"  v_add_f32 v{8+i}, v{8+i}, v{16+i}")
        for i in range(4): A(f"  v_cvt_pk_bf16_f32 v{24+i}, v{8+2*i}, v{9+2*i}")
        A(f"  v_add_u32 v16, s47, v{vL16}\n  ds_write_b128 v16, {vq(24)} offset:{L_HBUF}")
        self.lds_inc(F_H)
        if c["dump"]:
            l = self.lab("nodh"); A(f"  s_cmp_lg_u32 s{sHW}, 0\n  s_cbranch_scc1 {l}"); self.dumpv(24, 4, 0x0, 2, 1024); A(f"{l}:")
        self.stamp(3)

    def helper(self):
        A = self.A; c = self.c
        A("L_helper:")
        self.stamp(8)
        A(f"  s_sub_u32 s{sHW}, s{sWAVE}, 8")
        l = self.lab("h3")
        A(f"  s_cmp_lg_u32 s{sHW}, 3\n  s_cbranch_scc1 {l}")
        A(f"  v_lshlrev_b32 v4, 2, v{vLANE}\n  ds_write_b32 v4, v{vZ}\n  ds_write_b32 v4, v{vZ} offset:{L_OP}\n  ds_write_b32 v4, v{vZ} offset:{L_OP+256}\n  s_waitcnt lgkmcnt(0)\n{l}:")
        A("  s_waitcnt lgkmcnt(0)")
        if c["tlb"]:
            l = self.lab("notlb")
            A(f"  s_cmp_lg_u32 s{sHW}, 2\n  s_cbranch_scc1 {l}")
            self.exec1()
            A(f"  s_lshl_b32 s60, s{sB}, 5\n  s_add_u32 s60, s60, s{sH}\n  s_lshl_b32 s60, s60, 20\n  s_add_u32 s60, s60, 0xC0000\n  v_mov_b32 v4, s60")
            A(f"  global_load_dword v40, v4, {sp(sV)} nt")
            A(f"  s_lshl_b32 s60, s2, 12\n  s_add_u32 s60, s60, {WS_QIN}\n  v_mov_b32 v5, s60\n  global_load_dword v41, v5, {sp(sWS)} nt")
            A(f"  s_lshl_b32 s60, s{sH}, 17\n  v_mov_b32 v6, s60\n  global_load_dword v42, v6, {sp(sWO)} nt")
            A(f"  s_lshl_b32 s60, s2, 2\n  s_and_b32 s60, s60, 0xfc\n  v_mov_b32 v7, s60")
            A(f"  global_load_dword v43, v7, {sp(sDBG)}")
            if c["tlb"] > 1:
                A(f"  s_lshl_b32 s60, s2, 7\n  v_mov_b32 v8, s60")
                for k, p in enumerate((sG, sU, sDN, sWS)): A(f"  global_load_dword v{44+k}, v8, {sp(p)} nt")
                A(f"  v_add_u32 v8, 0x100000, v8")
                for k, p in enumerate((sG, sU, sDN)): A(f"  global_load_dword v{48+k}, v8, {sp(p)} nt")
                A(f"  s_lshl_b32 s60, s2, 5\n  v_mov_b32 v9, s60\n  global_load_dword v52, v9, {sp(sOUT)} nt")
            self.execall()
            A(f"{l}:")
        if c["wqpf"]:
            l = self.lab("nowqpf")
            A(f"  s_cmp_lg_u32 s{sHW}, {c['wqpf']}\n  s_cbranch_scc1 {l}")
            A(f"  s_lshl_b32 s60, s{sIDX}, 17\n  s_lshl_b32 s61, s{sXCD}, 10\n  s_add_u32 s60, s60, s61\n  v_add_u32 v4, s60, v{vL16}")
            for i in range(16):
                if i >= c["wqpfD"]: A(f"  s_waitcnt vmcnt({c['wqpfD']-1})")
                A(f"  global_load_dword v35, v4, {sp(sWQ)}")
                if i < 15: A("  v_add_u32 v4, 8192, v4")
            A(f"{l}:")
        l = self.lab("nononce")
        A(f"  s_cmp_lg_u32 s2, 0\n  s_cbranch_scc1 {l}\n  s_cmp_lg_u32 s{sHW}, 1\n  s_cbranch_scc1 {l}")
        A(f"  s_memrealtime s[42:43]\n  s_waitcnt lgkmcnt(0)\n  s_or_b32 s42, s42, 1\n  v_mov_b32 v6, s42")
        self.exec1(); A(f"  global_store_dword v{vZ}, v6, {sp(sDBG)} offset:128 sc1"); self.execall()
        A(f"{l}:")
        A("  s_barrier")
        abl = c["abl"]
        if abl is not None:
            if "init" in abl: self.init_duty(11)
            l = self.lab("abl")
            A(f"  s_cmp_lg_u32 s{sHW}, 0\n  s_cbranch_scc1 {l}")
            self.lds_inc(F_Q2); self.lds_inc(F_C)
            if "h0l" in abl:
                A(f"  v_and_b32 v5, 7, v{vJ}\n  v_lshrrev_b32 v6, 3, v{vJ}\n  v_lshl_add_u32 v7, v{vG}, 1, v6\n  v_lshlrev_b32 v7, 4, v7\n  v_lshl_add_u32 v7, v5, 10, v7")
                if "nox" not in abl:
                    for i in range(8): A(f"  global_load_dwordx4 {vq(40+4*i)}, v7, {sp(sX)} offset:{128*i} nt")
                A(f"  s_mov_b32 s{SRDB}, s{sWQ}\n  s_mov_b32 s{SRDB+1}, s{sWQ+1}\n  s_mov_b32 s{SRDB+2}, 4194304\n  s_mov_b32 s{SRDB+3}, 0x20000")
                A(f"  v_lshlrev_b32 v7, 4, v{vJ}\n  v_lshl_add_u32 v7, v{vG}, 16, v7")
                A(f"  s_lshl_b32 s41, s{sB}, 19\n  s_lshl_b32 s60, s{sH}, 8\n  s_add_u32 s41, s41, s60")
                for i in range(0 if "nowq" in abl else 16):
                    A(f"  s_waitcnt vmcnt({c['ablD']})")
                    A(f"  buffer_load_dwordx4 {vq(104+4*i)}, v7, {sq(SRDB)}, s41 offen nt")
                    if i < 15: A(f"  s_add_u32 s41, s41, {8192 if i != 7 else 8192*25}")
                A("  s_waitcnt vmcnt(0)")
            if "poll" in abl:
                lp = self.lab("ablp")
                self.exec1()
                A(f"  s_mov_b32 s65, 12\n{lp}:\n  global_load_dwordx2 v[24:25], v{vZ}, {sp(sDBG)} offset:128 sc1\n  s_waitcnt vmcnt(0)\n  s_sleep {c['poll_sleep']}\n s_sub_u32 s65, s65, 1\n s_cmp_lg_u32 s65, 0\n s_cbranch_scc1 {lp}")
                self.execall()
            A(f"{l}:")
            if "wqr" in abl:
                A(f"  s_mov_b32 s{SRDA}, s{sWQ}\n  s_mov_b32 s{SRDA+1}, s{sWQ+1}\n  s_mov_b32 s{SRDA+2}, 4194304\n  s_mov_b32 s{SRDA+3}, 0x20000")
                sh, steps_ = self.wq_pattern()
                A(f"  v_lshlrev_b32 v4, 4, v{vJ}\n  v_lshl_add_u32 v4, v{vG}, {sh}, v4")
                A(f"  s_lshl_b32 s40, s{sHW}, 20\n  s_xor_b32 s60, s{sH}, {c['wqx']}\n  s_lshl_b32 s60, s60, 8\n  s_add_u32 s40, s40, s60")
                self.wload32(SRDA, steps_, c["HDO"], frac=c["HDOf"], fl=c["wqfl"])
                self.stamp(5)
            if "wqh" in abl:
                lq = self.lab("noq")
                A(f"  s_cmp_ge_u32 s{sB}, 4\n  s_cbranch_scc1 {lq}")
                A(f"  s_mov_b32 s{SRDA}, s{sWQ}\n  s_mov_b32 s{SRDA+1}, s{sWQ+1}\n  s_mov_b32 s{SRDA+2}, 4194304\n  s_mov_b32 s{SRDA+3}, 0x20000")
                A(f"  v_lshlrev_b32 v4, 4, v{vJ}\n  v_lshl_add_u32 v4, v{vG}, 17, v4")
                A(f"  s_lshl_b32 s40, s{sHW}, 19\n  s_and_b32 s60, s{sB}, 1\n  s_lshl_b32 s60, s60, 21\n  s_add_u32 s40, s40, s60\n  s_lshl_b32 s60, s{sH}, 8\n  s_add_u32 s40, s40, s60")
                for i in range(16):
                    if i >= c["HD"]: A(f"  s_waitcnt vmcnt({c['HD']-1})")
                    A(f"  buffer_load_dwordx4 {vq(104+4*i)}, v4, {sq(SRDA)}, s40 offen\n  s_add_u32 s40, s40, 8192")
                self.stamp(5)
                A(f"{lq}:")
            if "wqp" in abl:
                lq = self.lab("noq")
                A(f"  s_cmp_lt_u32 s57, 48\n  s_cbranch_scc1 {lq}")
                sh, steps_ = self.wq_pattern()
                A(f"  s_mov_b32 s{SRDA}, s{sWQ}\n  s_mov_b32 s{SRDA+1}, s{sWQ+1}\n  s_mov_b32 s{SRDA+2}, 4194304\n  s_mov_b32 s{SRDA+3}, 0x20000")
                A(f"  v_lshlrev_b32 v4, 4, v{vJ}\n  v_lshl_add_u32 v4, v{vG}, {sh}, v4")
                A(f"  s_lshl_b32 s40, s{sHW}, 20\n  s_lshl_b32 s60, s{sH}, 8\n  s_add_u32 s40, s40, s60")
                self.wload32(SRDA, steps_, c["HD"], frac=c["HDf"], fl=c["wqfl"])
                self.stamp(5)
                A(f"{lq}:")
            if "wo" in abl:
                A(f"  s_mov_b32 s{SRDA}, s{sWO}\n  s_mov_b32 s{SRDA+1}, s{sWO+1}\n  s_mov_b32 s{SRDA+2}, 4194304\n  s_mov_b32 s{SRDA+3}, 0x20000")
                A(f"  v_lshlrev_b32 v4, 4, v{vJ}\n  v_lshl_add_u32 v4, v{vG}, 13, v4")
                A(f"  s_lshl_b32 s40, s{sH}, 17\n  s_lshl_b32 s60, s{sHW}, 8\n  s_add_u32 s40, s40, s60")
                self.wload32(SRDA, [1024 if i % 8 < 7 else 1024 * 25 for i in range(32)], c["HDO"], frac=c["HDOf"])
                self.stamp(6)
            A("  s_branch L_exit")
        A(f"  s_mov_b32 s{SRDA}, s{sWQ}\n  s_mov_b32 s{SRDA+1}, s{sWQ+1}\n  s_mov_b32 s{SRDA+2}, 4194304\n  s_mov_b32 s{SRDA+3}, 0x20000")
        sh, steps = self.wq_pattern()
        A(f"  v_lshlrev_b32 v4, 4, v{vJ}\n  v_lshl_add_u32 v4, v{vG}, {sh}, v4")
        A(f"  s_lshl_b32 s40, s{sHW}, 20\n  s_lshl_b32 s60, s{sH}, 8\n  s_add_u32 s40, s40, s60")
        A(f"  s_cmp_lt_u32 s57, 48\n  s_cbranch_scc1 L_prodh")
        A(f"  s_cmp_eq_u32 s57, 64\n  s_cselect_b32 s45, 3, 0")
        A(f"  s_cmp_gt_u32 s{sHW}, s45\n  s_cbranch_scc1 L_wq123")
        A(f"  s_lshl_b32 s46, s{sHW}, 1\n  s_add_u32 s46, s46, s{sB}\n  s_lshl_b32 s47, s{sHW}, 10")
        A(f"  s_lshl_b32 s60, s46, 10\n  v_add_u32 v36, s60, v{vL16}\n  global_load_dwordx4 {vq(28)}, v36, {sp(sX)}")
        A(f"  s_mul_i32 s60, s46, 6144\n  s_add_u32 s60, s60, {WS_MOD}\n  v_add_u32 v36, s60, v{vL16}")
        A(f"  s_lshl_b32 s60, s46, 8\n  s_add_u32 s60, s60, {WS_MARK}\n  v_lshrrev_b32 v37, 3, v{vLANE}\n  v_lshl_add_u32 v37, v37, 2, s60")
        HD = c["HD"]
        def ln():
            self.unpack8(28, 8); self.layernorm(8, 16, 24)
            A(f"  s_load_dword s44, {sp(sDBG)}, 0x80")
        def gather():
            l = self.lab("pollHN"); d = self.lab("gotHN")
            A(f"  s_waitcnt lgkmcnt(0)\n{l}:\n  s_cmp_lg_u32 s44, 0\n  s_cbranch_scc1 {d}")
            self.guard()
            A(f"  s_load_dword s44, {sp(sDBG)}, 0x80 glc\n  s_waitcnt lgkmcnt(0)\n  s_branch {l}\n{d}:")
            self.stamp(1)
            self.h0_issue("")
            A(f"  v_mov_b32 v26, s44\n  ds_write_b32 v{vZ}, v26 offset:{F_N}")
        self.wload32(SRDA, steps, HD, frac=c["HDf"], hooks={HD + 3: ln, c["P0"]: gather, c["P0"] + HD: self.h0_finish}, fl=c["wqfl"])
        A("  s_branch L_q")
        A("L_wq123:")
        l = self.lab("nozero")
        A(f"  s_cmp_lg_u32 s{sHW}, 3\n  s_cbranch_scc1 {l}\n  s_cmp_lt_u32 s57, 256\n  s_cbranch_scc1 {l}\n  s_cmp_ge_u32 s57, {256+8}\n  s_cbranch_scc1 {l}")
        A("  v_mov_b32 v12, 0\n  v_mov_b32 v13, 0\n  v_mov_b32 v14, 0\n  v_mov_b32 v15, 0")
        A(f"  s_sub_u32 s61, s57, 256\n  s_lshl_b32 s60, s61, 12\n  s_add_u32 s60, s60, {WS_ACC}\n  v_add_u32 v5, s60, v{vL16}")
        for i in range(4): A(f"  global_store_dwordx4 v5, {vq(12)}, {sp(sWS)} offset:{1024*i} sc1")
        A(f"{l}:")
        def ticket():
            l = self.lab("notick"); lp = self.lab("pollZN"); d = self.lab("gotZN")
            A(f"  s_cmp_lg_u32 s{sHW}, 3\n  s_cbranch_scc1 {l}\n  s_cmp_lt_u32 s57, 256\n  s_cbranch_scc1 {l}\n  s_cmp_ge_u32 s57, {256+8}\n  s_cbranch_scc1 {l}")
            A(f"  s_mov_b32 s65, 1\n  s_atomic_add s65, {sp(sDBG)}, 0x8 glc\n  s_waitcnt lgkmcnt(0)\n  s_cmp_lg_u32 s65, 7\n  s_cbranch_scc1 {l}")
            A(f"{lp}:\n  s_load_dword s44, {sp(sDBG)}, 0x80 glc\n  s_waitcnt lgkmcnt(0)\n  s_cmp_lg_u32 s44, 0\n  s_cbranch_scc1 {d}")
            self.guard()
            A(f"  s_branch {lp}\n{d}:\n  v_mov_b32 v7, s44")
            self.exec1(); A(f"  global_store_dword v{vZ}, v7, {sp(sDBG)} offset:136 sc1"); self.execall()
            A(f"{l}:")
        self.wload32(SRDA, steps, HD, frac=c["HDf"], hooks={HD + 2: ticket}, fl=c["wqfl"])
        A("L_q:")
        self.stamp(4)
        A("  s_add_u32 s61, s45, 1")
        self.lds_spin(F_H, "s61", 7)
        p32 = c["wqpat"] == 32
        A(f"  s_lshl_b32 s60, s{sHW}, 8\n  v_lshl_add_u32 v4, v{vG}, {6 if p32 else 4}, s60\n  v_and_b32 v5, s45, v{vJ}\n  v_lshl_add_u32 v4, v5, 10, v4")
        for m in range(4): A(f"  ds_read_b128 {vq(8+4*m)}, v4 offset:{L_HBUF + (16 if p32 else 64)*m}")
        A(f"  ds_read_b32 v7, v{vZ} offset:{F_N}")
        A(f"  s_lshl_b32 s60, s{sHW}, 11\n  v_lshl_add_u32 v5, v{vJ}, 5, s60\n  v_add_u32 v5, {L_QP}, v5")
        A(f"  s_mov_b32 s{SRDA}, s{sWO}\n  s_mov_b32 s{SRDA+1}, s{sWO+1}\n  s_mov_b32 s{SRDA+2}, 4194304\n  s_mov_b32 s{SRDA+3}, 0x20000")
        A(f"  s_lshl_b32 s40, s{sH}, 17\n  s_lshl_b32 s60, s{sHW}, 8\n  s_add_u32 s40, s40, s60")
        A("  s_waitcnt lgkmcnt(0)")
        A(f"  v_readfirstlane_b32 s44, v7\n  v_lshlrev_b32 v4, 4, v{vJ}\n  v_lshl_add_u32 v4, v{vG}, 13, v4")
        res = self.gemv32()
        A("  s_mov_b64 exec, 0xffff")
        for cc in range(0, 8, 2):
            A(f"  ds_write2_b32 v5, v{res[cc]}, v{res[cc+1]} offset0:{cc} offset1:{cc+1}")
        l = self.lab("onerow")
        A(f"  s_cmp_eq_u32 s45, 0\n  s_cbranch_scc1 {l}")
        for r in range(1, 4):
            A(f"  v_add_u32 v5, 512, v5")
            for cc in range(0, 8, 2):
                A(f"  ds_write2_b32 v5, v{res[cc]+r}, v{res[cc+1]+r} offset0:{cc} offset1:{cc+1}")
        A(f"{l}:")
        self.exec1()
        A(f"  ds_add_rtn_u32 v7, v{vZ}, v{vONE} offset:{F_Q}\n  s_waitcnt lgkmcnt(0)\n  v_readfirstlane_b32 s60, v7")
        self.execall()
        l = self.lab("notlastq")
        A(f"  s_cmp_lg_u32 s60, 3\n  s_cbranch_scc1 {l}")
        A(f"  v_lshlrev_b32 v6, 3, v{vLANE}")
        for part in range(4): A(f"  ds_read_b64 {vp(8+2*part)}, v6 offset:{L_QP + 2048*part}")
        A(f"  s_lshl_b32 s60, s2, 9\n  s_add_u32 s60, s60, {WS_QIN}\n  v_add_u32 v7, s60, v6")
        A(f"  v_lshlrev_b32 v5, 2, v{vLANE}\n  s_waitcnt lgkmcnt(0)")
        A("  v_add_f32 v8, v8, v10\n  v_add_f32 v9, v9, v11\n  v_add_f32 v12, v12, v14\n  v_add_f32 v13, v13, v15\n  v_add_f32 v8, v8, v12\n  v_add_f32 v9, v9, v13")
        A(f"  v_cvt_pk_bf16_f32 v8, v8, v9\n  ds_write_b32 v5, v8 offset:{L_QB}")
        l2 = self.lab("nodon")
        A(f"  s_cmp_eq_u32 s45, 0\n  s_cbranch_scc1 {l2}")
        for r in range(1, 4):
            for part in range(4): A(f"  ds_read_b64 {vp(16+2*part)}, v6 offset:{L_QP + 2048*part + 512*r}")
            A(f"  v_add_u32 v7, {64*512}, v7\n  s_waitcnt lgkmcnt(0)")
            A("  v_add_f32 v16, v16, v18\n  v_add_f32 v17, v17, v19\n  v_add_f32 v20, v20, v22\n  v_add_f32 v21, v21, v23\n  v_add_f32 v16, v16, v20\n  v_add_f32 v17, v17, v21")
            A(f"  v_cvt_pk_bf16_f32 v{24+2*r}, v16, v17\n  v_mov_b32 v{25+2*r}, s44\n  global_store_dwordx2 v7, {vp(24+2*r)}, {sp(sWS)} sc1")
        A(f"{l2}:")
        self.lds_inc(F_Q2)
        self.dumpv(8, 1, 0x80000, 2, 256)
        A(f"{l}:")
        self.stamp(5)
        steps = [1024 if i % 8 < 7 else 1024 * 25 for i in range(32)]
        def chkB():
            l0 = self.lab("noB")
            A(f"  s_cmp_lg_u32 s{sHW}, 1\n  s_cbranch_scc1 {l0}")
            if "B" not in c["xskip"]: self.get_flag(7, 136, 45, expect="s44")
            self.lds_inc(F_C)
            A(f"{l0}:")
        def rowloads(fl):
            for i in range(4): A(f"  global_load_dwordx4 {vq(12+4*i)}, v36, {sp(sWS)} offset:{1024*i}{fl}")
            for i in range(4): A(f"  global_load_dword v{28+i}, v37, {sp(sWS)} offset:{32*i}{fl}")
        def rows_a():
            if "R" in c["xskip"]: return
            l = self.lab("norows")
            A(f"  s_cmp_ge_u32 s{sHW}, 2\n  s_cbranch_scc1 {l}\n  s_cmp_eq_u32 s{sFFN}, 0\n  s_cbranch_scc1 {l}")
            A(f"  s_lshl_b32 s41, s{sJ}, 1\n  s_add_u32 s41, s41, s{sHW}")
            A(f"  s_mul_i32 s60, s41, 6144\n  s_add_u32 s60, s60, {WS_MOD + 2048}\n  v_add_u32 v36, s60, v{vL16}")
            A(f"  s_lshl_b32 s60, s41, 8\n  s_add_u32 s60, s60, {WS_MARK + 64}\n  v_lshrrev_b32 v37, 3, v{vLANE}\n  v_lshl_add_u32 v37, v37, 2, s60")
            rowloads("")
            A(f"  s_lshl_b32 s60, s41, 10\n  v_add_u32 v7, s60, v{vL16}\n  global_load_dwordx4 {vq(8)}, v7, {sp(sX)}")
            A(f"{l}:")
        def rows_b():
            if "R" in c["xskip"]: return
            l = self.lab("norows2")
            A(f"  s_cmp_ge_u32 s{sHW}, 2\n  s_cbranch_scc1 {l}\n  s_cmp_eq_u32 s{sFFN}, 0\n  s_cbranch_scc1 {l}")
            lr = self.lab("chkR"); dr = self.lab("gotR")
            A(f"{lr}:")
            self.check_lines([12, 16, 20, 24], [28, 29, 30, 31], 32)
            A(f"  s_cbranch_vccz {dr}")
            self.guard()
            rowloads(" sc1")
            A(f"  s_waitcnt vmcnt(0)\n  s_branch {lr}\n{dr}:")
            self.unpack8(20, 28)
            for i in range(8): A(f"  v_add_f32 v{28+i}, 1.0, v{28+i}")
            for i in range(4): A(f"  v_cvt_pk_bf16_f32 v{20+i}, v{28+2*i}, v{29+2*i}")
            self.lds_spin(F_Q2, 1, 7)
            A(f"  s_mul_i32 s60, s{sHW}, 5120\n  v_add_u32 v36, s60, v{vL16}")
            for i in range(5): A(f"  ds_write_b128 v36, {vq(8+4*i)} offset:{L_ROWS + 1024*i}")
            A(f"{l}:")
        self.wload32(SRDA, steps, c["HDO"], frac=c["HDOf"], hooks={c["PB"]: chkB, c["PR"]: rows_a, c["PR"] + c["HDO"]: rows_b})
        A("  s_branch L_wo")
        A("L_prodh:")
        A(f"  s_mov_b32 s{SRDA}, s{sWO}\n  s_mov_b32 s{SRDA+1}, s{sWO+1}\n  s_mov_b32 s{SRDA+2}, 4194304\n  s_mov_b32 s{SRDA+3}, 0x20000")
        A(f"  s_lshl_b32 s40, s{sH}, 17\n  s_lshl_b32 s60, s{sHW}, 8\n  s_add_u32 s40, s40, s60")
        A(f"  v_lshlrev_b32 v4, 4, v{vJ}\n  v_lshl_add_u32 v4, v{vG}, 13, v4")
        def recvq():
            l0 = self.lab("noq"); l = self.lab("pollPN"); d = self.lab("gotPN"); lq = self.lab("pollPQ"); dq = self.lab("gotPQ")
            A(f"  s_cmp_lg_u32 s{sHW}, 0\n  s_cbranch_scc1 {l0}")
            A(f"  s_load_dword s44, {sp(sDBG)}, 0x80\n  s_waitcnt lgkmcnt(0)\n{l}:\n  s_cmp_lg_u32 s44, 0\n  s_cbranch_scc1 {d}")
            self.guard()
            A(f"  s_load_dword s44, {sp(sDBG)}, 0x80 glc\n  s_waitcnt lgkmcnt(0)\n  s_branch {l}\n{d}:")
            A(f"  v_mov_b32 v26, s44\n  ds_write_b32 v{vZ}, v26 offset:{F_N}")
            A(f"  s_lshl_b32 s60, s2, 9\n  s_add_u32 s60, s60, {WS_QIN}\n  v_lshl_add_u32 v7, v{vLANE}, 3, s60\n  s_add_u32 s61, s60, 4")
            if "PQ" in c["xskip"]: A(f"  s_branch {dq}")
            A(f"{lq}:\n  s_load_dword s60, {sp(sWS)}, s61 glc\n  s_waitcnt lgkmcnt(0)\n  s_cmp_eq_u32 s60, s44\n  s_cbranch_scc0 {lq}_r")
            A(f"  global_load_dwordx2 v[8:9], v7, {sp(sWS)} sc1\n  s_waitcnt vmcnt(0)\n  v_cmp_ne_u32 vcc, s44, v9\n  s_cbranch_vccz {dq}")
            A(f"{lq}_r:")
            self.guard()
            A(f"  s_sleep {c['q_sleep']}\n  s_branch {lq}\n{dq}:")
            A(f"  v_lshlrev_b32 v7, 2, v{vLANE}\n  ds_write_b32 v7, v8 offset:{L_QB}")
            self.lds_inc(F_Q2)
            self.stamp(5)
            self.dumpv(8, 1, 0x80000, 2, 256)
            self.get_flag(7, 136, 45, expect="s44")
            self.lds_inc(F_C)
            A(f"{l0}:")
        self.wload32(SRDA, steps, c["HDP"], frac=c["HDPf"], hooks={c["PQ"]: recvq})
        self.lds_spin(F_Q2, 1, 7, sleep=4)
        A(f"  ds_read_b32 v7, v{vZ} offset:{F_N}\n  s_waitcnt lgkmcnt(0)\n  v_readfirstlane_b32 s44, v7")
        A("L_wo:")
        A("L_wodone:")
        if c["hprio"]: A(f"  s_setprio {c['hprio']}")
        if c["pref2"] and "T" not in c["xskip"]:
            self.prefetch(wait=True)
        self.lds_spin(F_C, 1, 7, sleep=4)
        A(f"  v_lshlrev_b32 v28, {5 if c['oadd'] else 3}, v{vG if c['oadd'] else vLANE}")
        A(f"  s_lshl_b32 s60, s{sHW}, 8\n  v_lshl_add_u32 v29, v{vLANE}, 2, s60\n  v_lshl_add_u32 v30, v{vG}, 4, s60")
        A(f"  v_lshrrev_b32 v31, 2, v{vLANE}\n  v_and_b32 v32, 3, v{vLANE}\n  v_lshl_add_u32 v31, v32, 4, v31\n  v_lshlrev_b32 v36, 2, v31")
        A(f"  s_lshl_b32 s61, s{sB}, 12\n  s_add_u32 s61, s61, {WS_ACC}\n  v_add_u32 v32, s61, v29")
        A(f"  v_mov_b32 v33, 1.0\n  v_mov_b32 v34, 1.0\n  v_mov_b32 v35, 1.0\n  v_mov_b32_dpp v35, v{vZ} quad_perm:[0,1,2,3] row_mask:0x4 bank_mask:0xf")
        self.stamp(6)
        if "T" in c["xskip"]: A("  s_branch L_exit")
        self.lds_spin(F_O, 8, 7, sleep=c['o_sleep'])
        self.stamp(9)
        if c["oadd"]:
            rd = lambda q, off: A(f"  ds_read_b128 {vq(q)}, v28 offset:{L_OP + off}")
            rd(12, 0); rd(16, 16); rd(20, 128); rd(24, 144); rd(4, 256)
            A(f"  s_waitcnt lgkmcnt(3)")
            for i in range(4): A(f"  v_cvt_pk_bf16_f32 v{8+i}, v{12+2*i}, v{13+2*i}")
            A(f"  s_waitcnt lgkmcnt(1)")
            for i in range(4): A(f"  v_cvt_pk_bf16_f32 v{12+i}, v{20+2*i}, v{21+2*i}")
            rd(16, 272); rd(20, 384); rd(24, 400)
            self.stamp(10)
            res = [28] + [40 + 4 * k for k in range(7)]
            for m, Am in enumerate((8, 12, 4, 16)):
                for cc in range(8):
                    A(f"  v_mfma_f32_16x16x32_bf16 {vq(res[cc])}, {vq(Am)}, {vq(40+32*m+4*cc)}, {'0' if m == 0 else vq(res[cc])}")
                    if m == 0 and cc == 5:
                        A(f"  s_waitcnt lgkmcnt(0)")
                        A("  v_cvt_pk_bf16_f32 v4, v4, v5\n  v_cvt_pk_bf16_f32 v5, v6, v7\n  v_cvt_pk_bf16_f32 v6, v16, v17\n  v_cvt_pk_bf16_f32 v7, v18, v19")
                    if m == 1 and cc == 1:
                        for i in range(4): A(f"  v_cvt_pk_bf16_f32 v{16+i}, v{20+2*i}, v{21+2*i}")
        else:
            for part in range(8): A(f"  ds_read_b64 {vp(8+2*part)}, v28 offset:{L_OP + 512*part}")
            A("  s_waitcnt lgkmcnt(4)")
            A("  v_add_f32 v8, v8, v10\n  v_add_f32 v9, v9, v11\n  v_add_f32 v12, v12, v14\n  v_add_f32 v13, v13, v15\n  v_add_f32 v8, v8, v12\n  v_add_f32 v9, v9, v13")
            A("  s_waitcnt lgkmcnt(0)")
            A("  v_add_f32 v16, v16, v18\n  v_add_f32 v17, v17, v19\n  v_add_f32 v20, v20, v22\n  v_add_f32 v21, v21, v23\n  v_add_f32 v16, v16, v20\n  v_add_f32 v17, v17, v21")
            A(f"  v_add_f32 v8, v8, v16\n  v_add_f32 v9, v9, v17\n  v_cvt_pk_bf16_f32 v7, v8, v9\n  ds_write_b32 v29, v7 offset:{L_OB}")
            for m in range(4): A(f"  ds_read_b128 {vq(8+4*m)}, v30 offset:{L_OB + 64*m}")
            A("  s_waitcnt lgkmcnt(0)")
            self.stamp(10)
            res = self.gemv32()
        self.stamp(11)
        for k in range(3):
            for g in range(3):
                if 3 * k + g < 8:
                    A(f"  v_mov_b32_dpp v{33+k}, v{res[3*k+g]} quad_perm:[0,1,2,3] row_mask:{1<<g:#x} bank_mask:0xf")
        for k in range(3): A(f"  ds_bpermute_b32 v{33+k}, v36, v{33+k}")
        for k in range(3):
            A(f"  s_waitcnt lgkmcnt({2-k})\n  global_atomic_add_f32 v32, v{33+k}, {sp(sWS)} offset:{1024*k}")
        if c["gate"]:
            l = self.lab("g01")
            A(f"  s_cmp_lt_u32 s{sHW}, 2\n  s_cbranch_scc1 {l}")
            self.lds_inc(F_A)
            A(f"{l}:")
        else:
            self.lds_inc(F_A)
        self.stamp(7)
        if c["dump"] and not c["oadd"]:
            l = self.lab("nodumpo")
            A(f"  s_cmp_lg_u32 s{sHW}, 3\n  s_cbranch_scc1 {l}")
            self.dumpv(7, 1, 0x90000, 2, 256)
            A(f"{l}:")
        if c["dry"]:
            l = self.lab("nodry"); l2 = self.lab("dryf")
            A(f"  s_cmp_lg_u32 s{sHW}, 2\n  s_cbranch_scc1 {l}\n  s_cmp_lg_u32 s{sFFN}, 0\n  s_cbranch_scc1 {l2}\n  s_cmp_ge_u32 s57, 100\n  s_cbranch_scc1 L_exit")
            A(f"  s_mov_b64 exec, 0\n  s_branch L_dry_r\n{l2}:\n  s_mov_b64 exec, 0\n  s_branch L_dry_l\n{l}:")
        A(f"  s_cmp_ge_u32 s{sHW}, 2\n  s_cbranch_scc1 L_exit\n  s_cmp_lt_u32 s57, 100\n  s_cbranch_scc1 L_recv\n  s_cmp_eq_u32 s{sFFN}, 0\n  s_cbranch_scc1 L_exit")
        A(f"  s_lshl_b32 s45, s{sJ}, 1\n  s_add_u32 s45, s45, s{sHW}\n  s_lshl_b32 s45, s45, 6\n  s_add_u32 s45, s45, s{sSL}\n  s_lshl_b32 s45, s45, 7\n  s_add_u32 s45, s45, {WS_HINT}")
        A(f"  s_load_dword s61, {sp(sWS)}, s45 glc")
        A(f"  s_mul_i32 s60, s{sHW}, 5120\n  v_add_u32 v4, s60, v{vL16}")
        for i in range(4): A(f"  ds_read_b128 {vq(72+4*i)}, v4 offset:{L_ROWS + 1024*i}")
        A(f"  s_lshl_b32 s41, s{sJ}, 1\n  s_add_u32 s41, s41, s{sHW}\n  s_lshl_b32 s41, s41, 12\n  s_add_u32 s41, s41, {WS_ACC}\n  v_add_u32 v5, s41, v{vL16}\n  v_mov_b32 v6, s41")
        A(f"  s_lshl_b32 s60, s{sHW}, 10\n  v_add_u32 v4, s60, v{vL16}")
        A("  s_waitcnt lgkmcnt(0)")
        self.unpack8(72, 88); self.unpack8(76, 96); self.unpack8(80, 104); self.unpack8(84, 112)
        lp = self.lab("pollH"); ld = self.lab("gotH")
        if c["gate"]:
            lg = self.lab("late")
            A(f"  s_cmp_eq_u32 s61, s44\n  s_cbranch_scc1 {lg}")
            self.lds_inc(F_A)
        A(f"{lp}:\n  s_load_dword s60, {sp(sWS)}, s45 glc\n  s_waitcnt lgkmcnt(0)\n  s_cmp_eq_u32 s60, s44\n  s_cbranch_scc1 {ld}")
        self.guard()
        if c["hint_sleep"]: A(f"  s_sleep {c['hint_sleep']}")
        A(f"  s_branch {lp}\n{ld}:")
        if c["read_delay"]: A(f"  s_sleep {c['read_delay']}")
        if c["gate"]:
            for k in range(3): A(f"  global_load_dwordx4 {vq(120+4*k)}, v5, {sp(sWS)} offset:{1024*k} sc1")
            lj = self.lab("gj")
            A(f"  s_branch {lj}\n{lg}:")
            for k in range(3): A(f"  global_load_dwordx4 {vq(120+4*k)}, v5, {sp(sWS)} offset:{1024*k} sc1")
            self.lds_inc(F_A)
            A(f"{lj}:")
        self.stamp(1)
        self.cstamp(13)
        lp = self.lab("pollF"); ld = self.lab("gotF")
        if not c["gate"]:
            for k in range(3): A(f"  global_load_dwordx4 {vq(120+4*k)}, v5, {sp(sWS)} offset:{1024*k} sc1")
        self.lds_inc(F_R)
        A(f"{lp}:")
        A("  s_waitcnt vmcnt(0)\n  v_min3_f32 v7, v123, v127, v131\n  v_cmp_neq_f32 vcc, 0x42000000, v7")
        A(f"  s_cbranch_vccz {ld}")
        self.guard()
        if c["full_sleep"]: A(f"  s_sleep {c['full_sleep']}")
        for k in range(3): A(f"  global_load_dwordx4 {vq(120+4*k)}, v5, {sp(sWS)} offset:{1024*k} sc1")
        A(f"  s_branch {lp}\n{ld}:")
        self.stamp(2)
        self.cstamp(15)
        A("L_dry_l:")
        src = [120, 121, 122, 124, 125, 126, 128, 129]
        for i in range(4): A(f"  v_cvt_pk_bf16_f32 v{16+i}, v{src[2*i]}, v{src[2*i+1]}")
        self.unpack8(16, 8)
        self.pk8("mul", 8, 96, 8)
        self.rnd8(8, 16)
        self.pk8("add", 8, 88, 8)
        for i in range(4): A(f"  v_cvt_pk_bf16_f32 v{28+i}, v{8+2*i}, v{9+2*i}")
        self.unpack8(28, 8)
        self.layernorm(8, 16, 24)
        self.pk8("mul", 8, 8, 112)
        self.rnd8(8, 16)
        self.pk8("add", 8, 8, 104)
        for i in range(4): A(f"  v_cvt_pk_bf16_f32 v{24+i}, v{8+2*i}, v{9+2*i}")
        A(f"  ds_write_b128 v4, {vq(24)} offset:{L_H2}\n  ds_write_b128 v4, {vq(28)} offset:{L_X1}\n  s_waitcnt lgkmcnt(0)")
        if c["dry"]: A("  s_cbranch_execz L_dry_red")
        self.stamp(3)
        A("  s_barrier")
        if c["dump"]:
            A(f"  s_lshl_b32 s69, s2, 1\n  s_add_u32 s69, s69, s{sHW}")
            self.dumpv(24, 4, 0x600000, 69, 1024)
        A(f"  s_cmp_eq_u32 s{sHW}, 0\n  s_cbranch_scc1 L_reducer")
        A(f"  s_cmp_ge_u32 s{sSL}, 32\n  s_cbranch_scc1 {'L_h1bar' if c['stamps'] else 'L_exit'}")
        A(f"  s_lshr_b32 s60, s{sSL}, 2\n  s_lshl_b32 s60, s60, 7\n  s_and_b32 s61, s{sSL}, 3\n  s_lshl_b32 s61, s61, 1\n  s_add_u32 s60, s60, s61\n  v_lshl_add_u32 v4, v{vJ}, 3, s60")
        A(f"  ds_read_u16 v8, v4 offset:{L_X1}\n  ds_read_u16 v9, v4 offset:{L_ROWS + 4096}\n  ds_read_u16 v12, v4 offset:{L_X1 + 1024}\n  ds_read_u16 v13, v4 offset:{L_ROWS + 4096 + 5120}")
        A(f"  s_lshl_b32 s60, s{sJ}, 5\n  s_add_u32 s60, s60, s{sSL}\n  s_mul_i32 s60, s60, {INB}\n  s_add_u32 s60, s60, {WS_INBOX + 43*256}\n  v_lshl_add_u32 v5, v{vJ}, 4, s60")
        A(f"  s_xor_b32 s45, s44, {TAGX:#x}\n  v_mov_b32 v10, s44\n  v_mov_b32 v11, s45\n  s_mov_b64 exec, 0xffff\n  s_waitcnt lgkmcnt(0)\n  v_lshl_or_b32 v8, v12, 16, v8\n  v_lshl_or_b32 v9, v13, 16, v9")
        A(f"  global_store_dwordx4 v5, {vq(8)}, {sp(sWS)} sc1")
        A("L_h1bar:\n  s_barrier\n  s_barrier\n  s_branch L_exit2")
        A("L_recv:")
        A(f"  s_lshl_b32 s41, s{sB}, 3\n  s_add_u32 s41, s41, s{sXCD}\n  s_lshl_b32 s41, s41, 1\n  s_add_u32 s41, s41, s{sHW}")
        A(f"  s_mul_i32 s46, s41, {INB}\n  s_add_u32 s46, s46, {WS_INBOX}\n  s_add_u32 s47, s46, {43*256 + 8}\n  s_add_u32 s60, s46, 4096\n  v_add_u32 v5, s60, v{vL16}\n  v_add_u32 v7, 4096, v5")
        A(f"  s_lshr_b32 s60, s41, 5\n  s_lshl_b32 s60, s60, 11\n  s_bfe_u32 s61, s41, 0x30002\n  s_lshl_b32 s61, s61, 7\n  s_add_u32 s60, s60, s61\n  s_and_b32 s61, s41, 3\n  s_lshl_b32 s61, s61, 1\n  s_add_u32 s60, s60, s61")
        A(f"  v_and_b32 v4, 1, v{vG}\n  v_lshl_add_u32 v6, v{vJ}, 3, s60\n  v_lshl_add_u32 v6, v4, 10, v6\n  v_lshlrev_b32 v4, 4, v4\n  v_sub_u32 v4, 16, v4")
        A(f"  s_xor_b32 s45, s44, {TAGX:#x}")
        lp = self.lab("pollX"); ld = self.lab("gotX")
        A(f"{lp}:\n  s_load_dword s60, {sp(sWS)}, s47 glc\n  s_waitcnt lgkmcnt(0)\n  s_cmp_eq_u32 s60, s44\n  s_cbranch_scc1 {ld}")
        self.guard()
        A(f"  s_sleep {c['rx_sleep']}\n  s_branch {lp}\n{ld}:")
        self.stamp(1)
        if c["rx_delay"]: A(f"  s_sleep {c['rx_delay']}")
        lp = self.lab("pollI"); ld = self.lab("gotI")
        A(f"{lp}:")
        for i in range(11): A(f"  global_load_dwordx4 {vq(44+4*i)}, v{5 if i < 8 else 7}, {sp(sWS)} offset:{1024*i - (4096 if i < 8 else 8192)} sc1")
        A("L_dry_r:")
        for i in range(11):
            q = 44 + 4 * i
            A(f"  s_waitcnt vmcnt({10-i})")
            if i == 0:
                A(f"  v_xor_b32 v10, s44, v{q+2}\n  v_xor_b32 v11, s45, v{q+3}\n  v_mov_b32 v8, v{q}\n  v_mov_b32 v9, v{q+1}")
            else:
                A(f"  v_bitop3_b32 v10, v10, v{q+2}, s44 bitop3:0xf6\n  v_bitop3_b32 v11, v11, v{q+3}, s45 bitop3:0xf6")
                if i < 10: A(f"  v_add_f32 v8, v8, v{q}\n  v_add_f32 v9, v9, v{q+1}")
                else: A(f"  v_add_f32_dpp v8, v{q}, v8 quad_perm:[0,1,2,3] row_mask:0x7 bank_mask:0xf\n  v_add_f32_dpp v9, v{q+1}, v9 quad_perm:[0,1,2,3] row_mask:0x7 bank_mask:0xf")
        A(f"  v_or_b32 v10, v10, v11\n  v_cmp_ne_u32 vcc, 0, v10\n  s_cbranch_vccz {ld}")
        self.guard()
        A(f"  s_branch {lp}\n{ld}:")
        self.stamp(4); self.cstamp(15)
        A("  v_mov_b32 v12, v84\n  v_mov_b32 v13, v85\n  v_permlane16_swap_b32 v8, v9\n  v_permlane32_swap_b32 v12, v84\n  v_permlane32_swap_b32 v13, v85")
        A("  v_add_f32 v8, v8, v9\n  v_mov_b32 v12, v84\n  v_mov_b32 v13, v85\n  v_mov_b32 v9, v8")
        A("  v_permlane16_swap_b32 v12, v84\n  v_permlane16_swap_b32 v13, v85\n  v_permlane32_swap_b32 v9, v8")
        A("  v_lshlrev_b32 v84, v4, v84\n  v_lshlrev_b32 v85, v4, v85\n  v_add_f32 v8, v8, v9\n  v_and_b32 v84, 0xffff0000, v84\n  v_and_b32 v85, 0xffff0000, v85")
        self.rnd1(8, 9)
        A("  v_mul_f32 v8, v85, v8"); self.rnd1(8, 9)
        A("  v_add_f32 v8, v84, v8\n  v_cvt_pk_bf16_f32 v8, v8, v8")
        if c["dry"]: A("  s_cbranch_execz L_exit")
        A("  s_mov_b32 exec_hi, 0")
        A(f"  global_store_short v6, v8, {sp(sOUT)}{c['outfl']}")
        self.execall()
        self.stamp(5)
        A("  s_branch L_exit")
        A("L_reducer:")
        A(f"  v_lshlrev_b32 v4, 2, v{vLANE}\n  v_add_u32 v4, {L_GUP}, v4")
        A(f"  v_and_b32 v5, 1, v{vLANE}\n  v_lshlrev_b32 v5, 6, v5\n  v_and_b32 v6, 62, v{vLANE}\n  v_add_u32 v5, v5, v6")
        A("  s_barrier")
        A("L_dry_red:")
        for w in range(8): A(f"  ds_read2st64_b32 {vp(8+2*w)}, v4 offset0:{2*w} offset1:{2*w+1}")
        A("  s_waitcnt lgkmcnt(4)")
        A("  v_add_f32 v8, v8, v10\n  v_add_f32 v9, v9, v11\n  v_add_f32 v12, v12, v14\n  v_add_f32 v13, v13, v15\n  v_add_f32 v8, v8, v12\n  v_add_f32 v9, v9, v13")
        A("  s_waitcnt lgkmcnt(0)")
        A("  v_add_f32 v16, v16, v18\n  v_add_f32 v17, v17, v19\n  v_add_f32 v20, v20, v22\n  v_add_f32 v21, v21, v23\n  v_add_f32 v16, v16, v20\n  v_add_f32 v17, v17, v21")
        A("  v_add_f32 v8, v8, v16\n  v_add_f32 v9, v9, v17")
        self.rnd2(8, 9, 10)
        A(f"  v_mul_f32 v8, s{sLOG2E}, v8\n  v_exp_f32 v8, -v8\n  v_add_f32 v8, 1.0, v8\n  v_rcp_f32 v8, v8")
        self.rnd1(8, 10)
        A(f"  v_mul_f32 v8, v8, v9\n  v_cvt_pk_bf16_f32 v8, v8, v8\n  ds_write_b16 v5, v8 offset:{L_HH}\n  s_waitcnt lgkmcnt(0)")
        if c["dry"]: A("  s_cbranch_execz L_dry_s")
        A("  s_barrier")
        self.stamp(4)
        self.dumpv(8, 1, 0xE0000, 2, 256)
        A("  s_branch L_exit2")

    def build(self):
        A = self.A; c = self.c
        A(f"{KNAME}:")
        if c["stamps"]:
            for k in range(1, 16): A(f"  s_mov_b64 s[{70+2*k}:{71+2*k}], 0")
        self.stamp(0)
        A("  s_cmp_ge_u32 s2, 256\n  s_cbranch_scc1 L_end")
        A("  s_load_dwordx16 s[4:19], s[0:1], 0\n  s_load_dwordx8 s[20:27], s[0:1], 64\n  s_load_dwordx4 s[28:31], s[0:1], 96")
        A(f"  v_lshrrev_b32 v2, 6, v0\n  v_and_b32 v0, 63, v0\n  v_readfirstlane_b32 s{sWAVE}, v2")
        A(f"  v_lshlrev_b32 v{vL16}, 4, v0")
        A(f"  s_and_b32 s{sXCD}, s2, 7\n  s_lshr_b32 s{sIDX}, s2, 3\n  s_lshr_b32 s{sB}, s{sIDX}, 2\n  s_and_b32 s{sJ}, s{sIDX}, 3")
        if c["hmap"] == 0: A(f"  s_lshl_b32 s{sH}, s{sXCD}, 2\n  s_add_u32 s{sH}, s{sH}, s{sJ}")
        elif c["hmap"] == 1: A(f"  s_lshl_b32 s{sH}, s{sJ}, 3\n  s_add_u32 s{sH}, s{sH}, s{sXCD}")
        elif c["hmap"] == 2: A(f"  s_lshr_b32 s{sH}, s{sXCD}, 1\n  s_lshl_b32 s{sH}, s{sH}, 3\n  s_and_b32 s60, s{sXCD}, 1\n  s_add_u32 s{sH}, s{sH}, s60\n  s_lshl_b32 s60, s{sJ}, 1\n  s_add_u32 s{sH}, s{sH}, s60")
        elif c["hmap"] == 3: A(f"  s_lshl_b32 s{sH}, s{sXCD}, 2\n  s_add_u32 s60, s{sJ}, 1\n  s_and_b32 s60, s60, 3\n  s_add_u32 s{sH}, s{sH}, s60")
        if c["fast0"]:
            l = self.lab("nofast")
            A(f"  s_cmp_ge_u32 s{sWAVE}, 8\n  s_cbranch_scc1 {l}")
            A(f"  s_lshl_b32 s56, s{sB}, 5\n  s_add_u32 s56, s56, s{sH}\n  s_lshl_b32 s56, s56, 20\n  s_add_u32 s56, s56, 0xC0000\n  s_lshl_b32 s{sOFF}, s{sWAVE}, {10 + c['gran'].bit_length() - 1}")
            A(f"  s_mov_b32 s{SRDA+2}, 0x40000\n  s_mov_b32 s{SRDA+3}, 0x20000\n  s_waitcnt lgkmcnt(0)\n  s_add_u32 s{SRDA}, s{sK}, s56\n  s_addc_u32 s{SRDA+1}, s{sK+1}, 0")
            for n in range(2): A(f"  buffer_load_dwordx4 {vq(40+4*n)}, v{vL16}, {sq(SRDA)}, s{sOFF} offen offset:{1024*n}{c['kfl']}")
            self.stamp(8)
            A(f"{l}:")
        if c["pref"]: self.prefetch()
        A(f"  v_mov_b32 v36, 0\n  v_mov_b32 v37, 0\n  v_lshrrev_b32 v{vG}, 4, v0\n  v_and_b32 v{vJ}, 15, v0\n  v_mov_b32 v{vZ}, 0\n  v_mov_b32 v{vONE}, 1")
        A(f"  s_mul_i32 s65, s{sB}, 3\n  s_add_u32 s65, s65, s{sJ}\n  s_lshr_b32 s60, s{sJ}, 1\n  s_sub_u32 s65, s65, s60\n  s_lshr_b32 s61, s65, 2")
        A(f"  s_lshr_b32 s60, s{sXCD}, 1\n  s_mul_i32 s{sSL}, s{sXCD}, 5\n  s_add_u32 s{sSL}, s{sSL}, s60\n  s_add_u32 s{sSL}, s{sSL}, s61\n  s_sub_u32 s{sSL}, s{sSL}, 1")
        A(f"  s_and_b32 s60, s{sXCD}, 1\n  s_add_u32 s60, s60, 5\n  s_cmp_lt_u32 s61, s60\n  s_cselect_b32 s{sFFN}, 1, 0\n  s_cmp_lt_u32 s{sSL}, 43\n  s_cselect_b32 s{sFFN}, s{sFFN}, 0")
        A(f"  s_add_u32 s60, s{sXCD}, 256\n  s_cmp_eq_u32 s{sIDX}, 28\n  s_cselect_b32 s57, s60, 100")
        A(f"  s_sub_u32 s60, s{sB}, {c['prodb']}\n  s_lshl_b32 s60, s60, 3\n  s_add_u32 s60, s60, s{sXCD}\n  s_cmp_lt_u32 s{sB}, {c['prodb']}\n  s_cselect_b32 s60, 64, s60")
        A(f"  s_cmp_eq_u32 s{sJ}, 1\n  s_cselect_b32 s57, s60, s57\n  s_cselect_b32 s{sFFN}, 0, s{sFFN}\n  s_and_b32 s{sJ}, s65, 3")
        if "M" in c["xskip"]: A("  s_cmp_lt_u32 s57, 48\n  s_cselect_b32 s57, 100, s57")
        if "F" in c["xskip"]: A("  s_cmp_ge_u32 s57, 256\n  s_cselect_b32 s57, 100, s57")
        A(f"  s_mov_b32 s{sGUARD}, 0\n  s_mov_b32 s{sPLO}, 0x05040100\n  s_mov_b32 s{sPHI}, 0x07060302\n  s_mov_b32 s{sLOG2E}, {LOG2E:#x}")
        A(f"  s_cmp_ge_u32 s{sWAVE}, 8\n  s_cbranch_scc1 L_helper")
        if c["sprio"]:
            l = self.lab("sp")
            A(f"  s_cmp_lt_u32 s{sWAVE}, 4\n  s_cbranch_scc1 {l}\n  s_setprio {c['sprio']}\n{l}:")
        A(f"  s_lshl_b32 s60, s{sB}, 5\n  s_add_u32 s60, s60, s{sH}\n  s_lshl_b32 s60, s60, 20\n  s_add_u32 s60, s60, 0xC0000")
        A(f"  s_lshl_b32 s{sOFF}, s{sWAVE}, {10 + c['gran'].bit_length() - 1}\n  s_mul_i32 s56, s{sWAVE}, {c['NV']*1024}\n  s_add_u32 s56, s56, {L_V}")
        gr = c["gran"] // 4
        for G in range(1, 8): A(f"  s_add_u32 s{sOFF+G}, s{sOFF}, {(G // gr) * 32768 * gr + (G % gr) * 4096}")
        A(f"  s_mov_b32 s{SRDA+2}, 0x40000\n  s_mov_b32 s{SRDA+3}, 0x20000\n  s_mov_b32 s{SRDB+2}, 0x40000\n  s_mov_b32 s{SRDB+3}, 0x20000")
        A("  s_waitcnt lgkmcnt(0)")
        D = c["D"]
        d2 = c["depth2"] or c["depth"]
        def mask(f1, f2):
            m = 0; acc = 0.5
            for n in range(64):
                acc += f1 if n < c["dsw"] else f2
                if acc >= 1.0 - 1e-9:
                    acc -= 1.0; m |= 1 << n
            return m
        m1 = [mask(min(1.0, D - a), min(1.0, D - b)) for a, b in zip(c["depth"], d2)]
        m2 = [mask(max(0.0, D - 1 - a), max(0.0, D - 1 - b)) & x for a, b, x in zip(c["depth"], d2, m1)]
        for reg, ms in ((58, m1), (14, m2)):
            for half in range(2):
                w = [(m >> (32 * half)) & 0xffffffff for m in ms]
                A(f"  s_bitcmp1_b32 s{sXCD}, 0\n  s_mov_b32 s{reg+half}, {w[0]:#x}\n  s_cselect_b32 s{reg+half}, {w[1]:#x}, s{reg+half}")
                A(f"  s_cmp_lt_u32 s57, 48\n  s_cselect_b32 s{reg+half}, {w[2]:#x}, s{reg+half}\n  s_cmp_eq_u32 s57, 64\n  s_cselect_b32 s{reg+half}, {w[3]:#x}, s{reg+half}")
        A("  s_waitcnt lgkmcnt(0)")
        A(f"  s_add_u32 s{SRDA}, s{sK}, s60\n  s_addc_u32 s{SRDA+1}, s{sK+1}, 0\n  s_add_u32 s{SRDB}, s{sV}, s60\n  s_addc_u32 s{SRDB+1}, s{sV+1}, 0")
        if c["Dodd"]:
            A(f"  s_bitcmp1_b32 s{sXCD}, 0\n  s_cbranch_scc1 L_sodd")
        self.streamer(c["D"], "e")
        if c["Dodd"]:
            A("L_sodd:")
            self.streamer(c["Dodd"], "o")
        self.streamer_ffn()
        self.helper()
        A("L_exit2:")
        if c["stamps"]: A("  s_sleep 100")
        A("L_exit:")
        if c["stamps"]:
            A("  s_mov_b64 exec, 1\n  s_waitcnt lgkmcnt(0)")
            A(f"  s_mul_i32 s60, s2, 12\n  s_add_u32 s60, s60, s{sWAVE}\n  s_lshl_b32 s60, s60, 7\n  s_add_u32 s60, s60, {WS_STAMP}\n  v_mov_b32 v4, s60")
            for k in range(16):
                A(f"  v_mov_b32 v6, s{70+2*k}\n  v_mov_b32 v7, s{71+2*k}\n  global_store_dwordx2 v4, v[6:7], {sp(sWS)} offset:{8*k}")
        A("L_end:\n  s_endpgm")
        body = fix_hazards(self.L)
        nk = c["prefkib"]
        out = HEADER + f"; @launch grid=(256,1,1) block=(768,1,1) lds={L_V + 8192*c['NV']}\n"
        out += '.amdgcn_target "amdgcn-amd-amdhsa--gfx950"\n.text\n'
        out += f".globl {KNAME}\n.p2align 8\n.type {KNAME},@function\n" + body
        out += f"  .fill 64, 4, 0xbf800000\nL_codeend:\n.if (L_codeend - {KNAME}) < {nk*1024}\n.fill ({nk*1024} - (L_codeend - {KNAME}))/4, 4, 0xbf800000\n.endif\n"
        out += f""".section .rodata,"a"
.p2align 6
.amdhsa_kernel {KNAME}
  .amdhsa_next_free_vgpr 168
  .amdhsa_next_free_sgpr 102
  .amdhsa_accum_offset 168
  .amdhsa_group_segment_fixed_size 0
  .amdhsa_kernarg_size 112
  .amdhsa_user_sgpr_count 2
  .amdhsa_user_sgpr_kernarg_segment_ptr 1
  .amdhsa_system_sgpr_workgroup_id_x 1
  .amdhsa_float_denorm_mode_32 3
.end_amdhsa_kernel
"""
        return out

def gen(**cfg): return Gen(**cfg).build()

if __name__ == "__main__":
    import json
    cfg = json.loads(sys.argv[2]) if len(sys.argv) > 2 else {}
    open(sys.argv[1], "w").write(gen(**cfg))
```

```python
import sys, struct
from asmlib import fix_hazards

KNAME = "adaLN_cond__sliding_block_cached__glu_gated_glu__decode_kernel"

HEADER = """; Kernarg layout for this problem (112 bytes, ptrs only, base s[0:1]):
;   offset  32: d_in[4] A_wo  shape=(4096, 512) dtype=bfloat16
;   offset  80: d_in[10] w_mod  shape=(512, 3072) dtype=bfloat16
;   offset 104: d_ws      workspace
; One workgroup per (batch, head): 8 streamer waves (K/V -> registers, QK, softmax, PV, then the GLU slice)
; and 4 helper waves (adaLN modulation, q projection, output projection, cross-workgroup hand-offs).
"""

WS_MOD, WS_STAT, WS_MARK, WS_ACC, WS_QTAG, WS_HINT, WS_INBOX, WS_QIN, WS_DUMP, WS_STAMP = 0x0, 0xC000, 0xD000, 0x10000, 0x18000, 0x20000, 0x40000, 0x1C0000, 0x200000, 0x20000000
F_H, F_Q, F_Q2, F_ST, F_O, F_MOD, F_MOD2, F_C, F_P, F_W, F_K, F_A, F_R, F_N = 0, 4, 8, 12, 16, 20, 24, 28, 32, 36, 40, 44, 48, 52
L_STATS, L_QB, L_OP, L_OB, L_HBUF, L_QP = 0x40, 0x100, 0x200, 0x1200, 0x1600, 0x2600
L_MODR, L_H2, L_X1, L_GUP, L_HH, L_MODP = 0x2200, 0x4A00, 0x5200, 0x5A00, 0x6A00, 0x7000
L_V = 0x7000
L_ROWS = 0x1600

def f2u(x): return struct.unpack("<I", struct.pack("<f", x))[0]
INB = 11264
TAGX = 0x5bd1e995
LOG2E = f2u(1.4426950408889634)
SCALE = f2u(128 ** -0.5)

sX, sK, sV, sWQ, sWO, sG, sU, sDN, sC, sWM, sOUT, sDBG, sWS = 4, 6, 8, 10, 12, 16, 18, 20, 22, 24, 26, 28, 30
sWAVE, sXCD, sIDX, sB, sJ, sH, sSL, sFFN = 32, 33, 34, 35, 36, 37, 38, 39
sOFF = 40
SRDA, SRDB = 48, 52
sPLO, sPHI, sGUARD, sLOG2E = 62, 63, 64, 66
sHW = 67
vLANE, vL16, vG, vJ, vZ, vONE = 0, 1, 2, 3, 38, 39

def sp(r): return f"s[{r}:{r+1}]"
def sq(r): return f"s[{r}:{r+3}]"
def vp(r): return f"v[{r}:{r+1}]"
def vq(r): return f"v[{r}:{r+3}]"

class Gen:
    def __init__(self, **cfg):
        self.c = dict(D=4, HD=4, HD0=6, HDO=4, P0=24, stamps=False, dump=False, guard=200000, pref=False,
                      inbox_sleep=6, hint_sleep=2, Dodd=None, pref2=False, prefwg=16, prefkib=26, hint_at=28, poll_sleep=8, NV=16, depth=[3.15, 3.15, 4, 3.15], FD=4, NF0=0, HDOf=4, H0D=4, H0D1=2, prio=2, nowo=False, wo_at=None, abl=None, init_mode='full', ablD=7, H0DQ=18, H0pre=True, fillD=4, nofill=False, q_sleep0=8, q_sleep=8, a_sleep=16, xskip=[], plainA=True, down_late=False, wofl='', tlb=0, modlag=2, HDf=4, ffnfl='', HDP=2, HDPf=1.75, PQ=24, kfl=' nt', vfl=' nt', hmap=0, wqpat=32, full_sleep=0, hint_lag=3, PB=2, fmode='flood', PR=8, wqpf=3, wqpfD=16, wqfl='', wqx=0, sprint=64, prodb=2, o_sleep=1, depth2=[3.15, 3.15, 3.6, 3.6], dsw=34, gran=4, outfl=' sc1', hprio=2, sprio=1, sprio_off=31, dry=True, prefidx=13, diag=False, gate=False, oadd=False, fast0=True, read_delay=16, barD=False, rx_sleep=8, rx_delay=16)
        self.c.update(cfg)
        self.L = []
        self.nlab = 0

    def A(self, s): self.L.append(s)
    def lab(self, base):
        self.nlab += 1
        return f"L_{base}_{self.nlab}"
    def stamp(self, k):
        if self.c["stamps"]: self.A(f"  s_memrealtime s[{70+2*k}:{71+2*k}]")
    def cstamp(self, k):
        if self.c["stamps"]:
            self.A(f"  s_waitcnt lgkmcnt(0)\n  s_mul_i32 s{70+2*k}, s{sGUARD}, 100\n  s_add_u32 s{70+2*k}, s{70+2*k}, s70\n  s_addc_u32 s{71+2*k}, s71, 0")
    def guard(self):
        if self.c["guard"]:
            self.A(f"  s_add_u32 s{sGUARD}, s{sGUARD}, 1\n  s_cmp_gt_u32 s{sGUARD}, {self.c['guard']}\n  s_cbranch_scc1 L_exit")
    def exec1(self): self.A("  s_mov_b64 exec, 1")
    def execall(self): self.A("  s_mov_b64 exec, -1")

    def lds_spin(self, off, target, tmp, sleep=1):
        l = self.lab("spin"); d = self.lab("spun")
        self.A(f"{l}:")
        self.A(f"  ds_read_b32 v{tmp}, v{vZ} offset:{off}\n  s_waitcnt lgkmcnt(0)\n  v_readfirstlane_b32 s60, v{tmp}")
        self.A(f"  s_cmp_ge_u32 s60, {target}\n  s_cbranch_scc1 {d}")
        self.guard()
        if sleep: self.A(f"  s_sleep {sleep}")
        self.A(f"  s_branch {l}\n{d}:")

    def lds_inc(self, off):
        self.exec1(); self.A(f"  ds_add_u32 v{vZ}, v{vONE} offset:{off}"); self.execall()

    def dumpv(self, reg, n, base, sidx=None, stride=0, tmp=36):
        if not self.c["dump"]: return
        A = self.A
        if sidx is not None:
            A(f"  s_mul_i32 s68, s{sidx}, {stride}\n  s_add_u32 s68, s68, {WS_DUMP + base}")
        else:
            A(f"  s_mov_b32 s68, {WS_DUMP + base}")
        A(f"  v_lshlrev_b32 v{tmp}, {dict([(1,2),(2,3),(4,4)])[n]}, v{vLANE}\n  v_add_u32 v{tmp}, s68, v{tmp}")
        op = {1: "dword", 2: "dwordx2", 4: "dwordx4"}[n]
        r = f"v{reg}" if n == 1 else f"v[{reg}:{reg+n-1}]"
        A(f"  global_store_{op} v{tmp}, {r}, {sp(sWS)}\n  s_waitcnt vmcnt(0)")

    def prefetch(self, wait=False):
        A = self.A
        l = self.lab("nopref"); lp = self.lab("pref"); pc = self.lab("pc")
        A(f"  s_cmp_lg_u32 s{sWAVE}, 11\n  s_cbranch_scc1 {l}\n  s_cmp_lg_u32 s{sIDX}, {self.c['prefidx']}\n  s_cbranch_scc1 {l}")
        A(f"  s_getpc_b64 s[60:61]\n{pc}:\n  s_sub_u32 s60, s60, {pc}-{KNAME}\n  s_subb_u32 s61, s61, 0\n  v_mov_b32 v36, v{vL16}\n  s_mov_b32 s65, {self.c['prefkib']}")
        A(f"{lp}:\n  global_load_dword v35, v36, s[60:61]\n  v_add_u32 v36, 1024, v36\n  s_sub_u32 s65, s65, 1\n  s_cmp_lg_u32 s65, 0\n  s_cbranch_scc1 {lp}")
        if wait: A("  s_waitcnt vmcnt(0)")
        A(f"{l}:")

    def rnd1(self, x, t):
        self.A(f"  v_cvt_pk_bf16_f32 v{t}, v{x}, v{x}\n  v_and_b32 v{x}, 0xffff0000, v{t}")
    def rnd2(self, x, y, t):
        self.A(f"  v_cvt_pk_bf16_f32 v{t}, v{x}, v{y}\n  v_lshlrev_b32 v{x}, 16, v{t}\n  v_and_b32 v{y}, 0xffff0000, v{t}")
    def rnd8(self, X, T):
        for i in range(4): self.A(f"  v_cvt_pk_bf16_f32 v{T+i}, v{X+2*i}, v{X+2*i+1}")
        self.unpack8(T, X)
    def unpack8(self, src, dst):
        for i in range(4):
            self.A(f"  v_lshlrev_b32 v{dst+2*i}, 16, v{src+i}\n  v_and_b32 v{dst+2*i+1}, 0xffff0000, v{src+i}")
    def wave_reduce(self, op, regs, full=True):
        steps = []
        if full: steps += ["quad_perm:[1,0,3,2] row_mask:0xf bank_mask:0xf", "quad_perm:[2,3,0,1] row_mask:0xf bank_mask:0xf"]
        steps += ["row_ror:4 row_mask:0xf bank_mask:0xf", "row_ror:8 row_mask:0xf bank_mask:0xf",
                  "row_bcast:15 row_mask:0xa bank_mask:0xf", "row_bcast:31 row_mask:0xc bank_mask:0xf"]
        for s in steps:
            for r in regs: self.A(f"  {op}_dpp v{r}, v{r}, v{r} {s}")

    def pk8(self, op, D, Aq, Bq):
        for i in range(0, 8, 2): self.A(f"  v_pk_{op}_f32 {vp(D+i)}, {vp(Aq+i)}, {vp(Bq+i)}")

    def layernorm(self, X, T, S):
        A = self.A
        A(f"  v_readfirstlane_b32 s60, v{X}")
        for i in range(0, 8, 2): A(f"  v_pk_add_f32 {vp(T+i)}, {vp(X+i)}, s[60:61] op_sel_hi:[1,0] neg_lo:[0,1] neg_hi:[0,1]")
        A(f"  v_pk_add_f32 {vp(S)}, {vp(T)}, {vp(T+2)}\n  v_pk_mul_f32 {vp(S+2)}, {vp(T)}, {vp(T)}")
        A(f"  v_pk_add_f32 {vp(S)}, {vp(S)}, {vp(T+4)}\n  v_pk_fma_f32 {vp(S+2)}, {vp(T+2)}, {vp(T+2)}, {vp(S+2)}")
        A(f"  v_pk_add_f32 {vp(S)}, {vp(S)}, {vp(T+6)}\n  v_pk_fma_f32 {vp(S+2)}, {vp(T+4)}, {vp(T+4)}, {vp(S+2)}")
        A(f"  v_add_f32 v{S}, v{S}, v{S+1}\n  v_pk_fma_f32 {vp(S+2)}, {vp(T+6)}, {vp(T+6)}, {vp(S+2)}\n  v_add_f32 v{S+1}, v{S+2}, v{S+3}")
        self.wave_reduce("v_add_f32", [S, S + 1])
        A(f"  v_readlane_b32 s61, v{S}, 63\n  v_readlane_b32 s65, v{S+1}, 63")
        inv = f2u(1.0 / 512)
        A(f"  v_mov_b32 v{S+2}, {inv:#x}")
        A(f"  v_mul_f32 v{S}, s61, v{S+2}\n  v_mul_f32 v{S+1}, s65, v{S+2}")
        A(f"  v_fma_f32 v{S+1}, -v{S}, v{S}, v{S+1}\n  v_add_f32 v{S}, s60, v{S}\n  v_max_f32 v{S+1}, 0, v{S+1}")
        self.rnd2(S, S + 1, S + 2)
        A(f"  v_add_f32 v{S+1}, {f2u(1e-5):#x}, v{S+1}")
        for i in range(0, 4, 2): A(f"  v_pk_add_f32 {vp(X+i)}, {vp(X+i)}, {vp(S)} op_sel_hi:[1,0] neg_lo:[0,1] neg_hi:[0,1]")
        A(f"  v_cvt_pk_bf16_f32 v{S+2}, v{S+1}, v{S+1}")
        for i in range(4, 8, 2): A(f"  v_pk_add_f32 {vp(X+i)}, {vp(X+i)}, {vp(S)} op_sel_hi:[1,0] neg_lo:[0,1] neg_hi:[0,1]")
        A(f"  v_and_b32 v{S+1}, 0xffff0000, v{S+2}\n  v_sqrt_f32 v{S+1}, v{S+1}")
        for i in range(4): A(f"  v_cvt_pk_bf16_f32 v{T+i}, v{X+2*i}, v{X+2*i+1}")
        self.rnd1(S + 1, S + 2)
        A(f"  v_rcp_f32 v{S+2}, v{S+1}")
        self.unpack8(T, X)
        A(f"  v_fma_f32 v{S+3}, -v{S+1}, v{S+2}, 1.0\n  v_fmac_f32 v{S+2}, v{S+3}, v{S+2}")
        for i in range(0, 8, 2): A(f"  v_pk_mul_f32 {vp(T+i)}, {vp(X+i)}, {vp(S+2)} op_sel_hi:[1,0]")
        for i in range(0, 8, 2): A(f"  v_pk_fma_f32 {vp(X+i)}, {vp(T+i)}, {vp(S)}, {vp(X+i)} op_sel:[0,1,0] op_sel_hi:[1,1,1] neg_lo:[1,0,0] neg_hi:[1,0,0]")
        for i in range(0, 8, 2): A(f"  v_pk_fma_f32 {vp(X+i)}, {vp(X+i)}, {vp(S+2)}, {vp(T+i)} op_sel_hi:[1,0,1]")
        self.rnd8(X, T)

    def transpose_block(self, B, t0, t1):
        A = self.A
        R = lambda e, t: B + 4 * e + t
        lo = lambda d, a, b: A(f"  v_perm_b32 v{d}, v{b}, v{a}, s{sPLO}")
        hi = lambda d, a, b: A(f"  v_perm_b32 v{d}, v{b}, v{a}, s{sPHI}")
        for p in range(4):
            a, b = R(2 * p, p), R(2 * p + 1, p)
            lo(t0, a, b); hi(b, a, b); A(f"  v_mov_b32 v{a}, v{t0}")
            for t in range(p + 1, 4):
                a, b, c, d = R(2 * p, t), R(2 * p + 1, t), R(2 * t, p), R(2 * t + 1, p)
                lo(t0, a, b); hi(t1, a, b); lo(a, c, d); hi(b, c, d)
                A(f"  v_mov_b32 v{c}, v{t0}\n  v_mov_b32 v{d}, v{t1}")

    def transpose_x2(self, Rb, Bb):
        for c in range(4):
            for p in range(4):
                a, b = Rb + 2 * (2 * p) + (c >> 1), Rb + 2 * (2 * p + 1) + (c >> 1)
                self.A(f"  v_perm_b32 v{Bb+4*c+p}, v{b}, v{a}, s{sPHI if c & 1 else sPLO}")

    def gemv32(self):
        res = []
        for c in range(8):
            Dc = 24 if c == 0 else 40 + 4 * (c - 1)
            for m in range(4):
                self.A(f"  v_mfma_f32_16x16x32_bf16 {vq(Dc)}, {vq(8+4*m)}, {vq(40+32*m+4*c)}, {'0' if m == 0 else vq(Dc)}")
            res.append(Dc)
        return res

    def wload32(self, srd, steps, D, frac=None, hooks=None, fl=None):
        A = self.A
        done = 0
        for i in range(32):
            dd = D
            if frac is not None and int((i + 1) * (D - frac)) != int(i * (D - frac)): dd = D - 1
            if i >= dd: A(f"  s_waitcnt vmcnt({dd-1})")
            if hooks and i in hooks: hooks[i]()
            A(f"  buffer_load_dwordx4 {vq(40+4*i)}, v4, {sq(srd)}, s40 offen{self.c['wofl'] if fl is None else fl}")
            if i < 31: A(f"  s_add_u32 s40, s40, {steps[i]}")
            landed = i - D + 1 if i >= D else 0
            if landed >= 8 * (done + 1):
                self.transpose_block(40 + 32 * done, 5, 6); done += 1
        while done < 4:
            A(f"  s_waitcnt vmcnt({8*(3-done)})")
            self.transpose_block(40 + 32 * done, 5, 6); done += 1

    def init_duty(self, wave):
        A = self.A
        l2 = self.lab("inited"); l3 = self.lab("noinit")
        A(f"  s_cmp_lg_u32 s{sWAVE}, {wave}\n  s_cbranch_scc1 {l3}")
        mark = len(self.L)
        A("  v_mov_b32 v8, -1\n  v_mov_b32 v9, -1\n  v_mov_b32 v10, -1\n  v_mov_b32 v11, -1")
        A(f"  s_lshl_b32 s60, s2, 12\n  s_add_u32 s60, s60, {WS_QIN}\n  v_add_u32 v5, s60, v{vL16}")
        for i in range(4): A(f"  global_store_dwordx4 v5, {vq(8)}, {sp(sWS)} offset:{1024*i} sc1")
        A(f"  s_cmp_eq_u32 s{sFFN}, 0\n  s_cbranch_scc1 {l2}\n  s_cmp_ge_u32 s{sSL}, 32\n  s_cbranch_scc1 {l2}")
        A(f"  s_lshl_b32 s60, s{sJ}, 5\n  s_add_u32 s60, s60, s{sSL}\n  s_mul_i32 s60, s60, 6144\n  s_add_u32 s60, s60, {WS_INBOX + 2048}\n  v_add_u32 v5, s60, v{vL16}")
        for i in range(6): A(f"  global_store_dwordx4 v5, {vq(8)}, {sp(sWS)} offset:{1024*i - 2048} sc1")
        A(f"  s_cmp_ge_u32 s{sSL}, 8\n  s_cbranch_scc1 {l2}")
        A("  v_mov_b32 v12, 0\n  v_mov_b32 v13, 0\n  v_mov_b32 v14, 0\n  v_mov_b32 v15, 0")
        A(f"  s_lshl_b32 s60, s{sJ}, 3\n  s_add_u32 s60, s60, s{sSL}\n  s_lshl_b32 s60, s60, 10\n  s_add_u32 s60, s60, {WS_ACC}\n  v_add_u32 v5, s60, v{vL16}")
        A(f"  global_store_dwordx4 v5, {vq(12)}, {sp(sWS)} sc1")
        if self.c["init_mode"] == "nostore": self.L[mark:] = []
        A(f"{l2}:\n  s_waitcnt vmcnt(0)")
        if self.c["init_mode"] != "noticket":
            A(f"  s_mov_b32 s65, 1\n  s_atomic_add s65, {sp(sDBG)}, 0x4 glc\n  s_waitcnt lgkmcnt(0)")
            A(f"  s_cmp_lg_u32 s65, 255\n  s_cbranch_scc1 {l3}\n  s_mov_b32 s65, 1\n  s_atomic_add s65, {sp(sDBG)}, 0x84")
        A(f"{l3}:")

    def streamer(self, D, tag):
        A = self.A; c = self.c
        T = lambda n: 40 + 4 * n
        issued = []
        def issue(name, srd, n):
            A(f"  buffer_load_dwordx4 {vq(T(n))}, v{vL16}, {sq(srd)}, s{sOFF + (n >> 2)} offen offset:{1024*(n&3)}{c['kfl']}")
            issued.append(name)
        def pace():
            n = len(issued)
            if n >= D: A(f"  s_waitcnt vmcnt({D-1})")
            if n >= D - 2 and n < 64:
                l = self.lab("pc")
                A(f"  s_bitcmp1_b64 s[58:59], {n}\n  s_cbranch_scc0 {l}\n  s_waitcnt vmcnt({D-2})")
                A(f"  s_bitcmp1_b64 s[14:15], {n}\n  s_cbranch_scc0 {l}\n  s_waitcnt vmcnt({D-3})\n{l}:")
        def waitfor(name):
            A(f"  s_waitcnt vmcnt({len(issued) - 1 - issued.index(name)})")
        lnp = self.lab("noprod"); lj = self.lab("joined")
        NJ = D + c["modlag"]
        A(f"  s_cmp_ge_u32 s57, {48 if (c['abl'] is None or 'mod' in c['abl']) else 0}\n  s_cbranch_scc1 {lnp}")
        self.mod_loads()
        A("  s_barrier")
        self.mod_compute_a()
        A(f"  s_waitcnt vmcnt({c['prio']})")
        E = 2 if c["fast0"] else 0
        for n in range(E, D - 1): issue(f"K{n}", SRDA, n)
        A(f"  s_load_dword s3, {sp(sDBG)}, 0x80")
        A(f"  s_waitcnt vmcnt({D-1-E})")
        self.stamp(9)
        self.mod_compute_b()
        for n in range(D - 1, NJ):
            A(f"  s_waitcnt vmcnt({D-1})"); issue(f"K{n}", SRDA, n)
        self.mod_compute_c()
        self.stamp(14)
        if c["wo_at"] is not None and c["wo_at"] < NJ: self.lds_inc(F_K)
        A(f"  s_branch {lj}\n{lnp}:")
        issued.clear()
        for n in range(32):
            if n == NJ: A(f"{lj}:")
            if n < E: issued.append(f"K{n}")
            else: pace(); issue(f"K{n}", SRDA, n)
            if n == 0 and not E: self.stamp(8)
            if n in (4, 8, 16, 24): self.stamp({4: 10, 8: 11, 16: 12, 24: 13}[n])
            if n == c["wo_at"]: self.lds_inc(F_K)
            if c["sprio"] and n == c["sprio_off"]: A("  s_setprio 0")
            if n == D - 3:
                A("  s_barrier")
                self.stamp(9)
            if n == NJ:
                A(f"  v_lshrrev_b32 v12, 1, v{vJ}\n  v_and_b32 v13, 1, v{vJ}\n  v_mov_b32 v14, 0xffff\n  v_lshlrev_b32 v13, 4, v13\n  v_lshlrev_b32 v14, v13, v14")
                for j in range(4):
                    A(f"  v_cmp_eq_u32 vcc, {j}, v12\n  v_cndmask_b32 v{4+j}, 0, v14, vcc")
        NV = c["NV"]
        slot = lambda n: T(32 - NV + n) if n < NV else T(n - NV)
        l = self.lab("nomodchk")
        A(f"  s_cmp_ge_u32 s57, {48 if (c['abl'] is None or 'mod' in c['abl']) else 0}\n  s_cbranch_scc1 {l}")
        self.lds_spin(F_MOD2, 8, 12)
        A(f"{l}:")
        for n in range(NV):
            if n % 4 == 0: A(f"  s_add_u32 m0, s56, {4096 * (n // 4)}")
            pace()
            A(f"  buffer_load_dwordx4 v{vL16}, {sq(SRDB)}, s{sOFF + (n >> 2)} offen offset:{1024*(n&3)}{c['vfl']} lds")
            issued.append(f"V{n}")
        self.stamp(1)
        self.lds_spin(F_Q2, 1, 12)
        self.stamp(2)
        A(f"  v_lshlrev_b32 v12, 4, v{vJ}\n  ds_read_b128 {vq(8)}, v12 offset:{L_QB}\n  s_waitcnt lgkmcnt(0)")
        def qk(G):
            z = 18 + G
            for r in range(4):
                for t in range(4):
                    A(f"  v_dot2_f32_bf16 v{12+t}, v{T(4*G+t)+r}, v{8+r}, {'0' if r == 0 else f'v{12+t}'}")
            A(f"  v_add_f32_dpp v16, v12, v12 row_ror:8 row_mask:0xf bank_mask:0x3")
            A(f"  v_add_f32_dpp v17, v14, v14 row_ror:8 row_mask:0xf bank_mask:0x3")
            A(f"  v_add_f32_dpp v16, v13, v13 row_ror:8 row_mask:0xf bank_mask:0xc")
            A(f"  v_add_f32_dpp v17, v15, v15 row_ror:8 row_mask:0xf bank_mask:0xc")
            A(f"  v_add_f32_dpp v{z}, v16, v16 row_shl:4 row_mask:0xf bank_mask:0x5")
            A(f"  v_add_f32_dpp v{z}, v17, v17 row_shr:4 row_mask:0xf bank_mask:0xa")
            A(f"  v_add_f32_dpp v{z}, v{z}, v{z} quad_perm:[1,0,3,2] row_mask:0xf bank_mask:0xf")
            A(f"  v_add_f32_dpp v{z}, v{z}, v{z} quad_perm:[2,3,0,1] row_mask:0xf bank_mask:0xf")
        nv = NV
        def nextv():
            nonlocal nv
            pace()
            A(f"  buffer_load_dwordx4 {vq(slot(nv))}, v{vL16}, {sq(SRDB)}, s{sOFF + (nv >> 2)} offen offset:{1024*(nv&3)}{c['vfl']}")
            issued.append(f"V{nv}"); nv += 1
        qk(0)
        groups = list(range(1, 7))
        per = -(-len(groups) // D)
        for i in range(D):
            nextv()
            for G in groups[i * per:(i + 1) * per]: qk(G)
        qk(7)
        if NV:
            A(f"  v_add_u32 v34, s56, v{vL16}")
            for n in range(NV): A(f"  ds_read_b128 {vq(slot(n))}, v34 offset:{1024*n}")
        A(f"  s_mov_b32 s60, {SCALE:#x}")
        for i in range(4): self.rnd2(18 + 2 * i, 19 + 2 * i, 12 + i)
        for i in range(8): A(f"  v_mul_f32 v{18+i}, s60, v{18+i}")
        for i in range(4): self.rnd2(18 + 2 * i, 19 + 2 * i, 12 + i)
        A("  v_max3_f32 v12, v18, v19, v20\n  v_max3_f32 v13, v21, v22, v23\n  v_max3_f32 v12, v12, v24, v25\n  v_max_f32 v12, v12, v13")
        self.wave_reduce("v_max_f32", [12], full=False)
        A("  v_readlane_b32 s61, v12, 63")
        for i in range(8): A(f"  v_subrev_f32 v{26+i}, s61, v{18+i}")
        for i in range(8): A(f"  v_mul_f32 v{26+i}, s{sLOG2E}, v{26+i}")
        for i in range(8): A(f"  v_exp_f32 v{26+i}, v{26+i}")
        A("  v_add_f32 v13, v26, v27\n  v_add_f32 v14, v28, v29\n  v_add_f32 v15, v30, v31\n  v_add_f32 v16, v32, v33")
        A("  v_add_f32 v13, v13, v14\n  v_add_f32 v15, v15, v16\n  v_add_f32 v13, v13, v15")
        self.wave_reduce("v_add_f32", [13], full=False)
        A(f"  s_lshl_b32 s60, s{sWAVE}, 3\n  v_mov_b32 v14, s60")
        A("  s_mov_b32 exec_lo, 0\n  s_mov_b32 exec_hi, 0x80000000")
        A(f"  ds_write_b64 v14, v[12:13] offset:{L_STATS}\n  ds_add_u32 v{vZ}, v{vONE} offset:{F_ST}")
        self.execall()
        nextv(); nextv()
        self.lds_spin(F_ST, 8, 12)
        A(f"  v_and_b32 v14, 7, v{vLANE}\n  v_lshlrev_b32 v14, 3, v14\n  ds_read_b64 v[12:13], v14 offset:{L_STATS}\n  s_waitcnt lgkmcnt(0)")
        red8 = ["quad_perm:[1,0,3,2]", "quad_perm:[2,3,0,1]", "row_ror:4"]
        A("  v_mov_b32 v14, v12")
        for s in red8: A(f"  v_max_f32_dpp v14, v14, v14 {s} row_mask:0xf bank_mask:0xf")
        A(f"  v_sub_f32 v12, v12, v14\n  v_mul_f32 v12, s{sLOG2E}, v12\n  v_exp_f32 v12, v12")
        for i in range(8): A(f"  v_sub_f32 v{26+i}, v{18+i}, v14")
        A("  v_mul_f32 v13, v13, v12")
        for i in range(8): A(f"  v_mul_f32 v{26+i}, s{sLOG2E}, v{26+i}")
        for s in red8: A(f"  v_add_f32_dpp v13, v13, v13 {s} row_mask:0xf bank_mask:0xf")
        for i in range(8): A(f"  v_exp_f32 v{26+i}, v{26+i}")
        A("  v_rcp_f32 v15, v13\n  v_fma_f32 v16, -v13, v15, 1.0\n  v_fmac_f32 v15, v16, v15")
        if c["dump"]:
            for i in range(8):
                A(f"  s_lshl_b32 s69, s2, 3\n  s_add_u32 s69, s69, s{sWAVE}\n  s_lshl_b32 s69, s69, 3\n  s_add_u32 s69, s69, {i}")
                self.dumpv(18 + i, 1, 0x100000, 69, 256, tmp=36)
        for i in range(8): A(f"  v_mul_f32 v{26+i}, v{26+i}, v15")
        for i in range(8): A(f"  v_cvt_pk_bf16_f32 v{18+i}, v{26+i}, v{26+i}")
        self.stamp(3)
        npv = 0
        def pv():
            nonlocal npv
            n = npv; npv += 1
            Ab = 26 + 4 * (n & 1)
            bank = [0, 2, 1, 3][n & 3]
            for j in range(4):
                A(f"  v_and_b32_dpp v{Ab+j}, v{18+(n>>2)}, v{4+j} row_newbcast:{4*bank} row_mask:0xf bank_mask:0xf")
            A(f"  v_mfma_f32_16x16x32_bf16 {vq(34)}, {vq(Ab)}, {vq(slot(n))}, {'0' if n == 0 else vq(34)}")
            if n == c["hint_at"] and "HT" not in c["xskip"]:
                l = self.lab("ht")
                self.exec1()
                A(f"  ds_add_rtn_u32 v12, v{vZ}, v{vONE} offset:{F_P}\n  s_mov_b32 s5, 0\n  s_waitcnt lgkmcnt(0)\n  v_readfirstlane_b32 s60, v12")
                self.execall()
                A(f"  s_cmp_lg_u32 s60, 7\n  s_cbranch_scc1 {l}")
                A(f"  s_lshl_b32 s60, s{sB}, 12\n  s_add_u32 s60, s60, {WS_ACC + 3072}\n  s_mov_b32 s5, 1\n  s_atomic_add s5, {sp(sWS)}, s60 glc\n{l}:")
            if n == c["hint_at"] + c["hint_lag"] and "HT" not in c["xskip"]:
                l = self.lab("hf")
                A(f"  s_waitcnt lgkmcnt(0)\n  s_cmp_lg_u32 s5, 31\n  s_cbranch_scc1 {l}")
                A(f"  s_mul_i32 s60, s{sB}, {64*128}\n  s_add_u32 s60, s60, {WS_HINT}\n  v_lshl_add_u32 v12, v{vLANE}, 7, s60")
                A(f"  s_mov_b32 exec_hi, 0x7ff\n  global_store_dword v12, v11, {sp(sWS)} sc1"); self.execall()
                A(f"{l}:")
        self.ffn_addr()
        self.lds_spin(F_C, 1, 12)
        A(f"  ds_read_b32 v11, v{vZ} offset:{F_N}")
        def vstep():
            nextv()
            landed = nv - D
            k = 0
            while npv < landed and k < 3:
                pv(); k += 1
        def finish():
            while npv < 32:
                waitfor(f"V{npv}"); pv()
            A(f"  v_lshlrev_b32 v12, 5, v{vJ}\n  v_lshl_add_u32 v13, v{vG}, 4, v12\n  s_lshl_b32 s60, s{sWAVE}, 9\n  v_add_u32 v12, s60, v13")
            A("  s_mov_b32 exec_hi, 0")
            if c["oadd"]:
                for r in range(4): A(f"  ds_add_f32 v13, v{34+r} offset:{L_OP + 4*r}")
            else:
                A(f"  ds_write_b128 v12, {vq(34)} offset:{L_OP}")
            self.lds_inc(F_O)
            self.stamp(5)
        NF0 = c["NF0"]
        while nv < 32 - NF0: vstep()
        assert npv >= NV or NF0 == 0, (npv, NV)
        lf = self.lab("vffn")
        if c["abl"] is None and "T" not in c["xskip"]: A(f"  s_cmp_lg_u32 s{sFFN}, 0\n  s_cbranch_scc1 {lf}")
        st = (nv, npv, list(issued))
        while nv < 32: vstep()
        self.stamp(4)
        finish()
        A("  s_branch L_exit")
        A(f"{lf}:")
        nv, npv = st[0], st[1]; issued[:] = st[2]
        nf = 0
        while nv < 32:
            waitfor(f"V{nv - (D - 1)}")
            A(f"  buffer_load_dwordx4 {vq(slot(nv))}, v{vL16}, {sq(SRDB)}, s{sOFF + (nv >> 2)} offen offset:{1024*(nv&3)}{c['vfl']}")
            issued.append(f"V{nv}"); nv += 1
            self.ffn_load(nf); issued.append(f"F{nf}"); nf += 1
            k = 0
            while npv < nv - D + 1 and k < 3:
                pv(); k += 1
        self.stamp(4)
        finish()
        FD = c["FD"]
        if c["fmode"] == "paced":
            while nf < 24:
                if nf >= FD: waitfor(f"F{nf - FD}")
                self.ffn_load(nf); issued.append(f"F{nf}"); nf += 1
                if nf == FD: self.ffn_lds_addr()
                if nf == 8 + FD: self.transpose_x2(120, 40)
                if nf == 16 + FD: self.stamp(15); self.transpose_x2(136, 56)
            return
        while nf < FD:
            self.ffn_load(nf); issued.append(f"F{nf}"); nf += 1
        self.lds_spin(F_A, 4, 12)
        self.stamp(10)
        while nf < 16:
            self.ffn_load(nf); issued.append(f"F{nf}"); nf += 1
        self.ffn_lds_addr()
        if c["stamps"]: waitfor("F15"); self.stamp(15)
        waitfor("F7"); self.transpose_x2(120, 40)
        if c["down_late"]: self.lds_spin(F_R, 2, 12)
        while nf < 24:
            self.ffn_load(nf); issued.append(f"F{nf}"); nf += 1
        waitfor("F15"); self.transpose_x2(136, 56)

    def ffn_addr(self):
        A = self.A
        A(f"  v_cmp_gt_u32 vcc, 8, v{vJ}")
        A(f"  v_mov_b32 v12, s{sU}\n  v_mov_b32 v13, s{sU+1}\n  v_mov_b32 v14, s{sG}\n  v_mov_b32 v15, s{sG+1}")
        A(f"  v_cndmask_b32 v8, v12, v14, vcc\n  v_cndmask_b32 v9, v13, v15, vcc")
        A(f"  s_lshr_b32 s16, s{sJ}, 1\n  s_and_b32 s17, s{sJ}, 1")
        A(f"  s_lshl_b32 s60, s{sWAVE}, 6\n  s_lshl_b32 s61, s16, 5\n  s_add_u32 s60, s60, s61\n  s_lshl_b32 s61, s17, 2\n  s_add_u32 s60, s60, s61")
        A(f"  v_lshl_add_u32 v12, v{vG}, 3, s60\n  v_mul_u32_u24 v12, 2752, v12")
        A(f"  v_and_b32 v13, 7, v{vJ}\n  v_lshl_add_u32 v12, v13, 3, v12\n  s_lshl_b32 s60, s{sSL}, 6\n  v_add_u32 v12, s60, v12\n  v_mov_b32 v13, 0")
        A(f"  v_lshl_add_u64 v[8:9], v[8:9], 0, v[12:13]")
        A(f"  s_mov_b32 s10, 5504\n  s_mov_b32 s11, 0")
        A(f"  s_cmp_eq_u32 s17, 0\n  s_cselect_b32 s60, 4, -4\n  s_cmp_eq_u32 s16, 0\n  s_cselect_b32 s61, 32, -32")
        A(f"  s_sub_i32 s61, s61, s60\n  s_sub_i32 s60, s60, 2\n  s_sub_i32 s61, s61, 2")
        A(f"  s_mul_i32 s12, s60, 2752\n  s_ashr_i32 s13, s12, 31\n  s_mul_i32 s6, s61, 2752\n  s_ashr_i32 s7, s6, 31")
        A(f"  s_mov_b32 s{SRDA}, s{sDN}\n  s_mov_b32 s{SRDA+1}, s{sDN+1}\n  s_mov_b32 s{SRDA+2}, 1409024\n  s_mov_b32 s{SRDA+3}, 0x20000")
        A(f"  v_lshlrev_b32 v10, 13, v{vG}\n  v_lshl_add_u32 v10, v{vJ}, 3, v10")
        A(f"  s_lshl_b32 s18, s{sSL}, 15\n  s_lshl_b32 s19, s{sWAVE}, 7\n  s_add_u32 s18, s18, s19\n  s_add_u32 s19, s18, 4096")

    def ffn_load(self, i):
        A = self.A
        if "W" in self.c["xskip"]:
            A(f"  global_load_dword v17, v{vZ}, {sp(sC)}"); return
        if i < 16:
            A(f"  global_load_dwordx2 {vp(120+2*i)}, v[8:9], off{' offset:2752' if i & 1 else ''}{self.c['ffnfl']}")
            if i & 1 and i < 15:
                step = "s[10:11]" if (i & 3) == 1 else ("s[6:7]" if i == 7 else "s[12:13]")
                A(f"  v_lshl_add_u64 v[8:9], v[8:9], 0, {step}")
        else:
            e = i - 16
            A(f"  buffer_load_dwordx2 {vp(152+2*e)}, v10, {sq(SRDA)}, s{18 + (e >> 2)} offen offset:{1024*(e&3)}{self.c['ffnfl']}")

    def ffn_lds_addr(self):
        A = self.A
        A(f"  v_and_b32 v12, 1, v{vJ}\n  v_lshlrev_b32 v112, 10, v12\n  v_lshl_add_u32 v112, v{vG}, 4, v112\n  s_lshl_b32 s60, s{sWAVE}, 7\n  v_add_u32 v112, s60, v112")
        A(f"  s_lshl_b32 s60, s16, 6\n  s_lshl_b32 s61, s17, 3\n  s_add_u32 s60, s60, s61\n  v_add_u32 v112, s60, v112")
        A(f"  v_xor_b32 v113, 8, v112\n  v_xor_b32 v114, 64, v112\n  v_xor_b32 v115, 0x48, v112")
        A(f"  v_lshlrev_b32 v116, 6, v12\n  v_lshl_add_u32 v116, v{vG}, 4, v116")
        A(f"  v_lshlrev_b32 v117, 5, v{vJ}\n  v_lshl_add_u32 v117, v{vG}, 3, v117\n  s_lshl_b32 s60, s{sWAVE}, 9\n  v_add_u32 v117, s60, v117")
        A(f"  s_lshl_b32 s60, s{sJ}, 5\n  s_lshl_b32 s61, s{sWAVE}, 2\n  s_add_u32 s60, s60, s61\n  v_add_u32 v118, s60, v{vG}\n  v_mul_u32_u24 v118, {INB}, v118")
        A(f"  s_lshl_b32 s60, s{sSL}, 8\n  s_add_u32 s60, s60, {WS_INBOX}\n  v_lshl_add_u32 v12, v{vJ}, 4, s60\n  v_add_u32 v118, v12, v118")

    def streamer_ffn(self):
        A = self.A
        self.stamp(6)
        A("  s_barrier")
        A("L_dry_s:")
        for i in range(4): A(f"  ds_read_b64 {vp(88+2*i)}, v{112+i} offset:{L_H2}")
        A("  s_waitcnt lgkmcnt(2)")
        for cc in range(4): A(f"  v_mfma_f32_16x16x32_bf16 {vq(96+4*cc)}, {vq(88)}, {vq(40+4*cc)}, 0")
        A("  s_waitcnt lgkmcnt(0)")
        for cc in range(4): A(f"  v_mfma_f32_16x16x32_bf16 {vq(96+4*cc)}, {vq(92)}, {vq(56+4*cc)}, {vq(96+4*cc)}")
        def select():
            for g in range(1, 4):
                for r in range(2):
                    A(f"  v_mov_b32_dpp v{96+r}, v{96+4*g+r} quad_perm:[0,1,2,3] row_mask:{1<<g:#x} bank_mask:0xf")
        select()
        A(f"  ds_write_b64 v117, v[96:97] offset:{L_GUP}\n  s_waitcnt lgkmcnt(0)")
        dry = self.c["dry"]
        if dry: A("  s_cbranch_execz L_dry_s2")
        A("  s_barrier")
        A("  s_waitcnt vmcnt(0)"); self.transpose_x2(152, 72)
        A("  s_barrier")
        A("L_dry_s2:")
        A(f"  ds_read_b128 {vq(88)}, v116 offset:{L_HH}\n  s_waitcnt lgkmcnt(0)")
        for cc in range(4): A(f"  v_mfma_f32_16x16x32_bf16 {vq(96+4*cc)}, {vq(88)}, {vq(72+4*cc)}, 0")
        select()
        A(f"  v_mov_b32 v98, v11\n  v_xor_b32 v99, {TAGX:#x}, v11")
        if dry: A("  s_cbranch_execz L_exit")
        A(f"  global_store_dwordx4 v118, {vq(96)}, {sp(sWS)} sc1")
        self.stamp(7)
        A("  s_branch L_exit2")

    def mod_loads(self):
        A = self.A
        A(f"  v_and_b32 v4, 7, v{vJ}\n  v_lshrrev_b32 v5, 3, v{vJ}\n  v_lshlrev_b32 v6, 10, v4\n  v_lshl_add_u32 v6, v5, 6, v6\n  v_lshl_add_u32 v6, v{vG}, 4, v6")
        A(f"  s_lshl_b32 s60, s{sWAVE}, 7\n  v_add_u32 v6, s60, v6")
        A(f"  global_load_dwordx4 {vq(8)}, v6, {sp(sC)}")
        A(f"  v_lshlrev_b32 v7, 5, v5\n  v_lshl_add_u32 v7, v{vG}, 3, v7\n  v_mul_u32_u24 v7, 6144, v7\n  v_lshl_add_u32 v7, v4, 4, v7")
        A(f"  s_mul_i32 s60, s{sWAVE}, {64*6144}\n  s_lshl_b32 s61, s57, 7\n  s_add_u32 s60, s60, s61\n  v_add_u32 v7, s60, v7")
        for i in range(8):
            A(f"  global_load_dwordx4 {vq(136+4*i)}, v7, {sp(sWM)} nt")
            if i < 7: A(f"  v_add_u32 v7, 6144, v7")

    def mod_compute_a(self):
        A = self.A
        A(f"  s_lshl_b32 s60, s{sWAVE}, 12\n  s_add_u32 s60, s60, {L_V}\n  v_lshlrev_b32 v28, 11, v5\n  v_lshl_add_u32 v28, v4, 8, v28\n  v_and_b32 v29, 1, v{vG}\n  v_lshl_add_u32 v28, v29, 4, v28\n  v_add_u32 v28, s60, v28")
        A(f"  v_lshrrev_b32 v29, 1, v{vG}\n  v_cmp_eq_u32 s[68:69], v29, v5")
        A("  s_waitcnt vmcnt(8)")
        for i in range(4):
            r = 8 + i
            A(f"  v_lshlrev_b32 v16, 16, v{r}\n  v_and_b32 v17, 0xffff0000, v{r}")
            A(f"  v_mul_f32 v18, s{sLOG2E}, v16\n  v_mul_f32 v19, s{sLOG2E}, v17")
            A(f"  v_exp_f32 v18, -v18\n  v_exp_f32 v19, -v19")
            A(f"  v_add_f32 v18, 1.0, v18\n  v_add_f32 v19, 1.0, v19\n  v_rcp_f32 v18, v18\n  v_rcp_f32 v19, v19")
            A(f"  v_mul_f32 v16, v16, v18\n  v_mul_f32 v17, v17, v19\n  v_cvt_pk_bf16_f32 v{r}, v16, v17")

    def mod_compute_b(self):
        A = self.A
        self.transpose_block(136, 5, 6)
        for cc in range(8):
            A(f"  v_mfma_f32_16x16x32_bf16 {vq(104+4*cc)}, {vq(8)}, {vq(136+4*cc)}, 0")
        A("  s_mov_b64 exec, s[68:69]")
        for cc in range(8):
            A(f"  ds_write_b128 v28, {vq(104+4*cc)} offset:{32*cc}")
        self.lds_inc(F_MOD)

    def mod_compute_c(self):
        A = self.A
        A(f"  v_and_b32 v4, 31, v{vLANE}\n  v_lshrrev_b32 v5, 5, v{vLANE}\n  v_lshlrev_b32 v6, 6, v4\n  v_lshl_add_u32 v6, v5, 14, v6\n  s_lshl_b32 s60, s{sWAVE}, 2\n  s_add_u32 s60, s60, {L_V}\n  v_add_u32 v6, s60, v6")
        A(f"  s_mul_i32 s60, s{sWAVE}, 6144\n  s_lshl_b32 s61, s57, 7\n  s_add_u32 s60, s60, s61\n  s_add_u32 s60, s60, {WS_MOD}\n  v_lshl_add_u32 v5, v4, 2, s60")
        self.lds_spin(F_MOD, 8, 7)
        for part in range(8):
            if part: A(f"  v_add_u32 v6, 2048, v6")
            A(f"  ds_read2_b32 {vp(8+2*part)}, v6 offset0:0 offset1:8")
        l = self.lab("pollSN"); d = self.lab("gotSN")
        A(f"{l}:\n  s_cmp_lg_u32 s3, 0\n  s_cbranch_scc1 {d}")
        self.guard()
        A(f"  s_load_dword s3, {sp(sDBG)}, 0x80 glc\n  s_waitcnt lgkmcnt(0)\n  s_branch {l}\n{d}:")
        A("  s_waitcnt lgkmcnt(0)")
        self.lds_inc(F_MOD2)
        for part in range(1, 8):
            A(f"  v_add_f32 v8, v8, v{8+2*part}\n  v_add_f32 v9, v9, v{9+2*part}")
        A("  v_mov_b32 v10, v8\n  v_mov_b32 v11, v9\n  v_permlane32_swap_b32 v10, v8\n  v_permlane32_swap_b32 v11, v9\n  v_add_f32 v8, v8, v10\n  v_add_f32 v9, v9, v11")
        A(f"  v_cvt_pk_bf16_f32 v8, v8, v9\n  s_mov_b32 exec_hi, 0\n  global_store_dword v5, v8, {sp(sWS)} sc1")
        self.execall()
        A("  v_mov_b32 v9, v8")
        for st in ("quad_perm:[1,0,3,2]", "quad_perm:[2,3,0,1]", "row_ror:4", "row_ror:8"):
            A(f"  v_xor_b32_dpp v9, v9, v9 {st} row_mask:0xf bank_mask:0xf")
        A("  v_mov_b32 v10, v9\n  v_permlane16_swap_b32 v10, v9\n  v_bitop3_b32 v9, v9, v10, s3 bitop3:0x96")
        A(f"  s_lshl_b32 s60, s{sWAVE}, 8\n  s_lshl_b32 s61, s57, 2\n  s_add_u32 s60, s60, s61\n  s_add_u32 s60, s60, {WS_MARK}\n  v_mov_b32 v5, s60")
        self.exec1(); A(f"  global_store_dword v5, v9, {sp(sWS)} sc1"); self.execall()

    def check_lines(self, data, tags, tmp):
        A = self.A
        n = len(data)
        for k in range(n): A(f"  v_xor_b32 v{tmp+k}, v{data[k]}, v{data[k]+1}")
        for k in range(n): A(f"  v_bitop3_b32 v{tmp+k}, v{tmp+k}, v{data[k]+2}, v{data[k]+3} bitop3:0x96")
        for st in ("quad_perm:[1,0,3,2]", "quad_perm:[2,3,0,1]", "row_half_mirror"):
            for k in range(n): A(f"  v_xor_b32_dpp v{tmp+k}, v{tmp+k}, v{tmp+k} {st} row_mask:0xf bank_mask:0xf")
        for k in range(n): A(f"  v_bitop3_b32 v{tmp+k}, v{tmp+k}, v{tags[k]}, s44 bitop3:0x96")
        for k in range(1, n): A(f"  v_or_b32 v{tmp}, v{tmp}, v{tmp+k}")
        A(f"  v_cmp_ne_u32 vcc, 0, v{tmp}")

    def get_flag(self, tmp, off, sreg, expect=None):
        A = self.A
        l = self.lab("pollN"); d = self.lab("gotN")
        cmp = f"s_cmp_lg_u32 s{sreg}, 0" if expect is None else f"s_cmp_eq_u32 s{sreg}, {expect}"
        self.exec1()
        A(f"  global_load_dword v{tmp}, v{vZ}, {sp(sDBG)} offset:{off}")
        A(f"{l}:\n  s_waitcnt vmcnt(0)\n  v_readfirstlane_b32 s{sreg}, v{tmp}\n  {cmp}\n  s_cbranch_scc1 {d}")
        self.guard()
        A(f"  s_sleep {self.c['poll_sleep']}\n  global_load_dword v{tmp}, v{vZ}, {sp(sDBG)} offset:{off} sc1\n  s_branch {l}\n{d}:"); self.execall()
    def get_nonce(self, tmp): self.get_flag(tmp, 128, 44)

    def xor_rows(self, r, t):
        A = self.A
        A(f"  v_mov_b32 v{t}, v{r}\n  v_permlane16_swap_b32 v{t}, v{r}\n  v_xor_b32 v{r}, v{r}, v{t}")
        A(f"  v_mov_b32 v{t}, v{r}\n  v_permlane32_swap_b32 v{t}, v{r}\n  v_xor_b32 v{r}, v{r}, v{t}")

    def allreduce8(self, r, t, op="v_add_f32"):
        A = self.A
        A(f"  {op}_dpp v{r}, v{r}, v{r} row_ror:8 row_mask:0xf bank_mask:0xf")
        A(f"  v_mov_b32 v{t}, v{r}\n  v_permlane16_swap_b32 v{t}, v{r}\n  {op} v{r}, v{r}, v{t}")
        A(f"  v_mov_b32 v{t}, v{r}\n  v_permlane32_swap_b32 v{t}, v{r}\n  {op} v{r}, v{r}, v{t}")

    def wq_pattern(self):
        p = self.c["wqpat"]
        if p == 8: return 16, [8192 if i % 8 < 7 else 8192 * 25 for i in range(32)]
        if p == 32: return 18, [8192] * 32
        if p == 1: return 13, [8192 * 4] * 32
        if p == 33: return 18, [8192 * 5 if i % 8 < 7 else (1 << 32) - 8192 * 27 for i in range(32)]
        if p == 16: return 17, [8192 if i % 16 < 15 else 8192 * 49 for i in range(32)]

    def h0_issue(self, fl):
        A = self.A
        if "G" in self.c["xskip"]: return
        A(f"  global_load_dwordx4 {vq(28)}, v36, {sp(sWS)}{fl}\n  global_load_dwordx4 {vq(32)}, v36, {sp(sWS)} offset:1024{fl}")
        A(f"  global_load_dword v24, v37, {sp(sWS)}{fl}\n  global_load_dword v25, v37, {sp(sWS)} offset:32{fl}")

    def h0_finish(self):
        A = self.A; c = self.c
        l = self.lab("chkA"); d = self.lab("gotA")
        A(f"{l}:")
        self.check_lines([28, 32], [24, 25], 26)
        A(f"  s_cbranch_vccz {d}" if "G" not in c["xskip"] else f"  s_branch {d}")
        self.guard()
        A(f"  s_sleep {c['a_sleep']}")
        self.h0_issue(" sc1")
        A(f"  s_waitcnt vmcnt(0)\n  s_branch {l}\n{d}:")
        self.stamp(2); self.cstamp(14)
        self.unpack8(32, 16)
        for i in range(8): A(f"  v_add_f32 v{16+i}, 1.0, v{16+i}")
        self.rnd8(16, 24)
        for i in range(8): A(f"  v_mul_f32 v{8+i}, v{8+i}, v{16+i}")
        self.rnd8(8, 24)
        self.unpack8(28, 16)
        for i in range(8): A(f"  v_add_f32 v{8+i}, v{8+i}, v{16+i}")
        for i in range(4): A(f"  v_cvt_pk_bf16_f32 v{24+i}, v{8+2*i}, v{9+2*i}")
        A(f"  v_add_u32 v16, s47, v{vL16}\n  ds_write_b128 v16, {vq(24)} offset:{L_HBUF}")
        self.lds_inc(F_H)
        if c["dump"]:
            l = self.lab("nodh"); A(f"  s_cmp_lg_u32 s{sHW}, 0\n  s_cbranch_scc1 {l}"); self.dumpv(24, 4, 0x0, 2, 1024); A(f"{l}:")
        self.stamp(3)

    def helper(self):
        A = self.A; c = self.c
        A("L_helper:")
        self.stamp(8)
        A(f"  s_sub_u32 s{sHW}, s{sWAVE}, 8")
        l = self.lab("h3")
        A(f"  s_cmp_lg_u32 s{sHW}, 3\n  s_cbranch_scc1 {l}")
        A(f"  v_lshlrev_b32 v4, 2, v{vLANE}\n  ds_write_b32 v4, v{vZ}\n  ds_write_b32 v4, v{vZ} offset:{L_OP}\n  ds_write_b32 v4, v{vZ} offset:{L_OP+256}\n  s_waitcnt lgkmcnt(0)\n{l}:")
        A("  s_waitcnt lgkmcnt(0)")
        if c["tlb"]:
            l = self.lab("notlb")
            A(f"  s_cmp_lg_u32 s{sHW}, 2\n  s_cbranch_scc1 {l}")
            self.exec1()
            A(f"  s_lshl_b32 s60, s{sB}, 5\n  s_add_u32 s60, s60, s{sH}\n  s_lshl_b32 s60, s60, 20\n  s_add_u32 s60, s60, 0xC0000\n  v_mov_b32 v4, s60")
            A(f"  global_load_dword v40, v4, {sp(sV)} nt")
            A(f"  s_lshl_b32 s60, s2, 12\n  s_add_u32 s60, s60, {WS_QIN}\n  v_mov_b32 v5, s60\n  global_load_dword v41, v5, {sp(sWS)} nt")
            A(f"  s_lshl_b32 s60, s{sH}, 17\n  v_mov_b32 v6, s60\n  global_load_dword v42, v6, {sp(sWO)} nt")
            A(f"  s_lshl_b32 s60, s2, 2\n  s_and_b32 s60, s60, 0xfc\n  v_mov_b32 v7, s60")
            A(f"  global_load_dword v43, v7, {sp(sDBG)}")
            if c["tlb"] > 1:
                A(f"  s_lshl_b32 s60, s2, 7\n  v_mov_b32 v8, s60")
                for k, p in enumerate((sG, sU, sDN, sWS)): A(f"  global_load_dword v{44+k}, v8, {sp(p)} nt")
                A(f"  v_add_u32 v8, 0x100000, v8")
                for k, p in enumerate((sG, sU, sDN)): A(f"  global_load_dword v{48+k}, v8, {sp(p)} nt")
                A(f"  s_lshl_b32 s60, s2, 5\n  v_mov_b32 v9, s60\n  global_load_dword v52, v9, {sp(sOUT)} nt")
            self.execall()
            A(f"{l}:")
        if c["wqpf"]:
            l = self.lab("nowqpf")
            A(f"  s_cmp_lg_u32 s{sHW}, {c['wqpf']}\n  s_cbranch_scc1 {l}")
            A(f"  s_lshl_b32 s60, s{sIDX}, 17\n  s_lshl_b32 s61, s{sXCD}, 10\n  s_add_u32 s60, s60, s61\n  v_add_u32 v4, s60, v{vL16}")
            for i in range(16):
                if i >= c["wqpfD"]: A(f"  s_waitcnt vmcnt({c['wqpfD']-1})")
                A(f"  global_load_dword v35, v4, {sp(sWQ)}")
                if i < 15: A("  v_add_u32 v4, 8192, v4")
            A(f"{l}:")
        l = self.lab("nononce")
        A(f"  s_cmp_lg_u32 s2, 0\n  s_cbranch_scc1 {l}\n  s_cmp_lg_u32 s{sHW}, 1\n  s_cbranch_scc1 {l}")
        A(f"  s_memrealtime s[42:43]\n  s_waitcnt lgkmcnt(0)\n  s_or_b32 s42, s42, 1\n  v_mov_b32 v6, s42")
        self.exec1(); A(f"  global_store_dword v{vZ}, v6, {sp(sDBG)} offset:128 sc1"); self.execall()
        A(f"{l}:")
        A("  s_barrier")
        abl = c["abl"]
        if abl is not None:
            if "init" in abl: self.init_duty(11)
            l = self.lab("abl")
            A(f"  s_cmp_lg_u32 s{sHW}, 0\n  s_cbranch_scc1 {l}")
            self.lds_inc(F_Q2); self.lds_inc(F_C)
            if "h0l" in abl:
                A(f"  v_and_b32 v5, 7, v{vJ}\n  v_lshrrev_b32 v6, 3, v{vJ}\n  v_lshl_add_u32 v7, v{vG}, 1, v6\n  v_lshlrev_b32 v7, 4, v7\n  v_lshl_add_u32 v7, v5, 10, v7")
                if "nox" not in abl:
                    for i in range(8): A(f"  global_load_dwordx4 {vq(40+4*i)}, v7, {sp(sX)} offset:{128*i} nt")
                A(f"  s_mov_b32 s{SRDB}, s{sWQ}\n  s_mov_b32 s{SRDB+1}, s{sWQ+1}\n  s_mov_b32 s{SRDB+2}, 4194304\n  s_mov_b32 s{SRDB+3}, 0x20000")
                A(f"  v_lshlrev_b32 v7, 4, v{vJ}\n  v_lshl_add_u32 v7, v{vG}, 16, v7")
                A(f"  s_lshl_b32 s41, s{sB}, 19\n  s_lshl_b32 s60, s{sH}, 8\n  s_add_u32 s41, s41, s60")
                for i in range(0 if "nowq" in abl else 16):
                    A(f"  s_waitcnt vmcnt({c['ablD']})")
                    A(f"  buffer_load_dwordx4 {vq(104+4*i)}, v7, {sq(SRDB)}, s41 offen nt")
                    if i < 15: A(f"  s_add_u32 s41, s41, {8192 if i != 7 else 8192*25}")
                A("  s_waitcnt vmcnt(0)")
            if "poll" in abl:
                lp = self.lab("ablp")
                self.exec1()
                A(f"  s_mov_b32 s65, 12\n{lp}:\n  global_load_dwordx2 v[24:25], v{vZ}, {sp(sDBG)} offset:128 sc1\n  s_waitcnt vmcnt(0)\n  s_sleep {c['poll_sleep']}\n s_sub_u32 s65, s65, 1\n s_cmp_lg_u32 s65, 0\n s_cbranch_scc1 {lp}")
                self.execall()
            A(f"{l}:")
            if "wqr" in abl:
                A(f"  s_mov_b32 s{SRDA}, s{sWQ}\n  s_mov_b32 s{SRDA+1}, s{sWQ+1}\n  s_mov_b32 s{SRDA+2}, 4194304\n  s_mov_b32 s{SRDA+3}, 0x20000")
                sh, steps_ = self.wq_pattern()
                A(f"  v_lshlrev_b32 v4, 4, v{vJ}\n  v_lshl_add_u32 v4, v{vG}, {sh}, v4")
                A(f"  s_lshl_b32 s40, s{sHW}, 20\n  s_xor_b32 s60, s{sH}, {c['wqx']}\n  s_lshl_b32 s60, s60, 8\n  s_add_u32 s40, s40, s60")
                self.wload32(SRDA, steps_, c["HDO"], frac=c["HDOf"], fl=c["wqfl"])
                self.stamp(5)
            if "wqh" in abl:
                lq = self.lab("noq")
                A(f"  s_cmp_ge_u32 s{sB}, 4\n  s_cbranch_scc1 {lq}")
                A(f"  s_mov_b32 s{SRDA}, s{sWQ}\n  s_mov_b32 s{SRDA+1}, s{sWQ+1}\n  s_mov_b32 s{SRDA+2}, 4194304\n  s_mov_b32 s{SRDA+3}, 0x20000")
                A(f"  v_lshlrev_b32 v4, 4, v{vJ}\n  v_lshl_add_u32 v4, v{vG}, 17, v4")
                A(f"  s_lshl_b32 s40, s{sHW}, 19\n  s_and_b32 s60, s{sB}, 1\n  s_lshl_b32 s60, s60, 21\n  s_add_u32 s40, s40, s60\n  s_lshl_b32 s60, s{sH}, 8\n  s_add_u32 s40, s40, s60")
                for i in range(16):
                    if i >= c["HD"]: A(f"  s_waitcnt vmcnt({c['HD']-1})")
                    A(f"  buffer_load_dwordx4 {vq(104+4*i)}, v4, {sq(SRDA)}, s40 offen\n  s_add_u32 s40, s40, 8192")
                self.stamp(5)
                A(f"{lq}:")
            if "wqp" in abl:
                lq = self.lab("noq")
                A(f"  s_cmp_lt_u32 s57, 48\n  s_cbranch_scc1 {lq}")
                sh, steps_ = self.wq_pattern()
                A(f"  s_mov_b32 s{SRDA}, s{sWQ}\n  s_mov_b32 s{SRDA+1}, s{sWQ+1}\n  s_mov_b32 s{SRDA+2}, 4194304\n  s_mov_b32 s{SRDA+3}, 0x20000")
                A(f"  v_lshlrev_b32 v4, 4, v{vJ}\n  v_lshl_add_u32 v4, v{vG}, {sh}, v4")
                A(f"  s_lshl_b32 s40, s{sHW}, 20\n  s_lshl_b32 s60, s{sH}, 8\n  s_add_u32 s40, s40, s60")
                self.wload32(SRDA, steps_, c["HD"], frac=c["HDf"], fl=c["wqfl"])
                self.stamp(5)
                A(f"{lq}:")
            if "wo" in abl:
                A(f"  s_mov_b32 s{SRDA}, s{sWO}\n  s_mov_b32 s{SRDA+1}, s{sWO+1}\n  s_mov_b32 s{SRDA+2}, 4194304\n  s_mov_b32 s{SRDA+3}, 0x20000")
                A(f"  v_lshlrev_b32 v4, 4, v{vJ}\n  v_lshl_add_u32 v4, v{vG}, 13, v4")
                A(f"  s_lshl_b32 s40, s{sH}, 17\n  s_lshl_b32 s60, s{sHW}, 8\n  s_add_u32 s40, s40, s60")
                self.wload32(SRDA, [1024 if i % 8 < 7 else 1024 * 25 for i in range(32)], c["HDO"], frac=c["HDOf"])
                self.stamp(6)
            A("  s_branch L_exit")
        A(f"  s_mov_b32 s{SRDA}, s{sWQ}\n  s_mov_b32 s{SRDA+1}, s{sWQ+1}\n  s_mov_b32 s{SRDA+2}, 4194304\n  s_mov_b32 s{SRDA+3}, 0x20000")
        sh, steps = self.wq_pattern()
        A(f"  v_lshlrev_b32 v4, 4, v{vJ}\n  v_lshl_add_u32 v4, v{vG}, {sh}, v4")
        A(f"  s_lshl_b32 s40, s{sHW}, 20\n  s_lshl_b32 s60, s{sH}, 8\n  s_add_u32 s40, s40, s60")
        A(f"  s_cmp_lt_u32 s57, 48\n  s_cbranch_scc1 L_prodh")
        A(f"  s_cmp_eq_u32 s57, 64\n  s_cselect_b32 s45, 3, 0")
        A(f"  s_cmp_gt_u32 s{sHW}, s45\n  s_cbranch_scc1 L_wq123")
        A(f"  s_lshl_b32 s46, s{sHW}, 1\n  s_add_u32 s46, s46, s{sB}\n  s_lshl_b32 s47, s{sHW}, 10")
        A(f"  s_lshl_b32 s60, s46, 10\n  v_add_u32 v36, s60, v{vL16}\n  global_load_dwordx4 {vq(28)}, v36, {sp(sX)}")
        A(f"  s_mul_i32 s60, s46, 6144\n  s_add_u32 s60, s60, {WS_MOD}\n  v_add_u32 v36, s60, v{vL16}")
        A(f"  s_lshl_b32 s60, s46, 8\n  s_add_u32 s60, s60, {WS_MARK}\n  v_lshrrev_b32 v37, 3, v{vLANE}\n  v_lshl_add_u32 v37, v37, 2, s60")
        HD = c["HD"]
        def ln():
            self.unpack8(28, 8); self.layernorm(8, 16, 24)
            A(f"  s_load_dword s44, {sp(sDBG)}, 0x80")
        def gather():
            l = self.lab("pollHN"); d = self.lab("gotHN")
            A(f"  s_waitcnt lgkmcnt(0)\n{l}:\n  s_cmp_lg_u32 s44, 0\n  s_cbranch_scc1 {d}")
            self.guard()
            A(f"  s_load_dword s44, {sp(sDBG)}, 0x80 glc\n  s_waitcnt lgkmcnt(0)\n  s_branch {l}\n{d}:")
            self.stamp(1)
            self.h0_issue("")
            A(f"  v_mov_b32 v26, s44\n  ds_write_b32 v{vZ}, v26 offset:{F_N}")
        self.wload32(SRDA, steps, HD, frac=c["HDf"], hooks={HD + 3: ln, c["P0"]: gather, c["P0"] + HD: self.h0_finish}, fl=c["wqfl"])
        A("  s_branch L_q")
        A("L_wq123:")
        l = self.lab("nozero")
        A(f"  s_cmp_lg_u32 s{sHW}, 3\n  s_cbranch_scc1 {l}\n  s_cmp_lt_u32 s57, 256\n  s_cbranch_scc1 {l}\n  s_cmp_ge_u32 s57, {256+8}\n  s_cbranch_scc1 {l}")
        A("  v_mov_b32 v12, 0\n  v_mov_b32 v13, 0\n  v_mov_b32 v14, 0\n  v_mov_b32 v15, 0")
        A(f"  s_sub_u32 s61, s57, 256\n  s_lshl_b32 s60, s61, 12\n  s_add_u32 s60, s60, {WS_ACC}\n  v_add_u32 v5, s60, v{vL16}")
        for i in range(4): A(f"  global_store_dwordx4 v5, {vq(12)}, {sp(sWS)} offset:{1024*i} sc1")
        A(f"{l}:")
        def ticket():
            l = self.lab("notick"); lp = self.lab("pollZN"); d = self.lab("gotZN")
            A(f"  s_cmp_lg_u32 s{sHW}, 3\n  s_cbranch_scc1 {l}\n  s_cmp_lt_u32 s57, 256\n  s_cbranch_scc1 {l}\n  s_cmp_ge_u32 s57, {256+8}\n  s_cbranch_scc1 {l}")
            A(f"  s_mov_b32 s65, 1\n  s_atomic_add s65, {sp(sDBG)}, 0x8 glc\n  s_waitcnt lgkmcnt(0)\n  s_cmp_lg_u32 s65, 7\n  s_cbranch_scc1 {l}")
            A(f"{lp}:\n  s_load_dword s44, {sp(sDBG)}, 0x80 glc\n  s_waitcnt lgkmcnt(0)\n  s_cmp_lg_u32 s44, 0\n  s_cbranch_scc1 {d}")
            self.guard()
            A(f"  s_branch {lp}\n{d}:\n  v_mov_b32 v7, s44")
            self.exec1(); A(f"  global_store_dword v{vZ}, v7, {sp(sDBG)} offset:136 sc1"); self.execall()
            A(f"{l}:")
        self.wload32(SRDA, steps, HD, frac=c["HDf"], hooks={HD + 2: ticket}, fl=c["wqfl"])
        A("L_q:")
        self.stamp(4)
        A("  s_add_u32 s61, s45, 1")
        self.lds_spin(F_H, "s61", 7)
        p32 = c["wqpat"] == 32
        A(f"  s_lshl_b32 s60, s{sHW}, 8\n  v_lshl_add_u32 v4, v{vG}, {6 if p32 else 4}, s60\n  v_and_b32 v5, s45, v{vJ}\n  v_lshl_add_u32 v4, v5, 10, v4")
        for m in range(4): A(f"  ds_read_b128 {vq(8+4*m)}, v4 offset:{L_HBUF + (16 if p32 else 64)*m}")
        A(f"  ds_read_b32 v7, v{vZ} offset:{F_N}")
        A(f"  s_lshl_b32 s60, s{sHW}, 11\n  v_lshl_add_u32 v5, v{vJ}, 5, s60\n  v_add_u32 v5, {L_QP}, v5")
        A(f"  s_mov_b32 s{SRDA}, s{sWO}\n  s_mov_b32 s{SRDA+1}, s{sWO+1}\n  s_mov_b32 s{SRDA+2}, 4194304\n  s_mov_b32 s{SRDA+3}, 0x20000")
        A(f"  s_lshl_b32 s40, s{sH}, 17\n  s_lshl_b32 s60, s{sHW}, 8\n  s_add_u32 s40, s40, s60")
        A("  s_waitcnt lgkmcnt(0)")
        A(f"  v_readfirstlane_b32 s44, v7\n  v_lshlrev_b32 v4, 4, v{vJ}\n  v_lshl_add_u32 v4, v{vG}, 13, v4")
        res = self.gemv32()
        A("  s_mov_b64 exec, 0xffff")
        for cc in range(0, 8, 2):
            A(f"  ds_write2_b32 v5, v{res[cc]}, v{res[cc+1]} offset0:{cc} offset1:{cc+1}")
        l = self.lab("onerow")
        A(f"  s_cmp_eq_u32 s45, 0\n  s_cbranch_scc1 {l}")
        for r in range(1, 4):
            A(f"  v_add_u32 v5, 512, v5")
            for cc in range(0, 8, 2):
                A(f"  ds_write2_b32 v5, v{res[cc]+r}, v{res[cc+1]+r} offset0:{cc} offset1:{cc+1}")
        A(f"{l}:")
        self.exec1()
        A(f"  ds_add_rtn_u32 v7, v{vZ}, v{vONE} offset:{F_Q}\n  s_waitcnt lgkmcnt(0)\n  v_readfirstlane_b32 s60, v7")
        self.execall()
        l = self.lab("notlastq")
        A(f"  s_cmp_lg_u32 s60, 3\n  s_cbranch_scc1 {l}")
        A(f"  v_lshlrev_b32 v6, 3, v{vLANE}")
        for part in range(4): A(f"  ds_read_b64 {vp(8+2*part)}, v6 offset:{L_QP + 2048*part}")
        A(f"  s_lshl_b32 s60, s2, 9\n  s_add_u32 s60, s60, {WS_QIN}\n  v_add_u32 v7, s60, v6")
        A(f"  v_lshlrev_b32 v5, 2, v{vLANE}\n  s_waitcnt lgkmcnt(0)")
        A("  v_add_f32 v8, v8, v10\n  v_add_f32 v9, v9, v11\n  v_add_f32 v12, v12, v14\n  v_add_f32 v13, v13, v15\n  v_add_f32 v8, v8, v12\n  v_add_f32 v9, v9, v13")
        A(f"  v_cvt_pk_bf16_f32 v8, v8, v9\n  ds_write_b32 v5, v8 offset:{L_QB}")
        l2 = self.lab("nodon")
        A(f"  s_cmp_eq_u32 s45, 0\n  s_cbranch_scc1 {l2}")
        for r in range(1, 4):
            for part in range(4): A(f"  ds_read_b64 {vp(16+2*part)}, v6 offset:{L_QP + 2048*part + 512*r}")
            A(f"  v_add_u32 v7, {64*512}, v7\n  s_waitcnt lgkmcnt(0)")
            A("  v_add_f32 v16, v16, v18\n  v_add_f32 v17, v17, v19\n  v_add_f32 v20, v20, v22\n  v_add_f32 v21, v21, v23\n  v_add_f32 v16, v16, v20\n  v_add_f32 v17, v17, v21")
            A(f"  v_cvt_pk_bf16_f32 v{24+2*r}, v16, v17\n  v_mov_b32 v{25+2*r}, s44\n  global_store_dwordx2 v7, {vp(24+2*r)}, {sp(sWS)} sc1")
        A(f"{l2}:")
        self.lds_inc(F_Q2)
        self.dumpv(8, 1, 0x80000, 2, 256)
        A(f"{l}:")
        self.stamp(5)
        steps = [1024 if i % 8 < 7 else 1024 * 25 for i in range(32)]
        def chkB():
            l0 = self.lab("noB")
            A(f"  s_cmp_lg_u32 s{sHW}, 1\n  s_cbranch_scc1 {l0}")
            if "B" not in c["xskip"]: self.get_flag(7, 136, 45, expect="s44")
            self.lds_inc(F_C)
            A(f"{l0}:")
        def rowloads(fl):
            for i in range(4): A(f"  global_load_dwordx4 {vq(12+4*i)}, v36, {sp(sWS)} offset:{1024*i}{fl}")
            for i in range(4): A(f"  global_load_dword v{28+i}, v37, {sp(sWS)} offset:{32*i}{fl}")
        def rows_a():
            if "R" in c["xskip"]: return
            l = self.lab("norows")
            A(f"  s_cmp_ge_u32 s{sHW}, 2\n  s_cbranch_scc1 {l}\n  s_cmp_eq_u32 s{sFFN}, 0\n  s_cbranch_scc1 {l}")
            A(f"  s_lshl_b32 s41, s{sJ}, 1\n  s_add_u32 s41, s41, s{sHW}")
            A(f"  s_mul_i32 s60, s41, 6144\n  s_add_u32 s60, s60, {WS_MOD + 2048}\n  v_add_u32 v36, s60, v{vL16}")
            A(f"  s_lshl_b32 s60, s41, 8\n  s_add_u32 s60, s60, {WS_MARK + 64}\n  v_lshrrev_b32 v37, 3, v{vLANE}\n  v_lshl_add_u32 v37, v37, 2, s60")
            rowloads("")
            A(f"  s_lshl_b32 s60, s41, 10\n  v_add_u32 v7, s60, v{vL16}\n  global_load_dwordx4 {vq(8)}, v7, {sp(sX)}")
            A(f"{l}:")
        def rows_b():
            if "R" in c["xskip"]: return
            l = self.lab("norows2")
            A(f"  s_cmp_ge_u32 s{sHW}, 2\n  s_cbranch_scc1 {l}\n  s_cmp_eq_u32 s{sFFN}, 0\n  s_cbranch_scc1 {l}")
            lr = self.lab("chkR"); dr = self.lab("gotR")
            A(f"{lr}:")
            self.check_lines([12, 16, 20, 24], [28, 29, 30, 31], 32)
            A(f"  s_cbranch_vccz {dr}")
            self.guard()
            rowloads(" sc1")
            A(f"  s_waitcnt vmcnt(0)\n  s_branch {lr}\n{dr}:")
            self.unpack8(20, 28)
            for i in range(8): A(f"  v_add_f32 v{28+i}, 1.0, v{28+i}")
            for i in range(4): A(f"  v_cvt_pk_bf16_f32 v{20+i}, v{28+2*i}, v{29+2*i}")
            self.lds_spin(F_Q2, 1, 7)
            A(f"  s_mul_i32 s60, s{sHW}, 5120\n  v_add_u32 v36, s60, v{vL16}")
            for i in range(5): A(f"  ds_write_b128 v36, {vq(8+4*i)} offset:{L_ROWS + 1024*i}")
            A(f"{l}:")
        self.wload32(SRDA, steps, c["HDO"], frac=c["HDOf"], hooks={c["PB"]: chkB, c["PR"]: rows_a, c["PR"] + c["HDO"]: rows_b})
        A("  s_branch L_wo")
        A("L_prodh:")
        A(f"  s_mov_b32 s{SRDA}, s{sWO}\n  s_mov_b32 s{SRDA+1}, s{sWO+1}\n  s_mov_b32 s{SRDA+2}, 4194304\n  s_mov_b32 s{SRDA+3}, 0x20000")
        A(f"  s_lshl_b32 s40, s{sH}, 17\n  s_lshl_b32 s60, s{sHW}, 8\n  s_add_u32 s40, s40, s60")
        A(f"  v_lshlrev_b32 v4, 4, v{vJ}\n  v_lshl_add_u32 v4, v{vG}, 13, v4")
        def recvq():
            l0 = self.lab("noq"); l = self.lab("pollPN"); d = self.lab("gotPN"); lq = self.lab("pollPQ"); dq = self.lab("gotPQ")
            A(f"  s_cmp_lg_u32 s{sHW}, 0\n  s_cbranch_scc1 {l0}")
            A(f"  s_load_dword s44, {sp(sDBG)}, 0x80\n  s_waitcnt lgkmcnt(0)\n{l}:\n  s_cmp_lg_u32 s44, 0\n  s_cbranch_scc1 {d}")
            self.guard()
            A(f"  s_load_dword s44, {sp(sDBG)}, 0x80 glc\n  s_waitcnt lgkmcnt(0)\n  s_branch {l}\n{d}:")
            A(f"  v_mov_b32 v26, s44\n  ds_write_b32 v{vZ}, v26 offset:{F_N}")
            A(f"  s_lshl_b32 s60, s2, 9\n  s_add_u32 s60, s60, {WS_QIN}\n  v_lshl_add_u32 v7, v{vLANE}, 3, s60\n  s_add_u32 s61, s60, 4")
            if "PQ" in c["xskip"]: A(f"  s_branch {dq}")
            A(f"{lq}:\n  s_load_dword s60, {sp(sWS)}, s61 glc\n  s_waitcnt lgkmcnt(0)\n  s_cmp_eq_u32 s60, s44\n  s_cbranch_scc0 {lq}_r")
            A(f"  global_load_dwordx2 v[8:9], v7, {sp(sWS)} sc1\n  s_waitcnt vmcnt(0)\n  v_cmp_ne_u32 vcc, s44, v9\n  s_cbranch_vccz {dq}")
            A(f"{lq}_r:")
            self.guard()
            A(f"  s_sleep {c['q_sleep']}\n  s_branch {lq}\n{dq}:")
            A(f"  v_lshlrev_b32 v7, 2, v{vLANE}\n  ds_write_b32 v7, v8 offset:{L_QB}")
            self.lds_inc(F_Q2)
            self.stamp(5)
            self.dumpv(8, 1, 0x80000, 2, 256)
            self.get_flag(7, 136, 45, expect="s44")
            self.lds_inc(F_C)
            A(f"{l0}:")
        self.wload32(SRDA, steps, c["HDP"], frac=c["HDPf"], hooks={c["PQ"]: recvq})
        self.lds_spin(F_Q2, 1, 7, sleep=4)
        A(f"  ds_read_b32 v7, v{vZ} offset:{F_N}\n  s_waitcnt lgkmcnt(0)\n  v_readfirstlane_b32 s44, v7")
        A("L_wo:")
        A("L_wodone:")
        if c["hprio"]: A(f"  s_setprio {c['hprio']}")
        if c["pref2"] and "T" not in c["xskip"]:
            self.prefetch(wait=True)
        self.lds_spin(F_C, 1, 7, sleep=4)
        A(f"  v_lshlrev_b32 v28, {5 if c['oadd'] else 3}, v{vG if c['oadd'] else vLANE}")
        A(f"  s_lshl_b32 s60, s{sHW}, 8\n  v_lshl_add_u32 v29, v{vLANE}, 2, s60\n  v_lshl_add_u32 v30, v{vG}, 4, s60")
        A(f"  v_lshrrev_b32 v31, 2, v{vLANE}\n  v_and_b32 v32, 3, v{vLANE}\n  v_lshl_add_u32 v31, v32, 4, v31\n  v_lshlrev_b32 v36, 2, v31")
        A(f"  s_lshl_b32 s61, s{sB}, 12\n  s_add_u32 s61, s61, {WS_ACC}\n  v_add_u32 v32, s61, v29")
        A(f"  v_mov_b32 v33, 1.0\n  v_mov_b32 v34, 1.0\n  v_mov_b32 v35, 1.0\n  v_mov_b32_dpp v35, v{vZ} quad_perm:[0,1,2,3] row_mask:0x4 bank_mask:0xf")
        self.stamp(6)
        if "T" in c["xskip"]: A("  s_branch L_exit")
        self.lds_spin(F_O, 8, 7, sleep=c['o_sleep'])
        self.stamp(9)
        if c["oadd"]:
            rd = lambda q, off: A(f"  ds_read_b128 {vq(q)}, v28 offset:{L_OP + off}")
            rd(12, 0); rd(16, 16); rd(20, 128); rd(24, 144); rd(4, 256)
            A(f"  s_waitcnt lgkmcnt(3)")
            for i in range(4): A(f"  v_cvt_pk_bf16_f32 v{8+i}, v{12+2*i}, v{13+2*i}")
            A(f"  s_waitcnt lgkmcnt(1)")
            for i in range(4): A(f"  v_cvt_pk_bf16_f32 v{12+i}, v{20+2*i}, v{21+2*i}")
            rd(16, 272); rd(20, 384); rd(24, 400)
            self.stamp(10)
            res = [28] + [40 + 4 * k for k in range(7)]
            for m, Am in enumerate((8, 12, 4, 16)):
                for cc in range(8):
                    A(f"  v_mfma_f32_16x16x32_bf16 {vq(res[cc])}, {vq(Am)}, {vq(40+32*m+4*cc)}, {'0' if m == 0 else vq(res[cc])}")
                    if m == 0 and cc == 5:
                        A(f"  s_waitcnt lgkmcnt(0)")
                        A("  v_cvt_pk_bf16_f32 v4, v4, v5\n  v_cvt_pk_bf16_f32 v5, v6, v7\n  v_cvt_pk_bf16_f32 v6, v16, v17\n  v_cvt_pk_bf16_f32 v7, v18, v19")
                    if m == 1 and cc == 1:
                        for i in range(4): A(f"  v_cvt_pk_bf16_f32 v{16+i}, v{20+2*i}, v{21+2*i}")
        else:
            for part in range(8): A(f"  ds_read_b64 {vp(8+2*part)}, v28 offset:{L_OP + 512*part}")
            A("  s_waitcnt lgkmcnt(4)")
            A("  v_add_f32 v8, v8, v10\n  v_add_f32 v9, v9, v11\n  v_add_f32 v12, v12, v14\n  v_add_f32 v13, v13, v15\n  v_add_f32 v8, v8, v12\n  v_add_f32 v9, v9, v13")
            A("  s_waitcnt lgkmcnt(0)")
            A("  v_add_f32 v16, v16, v18\n  v_add_f32 v17, v17, v19\n  v_add_f32 v20, v20, v22\n  v_add_f32 v21, v21, v23\n  v_add_f32 v16, v16, v20\n  v_add_f32 v17, v17, v21")
            A(f"  v_add_f32 v8, v8, v16\n  v_add_f32 v9, v9, v17\n  v_cvt_pk_bf16_f32 v7, v8, v9\n  ds_write_b32 v29, v7 offset:{L_OB}")
            for m in range(4): A(f"  ds_read_b128 {vq(8+4*m)}, v30 offset:{L_OB + 64*m}")
            A("  s_waitcnt lgkmcnt(0)")
            self.stamp(10)
            res = self.gemv32()
        self.stamp(11)
        for k in range(3):
            for g in range(3):
                if 3 * k + g < 8:
                    A(f"  v_mov_b32_dpp v{33+k}, v{res[3*k+g]} quad_perm:[0,1,2,3] row_mask:{1<<g:#x} bank_mask:0xf")
        for k in range(3): A(f"  ds_bpermute_b32 v{33+k}, v36, v{33+k}")
        for k in range(3):
            A(f"  s_waitcnt lgkmcnt({2-k})\n  global_atomic_add_f32 v32, v{33+k}, {sp(sWS)} offset:{1024*k}")
        if c["gate"]:
            l = self.lab("g01")
            A(f"  s_cmp_lt_u32 s{sHW}, 2\n  s_cbranch_scc1 {l}")
            self.lds_inc(F_A)
            A(f"{l}:")
        else:
            self.lds_inc(F_A)
        self.stamp(7)
        if c["dump"] and not c["oadd"]:
            l = self.lab("nodumpo")
            A(f"  s_cmp_lg_u32 s{sHW}, 3\n  s_cbranch_scc1 {l}")
            self.dumpv(7, 1, 0x90000, 2, 256)
            A(f"{l}:")
        if c["dry"]:
            l = self.lab("nodry"); l2 = self.lab("dryf")
            A(f"  s_cmp_lg_u32 s{sHW}, 2\n  s_cbranch_scc1 {l}\n  s_cmp_lg_u32 s{sFFN}, 0\n  s_cbranch_scc1 {l2}\n  s_cmp_ge_u32 s57, 100\n  s_cbranch_scc1 L_exit")
            A(f"  s_mov_b64 exec, 0\n  s_branch L_dry_r\n{l2}:\n  s_mov_b64 exec, 0\n  s_branch L_dry_l\n{l}:")
        A(f"  s_cmp_ge_u32 s{sHW}, 2\n  s_cbranch_scc1 L_exit\n  s_cmp_lt_u32 s57, 100\n  s_cbranch_scc1 L_recv\n  s_cmp_eq_u32 s{sFFN}, 0\n  s_cbranch_scc1 L_exit")
        A(f"  s_lshl_b32 s45, s{sJ}, 1\n  s_add_u32 s45, s45, s{sHW}\n  s_lshl_b32 s45, s45, 6\n  s_add_u32 s45, s45, s{sSL}\n  s_lshl_b32 s45, s45, 7\n  s_add_u32 s45, s45, {WS_HINT}")
        A(f"  s_load_dword s61, {sp(sWS)}, s45 glc")
        A(f"  s_mul_i32 s60, s{sHW}, 5120\n  v_add_u32 v4, s60, v{vL16}")
        for i in range(4): A(f"  ds_read_b128 {vq(72+4*i)}, v4 offset:{L_ROWS + 1024*i}")
        A(f"  s_lshl_b32 s41, s{sJ}, 1\n  s_add_u32 s41, s41, s{sHW}\n  s_lshl_b32 s41, s41, 12\n  s_add_u32 s41, s41, {WS_ACC}\n  v_add_u32 v5, s41, v{vL16}\n  v_mov_b32 v6, s41")
        A(f"  s_lshl_b32 s60, s{sHW}, 10\n  v_add_u32 v4, s60, v{vL16}")
        A("  s_waitcnt lgkmcnt(0)")
        self.unpack8(72, 88); self.unpack8(76, 96); self.unpack8(80, 104); self.unpack8(84, 112)
        lp = self.lab("pollH"); ld = self.lab("gotH")
        if c["gate"]:
            lg = self.lab("late")
            A(f"  s_cmp_eq_u32 s61, s44\n  s_cbranch_scc1 {lg}")
            self.lds_inc(F_A)
        A(f"{lp}:\n  s_load_dword s60, {sp(sWS)}, s45 glc\n  s_waitcnt lgkmcnt(0)\n  s_cmp_eq_u32 s60, s44\n  s_cbranch_scc1 {ld}")
        self.guard()
        if c["hint_sleep"]: A(f"  s_sleep {c['hint_sleep']}")
        A(f"  s_branch {lp}\n{ld}:")
        if c["read_delay"]: A(f"  s_sleep {c['read_delay']}")
        if c["gate"]:
            for k in range(3): A(f"  global_load_dwordx4 {vq(120+4*k)}, v5, {sp(sWS)} offset:{1024*k} sc1")
            lj = self.lab("gj")
            A(f"  s_branch {lj}\n{lg}:")
            for k in range(3): A(f"  global_load_dwordx4 {vq(120+4*k)}, v5, {sp(sWS)} offset:{1024*k} sc1")
            self.lds_inc(F_A)
            A(f"{lj}:")
        self.stamp(1)
        self.cstamp(13)
        lp = self.lab("pollF"); ld = self.lab("gotF")
        if not c["gate"]:
            for k in range(3): A(f"  global_load_dwordx4 {vq(120+4*k)}, v5, {sp(sWS)} offset:{1024*k} sc1")
        self.lds_inc(F_R)
        A(f"{lp}:")
        A("  s_waitcnt vmcnt(0)\n  v_min3_f32 v7, v123, v127, v131\n  v_cmp_neq_f32 vcc, 0x42000000, v7")
        A(f"  s_cbranch_vccz {ld}")
        self.guard()
        if c["full_sleep"]: A(f"  s_sleep {c['full_sleep']}")
        for k in range(3): A(f"  global_load_dwordx4 {vq(120+4*k)}, v5, {sp(sWS)} offset:{1024*k} sc1")
        A(f"  s_branch {lp}\n{ld}:")
        self.stamp(2)
        self.cstamp(15)
        A("L_dry_l:")
        src = [120, 121, 122, 124, 125, 126, 128, 129]
        for i in range(4): A(f"  v_cvt_pk_bf16_f32 v{16+i}, v{src[2*i]}, v{src[2*i+1]}")
        self.unpack8(16, 8)
        self.pk8("mul", 8, 96, 8)
        self.rnd8(8, 16)
        self.pk8("add", 8, 88, 8)
        for i in range(4): A(f"  v_cvt_pk_bf16_f32 v{28+i}, v{8+2*i}, v{9+2*i}")
        self.unpack8(28, 8)
        self.layernorm(8, 16, 24)
        self.pk8("mul", 8, 8, 112)
        self.rnd8(8, 16)
        self.pk8("add", 8, 8, 104)
        for i in range(4): A(f"  v_cvt_pk_bf16_f32 v{24+i}, v{8+2*i}, v{9+2*i}")
        A(f"  ds_write_b128 v4, {vq(24)} offset:{L_H2}\n  ds_write_b128 v4, {vq(28)} offset:{L_X1}\n  s_waitcnt lgkmcnt(0)")
        if c["dry"]: A("  s_cbranch_execz L_dry_red")
        self.stamp(3)
        A("  s_barrier")
        if c["dump"]:
            A(f"  s_lshl_b32 s69, s2, 1\n  s_add_u32 s69, s69, s{sHW}")
            self.dumpv(24, 4, 0x600000, 69, 1024)
        A(f"  s_cmp_eq_u32 s{sHW}, 0\n  s_cbranch_scc1 L_reducer")
        A(f"  s_cmp_ge_u32 s{sSL}, 32\n  s_cbranch_scc1 {'L_h1bar' if c['stamps'] else 'L_exit'}")
        A(f"  s_lshr_b32 s60, s{sSL}, 2\n  s_lshl_b32 s60, s60, 7\n  s_and_b32 s61, s{sSL}, 3\n  s_lshl_b32 s61, s61, 1\n  s_add_u32 s60, s60, s61\n  v_lshl_add_u32 v4, v{vJ}, 3, s60")
        A(f"  ds_read_u16 v8, v4 offset:{L_X1}\n  ds_read_u16 v9, v4 offset:{L_ROWS + 4096}\n  ds_read_u16 v12, v4 offset:{L_X1 + 1024}\n  ds_read_u16 v13, v4 offset:{L_ROWS + 4096 + 5120}")
        A(f"  s_lshl_b32 s60, s{sJ}, 5\n  s_add_u32 s60, s60, s{sSL}\n  s_mul_i32 s60, s60, {INB}\n  s_add_u32 s60, s60, {WS_INBOX + 43*256}\n  v_lshl_add_u32 v5, v{vJ}, 4, s60")
        A(f"  s_xor_b32 s45, s44, {TAGX:#x}\n  v_mov_b32 v10, s44\n  v_mov_b32 v11, s45\n  s_mov_b64 exec, 0xffff\n  s_waitcnt lgkmcnt(0)\n  v_lshl_or_b32 v8, v12, 16, v8\n  v_lshl_or_b32 v9, v13, 16, v9")
        A(f"  global_store_dwordx4 v5, {vq(8)}, {sp(sWS)} sc1")
        A("L_h1bar:\n  s_barrier\n  s_barrier\n  s_branch L_exit2")
        A("L_recv:")
        A(f"  s_lshl_b32 s41, s{sB}, 3\n  s_add_u32 s41, s41, s{sXCD}\n  s_lshl_b32 s41, s41, 1\n  s_add_u32 s41, s41, s{sHW}")
        A(f"  s_mul_i32 s46, s41, {INB}\n  s_add_u32 s46, s46, {WS_INBOX}\n  s_add_u32 s47, s46, {43*256 + 8}\n  s_add_u32 s60, s46, 4096\n  v_add_u32 v5, s60, v{vL16}\n  v_add_u32 v7, 4096, v5")
        A(f"  s_lshr_b32 s60, s41, 5\n  s_lshl_b32 s60, s60, 11\n  s_bfe_u32 s61, s41, 0x30002\n  s_lshl_b32 s61, s61, 7\n  s_add_u32 s60, s60, s61\n  s_and_b32 s61, s41, 3\n  s_lshl_b32 s61, s61, 1\n  s_add_u32 s60, s60, s61")
        A(f"  v_and_b32 v4, 1, v{vG}\n  v_lshl_add_u32 v6, v{vJ}, 3, s60\n  v_lshl_add_u32 v6, v4, 10, v6\n  v_lshlrev_b32 v4, 4, v4\n  v_sub_u32 v4, 16, v4")
        A(f"  s_xor_b32 s45, s44, {TAGX:#x}")
        lp = self.lab("pollX"); ld = self.lab("gotX")
        A(f"{lp}:\n  s_load_dword s60, {sp(sWS)}, s47 glc\n  s_waitcnt lgkmcnt(0)\n  s_cmp_eq_u32 s60, s44\n  s_cbranch_scc1 {ld}")
        self.guard()
        A(f"  s_sleep {c['rx_sleep']}\n  s_branch {lp}\n{ld}:")
        self.stamp(1)
        if c["rx_delay"]: A(f"  s_sleep {c['rx_delay']}")
        lp = self.lab("pollI"); ld = self.lab("gotI")
        A(f"{lp}:")
        for i in range(11): A(f"  global_load_dwordx4 {vq(44+4*i)}, v{5 if i < 8 else 7}, {sp(sWS)} offset:{1024*i - (4096 if i < 8 else 8192)} sc1")
        A("L_dry_r:")
        for i in range(11):
            q = 44 + 4 * i
            A(f"  s_waitcnt vmcnt({10-i})")
            if i == 0:
                A(f"  v_xor_b32 v10, s44, v{q+2}\n  v_xor_b32 v11, s45, v{q+3}\n  v_mov_b32 v8, v{q}\n  v_mov_b32 v9, v{q+1}")
            else:
                A(f"  v_bitop3_b32 v10, v10, v{q+2}, s44 bitop3:0xf6\n  v_bitop3_b32 v11, v11, v{q+3}, s45 bitop3:0xf6")
                if i < 10: A(f"  v_add_f32 v8, v8, v{q}\n  v_add_f32 v9, v9, v{q+1}")
                else: A(f"  v_add_f32_dpp v8, v{q}, v8 quad_perm:[0,1,2,3] row_mask:0x7 bank_mask:0xf\n  v_add_f32_dpp v9, v{q+1}, v9 quad_perm:[0,1,2,3] row_mask:0x7 bank_mask:0xf")
        A(f"  v_or_b32 v10, v10, v11\n  v_cmp_ne_u32 vcc, 0, v10\n  s_cbranch_vccz {ld}")
        self.guard()
        A(f"  s_branch {lp}\n{ld}:")
        self.stamp(4); self.cstamp(15)
        A("  v_mov_b32 v12, v84\n  v_mov_b32 v13, v85\n  v_permlane16_swap_b32 v8, v9\n  v_permlane32_swap_b32 v12, v84\n  v_permlane32_swap_b32 v13, v85")
        A("  v_add_f32 v8, v8, v9\n  v_mov_b32 v12, v84\n  v_mov_b32 v13, v85\n  v_mov_b32 v9, v8")
        A("  v_permlane16_swap_b32 v12, v84\n  v_permlane16_swap_b32 v13, v85\n  v_permlane32_swap_b32 v9, v8")
        A("  v_lshlrev_b32 v84, v4, v84\n  v_lshlrev_b32 v85, v4, v85\n  v_add_f32 v8, v8, v9\n  v_and_b32 v84, 0xffff0000, v84\n  v_and_b32 v85, 0xffff0000, v85")
        self.rnd1(8, 9)
        A("  v_mul_f32 v8, v85, v8"); self.rnd1(8, 9)
        A("  v_add_f32 v8, v84, v8\n  v_cvt_pk_bf16_f32 v8, v8, v8")
        if c["dry"]: A("  s_cbranch_execz L_exit")
        A("  s_mov_b32 exec_hi, 0")
        A(f"  global_store_short v6, v8, {sp(sOUT)}{c['outfl']}")
        self.execall()
        self.stamp(5)
        A("  s_branch L_exit")
        A("L_reducer:")
        A(f"  v_lshlrev_b32 v4, 2, v{vLANE}\n  v_add_u32 v4, {L_GUP}, v4")
        A(f"  v_and_b32 v5, 1, v{vLANE}\n  v_lshlrev_b32 v5, 6, v5\n  v_and_b32 v6, 62, v{vLANE}\n  v_add_u32 v5, v5, v6")
        A("  s_barrier")
        A("L_dry_red:")
        for w in range(8): A(f"  ds_read2st64_b32 {vp(8+2*w)}, v4 offset0:{2*w} offset1:{2*w+1}")
        A("  s_waitcnt lgkmcnt(4)")
        A("  v_add_f32 v8, v8, v10\n  v_add_f32 v9, v9, v11\n  v_add_f32 v12, v12, v14\n  v_add_f32 v13, v13, v15\n  v_add_f32 v8, v8, v12\n  v_add_f32 v9, v9, v13")
        A("  s_waitcnt lgkmcnt(0)")
        A("  v_add_f32 v16, v16, v18\n  v_add_f32 v17, v17, v19\n  v_add_f32 v20, v20, v22\n  v_add_f32 v21, v21, v23\n  v_add_f32 v16, v16, v20\n  v_add_f32 v17, v17, v21")
        A("  v_add_f32 v8, v8, v16\n  v_add_f32 v9, v9, v17")
        self.rnd2(8, 9, 10)
        A(f"  v_mul_f32 v8, s{sLOG2E}, v8\n  v_exp_f32 v8, -v8\n  v_add_f32 v8, 1.0, v8\n  v_rcp_f32 v8, v8")
        self.rnd1(8, 10)
        A(f"  v_mul_f32 v8, v8, v9\n  v_cvt_pk_bf16_f32 v8, v8, v8\n  ds_write_b16 v5, v8 offset:{L_HH}\n  s_waitcnt lgkmcnt(0)")
        if c["dry"]: A("  s_cbranch_execz L_dry_s")
        A("  s_barrier")
        self.stamp(4)
        self.dumpv(8, 1, 0xE0000, 2, 256)
        A("  s_branch L_exit2")

    def build(self):
        A = self.A; c = self.c
        A(f"{KNAME}:")
        if c["stamps"]:
            for k in range(1, 16): A(f"  s_mov_b64 s[{70+2*k}:{71+2*k}], 0")
        self.stamp(0)
        A("  s_cmp_ge_u32 s2, 256\n  s_cbranch_scc1 L_end")
        A("  s_load_dwordx16 s[4:19], s[0:1], 0\n  s_load_dwordx8 s[20:27], s[0:1], 64\n  s_load_dwordx4 s[28:31], s[0:1], 96")
        A(f"  v_lshrrev_b32 v2, 6, v0\n  v_and_b32 v0, 63, v0\n  v_readfirstlane_b32 s{sWAVE}, v2")
        A(f"  v_lshlrev_b32 v{vL16}, 4, v0")
        A(f"  s_and_b32 s{sXCD}, s2, 7\n  s_lshr_b32 s{sIDX}, s2, 3\n  s_lshr_b32 s{sB}, s{sIDX}, 2\n  s_and_b32 s{sJ}, s{sIDX}, 3")
        if c["hmap"] == 0: A(f"  s_lshl_b32 s{sH}, s{sXCD}, 2\n  s_add_u32 s{sH}, s{sH}, s{sJ}")
        elif c["hmap"] == 1: A(f"  s_lshl_b32 s{sH}, s{sJ}, 3\n  s_add_u32 s{sH}, s{sH}, s{sXCD}")
        elif c["hmap"] == 2: A(f"  s_lshr_b32 s{sH}, s{sXCD}, 1\n  s_lshl_b32 s{sH}, s{sH}, 3\n  s_and_b32 s60, s{sXCD}, 1\n  s_add_u32 s{sH}, s{sH}, s60\n  s_lshl_b32 s60, s{sJ}, 1\n  s_add_u32 s{sH}, s{sH}, s60")
        elif c["hmap"] == 3: A(f"  s_lshl_b32 s{sH}, s{sXCD}, 2\n  s_add_u32 s60, s{sJ}, 1\n  s_and_b32 s60, s60, 3\n  s_add_u32 s{sH}, s{sH}, s60")
        if c["fast0"]:
            l = self.lab("nofast")
            A(f"  s_cmp_ge_u32 s{sWAVE}, 8\n  s_cbranch_scc1 {l}")
            A(f"  s_lshl_b32 s56, s{sB}, 5\n  s_add_u32 s56, s56, s{sH}\n  s_lshl_b32 s56, s56, 20\n  s_add_u32 s56, s56, 0xC0000\n  s_lshl_b32 s{sOFF}, s{sWAVE}, {10 + c['gran'].bit_length() - 1}")
            A(f"  s_mov_b32 s{SRDA+2}, 0x40000\n  s_mov_b32 s{SRDA+3}, 0x20000\n  s_waitcnt lgkmcnt(0)\n  s_add_u32 s{SRDA}, s{sK}, s56\n  s_addc_u32 s{SRDA+1}, s{sK+1}, 0")
            for n in range(2): A(f"  buffer_load_dwordx4 {vq(40+4*n)}, v{vL16}, {sq(SRDA)}, s{sOFF} offen offset:{1024*n}{c['kfl']}")
            self.stamp(8)
            A(f"{l}:")
        if c["pref"]: self.prefetch()
        A(f"  v_mov_b32 v36, 0\n  v_mov_b32 v37, 0\n  v_lshrrev_b32 v{vG}, 4, v0\n  v_and_b32 v{vJ}, 15, v0\n  v_mov_b32 v{vZ}, 0\n  v_mov_b32 v{vONE}, 1")
        A(f"  s_mul_i32 s65, s{sB}, 3\n  s_add_u32 s65, s65, s{sJ}\n  s_lshr_b32 s60, s{sJ}, 1\n  s_sub_u32 s65, s65, s60\n  s_lshr_b32 s61, s65, 2")
        A(f"  s_lshr_b32 s60, s{sXCD}, 1\n  s_mul_i32 s{sSL}, s{sXCD}, 5\n  s_add_u32 s{sSL}, s{sSL}, s60\n  s_add_u32 s{sSL}, s{sSL}, s61\n  s_sub_u32 s{sSL}, s{sSL}, 1")
        A(f"  s_and_b32 s60, s{sXCD}, 1\n  s_add_u32 s60, s60, 5\n  s_cmp_lt_u32 s61, s60\n  s_cselect_b32 s{sFFN}, 1, 0\n  s_cmp_lt_u32 s{sSL}, 43\n  s_cselect_b32 s{sFFN}, s{sFFN}, 0")
        A(f"  s_add_u32 s60, s{sXCD}, 256\n  s_cmp_eq_u32 s{sIDX}, 28\n  s_cselect_b32 s57, s60, 100")
        A(f"  s_sub_u32 s60, s{sB}, {c['prodb']}\n  s_lshl_b32 s60, s60, 3\n  s_add_u32 s60, s60, s{sXCD}\n  s_cmp_lt_u32 s{sB}, {c['prodb']}\n  s_cselect_b32 s60, 64, s60")
        A(f"  s_cmp_eq_u32 s{sJ}, 1\n  s_cselect_b32 s57, s60, s57\n  s_cselect_b32 s{sFFN}, 0, s{sFFN}\n  s_and_b32 s{sJ}, s65, 3")
        if "M" in c["xskip"]: A("  s_cmp_lt_u32 s57, 48\n  s_cselect_b32 s57, 100, s57")
        if "F" in c["xskip"]: A("  s_cmp_ge_u32 s57, 256\n  s_cselect_b32 s57, 100, s57")
        A(f"  s_mov_b32 s{sGUARD}, 0\n  s_mov_b32 s{sPLO}, 0x05040100\n  s_mov_b32 s{sPHI}, 0x07060302\n  s_mov_b32 s{sLOG2E}, {LOG2E:#x}")
        A(f"  s_cmp_ge_u32 s{sWAVE}, 8\n  s_cbranch_scc1 L_helper")
        if c["sprio"]:
            l = self.lab("sp")
            A(f"  s_cmp_lt_u32 s{sWAVE}, 4\n  s_cbranch_scc1 {l}\n  s_setprio {c['sprio']}\n{l}:")
        A(f"  s_lshl_b32 s60, s{sB}, 5\n  s_add_u32 s60, s60, s{sH}\n  s_lshl_b32 s60, s60, 20\n  s_add_u32 s60, s60, 0xC0000")
        A(f"  s_lshl_b32 s{sOFF}, s{sWAVE}, {10 + c['gran'].bit_length() - 1}\n  s_mul_i32 s56, s{sWAVE}, {c['NV']*1024}\n  s_add_u32 s56, s56, {L_V}")
        gr = c["gran"] // 4
        for G in range(1, 8): A(f"  s_add_u32 s{sOFF+G}, s{sOFF}, {(G // gr) * 32768 * gr + (G % gr) * 4096}")
        A(f"  s_mov_b32 s{SRDA+2}, 0x40000\n  s_mov_b32 s{SRDA+3}, 0x20000\n  s_mov_b32 s{SRDB+2}, 0x40000\n  s_mov_b32 s{SRDB+3}, 0x20000")
        A("  s_waitcnt lgkmcnt(0)")
        D = c["D"]
        d2 = c["depth2"] or c["depth"]
        def mask(f1, f2):
            m = 0; acc = 0.5
            for n in range(64):
                acc += f1 if n < c["dsw"] else f2
                if acc >= 1.0 - 1e-9:
                    acc -= 1.0; m |= 1 << n
            return m
        m1 = [mask(min(1.0, D - a), min(1.0, D - b)) for a, b in zip(c["depth"], d2)]
        m2 = [mask(max(0.0, D - 1 - a), max(0.0, D - 1 - b)) & x for a, b, x in zip(c["depth"], d2, m1)]
        for reg, ms in ((58, m1), (14, m2)):
            for half in range(2):
                w = [(m >> (32 * half)) & 0xffffffff for m in ms]
                A(f"  s_bitcmp1_b32 s{sXCD}, 0\n  s_mov_b32 s{reg+half}, {w[0]:#x}\n  s_cselect_b32 s{reg+half}, {w[1]:#x}, s{reg+half}")
                A(f"  s_cmp_lt_u32 s57, 48\n  s_cselect_b32 s{reg+half}, {w[2]:#x}, s{reg+half}\n  s_cmp_eq_u32 s57, 64\n  s_cselect_b32 s{reg+half}, {w[3]:#x}, s{reg+half}")
        A("  s_waitcnt lgkmcnt(0)")
        A(f"  s_add_u32 s{SRDA}, s{sK}, s60\n  s_addc_u32 s{SRDA+1}, s{sK+1}, 0\n  s_add_u32 s{SRDB}, s{sV}, s60\n  s_addc_u32 s{SRDB+1}, s{sV+1}, 0")
        if c["Dodd"]:
            A(f"  s_bitcmp1_b32 s{sXCD}, 0\n  s_cbranch_scc1 L_sodd")
        self.streamer(c["D"], "e")
        if c["Dodd"]:
            A("L_sodd:")
            self.streamer(c["Dodd"], "o")
        self.streamer_ffn()
        self.helper()
        A("L_exit2:")
        if c["stamps"]: A("  s_sleep 100")
        A("L_exit:")
        if c["stamps"] and c["diag"]:
            A(f"  s_sleep 127\n  s_sleep 127\n  s_load_dword s44, {sp(sDBG)}, 0x80\n  s_waitcnt lgkmcnt(0)\n  s_cmp_ge_u32 s{sWAVE}, 8\n  s_cbranch_scc1 L_diagh\n  s_cmp_lg_u32 s{sWAVE}, 7\n  s_cbranch_scc1 L_end")
            def rec(k, slot):
                l = self.lab("dg")
                A(f"  s_cmp_eq_u32 s{70+2*k}, 0\n  s_cbranch_scc1 {l}\n  s_sub_u32 s60, s{70+2*k}, s44\n  s_add_u32 s60, s60, 1000\n  s_atomic_umax s60, {sp(sDBG)}, {4*slot:#x}\n{l}:")
            for k, slot in ((0, 4), (11, 5), (1, 6), (3, 7), (5, 8), (7, 9)): rec(k, slot)
            A("  s_endpgm\nL_diagh:")
            A(f"  s_cmp_lg_u32 s{sWAVE}, 8\n  s_cbranch_scc1 L_end")
            for k, slot in ((6, 10), (7, 11), (2, 12), (3, 13), (4, 14), (5, 15)): rec(k, slot)
        elif c["stamps"]:
            A("  s_mov_b64 exec, 1\n  s_waitcnt lgkmcnt(0)")
            A(f"  s_mul_i32 s60, s2, 12\n  s_add_u32 s60, s60, s{sWAVE}\n  s_lshl_b32 s60, s60, 7\n  s_add_u32 s60, s60, {WS_STAMP}\n  v_mov_b32 v4, s60")
            for k in range(16):
                A(f"  v_mov_b32 v6, s{70+2*k}\n  v_mov_b32 v7, s{71+2*k}\n  global_store_dwordx2 v4, v[6:7], {sp(sWS)} offset:{8*k}")
        A("L_end:\n  s_endpgm")
        body = fix_hazards(self.L)
        nk = c["prefkib"]
        out = HEADER + f"; @launch grid=(256,1,1) block=(768,1,1) lds={L_V + 8192*c['NV']}\n"
        out += '.amdgcn_target "amdgcn-amd-amdhsa--gfx950"\n.text\n'
        out += f".globl {KNAME}\n.p2align 8\n.type {KNAME},@function\n" + body
        out += f"  .fill 64, 4, 0xbf800000\nL_codeend:\n.if (L_codeend - {KNAME}) < {nk*1024}\n.fill ({nk*1024} - (L_codeend - {KNAME}))/4, 4, 0xbf800000\n.endif\n"
        out += f""".section .rodata,"a"
.p2align 6
.amdhsa_kernel {KNAME}
  .amdhsa_next_free_vgpr 168
  .amdhsa_next_free_sgpr 102
  .amdhsa_accum_offset 168
  .amdhsa_group_segment_fixed_size 0
  .amdhsa_kernarg_size 112
  .amdhsa_user_sgpr_count 2
  .amdhsa_user_sgpr_kernarg_segment_ptr 1
  .amdhsa_system_sgpr_workgroup_id_x 1
  .amdhsa_float_denorm_mode_32 3
.end_amdhsa_kernel
"""
        return out

def gen(**cfg): return Gen(**cfg).build()

if __name__ == "__main__":
    import json
    cfg = json.loads(sys.argv[2]) if len(sys.argv) > 2 else {}
    open(sys.argv[1], "w").write(gen(**cfg))
```

```python
import sys, struct
from asmlib import fix_hazards

KNAME = "adaLN_cond__sliding_block_cached__glu_gated_glu__decode_kernel"

HEADER = """; Kernarg layout for this problem (112 bytes, ptrs only, base s[0:1]):
;   offset  32: d_in[4] A_wo  shape=(4096, 512) dtype=bfloat16
;   offset  80: d_in[10] w_mod  shape=(512, 3072) dtype=bfloat16
;   offset 104: d_ws      workspace
; One workgroup per (batch, head): 8 streamer waves (K/V -> registers, QK, softmax, PV, then the GLU slice)
; and 4 helper waves (adaLN modulation, q projection, output projection, cross-workgroup hand-offs).
"""

WS_MOD, WS_STAT, WS_MARK, WS_ACC, WS_QTAG, WS_HINT, WS_INBOX, WS_QIN, WS_DUMP, WS_STAMP = 0x0, 0xC000, 0xD000, 0x10000, 0x18000, 0x20000, 0x40000, 0x1C0000, 0x200000, 0x20000000
F_H, F_Q, F_Q2, F_ST, F_O, F_MOD, F_MOD2, F_C, F_P, F_W, F_K, F_A, F_R, F_N = 0, 4, 8, 12, 16, 20, 24, 28, 32, 36, 40, 44, 48, 52
L_STATS, L_QB, L_OP, L_OB, L_HBUF, L_QP = 0x40, 0x100, 0x200, 0x1200, 0x1600, 0x2600
L_MODR, L_H2, L_X1, L_GUP, L_HH, L_MODP = 0x2200, 0x4A00, 0x5200, 0x5A00, 0x6A00, 0x7000
L_V = 0x7000
L_ROWS = 0x1600

def f2u(x): return struct.unpack("<I", struct.pack("<f", x))[0]
INB = 11264
TAGX = 0x5bd1e995
LOG2E = f2u(1.4426950408889634)
SCALE = f2u(128 ** -0.5)

sX, sK, sV, sWQ, sWO, sG, sU, sDN, sC, sWM, sOUT, sDBG, sWS = 4, 6, 8, 10, 12, 16, 18, 20, 22, 24, 26, 28, 30
sWAVE, sXCD, sIDX, sB, sJ, sH, sSL, sFFN = 32, 33, 34, 35, 36, 37, 38, 39
sOFF = 40
SRDA, SRDB = 48, 52
sPLO, sPHI, sGUARD, sLOG2E = 62, 63, 64, 66
sHW = 67
vLANE, vL16, vG, vJ, vZ, vONE = 0, 1, 2, 3, 38, 39

def sp(r): return f"s[{r}:{r+1}]"
def sq(r): return f"s[{r}:{r+3}]"
def vp(r): return f"v[{r}:{r+1}]"
def vq(r): return f"v[{r}:{r+3}]"

class Gen:
    def __init__(self, **cfg):
        self.c = dict(D=4, HD=4, HD0=6, HDO=4, P0=24, stamps=False, dump=False, guard=200000, pref=False,
                      inbox_sleep=6, hint_sleep=2, Dodd=None, pref2=False, prefwg=16, prefkib=26, hint_at=28, poll_sleep=8, NV=16, depth=[3.15, 3.15, 4, 3.15], FD=4, NF0=0, HDOf=4, H0D=4, H0D1=2, prio=2, nowo=False, wo_at=None, abl=None, init_mode='full', ablD=7, H0DQ=18, H0pre=True, fillD=4, nofill=False, q_sleep0=8, q_sleep=8, a_sleep=16, xskip=[], plainA=True, down_late=False, wofl='', tlb=0, modlag=2, HDf=4, ffnfl='', HDP=2, HDPf=1.75, PQ=24, kfl=' nt', vfl=' nt', hmap=0, wqpat=32, full_sleep=0, hint_lag=3, PB=2, fmode='flood', PR=8, wqpf=3, wqpfD=16, wqfl='', wqx=0, sprint=64, prodb=2, o_sleep=1, depth2=[3.15, 3.15, 3.6, 3.6], dsw=34, gran=4, outfl=' sc1', hprio=2, sprio=1, sprio_off=31, dry=True, prefidx=13, diag=False, sub=True, dryo=True, gate=False, oadd=False, fast0=True, read_delay=16, barD=False, rx_sleep=8, rx_delay=16)
        self.c.update(cfg)
        self.L = []
        self.nlab = 0

    def A(self, s): self.L.append(s)
    def lab(self, base):
        self.nlab += 1
        return f"L_{base}_{self.nlab}"
    def stamp(self, k):
        if self.c["stamps"]: self.A(f"  s_memrealtime s[{70+2*k}:{71+2*k}]")
    def cstamp(self, k):
        if self.c["stamps"]:
            self.A(f"  s_waitcnt lgkmcnt(0)\n  s_mul_i32 s{70+2*k}, s{sGUARD}, 100\n  s_add_u32 s{70+2*k}, s{70+2*k}, s70\n  s_addc_u32 s{71+2*k}, s71, 0")
    def guard(self):
        if self.c["guard"]:
            self.A(f"  s_add_u32 s{sGUARD}, s{sGUARD}, 1\n  s_cmp_gt_u32 s{sGUARD}, {self.c['guard']}\n  s_cbranch_scc1 L_exit")
    def exec1(self): self.A("  s_mov_b64 exec, 1")
    def execall(self): self.A("  s_mov_b64 exec, -1")

    def lds_spin(self, off, target, tmp, sleep=1):
        l = self.lab("spin"); d = self.lab("spun")
        self.A(f"{l}:")
        self.A(f"  ds_read_b32 v{tmp}, v{vZ} offset:{off}\n  s_waitcnt lgkmcnt(0)\n  v_readfirstlane_b32 s60, v{tmp}")
        self.A(f"  s_cmp_ge_u32 s60, {target}\n  s_cbranch_scc1 {d}")
        self.guard()
        if sleep: self.A(f"  s_sleep {sleep}")
        self.A(f"  s_branch {l}\n{d}:")

    def lds_inc(self, off):
        self.exec1(); self.A(f"  ds_add_u32 v{vZ}, v{vONE} offset:{off}"); self.execall()

    def dumpv(self, reg, n, base, sidx=None, stride=0, tmp=36):
        if not self.c["dump"]: return
        A = self.A
        if sidx is not None:
            A(f"  s_mul_i32 s68, s{sidx}, {stride}\n  s_add_u32 s68, s68, {WS_DUMP + base}")
        else:
            A(f"  s_mov_b32 s68, {WS_DUMP + base}")
        A(f"  v_lshlrev_b32 v{tmp}, {dict([(1,2),(2,3),(4,4)])[n]}, v{vLANE}\n  v_add_u32 v{tmp}, s68, v{tmp}")
        op = {1: "dword", 2: "dwordx2", 4: "dwordx4"}[n]
        r = f"v{reg}" if n == 1 else f"v[{reg}:{reg+n-1}]"
        A(f"  global_store_{op} v{tmp}, {r}, {sp(sWS)}\n  s_waitcnt vmcnt(0)")

    def prefetch(self, wait=False):
        A = self.A
        l = self.lab("nopref"); lp = self.lab("pref"); pc = self.lab("pc")
        A(f"  s_cmp_lg_u32 s{sWAVE}, 11\n  s_cbranch_scc1 {l}\n  s_cmp_lg_u32 s{sIDX}, {self.c['prefidx']}\n  s_cbranch_scc1 {l}")
        A(f"  s_getpc_b64 s[60:61]\n{pc}:\n  s_sub_u32 s60, s60, {pc}-{KNAME}\n  s_subb_u32 s61, s61, 0\n  v_mov_b32 v36, v{vL16}\n  s_mov_b32 s65, {self.c['prefkib']}")
        A(f"{lp}:\n  global_load_dword v35, v36, s[60:61]\n  v_add_u32 v36, 1024, v36\n  s_sub_u32 s65, s65, 1\n  s_cmp_lg_u32 s65, 0\n  s_cbranch_scc1 {lp}")
        if wait: A("  s_waitcnt vmcnt(0)")
        A(f"{l}:")

    def rnd1(self, x, t):
        self.A(f"  v_cvt_pk_bf16_f32 v{t}, v{x}, v{x}\n  v_and_b32 v{x}, 0xffff0000, v{t}")
    def rnd2(self, x, y, t):
        self.A(f"  v_cvt_pk_bf16_f32 v{t}, v{x}, v{y}\n  v_lshlrev_b32 v{x}, 16, v{t}\n  v_and_b32 v{y}, 0xffff0000, v{t}")
    def rnd8(self, X, T):
        for i in range(4): self.A(f"  v_cvt_pk_bf16_f32 v{T+i}, v{X+2*i}, v{X+2*i+1}")
        self.unpack8(T, X)
    def unpack8(self, src, dst):
        for i in range(4):
            self.A(f"  v_lshlrev_b32 v{dst+2*i}, 16, v{src+i}\n  v_and_b32 v{dst+2*i+1}, 0xffff0000, v{src+i}")
    def wave_reduce(self, op, regs, full=True):
        steps = []
        if full: steps += ["quad_perm:[1,0,3,2] row_mask:0xf bank_mask:0xf", "quad_perm:[2,3,0,1] row_mask:0xf bank_mask:0xf"]
        steps += ["row_ror:4 row_mask:0xf bank_mask:0xf", "row_ror:8 row_mask:0xf bank_mask:0xf",
                  "row_bcast:15 row_mask:0xa bank_mask:0xf", "row_bcast:31 row_mask:0xc bank_mask:0xf"]
        for s in steps:
            for r in regs: self.A(f"  {op}_dpp v{r}, v{r}, v{r} {s}")

    def pk8(self, op, D, Aq, Bq):
        for i in range(0, 8, 2): self.A(f"  v_pk_{op}_f32 {vp(D+i)}, {vp(Aq+i)}, {vp(Bq+i)}")

    def layernorm(self, X, T, S):
        A = self.A
        A(f"  v_readfirstlane_b32 s60, v{X}")
        for i in range(0, 8, 2): A(f"  v_pk_add_f32 {vp(T+i)}, {vp(X+i)}, s[60:61] op_sel_hi:[1,0] neg_lo:[0,1] neg_hi:[0,1]")
        A(f"  v_pk_add_f32 {vp(S)}, {vp(T)}, {vp(T+2)}\n  v_pk_mul_f32 {vp(S+2)}, {vp(T)}, {vp(T)}")
        A(f"  v_pk_add_f32 {vp(S)}, {vp(S)}, {vp(T+4)}\n  v_pk_fma_f32 {vp(S+2)}, {vp(T+2)}, {vp(T+2)}, {vp(S+2)}")
        A(f"  v_pk_add_f32 {vp(S)}, {vp(S)}, {vp(T+6)}\n  v_pk_fma_f32 {vp(S+2)}, {vp(T+4)}, {vp(T+4)}, {vp(S+2)}")
        A(f"  v_add_f32 v{S}, v{S}, v{S+1}\n  v_pk_fma_f32 {vp(S+2)}, {vp(T+6)}, {vp(T+6)}, {vp(S+2)}\n  v_add_f32 v{S+1}, v{S+2}, v{S+3}")
        self.wave_reduce("v_add_f32", [S, S + 1])
        A(f"  v_readlane_b32 s61, v{S}, 63\n  v_readlane_b32 s65, v{S+1}, 63")
        inv = f2u(1.0 / 512)
        A(f"  v_mov_b32 v{S+2}, {inv:#x}")
        A(f"  v_mul_f32 v{S}, s61, v{S+2}\n  v_mul_f32 v{S+1}, s65, v{S+2}")
        A(f"  v_fma_f32 v{S+1}, -v{S}, v{S}, v{S+1}\n  v_add_f32 v{S}, s60, v{S}\n  v_max_f32 v{S+1}, 0, v{S+1}")
        self.rnd2(S, S + 1, S + 2)
        A(f"  v_add_f32 v{S+1}, {f2u(1e-5):#x}, v{S+1}")
        for i in range(0, 4, 2): A(f"  v_pk_add_f32 {vp(X+i)}, {vp(X+i)}, {vp(S)} op_sel_hi:[1,0] neg_lo:[0,1] neg_hi:[0,1]")
        A(f"  v_cvt_pk_bf16_f32 v{S+2}, v{S+1}, v{S+1}")
        for i in range(4, 8, 2): A(f"  v_pk_add_f32 {vp(X+i)}, {vp(X+i)}, {vp(S)} op_sel_hi:[1,0] neg_lo:[0,1] neg_hi:[0,1]")
        A(f"  v_and_b32 v{S+1}, 0xffff0000, v{S+2}\n  v_sqrt_f32 v{S+1}, v{S+1}")
        for i in range(4): A(f"  v_cvt_pk_bf16_f32 v{T+i}, v{X+2*i}, v{X+2*i+1}")
        self.rnd1(S + 1, S + 2)
        A(f"  v_rcp_f32 v{S+2}, v{S+1}")
        self.unpack8(T, X)
        A(f"  v_fma_f32 v{S+3}, -v{S+1}, v{S+2}, 1.0\n  v_fmac_f32 v{S+2}, v{S+3}, v{S+2}")
        for i in range(0, 8, 2): A(f"  v_pk_mul_f32 {vp(T+i)}, {vp(X+i)}, {vp(S+2)} op_sel_hi:[1,0]")
        for i in range(0, 8, 2): A(f"  v_pk_fma_f32 {vp(X+i)}, {vp(T+i)}, {vp(S)}, {vp(X+i)} op_sel:[0,1,0] op_sel_hi:[1,1,1] neg_lo:[1,0,0] neg_hi:[1,0,0]")
        for i in range(0, 8, 2): A(f"  v_pk_fma_f32 {vp(X+i)}, {vp(X+i)}, {vp(S+2)}, {vp(T+i)} op_sel_hi:[1,0,1]")
        self.rnd8(X, T)

    def transpose_block(self, B, t0, t1):
        A = self.A
        R = lambda e, t: B + 4 * e + t
        lo = lambda d, a, b: A(f"  v_perm_b32 v{d}, v{b}, v{a}, s{sPLO}")
        hi = lambda d, a, b: A(f"  v_perm_b32 v{d}, v{b}, v{a}, s{sPHI}")
        for p in range(4):
            a, b = R(2 * p, p), R(2 * p + 1, p)
            lo(t0, a, b); hi(b, a, b); A(f"  v_mov_b32 v{a}, v{t0}")
            for t in range(p + 1, 4):
                a, b, c, d = R(2 * p, t), R(2 * p + 1, t), R(2 * t, p), R(2 * t + 1, p)
                lo(t0, a, b); hi(t1, a, b); lo(a, c, d); hi(b, c, d)
                A(f"  v_mov_b32 v{c}, v{t0}\n  v_mov_b32 v{d}, v{t1}")

    def transpose_x2(self, Rb, Bb):
        for c in range(4):
            for p in range(4):
                a, b = Rb + 2 * (2 * p) + (c >> 1), Rb + 2 * (2 * p + 1) + (c >> 1)
                self.A(f"  v_perm_b32 v{Bb+4*c+p}, v{b}, v{a}, s{sPHI if c & 1 else sPLO}")

    def gemv32(self, body=False):
        res = [24] + [40 + 4 * k for k in range(7)]
        if self.c["sub"] and not body:
            pc = self.lab("call")
            self.A(f"  s_getpc_b64 s[60:61]\n{pc}:\n  s_add_u32 s60, s60, L_gemv-{pc}\n  s_addc_u32 s61, s61, 0\n  s_swappc_b64 s[42:43], s[60:61]\n  s_nop 7")
            return res
        for c in range(8):
            for m in range(4):
                self.A(f"  v_mfma_f32_16x16x32_bf16 {vq(res[c])}, {vq(8+4*m)}, {vq(40+32*m+4*c)}, {'0' if m == 0 else vq(res[c])}")
        return res

    def wload32(self, srd, steps, D, frac=None, hooks=None, fl=None):
        A = self.A
        done = 0
        for i in range(32):
            dd = D
            if frac is not None and int((i + 1) * (D - frac)) != int(i * (D - frac)): dd = D - 1
            if i >= dd: A(f"  s_waitcnt vmcnt({dd-1})")
            if hooks and i in hooks: hooks[i]()
            A(f"  buffer_load_dwordx4 {vq(40+4*i)}, v4, {sq(srd)}, s40 offen{self.c['wofl'] if fl is None else fl}")
            if i < 31: A(f"  s_add_u32 s40, s40, {steps[i]}")
            landed = i - D + 1 if i >= D else 0
            if landed >= 8 * (done + 1):
                self.transpose_block(40 + 32 * done, 5, 6); done += 1
        while done < 4:
            A(f"  s_waitcnt vmcnt({8*(3-done)})")
            self.transpose_block(40 + 32 * done, 5, 6); done += 1

    def init_duty(self, wave):
        A = self.A
        l2 = self.lab("inited"); l3 = self.lab("noinit")
        A(f"  s_cmp_lg_u32 s{sWAVE}, {wave}\n  s_cbranch_scc1 {l3}")
        mark = len(self.L)
        A("  v_mov_b32 v8, -1\n  v_mov_b32 v9, -1\n  v_mov_b32 v10, -1\n  v_mov_b32 v11, -1")
        A(f"  s_lshl_b32 s60, s2, 12\n  s_add_u32 s60, s60, {WS_QIN}\n  v_add_u32 v5, s60, v{vL16}")
        for i in range(4): A(f"  global_store_dwordx4 v5, {vq(8)}, {sp(sWS)} offset:{1024*i} sc1")
        A(f"  s_cmp_eq_u32 s{sFFN}, 0\n  s_cbranch_scc1 {l2}\n  s_cmp_ge_u32 s{sSL}, 32\n  s_cbranch_scc1 {l2}")
        A(f"  s_lshl_b32 s60, s{sJ}, 5\n  s_add_u32 s60, s60, s{sSL}\n  s_mul_i32 s60, s60, 6144\n  s_add_u32 s60, s60, {WS_INBOX + 2048}\n  v_add_u32 v5, s60, v{vL16}")
        for i in range(6): A(f"  global_store_dwordx4 v5, {vq(8)}, {sp(sWS)} offset:{1024*i - 2048} sc1")
        A(f"  s_cmp_ge_u32 s{sSL}, 8\n  s_cbranch_scc1 {l2}")
        A("  v_mov_b32 v12, 0\n  v_mov_b32 v13, 0\n  v_mov_b32 v14, 0\n  v_mov_b32 v15, 0")
        A(f"  s_lshl_b32 s60, s{sJ}, 3\n  s_add_u32 s60, s60, s{sSL}\n  s_lshl_b32 s60, s60, 10\n  s_add_u32 s60, s60, {WS_ACC}\n  v_add_u32 v5, s60, v{vL16}")
        A(f"  global_store_dwordx4 v5, {vq(12)}, {sp(sWS)} sc1")
        if self.c["init_mode"] == "nostore": self.L[mark:] = []
        A(f"{l2}:\n  s_waitcnt vmcnt(0)")
        if self.c["init_mode"] != "noticket":
            A(f"  s_mov_b32 s65, 1\n  s_atomic_add s65, {sp(sDBG)}, 0x4 glc\n  s_waitcnt lgkmcnt(0)")
            A(f"  s_cmp_lg_u32 s65, 255\n  s_cbranch_scc1 {l3}\n  s_mov_b32 s65, 1\n  s_atomic_add s65, {sp(sDBG)}, 0x84")
        A(f"{l3}:")

    def streamer(self, D, tag):
        A = self.A; c = self.c
        T = lambda n: 40 + 4 * n
        issued = []
        def issue(name, srd, n):
            A(f"  buffer_load_dwordx4 {vq(T(n))}, v{vL16}, {sq(srd)}, s{sOFF + (n >> 2)} offen offset:{1024*(n&3)}{c['kfl']}")
            issued.append(name)
        def pace():
            n = len(issued)
            if n >= D: A(f"  s_waitcnt vmcnt({D-1})")
            if n >= D - 2 and n < 64:
                l = self.lab("pc")
                A(f"  s_bitcmp1_b64 s[58:59], {n}\n  s_cbranch_scc0 {l}\n  s_waitcnt vmcnt({D-2})")
                A(f"  s_bitcmp1_b64 s[14:15], {n}\n  s_cbranch_scc0 {l}\n  s_waitcnt vmcnt({D-3})\n{l}:")
        def waitfor(name):
            A(f"  s_waitcnt vmcnt({len(issued) - 1 - issued.index(name)})")
        lnp = self.lab("noprod"); lj = self.lab("joined")
        NJ = D + c["modlag"]
        A(f"  s_cmp_ge_u32 s57, {48 if (c['abl'] is None or 'mod' in c['abl']) else 0}\n  s_cbranch_scc1 {lnp}")
        self.mod_loads()
        A("  s_barrier")
        self.mod_compute_a()
        A(f"  s_waitcnt vmcnt({c['prio']})")
        E = 2 if c["fast0"] else 0
        for n in range(E, D - 1): issue(f"K{n}", SRDA, n)
        A(f"  s_load_dword s3, {sp(sDBG)}, 0x80")
        A(f"  s_waitcnt vmcnt({D-1-E})")
        self.stamp(9)
        self.mod_compute_b()
        for n in range(D - 1, NJ):
            A(f"  s_waitcnt vmcnt({D-1})"); issue(f"K{n}", SRDA, n)
        self.mod_compute_c()
        self.stamp(14)
        if c["wo_at"] is not None and c["wo_at"] < NJ: self.lds_inc(F_K)
        A(f"  s_branch {lj}\n{lnp}:")
        issued.clear()
        for n in range(32):
            if n == NJ: A(f"{lj}:")
            if n < E: issued.append(f"K{n}")
            else: pace(); issue(f"K{n}", SRDA, n)
            if n == 0 and not E: self.stamp(8)
            if n in (4, 8, 16, 24): self.stamp({4: 10, 8: 11, 16: 12, 24: 13}[n])
            if n == c["wo_at"]: self.lds_inc(F_K)
            if c["sprio"] and n == c["sprio_off"]: A("  s_setprio 0")
            if n == D - 3:
                A("  s_barrier")
                self.stamp(9)
            if n == NJ:
                A(f"  v_lshrrev_b32 v12, 1, v{vJ}\n  v_and_b32 v13, 1, v{vJ}\n  v_mov_b32 v14, 0xffff\n  v_lshlrev_b32 v13, 4, v13\n  v_lshlrev_b32 v14, v13, v14")
                for j in range(4):
                    A(f"  v_cmp_eq_u32 vcc, {j}, v12\n  v_cndmask_b32 v{4+j}, 0, v14, vcc")
        NV = c["NV"]
        slot = lambda n: T(32 - NV + n) if n < NV else T(n - NV)
        l = self.lab("nomodchk")
        A(f"  s_cmp_ge_u32 s57, {48 if (c['abl'] is None or 'mod' in c['abl']) else 0}\n  s_cbranch_scc1 {l}")
        self.lds_spin(F_MOD2, 8, 12)
        A(f"{l}:")
        for n in range(NV):
            if n % 4 == 0: A(f"  s_add_u32 m0, s56, {4096 * (n // 4)}")
            pace()
            A(f"  buffer_load_dwordx4 v{vL16}, {sq(SRDB)}, s{sOFF + (n >> 2)} offen offset:{1024*(n&3)}{c['vfl']} lds")
            issued.append(f"V{n}")
        self.stamp(1)
        self.lds_spin(F_Q2, 1, 12)
        self.stamp(2)
        A(f"  v_lshlrev_b32 v12, 4, v{vJ}\n  ds_read_b128 {vq(8)}, v12 offset:{L_QB}\n  s_waitcnt lgkmcnt(0)")
        def qk(G):
            z = 18 + G
            for r in range(4):
                for t in range(4):
                    A(f"  v_dot2_f32_bf16 v{12+t}, v{T(4*G+t)+r}, v{8+r}, {'0' if r == 0 else f'v{12+t}'}")
            A(f"  v_add_f32_dpp v16, v12, v12 row_ror:8 row_mask:0xf bank_mask:0x3")
            A(f"  v_add_f32_dpp v17, v14, v14 row_ror:8 row_mask:0xf bank_mask:0x3")
            A(f"  v_add_f32_dpp v16, v13, v13 row_ror:8 row_mask:0xf bank_mask:0xc")
            A(f"  v_add_f32_dpp v17, v15, v15 row_ror:8 row_mask:0xf bank_mask:0xc")
            A(f"  v_add_f32_dpp v{z}, v16, v16 row_shl:4 row_mask:0xf bank_mask:0x5")
            A(f"  v_add_f32_dpp v{z}, v17, v17 row_shr:4 row_mask:0xf bank_mask:0xa")
            A(f"  v_add_f32_dpp v{z}, v{z}, v{z} quad_perm:[1,0,3,2] row_mask:0xf bank_mask:0xf")
            A(f"  v_add_f32_dpp v{z}, v{z}, v{z} quad_perm:[2,3,0,1] row_mask:0xf bank_mask:0xf")
        nv = NV
        def nextv():
            nonlocal nv
            pace()
            A(f"  buffer_load_dwordx4 {vq(slot(nv))}, v{vL16}, {sq(SRDB)}, s{sOFF + (nv >> 2)} offen offset:{1024*(nv&3)}{c['vfl']}")
            issued.append(f"V{nv}"); nv += 1
        qk(0)
        groups = list(range(1, 7))
        per = -(-len(groups) // D)
        for i in range(D):
            nextv()
            for G in groups[i * per:(i + 1) * per]: qk(G)
        qk(7)
        if NV:
            A(f"  v_add_u32 v34, s56, v{vL16}")
            for n in range(NV): A(f"  ds_read_b128 {vq(slot(n))}, v34 offset:{1024*n}")
        A(f"  s_mov_b32 s60, {SCALE:#x}")
        for i in range(4): self.rnd2(18 + 2 * i, 19 + 2 * i, 12 + i)
        for i in range(8): A(f"  v_mul_f32 v{18+i}, s60, v{18+i}")
        for i in range(4): self.rnd2(18 + 2 * i, 19 + 2 * i, 12 + i)
        A("  v_max3_f32 v12, v18, v19, v20\n  v_max3_f32 v13, v21, v22, v23\n  v_max3_f32 v12, v12, v24, v25\n  v_max_f32 v12, v12, v13")
        self.wave_reduce("v_max_f32", [12], full=False)
        A("  v_readlane_b32 s61, v12, 63")
        for i in range(8): A(f"  v_subrev_f32 v{26+i}, s61, v{18+i}")
        for i in range(8): A(f"  v_mul_f32 v{26+i}, s{sLOG2E}, v{26+i}")
        for i in range(8): A(f"  v_exp_f32 v{26+i}, v{26+i}")
        A("  v_add_f32 v13, v26, v27\n  v_add_f32 v14, v28, v29\n  v_add_f32 v15, v30, v31\n  v_add_f32 v16, v32, v33")
        A("  v_add_f32 v13, v13, v14\n  v_add_f32 v15, v15, v16\n  v_add_f32 v13, v13, v15")
        self.wave_reduce("v_add_f32", [13], full=False)
        A(f"  s_lshl_b32 s60, s{sWAVE}, 3\n  v_mov_b32 v14, s60")
        A("  s_mov_b32 exec_lo, 0\n  s_mov_b32 exec_hi, 0x80000000")
        A(f"  ds_write_b64 v14, v[12:13] offset:{L_STATS}\n  ds_add_u32 v{vZ}, v{vONE} offset:{F_ST}")
        self.execall()
        nextv(); nextv()
        self.lds_spin(F_ST, 8, 12)
        A(f"  v_and_b32 v14, 7, v{vLANE}\n  v_lshlrev_b32 v14, 3, v14\n  ds_read_b64 v[12:13], v14 offset:{L_STATS}\n  s_waitcnt lgkmcnt(0)")
        red8 = ["quad_perm:[1,0,3,2]", "quad_perm:[2,3,0,1]", "row_ror:4"]
        A("  v_mov_b32 v14, v12")
        for s in red8: A(f"  v_max_f32_dpp v14, v14, v14 {s} row_mask:0xf bank_mask:0xf")
        A(f"  v_sub_f32 v12, v12, v14\n  v_mul_f32 v12, s{sLOG2E}, v12\n  v_exp_f32 v12, v12")
        for i in range(8): A(f"  v_sub_f32 v{26+i}, v{18+i}, v14")
        A("  v_mul_f32 v13, v13, v12")
        for i in range(8): A(f"  v_mul_f32 v{26+i}, s{sLOG2E}, v{26+i}")
        for s in red8: A(f"  v_add_f32_dpp v13, v13, v13 {s} row_mask:0xf bank_mask:0xf")
        for i in range(8): A(f"  v_exp_f32 v{26+i}, v{26+i}")
        A("  v_rcp_f32 v15, v13\n  v_fma_f32 v16, -v13, v15, 1.0\n  v_fmac_f32 v15, v16, v15")
        if c["dump"]:
            for i in range(8):
                A(f"  s_lshl_b32 s69, s2, 3\n  s_add_u32 s69, s69, s{sWAVE}\n  s_lshl_b32 s69, s69, 3\n  s_add_u32 s69, s69, {i}")
                self.dumpv(18 + i, 1, 0x100000, 69, 256, tmp=36)
        for i in range(8): A(f"  v_mul_f32 v{26+i}, v{26+i}, v15")
        for i in range(8): A(f"  v_cvt_pk_bf16_f32 v{18+i}, v{26+i}, v{26+i}")
        self.stamp(3)
        npv = 0
        def pv():
            nonlocal npv
            n = npv; npv += 1
            Ab = 26 + 4 * (n & 1)
            bank = [0, 2, 1, 3][n & 3]
            for j in range(4):
                A(f"  v_and_b32_dpp v{Ab+j}, v{18+(n>>2)}, v{4+j} row_newbcast:{4*bank} row_mask:0xf bank_mask:0xf")
            A(f"  v_mfma_f32_16x16x32_bf16 {vq(34)}, {vq(Ab)}, {vq(slot(n))}, {'0' if n == 0 else vq(34)}")
            if n == c["hint_at"] and "HT" not in c["xskip"]:
                l = self.lab("ht")
                self.exec1()
                A(f"  ds_add_rtn_u32 v12, v{vZ}, v{vONE} offset:{F_P}\n  s_mov_b32 s5, 0\n  s_waitcnt lgkmcnt(0)\n  v_readfirstlane_b32 s60, v12")
                self.execall()
                A(f"  s_cmp_lg_u32 s60, 7\n  s_cbranch_scc1 {l}")
                A(f"  s_lshl_b32 s60, s{sB}, 12\n  s_add_u32 s60, s60, {WS_ACC + 3072}\n  s_mov_b32 s5, 1\n  s_atomic_add s5, {sp(sWS)}, s60 glc\n{l}:")
            if n == c["hint_at"] + c["hint_lag"] and "HT" not in c["xskip"]:
                l = self.lab("hf")
                A(f"  s_waitcnt lgkmcnt(0)\n  s_cmp_lg_u32 s5, 31\n  s_cbranch_scc1 {l}")
                A(f"  s_mul_i32 s60, s{sB}, {64*128}\n  s_add_u32 s60, s60, {WS_HINT}\n  v_lshl_add_u32 v12, v{vLANE}, 7, s60")
                A(f"  s_mov_b32 exec_hi, 0x7ff\n  global_store_dword v12, v11, {sp(sWS)} sc1"); self.execall()
                A(f"{l}:")
        self.ffn_addr()
        self.lds_spin(F_C, 1, 12)
        A(f"  ds_read_b32 v11, v{vZ} offset:{F_N}")
        def vstep():
            nextv()
            landed = nv - D
            k = 0
            while npv < landed and k < 3:
                pv(); k += 1
        def finish():
            while npv < 32:
                waitfor(f"V{npv}"); pv()
            A(f"  v_lshlrev_b32 v12, 5, v{vJ}\n  v_lshl_add_u32 v13, v{vG}, 4, v12\n  s_lshl_b32 s60, s{sWAVE}, 9\n  v_add_u32 v12, s60, v13")
            A("  s_mov_b32 exec_hi, 0")
            if c["oadd"]:
                for r in range(4): A(f"  ds_add_f32 v13, v{34+r} offset:{L_OP + 4*r}")
            else:
                A(f"  ds_write_b128 v12, {vq(34)} offset:{L_OP}")
            self.lds_inc(F_O)
            self.stamp(5)
        NF0 = c["NF0"]
        while nv < 32 - NF0: vstep()
        assert npv >= NV or NF0 == 0, (npv, NV)
        lf = self.lab("vffn")
        if c["abl"] is None and "T" not in c["xskip"]: A(f"  s_cmp_lg_u32 s{sFFN}, 0\n  s_cbranch_scc1 {lf}")
        st = (nv, npv, list(issued))
        while nv < 32: vstep()
        self.stamp(4)
        finish()
        A("  s_branch L_exit")
        A(f"{lf}:")
        nv, npv = st[0], st[1]; issued[:] = st[2]
        nf = 0
        while nv < 32:
            waitfor(f"V{nv - (D - 1)}")
            A(f"  buffer_load_dwordx4 {vq(slot(nv))}, v{vL16}, {sq(SRDB)}, s{sOFF + (nv >> 2)} offen offset:{1024*(nv&3)}{c['vfl']}")
            issued.append(f"V{nv}"); nv += 1
            self.ffn_load(nf); issued.append(f"F{nf}"); nf += 1
            k = 0
            while npv < nv - D + 1 and k < 3:
                pv(); k += 1
        self.stamp(4)
        finish()
        FD = c["FD"]
        if c["fmode"] == "paced":
            while nf < 24:
                if nf >= FD: waitfor(f"F{nf - FD}")
                self.ffn_load(nf); issued.append(f"F{nf}"); nf += 1
                if nf == FD: self.ffn_lds_addr()
                if nf == 8 + FD: self.transpose_x2(120, 40)
                if nf == 16 + FD: self.stamp(15); self.transpose_x2(136, 56)
            return
        while nf < FD:
            self.ffn_load(nf); issued.append(f"F{nf}"); nf += 1
        self.lds_spin(F_A, 4, 12)
        self.stamp(10)
        while nf < 16:
            self.ffn_load(nf); issued.append(f"F{nf}"); nf += 1
        self.ffn_lds_addr()
        if c["stamps"]: waitfor("F15"); self.stamp(15)
        waitfor("F7"); self.transpose_x2(120, 40)
        if c["down_late"]: self.lds_spin(F_R, 2, 12)
        while nf < 24:
            self.ffn_load(nf); issued.append(f"F{nf}"); nf += 1
        waitfor("F15"); self.transpose_x2(136, 56)

    def ffn_addr(self):
        A = self.A
        A(f"  v_cmp_gt_u32 vcc, 8, v{vJ}")
        A(f"  v_mov_b32 v12, s{sU}\n  v_mov_b32 v13, s{sU+1}\n  v_mov_b32 v14, s{sG}\n  v_mov_b32 v15, s{sG+1}")
        A(f"  v_cndmask_b32 v8, v12, v14, vcc\n  v_cndmask_b32 v9, v13, v15, vcc")
        A(f"  s_lshr_b32 s16, s{sJ}, 1\n  s_and_b32 s17, s{sJ}, 1")
        A(f"  s_lshl_b32 s60, s{sWAVE}, 6\n  s_lshl_b32 s61, s16, 5\n  s_add_u32 s60, s60, s61\n  s_lshl_b32 s61, s17, 2\n  s_add_u32 s60, s60, s61")
        A(f"  v_lshl_add_u32 v12, v{vG}, 3, s60\n  v_mul_u32_u24 v12, 2752, v12")
        A(f"  v_and_b32 v13, 7, v{vJ}\n  v_lshl_add_u32 v12, v13, 3, v12\n  s_lshl_b32 s60, s{sSL}, 6\n  v_add_u32 v12, s60, v12\n  v_mov_b32 v13, 0")
        A(f"  v_lshl_add_u64 v[8:9], v[8:9], 0, v[12:13]")
        A(f"  s_mov_b32 s10, 5504\n  s_mov_b32 s11, 0")
        A(f"  s_cmp_eq_u32 s17, 0\n  s_cselect_b32 s60, 4, -4\n  s_cmp_eq_u32 s16, 0\n  s_cselect_b32 s61, 32, -32")
        A(f"  s_sub_i32 s61, s61, s60\n  s_sub_i32 s60, s60, 2\n  s_sub_i32 s61, s61, 2")
        A(f"  s_mul_i32 s12, s60, 2752\n  s_ashr_i32 s13, s12, 31\n  s_mul_i32 s6, s61, 2752\n  s_ashr_i32 s7, s6, 31")
        A(f"  s_mov_b32 s{SRDA}, s{sDN}\n  s_mov_b32 s{SRDA+1}, s{sDN+1}\n  s_mov_b32 s{SRDA+2}, 1409024\n  s_mov_b32 s{SRDA+3}, 0x20000")
        A(f"  v_lshlrev_b32 v10, 13, v{vG}\n  v_lshl_add_u32 v10, v{vJ}, 3, v10")
        A(f"  s_lshl_b32 s18, s{sSL}, 15\n  s_lshl_b32 s19, s{sWAVE}, 7\n  s_add_u32 s18, s18, s19\n  s_add_u32 s19, s18, 4096")

    def ffn_load(self, i):
        A = self.A
        if "W" in self.c["xskip"]:
            A(f"  global_load_dword v17, v{vZ}, {sp(sC)}"); return
        if i < 16:
            A(f"  global_load_dwordx2 {vp(120+2*i)}, v[8:9], off{' offset:2752' if i & 1 else ''}{self.c['ffnfl']}")
            if i & 1 and i < 15:
                step = "s[10:11]" if (i & 3) == 1 else ("s[6:7]" if i == 7 else "s[12:13]")
                A(f"  v_lshl_add_u64 v[8:9], v[8:9], 0, {step}")
        else:
            e = i - 16
            A(f"  buffer_load_dwordx2 {vp(152+2*e)}, v10, {sq(SRDA)}, s{18 + (e >> 2)} offen offset:{1024*(e&3)}{self.c['ffnfl']}")

    def ffn_lds_addr(self):
        A = self.A
        A(f"  v_and_b32 v12, 1, v{vJ}\n  v_lshlrev_b32 v112, 10, v12\n  v_lshl_add_u32 v112, v{vG}, 4, v112\n  s_lshl_b32 s60, s{sWAVE}, 7\n  v_add_u32 v112, s60, v112")
        A(f"  s_lshl_b32 s60, s16, 6\n  s_lshl_b32 s61, s17, 3\n  s_add_u32 s60, s60, s61\n  v_add_u32 v112, s60, v112")
        A(f"  v_xor_b32 v113, 8, v112\n  v_xor_b32 v114, 64, v112\n  v_xor_b32 v115, 0x48, v112")
        A(f"  v_lshlrev_b32 v116, 6, v12\n  v_lshl_add_u32 v116, v{vG}, 4, v116")
        A(f"  v_lshlrev_b32 v117, 5, v{vJ}\n  v_lshl_add_u32 v117, v{vG}, 3, v117\n  s_lshl_b32 s60, s{sWAVE}, 9\n  v_add_u32 v117, s60, v117")
        A(f"  s_lshl_b32 s60, s{sJ}, 5\n  s_lshl_b32 s61, s{sWAVE}, 2\n  s_add_u32 s60, s60, s61\n  v_add_u32 v118, s60, v{vG}\n  v_mul_u32_u24 v118, {INB}, v118")
        A(f"  s_lshl_b32 s60, s{sSL}, 8\n  s_add_u32 s60, s60, {WS_INBOX}\n  v_lshl_add_u32 v12, v{vJ}, 4, s60\n  v_add_u32 v118, v12, v118")

    def streamer_ffn(self):
        A = self.A
        self.stamp(6)
        A("  s_barrier")
        A("L_dry_s:")
        for i in range(4): A(f"  ds_read_b64 {vp(88+2*i)}, v{112+i} offset:{L_H2}")
        A("  s_waitcnt lgkmcnt(2)")
        for cc in range(4): A(f"  v_mfma_f32_16x16x32_bf16 {vq(96+4*cc)}, {vq(88)}, {vq(40+4*cc)}, 0")
        A("  s_waitcnt lgkmcnt(0)")
        for cc in range(4): A(f"  v_mfma_f32_16x16x32_bf16 {vq(96+4*cc)}, {vq(92)}, {vq(56+4*cc)}, {vq(96+4*cc)}")
        def select():
            for g in range(1, 4):
                for r in range(2):
                    A(f"  v_mov_b32_dpp v{96+r}, v{96+4*g+r} quad_perm:[0,1,2,3] row_mask:{1<<g:#x} bank_mask:0xf")
        select()
        A(f"  ds_write_b64 v117, v[96:97] offset:{L_GUP}\n  s_waitcnt lgkmcnt(0)")
        dry = self.c["dry"]
        if dry: A("  s_cbranch_execz L_dry_s2")
        A("  s_barrier")
        A("  s_waitcnt vmcnt(0)"); self.transpose_x2(152, 72)
        A("  s_barrier")
        A("L_dry_s2:")
        A(f"  ds_read_b128 {vq(88)}, v116 offset:{L_HH}\n  s_waitcnt lgkmcnt(0)")
        for cc in range(4): A(f"  v_mfma_f32_16x16x32_bf16 {vq(96+4*cc)}, {vq(88)}, {vq(72+4*cc)}, 0")
        select()
        A(f"  v_mov_b32 v98, v11\n  v_xor_b32 v99, {TAGX:#x}, v11")
        if dry: A("  s_cbranch_execz L_exit")
        A(f"  global_store_dwordx4 v118, {vq(96)}, {sp(sWS)} sc1")
        self.stamp(7)
        A("  s_branch L_exit2")

    def mod_loads(self):
        A = self.A
        A(f"  v_and_b32 v4, 7, v{vJ}\n  v_lshrrev_b32 v5, 3, v{vJ}\n  v_lshlrev_b32 v6, 10, v4\n  v_lshl_add_u32 v6, v5, 6, v6\n  v_lshl_add_u32 v6, v{vG}, 4, v6")
        A(f"  s_lshl_b32 s60, s{sWAVE}, 7\n  v_add_u32 v6, s60, v6")
        A(f"  global_load_dwordx4 {vq(8)}, v6, {sp(sC)}")
        A(f"  v_lshlrev_b32 v7, 5, v5\n  v_lshl_add_u32 v7, v{vG}, 3, v7\n  v_mul_u32_u24 v7, 6144, v7\n  v_lshl_add_u32 v7, v4, 4, v7")
        A(f"  s_mul_i32 s60, s{sWAVE}, {64*6144}\n  s_lshl_b32 s61, s57, 7\n  s_add_u32 s60, s60, s61\n  v_add_u32 v7, s60, v7")
        for i in range(8):
            A(f"  global_load_dwordx4 {vq(136+4*i)}, v7, {sp(sWM)} nt")
            if i < 7: A(f"  v_add_u32 v7, 6144, v7")

    def mod_compute_a(self):
        A = self.A
        A(f"  s_lshl_b32 s60, s{sWAVE}, 12\n  s_add_u32 s60, s60, {L_V}\n  v_lshlrev_b32 v28, 11, v5\n  v_lshl_add_u32 v28, v4, 8, v28\n  v_and_b32 v29, 1, v{vG}\n  v_lshl_add_u32 v28, v29, 4, v28\n  v_add_u32 v28, s60, v28")
        A(f"  v_lshrrev_b32 v29, 1, v{vG}\n  v_cmp_eq_u32 s[68:69], v29, v5")
        A("  s_waitcnt vmcnt(8)")
        for i in range(4):
            r = 8 + i
            A(f"  v_lshlrev_b32 v16, 16, v{r}\n  v_and_b32 v17, 0xffff0000, v{r}")
            A(f"  v_mul_f32 v18, s{sLOG2E}, v16\n  v_mul_f32 v19, s{sLOG2E}, v17")
            A(f"  v_exp_f32 v18, -v18\n  v_exp_f32 v19, -v19")
            A(f"  v_add_f32 v18, 1.0, v18\n  v_add_f32 v19, 1.0, v19\n  v_rcp_f32 v18, v18\n  v_rcp_f32 v19, v19")
            A(f"  v_mul_f32 v16, v16, v18\n  v_mul_f32 v17, v17, v19\n  v_cvt_pk_bf16_f32 v{r}, v16, v17")

    def mod_compute_b(self):
        A = self.A
        self.transpose_block(136, 5, 6)
        for cc in range(8):
            A(f"  v_mfma_f32_16x16x32_bf16 {vq(104+4*cc)}, {vq(8)}, {vq(136+4*cc)}, 0")
        A("  s_mov_b64 exec, s[68:69]")
        for cc in range(8):
            A(f"  ds_write_b128 v28, {vq(104+4*cc)} offset:{32*cc}")
        self.lds_inc(F_MOD)

    def mod_compute_c(self):
        A = self.A
        A(f"  v_and_b32 v4, 31, v{vLANE}\n  v_lshrrev_b32 v5, 5, v{vLANE}\n  v_lshlrev_b32 v6, 6, v4\n  v_lshl_add_u32 v6, v5, 14, v6\n  s_lshl_b32 s60, s{sWAVE}, 2\n  s_add_u32 s60, s60, {L_V}\n  v_add_u32 v6, s60, v6")
        A(f"  s_mul_i32 s60, s{sWAVE}, 6144\n  s_lshl_b32 s61, s57, 7\n  s_add_u32 s60, s60, s61\n  s_add_u32 s60, s60, {WS_MOD}\n  v_lshl_add_u32 v5, v4, 2, s60")
        self.lds_spin(F_MOD, 8, 7)
        for part in range(8):
            if part: A(f"  v_add_u32 v6, 2048, v6")
            A(f"  ds_read2_b32 {vp(8+2*part)}, v6 offset0:0 offset1:8")
        l = self.lab("pollSN"); d = self.lab("gotSN")
        A(f"{l}:\n  s_cmp_lg_u32 s3, 0\n  s_cbranch_scc1 {d}")
        self.guard()
        A(f"  s_load_dword s3, {sp(sDBG)}, 0x80 glc\n  s_waitcnt lgkmcnt(0)\n  s_branch {l}\n{d}:")
        A("  s_waitcnt lgkmcnt(0)")
        self.lds_inc(F_MOD2)
        for part in range(1, 8):
            A(f"  v_add_f32 v8, v8, v{8+2*part}\n  v_add_f32 v9, v9, v{9+2*part}")
        A("  v_mov_b32 v10, v8\n  v_mov_b32 v11, v9\n  v_permlane32_swap_b32 v10, v8\n  v_permlane32_swap_b32 v11, v9\n  v_add_f32 v8, v8, v10\n  v_add_f32 v9, v9, v11")
        A(f"  v_cvt_pk_bf16_f32 v8, v8, v9\n  s_mov_b32 exec_hi, 0\n  global_store_dword v5, v8, {sp(sWS)} sc1")
        self.execall()
        A("  v_mov_b32 v9, v8")
        for st in ("quad_perm:[1,0,3,2]", "quad_perm:[2,3,0,1]", "row_ror:4", "row_ror:8"):
            A(f"  v_xor_b32_dpp v9, v9, v9 {st} row_mask:0xf bank_mask:0xf")
        A("  v_mov_b32 v10, v9\n  v_permlane16_swap_b32 v10, v9\n  v_bitop3_b32 v9, v9, v10, s3 bitop3:0x96")
        A(f"  s_lshl_b32 s60, s{sWAVE}, 8\n  s_lshl_b32 s61, s57, 2\n  s_add_u32 s60, s60, s61\n  s_add_u32 s60, s60, {WS_MARK}\n  v_mov_b32 v5, s60")
        self.exec1(); A(f"  global_store_dword v5, v9, {sp(sWS)} sc1"); self.execall()

    def check_lines(self, data, tags, tmp):
        A = self.A
        n = len(data)
        for k in range(n): A(f"  v_xor_b32 v{tmp+k}, v{data[k]}, v{data[k]+1}")
        for k in range(n): A(f"  v_bitop3_b32 v{tmp+k}, v{tmp+k}, v{data[k]+2}, v{data[k]+3} bitop3:0x96")
        for st in ("quad_perm:[1,0,3,2]", "quad_perm:[2,3,0,1]", "row_half_mirror"):
            for k in range(n): A(f"  v_xor_b32_dpp v{tmp+k}, v{tmp+k}, v{tmp+k} {st} row_mask:0xf bank_mask:0xf")
        for k in range(n): A(f"  v_bitop3_b32 v{tmp+k}, v{tmp+k}, v{tags[k]}, s44 bitop3:0x96")
        for k in range(1, n): A(f"  v_or_b32 v{tmp}, v{tmp}, v{tmp+k}")
        A(f"  v_cmp_ne_u32 vcc, 0, v{tmp}")

    def get_flag(self, tmp, off, sreg, expect=None):
        A = self.A
        l = self.lab("pollN"); d = self.lab("gotN")
        cmp = f"s_cmp_lg_u32 s{sreg}, 0" if expect is None else f"s_cmp_eq_u32 s{sreg}, {expect}"
        self.exec1()
        A(f"  global_load_dword v{tmp}, v{vZ}, {sp(sDBG)} offset:{off}")
        A(f"{l}:\n  s_waitcnt vmcnt(0)\n  v_readfirstlane_b32 s{sreg}, v{tmp}\n  {cmp}\n  s_cbranch_scc1 {d}")
        self.guard()
        A(f"  s_sleep {self.c['poll_sleep']}\n  global_load_dword v{tmp}, v{vZ}, {sp(sDBG)} offset:{off} sc1\n  s_branch {l}\n{d}:"); self.execall()
    def get_nonce(self, tmp): self.get_flag(tmp, 128, 44)

    def xor_rows(self, r, t):
        A = self.A
        A(f"  v_mov_b32 v{t}, v{r}\n  v_permlane16_swap_b32 v{t}, v{r}\n  v_xor_b32 v{r}, v{r}, v{t}")
        A(f"  v_mov_b32 v{t}, v{r}\n  v_permlane32_swap_b32 v{t}, v{r}\n  v_xor_b32 v{r}, v{r}, v{t}")

    def allreduce8(self, r, t, op="v_add_f32"):
        A = self.A
        A(f"  {op}_dpp v{r}, v{r}, v{r} row_ror:8 row_mask:0xf bank_mask:0xf")
        A(f"  v_mov_b32 v{t}, v{r}\n  v_permlane16_swap_b32 v{t}, v{r}\n  {op} v{r}, v{r}, v{t}")
        A(f"  v_mov_b32 v{t}, v{r}\n  v_permlane32_swap_b32 v{t}, v{r}\n  {op} v{r}, v{r}, v{t}")

    def wq_pattern(self):
        p = self.c["wqpat"]
        if p == 8: return 16, [8192 if i % 8 < 7 else 8192 * 25 for i in range(32)]
        if p == 32: return 18, [8192] * 32
        if p == 1: return 13, [8192 * 4] * 32
        if p == 33: return 18, [8192 * 5 if i % 8 < 7 else (1 << 32) - 8192 * 27 for i in range(32)]
        if p == 16: return 17, [8192 if i % 16 < 15 else 8192 * 49 for i in range(32)]

    def h0_issue(self, fl):
        A = self.A
        if "G" in self.c["xskip"]: return
        A(f"  global_load_dwordx4 {vq(28)}, v36, {sp(sWS)}{fl}\n  global_load_dwordx4 {vq(32)}, v36, {sp(sWS)} offset:1024{fl}")
        A(f"  global_load_dword v24, v37, {sp(sWS)}{fl}\n  global_load_dword v25, v37, {sp(sWS)} offset:32{fl}")

    def h0_finish(self):
        A = self.A; c = self.c
        l = self.lab("chkA"); d = self.lab("gotA")
        A(f"{l}:")
        self.check_lines([28, 32], [24, 25], 26)
        A(f"  s_cbranch_vccz {d}" if "G" not in c["xskip"] else f"  s_branch {d}")
        self.guard()
        A(f"  s_sleep {c['a_sleep']}")
        self.h0_issue(" sc1")
        A(f"  s_waitcnt vmcnt(0)\n  s_branch {l}\n{d}:")
        self.stamp(2); self.cstamp(14)
        self.unpack8(32, 16)
        for i in range(8): A(f"  v_add_f32 v{16+i}, 1.0, v{16+i}")
        self.rnd8(16, 24)
        for i in range(8): A(f"  v_mul_f32 v{8+i}, v{8+i}, v{16+i}")
        self.rnd8(8, 24)
        self.unpack8(28, 16)
        for i in range(8): A(f"  v_add_f32 v{8+i}, v{8+i}, v{16+i}")
        for i in range(4): A(f"  v_cvt_pk_bf16_f32 v{24+i}, v{8+2*i}, v{9+2*i}")
        A(f"  v_add_u32 v16, s47, v{vL16}\n  ds_write_b128 v16, {vq(24)} offset:{L_HBUF}")
        self.lds_inc(F_H)
        if c["dump"]:
            l = self.lab("nodh"); A(f"  s_cmp_lg_u32 s{sHW}, 0\n  s_cbranch_scc1 {l}"); self.dumpv(24, 4, 0x0, 2, 1024); A(f"{l}:")
        self.stamp(3)

    def helper(self):
        A = self.A; c = self.c
        A("L_helper:")
        self.stamp(8)
        A(f"  s_sub_u32 s{sHW}, s{sWAVE}, 8")
        l = self.lab("h3")
        A(f"  s_cmp_lg_u32 s{sHW}, 3\n  s_cbranch_scc1 {l}")
        A(f"  v_lshlrev_b32 v4, 2, v{vLANE}\n  ds_write_b32 v4, v{vZ}\n  ds_write_b32 v4, v{vZ} offset:{L_OP}\n  ds_write_b32 v4, v{vZ} offset:{L_OP+256}\n  s_waitcnt lgkmcnt(0)\n{l}:")
        A("  s_waitcnt lgkmcnt(0)")
        if c["tlb"]:
            l = self.lab("notlb")
            A(f"  s_cmp_lg_u32 s{sHW}, 2\n  s_cbranch_scc1 {l}")
            self.exec1()
            A(f"  s_lshl_b32 s60, s{sB}, 5\n  s_add_u32 s60, s60, s{sH}\n  s_lshl_b32 s60, s60, 20\n  s_add_u32 s60, s60, 0xC0000\n  v_mov_b32 v4, s60")
            A(f"  global_load_dword v40, v4, {sp(sV)} nt")
            A(f"  s_lshl_b32 s60, s2, 12\n  s_add_u32 s60, s60, {WS_QIN}\n  v_mov_b32 v5, s60\n  global_load_dword v41, v5, {sp(sWS)} nt")
            A(f"  s_lshl_b32 s60, s{sH}, 17\n  v_mov_b32 v6, s60\n  global_load_dword v42, v6, {sp(sWO)} nt")
            A(f"  s_lshl_b32 s60, s2, 2\n  s_and_b32 s60, s60, 0xfc\n  v_mov_b32 v7, s60")
            A(f"  global_load_dword v43, v7, {sp(sDBG)}")
            if c["tlb"] > 1:
                A(f"  s_lshl_b32 s60, s2, 7\n  v_mov_b32 v8, s60")
                for k, p in enumerate((sG, sU, sDN, sWS)): A(f"  global_load_dword v{44+k}, v8, {sp(p)} nt")
                A(f"  v_add_u32 v8, 0x100000, v8")
                for k, p in enumerate((sG, sU, sDN)): A(f"  global_load_dword v{48+k}, v8, {sp(p)} nt")
                A(f"  s_lshl_b32 s60, s2, 5\n  v_mov_b32 v9, s60\n  global_load_dword v52, v9, {sp(sOUT)} nt")
            self.execall()
            A(f"{l}:")
        if c["wqpf"]:
            l = self.lab("nowqpf")
            A(f"  s_cmp_lg_u32 s{sHW}, {c['wqpf']}\n  s_cbranch_scc1 {l}")
            A(f"  s_lshl_b32 s60, s{sIDX}, 17\n  s_lshl_b32 s61, s{sXCD}, 10\n  s_add_u32 s60, s60, s61\n  v_add_u32 v4, s60, v{vL16}")
            for i in range(16):
                if i >= c["wqpfD"]: A(f"  s_waitcnt vmcnt({c['wqpfD']-1})")
                A(f"  global_load_dword v35, v4, {sp(sWQ)}")
                if i < 15: A("  v_add_u32 v4, 8192, v4")
            A(f"{l}:")
        l = self.lab("nononce")
        A(f"  s_cmp_lg_u32 s2, 0\n  s_cbranch_scc1 {l}\n  s_cmp_lg_u32 s{sHW}, 1\n  s_cbranch_scc1 {l}")
        A(f"  s_memrealtime s[42:43]\n  s_waitcnt lgkmcnt(0)\n  s_or_b32 s42, s42, 1\n  v_mov_b32 v6, s42")
        self.exec1(); A(f"  global_store_dword v{vZ}, v6, {sp(sDBG)} offset:128 sc1"); self.execall()
        A(f"{l}:")
        A("  s_barrier")
        abl = c["abl"]
        if abl is not None:
            if "init" in abl: self.init_duty(11)
            l = self.lab("abl")
            A(f"  s_cmp_lg_u32 s{sHW}, 0\n  s_cbranch_scc1 {l}")
            self.lds_inc(F_Q2); self.lds_inc(F_C)
            if "h0l" in abl:
                A(f"  v_and_b32 v5, 7, v{vJ}\n  v_lshrrev_b32 v6, 3, v{vJ}\n  v_lshl_add_u32 v7, v{vG}, 1, v6\n  v_lshlrev_b32 v7, 4, v7\n  v_lshl_add_u32 v7, v5, 10, v7")
                if "nox" not in abl:
                    for i in range(8): A(f"  global_load_dwordx4 {vq(40+4*i)}, v7, {sp(sX)} offset:{128*i} nt")
                A(f"  s_mov_b32 s{SRDB}, s{sWQ}\n  s_mov_b32 s{SRDB+1}, s{sWQ+1}\n  s_mov_b32 s{SRDB+2}, 4194304\n  s_mov_b32 s{SRDB+3}, 0x20000")
                A(f"  v_lshlrev_b32 v7, 4, v{vJ}\n  v_lshl_add_u32 v7, v{vG}, 16, v7")
                A(f"  s_lshl_b32 s41, s{sB}, 19\n  s_lshl_b32 s60, s{sH}, 8\n  s_add_u32 s41, s41, s60")
                for i in range(0 if "nowq" in abl else 16):
                    A(f"  s_waitcnt vmcnt({c['ablD']})")
                    A(f"  buffer_load_dwordx4 {vq(104+4*i)}, v7, {sq(SRDB)}, s41 offen nt")
                    if i < 15: A(f"  s_add_u32 s41, s41, {8192 if i != 7 else 8192*25}")
                A("  s_waitcnt vmcnt(0)")
            if "poll" in abl:
                lp = self.lab("ablp")
                self.exec1()
                A(f"  s_mov_b32 s65, 12\n{lp}:\n  global_load_dwordx2 v[24:25], v{vZ}, {sp(sDBG)} offset:128 sc1\n  s_waitcnt vmcnt(0)\n  s_sleep {c['poll_sleep']}\n s_sub_u32 s65, s65, 1\n s_cmp_lg_u32 s65, 0\n s_cbranch_scc1 {lp}")
                self.execall()
            A(f"{l}:")
            if "wqr" in abl:
                A(f"  s_mov_b32 s{SRDA}, s{sWQ}\n  s_mov_b32 s{SRDA+1}, s{sWQ+1}\n  s_mov_b32 s{SRDA+2}, 4194304\n  s_mov_b32 s{SRDA+3}, 0x20000")
                sh, steps_ = self.wq_pattern()
                A(f"  v_lshlrev_b32 v4, 4, v{vJ}\n  v_lshl_add_u32 v4, v{vG}, {sh}, v4")
                A(f"  s_lshl_b32 s40, s{sHW}, 20\n  s_xor_b32 s60, s{sH}, {c['wqx']}\n  s_lshl_b32 s60, s60, 8\n  s_add_u32 s40, s40, s60")
                self.wload32(SRDA, steps_, c["HDO"], frac=c["HDOf"], fl=c["wqfl"])
                self.stamp(5)
            if "wqh" in abl:
                lq = self.lab("noq")
                A(f"  s_cmp_ge_u32 s{sB}, 4\n  s_cbranch_scc1 {lq}")
                A(f"  s_mov_b32 s{SRDA}, s{sWQ}\n  s_mov_b32 s{SRDA+1}, s{sWQ+1}\n  s_mov_b32 s{SRDA+2}, 4194304\n  s_mov_b32 s{SRDA+3}, 0x20000")
                A(f"  v_lshlrev_b32 v4, 4, v{vJ}\n  v_lshl_add_u32 v4, v{vG}, 17, v4")
                A(f"  s_lshl_b32 s40, s{sHW}, 19\n  s_and_b32 s60, s{sB}, 1\n  s_lshl_b32 s60, s60, 21\n  s_add_u32 s40, s40, s60\n  s_lshl_b32 s60, s{sH}, 8\n  s_add_u32 s40, s40, s60")
                for i in range(16):
                    if i >= c["HD"]: A(f"  s_waitcnt vmcnt({c['HD']-1})")
                    A(f"  buffer_load_dwordx4 {vq(104+4*i)}, v4, {sq(SRDA)}, s40 offen\n  s_add_u32 s40, s40, 8192")
                self.stamp(5)
                A(f"{lq}:")
            if "wqp" in abl:
                lq = self.lab("noq")
                A(f"  s_cmp_lt_u32 s57, 48\n  s_cbranch_scc1 {lq}")
                sh, steps_ = self.wq_pattern()
                A(f"  s_mov_b32 s{SRDA}, s{sWQ}\n  s_mov_b32 s{SRDA+1}, s{sWQ+1}\n  s_mov_b32 s{SRDA+2}, 4194304\n  s_mov_b32 s{SRDA+3}, 0x20000")
                A(f"  v_lshlrev_b32 v4, 4, v{vJ}\n  v_lshl_add_u32 v4, v{vG}, {sh}, v4")
                A(f"  s_lshl_b32 s40, s{sHW}, 20\n  s_lshl_b32 s60, s{sH}, 8\n  s_add_u32 s40, s40, s60")
                self.wload32(SRDA, steps_, c["HD"], frac=c["HDf"], fl=c["wqfl"])
                self.stamp(5)
                A(f"{lq}:")
            if "wo" in abl:
                A(f"  s_mov_b32 s{SRDA}, s{sWO}\n  s_mov_b32 s{SRDA+1}, s{sWO+1}\n  s_mov_b32 s{SRDA+2}, 4194304\n  s_mov_b32 s{SRDA+3}, 0x20000")
                A(f"  v_lshlrev_b32 v4, 4, v{vJ}\n  v_lshl_add_u32 v4, v{vG}, 13, v4")
                A(f"  s_lshl_b32 s40, s{sH}, 17\n  s_lshl_b32 s60, s{sHW}, 8\n  s_add_u32 s40, s40, s60")
                self.wload32(SRDA, [1024 if i % 8 < 7 else 1024 * 25 for i in range(32)], c["HDO"], frac=c["HDOf"])
                self.stamp(6)
            A("  s_branch L_exit")
        A(f"  s_mov_b32 s{SRDA}, s{sWQ}\n  s_mov_b32 s{SRDA+1}, s{sWQ+1}\n  s_mov_b32 s{SRDA+2}, 4194304\n  s_mov_b32 s{SRDA+3}, 0x20000")
        sh, steps = self.wq_pattern()
        A(f"  v_lshlrev_b32 v4, 4, v{vJ}\n  v_lshl_add_u32 v4, v{vG}, {sh}, v4")
        A(f"  s_lshl_b32 s40, s{sHW}, 20\n  s_lshl_b32 s60, s{sH}, 8\n  s_add_u32 s40, s40, s60")
        A(f"  s_cmp_lt_u32 s57, 48\n  s_cbranch_scc1 L_prodh")
        A(f"  s_cmp_eq_u32 s57, 64\n  s_cselect_b32 s45, 3, 0")
        A(f"  s_cmp_gt_u32 s{sHW}, s45\n  s_cbranch_scc1 L_wq123")
        A(f"  s_lshl_b32 s46, s{sHW}, 1\n  s_add_u32 s46, s46, s{sB}\n  s_lshl_b32 s47, s{sHW}, 10")
        A(f"  s_lshl_b32 s60, s46, 10\n  v_add_u32 v36, s60, v{vL16}\n  global_load_dwordx4 {vq(28)}, v36, {sp(sX)}")
        A(f"  s_mul_i32 s60, s46, 6144\n  s_add_u32 s60, s60, {WS_MOD}\n  v_add_u32 v36, s60, v{vL16}")
        A(f"  s_lshl_b32 s60, s46, 8\n  s_add_u32 s60, s60, {WS_MARK}\n  v_lshrrev_b32 v37, 3, v{vLANE}\n  v_lshl_add_u32 v37, v37, 2, s60")
        HD = c["HD"]
        def ln():
            self.unpack8(28, 8); self.layernorm(8, 16, 24)
            A(f"  s_load_dword s44, {sp(sDBG)}, 0x80")
        def gather():
            l = self.lab("pollHN"); d = self.lab("gotHN")
            A(f"  s_waitcnt lgkmcnt(0)\n{l}:\n  s_cmp_lg_u32 s44, 0\n  s_cbranch_scc1 {d}")
            self.guard()
            A(f"  s_load_dword s44, {sp(sDBG)}, 0x80 glc\n  s_waitcnt lgkmcnt(0)\n  s_branch {l}\n{d}:")
            self.stamp(1)
            self.h0_issue("")
            A(f"  v_mov_b32 v26, s44\n  ds_write_b32 v{vZ}, v26 offset:{F_N}")
        self.wload32(SRDA, steps, HD, frac=c["HDf"], hooks={HD + 3: ln, c["P0"]: gather, c["P0"] + HD: self.h0_finish}, fl=c["wqfl"])
        A("  s_branch L_q")
        A("L_wq123:")
        l = self.lab("nozero")
        A(f"  s_cmp_lg_u32 s{sHW}, 3\n  s_cbranch_scc1 {l}\n  s_cmp_lt_u32 s57, 256\n  s_cbranch_scc1 {l}\n  s_cmp_ge_u32 s57, {256+8}\n  s_cbranch_scc1 {l}")
        A("  v_mov_b32 v12, 0\n  v_mov_b32 v13, 0\n  v_mov_b32 v14, 0\n  v_mov_b32 v15, 0")
        A(f"  s_sub_u32 s61, s57, 256\n  s_lshl_b32 s60, s61, 12\n  s_add_u32 s60, s60, {WS_ACC}\n  v_add_u32 v5, s60, v{vL16}")
        for i in range(4): A(f"  global_store_dwordx4 v5, {vq(12)}, {sp(sWS)} offset:{1024*i} sc1")
        A(f"{l}:")
        def ticket():
            l = self.lab("notick"); lp = self.lab("pollZN"); d = self.lab("gotZN")
            A(f"  s_cmp_lg_u32 s{sHW}, 3\n  s_cbranch_scc1 {l}\n  s_cmp_lt_u32 s57, 256\n  s_cbranch_scc1 {l}\n  s_cmp_ge_u32 s57, {256+8}\n  s_cbranch_scc1 {l}")
            A(f"  s_mov_b32 s65, 1\n  s_atomic_add s65, {sp(sDBG)}, 0x8 glc\n  s_waitcnt lgkmcnt(0)\n  s_cmp_lg_u32 s65, 7\n  s_cbranch_scc1 {l}")
            A(f"{lp}:\n  s_load_dword s44, {sp(sDBG)}, 0x80 glc\n  s_waitcnt lgkmcnt(0)\n  s_cmp_lg_u32 s44, 0\n  s_cbranch_scc1 {d}")
            self.guard()
            A(f"  s_branch {lp}\n{d}:\n  v_mov_b32 v7, s44")
            self.exec1(); A(f"  global_store_dword v{vZ}, v7, {sp(sDBG)} offset:136 sc1"); self.execall()
            A(f"{l}:")
        self.wload32(SRDA, steps, HD, frac=c["HDf"], hooks={HD + 2: ticket}, fl=c["wqfl"])
        A("L_q:")
        self.stamp(4)
        A("  s_add_u32 s61, s45, 1")
        self.lds_spin(F_H, "s61", 7)
        p32 = c["wqpat"] == 32
        A(f"  s_lshl_b32 s60, s{sHW}, 8\n  v_lshl_add_u32 v4, v{vG}, {6 if p32 else 4}, s60\n  v_and_b32 v5, s45, v{vJ}\n  v_lshl_add_u32 v4, v5, 10, v4")
        for m in range(4): A(f"  ds_read_b128 {vq(8+4*m)}, v4 offset:{L_HBUF + (16 if p32 else 64)*m}")
        A(f"  ds_read_b32 v7, v{vZ} offset:{F_N}")
        A(f"  s_lshl_b32 s60, s{sHW}, 11\n  v_lshl_add_u32 v5, v{vJ}, 5, s60\n  v_add_u32 v5, {L_QP}, v5")
        A(f"  s_mov_b32 s{SRDA}, s{sWO}\n  s_mov_b32 s{SRDA+1}, s{sWO+1}\n  s_mov_b32 s{SRDA+2}, 4194304\n  s_mov_b32 s{SRDA+3}, 0x20000")
        A(f"  s_lshl_b32 s40, s{sH}, 17\n  s_lshl_b32 s60, s{sHW}, 8\n  s_add_u32 s40, s40, s60")
        A("  s_waitcnt lgkmcnt(0)")
        A(f"  v_readfirstlane_b32 s44, v7\n  v_lshlrev_b32 v4, 4, v{vJ}\n  v_lshl_add_u32 v4, v{vG}, 13, v4")
        res = self.gemv32()
        A("  s_mov_b64 exec, 0xffff")
        for cc in range(0, 8, 2):
            A(f"  ds_write2_b32 v5, v{res[cc]}, v{res[cc+1]} offset0:{cc} offset1:{cc+1}")
        l = self.lab("onerow")
        A(f"  s_cmp_eq_u32 s45, 0\n  s_cbranch_scc1 {l}")
        for r in range(1, 4):
            A(f"  v_add_u32 v5, 512, v5")
            for cc in range(0, 8, 2):
                A(f"  ds_write2_b32 v5, v{res[cc]+r}, v{res[cc+1]+r} offset0:{cc} offset1:{cc+1}")
        A(f"{l}:")
        self.exec1()
        A(f"  ds_add_rtn_u32 v7, v{vZ}, v{vONE} offset:{F_Q}\n  s_waitcnt lgkmcnt(0)\n  v_readfirstlane_b32 s60, v7")
        self.execall()
        l = self.lab("notlastq")
        A(f"  s_cmp_lg_u32 s60, 3\n  s_cbranch_scc1 {l}")
        A(f"  v_lshlrev_b32 v6, 3, v{vLANE}")
        for part in range(4): A(f"  ds_read_b64 {vp(8+2*part)}, v6 offset:{L_QP + 2048*part}")
        A(f"  s_lshl_b32 s60, s2, 9\n  s_add_u32 s60, s60, {WS_QIN}\n  v_add_u32 v7, s60, v6")
        A(f"  v_lshlrev_b32 v5, 2, v{vLANE}\n  s_waitcnt lgkmcnt(0)")
        A("  v_add_f32 v8, v8, v10\n  v_add_f32 v9, v9, v11\n  v_add_f32 v12, v12, v14\n  v_add_f32 v13, v13, v15\n  v_add_f32 v8, v8, v12\n  v_add_f32 v9, v9, v13")
        A(f"  v_cvt_pk_bf16_f32 v8, v8, v9\n  ds_write_b32 v5, v8 offset:{L_QB}")
        l2 = self.lab("nodon")
        A(f"  s_cmp_eq_u32 s45, 0\n  s_cbranch_scc1 {l2}")
        for r in range(1, 4):
            for part in range(4): A(f"  ds_read_b64 {vp(16+2*part)}, v6 offset:{L_QP + 2048*part + 512*r}")
            A(f"  v_add_u32 v7, {64*512}, v7\n  s_waitcnt lgkmcnt(0)")
            A("  v_add_f32 v16, v16, v18\n  v_add_f32 v17, v17, v19\n  v_add_f32 v20, v20, v22\n  v_add_f32 v21, v21, v23\n  v_add_f32 v16, v16, v20\n  v_add_f32 v17, v17, v21")
            A(f"  v_cvt_pk_bf16_f32 v{24+2*r}, v16, v17\n  v_mov_b32 v{25+2*r}, s44\n  global_store_dwordx2 v7, {vp(24+2*r)}, {sp(sWS)} sc1")
        A(f"{l2}:")
        self.lds_inc(F_Q2)
        self.dumpv(8, 1, 0x80000, 2, 256)
        A(f"{l}:")
        self.stamp(5)
        steps = [1024 if i % 8 < 7 else 1024 * 25 for i in range(32)]
        def chkB():
            l0 = self.lab("noB")
            A(f"  s_cmp_lg_u32 s{sHW}, 1\n  s_cbranch_scc1 {l0}")
            if "B" not in c["xskip"]: self.get_flag(7, 136, 45, expect="s44")
            self.lds_inc(F_C)
            A(f"{l0}:")
        def rowloads(fl):
            for i in range(4): A(f"  global_load_dwordx4 {vq(12+4*i)}, v36, {sp(sWS)} offset:{1024*i}{fl}")
            for i in range(4): A(f"  global_load_dword v{28+i}, v37, {sp(sWS)} offset:{32*i}{fl}")
        def rows_a():
            if "R" in c["xskip"]: return
            l = self.lab("norows")
            A(f"  s_cmp_ge_u32 s{sHW}, 2\n  s_cbranch_scc1 {l}\n  s_cmp_eq_u32 s{sFFN}, 0\n  s_cbranch_scc1 {l}")
            A(f"  s_lshl_b32 s41, s{sJ}, 1\n  s_add_u32 s41, s41, s{sHW}")
            A(f"  s_mul_i32 s60, s41, 6144\n  s_add_u32 s60, s60, {WS_MOD + 2048}\n  v_add_u32 v36, s60, v{vL16}")
            A(f"  s_lshl_b32 s60, s41, 8\n  s_add_u32 s60, s60, {WS_MARK + 64}\n  v_lshrrev_b32 v37, 3, v{vLANE}\n  v_lshl_add_u32 v37, v37, 2, s60")
            rowloads("")
            A(f"  s_lshl_b32 s60, s41, 10\n  v_add_u32 v7, s60, v{vL16}\n  global_load_dwordx4 {vq(8)}, v7, {sp(sX)}")
            A(f"{l}:")
        def rows_b():
            if "R" in c["xskip"]: return
            l = self.lab("norows2")
            A(f"  s_cmp_ge_u32 s{sHW}, 2\n  s_cbranch_scc1 {l}\n  s_cmp_eq_u32 s{sFFN}, 0\n  s_cbranch_scc1 {l}")
            lr = self.lab("chkR"); dr = self.lab("gotR")
            A(f"{lr}:")
            self.check_lines([12, 16, 20, 24], [28, 29, 30, 31], 32)
            A(f"  s_cbranch_vccz {dr}")
            self.guard()
            rowloads(" sc1")
            A(f"  s_waitcnt vmcnt(0)\n  s_branch {lr}\n{dr}:")
            self.unpack8(20, 28)
            for i in range(8): A(f"  v_add_f32 v{28+i}, 1.0, v{28+i}")
            for i in range(4): A(f"  v_cvt_pk_bf16_f32 v{20+i}, v{28+2*i}, v{29+2*i}")
            self.lds_spin(F_Q2, 1, 7)
            A(f"  s_mul_i32 s60, s{sHW}, 5120\n  v_add_u32 v36, s60, v{vL16}")
            for i in range(5): A(f"  ds_write_b128 v36, {vq(8+4*i)} offset:{L_ROWS + 1024*i}")
            A(f"{l}:")
        self.wload32(SRDA, steps, c["HDO"], frac=c["HDOf"], hooks={c["PB"]: chkB, c["PR"]: rows_a, c["PR"] + c["HDO"]: rows_b})
        A("  s_branch L_wo")
        A("L_prodh:")
        A(f"  s_mov_b32 s{SRDA}, s{sWO}\n  s_mov_b32 s{SRDA+1}, s{sWO+1}\n  s_mov_b32 s{SRDA+2}, 4194304\n  s_mov_b32 s{SRDA+3}, 0x20000")
        A(f"  s_lshl_b32 s40, s{sH}, 17\n  s_lshl_b32 s60, s{sHW}, 8\n  s_add_u32 s40, s40, s60")
        A(f"  v_lshlrev_b32 v4, 4, v{vJ}\n  v_lshl_add_u32 v4, v{vG}, 13, v4")
        def recvq():
            l0 = self.lab("noq"); l = self.lab("pollPN"); d = self.lab("gotPN"); lq = self.lab("pollPQ"); dq = self.lab("gotPQ")
            A(f"  s_cmp_lg_u32 s{sHW}, 0\n  s_cbranch_scc1 {l0}")
            A(f"  s_load_dword s44, {sp(sDBG)}, 0x80\n  s_waitcnt lgkmcnt(0)\n{l}:\n  s_cmp_lg_u32 s44, 0\n  s_cbranch_scc1 {d}")
            self.guard()
            A(f"  s_load_dword s44, {sp(sDBG)}, 0x80 glc\n  s_waitcnt lgkmcnt(0)\n  s_branch {l}\n{d}:")
            A(f"  v_mov_b32 v26, s44\n  ds_write_b32 v{vZ}, v26 offset:{F_N}")
            A(f"  s_lshl_b32 s60, s2, 9\n  s_add_u32 s60, s60, {WS_QIN}\n  v_lshl_add_u32 v7, v{vLANE}, 3, s60\n  s_add_u32 s61, s60, 4")
            if "PQ" in c["xskip"]: A(f"  s_branch {dq}")
            A(f"{lq}:\n  s_load_dword s60, {sp(sWS)}, s61 glc\n  s_waitcnt lgkmcnt(0)\n  s_cmp_eq_u32 s60, s44\n  s_cbranch_scc0 {lq}_r")
            A(f"  global_load_dwordx2 v[8:9], v7, {sp(sWS)} sc1\n  s_waitcnt vmcnt(0)\n  v_cmp_ne_u32 vcc, s44, v9\n  s_cbranch_vccz {dq}")
            A(f"{lq}_r:")
            self.guard()
            A(f"  s_sleep {c['q_sleep']}\n  s_branch {lq}\n{dq}:")
            A(f"  v_lshlrev_b32 v7, 2, v{vLANE}\n  ds_write_b32 v7, v8 offset:{L_QB}")
            self.lds_inc(F_Q2)
            self.stamp(5)
            self.dumpv(8, 1, 0x80000, 2, 256)
            self.get_flag(7, 136, 45, expect="s44")
            self.lds_inc(F_C)
            A(f"{l0}:")
        self.wload32(SRDA, steps, c["HDP"], frac=c["HDPf"], hooks={c["PQ"]: recvq})
        self.lds_spin(F_Q2, 1, 7, sleep=4)
        A(f"  ds_read_b32 v7, v{vZ} offset:{F_N}\n  s_waitcnt lgkmcnt(0)\n  v_readfirstlane_b32 s44, v7")
        A("L_wo:")
        A("L_wodone:")
        if c["hprio"]: A(f"  s_setprio {c['hprio']}")
        if c["pref2"] and "T" not in c["xskip"]:
            self.prefetch(wait=True)
        self.lds_spin(F_C, 1, 7, sleep=4)
        A(f"  v_lshlrev_b32 v28, {5 if c['oadd'] else 3}, v{vG if c['oadd'] else vLANE}")
        A(f"  s_lshl_b32 s60, s{sHW}, 8\n  v_lshl_add_u32 v29, v{vLANE}, 2, s60\n  v_lshl_add_u32 v30, v{vG}, 4, s60")
        A(f"  v_lshrrev_b32 v31, 2, v{vLANE}\n  v_and_b32 v32, 3, v{vLANE}\n  v_lshl_add_u32 v31, v32, 4, v31\n  v_lshlrev_b32 v36, 2, v31")
        A(f"  s_lshl_b32 s61, s{sB}, 12\n  s_add_u32 s61, s61, {WS_ACC}\n  v_add_u32 v32, s61, v29")
        A(f"  v_mov_b32 v33, 1.0\n  v_mov_b32 v34, 1.0\n  v_mov_b32 v35, 1.0\n  v_mov_b32_dpp v35, v{vZ} quad_perm:[0,1,2,3] row_mask:0x4 bank_mask:0xf")
        self.stamp(6)
        if "T" in c["xskip"]: A("  s_branch L_exit")
        if c["dryo"]:
            l = self.lab("nodryo")
            A(f"  s_cmp_lg_u32 s{sHW}, 3\n  s_cbranch_scc1 {l}\n  s_mov_b64 exec, 0\n  s_branch L_dry_o\nL_dry_oend:\n  s_mov_b64 exec, -1\n{l}:")
        self.lds_spin(F_O, 8, 7, sleep=c['o_sleep'])
        self.stamp(9)
        A("L_dry_o:")
        if c["oadd"]:
            rd = lambda q, off: A(f"  ds_read_b128 {vq(q)}, v28 offset:{L_OP + off}")
            rd(12, 0); rd(16, 16); rd(20, 128); rd(24, 144); rd(4, 256)
            A(f"  s_waitcnt lgkmcnt(3)")
            for i in range(4): A(f"  v_cvt_pk_bf16_f32 v{8+i}, v{12+2*i}, v{13+2*i}")
            A(f"  s_waitcnt lgkmcnt(1)")
            for i in range(4): A(f"  v_cvt_pk_bf16_f32 v{12+i}, v{20+2*i}, v{21+2*i}")
            rd(16, 272); rd(20, 384); rd(24, 400)
            self.stamp(10)
            res = [28] + [40 + 4 * k for k in range(7)]
            for m, Am in enumerate((8, 12, 4, 16)):
                for cc in range(8):
                    A(f"  v_mfma_f32_16x16x32_bf16 {vq(res[cc])}, {vq(Am)}, {vq(40+32*m+4*cc)}, {'0' if m == 0 else vq(res[cc])}")
                    if m == 0 and cc == 5:
                        A(f"  s_waitcnt lgkmcnt(0)")
                        A("  v_cvt_pk_bf16_f32 v4, v4, v5\n  v_cvt_pk_bf16_f32 v5, v6, v7\n  v_cvt_pk_bf16_f32 v6, v16, v17\n  v_cvt_pk_bf16_f32 v7, v18, v19")
                    if m == 1 and cc == 1:
                        for i in range(4): A(f"  v_cvt_pk_bf16_f32 v{16+i}, v{20+2*i}, v{21+2*i}")
        else:
            for part in range(8): A(f"  ds_read_b64 {vp(8+2*part)}, v28 offset:{L_OP + 512*part}")
            A("  s_waitcnt lgkmcnt(4)")
            A("  v_add_f32 v8, v8, v10\n  v_add_f32 v9, v9, v11\n  v_add_f32 v12, v12, v14\n  v_add_f32 v13, v13, v15\n  v_add_f32 v8, v8, v12\n  v_add_f32 v9, v9, v13")
            A("  s_waitcnt lgkmcnt(0)")
            A("  v_add_f32 v16, v16, v18\n  v_add_f32 v17, v17, v19\n  v_add_f32 v20, v20, v22\n  v_add_f32 v21, v21, v23\n  v_add_f32 v16, v16, v20\n  v_add_f32 v17, v17, v21")
            A(f"  v_add_f32 v8, v8, v16\n  v_add_f32 v9, v9, v17\n  v_cvt_pk_bf16_f32 v7, v8, v9\n  ds_write_b32 v29, v7 offset:{L_OB}")
            for m in range(4): A(f"  ds_read_b128 {vq(8+4*m)}, v30 offset:{L_OB + 64*m}")
            A("  s_waitcnt lgkmcnt(0)")
            self.stamp(10)
            if c["dryo"]: A("  s_cbranch_execz L_dry_o2")
            res = self.gemv32()
            A("L_dry_o2:")
        self.stamp(11)
        for g in range(3):
            for k in range(3):
                if 3 * k + g < 8:
                    A(f"  v_mov_b32_dpp v{33+k}, v{res[3*k+g]} quad_perm:[0,1,2,3] row_mask:{1<<g:#x} bank_mask:0xf")
        for k in range(3): A(f"  ds_bpermute_b32 v{33+k}, v36, v{33+k}")
        if c["dryo"]: A("  s_cbranch_execz L_dry_oend")
        for k in range(3):
            A(f"  s_waitcnt lgkmcnt({2-k})\n  global_atomic_add_f32 v32, v{33+k}, {sp(sWS)} offset:{1024*k}")
        if c["gate"]:
            l = self.lab("g01")
            A(f"  s_cmp_lt_u32 s{sHW}, 2\n  s_cbranch_scc1 {l}")
            self.lds_inc(F_A)
            A(f"{l}:")
        else:
            self.lds_inc(F_A)
        self.stamp(7)
        if c["dump"] and not c["oadd"]:
            l = self.lab("nodumpo")
            A(f"  s_cmp_lg_u32 s{sHW}, 3\n  s_cbranch_scc1 {l}")
            self.dumpv(7, 1, 0x90000, 2, 256)
            A(f"{l}:")
        if c["dry"]:
            l = self.lab("nodry"); l2 = self.lab("dryf")
            A(f"  s_cmp_lg_u32 s{sHW}, 2\n  s_cbranch_scc1 {l}\n  s_cmp_lg_u32 s{sFFN}, 0\n  s_cbranch_scc1 {l2}\n  s_cmp_ge_u32 s57, 100\n  s_cbranch_scc1 L_exit")
            A(f"  s_mov_b64 exec, 0\n  s_branch L_dry_r\n{l2}:\n  s_mov_b64 exec, 0\n  s_branch L_dry_l\n{l}:")
        A(f"  s_cmp_ge_u32 s{sHW}, 2\n  s_cbranch_scc1 L_exit\n  s_cmp_lt_u32 s57, 100\n  s_cbranch_scc1 L_recv\n  s_cmp_eq_u32 s{sFFN}, 0\n  s_cbranch_scc1 L_exit")
        A(f"  s_lshl_b32 s45, s{sJ}, 1\n  s_add_u32 s45, s45, s{sHW}\n  s_lshl_b32 s45, s45, 6\n  s_add_u32 s45, s45, s{sSL}\n  s_lshl_b32 s45, s45, 7\n  s_add_u32 s45, s45, {WS_HINT}")
        A(f"  s_load_dword s61, {sp(sWS)}, s45 glc")
        A(f"  s_mul_i32 s60, s{sHW}, 5120\n  v_add_u32 v4, s60, v{vL16}")
        for i in range(4): A(f"  ds_read_b128 {vq(72+4*i)}, v4 offset:{L_ROWS + 1024*i}")
        A(f"  s_lshl_b32 s41, s{sJ}, 1\n  s_add_u32 s41, s41, s{sHW}\n  s_lshl_b32 s41, s41, 12\n  s_add_u32 s41, s41, {WS_ACC}\n  v_add_u32 v5, s41, v{vL16}\n  v_mov_b32 v6, s41")
        A(f"  s_lshl_b32 s60, s{sHW}, 10\n  v_add_u32 v4, s60, v{vL16}")
        A("  s_waitcnt lgkmcnt(0)")
        self.unpack8(72, 88); self.unpack8(76, 96); self.unpack8(80, 104); self.unpack8(84, 112)
        lp = self.lab("pollH"); ld = self.lab("gotH")
        if c["gate"]:
            lg = self.lab("late")
            A(f"  s_cmp_eq_u32 s61, s44\n  s_cbranch_scc1 {lg}")
            self.lds_inc(F_A)
        A(f"{lp}:\n  s_load_dword s60, {sp(sWS)}, s45 glc\n  s_waitcnt lgkmcnt(0)\n  s_cmp_eq_u32 s60, s44\n  s_cbranch_scc1 {ld}")
        self.guard()
        if c["hint_sleep"]: A(f"  s_sleep {c['hint_sleep']}")
        A(f"  s_branch {lp}\n{ld}:")
        if c["read_delay"]: A(f"  s_sleep {c['read_delay']}")
        if c["gate"]:
            for k in range(3): A(f"  global_load_dwordx4 {vq(120+4*k)}, v5, {sp(sWS)} offset:{1024*k} sc1")
            lj = self.lab("gj")
            A(f"  s_branch {lj}\n{lg}:")
            for k in range(3): A(f"  global_load_dwordx4 {vq(120+4*k)}, v5, {sp(sWS)} offset:{1024*k} sc1")
            self.lds_inc(F_A)
            A(f"{lj}:")
        self.stamp(1)
        self.cstamp(13)
        lp = self.lab("pollF"); ld = self.lab("gotF")
        if not c["gate"]:
            for k in range(3): A(f"  global_load_dwordx4 {vq(120+4*k)}, v5, {sp(sWS)} offset:{1024*k} sc1")
        self.lds_inc(F_R)
        A(f"{lp}:")
        A("  s_waitcnt vmcnt(0)\n  v_min3_f32 v7, v123, v127, v131\n  v_cmp_neq_f32 vcc, 0x42000000, v7")
        A(f"  s_cbranch_vccz {ld}")
        self.guard()
        if c["full_sleep"]: A(f"  s_sleep {c['full_sleep']}")
        for k in range(3): A(f"  global_load_dwordx4 {vq(120+4*k)}, v5, {sp(sWS)} offset:{1024*k} sc1")
        A(f"  s_branch {lp}\n{ld}:")
        self.stamp(2)
        self.cstamp(15)
        A("L_dry_l:")
        src = [120, 121, 122, 124, 125, 126, 128, 129]
        for i in range(4): A(f"  v_cvt_pk_bf16_f32 v{16+i}, v{src[2*i]}, v{src[2*i+1]}")
        self.unpack8(16, 8)
        self.pk8("mul", 8, 96, 8)
        self.rnd8(8, 16)
        self.pk8("add", 8, 88, 8)
        for i in range(4): A(f"  v_cvt_pk_bf16_f32 v{28+i}, v{8+2*i}, v{9+2*i}")
        self.unpack8(28, 8)
        self.layernorm(8, 16, 24)
        self.pk8("mul", 8, 8, 112)
        self.rnd8(8, 16)
        self.pk8("add", 8, 8, 104)
        for i in range(4): A(f"  v_cvt_pk_bf16_f32 v{24+i}, v{8+2*i}, v{9+2*i}")
        A(f"  ds_write_b128 v4, {vq(24)} offset:{L_H2}\n  ds_write_b128 v4, {vq(28)} offset:{L_X1}\n  s_waitcnt lgkmcnt(0)")
        if c["dry"]: A("  s_cbranch_execz L_dry_red")
        self.stamp(3)
        A("  s_barrier")
        if c["dump"]:
            A(f"  s_lshl_b32 s69, s2, 1\n  s_add_u32 s69, s69, s{sHW}")
            self.dumpv(24, 4, 0x600000, 69, 1024)
        A(f"  s_cmp_eq_u32 s{sHW}, 0\n  s_cbranch_scc1 L_reducer")
        A(f"  s_cmp_ge_u32 s{sSL}, 32\n  s_cbranch_scc1 {'L_h1bar' if c['stamps'] else 'L_exit'}")
        A(f"  s_lshr_b32 s60, s{sSL}, 2\n  s_lshl_b32 s60, s60, 7\n  s_and_b32 s61, s{sSL}, 3\n  s_lshl_b32 s61, s61, 1\n  s_add_u32 s60, s60, s61\n  v_lshl_add_u32 v4, v{vJ}, 3, s60")
        A(f"  ds_read_u16 v8, v4 offset:{L_X1}\n  ds_read_u16 v9, v4 offset:{L_ROWS + 4096}\n  ds_read_u16 v12, v4 offset:{L_X1 + 1024}\n  ds_read_u16 v13, v4 offset:{L_ROWS + 4096 + 5120}")
        A(f"  s_lshl_b32 s60, s{sJ}, 5\n  s_add_u32 s60, s60, s{sSL}\n  s_mul_i32 s60, s60, {INB}\n  s_add_u32 s60, s60, {WS_INBOX + 43*256}\n  v_lshl_add_u32 v5, v{vJ}, 4, s60")
        A(f"  s_xor_b32 s45, s44, {TAGX:#x}\n  v_mov_b32 v10, s44\n  v_mov_b32 v11, s45\n  s_mov_b64 exec, 0xffff\n  s_waitcnt lgkmcnt(0)\n  v_lshl_or_b32 v8, v12, 16, v8\n  v_lshl_or_b32 v9, v13, 16, v9")
        A(f"  global_store_dwordx4 v5, {vq(8)}, {sp(sWS)} sc1")
        A("L_h1bar:\n  s_barrier\n  s_barrier\n  s_branch L_exit2")
        A("L_recv:")
        A(f"  s_lshl_b32 s41, s{sB}, 3\n  s_add_u32 s41, s41, s{sXCD}\n  s_lshl_b32 s41, s41, 1\n  s_add_u32 s41, s41, s{sHW}")
        A(f"  s_mul_i32 s46, s41, {INB}\n  s_add_u32 s46, s46, {WS_INBOX}\n  s_add_u32 s47, s46, {43*256 + 8}\n  s_add_u32 s60, s46, 4096\n  v_add_u32 v5, s60, v{vL16}\n  v_add_u32 v7, 4096, v5")
        A(f"  s_lshr_b32 s60, s41, 5\n  s_lshl_b32 s60, s60, 11\n  s_bfe_u32 s61, s41, 0x30002\n  s_lshl_b32 s61, s61, 7\n  s_add_u32 s60, s60, s61\n  s_and_b32 s61, s41, 3\n  s_lshl_b32 s61, s61, 1\n  s_add_u32 s60, s60, s61")
        A(f"  v_and_b32 v4, 1, v{vG}\n  v_lshl_add_u32 v6, v{vJ}, 3, s60\n  v_lshl_add_u32 v6, v4, 10, v6\n  v_lshlrev_b32 v4, 4, v4\n  v_sub_u32 v4, 16, v4")
        A(f"  s_xor_b32 s45, s44, {TAGX:#x}")
        lp = self.lab("pollX"); ld = self.lab("gotX")
        A(f"{lp}:\n  s_load_dword s60, {sp(sWS)}, s47 glc\n  s_waitcnt lgkmcnt(0)\n  s_cmp_eq_u32 s60, s44\n  s_cbranch_scc1 {ld}")
        self.guard()
        A(f"  s_sleep {c['rx_sleep']}\n  s_branch {lp}\n{ld}:")
        self.stamp(1)
        if c["rx_delay"]: A(f"  s_sleep {c['rx_delay']}")
        lp = self.lab("pollI"); ld = self.lab("gotI")
        A(f"{lp}:")
        for i in range(11): A(f"  global_load_dwordx4 {vq(44+4*i)}, v{5 if i < 8 else 7}, {sp(sWS)} offset:{1024*i - (4096 if i < 8 else 8192)} sc1")
        A("L_dry_r:")
        for i in range(11):
            q = 44 + 4 * i
            A(f"  s_waitcnt vmcnt({10-i})")
            if i == 0:
                A(f"  v_xor_b32 v10, s44, v{q+2}\n  v_xor_b32 v11, s45, v{q+3}\n  v_mov_b32 v8, v{q}\n  v_mov_b32 v9, v{q+1}")
            else:
                A(f"  v_bitop3_b32 v10, v10, v{q+2}, s44 bitop3:0xf6\n  v_bitop3_b32 v11, v11, v{q+3}, s45 bitop3:0xf6")
                if i < 10: A(f"  v_add_f32 v8, v8, v{q}\n  v_add_f32 v9, v9, v{q+1}")
                else: A(f"  v_add_f32_dpp v8, v{q}, v8 quad_perm:[0,1,2,3] row_mask:0x7 bank_mask:0xf\n  v_add_f32_dpp v9, v{q+1}, v9 quad_perm:[0,1,2,3] row_mask:0x7 bank_mask:0xf")
        A(f"  v_or_b32 v10, v10, v11\n  v_cmp_ne_u32 vcc, 0, v10\n  s_cbranch_vccz {ld}")
        self.guard()
        A(f"  s_branch {lp}\n{ld}:")
        self.stamp(4); self.cstamp(15)
        A("  v_mov_b32 v12, v84\n  v_mov_b32 v13, v85\n  v_permlane16_swap_b32 v8, v9\n  v_permlane32_swap_b32 v12, v84\n  v_permlane32_swap_b32 v13, v85")
        A("  v_add_f32 v8, v8, v9\n  v_mov_b32 v12, v84\n  v_mov_b32 v13, v85\n  v_mov_b32 v9, v8")
        A("  v_permlane16_swap_b32 v12, v84\n  v_permlane16_swap_b32 v13, v85\n  v_permlane32_swap_b32 v9, v8")
        A("  v_lshlrev_b32 v84, v4, v84\n  v_lshlrev_b32 v85, v4, v85\n  v_add_f32 v8, v8, v9\n  v_and_b32 v84, 0xffff0000, v84\n  v_and_b32 v85, 0xffff0000, v85")
        self.rnd1(8, 9)
        A("  v_mul_f32 v8, v85, v8"); self.rnd1(8, 9)
        A("  v_add_f32 v8, v84, v8\n  v_cvt_pk_bf16_f32 v8, v8, v8")
        if c["dry"]: A("  s_cbranch_execz L_exit")
        A("  s_mov_b32 exec_hi, 0")
        A(f"  global_store_short v6, v8, {sp(sOUT)}{c['outfl']}")
        self.execall()
        self.stamp(5)
        A("  s_branch L_exit")
        A("L_reducer:")
        A(f"  v_lshlrev_b32 v4, 2, v{vLANE}\n  v_add_u32 v4, {L_GUP}, v4")
        A(f"  v_and_b32 v5, 1, v{vLANE}\n  v_lshlrev_b32 v5, 6, v5\n  v_and_b32 v6, 62, v{vLANE}\n  v_add_u32 v5, v5, v6")
        A("  s_barrier")
        A("L_dry_red:")
        for w in range(8): A(f"  ds_read2st64_b32 {vp(8+2*w)}, v4 offset0:{2*w} offset1:{2*w+1}")
        A("  s_waitcnt lgkmcnt(4)")
        A("  v_add_f32 v8, v8, v10\n  v_add_f32 v9, v9, v11\n  v_add_f32 v12, v12, v14\n  v_add_f32 v13, v13, v15\n  v_add_f32 v8, v8, v12\n  v_add_f32 v9, v9, v13")
        A("  s_waitcnt lgkmcnt(0)")
        A("  v_add_f32 v16, v16, v18\n  v_add_f32 v17, v17, v19\n  v_add_f32 v20, v20, v22\n  v_add_f32 v21, v21, v23\n  v_add_f32 v16, v16, v20\n  v_add_f32 v17, v17, v21")
        A("  v_add_f32 v8, v8, v16\n  v_add_f32 v9, v9, v17")
        self.rnd2(8, 9, 10)
        A(f"  v_mul_f32 v8, s{sLOG2E}, v8\n  v_exp_f32 v8, -v8\n  v_add_f32 v8, 1.0, v8\n  v_rcp_f32 v8, v8")
        self.rnd1(8, 10)
        A(f"  v_mul_f32 v8, v8, v9\n  v_cvt_pk_bf16_f32 v8, v8, v8\n  ds_write_b16 v5, v8 offset:{L_HH}\n  s_waitcnt lgkmcnt(0)")
        if c["dry"]: A("  s_cbranch_execz L_dry_s")
        A("  s_barrier")
        self.stamp(4)
        self.dumpv(8, 1, 0xE0000, 2, 256)
        A("  s_branch L_exit2")

    def build(self):
        A = self.A; c = self.c
        A(f"{KNAME}:")
        if c["stamps"]:
            for k in range(1, 16): A(f"  s_mov_b64 s[{70+2*k}:{71+2*k}], 0")
        self.stamp(0)
        A("  s_cmp_ge_u32 s2, 256\n  s_cbranch_scc1 L_end")
        A("  s_load_dwordx16 s[4:19], s[0:1], 0\n  s_load_dwordx8 s[20:27], s[0:1], 64\n  s_load_dwordx4 s[28:31], s[0:1], 96")
        A(f"  v_lshrrev_b32 v2, 6, v0\n  v_and_b32 v0, 63, v0\n  v_readfirstlane_b32 s{sWAVE}, v2")
        A(f"  v_lshlrev_b32 v{vL16}, 4, v0")
        A(f"  s_and_b32 s{sXCD}, s2, 7\n  s_lshr_b32 s{sIDX}, s2, 3\n  s_lshr_b32 s{sB}, s{sIDX}, 2\n  s_and_b32 s{sJ}, s{sIDX}, 3")
        if c["hmap"] == 0: A(f"  s_lshl_b32 s{sH}, s{sXCD}, 2\n  s_add_u32 s{sH}, s{sH}, s{sJ}")
        elif c["hmap"] == 1: A(f"  s_lshl_b32 s{sH}, s{sJ}, 3\n  s_add_u32 s{sH}, s{sH}, s{sXCD}")
        elif c["hmap"] == 2: A(f"  s_lshr_b32 s{sH}, s{sXCD}, 1\n  s_lshl_b32 s{sH}, s{sH}, 3\n  s_and_b32 s60, s{sXCD}, 1\n  s_add_u32 s{sH}, s{sH}, s60\n  s_lshl_b32 s60, s{sJ}, 1\n  s_add_u32 s{sH}, s{sH}, s60")
        elif c["hmap"] == 3: A(f"  s_lshl_b32 s{sH}, s{sXCD}, 2\n  s_add_u32 s60, s{sJ}, 1\n  s_and_b32 s60, s60, 3\n  s_add_u32 s{sH}, s{sH}, s60")
        if c["fast0"]:
            l = self.lab("nofast")
            A(f"  s_cmp_ge_u32 s{sWAVE}, 8\n  s_cbranch_scc1 {l}")
            A(f"  s_lshl_b32 s56, s{sB}, 5\n  s_add_u32 s56, s56, s{sH}\n  s_lshl_b32 s56, s56, 20\n  s_add_u32 s56, s56, 0xC0000\n  s_lshl_b32 s{sOFF}, s{sWAVE}, {10 + c['gran'].bit_length() - 1}")
            A(f"  s_mov_b32 s{SRDA+2}, 0x40000\n  s_mov_b32 s{SRDA+3}, 0x20000\n  s_waitcnt lgkmcnt(0)\n  s_add_u32 s{SRDA}, s{sK}, s56\n  s_addc_u32 s{SRDA+1}, s{sK+1}, 0")
            for n in range(2): A(f"  buffer_load_dwordx4 {vq(40+4*n)}, v{vL16}, {sq(SRDA)}, s{sOFF} offen offset:{1024*n}{c['kfl']}")
            self.stamp(8)
            A(f"{l}:")
        if c["pref"]: self.prefetch()
        A(f"  v_mov_b32 v36, 0\n  v_mov_b32 v37, 0\n  v_lshrrev_b32 v{vG}, 4, v0\n  v_and_b32 v{vJ}, 15, v0\n  v_mov_b32 v{vZ}, 0\n  v_mov_b32 v{vONE}, 1")
        A(f"  s_mul_i32 s65, s{sB}, 3\n  s_add_u32 s65, s65, s{sJ}\n  s_lshr_b32 s60, s{sJ}, 1\n  s_sub_u32 s65, s65, s60\n  s_lshr_b32 s61, s65, 2")
        A(f"  s_lshr_b32 s60, s{sXCD}, 1\n  s_mul_i32 s{sSL}, s{sXCD}, 5\n  s_add_u32 s{sSL}, s{sSL}, s60\n  s_add_u32 s{sSL}, s{sSL}, s61\n  s_sub_u32 s{sSL}, s{sSL}, 1")
        A(f"  s_and_b32 s60, s{sXCD}, 1\n  s_add_u32 s60, s60, 5\n  s_cmp_lt_u32 s61, s60\n  s_cselect_b32 s{sFFN}, 1, 0\n  s_cmp_lt_u32 s{sSL}, 43\n  s_cselect_b32 s{sFFN}, s{sFFN}, 0")
        A(f"  s_add_u32 s60, s{sXCD}, 256\n  s_cmp_eq_u32 s{sIDX}, 28\n  s_cselect_b32 s57, s60, 100")
        A(f"  s_sub_u32 s60, s{sB}, {c['prodb']}\n  s_lshl_b32 s60, s60, 3\n  s_add_u32 s60, s60, s{sXCD}\n  s_cmp_lt_u32 s{sB}, {c['prodb']}\n  s_cselect_b32 s60, 64, s60")
        A(f"  s_cmp_eq_u32 s{sJ}, 1\n  s_cselect_b32 s57, s60, s57\n  s_cselect_b32 s{sFFN}, 0, s{sFFN}\n  s_and_b32 s{sJ}, s65, 3")
        if "M" in c["xskip"]: A("  s_cmp_lt_u32 s57, 48\n  s_cselect_b32 s57, 100, s57")
        if "F" in c["xskip"]: A("  s_cmp_ge_u32 s57, 256\n  s_cselect_b32 s57, 100, s57")
        A(f"  s_mov_b32 s{sGUARD}, 0\n  s_mov_b32 s{sPLO}, 0x05040100\n  s_mov_b32 s{sPHI}, 0x07060302\n  s_mov_b32 s{sLOG2E}, {LOG2E:#x}")
        A(f"  s_cmp_ge_u32 s{sWAVE}, 8\n  s_cbranch_scc1 L_helper")
        if c["sprio"]:
            l = self.lab("sp")
            A(f"  s_cmp_lt_u32 s{sWAVE}, 4\n  s_cbranch_scc1 {l}\n  s_setprio {c['sprio']}\n{l}:")
        A(f"  s_lshl_b32 s60, s{sB}, 5\n  s_add_u32 s60, s60, s{sH}\n  s_lshl_b32 s60, s60, 20\n  s_add_u32 s60, s60, 0xC0000")
        A(f"  s_lshl_b32 s{sOFF}, s{sWAVE}, {10 + c['gran'].bit_length() - 1}\n  s_mul_i32 s56, s{sWAVE}, {c['NV']*1024}\n  s_add_u32 s56, s56, {L_V}")
        gr = c["gran"] // 4
        for G in range(1, 8): A(f"  s_add_u32 s{sOFF+G}, s{sOFF}, {(G // gr) * 32768 * gr + (G % gr) * 4096}")
        A(f"  s_mov_b32 s{SRDA+2}, 0x40000\n  s_mov_b32 s{SRDA+3}, 0x20000\n  s_mov_b32 s{SRDB+2}, 0x40000\n  s_mov_b32 s{SRDB+3}, 0x20000")
        A("  s_waitcnt lgkmcnt(0)")
        D = c["D"]
        d2 = c["depth2"] or c["depth"]
        def mask(f1, f2):
            m = 0; acc = 0.5
            for n in range(64):
                acc += f1 if n < c["dsw"] else f2
                if acc >= 1.0 - 1e-9:
                    acc -= 1.0; m |= 1 << n
            return m
        m1 = [mask(min(1.0, D - a), min(1.0, D - b)) for a, b in zip(c["depth"], d2)]
        m2 = [mask(max(0.0, D - 1 - a), max(0.0, D - 1 - b)) & x for a, b, x in zip(c["depth"], d2, m1)]
        for reg, ms in ((58, m1), (14, m2)):
            for half in range(2):
                w = [(m >> (32 * half)) & 0xffffffff for m in ms]
                A(f"  s_bitcmp1_b32 s{sXCD}, 0\n  s_mov_b32 s{reg+half}, {w[0]:#x}\n  s_cselect_b32 s{reg+half}, {w[1]:#x}, s{reg+half}")
                A(f"  s_cmp_lt_u32 s57, 48\n  s_cselect_b32 s{reg+half}, {w[2]:#x}, s{reg+half}\n  s_cmp_eq_u32 s57, 64\n  s_cselect_b32 s{reg+half}, {w[3]:#x}, s{reg+half}")
        A("  s_waitcnt lgkmcnt(0)")
        A(f"  s_add_u32 s{SRDA}, s{sK}, s60\n  s_addc_u32 s{SRDA+1}, s{sK+1}, 0\n  s_add_u32 s{SRDB}, s{sV}, s60\n  s_addc_u32 s{SRDB+1}, s{sV+1}, 0")
        if c["Dodd"]:
            A(f"  s_bitcmp1_b32 s{sXCD}, 0\n  s_cbranch_scc1 L_sodd")
        self.streamer(c["D"], "e")
        if c["Dodd"]:
            A("L_sodd:")
            self.streamer(c["Dodd"], "o")
        self.streamer_ffn()
        self.helper()
        if c["sub"]:
            A("L_gemv:"); self.gemv32(body=True); A("  s_setpc_b64 s[42:43]")
        A("L_exit2:")
        if c["stamps"]: A("  s_sleep 100")
        A("L_exit:")
        if c["stamps"] and c["diag"]:
            A(f"  s_sleep 127\n  s_sleep 127\n  s_load_dword s44, {sp(sDBG)}, 0x80\n  s_waitcnt lgkmcnt(0)\n  s_cmp_ge_u32 s{sWAVE}, 8\n  s_cbranch_scc1 L_diagh\n  s_cmp_lg_u32 s{sWAVE}, 7\n  s_cbranch_scc1 L_end")
            def rec(k, slot):
                l = self.lab("dg")
                A(f"  s_cmp_eq_u32 s{70+2*k}, 0\n  s_cbranch_scc1 {l}\n  s_sub_u32 s60, s{70+2*k}, s44\n  s_add_u32 s60, s60, 1000\n  s_atomic_umax s60, {sp(sDBG)}, {4*slot:#x}\n{l}:")
            for k, slot in ((0, 4), (11, 5), (1, 6), (3, 7), (5, 8), (7, 9)): rec(k, slot)
            A("  s_endpgm\nL_diagh:")
            A(f"  s_cmp_lg_u32 s{sWAVE}, 8\n  s_cbranch_scc1 L_end")
            for k, slot in ((6, 10), (7, 11), (2, 12), (3, 13), (4, 14), (5, 15)): rec(k, slot)
        elif c["stamps"]:
            A("  s_mov_b64 exec, 1\n  s_waitcnt lgkmcnt(0)")
            A(f"  s_mul_i32 s60, s2, 12\n  s_add_u32 s60, s60, s{sWAVE}\n  s_lshl_b32 s60, s60, 7\n  s_add_u32 s60, s60, {WS_STAMP}\n  v_mov_b32 v4, s60")
            for k in range(16):
                A(f"  v_mov_b32 v6, s{70+2*k}\n  v_mov_b32 v7, s{71+2*k}\n  global_store_dwordx2 v4, v[6:7], {sp(sWS)} offset:{8*k}")
        A("L_end:\n  s_endpgm")
        body = fix_hazards(self.L)
        nk = c["prefkib"]
        out = HEADER + f"; @launch grid=(256,1,1) block=(768,1,1) lds={L_V + 8192*c['NV']}\n"
        out += '.amdgcn_target "amdgcn-amd-amdhsa--gfx950"\n.text\n'
        out += f".globl {KNAME}\n.p2align 8\n.type {KNAME},@function\n" + body
        out += f"  .fill 64, 4, 0xbf800000\nL_codeend:\n.if (L_codeend - {KNAME}) < {nk*1024}\n.fill ({nk*1024} - (L_codeend - {KNAME}))/4, 4, 0xbf800000\n.endif\n"
        out += f""".section .rodata,"a"
.p2align 6
.amdhsa_kernel {KNAME}
  .amdhsa_next_free_vgpr 168
  .amdhsa_next_free_sgpr 102
  .amdhsa_accum_offset 168
  .amdhsa_group_segment_fixed_size 0
  .amdhsa_kernarg_size 112
  .amdhsa_user_sgpr_count 2
  .amdhsa_user_sgpr_kernarg_segment_ptr 1
  .amdhsa_system_sgpr_workgroup_id_x 1
  .amdhsa_float_denorm_mode_32 3
.end_amdhsa_kernel
"""
        return out

def gen(**cfg): return Gen(**cfg).build()

if __name__ == "__main__":
    import json
    cfg = json.loads(sys.argv[2]) if len(sys.argv) > 2 else {}
    open(sys.argv[1], "w").write(gen(**cfg))
```

```python
import sys, struct
from asmlib import fix_hazards

KNAME = "adaLN_cond__sliding_block_cached__glu_gated_glu__decode_kernel"

HEADER = """; Kernarg layout for this problem (112 bytes, ptrs only, base s[0:1]):
;   offset  32: d_in[4] A_wo  shape=(4096, 512) dtype=bfloat16
;   offset  80: d_in[10] w_mod  shape=(512, 3072) dtype=bfloat16
;   offset 104: d_ws      workspace
; One workgroup per (batch, head): 8 streamer waves (K/V -> registers, QK, softmax, PV, then the GLU slice)
; and 4 helper waves (adaLN modulation, q projection, output projection, cross-workgroup hand-offs).
"""

WS_MOD, WS_STAT, WS_MARK, WS_ACC, WS_QTAG, WS_HINT, WS_INBOX, WS_QIN, WS_DUMP, WS_STAMP = 0x0, 0xC000, 0xD000, 0x10000, 0x18000, 0x20000, 0x40000, 0x1C0000, 0x200000, 0x20000000
F_H, F_Q, F_Q2, F_ST, F_O, F_MOD, F_MOD2, F_C, F_P, F_W, F_K, F_A, F_R, F_N, F_HS = 0, 4, 8, 12, 16, 20, 24, 28, 32, 36, 40, 44, 48, 52, 56
L_STATS, L_QB, L_OP, L_OB, L_HBUF, L_QP = 0x40, 0x100, 0x200, 0x1200, 0x1600, 0x2600
L_MODR, L_H2, L_X1, L_GUP, L_HH, L_MODP = 0x2200, 0x4A00, 0x5200, 0x5A00, 0x6A00, 0x7000
L_V = 0x7000
L_ROWS = 0x1600

def f2u(x): return struct.unpack("<I", struct.pack("<f", x))[0]
INB = 11264
TAGX = 0x5bd1e995
LOG2E = f2u(1.4426950408889634)
SCALE = f2u(128 ** -0.5)

sX, sK, sV, sWQ, sWO, sG, sU, sDN, sC, sWM, sOUT, sDBG, sWS = 4, 6, 8, 10, 12, 16, 18, 20, 22, 24, 26, 28, 30
sWAVE, sXCD, sIDX, sB, sJ, sH, sSL, sFFN = 32, 33, 34, 35, 36, 37, 38, 39
sOFF = 40
SRDA, SRDB = 48, 52
sPLO, sPHI, sGUARD, sLOG2E = 62, 63, 64, 66
sHW = 67
vLANE, vL16, vG, vJ, vZ, vONE = 0, 1, 2, 3, 38, 39

def sp(r): return f"s[{r}:{r+1}]"
def sq(r): return f"s[{r}:{r+3}]"
def vp(r): return f"v[{r}:{r+1}]"
def vq(r): return f"v[{r}:{r+3}]"

class Gen:
    def __init__(self, **cfg):
        self.c = dict(D=4, HD=4, HD0=6, HDO=4, P0=24, stamps=False, dump=False, guard=200000, pref=False,
                      inbox_sleep=6, hint_sleep=2, Dodd=None, pref2=False, prefwg=16, prefkib=26, hint_at=28, poll_sleep=8, NV=16, depth=[3.15, 3.15, 4, 3.15], FD=4, NF0=0, HDOf=4, H0D=4, H0D1=2, prio=2, nowo=False, wo_at=None, abl=None, init_mode='full', ablD=7, H0DQ=18, H0pre=True, fillD=4, nofill=False, q_sleep0=8, q_sleep=8, a_sleep=16, xskip=[], plainA=True, down_late=False, wofl='', tlb=0, modlag=2, HDf=4, ffnfl='', HDP=2, HDPf=1.75, PQ=24, kfl=' nt', vfl=' nt', hmap=0, wqpat=32, full_sleep=0, hint_lag=3, PB=2, fmode='flood', PR=8, wqpf=3, wqpfD=16, wqfl='', wqx=0, sprint=64, prodb=2, o_sleep=1, depth2=[3.15, 3.15, 3.6, 3.6], dsw=34, gran=4, outfl=' sc1', hprio=2, sprio=1, sprio_off=31, dry=True, prefidx=13, diag=False, early=True, xdelay=0, late_delay=10, sub=False, dryo=False, gate=False, oadd=False, fast0=True, read_delay=16, barD=False, rx_sleep=8, rx_delay=16)
        self.c.update(cfg)
        self.L = []
        self.nlab = 0

    def A(self, s): self.L.append(s)
    def lab(self, base):
        self.nlab += 1
        return f"L_{base}_{self.nlab}"
    def stamp(self, k):
        if self.c["stamps"]: self.A(f"  s_memrealtime s[{70+2*k}:{71+2*k}]")
    def cstamp(self, k):
        if self.c["stamps"]:
            self.A(f"  s_waitcnt lgkmcnt(0)\n  s_mul_i32 s{70+2*k}, s{sGUARD}, 100\n  s_add_u32 s{70+2*k}, s{70+2*k}, s70\n  s_addc_u32 s{71+2*k}, s71, 0")
    def guard(self):
        if self.c["guard"]:
            self.A(f"  s_add_u32 s{sGUARD}, s{sGUARD}, 1\n  s_cmp_gt_u32 s{sGUARD}, {self.c['guard']}\n  s_cbranch_scc1 L_exit")
    def exec1(self): self.A("  s_mov_b64 exec, 1")
    def execall(self): self.A("  s_mov_b64 exec, -1")

    def lds_spin(self, off, target, tmp, sleep=1):
        l = self.lab("spin"); d = self.lab("spun")
        self.A(f"{l}:")
        self.A(f"  ds_read_b32 v{tmp}, v{vZ} offset:{off}\n  s_waitcnt lgkmcnt(0)\n  v_readfirstlane_b32 s60, v{tmp}")
        self.A(f"  s_cmp_ge_u32 s60, {target}\n  s_cbranch_scc1 {d}")
        self.guard()
        if sleep: self.A(f"  s_sleep {sleep}")
        self.A(f"  s_branch {l}\n{d}:")

    def lds_inc(self, off):
        self.exec1(); self.A(f"  ds_add_u32 v{vZ}, v{vONE} offset:{off}"); self.execall()

    def dumpv(self, reg, n, base, sidx=None, stride=0, tmp=36):
        if not self.c["dump"]: return
        A = self.A
        if sidx is not None:
            A(f"  s_mul_i32 s68, s{sidx}, {stride}\n  s_add_u32 s68, s68, {WS_DUMP + base}")
        else:
            A(f"  s_mov_b32 s68, {WS_DUMP + base}")
        A(f"  v_lshlrev_b32 v{tmp}, {dict([(1,2),(2,3),(4,4)])[n]}, v{vLANE}\n  v_add_u32 v{tmp}, s68, v{tmp}")
        op = {1: "dword", 2: "dwordx2", 4: "dwordx4"}[n]
        r = f"v{reg}" if n == 1 else f"v[{reg}:{reg+n-1}]"
        A(f"  global_store_{op} v{tmp}, {r}, {sp(sWS)}\n  s_waitcnt vmcnt(0)")

    def prefetch(self, wait=False):
        A = self.A
        l = self.lab("nopref"); lp = self.lab("pref"); pc = self.lab("pc")
        A(f"  s_cmp_lg_u32 s{sWAVE}, 11\n  s_cbranch_scc1 {l}\n  s_cmp_lg_u32 s{sIDX}, {self.c['prefidx']}\n  s_cbranch_scc1 {l}")
        A(f"  s_getpc_b64 s[60:61]\n{pc}:\n  s_sub_u32 s60, s60, {pc}-{KNAME}\n  s_subb_u32 s61, s61, 0\n  v_mov_b32 v36, v{vL16}\n  s_mov_b32 s65, {self.c['prefkib']}")
        A(f"{lp}:\n  global_load_dword v35, v36, s[60:61]\n  v_add_u32 v36, 1024, v36\n  s_sub_u32 s65, s65, 1\n  s_cmp_lg_u32 s65, 0\n  s_cbranch_scc1 {lp}")
        if wait: A("  s_waitcnt vmcnt(0)")
        A(f"{l}:")

    def rnd1(self, x, t):
        self.A(f"  v_cvt_pk_bf16_f32 v{t}, v{x}, v{x}\n  v_and_b32 v{x}, 0xffff0000, v{t}")
    def rnd2(self, x, y, t):
        self.A(f"  v_cvt_pk_bf16_f32 v{t}, v{x}, v{y}\n  v_lshlrev_b32 v{x}, 16, v{t}\n  v_and_b32 v{y}, 0xffff0000, v{t}")
    def rnd8(self, X, T):
        for i in range(4): self.A(f"  v_cvt_pk_bf16_f32 v{T+i}, v{X+2*i}, v{X+2*i+1}")
        self.unpack8(T, X)
    def unpack8(self, src, dst):
        for i in range(4):
            self.A(f"  v_lshlrev_b32 v{dst+2*i}, 16, v{src+i}\n  v_and_b32 v{dst+2*i+1}, 0xffff0000, v{src+i}")
    def wave_reduce(self, op, regs, full=True):
        steps = []
        if full: steps += ["quad_perm:[1,0,3,2] row_mask:0xf bank_mask:0xf", "quad_perm:[2,3,0,1] row_mask:0xf bank_mask:0xf"]
        steps += ["row_ror:4 row_mask:0xf bank_mask:0xf", "row_ror:8 row_mask:0xf bank_mask:0xf",
                  "row_bcast:15 row_mask:0xa bank_mask:0xf", "row_bcast:31 row_mask:0xc bank_mask:0xf"]
        for s in steps:
            for r in regs: self.A(f"  {op}_dpp v{r}, v{r}, v{r} {s}")

    def pk8(self, op, D, Aq, Bq):
        for i in range(0, 8, 2): self.A(f"  v_pk_{op}_f32 {vp(D+i)}, {vp(Aq+i)}, {vp(Bq+i)}")

    def layernorm(self, X, T, S):
        A = self.A
        A(f"  v_readfirstlane_b32 s60, v{X}")
        for i in range(0, 8, 2): A(f"  v_pk_add_f32 {vp(T+i)}, {vp(X+i)}, s[60:61] op_sel_hi:[1,0] neg_lo:[0,1] neg_hi:[0,1]")
        A(f"  v_pk_add_f32 {vp(S)}, {vp(T)}, {vp(T+2)}\n  v_pk_mul_f32 {vp(S+2)}, {vp(T)}, {vp(T)}")
        A(f"  v_pk_add_f32 {vp(S)}, {vp(S)}, {vp(T+4)}\n  v_pk_fma_f32 {vp(S+2)}, {vp(T+2)}, {vp(T+2)}, {vp(S+2)}")
        A(f"  v_pk_add_f32 {vp(S)}, {vp(S)}, {vp(T+6)}\n  v_pk_fma_f32 {vp(S+2)}, {vp(T+4)}, {vp(T+4)}, {vp(S+2)}")
        A(f"  v_add_f32 v{S}, v{S}, v{S+1}\n  v_pk_fma_f32 {vp(S+2)}, {vp(T+6)}, {vp(T+6)}, {vp(S+2)}\n  v_add_f32 v{S+1}, v{S+2}, v{S+3}")
        self.wave_reduce("v_add_f32", [S, S + 1])
        A(f"  v_readlane_b32 s61, v{S}, 63\n  v_readlane_b32 s65, v{S+1}, 63")
        inv = f2u(1.0 / 512)
        A(f"  v_mov_b32 v{S+2}, {inv:#x}")
        A(f"  v_mul_f32 v{S}, s61, v{S+2}\n  v_mul_f32 v{S+1}, s65, v{S+2}")
        A(f"  v_fma_f32 v{S+1}, -v{S}, v{S}, v{S+1}\n  v_add_f32 v{S}, s60, v{S}\n  v_max_f32 v{S+1}, 0, v{S+1}")
        self.rnd2(S, S + 1, S + 2)
        A(f"  v_add_f32 v{S+1}, {f2u(1e-5):#x}, v{S+1}")
        for i in range(0, 4, 2): A(f"  v_pk_add_f32 {vp(X+i)}, {vp(X+i)}, {vp(S)} op_sel_hi:[1,0] neg_lo:[0,1] neg_hi:[0,1]")
        A(f"  v_cvt_pk_bf16_f32 v{S+2}, v{S+1}, v{S+1}")
        for i in range(4, 8, 2): A(f"  v_pk_add_f32 {vp(X+i)}, {vp(X+i)}, {vp(S)} op_sel_hi:[1,0] neg_lo:[0,1] neg_hi:[0,1]")
        A(f"  v_and_b32 v{S+1}, 0xffff0000, v{S+2}\n  v_sqrt_f32 v{S+1}, v{S+1}")
        for i in range(4): A(f"  v_cvt_pk_bf16_f32 v{T+i}, v{X+2*i}, v{X+2*i+1}")
        self.rnd1(S + 1, S + 2)
        A(f"  v_rcp_f32 v{S+2}, v{S+1}")
        self.unpack8(T, X)
        A(f"  v_fma_f32 v{S+3}, -v{S+1}, v{S+2}, 1.0\n  v_fmac_f32 v{S+2}, v{S+3}, v{S+2}")
        for i in range(0, 8, 2): A(f"  v_pk_mul_f32 {vp(T+i)}, {vp(X+i)}, {vp(S+2)} op_sel_hi:[1,0]")
        for i in range(0, 8, 2): A(f"  v_pk_fma_f32 {vp(X+i)}, {vp(T+i)}, {vp(S)}, {vp(X+i)} op_sel:[0,1,0] op_sel_hi:[1,1,1] neg_lo:[1,0,0] neg_hi:[1,0,0]")
        for i in range(0, 8, 2): A(f"  v_pk_fma_f32 {vp(X+i)}, {vp(X+i)}, {vp(S+2)}, {vp(T+i)} op_sel_hi:[1,0,1]")
        self.rnd8(X, T)

    def transpose_block(self, B, t0, t1):
        A = self.A
        R = lambda e, t: B + 4 * e + t
        lo = lambda d, a, b: A(f"  v_perm_b32 v{d}, v{b}, v{a}, s{sPLO}")
        hi = lambda d, a, b: A(f"  v_perm_b32 v{d}, v{b}, v{a}, s{sPHI}")
        for p in range(4):
            a, b = R(2 * p, p), R(2 * p + 1, p)
            lo(t0, a, b); hi(b, a, b); A(f"  v_mov_b32 v{a}, v{t0}")
            for t in range(p + 1, 4):
                a, b, c, d = R(2 * p, t), R(2 * p + 1, t), R(2 * t, p), R(2 * t + 1, p)
                lo(t0, a, b); hi(t1, a, b); lo(a, c, d); hi(b, c, d)
                A(f"  v_mov_b32 v{c}, v{t0}\n  v_mov_b32 v{d}, v{t1}")

    def transpose_x2(self, Rb, Bb):
        for c in range(4):
            for p in range(4):
                a, b = Rb + 2 * (2 * p) + (c >> 1), Rb + 2 * (2 * p + 1) + (c >> 1)
                self.A(f"  v_perm_b32 v{Bb+4*c+p}, v{b}, v{a}, s{sPHI if c & 1 else sPLO}")

    def gemv32(self, body=False):
        res = [24] + [40 + 4 * k for k in range(7)]
        if self.c["sub"] and not body:
            pc = self.lab("call")
            self.A(f"  s_getpc_b64 s[60:61]\n{pc}:\n  s_add_u32 s60, s60, L_gemv-{pc}\n  s_addc_u32 s61, s61, 0\n  s_swappc_b64 s[42:43], s[60:61]\n  s_nop 7")
            return res
        for c in range(8):
            for m in range(4):
                self.A(f"  v_mfma_f32_16x16x32_bf16 {vq(res[c])}, {vq(8+4*m)}, {vq(40+32*m+4*c)}, {'0' if m == 0 else vq(res[c])}")
        return res

    def wload32(self, srd, steps, D, frac=None, hooks=None, fl=None):
        A = self.A
        done = 0
        for i in range(32):
            dd = D
            if frac is not None and int((i + 1) * (D - frac)) != int(i * (D - frac)): dd = D - 1
            if i >= dd: A(f"  s_waitcnt vmcnt({dd-1})")
            if hooks and i in hooks: hooks[i]()
            A(f"  buffer_load_dwordx4 {vq(40+4*i)}, v4, {sq(srd)}, s40 offen{self.c['wofl'] if fl is None else fl}")
            if i < 31: A(f"  s_add_u32 s40, s40, {steps[i]}")
            landed = i - D + 1 if i >= D else 0
            if landed >= 8 * (done + 1):
                self.transpose_block(40 + 32 * done, 5, 6); done += 1
        while done < 4:
            A(f"  s_waitcnt vmcnt({8*(3-done)})")
            self.transpose_block(40 + 32 * done, 5, 6); done += 1

    def init_duty(self, wave):
        A = self.A
        l2 = self.lab("inited"); l3 = self.lab("noinit")
        A(f"  s_cmp_lg_u32 s{sWAVE}, {wave}\n  s_cbranch_scc1 {l3}")
        mark = len(self.L)
        A("  v_mov_b32 v8, -1\n  v_mov_b32 v9, -1\n  v_mov_b32 v10, -1\n  v_mov_b32 v11, -1")
        A(f"  s_lshl_b32 s60, s2, 12\n  s_add_u32 s60, s60, {WS_QIN}\n  v_add_u32 v5, s60, v{vL16}")
        for i in range(4): A(f"  global_store_dwordx4 v5, {vq(8)}, {sp(sWS)} offset:{1024*i} sc1")
        A(f"  s_cmp_eq_u32 s{sFFN}, 0\n  s_cbranch_scc1 {l2}\n  s_cmp_ge_u32 s{sSL}, 32\n  s_cbranch_scc1 {l2}")
        A(f"  s_lshl_b32 s60, s{sJ}, 5\n  s_add_u32 s60, s60, s{sSL}\n  s_mul_i32 s60, s60, 6144\n  s_add_u32 s60, s60, {WS_INBOX + 2048}\n  v_add_u32 v5, s60, v{vL16}")
        for i in range(6): A(f"  global_store_dwordx4 v5, {vq(8)}, {sp(sWS)} offset:{1024*i - 2048} sc1")
        A(f"  s_cmp_ge_u32 s{sSL}, 8\n  s_cbranch_scc1 {l2}")
        A("  v_mov_b32 v12, 0\n  v_mov_b32 v13, 0\n  v_mov_b32 v14, 0\n  v_mov_b32 v15, 0")
        A(f"  s_lshl_b32 s60, s{sJ}, 3\n  s_add_u32 s60, s60, s{sSL}\n  s_lshl_b32 s60, s60, 10\n  s_add_u32 s60, s60, {WS_ACC}\n  v_add_u32 v5, s60, v{vL16}")
        A(f"  global_store_dwordx4 v5, {vq(12)}, {sp(sWS)} sc1")
        if self.c["init_mode"] == "nostore": self.L[mark:] = []
        A(f"{l2}:\n  s_waitcnt vmcnt(0)")
        if self.c["init_mode"] != "noticket":
            A(f"  s_mov_b32 s65, 1\n  s_atomic_add s65, {sp(sDBG)}, 0x4 glc\n  s_waitcnt lgkmcnt(0)")
            A(f"  s_cmp_lg_u32 s65, 255\n  s_cbranch_scc1 {l3}\n  s_mov_b32 s65, 1\n  s_atomic_add s65, {sp(sDBG)}, 0x84")
        A(f"{l3}:")

    def streamer(self, D, tag):
        A = self.A; c = self.c
        T = lambda n: 40 + 4 * n
        issued = []
        def issue(name, srd, n):
            A(f"  buffer_load_dwordx4 {vq(T(n))}, v{vL16}, {sq(srd)}, s{sOFF + (n >> 2)} offen offset:{1024*(n&3)}{c['kfl']}")
            issued.append(name)
        def pace():
            n = len(issued)
            if n >= D: A(f"  s_waitcnt vmcnt({D-1})")
            if n >= D - 2 and n < 64:
                l = self.lab("pc")
                A(f"  s_bitcmp1_b64 s[58:59], {n}\n  s_cbranch_scc0 {l}\n  s_waitcnt vmcnt({D-2})")
                A(f"  s_bitcmp1_b64 s[14:15], {n}\n  s_cbranch_scc0 {l}\n  s_waitcnt vmcnt({D-3})\n{l}:")
        def waitfor(name):
            A(f"  s_waitcnt vmcnt({len(issued) - 1 - issued.index(name)})")
        lnp = self.lab("noprod"); lj = self.lab("joined")
        NJ = D + c["modlag"]
        A(f"  s_cmp_ge_u32 s57, {48 if (c['abl'] is None or 'mod' in c['abl']) else 0}\n  s_cbranch_scc1 {lnp}")
        self.mod_loads()
        A("  s_barrier")
        self.mod_compute_a()
        A(f"  s_waitcnt vmcnt({c['prio']})")
        E = 2 if c["fast0"] else 0
        for n in range(E, D - 1): issue(f"K{n}", SRDA, n)
        A(f"  s_load_dword s3, {sp(sDBG)}, 0x80")
        A(f"  s_waitcnt vmcnt({D-1-E})")
        self.stamp(9)
        self.mod_compute_b()
        for n in range(D - 1, NJ):
            A(f"  s_waitcnt vmcnt({D-1})"); issue(f"K{n}", SRDA, n)
        self.mod_compute_c()
        self.stamp(14)
        if c["wo_at"] is not None and c["wo_at"] < NJ: self.lds_inc(F_K)
        A(f"  s_branch {lj}\n{lnp}:")
        issued.clear()
        for n in range(32):
            if n == NJ: A(f"{lj}:")
            if n < E: issued.append(f"K{n}")
            else: pace(); issue(f"K{n}", SRDA, n)
            if n == 0 and not E: self.stamp(8)
            if n in (4, 8, 16, 24): self.stamp({4: 10, 8: 11, 16: 12, 24: 13}[n])
            if n == c["wo_at"]: self.lds_inc(F_K)
            if c["sprio"] and n == c["sprio_off"]: A("  s_setprio 0")
            if n == D - 3:
                A("  s_barrier")
                self.stamp(9)
            if n == NJ:
                A(f"  v_lshrrev_b32 v12, 1, v{vJ}\n  v_and_b32 v13, 1, v{vJ}\n  v_mov_b32 v14, 0xffff\n  v_lshlrev_b32 v13, 4, v13\n  v_lshlrev_b32 v14, v13, v14")
                for j in range(4):
                    A(f"  v_cmp_eq_u32 vcc, {j}, v12\n  v_cndmask_b32 v{4+j}, 0, v14, vcc")
        NV = c["NV"]
        slot = lambda n: T(32 - NV + n) if n < NV else T(n - NV)
        l = self.lab("nomodchk")
        A(f"  s_cmp_ge_u32 s57, {48 if (c['abl'] is None or 'mod' in c['abl']) else 0}\n  s_cbranch_scc1 {l}")
        self.lds_spin(F_MOD2, 8, 12)
        A(f"{l}:")
        for n in range(NV):
            if n % 4 == 0: A(f"  s_add_u32 m0, s56, {4096 * (n // 4)}")
            pace()
            A(f"  buffer_load_dwordx4 v{vL16}, {sq(SRDB)}, s{sOFF + (n >> 2)} offen offset:{1024*(n&3)}{c['vfl']} lds")
            issued.append(f"V{n}")
        self.stamp(1)
        self.lds_spin(F_Q2, 1, 12)
        self.stamp(2)
        A(f"  v_lshlrev_b32 v12, 4, v{vJ}\n  ds_read_b128 {vq(8)}, v12 offset:{L_QB}\n  s_waitcnt lgkmcnt(0)")
        def qk(G):
            z = 18 + G
            for r in range(4):
                for t in range(4):
                    A(f"  v_dot2_f32_bf16 v{12+t}, v{T(4*G+t)+r}, v{8+r}, {'0' if r == 0 else f'v{12+t}'}")
            A(f"  v_add_f32_dpp v16, v12, v12 row_ror:8 row_mask:0xf bank_mask:0x3")
            A(f"  v_add_f32_dpp v17, v14, v14 row_ror:8 row_mask:0xf bank_mask:0x3")
            A(f"  v_add_f32_dpp v16, v13, v13 row_ror:8 row_mask:0xf bank_mask:0xc")
            A(f"  v_add_f32_dpp v17, v15, v15 row_ror:8 row_mask:0xf bank_mask:0xc")
            A(f"  v_add_f32_dpp v{z}, v16, v16 row_shl:4 row_mask:0xf bank_mask:0x5")
            A(f"  v_add_f32_dpp v{z}, v17, v17 row_shr:4 row_mask:0xf bank_mask:0xa")
            A(f"  v_add_f32_dpp v{z}, v{z}, v{z} quad_perm:[1,0,3,2] row_mask:0xf bank_mask:0xf")
            A(f"  v_add_f32_dpp v{z}, v{z}, v{z} quad_perm:[2,3,0,1] row_mask:0xf bank_mask:0xf")
        nv = NV
        def nextv():
            nonlocal nv
            pace()
            A(f"  buffer_load_dwordx4 {vq(slot(nv))}, v{vL16}, {sq(SRDB)}, s{sOFF + (nv >> 2)} offen offset:{1024*(nv&3)}{c['vfl']}")
            issued.append(f"V{nv}"); nv += 1
        qk(0)
        groups = list(range(1, 7))
        per = -(-len(groups) // D)
        for i in range(D):
            nextv()
            for G in groups[i * per:(i + 1) * per]: qk(G)
        qk(7)
        if NV:
            A(f"  v_add_u32 v34, s56, v{vL16}")
            for n in range(NV): A(f"  ds_read_b128 {vq(slot(n))}, v34 offset:{1024*n}")
        A(f"  s_mov_b32 s60, {SCALE:#x}")
        for i in range(4): self.rnd2(18 + 2 * i, 19 + 2 * i, 12 + i)
        for i in range(8): A(f"  v_mul_f32 v{18+i}, s60, v{18+i}")
        for i in range(4): self.rnd2(18 + 2 * i, 19 + 2 * i, 12 + i)
        A("  v_max3_f32 v12, v18, v19, v20\n  v_max3_f32 v13, v21, v22, v23\n  v_max3_f32 v12, v12, v24, v25\n  v_max_f32 v12, v12, v13")
        self.wave_reduce("v_max_f32", [12], full=False)
        A("  v_readlane_b32 s61, v12, 63")
        for i in range(8): A(f"  v_subrev_f32 v{26+i}, s61, v{18+i}")
        for i in range(8): A(f"  v_mul_f32 v{26+i}, s{sLOG2E}, v{26+i}")
        for i in range(8): A(f"  v_exp_f32 v{26+i}, v{26+i}")
        A("  v_add_f32 v13, v26, v27\n  v_add_f32 v14, v28, v29\n  v_add_f32 v15, v30, v31\n  v_add_f32 v16, v32, v33")
        A("  v_add_f32 v13, v13, v14\n  v_add_f32 v15, v15, v16\n  v_add_f32 v13, v13, v15")
        self.wave_reduce("v_add_f32", [13], full=False)
        A(f"  s_lshl_b32 s60, s{sWAVE}, 3\n  v_mov_b32 v14, s60")
        A("  s_mov_b32 exec_lo, 0\n  s_mov_b32 exec_hi, 0x80000000")
        A(f"  ds_write_b64 v14, v[12:13] offset:{L_STATS}\n  ds_add_u32 v{vZ}, v{vONE} offset:{F_ST}")
        self.execall()
        nextv(); nextv()
        self.lds_spin(F_ST, 8, 12)
        A(f"  v_and_b32 v14, 7, v{vLANE}\n  v_lshlrev_b32 v14, 3, v14\n  ds_read_b64 v[12:13], v14 offset:{L_STATS}\n  s_waitcnt lgkmcnt(0)")
        red8 = ["quad_perm:[1,0,3,2]", "quad_perm:[2,3,0,1]", "row_ror:4"]
        A("  v_mov_b32 v14, v12")
        for s in red8: A(f"  v_max_f32_dpp v14, v14, v14 {s} row_mask:0xf bank_mask:0xf")
        A(f"  v_sub_f32 v12, v12, v14\n  v_mul_f32 v12, s{sLOG2E}, v12\n  v_exp_f32 v12, v12")
        for i in range(8): A(f"  v_sub_f32 v{26+i}, v{18+i}, v14")
        A("  v_mul_f32 v13, v13, v12")
        for i in range(8): A(f"  v_mul_f32 v{26+i}, s{sLOG2E}, v{26+i}")
        for s in red8: A(f"  v_add_f32_dpp v13, v13, v13 {s} row_mask:0xf bank_mask:0xf")
        for i in range(8): A(f"  v_exp_f32 v{26+i}, v{26+i}")
        A("  v_rcp_f32 v15, v13\n  v_fma_f32 v16, -v13, v15, 1.0\n  v_fmac_f32 v15, v16, v15")
        if c["dump"]:
            for i in range(8):
                A(f"  s_lshl_b32 s69, s2, 3\n  s_add_u32 s69, s69, s{sWAVE}\n  s_lshl_b32 s69, s69, 3\n  s_add_u32 s69, s69, {i}")
                self.dumpv(18 + i, 1, 0x100000, 69, 256, tmp=36)
        for i in range(8): A(f"  v_mul_f32 v{26+i}, v{26+i}, v15")
        for i in range(8): A(f"  v_cvt_pk_bf16_f32 v{18+i}, v{26+i}, v{26+i}")
        self.stamp(3)
        npv = 0
        def pv():
            nonlocal npv
            n = npv; npv += 1
            Ab = 26 + 4 * (n & 1)
            bank = [0, 2, 1, 3][n & 3]
            for j in range(4):
                A(f"  v_and_b32_dpp v{Ab+j}, v{18+(n>>2)}, v{4+j} row_newbcast:{4*bank} row_mask:0xf bank_mask:0xf")
            A(f"  v_mfma_f32_16x16x32_bf16 {vq(34)}, {vq(Ab)}, {vq(slot(n))}, {'0' if n == 0 else vq(34)}")
            if n == c["hint_at"] and "HT" not in c["xskip"]:
                l = self.lab("ht")
                self.exec1()
                A(f"  ds_add_rtn_u32 v12, v{vZ}, v{vONE} offset:{F_P}\n  s_mov_b32 s5, 0\n  s_waitcnt lgkmcnt(0)\n  v_readfirstlane_b32 s60, v12")
                self.execall()
                A(f"  s_cmp_lg_u32 s60, 7\n  s_cbranch_scc1 {l}")
                A(f"  s_lshl_b32 s60, s{sB}, 12\n  s_add_u32 s60, s60, {WS_ACC + 3072}\n  s_mov_b32 s5, 1\n  s_atomic_add s5, {sp(sWS)}, s60 glc\n{l}:")
            if n == c["hint_at"] + c["hint_lag"] and "HT" not in c["xskip"]:
                l = self.lab("hf")
                A(f"  s_waitcnt lgkmcnt(0)\n  s_cmp_lg_u32 s5, 31\n  s_cbranch_scc1 {l}")
                A(f"  s_mul_i32 s60, s{sB}, {64*128}\n  s_add_u32 s60, s60, {WS_HINT}\n  v_lshl_add_u32 v12, v{vLANE}, 7, s60")
                A(f"  s_mov_b32 exec_hi, 0x7ff\n  global_store_dword v12, v11, {sp(sWS)} sc1"); self.execall()
                A(f"{l}:")
        self.ffn_addr()
        self.lds_spin(F_C, 1, 12)
        A(f"  ds_read_b32 v11, v{vZ} offset:{F_N}")
        def vstep():
            nextv()
            landed = nv - D
            k = 0
            while npv < landed and k < 3:
                pv(); k += 1
        def finish(ffn=False):
            if ffn and c["early"]:
                l = self.lab("eh")
                A(f"  s_cmp_lg_u32 s{sWAVE}, 0\n  s_cbranch_scc1 {l}")
                A(f"  s_lshl_b32 s60, s{sJ}, 7\n  s_add_u32 s60, s60, s{sSL}\n  s_lshl_b32 s60, s60, 7\n  s_add_u32 s60, s60, {WS_HINT}\n  s_add_u32 s61, s60, {64*128}")
                A(f"  s_load_dword s8, {sp(sWS)}, s60 glc\n  s_load_dword s9, {sp(sWS)}, s61 glc\n{l}:")
            while npv < 32:
                waitfor(f"V{npv}"); pv()
            A(f"  v_lshlrev_b32 v12, 5, v{vJ}\n  v_lshl_add_u32 v13, v{vG}, 4, v12\n  s_lshl_b32 s60, s{sWAVE}, 9\n  v_add_u32 v12, s60, v13")
            A("  s_mov_b32 exec_hi, 0")
            if c["oadd"]:
                for r in range(4): A(f"  ds_add_f32 v13, v{34+r} offset:{L_OP + 4*r}")
            else:
                A(f"  ds_write_b128 v12, {vq(34)} offset:{L_OP}")
            self.lds_inc(F_O)
            self.stamp(5)
            if ffn and c["early"]:
                l = self.lab("eh2")
                A(f"  s_cmp_lg_u32 s{sWAVE}, 0\n  s_cbranch_scc1 {l}\n  s_waitcnt lgkmcnt(0)\n  v_mov_b32 v12, s8\n  v_mov_b32 v13, s9")
                self.exec1(); A(f"  ds_write_b64 v{vZ}, v[12:13] offset:{F_HS}"); self.execall()
                A(f"{l}:")
        NF0 = c["NF0"]
        while nv < 32 - NF0: vstep()
        assert npv >= NV or NF0 == 0, (npv, NV)
        lf = self.lab("vffn")
        if c["abl"] is None and "T" not in c["xskip"]: A(f"  s_cmp_lg_u32 s{sFFN}, 0\n  s_cbranch_scc1 {lf}")
        st = (nv, npv, list(issued))
        while nv < 32: vstep()
        self.stamp(4)
        finish()
        A("  s_branch L_exit")
        A(f"{lf}:")
        nv, npv = st[0], st[1]; issued[:] = st[2]
        nf = 0
        while nv < 32:
            waitfor(f"V{nv - (D - 1)}")
            A(f"  buffer_load_dwordx4 {vq(slot(nv))}, v{vL16}, {sq(SRDB)}, s{sOFF + (nv >> 2)} offen offset:{1024*(nv&3)}{c['vfl']}")
            issued.append(f"V{nv}"); nv += 1
            self.ffn_load(nf); issued.append(f"F{nf}"); nf += 1
            k = 0
            while npv < nv - D + 1 and k < 3:
                pv(); k += 1
        self.stamp(4)
        finish(True)
        FD = c["FD"]
        if c["fmode"] == "paced":
            while nf < 24:
                if nf >= FD: waitfor(f"F{nf - FD}")
                self.ffn_load(nf); issued.append(f"F{nf}"); nf += 1
                if nf == FD: self.ffn_lds_addr()
                if nf == 8 + FD: self.transpose_x2(120, 40)
                if nf == 16 + FD: self.stamp(15); self.transpose_x2(136, 56)
            return
        while nf < FD:
            self.ffn_load(nf); issued.append(f"F{nf}"); nf += 1
        self.lds_spin(F_A, 4, 12)
        self.stamp(10)
        while nf < 16:
            self.ffn_load(nf); issued.append(f"F{nf}"); nf += 1
        self.ffn_lds_addr()
        if c["stamps"]: waitfor("F15"); self.stamp(15)
        waitfor("F7"); self.transpose_x2(120, 40)
        if c["down_late"]: self.lds_spin(F_R, 2, 12)
        while nf < 24:
            self.ffn_load(nf); issued.append(f"F{nf}"); nf += 1
        waitfor("F15"); self.transpose_x2(136, 56)

    def ffn_addr(self):
        A = self.A
        A(f"  v_cmp_gt_u32 vcc, 8, v{vJ}")
        A(f"  v_mov_b32 v12, s{sU}\n  v_mov_b32 v13, s{sU+1}\n  v_mov_b32 v14, s{sG}\n  v_mov_b32 v15, s{sG+1}")
        A(f"  v_cndmask_b32 v8, v12, v14, vcc\n  v_cndmask_b32 v9, v13, v15, vcc")
        A(f"  s_lshr_b32 s16, s{sJ}, 1\n  s_and_b32 s17, s{sJ}, 1")
        A(f"  s_lshl_b32 s60, s{sWAVE}, 6\n  s_lshl_b32 s61, s16, 5\n  s_add_u32 s60, s60, s61\n  s_lshl_b32 s61, s17, 2\n  s_add_u32 s60, s60, s61")
        A(f"  v_lshl_add_u32 v12, v{vG}, 3, s60\n  v_mul_u32_u24 v12, 2752, v12")
        A(f"  v_and_b32 v13, 7, v{vJ}\n  v_lshl_add_u32 v12, v13, 3, v12\n  s_lshl_b32 s60, s{sSL}, 6\n  v_add_u32 v12, s60, v12\n  v_mov_b32 v13, 0")
        A(f"  v_lshl_add_u64 v[8:9], v[8:9], 0, v[12:13]")
        A(f"  s_mov_b32 s10, 5504\n  s_mov_b32 s11, 0")
        A(f"  s_cmp_eq_u32 s17, 0\n  s_cselect_b32 s60, 4, -4\n  s_cmp_eq_u32 s16, 0\n  s_cselect_b32 s61, 32, -32")
        A(f"  s_sub_i32 s61, s61, s60\n  s_sub_i32 s60, s60, 2\n  s_sub_i32 s61, s61, 2")
        A(f"  s_mul_i32 s12, s60, 2752\n  s_ashr_i32 s13, s12, 31\n  s_mul_i32 s6, s61, 2752\n  s_ashr_i32 s7, s6, 31")
        A(f"  s_mov_b32 s{SRDA}, s{sDN}\n  s_mov_b32 s{SRDA+1}, s{sDN+1}\n  s_mov_b32 s{SRDA+2}, 1409024\n  s_mov_b32 s{SRDA+3}, 0x20000")
        A(f"  v_lshlrev_b32 v10, 13, v{vG}\n  v_lshl_add_u32 v10, v{vJ}, 3, v10")
        A(f"  s_lshl_b32 s18, s{sSL}, 15\n  s_lshl_b32 s19, s{sWAVE}, 7\n  s_add_u32 s18, s18, s19\n  s_add_u32 s19, s18, 4096")

    def ffn_load(self, i):
        A = self.A
        if "W" in self.c["xskip"]:
            A(f"  global_load_dword v17, v{vZ}, {sp(sC)}"); return
        if i < 16:
            A(f"  global_load_dwordx2 {vp(120+2*i)}, v[8:9], off{' offset:2752' if i & 1 else ''}{self.c['ffnfl']}")
            if i & 1 and i < 15:
                step = "s[10:11]" if (i & 3) == 1 else ("s[6:7]" if i == 7 else "s[12:13]")
                A(f"  v_lshl_add_u64 v[8:9], v[8:9], 0, {step}")
        else:
            e = i - 16
            A(f"  buffer_load_dwordx2 {vp(152+2*e)}, v10, {sq(SRDA)}, s{18 + (e >> 2)} offen offset:{1024*(e&3)}{self.c['ffnfl']}")

    def ffn_lds_addr(self):
        A = self.A
        A(f"  v_and_b32 v12, 1, v{vJ}\n  v_lshlrev_b32 v112, 10, v12\n  v_lshl_add_u32 v112, v{vG}, 4, v112\n  s_lshl_b32 s60, s{sWAVE}, 7\n  v_add_u32 v112, s60, v112")
        A(f"  s_lshl_b32 s60, s16, 6\n  s_lshl_b32 s61, s17, 3\n  s_add_u32 s60, s60, s61\n  v_add_u32 v112, s60, v112")
        A(f"  v_xor_b32 v113, 8, v112\n  v_xor_b32 v114, 64, v112\n  v_xor_b32 v115, 0x48, v112")
        A(f"  v_lshlrev_b32 v116, 6, v12\n  v_lshl_add_u32 v116, v{vG}, 4, v116")
        A(f"  v_lshlrev_b32 v117, 5, v{vJ}\n  v_lshl_add_u32 v117, v{vG}, 3, v117\n  s_lshl_b32 s60, s{sWAVE}, 9\n  v_add_u32 v117, s60, v117")
        A(f"  s_lshl_b32 s60, s{sJ}, 5\n  s_lshl_b32 s61, s{sWAVE}, 2\n  s_add_u32 s60, s60, s61\n  v_add_u32 v118, s60, v{vG}\n  v_mul_u32_u24 v118, {INB}, v118")
        A(f"  s_lshl_b32 s60, s{sSL}, 8\n  s_add_u32 s60, s60, {WS_INBOX}\n  v_lshl_add_u32 v12, v{vJ}, 4, s60\n  v_add_u32 v118, v12, v118")

    def streamer_ffn(self):
        A = self.A
        self.stamp(6)
        A("  s_barrier")
        A("L_dry_s:")
        for i in range(4): A(f"  ds_read_b64 {vp(88+2*i)}, v{112+i} offset:{L_H2}")
        A("  s_waitcnt lgkmcnt(2)")
        for cc in range(4): A(f"  v_mfma_f32_16x16x32_bf16 {vq(96+4*cc)}, {vq(88)}, {vq(40+4*cc)}, 0")
        A("  s_waitcnt lgkmcnt(0)")
        for cc in range(4): A(f"  v_mfma_f32_16x16x32_bf16 {vq(96+4*cc)}, {vq(92)}, {vq(56+4*cc)}, {vq(96+4*cc)}")
        def select():
            for g in range(1, 4):
                for r in range(2):
                    A(f"  v_mov_b32_dpp v{96+r}, v{96+4*g+r} quad_perm:[0,1,2,3] row_mask:{1<<g:#x} bank_mask:0xf")
        select()
        A(f"  ds_write_b64 v117, v[96:97] offset:{L_GUP}\n  s_waitcnt lgkmcnt(0)")
        dry = self.c["dry"]
        if dry: A("  s_cbranch_execz L_dry_s2")
        A("  s_barrier")
        A("  s_waitcnt vmcnt(0)"); self.transpose_x2(152, 72)
        A("  s_barrier")
        A("L_dry_s2:")
        A(f"  ds_read_b128 {vq(88)}, v116 offset:{L_HH}\n  s_waitcnt lgkmcnt(0)")
        for cc in range(4): A(f"  v_mfma_f32_16x16x32_bf16 {vq(96+4*cc)}, {vq(88)}, {vq(72+4*cc)}, 0")
        select()
        A(f"  v_mov_b32 v98, v11\n  v_xor_b32 v99, {TAGX:#x}, v11")
        if dry: A("  s_cbranch_execz L_exit")
        A(f"  global_store_dwordx4 v118, {vq(96)}, {sp(sWS)} sc1")
        self.stamp(7)
        A("  s_branch L_exit2")

    def mod_loads(self):
        A = self.A
        A(f"  v_and_b32 v4, 7, v{vJ}\n  v_lshrrev_b32 v5, 3, v{vJ}\n  v_lshlrev_b32 v6, 10, v4\n  v_lshl_add_u32 v6, v5, 6, v6\n  v_lshl_add_u32 v6, v{vG}, 4, v6")
        A(f"  s_lshl_b32 s60, s{sWAVE}, 7\n  v_add_u32 v6, s60, v6")
        A(f"  global_load_dwordx4 {vq(8)}, v6, {sp(sC)}")
        A(f"  v_lshlrev_b32 v7, 5, v5\n  v_lshl_add_u32 v7, v{vG}, 3, v7\n  v_mul_u32_u24 v7, 6144, v7\n  v_lshl_add_u32 v7, v4, 4, v7")
        A(f"  s_mul_i32 s60, s{sWAVE}, {64*6144}\n  s_lshl_b32 s61, s57, 7\n  s_add_u32 s60, s60, s61\n  v_add_u32 v7, s60, v7")
        for i in range(8):
            A(f"  global_load_dwordx4 {vq(136+4*i)}, v7, {sp(sWM)} nt")
            if i < 7: A(f"  v_add_u32 v7, 6144, v7")

    def mod_compute_a(self):
        A = self.A
        A(f"  s_lshl_b32 s60, s{sWAVE}, 12\n  s_add_u32 s60, s60, {L_V}\n  v_lshlrev_b32 v28, 11, v5\n  v_lshl_add_u32 v28, v4, 8, v28\n  v_and_b32 v29, 1, v{vG}\n  v_lshl_add_u32 v28, v29, 4, v28\n  v_add_u32 v28, s60, v28")
        A(f"  v_lshrrev_b32 v29, 1, v{vG}\n  v_cmp_eq_u32 s[68:69], v29, v5")
        A("  s_waitcnt vmcnt(8)")
        for i in range(4):
            r = 8 + i
            A(f"  v_lshlrev_b32 v16, 16, v{r}\n  v_and_b32 v17, 0xffff0000, v{r}")
            A(f"  v_mul_f32 v18, s{sLOG2E}, v16\n  v_mul_f32 v19, s{sLOG2E}, v17")
            A(f"  v_exp_f32 v18, -v18\n  v_exp_f32 v19, -v19")
            A(f"  v_add_f32 v18, 1.0, v18\n  v_add_f32 v19, 1.0, v19\n  v_rcp_f32 v18, v18\n  v_rcp_f32 v19, v19")
            A(f"  v_mul_f32 v16, v16, v18\n  v_mul_f32 v17, v17, v19\n  v_cvt_pk_bf16_f32 v{r}, v16, v17")

    def mod_compute_b(self):
        A = self.A
        self.transpose_block(136, 5, 6)
        for cc in range(8):
            A(f"  v_mfma_f32_16x16x32_bf16 {vq(104+4*cc)}, {vq(8)}, {vq(136+4*cc)}, 0")
        A("  s_mov_b64 exec, s[68:69]")
        for cc in range(8):
            A(f"  ds_write_b128 v28, {vq(104+4*cc)} offset:{32*cc}")
        self.lds_inc(F_MOD)

    def mod_compute_c(self):
        A = self.A
        A(f"  v_and_b32 v4, 31, v{vLANE}\n  v_lshrrev_b32 v5, 5, v{vLANE}\n  v_lshlrev_b32 v6, 6, v4\n  v_lshl_add_u32 v6, v5, 14, v6\n  s_lshl_b32 s60, s{sWAVE}, 2\n  s_add_u32 s60, s60, {L_V}\n  v_add_u32 v6, s60, v6")
        A(f"  s_mul_i32 s60, s{sWAVE}, 6144\n  s_lshl_b32 s61, s57, 7\n  s_add_u32 s60, s60, s61\n  s_add_u32 s60, s60, {WS_MOD}\n  v_lshl_add_u32 v5, v4, 2, s60")
        self.lds_spin(F_MOD, 8, 7)
        for part in range(8):
            if part: A(f"  v_add_u32 v6, 2048, v6")
            A(f"  ds_read2_b32 {vp(8+2*part)}, v6 offset0:0 offset1:8")
        l = self.lab("pollSN"); d = self.lab("gotSN")
        A(f"{l}:\n  s_cmp_lg_u32 s3, 0\n  s_cbranch_scc1 {d}")
        self.guard()
        A(f"  s_load_dword s3, {sp(sDBG)}, 0x80 glc\n  s_waitcnt lgkmcnt(0)\n  s_branch {l}\n{d}:")
        A("  s_waitcnt lgkmcnt(0)")
        self.lds_inc(F_MOD2)
        for part in range(1, 8):
            A(f"  v_add_f32 v8, v8, v{8+2*part}\n  v_add_f32 v9, v9, v{9+2*part}")
        A("  v_mov_b32 v10, v8\n  v_mov_b32 v11, v9\n  v_permlane32_swap_b32 v10, v8\n  v_permlane32_swap_b32 v11, v9\n  v_add_f32 v8, v8, v10\n  v_add_f32 v9, v9, v11")
        A(f"  v_cvt_pk_bf16_f32 v8, v8, v9\n  s_mov_b32 exec_hi, 0\n  global_store_dword v5, v8, {sp(sWS)} sc1")
        self.execall()
        A("  v_mov_b32 v9, v8")
        for st in ("quad_perm:[1,0,3,2]", "quad_perm:[2,3,0,1]", "row_ror:4", "row_ror:8"):
            A(f"  v_xor_b32_dpp v9, v9, v9 {st} row_mask:0xf bank_mask:0xf")
        A("  v_mov_b32 v10, v9\n  v_permlane16_swap_b32 v10, v9\n  v_bitop3_b32 v9, v9, v10, s3 bitop3:0x96")
        A(f"  s_lshl_b32 s60, s{sWAVE}, 8\n  s_lshl_b32 s61, s57, 2\n  s_add_u32 s60, s60, s61\n  s_add_u32 s60, s60, {WS_MARK}\n  v_mov_b32 v5, s60")
        self.exec1(); A(f"  global_store_dword v5, v9, {sp(sWS)} sc1"); self.execall()

    def check_lines(self, data, tags, tmp):
        A = self.A
        n = len(data)
        for k in range(n): A(f"  v_xor_b32 v{tmp+k}, v{data[k]}, v{data[k]+1}")
        for k in range(n): A(f"  v_bitop3_b32 v{tmp+k}, v{tmp+k}, v{data[k]+2}, v{data[k]+3} bitop3:0x96")
        for st in ("quad_perm:[1,0,3,2]", "quad_perm:[2,3,0,1]", "row_half_mirror"):
            for k in range(n): A(f"  v_xor_b32_dpp v{tmp+k}, v{tmp+k}, v{tmp+k} {st} row_mask:0xf bank_mask:0xf")
        for k in range(n): A(f"  v_bitop3_b32 v{tmp+k}, v{tmp+k}, v{tags[k]}, s44 bitop3:0x96")
        for k in range(1, n): A(f"  v_or_b32 v{tmp}, v{tmp}, v{tmp+k}")
        A(f"  v_cmp_ne_u32 vcc, 0, v{tmp}")

    def get_flag(self, tmp, off, sreg, expect=None):
        A = self.A
        l = self.lab("pollN"); d = self.lab("gotN")
        cmp = f"s_cmp_lg_u32 s{sreg}, 0" if expect is None else f"s_cmp_eq_u32 s{sreg}, {expect}"
        self.exec1()
        A(f"  global_load_dword v{tmp}, v{vZ}, {sp(sDBG)} offset:{off}")
        A(f"{l}:\n  s_waitcnt vmcnt(0)\n  v_readfirstlane_b32 s{sreg}, v{tmp}\n  {cmp}\n  s_cbranch_scc1 {d}")
        self.guard()
        A(f"  s_sleep {self.c['poll_sleep']}\n  global_load_dword v{tmp}, v{vZ}, {sp(sDBG)} offset:{off} sc1\n  s_branch {l}\n{d}:"); self.execall()
    def get_nonce(self, tmp): self.get_flag(tmp, 128, 44)

    def xor_rows(self, r, t):
        A = self.A
        A(f"  v_mov_b32 v{t}, v{r}\n  v_permlane16_swap_b32 v{t}, v{r}\n  v_xor_b32 v{r}, v{r}, v{t}")
        A(f"  v_mov_b32 v{t}, v{r}\n  v_permlane32_swap_b32 v{t}, v{r}\n  v_xor_b32 v{r}, v{r}, v{t}")

    def allreduce8(self, r, t, op="v_add_f32"):
        A = self.A
        A(f"  {op}_dpp v{r}, v{r}, v{r} row_ror:8 row_mask:0xf bank_mask:0xf")
        A(f"  v_mov_b32 v{t}, v{r}\n  v_permlane16_swap_b32 v{t}, v{r}\n  {op} v{r}, v{r}, v{t}")
        A(f"  v_mov_b32 v{t}, v{r}\n  v_permlane32_swap_b32 v{t}, v{r}\n  {op} v{r}, v{r}, v{t}")

    def wq_pattern(self):
        p = self.c["wqpat"]
        if p == 8: return 16, [8192 if i % 8 < 7 else 8192 * 25 for i in range(32)]
        if p == 32: return 18, [8192] * 32
        if p == 1: return 13, [8192 * 4] * 32
        if p == 33: return 18, [8192 * 5 if i % 8 < 7 else (1 << 32) - 8192 * 27 for i in range(32)]
        if p == 16: return 17, [8192 if i % 16 < 15 else 8192 * 49 for i in range(32)]

    def h0_issue(self, fl):
        A = self.A
        if "G" in self.c["xskip"]: return
        A(f"  global_load_dwordx4 {vq(28)}, v36, {sp(sWS)}{fl}\n  global_load_dwordx4 {vq(32)}, v36, {sp(sWS)} offset:1024{fl}")
        A(f"  global_load_dword v24, v37, {sp(sWS)}{fl}\n  global_load_dword v25, v37, {sp(sWS)} offset:32{fl}")

    def h0_finish(self):
        A = self.A; c = self.c
        l = self.lab("chkA"); d = self.lab("gotA")
        A(f"{l}:")
        self.check_lines([28, 32], [24, 25], 26)
        A(f"  s_cbranch_vccz {d}" if "G" not in c["xskip"] else f"  s_branch {d}")
        self.guard()
        A(f"  s_sleep {c['a_sleep']}")
        self.h0_issue(" sc1")
        A(f"  s_waitcnt vmcnt(0)\n  s_branch {l}\n{d}:")
        self.stamp(2); self.cstamp(14)
        self.unpack8(32, 16)
        for i in range(8): A(f"  v_add_f32 v{16+i}, 1.0, v{16+i}")
        self.rnd8(16, 24)
        for i in range(8): A(f"  v_mul_f32 v{8+i}, v{8+i}, v{16+i}")
        self.rnd8(8, 24)
        self.unpack8(28, 16)
        for i in range(8): A(f"  v_add_f32 v{8+i}, v{8+i}, v{16+i}")
        for i in range(4): A(f"  v_cvt_pk_bf16_f32 v{24+i}, v{8+2*i}, v{9+2*i}")
        A(f"  v_add_u32 v16, s47, v{vL16}\n  ds_write_b128 v16, {vq(24)} offset:{L_HBUF}")
        self.lds_inc(F_H)
        if c["dump"]:
            l = self.lab("nodh"); A(f"  s_cmp_lg_u32 s{sHW}, 0\n  s_cbranch_scc1 {l}"); self.dumpv(24, 4, 0x0, 2, 1024); A(f"{l}:")
        self.stamp(3)

    def helper(self):
        A = self.A; c = self.c
        A("L_helper:")
        self.stamp(8)
        A(f"  s_sub_u32 s{sHW}, s{sWAVE}, 8")
        l = self.lab("h3")
        A(f"  s_cmp_lg_u32 s{sHW}, 3\n  s_cbranch_scc1 {l}")
        A(f"  v_lshlrev_b32 v4, 2, v{vLANE}\n  ds_write_b32 v4, v{vZ}\n  ds_write_b32 v4, v{vZ} offset:{L_OP}\n  ds_write_b32 v4, v{vZ} offset:{L_OP+256}\n  s_waitcnt lgkmcnt(0)\n{l}:")
        A("  s_waitcnt lgkmcnt(0)")
        if c["tlb"]:
            l = self.lab("notlb")
            A(f"  s_cmp_lg_u32 s{sHW}, 2\n  s_cbranch_scc1 {l}")
            self.exec1()
            A(f"  s_lshl_b32 s60, s{sB}, 5\n  s_add_u32 s60, s60, s{sH}\n  s_lshl_b32 s60, s60, 20\n  s_add_u32 s60, s60, 0xC0000\n  v_mov_b32 v4, s60")
            A(f"  global_load_dword v40, v4, {sp(sV)} nt")
            A(f"  s_lshl_b32 s60, s2, 12\n  s_add_u32 s60, s60, {WS_QIN}\n  v_mov_b32 v5, s60\n  global_load_dword v41, v5, {sp(sWS)} nt")
            A(f"  s_lshl_b32 s60, s{sH}, 17\n  v_mov_b32 v6, s60\n  global_load_dword v42, v6, {sp(sWO)} nt")
            A(f"  s_lshl_b32 s60, s2, 2\n  s_and_b32 s60, s60, 0xfc\n  v_mov_b32 v7, s60")
            A(f"  global_load_dword v43, v7, {sp(sDBG)}")
            if c["tlb"] > 1:
                A(f"  s_lshl_b32 s60, s2, 7\n  v_mov_b32 v8, s60")
                for k, p in enumerate((sG, sU, sDN, sWS)): A(f"  global_load_dword v{44+k}, v8, {sp(p)} nt")
                A(f"  v_add_u32 v8, 0x100000, v8")
                for k, p in enumerate((sG, sU, sDN)): A(f"  global_load_dword v{48+k}, v8, {sp(p)} nt")
                A(f"  s_lshl_b32 s60, s2, 5\n  v_mov_b32 v9, s60\n  global_load_dword v52, v9, {sp(sOUT)} nt")
            self.execall()
            A(f"{l}:")
        if c["wqpf"]:
            l = self.lab("nowqpf")
            A(f"  s_cmp_lg_u32 s{sHW}, {c['wqpf']}\n  s_cbranch_scc1 {l}")
            A(f"  s_lshl_b32 s60, s{sIDX}, 17\n  s_lshl_b32 s61, s{sXCD}, 10\n  s_add_u32 s60, s60, s61\n  v_add_u32 v4, s60, v{vL16}")
            for i in range(16):
                if i >= c["wqpfD"]: A(f"  s_waitcnt vmcnt({c['wqpfD']-1})")
                A(f"  global_load_dword v35, v4, {sp(sWQ)}")
                if i < 15: A("  v_add_u32 v4, 8192, v4")
            A(f"{l}:")
        l = self.lab("nononce")
        A(f"  s_cmp_lg_u32 s2, 0\n  s_cbranch_scc1 {l}\n  s_cmp_lg_u32 s{sHW}, 1\n  s_cbranch_scc1 {l}")
        A(f"  s_memrealtime s[42:43]\n  s_waitcnt lgkmcnt(0)\n  s_or_b32 s42, s42, 1\n  v_mov_b32 v6, s42")
        self.exec1(); A(f"  global_store_dword v{vZ}, v6, {sp(sDBG)} offset:128 sc1"); self.execall()
        A(f"{l}:")
        A("  s_barrier")
        abl = c["abl"]
        if abl is not None:
            if "init" in abl: self.init_duty(11)
            l = self.lab("abl")
            A(f"  s_cmp_lg_u32 s{sHW}, 0\n  s_cbranch_scc1 {l}")
            self.lds_inc(F_Q2); self.lds_inc(F_C)
            if "h0l" in abl:
                A(f"  v_and_b32 v5, 7, v{vJ}\n  v_lshrrev_b32 v6, 3, v{vJ}\n  v_lshl_add_u32 v7, v{vG}, 1, v6\n  v_lshlrev_b32 v7, 4, v7\n  v_lshl_add_u32 v7, v5, 10, v7")
                if "nox" not in abl:
                    for i in range(8): A(f"  global_load_dwordx4 {vq(40+4*i)}, v7, {sp(sX)} offset:{128*i} nt")
                A(f"  s_mov_b32 s{SRDB}, s{sWQ}\n  s_mov_b32 s{SRDB+1}, s{sWQ+1}\n  s_mov_b32 s{SRDB+2}, 4194304\n  s_mov_b32 s{SRDB+3}, 0x20000")
                A(f"  v_lshlrev_b32 v7, 4, v{vJ}\n  v_lshl_add_u32 v7, v{vG}, 16, v7")
                A(f"  s_lshl_b32 s41, s{sB}, 19\n  s_lshl_b32 s60, s{sH}, 8\n  s_add_u32 s41, s41, s60")
                for i in range(0 if "nowq" in abl else 16):
                    A(f"  s_waitcnt vmcnt({c['ablD']})")
                    A(f"  buffer_load_dwordx4 {vq(104+4*i)}, v7, {sq(SRDB)}, s41 offen nt")
                    if i < 15: A(f"  s_add_u32 s41, s41, {8192 if i != 7 else 8192*25}")
                A("  s_waitcnt vmcnt(0)")
            if "poll" in abl:
                lp = self.lab("ablp")
                self.exec1()
                A(f"  s_mov_b32 s65, 12\n{lp}:\n  global_load_dwordx2 v[24:25], v{vZ}, {sp(sDBG)} offset:128 sc1\n  s_waitcnt vmcnt(0)\n  s_sleep {c['poll_sleep']}\n s_sub_u32 s65, s65, 1\n s_cmp_lg_u32 s65, 0\n s_cbranch_scc1 {lp}")
                self.execall()
            A(f"{l}:")
            if "wqr" in abl:
                A(f"  s_mov_b32 s{SRDA}, s{sWQ}\n  s_mov_b32 s{SRDA+1}, s{sWQ+1}\n  s_mov_b32 s{SRDA+2}, 4194304\n  s_mov_b32 s{SRDA+3}, 0x20000")
                sh, steps_ = self.wq_pattern()
                A(f"  v_lshlrev_b32 v4, 4, v{vJ}\n  v_lshl_add_u32 v4, v{vG}, {sh}, v4")
                A(f"  s_lshl_b32 s40, s{sHW}, 20\n  s_xor_b32 s60, s{sH}, {c['wqx']}\n  s_lshl_b32 s60, s60, 8\n  s_add_u32 s40, s40, s60")
                self.wload32(SRDA, steps_, c["HDO"], frac=c["HDOf"], fl=c["wqfl"])
                self.stamp(5)
            if "wqh" in abl:
                lq = self.lab("noq")
                A(f"  s_cmp_ge_u32 s{sB}, 4\n  s_cbranch_scc1 {lq}")
                A(f"  s_mov_b32 s{SRDA}, s{sWQ}\n  s_mov_b32 s{SRDA+1}, s{sWQ+1}\n  s_mov_b32 s{SRDA+2}, 4194304\n  s_mov_b32 s{SRDA+3}, 0x20000")
                A(f"  v_lshlrev_b32 v4, 4, v{vJ}\n  v_lshl_add_u32 v4, v{vG}, 17, v4")
                A(f"  s_lshl_b32 s40, s{sHW}, 19\n  s_and_b32 s60, s{sB}, 1\n  s_lshl_b32 s60, s60, 21\n  s_add_u32 s40, s40, s60\n  s_lshl_b32 s60, s{sH}, 8\n  s_add_u32 s40, s40, s60")
                for i in range(16):
                    if i >= c["HD"]: A(f"  s_waitcnt vmcnt({c['HD']-1})")
                    A(f"  buffer_load_dwordx4 {vq(104+4*i)}, v4, {sq(SRDA)}, s40 offen\n  s_add_u32 s40, s40, 8192")
                self.stamp(5)
                A(f"{lq}:")
            if "wqp" in abl:
                lq = self.lab("noq")
                A(f"  s_cmp_lt_u32 s57, 48\n  s_cbranch_scc1 {lq}")
                sh, steps_ = self.wq_pattern()
                A(f"  s_mov_b32 s{SRDA}, s{sWQ}\n  s_mov_b32 s{SRDA+1}, s{sWQ+1}\n  s_mov_b32 s{SRDA+2}, 4194304\n  s_mov_b32 s{SRDA+3}, 0x20000")
                A(f"  v_lshlrev_b32 v4, 4, v{vJ}\n  v_lshl_add_u32 v4, v{vG}, {sh}, v4")
                A(f"  s_lshl_b32 s40, s{sHW}, 20\n  s_lshl_b32 s60, s{sH}, 8\n  s_add_u32 s40, s40, s60")
                self.wload32(SRDA, steps_, c["HD"], frac=c["HDf"], fl=c["wqfl"])
                self.stamp(5)
                A(f"{lq}:")
            if "wo" in abl:
                A(f"  s_mov_b32 s{SRDA}, s{sWO}\n  s_mov_b32 s{SRDA+1}, s{sWO+1}\n  s_mov_b32 s{SRDA+2}, 4194304\n  s_mov_b32 s{SRDA+3}, 0x20000")
                A(f"  v_lshlrev_b32 v4, 4, v{vJ}\n  v_lshl_add_u32 v4, v{vG}, 13, v4")
                A(f"  s_lshl_b32 s40, s{sH}, 17\n  s_lshl_b32 s60, s{sHW}, 8\n  s_add_u32 s40, s40, s60")
                self.wload32(SRDA, [1024 if i % 8 < 7 else 1024 * 25 for i in range(32)], c["HDO"], frac=c["HDOf"])
                self.stamp(6)
            A("  s_branch L_exit")
        A(f"  s_mov_b32 s{SRDA}, s{sWQ}\n  s_mov_b32 s{SRDA+1}, s{sWQ+1}\n  s_mov_b32 s{SRDA+2}, 4194304\n  s_mov_b32 s{SRDA+3}, 0x20000")
        sh, steps = self.wq_pattern()
        A(f"  v_lshlrev_b32 v4, 4, v{vJ}\n  v_lshl_add_u32 v4, v{vG}, {sh}, v4")
        A(f"  s_lshl_b32 s40, s{sHW}, 20\n  s_lshl_b32 s60, s{sH}, 8\n  s_add_u32 s40, s40, s60")
        A(f"  s_cmp_lt_u32 s57, 48\n  s_cbranch_scc1 L_prodh")
        A(f"  s_cmp_eq_u32 s57, 64\n  s_cselect_b32 s45, 3, 0")
        A(f"  s_cmp_gt_u32 s{sHW}, s45\n  s_cbranch_scc1 L_wq123")
        A(f"  s_lshl_b32 s46, s{sHW}, 1\n  s_add_u32 s46, s46, s{sB}\n  s_lshl_b32 s47, s{sHW}, 10")
        A(f"  s_lshl_b32 s60, s46, 10\n  v_add_u32 v36, s60, v{vL16}\n  global_load_dwordx4 {vq(28)}, v36, {sp(sX)}")
        A(f"  s_mul_i32 s60, s46, 6144\n  s_add_u32 s60, s60, {WS_MOD}\n  v_add_u32 v36, s60, v{vL16}")
        A(f"  s_lshl_b32 s60, s46, 8\n  s_add_u32 s60, s60, {WS_MARK}\n  v_lshrrev_b32 v37, 3, v{vLANE}\n  v_lshl_add_u32 v37, v37, 2, s60")
        HD = c["HD"]
        def ln():
            self.unpack8(28, 8); self.layernorm(8, 16, 24)
            A(f"  s_load_dword s44, {sp(sDBG)}, 0x80")
        def gather():
            l = self.lab("pollHN"); d = self.lab("gotHN")
            A(f"  s_waitcnt lgkmcnt(0)\n{l}:\n  s_cmp_lg_u32 s44, 0\n  s_cbranch_scc1 {d}")
            self.guard()
            A(f"  s_load_dword s44, {sp(sDBG)}, 0x80 glc\n  s_waitcnt lgkmcnt(0)\n  s_branch {l}\n{d}:")
            self.stamp(1)
            self.h0_issue("")
            A(f"  v_mov_b32 v26, s44\n  ds_write_b32 v{vZ}, v26 offset:{F_N}")
        self.wload32(SRDA, steps, HD, frac=c["HDf"], hooks={HD + 3: ln, c["P0"]: gather, c["P0"] + HD: self.h0_finish}, fl=c["wqfl"])
        A("  s_branch L_q")
        A("L_wq123:")
        l = self.lab("nozero")
        A(f"  s_cmp_lg_u32 s{sHW}, 3\n  s_cbranch_scc1 {l}\n  s_cmp_lt_u32 s57, 256\n  s_cbranch_scc1 {l}\n  s_cmp_ge_u32 s57, {256+8}\n  s_cbranch_scc1 {l}")
        A("  v_mov_b32 v12, 0\n  v_mov_b32 v13, 0\n  v_mov_b32 v14, 0\n  v_mov_b32 v15, 0")
        A(f"  s_sub_u32 s61, s57, 256\n  s_lshl_b32 s60, s61, 12\n  s_add_u32 s60, s60, {WS_ACC}\n  v_add_u32 v5, s60, v{vL16}")
        for i in range(4): A(f"  global_store_dwordx4 v5, {vq(12)}, {sp(sWS)} offset:{1024*i} sc1")
        A(f"{l}:")
        def ticket():
            l = self.lab("notick"); lp = self.lab("pollZN"); d = self.lab("gotZN")
            A(f"  s_cmp_lg_u32 s{sHW}, 3\n  s_cbranch_scc1 {l}\n  s_cmp_lt_u32 s57, 256\n  s_cbranch_scc1 {l}\n  s_cmp_ge_u32 s57, {256+8}\n  s_cbranch_scc1 {l}")
            A(f"  s_mov_b32 s65, 1\n  s_atomic_add s65, {sp(sDBG)}, 0x8 glc\n  s_waitcnt lgkmcnt(0)\n  s_cmp_lg_u32 s65, 7\n  s_cbranch_scc1 {l}")
            A(f"{lp}:\n  s_load_dword s44, {sp(sDBG)}, 0x80 glc\n  s_waitcnt lgkmcnt(0)\n  s_cmp_lg_u32 s44, 0\n  s_cbranch_scc1 {d}")
            self.guard()
            A(f"  s_branch {lp}\n{d}:\n  v_mov_b32 v7, s44")
            self.exec1(); A(f"  global_store_dword v{vZ}, v7, {sp(sDBG)} offset:136 sc1"); self.execall()
            A(f"{l}:")
        self.wload32(SRDA, steps, HD, frac=c["HDf"], hooks={HD + 2: ticket}, fl=c["wqfl"])
        A("L_q:")
        self.stamp(4)
        A("  s_add_u32 s61, s45, 1")
        self.lds_spin(F_H, "s61", 7)
        p32 = c["wqpat"] == 32
        A(f"  s_lshl_b32 s60, s{sHW}, 8\n  v_lshl_add_u32 v4, v{vG}, {6 if p32 else 4}, s60\n  v_and_b32 v5, s45, v{vJ}\n  v_lshl_add_u32 v4, v5, 10, v4")
        for m in range(4): A(f"  ds_read_b128 {vq(8+4*m)}, v4 offset:{L_HBUF + (16 if p32 else 64)*m}")
        A(f"  ds_read_b32 v7, v{vZ} offset:{F_N}")
        A(f"  s_lshl_b32 s60, s{sHW}, 11\n  v_lshl_add_u32 v5, v{vJ}, 5, s60\n  v_add_u32 v5, {L_QP}, v5")
        A(f"  s_mov_b32 s{SRDA}, s{sWO}\n  s_mov_b32 s{SRDA+1}, s{sWO+1}\n  s_mov_b32 s{SRDA+2}, 4194304\n  s_mov_b32 s{SRDA+3}, 0x20000")
        A(f"  s_lshl_b32 s40, s{sH}, 17\n  s_lshl_b32 s60, s{sHW}, 8\n  s_add_u32 s40, s40, s60")
        A("  s_waitcnt lgkmcnt(0)")
        A(f"  v_readfirstlane_b32 s44, v7\n  v_lshlrev_b32 v4, 4, v{vJ}\n  v_lshl_add_u32 v4, v{vG}, 13, v4")
        res = self.gemv32()
        A("  s_mov_b64 exec, 0xffff")
        for cc in range(0, 8, 2):
            A(f"  ds_write2_b32 v5, v{res[cc]}, v{res[cc+1]} offset0:{cc} offset1:{cc+1}")
        l = self.lab("onerow")
        A(f"  s_cmp_eq_u32 s45, 0\n  s_cbranch_scc1 {l}")
        for r in range(1, 4):
            A(f"  v_add_u32 v5, 512, v5")
            for cc in range(0, 8, 2):
                A(f"  ds_write2_b32 v5, v{res[cc]+r}, v{res[cc+1]+r} offset0:{cc} offset1:{cc+1}")
        A(f"{l}:")
        self.exec1()
        A(f"  ds_add_rtn_u32 v7, v{vZ}, v{vONE} offset:{F_Q}\n  s_waitcnt lgkmcnt(0)\n  v_readfirstlane_b32 s60, v7")
        self.execall()
        l = self.lab("notlastq")
        A(f"  s_cmp_lg_u32 s60, 3\n  s_cbranch_scc1 {l}")
        A(f"  v_lshlrev_b32 v6, 3, v{vLANE}")
        for part in range(4): A(f"  ds_read_b64 {vp(8+2*part)}, v6 offset:{L_QP + 2048*part}")
        A(f"  s_lshl_b32 s60, s2, 9\n  s_add_u32 s60, s60, {WS_QIN}\n  v_add_u32 v7, s60, v6")
        A(f"  v_lshlrev_b32 v5, 2, v{vLANE}\n  s_waitcnt lgkmcnt(0)")
        A("  v_add_f32 v8, v8, v10\n  v_add_f32 v9, v9, v11\n  v_add_f32 v12, v12, v14\n  v_add_f32 v13, v13, v15\n  v_add_f32 v8, v8, v12\n  v_add_f32 v9, v9, v13")
        A(f"  v_cvt_pk_bf16_f32 v8, v8, v9\n  ds_write_b32 v5, v8 offset:{L_QB}")
        l2 = self.lab("nodon")
        A(f"  s_cmp_eq_u32 s45, 0\n  s_cbranch_scc1 {l2}")
        for r in range(1, 4):
            for part in range(4): A(f"  ds_read_b64 {vp(16+2*part)}, v6 offset:{L_QP + 2048*part + 512*r}")
            A(f"  v_add_u32 v7, {64*512}, v7\n  s_waitcnt lgkmcnt(0)")
            A("  v_add_f32 v16, v16, v18\n  v_add_f32 v17, v17, v19\n  v_add_f32 v20, v20, v22\n  v_add_f32 v21, v21, v23\n  v_add_f32 v16, v16, v20\n  v_add_f32 v17, v17, v21")
            A(f"  v_cvt_pk_bf16_f32 v{24+2*r}, v16, v17\n  v_mov_b32 v{25+2*r}, s44\n  global_store_dwordx2 v7, {vp(24+2*r)}, {sp(sWS)} sc1")
        A(f"{l2}:")
        self.lds_inc(F_Q2)
        self.dumpv(8, 1, 0x80000, 2, 256)
        A(f"{l}:")
        self.stamp(5)
        steps = [1024 if i % 8 < 7 else 1024 * 25 for i in range(32)]
        def chkB():
            l0 = self.lab("noB")
            A(f"  s_cmp_lg_u32 s{sHW}, 1\n  s_cbranch_scc1 {l0}")
            if "B" not in c["xskip"]: self.get_flag(7, 136, 45, expect="s44")
            self.lds_inc(F_C)
            A(f"{l0}:")
        def rowloads(fl):
            for i in range(4): A(f"  global_load_dwordx4 {vq(12+4*i)}, v36, {sp(sWS)} offset:{1024*i}{fl}")
            for i in range(4): A(f"  global_load_dword v{28+i}, v37, {sp(sWS)} offset:{32*i}{fl}")
        def rows_a():
            if "R" in c["xskip"]: return
            l = self.lab("norows")
            A(f"  s_cmp_ge_u32 s{sHW}, 2\n  s_cbranch_scc1 {l}\n  s_cmp_eq_u32 s{sFFN}, 0\n  s_cbranch_scc1 {l}")
            A(f"  s_lshl_b32 s41, s{sJ}, 1\n  s_add_u32 s41, s41, s{sHW}")
            A(f"  s_mul_i32 s60, s41, 6144\n  s_add_u32 s60, s60, {WS_MOD + 2048}\n  v_add_u32 v36, s60, v{vL16}")
            A(f"  s_lshl_b32 s60, s41, 8\n  s_add_u32 s60, s60, {WS_MARK + 64}\n  v_lshrrev_b32 v37, 3, v{vLANE}\n  v_lshl_add_u32 v37, v37, 2, s60")
            rowloads("")
            A(f"  s_lshl_b32 s60, s41, 10\n  v_add_u32 v7, s60, v{vL16}\n  global_load_dwordx4 {vq(8)}, v7, {sp(sX)}")
            A(f"{l}:")
        def rows_b():
            if "R" in c["xskip"]: return
            l = self.lab("norows2")
            A(f"  s_cmp_ge_u32 s{sHW}, 2\n  s_cbranch_scc1 {l}\n  s_cmp_eq_u32 s{sFFN}, 0\n  s_cbranch_scc1 {l}")
            lr = self.lab("chkR"); dr = self.lab("gotR")
            A(f"{lr}:")
            self.check_lines([12, 16, 20, 24], [28, 29, 30, 31], 32)
            A(f"  s_cbranch_vccz {dr}")
            self.guard()
            rowloads(" sc1")
            A(f"  s_waitcnt vmcnt(0)\n  s_branch {lr}\n{dr}:")
            self.unpack8(20, 28)
            for i in range(8): A(f"  v_add_f32 v{28+i}, 1.0, v{28+i}")
            for i in range(4): A(f"  v_cvt_pk_bf16_f32 v{20+i}, v{28+2*i}, v{29+2*i}")
            self.lds_spin(F_Q2, 1, 7)
            A(f"  s_mul_i32 s60, s{sHW}, 5120\n  v_add_u32 v36, s60, v{vL16}")
            for i in range(5): A(f"  ds_write_b128 v36, {vq(8+4*i)} offset:{L_ROWS + 1024*i}")
            A(f"{l}:")
        self.wload32(SRDA, steps, c["HDO"], frac=c["HDOf"], hooks={c["PB"]: chkB, c["PR"]: rows_a, c["PR"] + c["HDO"]: rows_b})
        A("  s_branch L_wo")
        A("L_prodh:")
        A(f"  s_mov_b32 s{SRDA}, s{sWO}\n  s_mov_b32 s{SRDA+1}, s{sWO+1}\n  s_mov_b32 s{SRDA+2}, 4194304\n  s_mov_b32 s{SRDA+3}, 0x20000")
        A(f"  s_lshl_b32 s40, s{sH}, 17\n  s_lshl_b32 s60, s{sHW}, 8\n  s_add_u32 s40, s40, s60")
        A(f"  v_lshlrev_b32 v4, 4, v{vJ}\n  v_lshl_add_u32 v4, v{vG}, 13, v4")
        def recvq():
            l0 = self.lab("noq"); l = self.lab("pollPN"); d = self.lab("gotPN"); lq = self.lab("pollPQ"); dq = self.lab("gotPQ")
            A(f"  s_cmp_lg_u32 s{sHW}, 0\n  s_cbranch_scc1 {l0}")
            A(f"  s_load_dword s44, {sp(sDBG)}, 0x80\n  s_waitcnt lgkmcnt(0)\n{l}:\n  s_cmp_lg_u32 s44, 0\n  s_cbranch_scc1 {d}")
            self.guard()
            A(f"  s_load_dword s44, {sp(sDBG)}, 0x80 glc\n  s_waitcnt lgkmcnt(0)\n  s_branch {l}\n{d}:")
            A(f"  v_mov_b32 v26, s44\n  ds_write_b32 v{vZ}, v26 offset:{F_N}")
            A(f"  s_lshl_b32 s60, s2, 9\n  s_add_u32 s60, s60, {WS_QIN}\n  v_lshl_add_u32 v7, v{vLANE}, 3, s60\n  s_add_u32 s61, s60, 4")
            if "PQ" in c["xskip"]: A(f"  s_branch {dq}")
            A(f"{lq}:\n  s_load_dword s60, {sp(sWS)}, s61 glc\n  s_waitcnt lgkmcnt(0)\n  s_cmp_eq_u32 s60, s44\n  s_cbranch_scc0 {lq}_r")
            A(f"  global_load_dwordx2 v[8:9], v7, {sp(sWS)} sc1\n  s_waitcnt vmcnt(0)\n  v_cmp_ne_u32 vcc, s44, v9\n  s_cbranch_vccz {dq}")
            A(f"{lq}_r:")
            self.guard()
            A(f"  s_sleep {c['q_sleep']}\n  s_branch {lq}\n{dq}:")
            A(f"  v_lshlrev_b32 v7, 2, v{vLANE}\n  ds_write_b32 v7, v8 offset:{L_QB}")
            self.lds_inc(F_Q2)
            self.stamp(5)
            self.dumpv(8, 1, 0x80000, 2, 256)
            self.get_flag(7, 136, 45, expect="s44")
            self.lds_inc(F_C)
            A(f"{l0}:")
        self.wload32(SRDA, steps, c["HDP"], frac=c["HDPf"], hooks={c["PQ"]: recvq})
        self.lds_spin(F_Q2, 1, 7, sleep=4)
        A(f"  ds_read_b32 v7, v{vZ} offset:{F_N}\n  s_waitcnt lgkmcnt(0)\n  v_readfirstlane_b32 s44, v7")
        A("L_wo:")
        A("L_wodone:")
        if c["hprio"]: A(f"  s_setprio {c['hprio']}")
        if c["pref2"] and "T" not in c["xskip"]:
            self.prefetch(wait=True)
        self.lds_spin(F_C, 1, 7, sleep=4)
        A(f"  v_lshlrev_b32 v28, {5 if c['oadd'] else 3}, v{vG if c['oadd'] else vLANE}")
        A(f"  s_lshl_b32 s60, s{sHW}, 8\n  v_lshl_add_u32 v29, v{vLANE}, 2, s60\n  v_lshl_add_u32 v30, v{vG}, 4, s60")
        A(f"  v_lshrrev_b32 v31, 2, v{vLANE}\n  v_and_b32 v32, 3, v{vLANE}\n  v_lshl_add_u32 v31, v32, 4, v31\n  v_lshlrev_b32 v36, 2, v31")
        A(f"  s_lshl_b32 s61, s{sB}, 12\n  s_add_u32 s61, s61, {WS_ACC}\n  v_add_u32 v32, s61, v29")
        A(f"  v_mov_b32 v33, 1.0\n  v_mov_b32 v34, 1.0\n  v_mov_b32 v35, 1.0\n  v_mov_b32_dpp v35, v{vZ} quad_perm:[0,1,2,3] row_mask:0x4 bank_mask:0xf")
        self.stamp(6)
        if "T" in c["xskip"]: A("  s_branch L_exit")
        if c["dryo"]:
            l = self.lab("nodryo")
            A(f"  s_cmp_lg_u32 s{sHW}, 3\n  s_cbranch_scc1 {l}\n  s_mov_b64 exec, 0\n  s_branch L_dry_o\nL_dry_oend:\n  s_mov_b64 exec, -1\n{l}:")
        self.lds_spin(F_O, 8, 7, sleep=c['o_sleep'])
        self.stamp(9)
        A("L_dry_o:")
        if c["oadd"]:
            rd = lambda q, off: A(f"  ds_read_b128 {vq(q)}, v28 offset:{L_OP + off}")
            rd(12, 0); rd(16, 16); rd(20, 128); rd(24, 144); rd(4, 256)
            A(f"  s_waitcnt lgkmcnt(3)")
            for i in range(4): A(f"  v_cvt_pk_bf16_f32 v{8+i}, v{12+2*i}, v{13+2*i}")
            A(f"  s_waitcnt lgkmcnt(1)")
            for i in range(4): A(f"  v_cvt_pk_bf16_f32 v{12+i}, v{20+2*i}, v{21+2*i}")
            rd(16, 272); rd(20, 384); rd(24, 400)
            self.stamp(10)
            res = [28] + [40 + 4 * k for k in range(7)]
            for m, Am in enumerate((8, 12, 4, 16)):
                for cc in range(8):
                    A(f"  v_mfma_f32_16x16x32_bf16 {vq(res[cc])}, {vq(Am)}, {vq(40+32*m+4*cc)}, {'0' if m == 0 else vq(res[cc])}")
                    if m == 0 and cc == 5:
                        A(f"  s_waitcnt lgkmcnt(0)")
                        A("  v_cvt_pk_bf16_f32 v4, v4, v5\n  v_cvt_pk_bf16_f32 v5, v6, v7\n  v_cvt_pk_bf16_f32 v6, v16, v17\n  v_cvt_pk_bf16_f32 v7, v18, v19")
                    if m == 1 and cc == 1:
                        for i in range(4): A(f"  v_cvt_pk_bf16_f32 v{16+i}, v{20+2*i}, v{21+2*i}")
        else:
            for part in range(8): A(f"  ds_read_b64 {vp(8+2*part)}, v28 offset:{L_OP + 512*part}")
            A("  s_waitcnt lgkmcnt(4)")
            A("  v_add_f32 v8, v8, v10\n  v_add_f32 v9, v9, v11\n  v_add_f32 v12, v12, v14\n  v_add_f32 v13, v13, v15\n  v_add_f32 v8, v8, v12\n  v_add_f32 v9, v9, v13")
            A("  s_waitcnt lgkmcnt(0)")
            A("  v_add_f32 v16, v16, v18\n  v_add_f32 v17, v17, v19\n  v_add_f32 v20, v20, v22\n  v_add_f32 v21, v21, v23\n  v_add_f32 v16, v16, v20\n  v_add_f32 v17, v17, v21")
            A(f"  v_add_f32 v8, v8, v16\n  v_add_f32 v9, v9, v17\n  v_cvt_pk_bf16_f32 v7, v8, v9\n  ds_write_b32 v29, v7 offset:{L_OB}")
            for m in range(4): A(f"  ds_read_b128 {vq(8+4*m)}, v30 offset:{L_OB + 64*m}")
            A("  s_waitcnt lgkmcnt(0)")
            self.stamp(10)
            if c["dryo"]: A("  s_cbranch_execz L_dry_o2")
            res = self.gemv32()
            A("L_dry_o2:")
        self.stamp(11)
        for g in range(3):
            for k in range(3):
                if 3 * k + g < 8:
                    A(f"  v_mov_b32_dpp v{33+k}, v{res[3*k+g]} quad_perm:[0,1,2,3] row_mask:{1<<g:#x} bank_mask:0xf")
        for k in range(3): A(f"  ds_bpermute_b32 v{33+k}, v36, v{33+k}")
        if c["dryo"]: A("  s_cbranch_execz L_dry_oend")
        for k in range(3):
            A(f"  s_waitcnt lgkmcnt({2-k})\n  global_atomic_add_f32 v32, v{33+k}, {sp(sWS)} offset:{1024*k}")
        if c["gate"] or c["early"]:
            l = self.lab("g01")
            A(f"  s_cmp_lt_u32 s{sHW}, 2\n  s_cbranch_scc1 {l}")
            self.lds_inc(F_A)
            A(f"{l}:")
        else:
            self.lds_inc(F_A)
        self.stamp(7)
        if c["dump"] and not c["oadd"]:
            l = self.lab("nodumpo")
            A(f"  s_cmp_lg_u32 s{sHW}, 3\n  s_cbranch_scc1 {l}")
            self.dumpv(7, 1, 0x90000, 2, 256)
            A(f"{l}:")
        if c["dry"]:
            l = self.lab("nodry"); l2 = self.lab("dryf")
            A(f"  s_cmp_lg_u32 s{sHW}, 2\n  s_cbranch_scc1 {l}\n  s_cmp_lg_u32 s{sFFN}, 0\n  s_cbranch_scc1 {l2}\n  s_cmp_ge_u32 s57, 100\n  s_cbranch_scc1 L_exit")
            A(f"  s_mov_b64 exec, 0\n  s_branch L_dry_r\n{l2}:\n  s_mov_b64 exec, 0\n  s_branch L_dry_l\n{l}:")
        A(f"  s_cmp_ge_u32 s{sHW}, 2\n  s_cbranch_scc1 L_exit\n  s_cmp_lt_u32 s57, 100\n  s_cbranch_scc1 L_recv\n  s_cmp_eq_u32 s{sFFN}, 0\n  s_cbranch_scc1 L_exit")
        A(f"  s_lshl_b32 s45, s{sJ}, 1\n  s_add_u32 s45, s45, s{sHW}\n  s_lshl_b32 s45, s45, 6\n  s_add_u32 s45, s45, s{sSL}\n  s_lshl_b32 s45, s45, 7\n  s_add_u32 s45, s45, {WS_HINT}")
        if c["gate"]: A(f"  s_load_dword s61, {sp(sWS)}, s45 glc")
        if c["early"]: A(f"  s_lshl_b32 s60, s{sHW}, 2\n  v_mov_b32 v7, s60\n  ds_read_b32 v7, v7 offset:{F_HS}")
        A(f"  s_mul_i32 s60, s{sHW}, 5120\n  v_add_u32 v4, s60, v{vL16}")
        for i in range(4): A(f"  ds_read_b128 {vq(72+4*i)}, v4 offset:{L_ROWS + 1024*i}")
        A(f"  s_lshl_b32 s41, s{sJ}, 1\n  s_add_u32 s41, s41, s{sHW}\n  s_lshl_b32 s41, s41, 12\n  s_add_u32 s41, s41, {WS_ACC}\n  v_add_u32 v5, s41, v{vL16}\n  v_mov_b32 v6, s41")
        A(f"  s_lshl_b32 s60, s{sHW}, 10\n  v_add_u32 v4, s60, v{vL16}")
        A("  s_waitcnt lgkmcnt(0)")
        if c["early"]:
            le = self.lab("notlate"); lj0 = self.lab("lj")
            A(f"  v_readfirstlane_b32 s61, v7\n  s_cmp_eq_u32 s61, s44\n  s_cbranch_scc1 {le}")
            self.lds_inc(F_A)
            A(f"{le}:")
        self.unpack8(72, 88); self.unpack8(76, 96); self.unpack8(80, 104); self.unpack8(84, 112)
        if c["early"]:
            le2 = self.lab("notlate2")
            A(f"  s_cmp_lg_u32 s61, s44\n  s_cbranch_scc1 {le2}")
            if c["late_delay"]: A(f"  s_sleep {c['late_delay']}")
            for k in range(3): A(f"  global_load_dwordx4 {vq(120+4*k)}, v5, {sp(sWS)} offset:{1024*k} sc1")
            self.lds_inc(F_A)
            self.stamp(1); self.cstamp(13)
            A(f"  s_branch {lj0}\n{le2}:")
        lp = self.lab("pollH"); ld = self.lab("gotH")
        if c["gate"]:
            lg = self.lab("late")
            A(f"  s_cmp_eq_u32 s61, s44\n  s_cbranch_scc1 {lg}")
            self.lds_inc(F_A)
        A(f"{lp}:\n  s_load_dword s60, {sp(sWS)}, s45 glc\n  s_waitcnt lgkmcnt(0)\n  s_cmp_eq_u32 s60, s44\n  s_cbranch_scc1 {ld}")
        self.guard()
        if c["hint_sleep"]: A(f"  s_sleep {c['hint_sleep']}")
        A(f"  s_branch {lp}\n{ld}:")
        if c["read_delay"]: A(f"  s_sleep {c['read_delay']}")
        if c["gate"]:
            for k in range(3): A(f"  global_load_dwordx4 {vq(120+4*k)}, v5, {sp(sWS)} offset:{1024*k} sc1")
            lj = self.lab("gj")
            A(f"  s_branch {lj}\n{lg}:")
            for k in range(3): A(f"  global_load_dwordx4 {vq(120+4*k)}, v5, {sp(sWS)} offset:{1024*k} sc1")
            self.lds_inc(F_A)
            A(f"{lj}:")
        self.stamp(1)
        self.cstamp(13)
        lp = self.lab("pollF"); ld = self.lab("gotF")
        if not c["gate"]:
            for k in range(3): A(f"  global_load_dwordx4 {vq(120+4*k)}, v5, {sp(sWS)} offset:{1024*k} sc1")
        if c["early"]: A(f"{lj0}:")
        self.lds_inc(F_R)
        A(f"{lp}:")
        A("  s_waitcnt vmcnt(0)\n  v_min3_f32 v7, v123, v127, v131\n  v_cmp_neq_f32 vcc, 0x42000000, v7")
        A(f"  s_cbranch_vccz {ld}")
        self.guard()
        if c["full_sleep"]: A(f"  s_sleep {c['full_sleep']}")
        for k in range(3): A(f"  global_load_dwordx4 {vq(120+4*k)}, v5, {sp(sWS)} offset:{1024*k} sc1")
        A(f"  s_branch {lp}\n{ld}:")
        self.stamp(2)
        self.cstamp(15)
        A("L_dry_l:")
        src = [120, 121, 122, 124, 125, 126, 128, 129]
        for i in range(4): A(f"  v_cvt_pk_bf16_f32 v{16+i}, v{src[2*i]}, v{src[2*i+1]}")
        self.unpack8(16, 8)
        self.pk8("mul", 8, 96, 8)
        self.rnd8(8, 16)
        self.pk8("add", 8, 88, 8)
        for i in range(4): A(f"  v_cvt_pk_bf16_f32 v{28+i}, v{8+2*i}, v{9+2*i}")
        self.unpack8(28, 8)
        self.layernorm(8, 16, 24)
        self.pk8("mul", 8, 8, 112)
        self.rnd8(8, 16)
        self.pk8("add", 8, 8, 104)
        for i in range(4): A(f"  v_cvt_pk_bf16_f32 v{24+i}, v{8+2*i}, v{9+2*i}")
        A(f"  ds_write_b128 v4, {vq(24)} offset:{L_H2}\n  ds_write_b128 v4, {vq(28)} offset:{L_X1}\n  s_waitcnt lgkmcnt(0)")
        if c["dry"]: A("  s_cbranch_execz L_dry_red")
        self.stamp(3)
        A("  s_barrier")
        if c["dump"]:
            A(f"  s_lshl_b32 s69, s2, 1\n  s_add_u32 s69, s69, s{sHW}")
            self.dumpv(24, 4, 0x600000, 69, 1024)
        A(f"  s_cmp_eq_u32 s{sHW}, 0\n  s_cbranch_scc1 L_reducer")
        A(f"  s_cmp_ge_u32 s{sSL}, 32\n  s_cbranch_scc1 {'L_h1bar' if c['stamps'] else 'L_exit'}")
        A(f"  s_lshr_b32 s60, s{sSL}, 2\n  s_lshl_b32 s60, s60, 7\n  s_and_b32 s61, s{sSL}, 3\n  s_lshl_b32 s61, s61, 1\n  s_add_u32 s60, s60, s61\n  v_lshl_add_u32 v4, v{vJ}, 3, s60")
        A(f"  ds_read_u16 v8, v4 offset:{L_X1}\n  ds_read_u16 v9, v4 offset:{L_ROWS + 4096}\n  ds_read_u16 v12, v4 offset:{L_X1 + 1024}\n  ds_read_u16 v13, v4 offset:{L_ROWS + 4096 + 5120}")
        A(f"  s_lshl_b32 s60, s{sJ}, 5\n  s_add_u32 s60, s60, s{sSL}\n  s_mul_i32 s60, s60, {INB}\n  s_add_u32 s60, s60, {WS_INBOX + 43*256}\n  v_lshl_add_u32 v5, v{vJ}, 4, s60")
        A(f"  s_xor_b32 s45, s44, {TAGX:#x}\n  v_mov_b32 v10, s44\n  v_mov_b32 v11, s45\n  s_mov_b64 exec, 0xffff\n  s_waitcnt lgkmcnt(0)\n  v_lshl_or_b32 v8, v12, 16, v8\n  v_lshl_or_b32 v9, v13, 16, v9")
        A(f"  global_store_dwordx4 v5, {vq(8)}, {sp(sWS)} sc1")
        A("L_h1bar:\n  s_barrier\n  s_barrier\n  s_branch L_exit2")
        A("L_recv:")
        A(f"  s_lshl_b32 s41, s{sB}, 3\n  s_add_u32 s41, s41, s{sXCD}\n  s_lshl_b32 s41, s41, 1\n  s_add_u32 s41, s41, s{sHW}")
        A(f"  s_mul_i32 s46, s41, {INB}\n  s_add_u32 s46, s46, {WS_INBOX}\n  s_add_u32 s47, s46, {43*256 + 8}\n  s_add_u32 s60, s46, 4096\n  v_add_u32 v5, s60, v{vL16}\n  v_add_u32 v7, 4096, v5")
        A(f"  s_lshr_b32 s60, s41, 5\n  s_lshl_b32 s60, s60, 11\n  s_bfe_u32 s61, s41, 0x30002\n  s_lshl_b32 s61, s61, 7\n  s_add_u32 s60, s60, s61\n  s_and_b32 s61, s41, 3\n  s_lshl_b32 s61, s61, 1\n  s_add_u32 s60, s60, s61")
        A(f"  v_and_b32 v4, 1, v{vG}\n  v_lshl_add_u32 v6, v{vJ}, 3, s60\n  v_lshl_add_u32 v6, v4, 10, v6\n  v_lshlrev_b32 v4, 4, v4\n  v_sub_u32 v4, 16, v4")
        A(f"  s_xor_b32 s45, s44, {TAGX:#x}")
        lp = self.lab("pollX"); ld = self.lab("gotX")
        A(f"{lp}:\n  s_load_dword s60, {sp(sWS)}, s47 glc\n  s_waitcnt lgkmcnt(0)\n  s_cmp_eq_u32 s60, s44\n  s_cbranch_scc1 {ld}")
        self.guard()
        A(f"  s_sleep {c['rx_sleep']}\n  s_branch {lp}\n{ld}:")
        self.stamp(1)
        if c["rx_delay"]: A(f"  s_sleep {c['rx_delay']}")
        lp = self.lab("pollI"); ld = self.lab("gotI")
        A(f"{lp}:")
        for i in range(11): A(f"  global_load_dwordx4 {vq(44+4*i)}, v{5 if i < 8 else 7}, {sp(sWS)} offset:{1024*i - (4096 if i < 8 else 8192)} sc1")
        A("L_dry_r:")
        for i in range(11):
            q = 44 + 4 * i
            A(f"  s_waitcnt vmcnt({10-i})")
            if i == 0:
                A(f"  v_xor_b32 v10, s44, v{q+2}\n  v_xor_b32 v11, s45, v{q+3}\n  v_mov_b32 v8, v{q}\n  v_mov_b32 v9, v{q+1}")
            else:
                A(f"  v_bitop3_b32 v10, v10, v{q+2}, s44 bitop3:0xf6\n  v_bitop3_b32 v11, v11, v{q+3}, s45 bitop3:0xf6")
                if i < 10: A(f"  v_add_f32 v8, v8, v{q}\n  v_add_f32 v9, v9, v{q+1}")
                else: A(f"  v_add_f32_dpp v8, v{q}, v8 quad_perm:[0,1,2,3] row_mask:0x7 bank_mask:0xf\n  v_add_f32_dpp v9, v{q+1}, v9 quad_perm:[0,1,2,3] row_mask:0x7 bank_mask:0xf")
        A(f"  v_or_b32 v10, v10, v11\n  v_cmp_ne_u32 vcc, 0, v10\n  s_cbranch_vccz {ld}")
        self.guard()
        A(f"  s_branch {lp}\n{ld}:")
        self.stamp(4); self.cstamp(15)
        if c["xdelay"]: A(f"  s_sleep {c['xdelay']}")
        A("  v_mov_b32 v12, v84\n  v_mov_b32 v13, v85\n  v_permlane16_swap_b32 v8, v9\n  v_permlane32_swap_b32 v12, v84\n  v_permlane32_swap_b32 v13, v85")
        A("  v_add_f32 v8, v8, v9\n  v_mov_b32 v12, v84\n  v_mov_b32 v13, v85\n  v_mov_b32 v9, v8")
        A("  v_permlane16_swap_b32 v12, v84\n  v_permlane16_swap_b32 v13, v85\n  v_permlane32_swap_b32 v9, v8")
        A("  v_lshlrev_b32 v84, v4, v84\n  v_lshlrev_b32 v85, v4, v85\n  v_add_f32 v8, v8, v9\n  v_and_b32 v84, 0xffff0000, v84\n  v_and_b32 v85, 0xffff0000, v85")
        self.rnd1(8, 9)
        A("  v_mul_f32 v8, v85, v8"); self.rnd1(8, 9)
        A("  v_add_f32 v8, v84, v8\n  v_cvt_pk_bf16_f32 v8, v8, v8")
        if c["dry"]: A("  s_cbranch_execz L_exit")
        A("  s_mov_b32 exec_hi, 0")
        A(f"  global_store_short v6, v8, {sp(sOUT)}{c['outfl']}")
        self.execall()
        self.stamp(5)
        A("  s_branch L_exit")
        A("L_reducer:")
        A(f"  v_lshlrev_b32 v4, 2, v{vLANE}\n  v_add_u32 v4, {L_GUP}, v4")
        A(f"  v_and_b32 v5, 1, v{vLANE}\n  v_lshlrev_b32 v5, 6, v5\n  v_and_b32 v6, 62, v{vLANE}\n  v_add_u32 v5, v5, v6")
        A("  s_barrier")
        A("L_dry_red:")
        for w in range(8): A(f"  ds_read2st64_b32 {vp(8+2*w)}, v4 offset0:{2*w} offset1:{2*w+1}")
        A("  s_waitcnt lgkmcnt(4)")
        A("  v_add_f32 v8, v8, v10\n  v_add_f32 v9, v9, v11\n  v_add_f32 v12, v12, v14\n  v_add_f32 v13, v13, v15\n  v_add_f32 v8, v8, v12\n  v_add_f32 v9, v9, v13")
        A("  s_waitcnt lgkmcnt(0)")
        A("  v_add_f32 v16, v16, v18\n  v_add_f32 v17, v17, v19\n  v_add_f32 v20, v20, v22\n  v_add_f32 v21, v21, v23\n  v_add_f32 v16, v16, v20\n  v_add_f32 v17, v17, v21")
        A("  v_add_f32 v8, v8, v16\n  v_add_f32 v9, v9, v17")
        self.rnd2(8, 9, 10)
        A(f"  v_mul_f32 v8, s{sLOG2E}, v8\n  v_exp_f32 v8, -v8\n  v_add_f32 v8, 1.0, v8\n  v_rcp_f32 v8, v8")
        self.rnd1(8, 10)
        A(f"  v_mul_f32 v8, v8, v9\n  v_cvt_pk_bf16_f32 v8, v8, v8\n  ds_write_b16 v5, v8 offset:{L_HH}\n  s_waitcnt lgkmcnt(0)")
        if c["dry"]: A("  s_cbranch_execz L_dry_s")
        A("  s_barrier")
        self.stamp(4)
        self.dumpv(8, 1, 0xE0000, 2, 256)
        A("  s_branch L_exit2")

    def build(self):
        A = self.A; c = self.c
        A(f"{KNAME}:")
        if c["stamps"]:
            for k in range(1, 16): A(f"  s_mov_b64 s[{70+2*k}:{71+2*k}], 0")
        self.stamp(0)
        A("  s_cmp_ge_u32 s2, 256\n  s_cbranch_scc1 L_end")
        A("  s_load_dwordx16 s[4:19], s[0:1], 0\n  s_load_dwordx8 s[20:27], s[0:1], 64\n  s_load_dwordx4 s[28:31], s[0:1], 96")
        A(f"  v_lshrrev_b32 v2, 6, v0\n  v_and_b32 v0, 63, v0\n  v_readfirstlane_b32 s{sWAVE}, v2")
        A(f"  v_lshlrev_b32 v{vL16}, 4, v0")
        A(f"  s_and_b32 s{sXCD}, s2, 7\n  s_lshr_b32 s{sIDX}, s2, 3\n  s_lshr_b32 s{sB}, s{sIDX}, 2\n  s_and_b32 s{sJ}, s{sIDX}, 3")
        if c["hmap"] == 0: A(f"  s_lshl_b32 s{sH}, s{sXCD}, 2\n  s_add_u32 s{sH}, s{sH}, s{sJ}")
        elif c["hmap"] == 1: A(f"  s_lshl_b32 s{sH}, s{sJ}, 3\n  s_add_u32 s{sH}, s{sH}, s{sXCD}")
        elif c["hmap"] == 2: A(f"  s_lshr_b32 s{sH}, s{sXCD}, 1\n  s_lshl_b32 s{sH}, s{sH}, 3\n  s_and_b32 s60, s{sXCD}, 1\n  s_add_u32 s{sH}, s{sH}, s60\n  s_lshl_b32 s60, s{sJ}, 1\n  s_add_u32 s{sH}, s{sH}, s60")
        elif c["hmap"] == 3: A(f"  s_lshl_b32 s{sH}, s{sXCD}, 2\n  s_add_u32 s60, s{sJ}, 1\n  s_and_b32 s60, s60, 3\n  s_add_u32 s{sH}, s{sH}, s60")
        if c["fast0"]:
            l = self.lab("nofast")
            A(f"  s_cmp_ge_u32 s{sWAVE}, 8\n  s_cbranch_scc1 {l}")
            A(f"  s_lshl_b32 s56, s{sB}, 5\n  s_add_u32 s56, s56, s{sH}\n  s_lshl_b32 s56, s56, 20\n  s_add_u32 s56, s56, 0xC0000\n  s_lshl_b32 s{sOFF}, s{sWAVE}, {10 + c['gran'].bit_length() - 1}")
            A(f"  s_mov_b32 s{SRDA+2}, 0x40000\n  s_mov_b32 s{SRDA+3}, 0x20000\n  s_waitcnt lgkmcnt(0)\n  s_add_u32 s{SRDA}, s{sK}, s56\n  s_addc_u32 s{SRDA+1}, s{sK+1}, 0")
            for n in range(2): A(f"  buffer_load_dwordx4 {vq(40+4*n)}, v{vL16}, {sq(SRDA)}, s{sOFF} offen offset:{1024*n}{c['kfl']}")
            self.stamp(8)
            A(f"{l}:")
        if c["pref"]: self.prefetch()
        A(f"  v_mov_b32 v36, 0\n  v_mov_b32 v37, 0\n  v_lshrrev_b32 v{vG}, 4, v0\n  v_and_b32 v{vJ}, 15, v0\n  v_mov_b32 v{vZ}, 0\n  v_mov_b32 v{vONE}, 1")
        A(f"  s_mul_i32 s65, s{sB}, 3\n  s_add_u32 s65, s65, s{sJ}\n  s_lshr_b32 s60, s{sJ}, 1\n  s_sub_u32 s65, s65, s60\n  s_lshr_b32 s61, s65, 2")
        A(f"  s_lshr_b32 s60, s{sXCD}, 1\n  s_mul_i32 s{sSL}, s{sXCD}, 5\n  s_add_u32 s{sSL}, s{sSL}, s60\n  s_add_u32 s{sSL}, s{sSL}, s61\n  s_sub_u32 s{sSL}, s{sSL}, 1")
        A(f"  s_and_b32 s60, s{sXCD}, 1\n  s_add_u32 s60, s60, 5\n  s_cmp_lt_u32 s61, s60\n  s_cselect_b32 s{sFFN}, 1, 0\n  s_cmp_lt_u32 s{sSL}, 43\n  s_cselect_b32 s{sFFN}, s{sFFN}, 0")
        A(f"  s_add_u32 s60, s{sXCD}, 256\n  s_cmp_eq_u32 s{sIDX}, 28\n  s_cselect_b32 s57, s60, 100")
        A(f"  s_sub_u32 s60, s{sB}, {c['prodb']}\n  s_lshl_b32 s60, s60, 3\n  s_add_u32 s60, s60, s{sXCD}\n  s_cmp_lt_u32 s{sB}, {c['prodb']}\n  s_cselect_b32 s60, 64, s60")
        A(f"  s_cmp_eq_u32 s{sJ}, 1\n  s_cselect_b32 s57, s60, s57\n  s_cselect_b32 s{sFFN}, 0, s{sFFN}\n  s_and_b32 s{sJ}, s65, 3")
        if "M" in c["xskip"]: A("  s_cmp_lt_u32 s57, 48\n  s_cselect_b32 s57, 100, s57")
        if "F" in c["xskip"]: A("  s_cmp_ge_u32 s57, 256\n  s_cselect_b32 s57, 100, s57")
        A(f"  s_mov_b32 s{sGUARD}, 0\n  s_mov_b32 s{sPLO}, 0x05040100\n  s_mov_b32 s{sPHI}, 0x07060302\n  s_mov_b32 s{sLOG2E}, {LOG2E:#x}")
        A(f"  s_cmp_ge_u32 s{sWAVE}, 8\n  s_cbranch_scc1 L_helper")
        if c["sprio"]:
            l = self.lab("sp")
            A(f"  s_cmp_lt_u32 s{sWAVE}, 4\n  s_cbranch_scc1 {l}\n  s_setprio {c['sprio']}\n{l}:")
        A(f"  s_lshl_b32 s60, s{sB}, 5\n  s_add_u32 s60, s60, s{sH}\n  s_lshl_b32 s60, s60, 20\n  s_add_u32 s60, s60, 0xC0000")
        A(f"  s_lshl_b32 s{sOFF}, s{sWAVE}, {10 + c['gran'].bit_length() - 1}\n  s_mul_i32 s56, s{sWAVE}, {c['NV']*1024}\n  s_add_u32 s56, s56, {L_V}")
        gr = c["gran"] // 4
        for G in range(1, 8): A(f"  s_add_u32 s{sOFF+G}, s{sOFF}, {(G // gr) * 32768 * gr + (G % gr) * 4096}")
        A(f"  s_mov_b32 s{SRDA+2}, 0x40000\n  s_mov_b32 s{SRDA+3}, 0x20000\n  s_mov_b32 s{SRDB+2}, 0x40000\n  s_mov_b32 s{SRDB+3}, 0x20000")
        A("  s_waitcnt lgkmcnt(0)")
        D = c["D"]
        d2 = c["depth2"] or c["depth"]
        def mask(f1, f2):
            m = 0; acc = 0.5
            for n in range(64):
                acc += f1 if n < c["dsw"] else f2
                if acc >= 1.0 - 1e-9:
                    acc -= 1.0; m |= 1 << n
            return m
        m1 = [mask(min(1.0, D - a), min(1.0, D - b)) for a, b in zip(c["depth"], d2)]
        m2 = [mask(max(0.0, D - 1 - a), max(0.0, D - 1 - b)) & x for a, b, x in zip(c["depth"], d2, m1)]
        for reg, ms in ((58, m1), (14, m2)):
            for half in range(2):
                w = [(m >> (32 * half)) & 0xffffffff for m in ms]
                A(f"  s_bitcmp1_b32 s{sXCD}, 0\n  s_mov_b32 s{reg+half}, {w[0]:#x}\n  s_cselect_b32 s{reg+half}, {w[1]:#x}, s{reg+half}")
                A(f"  s_cmp_lt_u32 s57, 48\n  s_cselect_b32 s{reg+half}, {w[2]:#x}, s{reg+half}\n  s_cmp_eq_u32 s57, 64\n  s_cselect_b32 s{reg+half}, {w[3]:#x}, s{reg+half}")
        A("  s_waitcnt lgkmcnt(0)")
        A(f"  s_add_u32 s{SRDA}, s{sK}, s60\n  s_addc_u32 s{SRDA+1}, s{sK+1}, 0\n  s_add_u32 s{SRDB}, s{sV}, s60\n  s_addc_u32 s{SRDB+1}, s{sV+1}, 0")
        if c["Dodd"]:
            A(f"  s_bitcmp1_b32 s{sXCD}, 0\n  s_cbranch_scc1 L_sodd")
        self.streamer(c["D"], "e")
        if c["Dodd"]:
            A("L_sodd:")
            self.streamer(c["Dodd"], "o")
        self.streamer_ffn()
        self.helper()
        if c["sub"]:
            A("L_gemv:"); self.gemv32(body=True); A("  s_setpc_b64 s[42:43]")
        A("L_exit2:")
        if c["stamps"]: A("  s_sleep 100")
        A("L_exit:")
        if c["stamps"] and c["diag"]:
            A(f"  s_sleep 127\n  s_sleep 127\n  s_load_dword s44, {sp(sDBG)}, 0x80\n  s_waitcnt lgkmcnt(0)\n  s_cmp_ge_u32 s{sWAVE}, 8\n  s_cbranch_scc1 L_diagh\n  s_cmp_lg_u32 s{sWAVE}, 7\n  s_cbranch_scc1 L_end")
            def rec(k, slot):
                l = self.lab("dg")
                A(f"  s_cmp_eq_u32 s{70+2*k}, 0\n  s_cbranch_scc1 {l}\n  s_sub_u32 s60, s{70+2*k}, s44\n  s_add_u32 s60, s60, 1000\n  s_atomic_umax s60, {sp(sDBG)}, {4*slot:#x}\n{l}:")
            for k, slot in ((0, 4), (11, 5), (1, 6), (3, 7), (5, 8), (7, 9)): rec(k, slot)
            A("  s_endpgm\nL_diagh:")
            A(f"  s_cmp_lg_u32 s{sWAVE}, 8\n  s_cbranch_scc1 L_end")
            for k, slot in ((6, 10), (7, 11), (2, 12), (3, 13), (4, 14), (5, 15)): rec(k, slot)
        elif c["stamps"]:
            A("  s_mov_b64 exec, 1\n  s_waitcnt lgkmcnt(0)")
            A(f"  s_mul_i32 s60, s2, 12\n  s_add_u32 s60, s60, s{sWAVE}\n  s_lshl_b32 s60, s60, 7\n  s_add_u32 s60, s60, {WS_STAMP}\n  v_mov_b32 v4, s60")
            for k in range(16):
                A(f"  v_mov_b32 v6, s{70+2*k}\n  v_mov_b32 v7, s{71+2*k}\n  global_store_dwordx2 v4, v[6:7], {sp(sWS)} offset:{8*k}")
        A("L_end:\n  s_endpgm")
        body = fix_hazards(self.L)
        nk = c["prefkib"]
        out = HEADER + f"; @launch grid=(256,1,1) block=(768,1,1) lds={L_V + 8192*c['NV']}\n"
        out += '.amdgcn_target "amdgcn-amd-amdhsa--gfx950"\n.text\n'
        out += f".globl {KNAME}\n.p2align 8\n.type {KNAME},@function\n" + body
        out += "  .fill 64, 4, 0xbf800000\n"
        if c["pref"] or c["pref2"]:
            out += f"L_codeend:\n.if (L_codeend - {KNAME}) < {nk*1024}\n.fill ({nk*1024} - (L_codeend - {KNAME}))/4, 4, 0xbf800000\n.endif\n"
        out += f""".section .rodata,"a"
.p2align 6
.amdhsa_kernel {KNAME}
  .amdhsa_next_free_vgpr 168
  .amdhsa_next_free_sgpr 102
  .amdhsa_accum_offset 168
  .amdhsa_group_segment_fixed_size 0
  .amdhsa_kernarg_size 112
  .amdhsa_user_sgpr_count 2
  .amdhsa_user_sgpr_kernarg_segment_ptr 1
  .amdhsa_system_sgpr_workgroup_id_x 1
  .amdhsa_float_denorm_mode_32 3
.end_amdhsa_kernel
"""
        return out

def gen(**cfg): return Gen(**cfg).build()

if __name__ == "__main__":
    import json
    cfg = json.loads(sys.argv[2]) if len(sys.argv) > 2 else {}
    open(sys.argv[1], "w").write(gen(**cfg))
```

```python
import sys, struct
from asmlib import fix_hazards

KNAME = "adaLN_cond__sliding_block_cached__glu_gated_glu__decode_kernel"

HEADER = """; Kernarg layout for this problem (112 bytes, ptrs only, base s[0:1]):
;   offset  32: d_in[4] A_wo  shape=(4096, 512) dtype=bfloat16
;   offset  80: d_in[10] w_mod  shape=(512, 3072) dtype=bfloat16
;   offset 104: d_ws      workspace
; One workgroup per (batch, head): 8 streamer waves (K/V -> registers, QK, softmax, PV, then the GLU slice)
; and 4 helper waves (adaLN modulation, q projection, output projection, cross-workgroup hand-offs).
"""

WS_MOD, WS_STAT, WS_MARK, WS_ACC, WS_QTAG, WS_HINT, WS_INBOX, WS_QIN, WS_DUMP, WS_STAMP = 0x0, 0xC000, 0xD000, 0x10000, 0x18000, 0x20000, 0x40000, 0x1C0000, 0x200000, 0x20000000
F_H, F_Q, F_Q2, F_ST, F_O, F_MOD, F_MOD2, F_C, F_P, F_W, F_K, F_A, F_R, F_N, F_HS = 0, 4, 8, 12, 16, 20, 24, 28, 32, 36, 40, 44, 48, 52, 56
L_STATS, L_QB, L_OP, L_OB, L_HBUF, L_QP = 0x40, 0x100, 0x200, 0x1200, 0x1600, 0x2600
L_MODR, L_H2, L_X1, L_GUP, L_HH, L_MODP = 0x2200, 0x4A00, 0x5200, 0x5A00, 0x6A00, 0x7000
L_V = 0x7000
L_ROWS = 0x1600

def f2u(x): return struct.unpack("<I", struct.pack("<f", x))[0]
INB = 11264
TAGX = 0x5bd1e995
LOG2E = f2u(1.4426950408889634)
SCALE = f2u(128 ** -0.5)

sX, sK, sV, sWQ, sWO, sG, sU, sDN, sC, sWM, sOUT, sDBG, sWS = 4, 6, 8, 10, 12, 16, 18, 20, 22, 24, 26, 28, 30
sWAVE, sXCD, sIDX, sB, sJ, sH, sSL, sFFN = 32, 33, 34, 35, 36, 37, 38, 39
sOFF = 40
SRDA, SRDB = 48, 52
sPLO, sPHI, sGUARD, sLOG2E = 62, 63, 64, 66
sHW = 67
vLANE, vL16, vG, vJ, vZ, vONE = 0, 1, 2, 3, 38, 39

def sp(r): return f"s[{r}:{r+1}]"
def sq(r): return f"s[{r}:{r+3}]"
def vp(r): return f"v[{r}:{r+1}]"
def vq(r): return f"v[{r}:{r+3}]"

class Gen:
    def __init__(self, **cfg):
        self.c = dict(D=4, HD=4, HD0=6, HDO=4, P0=24, stamps=False, dump=False, guard=200000, pref=False,
                      inbox_sleep=6, hint_sleep=2, Dodd=None, pref2=False, prefwg=16, prefkib=26, hint_at=28, poll_sleep=8, NV=16, depth=[3.15, 3.15, 4, 3.15], FD=4, NF0=0, HDOf=4, H0D=4, H0D1=2, prio=2, nowo=False, wo_at=None, abl=None, init_mode='full', ablD=7, H0DQ=18, H0pre=True, fillD=4, nofill=False, q_sleep0=8, q_sleep=8, a_sleep=16, xskip=[], plainA=True, down_late=False, wofl='', tlb=0, modlag=2, HDf=4, ffnfl='', HDP=2, HDPf=1.75, PQ=24, kfl=' nt', vfl=' nt', hmap=0, wqpat=32, full_sleep=0, hint_lag=3, PB=2, fmode='flood', PR=8, wqpf=3, wqpfD=16, wqfl='', wqx=0, sprint=58, prodb=2, o_sleep=1, depth2=[3.15, 3.15, 3.6, 3.6], dsw=34, gran=4, outfl=' sc1', hprio=2, sprio=1, sprio_off=31, dry=True, prefidx=13, diag=False, early=True, xdelay=0, spref=0, wopat=8, rxfl=' sc1', accfl=' sc1', txfl=' sc1', late_delay=10, sub=False, dryo=False, gate=False, oadd=False, fast0=True, read_delay=18, barD=False, rx_sleep=8, rx_delay=14)
        self.c.update(cfg)
        self.L = []
        self.nlab = 0

    def A(self, s): self.L.append(s)
    def lab(self, base):
        self.nlab += 1
        return f"L_{base}_{self.nlab}"
    def stamp(self, k):
        if self.c["stamps"]: self.A(f"  s_memrealtime s[{70+2*k}:{71+2*k}]")
    def cstamp(self, k):
        if self.c["stamps"]:
            self.A(f"  s_waitcnt lgkmcnt(0)\n  s_mul_i32 s{70+2*k}, s{sGUARD}, 100\n  s_add_u32 s{70+2*k}, s{70+2*k}, s70\n  s_addc_u32 s{71+2*k}, s71, 0")
    def guard(self):
        if self.c["guard"]:
            self.A(f"  s_add_u32 s{sGUARD}, s{sGUARD}, 1\n  s_cmp_gt_u32 s{sGUARD}, {self.c['guard']}\n  s_cbranch_scc1 L_exit")
    def exec1(self): self.A("  s_mov_b64 exec, 1")
    def execall(self): self.A("  s_mov_b64 exec, -1")

    def lds_spin(self, off, target, tmp, sleep=1):
        l = self.lab("spin"); d = self.lab("spun")
        self.A(f"{l}:")
        self.A(f"  ds_read_b32 v{tmp}, v{vZ} offset:{off}\n  s_waitcnt lgkmcnt(0)\n  v_readfirstlane_b32 s60, v{tmp}")
        self.A(f"  s_cmp_ge_u32 s60, {target}\n  s_cbranch_scc1 {d}")
        self.guard()
        if sleep: self.A(f"  s_sleep {sleep}")
        self.A(f"  s_branch {l}\n{d}:")

    def lds_inc(self, off):
        self.exec1(); self.A(f"  ds_add_u32 v{vZ}, v{vONE} offset:{off}"); self.execall()

    def dumpv(self, reg, n, base, sidx=None, stride=0, tmp=36):
        if not self.c["dump"]: return
        A = self.A
        if sidx is not None:
            A(f"  s_mul_i32 s68, s{sidx}, {stride}\n  s_add_u32 s68, s68, {WS_DUMP + base}")
        else:
            A(f"  s_mov_b32 s68, {WS_DUMP + base}")
        A(f"  v_lshlrev_b32 v{tmp}, {dict([(1,2),(2,3),(4,4)])[n]}, v{vLANE}\n  v_add_u32 v{tmp}, s68, v{tmp}")
        op = {1: "dword", 2: "dwordx2", 4: "dwordx4"}[n]
        r = f"v{reg}" if n == 1 else f"v[{reg}:{reg+n-1}]"
        A(f"  global_store_{op} v{tmp}, {r}, {sp(sWS)}\n  s_waitcnt vmcnt(0)")

    def prefetch(self, wait=False):
        A = self.A
        l = self.lab("nopref"); lp = self.lab("pref"); pc = self.lab("pc")
        A(f"  s_cmp_lg_u32 s{sWAVE}, 11\n  s_cbranch_scc1 {l}\n  s_cmp_lg_u32 s{sIDX}, {self.c['prefidx']}\n  s_cbranch_scc1 {l}")
        A(f"  s_getpc_b64 s[60:61]\n{pc}:\n  s_sub_u32 s60, s60, {pc}-{KNAME}\n  s_subb_u32 s61, s61, 0\n  v_mov_b32 v36, v{vL16}\n  s_mov_b32 s65, {self.c['prefkib']}")
        A(f"{lp}:\n  global_load_dword v35, v36, s[60:61]\n  v_add_u32 v36, 1024, v36\n  s_sub_u32 s65, s65, 1\n  s_cmp_lg_u32 s65, 0\n  s_cbranch_scc1 {lp}")
        if wait: A("  s_waitcnt vmcnt(0)")
        A(f"{l}:")

    def rnd1(self, x, t):
        self.A(f"  v_cvt_pk_bf16_f32 v{t}, v{x}, v{x}\n  v_and_b32 v{x}, 0xffff0000, v{t}")
    def rnd2(self, x, y, t):
        self.A(f"  v_cvt_pk_bf16_f32 v{t}, v{x}, v{y}\n  v_lshlrev_b32 v{x}, 16, v{t}\n  v_and_b32 v{y}, 0xffff0000, v{t}")
    def rnd8(self, X, T):
        for i in range(4): self.A(f"  v_cvt_pk_bf16_f32 v{T+i}, v{X+2*i}, v{X+2*i+1}")
        self.unpack8(T, X)
    def unpack8(self, src, dst):
        for i in range(4):
            self.A(f"  v_lshlrev_b32 v{dst+2*i}, 16, v{src+i}\n  v_and_b32 v{dst+2*i+1}, 0xffff0000, v{src+i}")
    def wave_reduce(self, op, regs, full=True):
        steps = []
        if full: steps += ["quad_perm:[1,0,3,2] row_mask:0xf bank_mask:0xf", "quad_perm:[2,3,0,1] row_mask:0xf bank_mask:0xf"]
        steps += ["row_ror:4 row_mask:0xf bank_mask:0xf", "row_ror:8 row_mask:0xf bank_mask:0xf",
                  "row_bcast:15 row_mask:0xa bank_mask:0xf", "row_bcast:31 row_mask:0xc bank_mask:0xf"]
        for s in steps:
            for r in regs: self.A(f"  {op}_dpp v{r}, v{r}, v{r} {s}")

    def pk8(self, op, D, Aq, Bq):
        for i in range(0, 8, 2): self.A(f"  v_pk_{op}_f32 {vp(D+i)}, {vp(Aq+i)}, {vp(Bq+i)}")

    def layernorm(self, X, T, S):
        A = self.A
        A(f"  v_readfirstlane_b32 s60, v{X}")
        for i in range(0, 8, 2): A(f"  v_pk_add_f32 {vp(T+i)}, {vp(X+i)}, s[60:61] op_sel_hi:[1,0] neg_lo:[0,1] neg_hi:[0,1]")
        A(f"  v_pk_add_f32 {vp(S)}, {vp(T)}, {vp(T+2)}\n  v_pk_mul_f32 {vp(S+2)}, {vp(T)}, {vp(T)}")
        A(f"  v_pk_add_f32 {vp(S)}, {vp(S)}, {vp(T+4)}\n  v_pk_fma_f32 {vp(S+2)}, {vp(T+2)}, {vp(T+2)}, {vp(S+2)}")
        A(f"  v_pk_add_f32 {vp(S)}, {vp(S)}, {vp(T+6)}\n  v_pk_fma_f32 {vp(S+2)}, {vp(T+4)}, {vp(T+4)}, {vp(S+2)}")
        A(f"  v_add_f32 v{S}, v{S}, v{S+1}\n  v_pk_fma_f32 {vp(S+2)}, {vp(T+6)}, {vp(T+6)}, {vp(S+2)}\n  v_add_f32 v{S+1}, v{S+2}, v{S+3}")
        self.wave_reduce("v_add_f32", [S, S + 1])
        A(f"  v_readlane_b32 s61, v{S}, 63\n  v_readlane_b32 s65, v{S+1}, 63")
        inv = f2u(1.0 / 512)
        A(f"  v_mov_b32 v{S+2}, {inv:#x}")
        A(f"  v_mul_f32 v{S}, s61, v{S+2}\n  v_mul_f32 v{S+1}, s65, v{S+2}")
        A(f"  v_fma_f32 v{S+1}, -v{S}, v{S}, v{S+1}\n  v_add_f32 v{S}, s60, v{S}\n  v_max_f32 v{S+1}, 0, v{S+1}")
        self.rnd2(S, S + 1, S + 2)
        A(f"  v_add_f32 v{S+1}, {f2u(1e-5):#x}, v{S+1}")
        for i in range(0, 4, 2): A(f"  v_pk_add_f32 {vp(X+i)}, {vp(X+i)}, {vp(S)} op_sel_hi:[1,0] neg_lo:[0,1] neg_hi:[0,1]")
        A(f"  v_cvt_pk_bf16_f32 v{S+2}, v{S+1}, v{S+1}")
        for i in range(4, 8, 2): A(f"  v_pk_add_f32 {vp(X+i)}, {vp(X+i)}, {vp(S)} op_sel_hi:[1,0] neg_lo:[0,1] neg_hi:[0,1]")
        A(f"  v_and_b32 v{S+1}, 0xffff0000, v{S+2}\n  v_sqrt_f32 v{S+1}, v{S+1}")
        for i in range(4): A(f"  v_cvt_pk_bf16_f32 v{T+i}, v{X+2*i}, v{X+2*i+1}")
        self.rnd1(S + 1, S + 2)
        A(f"  v_rcp_f32 v{S+2}, v{S+1}")
        self.unpack8(T, X)
        A(f"  v_fma_f32 v{S+3}, -v{S+1}, v{S+2}, 1.0\n  v_fmac_f32 v{S+2}, v{S+3}, v{S+2}")
        for i in range(0, 8, 2): A(f"  v_pk_mul_f32 {vp(T+i)}, {vp(X+i)}, {vp(S+2)} op_sel_hi:[1,0]")
        for i in range(0, 8, 2): A(f"  v_pk_fma_f32 {vp(X+i)}, {vp(T+i)}, {vp(S)}, {vp(X+i)} op_sel:[0,1,0] op_sel_hi:[1,1,1] neg_lo:[1,0,0] neg_hi:[1,0,0]")
        for i in range(0, 8, 2): A(f"  v_pk_fma_f32 {vp(X+i)}, {vp(X+i)}, {vp(S+2)}, {vp(T+i)} op_sel_hi:[1,0,1]")
        self.rnd8(X, T)

    def transpose_block(self, B, t0, t1):
        A = self.A
        R = lambda e, t: B + 4 * e + t
        lo = lambda d, a, b: A(f"  v_perm_b32 v{d}, v{b}, v{a}, s{sPLO}")
        hi = lambda d, a, b: A(f"  v_perm_b32 v{d}, v{b}, v{a}, s{sPHI}")
        for p in range(4):
            a, b = R(2 * p, p), R(2 * p + 1, p)
            lo(t0, a, b); hi(b, a, b); A(f"  v_mov_b32 v{a}, v{t0}")
            for t in range(p + 1, 4):
                a, b, c, d = R(2 * p, t), R(2 * p + 1, t), R(2 * t, p), R(2 * t + 1, p)
                lo(t0, a, b); hi(t1, a, b); lo(a, c, d); hi(b, c, d)
                A(f"  v_mov_b32 v{c}, v{t0}\n  v_mov_b32 v{d}, v{t1}")

    def transpose_x2(self, Rb, Bb):
        for c in range(4):
            for p in range(4):
                a, b = Rb + 2 * (2 * p) + (c >> 1), Rb + 2 * (2 * p + 1) + (c >> 1)
                self.A(f"  v_perm_b32 v{Bb+4*c+p}, v{b}, v{a}, s{sPHI if c & 1 else sPLO}")

    def gemv32(self, body=False):
        res = [24] + [40 + 4 * k for k in range(7)]
        if self.c["sub"] and not body:
            pc = self.lab("call")
            self.A(f"  s_getpc_b64 s[60:61]\n{pc}:\n  s_add_u32 s60, s60, L_gemv-{pc}\n  s_addc_u32 s61, s61, 0\n  s_swappc_b64 s[42:43], s[60:61]\n  s_nop 7")
            return res
        for c in range(8):
            for m in range(4):
                self.A(f"  v_mfma_f32_16x16x32_bf16 {vq(res[c])}, {vq(8+4*m)}, {vq(40+32*m+4*c)}, {'0' if m == 0 else vq(res[c])}")
        return res

    def wload32(self, srd, steps, D, frac=None, hooks=None, fl=None):
        A = self.A
        done = 0
        for i in range(32):
            dd = D
            if frac is not None and int((i + 1) * (D - frac)) != int(i * (D - frac)): dd = D - 1
            if i >= dd: A(f"  s_waitcnt vmcnt({dd-1})")
            if hooks and i in hooks: hooks[i]()
            A(f"  buffer_load_dwordx4 {vq(40+4*i)}, v4, {sq(srd)}, s40 offen{self.c['wofl'] if fl is None else fl}")
            if i < 31: A(f"  s_add_u32 s40, s40, {steps[i]}")
            landed = i - D + 1 if i >= D else 0
            if landed >= 8 * (done + 1):
                self.transpose_block(40 + 32 * done, 5, 6); done += 1
        while done < 4:
            A(f"  s_waitcnt vmcnt({8*(3-done)})")
            self.transpose_block(40 + 32 * done, 5, 6); done += 1

    def init_duty(self, wave):
        A = self.A
        l2 = self.lab("inited"); l3 = self.lab("noinit")
        A(f"  s_cmp_lg_u32 s{sWAVE}, {wave}\n  s_cbranch_scc1 {l3}")
        mark = len(self.L)
        A("  v_mov_b32 v8, -1\n  v_mov_b32 v9, -1\n  v_mov_b32 v10, -1\n  v_mov_b32 v11, -1")
        A(f"  s_lshl_b32 s60, s2, 12\n  s_add_u32 s60, s60, {WS_QIN}\n  v_add_u32 v5, s60, v{vL16}")
        for i in range(4): A(f"  global_store_dwordx4 v5, {vq(8)}, {sp(sWS)} offset:{1024*i} sc1")
        A(f"  s_cmp_eq_u32 s{sFFN}, 0\n  s_cbranch_scc1 {l2}\n  s_cmp_ge_u32 s{sSL}, 32\n  s_cbranch_scc1 {l2}")
        A(f"  s_lshl_b32 s60, s{sJ}, 5\n  s_add_u32 s60, s60, s{sSL}\n  s_mul_i32 s60, s60, 6144\n  s_add_u32 s60, s60, {WS_INBOX + 2048}\n  v_add_u32 v5, s60, v{vL16}")
        for i in range(6): A(f"  global_store_dwordx4 v5, {vq(8)}, {sp(sWS)} offset:{1024*i - 2048} sc1")
        A(f"  s_cmp_ge_u32 s{sSL}, 8\n  s_cbranch_scc1 {l2}")
        A("  v_mov_b32 v12, 0\n  v_mov_b32 v13, 0\n  v_mov_b32 v14, 0\n  v_mov_b32 v15, 0")
        A(f"  s_lshl_b32 s60, s{sJ}, 3\n  s_add_u32 s60, s60, s{sSL}\n  s_lshl_b32 s60, s60, 10\n  s_add_u32 s60, s60, {WS_ACC}\n  v_add_u32 v5, s60, v{vL16}")
        A(f"  global_store_dwordx4 v5, {vq(12)}, {sp(sWS)} sc1")
        if self.c["init_mode"] == "nostore": self.L[mark:] = []
        A(f"{l2}:\n  s_waitcnt vmcnt(0)")
        if self.c["init_mode"] != "noticket":
            A(f"  s_mov_b32 s65, 1\n  s_atomic_add s65, {sp(sDBG)}, 0x4 glc\n  s_waitcnt lgkmcnt(0)")
            A(f"  s_cmp_lg_u32 s65, 255\n  s_cbranch_scc1 {l3}\n  s_mov_b32 s65, 1\n  s_atomic_add s65, {sp(sDBG)}, 0x84")
        A(f"{l3}:")

    def streamer(self, D, tag):
        A = self.A; c = self.c
        T = lambda n: 40 + 4 * n
        issued = []
        def issue(name, srd, n):
            A(f"  buffer_load_dwordx4 {vq(T(n))}, v{vL16}, {sq(srd)}, s{sOFF + (n >> 2)} offen offset:{1024*(n&3)}{c['kfl']}")
            issued.append(name)
        def pace():
            n = len(issued)
            if n >= D: A(f"  s_waitcnt vmcnt({D-1})")
            if n >= D - 2 and n < 64:
                l = self.lab("pc")
                A(f"  s_bitcmp1_b64 s[58:59], {n}\n  s_cbranch_scc0 {l}\n  s_waitcnt vmcnt({D-2})")
                A(f"  s_bitcmp1_b64 s[14:15], {n}\n  s_cbranch_scc0 {l}\n  s_waitcnt vmcnt({D-3})\n{l}:")
        def waitfor(name):
            A(f"  s_waitcnt vmcnt({len(issued) - 1 - issued.index(name)})")
        lnp = self.lab("noprod"); lj = self.lab("joined")
        NJ = D + c["modlag"]
        A(f"  s_cmp_ge_u32 s57, {48 if (c['abl'] is None or 'mod' in c['abl']) else 0}\n  s_cbranch_scc1 {lnp}")
        self.mod_loads()
        A("  s_barrier")
        self.mod_compute_a()
        A(f"  s_waitcnt vmcnt({c['prio']})")
        E = 2 if c["fast0"] else 0
        for n in range(E, D - 1): issue(f"K{n}", SRDA, n)
        A(f"  s_load_dword s3, {sp(sDBG)}, 0x80")
        A(f"  s_waitcnt vmcnt({D-1-E})")
        self.stamp(9)
        self.mod_compute_b()
        for n in range(D - 1, NJ):
            A(f"  s_waitcnt vmcnt({D-1})"); issue(f"K{n}", SRDA, n)
        self.mod_compute_c()
        self.stamp(14)
        if c["wo_at"] is not None and c["wo_at"] < NJ: self.lds_inc(F_K)
        A(f"  s_branch {lj}\n{lnp}:")
        issued.clear()
        for n in range(32):
            if n == NJ: A(f"{lj}:")
            if n < E: issued.append(f"K{n}")
            else: pace(); issue(f"K{n}", SRDA, n)
            if n == 0 and not E: self.stamp(8)
            if n in (4, 8, 16, 24): self.stamp({4: 10, 8: 11, 16: 12, 24: 13}[n])
            if n == c["wo_at"]: self.lds_inc(F_K)
            if c["sprio"] and n == c["sprio_off"]: A("  s_setprio 0")
            if n == D - 3:
                A("  s_barrier")
                self.stamp(9)
            if n == NJ:
                A(f"  v_lshrrev_b32 v12, 1, v{vJ}\n  v_and_b32 v13, 1, v{vJ}\n  v_mov_b32 v14, 0xffff\n  v_lshlrev_b32 v13, 4, v13\n  v_lshlrev_b32 v14, v13, v14")
                for j in range(4):
                    A(f"  v_cmp_eq_u32 vcc, {j}, v12\n  v_cndmask_b32 v{4+j}, 0, v14, vcc")
        NV = c["NV"]
        slot = lambda n: T(32 - NV + n) if n < NV else T(n - NV)
        l = self.lab("nomodchk")
        A(f"  s_cmp_ge_u32 s57, {48 if (c['abl'] is None or 'mod' in c['abl']) else 0}\n  s_cbranch_scc1 {l}")
        self.lds_spin(F_MOD2, 8, 12)
        A(f"{l}:")
        for n in range(NV):
            if n % 4 == 0: A(f"  s_add_u32 m0, s56, {4096 * (n // 4)}")
            pace()
            A(f"  buffer_load_dwordx4 v{vL16}, {sq(SRDB)}, s{sOFF + (n >> 2)} offen offset:{1024*(n&3)}{c['vfl']} lds")
            issued.append(f"V{n}")
        self.stamp(1)
        self.lds_spin(F_Q2, 1, 12)
        self.stamp(2)
        A(f"  v_lshlrev_b32 v12, 4, v{vJ}\n  ds_read_b128 {vq(8)}, v12 offset:{L_QB}\n  s_waitcnt lgkmcnt(0)")
        def qk(G):
            z = 18 + G
            for r in range(4):
                for t in range(4):
                    A(f"  v_dot2_f32_bf16 v{12+t}, v{T(4*G+t)+r}, v{8+r}, {'0' if r == 0 else f'v{12+t}'}")
            A(f"  v_add_f32_dpp v16, v12, v12 row_ror:8 row_mask:0xf bank_mask:0x3")
            A(f"  v_add_f32_dpp v17, v14, v14 row_ror:8 row_mask:0xf bank_mask:0x3")
            A(f"  v_add_f32_dpp v16, v13, v13 row_ror:8 row_mask:0xf bank_mask:0xc")
            A(f"  v_add_f32_dpp v17, v15, v15 row_ror:8 row_mask:0xf bank_mask:0xc")
            A(f"  v_add_f32_dpp v{z}, v16, v16 row_shl:4 row_mask:0xf bank_mask:0x5")
            A(f"  v_add_f32_dpp v{z}, v17, v17 row_shr:4 row_mask:0xf bank_mask:0xa")
            A(f"  v_add_f32_dpp v{z}, v{z}, v{z} quad_perm:[1,0,3,2] row_mask:0xf bank_mask:0xf")
            A(f"  v_add_f32_dpp v{z}, v{z}, v{z} quad_perm:[2,3,0,1] row_mask:0xf bank_mask:0xf")
        nv = NV
        def nextv():
            nonlocal nv
            pace()
            A(f"  buffer_load_dwordx4 {vq(slot(nv))}, v{vL16}, {sq(SRDB)}, s{sOFF + (nv >> 2)} offen offset:{1024*(nv&3)}{c['vfl']}")
            issued.append(f"V{nv}"); nv += 1
        qk(0)
        groups = list(range(1, 7))
        per = -(-len(groups) // D)
        for i in range(D):
            nextv()
            for G in groups[i * per:(i + 1) * per]: qk(G)
        qk(7)
        if NV:
            A(f"  v_add_u32 v34, s56, v{vL16}")
            for n in range(NV): A(f"  ds_read_b128 {vq(slot(n))}, v34 offset:{1024*n}")
        A(f"  s_mov_b32 s60, {SCALE:#x}")
        for i in range(4): self.rnd2(18 + 2 * i, 19 + 2 * i, 12 + i)
        for i in range(8): A(f"  v_mul_f32 v{18+i}, s60, v{18+i}")
        for i in range(4): self.rnd2(18 + 2 * i, 19 + 2 * i, 12 + i)
        A("  v_max3_f32 v12, v18, v19, v20\n  v_max3_f32 v13, v21, v22, v23\n  v_max3_f32 v12, v12, v24, v25\n  v_max_f32 v12, v12, v13")
        self.wave_reduce("v_max_f32", [12], full=False)
        A("  v_readlane_b32 s61, v12, 63")
        for i in range(8): A(f"  v_subrev_f32 v{26+i}, s61, v{18+i}")
        for i in range(8): A(f"  v_mul_f32 v{26+i}, s{sLOG2E}, v{26+i}")
        for i in range(8): A(f"  v_exp_f32 v{26+i}, v{26+i}")
        A("  v_add_f32 v13, v26, v27\n  v_add_f32 v14, v28, v29\n  v_add_f32 v15, v30, v31\n  v_add_f32 v16, v32, v33")
        A("  v_add_f32 v13, v13, v14\n  v_add_f32 v15, v15, v16\n  v_add_f32 v13, v13, v15")
        self.wave_reduce("v_add_f32", [13], full=False)
        A(f"  s_lshl_b32 s60, s{sWAVE}, 3\n  v_mov_b32 v14, s60")
        A("  s_mov_b32 exec_lo, 0\n  s_mov_b32 exec_hi, 0x80000000")
        A(f"  ds_write_b64 v14, v[12:13] offset:{L_STATS}\n  ds_add_u32 v{vZ}, v{vONE} offset:{F_ST}")
        self.execall()
        nextv(); nextv()
        self.lds_spin(F_ST, 8, 12)
        A(f"  v_and_b32 v14, 7, v{vLANE}\n  v_lshlrev_b32 v14, 3, v14\n  ds_read_b64 v[12:13], v14 offset:{L_STATS}\n  s_waitcnt lgkmcnt(0)")
        red8 = ["quad_perm:[1,0,3,2]", "quad_perm:[2,3,0,1]", "row_ror:4"]
        A("  v_mov_b32 v14, v12")
        for s in red8: A(f"  v_max_f32_dpp v14, v14, v14 {s} row_mask:0xf bank_mask:0xf")
        A(f"  v_sub_f32 v12, v12, v14\n  v_mul_f32 v12, s{sLOG2E}, v12\n  v_exp_f32 v12, v12")
        for i in range(8): A(f"  v_sub_f32 v{26+i}, v{18+i}, v14")
        A("  v_mul_f32 v13, v13, v12")
        for i in range(8): A(f"  v_mul_f32 v{26+i}, s{sLOG2E}, v{26+i}")
        for s in red8: A(f"  v_add_f32_dpp v13, v13, v13 {s} row_mask:0xf bank_mask:0xf")
        for i in range(8): A(f"  v_exp_f32 v{26+i}, v{26+i}")
        A("  v_rcp_f32 v15, v13\n  v_fma_f32 v16, -v13, v15, 1.0\n  v_fmac_f32 v15, v16, v15")
        if c["dump"]:
            for i in range(8):
                A(f"  s_lshl_b32 s69, s2, 3\n  s_add_u32 s69, s69, s{sWAVE}\n  s_lshl_b32 s69, s69, 3\n  s_add_u32 s69, s69, {i}")
                self.dumpv(18 + i, 1, 0x100000, 69, 256, tmp=36)
        for i in range(8): A(f"  v_mul_f32 v{26+i}, v{26+i}, v15")
        for i in range(8): A(f"  v_cvt_pk_bf16_f32 v{18+i}, v{26+i}, v{26+i}")
        self.stamp(3)
        npv = 0
        def pv():
            nonlocal npv
            n = npv; npv += 1
            Ab = 26 + 4 * (n & 1)
            bank = [0, 2, 1, 3][n & 3]
            for j in range(4):
                A(f"  v_and_b32_dpp v{Ab+j}, v{18+(n>>2)}, v{4+j} row_newbcast:{4*bank} row_mask:0xf bank_mask:0xf")
            A(f"  v_mfma_f32_16x16x32_bf16 {vq(34)}, {vq(Ab)}, {vq(slot(n))}, {'0' if n == 0 else vq(34)}")
            if n == c["hint_at"] and "HT" not in c["xskip"]:
                l = self.lab("ht")
                self.exec1()
                A(f"  ds_add_rtn_u32 v12, v{vZ}, v{vONE} offset:{F_P}\n  s_mov_b32 s5, 0\n  s_waitcnt lgkmcnt(0)\n  v_readfirstlane_b32 s60, v12")
                self.execall()
                A(f"  s_cmp_lg_u32 s60, 7\n  s_cbranch_scc1 {l}")
                A(f"  s_lshl_b32 s60, s{sB}, 12\n  s_add_u32 s60, s60, {WS_ACC + 3072}\n  s_mov_b32 s5, 1\n  s_atomic_add s5, {sp(sWS)}, s60 glc\n{l}:")
            if n == c["hint_at"] + c["hint_lag"] and "HT" not in c["xskip"]:
                l = self.lab("hf")
                A(f"  s_waitcnt lgkmcnt(0)\n  s_cmp_lg_u32 s5, 31\n  s_cbranch_scc1 {l}")
                A(f"  s_mul_i32 s60, s{sB}, {64*128}\n  s_add_u32 s60, s60, {WS_HINT}\n  v_lshl_add_u32 v12, v{vLANE}, 7, s60")
                A(f"  s_mov_b32 exec_hi, 0x7ff\n  global_store_dword v12, v11, {sp(sWS)} sc1"); self.execall()
                A(f"{l}:")
        self.ffn_addr()
        self.lds_spin(F_C, 1, 12)
        A(f"  ds_read_b32 v11, v{vZ} offset:{F_N}")
        def vstep():
            nextv()
            landed = nv - D
            k = 0
            while npv < landed and k < 3:
                pv(); k += 1
        def finish(ffn=False):
            if ffn and c["early"]:
                l = self.lab("eh")
                A(f"  s_cmp_lg_u32 s{sWAVE}, 0\n  s_cbranch_scc1 {l}")
                A(f"  s_lshl_b32 s60, s{sJ}, 7\n  s_add_u32 s60, s60, s{sSL}\n  s_lshl_b32 s60, s60, 7\n  s_add_u32 s60, s60, {WS_HINT}\n  s_add_u32 s61, s60, {64*128}")
                A(f"  s_load_dword s8, {sp(sWS)}, s60 glc\n  s_load_dword s9, {sp(sWS)}, s61 glc\n{l}:")
            while npv < 32:
                waitfor(f"V{npv}"); pv()
            A(f"  v_lshlrev_b32 v12, 5, v{vJ}\n  v_lshl_add_u32 v13, v{vG}, 4, v12\n  s_lshl_b32 s60, s{sWAVE}, 9\n  v_add_u32 v12, s60, v13")
            A("  s_mov_b32 exec_hi, 0")
            if c["oadd"]:
                for r in range(4): A(f"  ds_add_f32 v13, v{34+r} offset:{L_OP + 4*r}")
            else:
                A(f"  ds_write_b128 v12, {vq(34)} offset:{L_OP}")
            self.lds_inc(F_O)
            self.stamp(5)
            if ffn and c["early"]:
                l = self.lab("eh2")
                A(f"  s_cmp_lg_u32 s{sWAVE}, 0\n  s_cbranch_scc1 {l}\n  s_waitcnt lgkmcnt(0)\n  v_mov_b32 v12, s8\n  v_mov_b32 v13, s9")
                self.exec1(); A(f"  ds_write_b64 v{vZ}, v[12:13] offset:{F_HS}"); self.execall()
                A(f"{l}:")
        NF0 = c["NF0"]
        while nv < 32 - NF0: vstep()
        assert npv >= NV or NF0 == 0, (npv, NV)
        lf = self.lab("vffn")
        if c["abl"] is None and "T" not in c["xskip"]: A(f"  s_cmp_lg_u32 s{sFFN}, 0\n  s_cbranch_scc1 {lf}")
        st = (nv, npv, list(issued))
        while nv < 32: vstep()
        self.stamp(4)
        finish()
        A("  s_branch L_exit")
        A(f"{lf}:")
        nv, npv = st[0], st[1]; issued[:] = st[2]
        nf = 0
        while nv < 32:
            waitfor(f"V{nv - (D - 1)}")
            A(f"  buffer_load_dwordx4 {vq(slot(nv))}, v{vL16}, {sq(SRDB)}, s{sOFF + (nv >> 2)} offen offset:{1024*(nv&3)}{c['vfl']}")
            issued.append(f"V{nv}"); nv += 1
            self.ffn_load(nf); issued.append(f"F{nf}"); nf += 1
            k = 0
            while npv < nv - D + 1 and k < 3:
                pv(); k += 1
        self.stamp(4)
        finish(True)
        FD = c["FD"]
        if c["fmode"] == "paced":
            while nf < 24:
                if nf >= FD: waitfor(f"F{nf - FD}")
                self.ffn_load(nf); issued.append(f"F{nf}"); nf += 1
                if nf == FD: self.ffn_lds_addr()
                if nf == 8 + FD: self.transpose_x2(120, 40)
                if nf == 16 + FD: self.stamp(15); self.transpose_x2(136, 56)
            return
        while nf < FD:
            self.ffn_load(nf); issued.append(f"F{nf}"); nf += 1
        self.lds_spin(F_A, 4, 12)
        self.stamp(10)
        while nf < 16:
            self.ffn_load(nf); issued.append(f"F{nf}"); nf += 1
        self.ffn_lds_addr()
        if c["stamps"]: waitfor("F15"); self.stamp(15)
        waitfor("F7"); self.transpose_x2(120, 40)
        if c["down_late"]: self.lds_spin(F_R, 2, 12)
        while nf < 24:
            self.ffn_load(nf); issued.append(f"F{nf}"); nf += 1
        waitfor("F15"); self.transpose_x2(136, 56)

    def ffn_addr(self):
        A = self.A
        A(f"  v_cmp_gt_u32 vcc, 8, v{vJ}")
        A(f"  v_mov_b32 v12, s{sU}\n  v_mov_b32 v13, s{sU+1}\n  v_mov_b32 v14, s{sG}\n  v_mov_b32 v15, s{sG+1}")
        A(f"  v_cndmask_b32 v8, v12, v14, vcc\n  v_cndmask_b32 v9, v13, v15, vcc")
        A(f"  s_lshr_b32 s16, s{sJ}, 1\n  s_and_b32 s17, s{sJ}, 1")
        A(f"  s_lshl_b32 s60, s{sWAVE}, 6\n  s_lshl_b32 s61, s16, 5\n  s_add_u32 s60, s60, s61\n  s_lshl_b32 s61, s17, 2\n  s_add_u32 s60, s60, s61")
        A(f"  v_lshl_add_u32 v12, v{vG}, 3, s60\n  v_mul_u32_u24 v12, 2752, v12")
        A(f"  v_and_b32 v13, 7, v{vJ}\n  v_lshl_add_u32 v12, v13, 3, v12\n  s_lshl_b32 s60, s{sSL}, 6\n  v_add_u32 v12, s60, v12\n  v_mov_b32 v13, 0")
        A(f"  v_lshl_add_u64 v[8:9], v[8:9], 0, v[12:13]")
        A(f"  s_mov_b32 s10, 5504\n  s_mov_b32 s11, 0")
        A(f"  s_cmp_eq_u32 s17, 0\n  s_cselect_b32 s60, 4, -4\n  s_cmp_eq_u32 s16, 0\n  s_cselect_b32 s61, 32, -32")
        A(f"  s_sub_i32 s61, s61, s60\n  s_sub_i32 s60, s60, 2\n  s_sub_i32 s61, s61, 2")
        A(f"  s_mul_i32 s12, s60, 2752\n  s_ashr_i32 s13, s12, 31\n  s_mul_i32 s6, s61, 2752\n  s_ashr_i32 s7, s6, 31")
        A(f"  s_mov_b32 s{SRDA}, s{sDN}\n  s_mov_b32 s{SRDA+1}, s{sDN+1}\n  s_mov_b32 s{SRDA+2}, 1409024\n  s_mov_b32 s{SRDA+3}, 0x20000")
        A(f"  v_lshlrev_b32 v10, 13, v{vG}\n  v_lshl_add_u32 v10, v{vJ}, 3, v10")
        A(f"  s_lshl_b32 s18, s{sSL}, 15\n  s_lshl_b32 s19, s{sWAVE}, 7\n  s_add_u32 s18, s18, s19\n  s_add_u32 s19, s18, 4096")

    def ffn_load(self, i):
        A = self.A
        if "W" in self.c["xskip"]:
            A(f"  global_load_dword v17, v{vZ}, {sp(sC)}"); return
        if i < 16:
            A(f"  global_load_dwordx2 {vp(120+2*i)}, v[8:9], off{' offset:2752' if i & 1 else ''}{self.c['ffnfl']}")
            if i & 1 and i < 15:
                step = "s[10:11]" if (i & 3) == 1 else ("s[6:7]" if i == 7 else "s[12:13]")
                A(f"  v_lshl_add_u64 v[8:9], v[8:9], 0, {step}")
        else:
            e = i - 16
            A(f"  buffer_load_dwordx2 {vp(152+2*e)}, v10, {sq(SRDA)}, s{18 + (e >> 2)} offen offset:{1024*(e&3)}{self.c['ffnfl']}")

    def ffn_lds_addr(self):
        A = self.A
        A(f"  v_and_b32 v12, 1, v{vJ}\n  v_lshlrev_b32 v112, 10, v12\n  v_lshl_add_u32 v112, v{vG}, 4, v112\n  s_lshl_b32 s60, s{sWAVE}, 7\n  v_add_u32 v112, s60, v112")
        A(f"  s_lshl_b32 s60, s16, 6\n  s_lshl_b32 s61, s17, 3\n  s_add_u32 s60, s60, s61\n  v_add_u32 v112, s60, v112")
        A(f"  v_xor_b32 v113, 8, v112\n  v_xor_b32 v114, 64, v112\n  v_xor_b32 v115, 0x48, v112")
        A(f"  v_lshlrev_b32 v116, 6, v12\n  v_lshl_add_u32 v116, v{vG}, 4, v116")
        A(f"  v_lshlrev_b32 v117, 5, v{vJ}\n  v_lshl_add_u32 v117, v{vG}, 3, v117\n  s_lshl_b32 s60, s{sWAVE}, 9\n  v_add_u32 v117, s60, v117")
        A(f"  s_lshl_b32 s60, s{sJ}, 5\n  s_lshl_b32 s61, s{sWAVE}, 2\n  s_add_u32 s60, s60, s61\n  v_add_u32 v118, s60, v{vG}\n  v_mul_u32_u24 v118, {INB}, v118")
        A(f"  s_lshl_b32 s60, s{sSL}, 8\n  s_add_u32 s60, s60, {WS_INBOX}\n  v_lshl_add_u32 v12, v{vJ}, 4, s60\n  v_add_u32 v118, v12, v118")

    def streamer_ffn(self):
        A = self.A
        self.stamp(6)
        A("  s_barrier")
        A("L_dry_s:")
        for i in range(4): A(f"  ds_read_b64 {vp(88+2*i)}, v{112+i} offset:{L_H2}")
        A("  s_waitcnt lgkmcnt(2)")
        for cc in range(4): A(f"  v_mfma_f32_16x16x32_bf16 {vq(96+4*cc)}, {vq(88)}, {vq(40+4*cc)}, 0")
        A("  s_waitcnt lgkmcnt(0)")
        for cc in range(4): A(f"  v_mfma_f32_16x16x32_bf16 {vq(96+4*cc)}, {vq(92)}, {vq(56+4*cc)}, {vq(96+4*cc)}")
        def select():
            for g in range(1, 4):
                for r in range(2):
                    A(f"  v_mov_b32_dpp v{96+r}, v{96+4*g+r} quad_perm:[0,1,2,3] row_mask:{1<<g:#x} bank_mask:0xf")
        select()
        A(f"  ds_write_b64 v117, v[96:97] offset:{L_GUP}\n  s_waitcnt lgkmcnt(0)")
        dry = self.c["dry"]
        if dry: A("  s_cbranch_execz L_dry_s2")
        A("  s_barrier")
        A("  s_waitcnt vmcnt(0)"); self.transpose_x2(152, 72)
        A("  s_barrier")
        A("L_dry_s2:")
        A(f"  ds_read_b128 {vq(88)}, v116 offset:{L_HH}\n  s_waitcnt lgkmcnt(0)")
        for cc in range(4): A(f"  v_mfma_f32_16x16x32_bf16 {vq(96+4*cc)}, {vq(88)}, {vq(72+4*cc)}, 0")
        select()
        A(f"  v_mov_b32 v98, v11\n  v_xor_b32 v99, {TAGX:#x}, v11")
        if dry: A("  s_cbranch_execz L_exit")
        A(f"  global_store_dwordx4 v118, {vq(96)}, {sp(sWS)}{self.c['txfl']}")
        self.stamp(7)
        A("  s_branch L_exit2")

    def mod_loads(self):
        A = self.A
        A(f"  v_and_b32 v4, 7, v{vJ}\n  v_lshrrev_b32 v5, 3, v{vJ}\n  v_lshlrev_b32 v6, 10, v4\n  v_lshl_add_u32 v6, v5, 6, v6\n  v_lshl_add_u32 v6, v{vG}, 4, v6")
        A(f"  s_lshl_b32 s60, s{sWAVE}, 7\n  v_add_u32 v6, s60, v6")
        A(f"  global_load_dwordx4 {vq(8)}, v6, {sp(sC)}")
        A(f"  v_lshlrev_b32 v7, 5, v5\n  v_lshl_add_u32 v7, v{vG}, 3, v7\n  v_mul_u32_u24 v7, 6144, v7\n  v_lshl_add_u32 v7, v4, 4, v7")
        A(f"  s_mul_i32 s60, s{sWAVE}, {64*6144}\n  s_lshl_b32 s61, s57, 7\n  s_add_u32 s60, s60, s61\n  v_add_u32 v7, s60, v7")
        for i in range(8):
            A(f"  global_load_dwordx4 {vq(136+4*i)}, v7, {sp(sWM)} nt")
            if i < 7: A(f"  v_add_u32 v7, 6144, v7")

    def mod_compute_a(self):
        A = self.A
        A(f"  s_lshl_b32 s60, s{sWAVE}, 12\n  s_add_u32 s60, s60, {L_V}\n  v_lshlrev_b32 v28, 11, v5\n  v_lshl_add_u32 v28, v4, 8, v28\n  v_and_b32 v29, 1, v{vG}\n  v_lshl_add_u32 v28, v29, 4, v28\n  v_add_u32 v28, s60, v28")
        A(f"  v_lshrrev_b32 v29, 1, v{vG}\n  v_cmp_eq_u32 s[68:69], v29, v5")
        A("  s_waitcnt vmcnt(8)")
        for i in range(4):
            r = 8 + i
            A(f"  v_lshlrev_b32 v16, 16, v{r}\n  v_and_b32 v17, 0xffff0000, v{r}")
            A(f"  v_mul_f32 v18, s{sLOG2E}, v16\n  v_mul_f32 v19, s{sLOG2E}, v17")
            A(f"  v_exp_f32 v18, -v18\n  v_exp_f32 v19, -v19")
            A(f"  v_add_f32 v18, 1.0, v18\n  v_add_f32 v19, 1.0, v19\n  v_rcp_f32 v18, v18\n  v_rcp_f32 v19, v19")
            A(f"  v_mul_f32 v16, v16, v18\n  v_mul_f32 v17, v17, v19\n  v_cvt_pk_bf16_f32 v{r}, v16, v17")

    def mod_compute_b(self):
        A = self.A
        self.transpose_block(136, 5, 6)
        for cc in range(8):
            A(f"  v_mfma_f32_16x16x32_bf16 {vq(104+4*cc)}, {vq(8)}, {vq(136+4*cc)}, 0")
        A("  s_mov_b64 exec, s[68:69]")
        for cc in range(8):
            A(f"  ds_write_b128 v28, {vq(104+4*cc)} offset:{32*cc}")
        self.lds_inc(F_MOD)

    def mod_compute_c(self):
        A = self.A
        A(f"  v_and_b32 v4, 31, v{vLANE}\n  v_lshrrev_b32 v5, 5, v{vLANE}\n  v_lshlrev_b32 v6, 6, v4\n  v_lshl_add_u32 v6, v5, 14, v6\n  s_lshl_b32 s60, s{sWAVE}, 2\n  s_add_u32 s60, s60, {L_V}\n  v_add_u32 v6, s60, v6")
        A(f"  s_mul_i32 s60, s{sWAVE}, 6144\n  s_lshl_b32 s61, s57, 7\n  s_add_u32 s60, s60, s61\n  s_add_u32 s60, s60, {WS_MOD}\n  v_lshl_add_u32 v5, v4, 2, s60")
        self.lds_spin(F_MOD, 8, 7)
        for part in range(8):
            if part: A(f"  v_add_u32 v6, 2048, v6")
            A(f"  ds_read2_b32 {vp(8+2*part)}, v6 offset0:0 offset1:8")
        l = self.lab("pollSN"); d = self.lab("gotSN")
        A(f"{l}:\n  s_cmp_lg_u32 s3, 0\n  s_cbranch_scc1 {d}")
        self.guard()
        A(f"  s_load_dword s3, {sp(sDBG)}, 0x80 glc\n  s_waitcnt lgkmcnt(0)\n  s_branch {l}\n{d}:")
        A("  s_waitcnt lgkmcnt(0)")
        self.lds_inc(F_MOD2)
        for part in range(1, 8):
            A(f"  v_add_f32 v8, v8, v{8+2*part}\n  v_add_f32 v9, v9, v{9+2*part}")
        A("  v_mov_b32 v10, v8\n  v_mov_b32 v11, v9\n  v_permlane32_swap_b32 v10, v8\n  v_permlane32_swap_b32 v11, v9\n  v_add_f32 v8, v8, v10\n  v_add_f32 v9, v9, v11")
        A(f"  v_cvt_pk_bf16_f32 v8, v8, v9\n  s_mov_b32 exec_hi, 0\n  global_store_dword v5, v8, {sp(sWS)} sc1")
        self.execall()
        A("  v_mov_b32 v9, v8")
        for st in ("quad_perm:[1,0,3,2]", "quad_perm:[2,3,0,1]", "row_ror:4", "row_ror:8"):
            A(f"  v_xor_b32_dpp v9, v9, v9 {st} row_mask:0xf bank_mask:0xf")
        A("  v_mov_b32 v10, v9\n  v_permlane16_swap_b32 v10, v9\n  v_bitop3_b32 v9, v9, v10, s3 bitop3:0x96")
        A(f"  s_lshl_b32 s60, s{sWAVE}, 8\n  s_lshl_b32 s61, s57, 2\n  s_add_u32 s60, s60, s61\n  s_add_u32 s60, s60, {WS_MARK}\n  v_mov_b32 v5, s60")
        self.exec1(); A(f"  global_store_dword v5, v9, {sp(sWS)} sc1"); self.execall()

    def check_lines(self, data, tags, tmp):
        A = self.A
        n = len(data)
        for k in range(n): A(f"  v_xor_b32 v{tmp+k}, v{data[k]}, v{data[k]+1}")
        for k in range(n): A(f"  v_bitop3_b32 v{tmp+k}, v{tmp+k}, v{data[k]+2}, v{data[k]+3} bitop3:0x96")
        for st in ("quad_perm:[1,0,3,2]", "quad_perm:[2,3,0,1]", "row_half_mirror"):
            for k in range(n): A(f"  v_xor_b32_dpp v{tmp+k}, v{tmp+k}, v{tmp+k} {st} row_mask:0xf bank_mask:0xf")
        for k in range(n): A(f"  v_bitop3_b32 v{tmp+k}, v{tmp+k}, v{tags[k]}, s44 bitop3:0x96")
        for k in range(1, n): A(f"  v_or_b32 v{tmp}, v{tmp}, v{tmp+k}")
        A(f"  v_cmp_ne_u32 vcc, 0, v{tmp}")

    def get_flag(self, tmp, off, sreg, expect=None):
        A = self.A
        l = self.lab("pollN"); d = self.lab("gotN")
        cmp = f"s_cmp_lg_u32 s{sreg}, 0" if expect is None else f"s_cmp_eq_u32 s{sreg}, {expect}"
        self.exec1()
        A(f"  global_load_dword v{tmp}, v{vZ}, {sp(sDBG)} offset:{off}")
        A(f"{l}:\n  s_waitcnt vmcnt(0)\n  v_readfirstlane_b32 s{sreg}, v{tmp}\n  {cmp}\n  s_cbranch_scc1 {d}")
        self.guard()
        A(f"  s_sleep {self.c['poll_sleep']}\n  global_load_dword v{tmp}, v{vZ}, {sp(sDBG)} offset:{off} sc1\n  s_branch {l}\n{d}:"); self.execall()
    def get_nonce(self, tmp): self.get_flag(tmp, 128, 44)

    def xor_rows(self, r, t):
        A = self.A
        A(f"  v_mov_b32 v{t}, v{r}\n  v_permlane16_swap_b32 v{t}, v{r}\n  v_xor_b32 v{r}, v{r}, v{t}")
        A(f"  v_mov_b32 v{t}, v{r}\n  v_permlane32_swap_b32 v{t}, v{r}\n  v_xor_b32 v{r}, v{r}, v{t}")

    def allreduce8(self, r, t, op="v_add_f32"):
        A = self.A
        A(f"  {op}_dpp v{r}, v{r}, v{r} row_ror:8 row_mask:0xf bank_mask:0xf")
        A(f"  v_mov_b32 v{t}, v{r}\n  v_permlane16_swap_b32 v{t}, v{r}\n  {op} v{r}, v{r}, v{t}")
        A(f"  v_mov_b32 v{t}, v{r}\n  v_permlane32_swap_b32 v{t}, v{r}\n  {op} v{r}, v{r}, v{t}")

    def wq_pattern(self):
        p = self.c["wqpat"]
        if p == 8: return 16, [8192 if i % 8 < 7 else 8192 * 25 for i in range(32)]
        if p == 32: return 18, [8192] * 32
        if p == 1: return 13, [8192 * 4] * 32
        if p == 33: return 18, [8192 * 5 if i % 8 < 7 else (1 << 32) - 8192 * 27 for i in range(32)]
        if p == 16: return 17, [8192 if i % 16 < 15 else 8192 * 49 for i in range(32)]

    def wo_pattern(self):
        p = self.c["wopat"]
        if p == 8: return 13, [1024 if i % 8 < 7 else 1024 * 25 for i in range(32)]
        if p == 32: return 15, [1024] * 32
        if p == 1: return 10, [4096] * 32

    def h0_issue(self, fl):
        A = self.A
        if "G" in self.c["xskip"]: return
        A(f"  global_load_dwordx4 {vq(28)}, v36, {sp(sWS)}{fl}\n  global_load_dwordx4 {vq(32)}, v36, {sp(sWS)} offset:1024{fl}")
        A(f"  global_load_dword v24, v37, {sp(sWS)}{fl}\n  global_load_dword v25, v37, {sp(sWS)} offset:32{fl}")

    def h0_finish(self):
        A = self.A; c = self.c
        l = self.lab("chkA"); d = self.lab("gotA")
        A(f"{l}:")
        self.check_lines([28, 32], [24, 25], 26)
        A(f"  s_cbranch_vccz {d}" if "G" not in c["xskip"] else f"  s_branch {d}")
        self.guard()
        A(f"  s_sleep {c['a_sleep']}")
        self.h0_issue(" sc1")
        A(f"  s_waitcnt vmcnt(0)\n  s_branch {l}\n{d}:")
        self.stamp(2); self.cstamp(14)
        self.unpack8(32, 16)
        for i in range(8): A(f"  v_add_f32 v{16+i}, 1.0, v{16+i}")
        self.rnd8(16, 24)
        for i in range(8): A(f"  v_mul_f32 v{8+i}, v{8+i}, v{16+i}")
        self.rnd8(8, 24)
        self.unpack8(28, 16)
        for i in range(8): A(f"  v_add_f32 v{8+i}, v{8+i}, v{16+i}")
        for i in range(4): A(f"  v_cvt_pk_bf16_f32 v{24+i}, v{8+2*i}, v{9+2*i}")
        A(f"  v_add_u32 v16, s47, v{vL16}\n  ds_write_b128 v16, {vq(24)} offset:{L_HBUF}")
        self.lds_inc(F_H)
        if c["dump"]:
            l = self.lab("nodh"); A(f"  s_cmp_lg_u32 s{sHW}, 0\n  s_cbranch_scc1 {l}"); self.dumpv(24, 4, 0x0, 2, 1024); A(f"{l}:")
        self.stamp(3)

    def helper(self):
        A = self.A; c = self.c
        A("L_helper:")
        self.stamp(8)
        A(f"  s_sub_u32 s{sHW}, s{sWAVE}, 8")
        l = self.lab("h3")
        A(f"  s_cmp_lg_u32 s{sHW}, 3\n  s_cbranch_scc1 {l}")
        A(f"  v_lshlrev_b32 v4, 2, v{vLANE}\n  ds_write_b32 v4, v{vZ}\n  ds_write_b32 v4, v{vZ} offset:{L_OP}\n  ds_write_b32 v4, v{vZ} offset:{L_OP+256}\n  s_waitcnt lgkmcnt(0)\n{l}:")
        A("  s_waitcnt lgkmcnt(0)")
        if c["tlb"]:
            l = self.lab("notlb")
            A(f"  s_cmp_lg_u32 s{sHW}, 2\n  s_cbranch_scc1 {l}")
            self.exec1()
            A(f"  s_lshl_b32 s60, s{sB}, 5\n  s_add_u32 s60, s60, s{sH}\n  s_lshl_b32 s60, s60, 20\n  s_add_u32 s60, s60, 0xC0000\n  v_mov_b32 v4, s60")
            A(f"  global_load_dword v40, v4, {sp(sV)} nt")
            A(f"  s_lshl_b32 s60, s2, 12\n  s_add_u32 s60, s60, {WS_QIN}\n  v_mov_b32 v5, s60\n  global_load_dword v41, v5, {sp(sWS)} nt")
            A(f"  s_lshl_b32 s60, s{sH}, 17\n  v_mov_b32 v6, s60\n  global_load_dword v42, v6, {sp(sWO)} nt")
            A(f"  s_lshl_b32 s60, s2, 2\n  s_and_b32 s60, s60, 0xfc\n  v_mov_b32 v7, s60")
            A(f"  global_load_dword v43, v7, {sp(sDBG)}")
            if c["tlb"] > 1:
                A(f"  s_lshl_b32 s60, s2, 7\n  v_mov_b32 v8, s60")
                for k, p in enumerate((sG, sU, sDN, sWS)): A(f"  global_load_dword v{44+k}, v8, {sp(p)} nt")
                A(f"  v_add_u32 v8, 0x100000, v8")
                for k, p in enumerate((sG, sU, sDN)): A(f"  global_load_dword v{48+k}, v8, {sp(p)} nt")
                A(f"  s_lshl_b32 s60, s2, 5\n  v_mov_b32 v9, s60\n  global_load_dword v52, v9, {sp(sOUT)} nt")
            self.execall()
            A(f"{l}:")
        if c["wqpf"]:
            l = self.lab("nowqpf")
            A(f"  s_cmp_lg_u32 s{sHW}, {c['wqpf']}\n  s_cbranch_scc1 {l}")
            A(f"  s_lshl_b32 s60, s{sIDX}, 17\n  s_lshl_b32 s61, s{sXCD}, 10\n  s_add_u32 s60, s60, s61\n  v_add_u32 v4, s60, v{vL16}")
            for i in range(16):
                if i >= c["wqpfD"]: A(f"  s_waitcnt vmcnt({c['wqpfD']-1})")
                A(f"  global_load_dword v35, v4, {sp(sWQ)}")
                if i < 15: A("  v_add_u32 v4, 8192, v4")
            A(f"{l}:")
        l = self.lab("nononce")
        A(f"  s_cmp_lg_u32 s2, 0\n  s_cbranch_scc1 {l}\n  s_cmp_lg_u32 s{sHW}, 1\n  s_cbranch_scc1 {l}")
        A(f"  s_memrealtime s[42:43]\n  s_waitcnt lgkmcnt(0)\n  s_or_b32 s42, s42, 1\n  v_mov_b32 v6, s42")
        self.exec1(); A(f"  global_store_dword v{vZ}, v6, {sp(sDBG)} offset:128 sc1"); self.execall()
        A(f"{l}:")
        A("  s_barrier")
        abl = c["abl"]
        if abl is not None:
            if "init" in abl: self.init_duty(11)
            l = self.lab("abl")
            A(f"  s_cmp_lg_u32 s{sHW}, 0\n  s_cbranch_scc1 {l}")
            self.lds_inc(F_Q2); self.lds_inc(F_C)
            if "h0l" in abl:
                A(f"  v_and_b32 v5, 7, v{vJ}\n  v_lshrrev_b32 v6, 3, v{vJ}\n  v_lshl_add_u32 v7, v{vG}, 1, v6\n  v_lshlrev_b32 v7, 4, v7\n  v_lshl_add_u32 v7, v5, 10, v7")
                if "nox" not in abl:
                    for i in range(8): A(f"  global_load_dwordx4 {vq(40+4*i)}, v7, {sp(sX)} offset:{128*i} nt")
                A(f"  s_mov_b32 s{SRDB}, s{sWQ}\n  s_mov_b32 s{SRDB+1}, s{sWQ+1}\n  s_mov_b32 s{SRDB+2}, 4194304\n  s_mov_b32 s{SRDB+3}, 0x20000")
                A(f"  v_lshlrev_b32 v7, 4, v{vJ}\n  v_lshl_add_u32 v7, v{vG}, 16, v7")
                A(f"  s_lshl_b32 s41, s{sB}, 19\n  s_lshl_b32 s60, s{sH}, 8\n  s_add_u32 s41, s41, s60")
                for i in range(0 if "nowq" in abl else 16):
                    A(f"  s_waitcnt vmcnt({c['ablD']})")
                    A(f"  buffer_load_dwordx4 {vq(104+4*i)}, v7, {sq(SRDB)}, s41 offen nt")
                    if i < 15: A(f"  s_add_u32 s41, s41, {8192 if i != 7 else 8192*25}")
                A("  s_waitcnt vmcnt(0)")
            if "poll" in abl:
                lp = self.lab("ablp")
                self.exec1()
                A(f"  s_mov_b32 s65, 12\n{lp}:\n  global_load_dwordx2 v[24:25], v{vZ}, {sp(sDBG)} offset:128 sc1\n  s_waitcnt vmcnt(0)\n  s_sleep {c['poll_sleep']}\n s_sub_u32 s65, s65, 1\n s_cmp_lg_u32 s65, 0\n s_cbranch_scc1 {lp}")
                self.execall()
            A(f"{l}:")
            if "wqr" in abl:
                A(f"  s_mov_b32 s{SRDA}, s{sWQ}\n  s_mov_b32 s{SRDA+1}, s{sWQ+1}\n  s_mov_b32 s{SRDA+2}, 4194304\n  s_mov_b32 s{SRDA+3}, 0x20000")
                sh, steps_ = self.wq_pattern()
                A(f"  v_lshlrev_b32 v4, 4, v{vJ}\n  v_lshl_add_u32 v4, v{vG}, {sh}, v4")
                A(f"  s_lshl_b32 s40, s{sHW}, 20\n  s_xor_b32 s60, s{sH}, {c['wqx']}\n  s_lshl_b32 s60, s60, 8\n  s_add_u32 s40, s40, s60")
                self.wload32(SRDA, steps_, c["HDO"], frac=c["HDOf"], fl=c["wqfl"])
                self.stamp(5)
            if "wqh" in abl:
                lq = self.lab("noq")
                A(f"  s_cmp_ge_u32 s{sB}, 4\n  s_cbranch_scc1 {lq}")
                A(f"  s_mov_b32 s{SRDA}, s{sWQ}\n  s_mov_b32 s{SRDA+1}, s{sWQ+1}\n  s_mov_b32 s{SRDA+2}, 4194304\n  s_mov_b32 s{SRDA+3}, 0x20000")
                A(f"  v_lshlrev_b32 v4, 4, v{vJ}\n  v_lshl_add_u32 v4, v{vG}, 17, v4")
                A(f"  s_lshl_b32 s40, s{sHW}, 19\n  s_and_b32 s60, s{sB}, 1\n  s_lshl_b32 s60, s60, 21\n  s_add_u32 s40, s40, s60\n  s_lshl_b32 s60, s{sH}, 8\n  s_add_u32 s40, s40, s60")
                for i in range(16):
                    if i >= c["HD"]: A(f"  s_waitcnt vmcnt({c['HD']-1})")
                    A(f"  buffer_load_dwordx4 {vq(104+4*i)}, v4, {sq(SRDA)}, s40 offen\n  s_add_u32 s40, s40, 8192")
                self.stamp(5)
                A(f"{lq}:")
            if "wqp" in abl:
                lq = self.lab("noq")
                A(f"  s_cmp_lt_u32 s57, 48\n  s_cbranch_scc1 {lq}")
                sh, steps_ = self.wq_pattern()
                A(f"  s_mov_b32 s{SRDA}, s{sWQ}\n  s_mov_b32 s{SRDA+1}, s{sWQ+1}\n  s_mov_b32 s{SRDA+2}, 4194304\n  s_mov_b32 s{SRDA+3}, 0x20000")
                A(f"  v_lshlrev_b32 v4, 4, v{vJ}\n  v_lshl_add_u32 v4, v{vG}, {sh}, v4")
                A(f"  s_lshl_b32 s40, s{sHW}, 20\n  s_lshl_b32 s60, s{sH}, 8\n  s_add_u32 s40, s40, s60")
                self.wload32(SRDA, steps_, c["HD"], frac=c["HDf"], fl=c["wqfl"])
                self.stamp(5)
                A(f"{lq}:")
            if "wo" in abl:
                A(f"  s_mov_b32 s{SRDA}, s{sWO}\n  s_mov_b32 s{SRDA+1}, s{sWO+1}\n  s_mov_b32 s{SRDA+2}, 4194304\n  s_mov_b32 s{SRDA+3}, 0x20000")
                A(f"  v_lshlrev_b32 v4, 4, v{vJ}\n  v_lshl_add_u32 v4, v{vG}, {self.wo_pattern()[0]}, v4")
                A(f"  s_lshl_b32 s40, s{sH}, 17\n  s_lshl_b32 s60, s{sHW}, 8\n  s_add_u32 s40, s40, s60")
                self.wload32(SRDA, self.wo_pattern()[1], c["HDO"], frac=c["HDOf"])
                self.stamp(6)
            A("  s_branch L_exit")
        A(f"  s_mov_b32 s{SRDA}, s{sWQ}\n  s_mov_b32 s{SRDA+1}, s{sWQ+1}\n  s_mov_b32 s{SRDA+2}, 4194304\n  s_mov_b32 s{SRDA+3}, 0x20000")
        sh, steps = self.wq_pattern()
        A(f"  v_lshlrev_b32 v4, 4, v{vJ}\n  v_lshl_add_u32 v4, v{vG}, {sh}, v4")
        A(f"  s_lshl_b32 s40, s{sHW}, 20\n  s_lshl_b32 s60, s{sH}, 8\n  s_add_u32 s40, s40, s60")
        A(f"  s_cmp_lt_u32 s57, 48\n  s_cbranch_scc1 L_prodh")
        A(f"  s_cmp_eq_u32 s57, 64\n  s_cselect_b32 s45, 3, 0")
        A(f"  s_cmp_gt_u32 s{sHW}, s45\n  s_cbranch_scc1 L_wq123")
        A(f"  s_lshl_b32 s46, s{sHW}, 1\n  s_add_u32 s46, s46, s{sB}\n  s_lshl_b32 s47, s{sHW}, 10")
        A(f"  s_lshl_b32 s60, s46, 10\n  v_add_u32 v36, s60, v{vL16}\n  global_load_dwordx4 {vq(28)}, v36, {sp(sX)}")
        A(f"  s_mul_i32 s60, s46, 6144\n  s_add_u32 s60, s60, {WS_MOD}\n  v_add_u32 v36, s60, v{vL16}")
        A(f"  s_lshl_b32 s60, s46, 8\n  s_add_u32 s60, s60, {WS_MARK}\n  v_lshrrev_b32 v37, 3, v{vLANE}\n  v_lshl_add_u32 v37, v37, 2, s60")
        HD = c["HD"]
        def ln():
            self.unpack8(28, 8); self.layernorm(8, 16, 24)
            A(f"  s_load_dword s44, {sp(sDBG)}, 0x80")
        def gather():
            l = self.lab("pollHN"); d = self.lab("gotHN")
            A(f"  s_waitcnt lgkmcnt(0)\n{l}:\n  s_cmp_lg_u32 s44, 0\n  s_cbranch_scc1 {d}")
            self.guard()
            A(f"  s_load_dword s44, {sp(sDBG)}, 0x80 glc\n  s_waitcnt lgkmcnt(0)\n  s_branch {l}\n{d}:")
            self.stamp(1)
            self.h0_issue("")
            A(f"  v_mov_b32 v26, s44\n  ds_write_b32 v{vZ}, v26 offset:{F_N}")
        self.wload32(SRDA, steps, HD, frac=c["HDf"], hooks={HD + 3: ln, c["P0"]: gather, c["P0"] + HD: self.h0_finish}, fl=c["wqfl"])
        A("  s_branch L_q")
        A("L_wq123:")
        l = self.lab("nozero")
        A(f"  s_cmp_lg_u32 s{sHW}, 3\n  s_cbranch_scc1 {l}\n  s_cmp_lt_u32 s57, 256\n  s_cbranch_scc1 {l}\n  s_cmp_ge_u32 s57, {256+8}\n  s_cbranch_scc1 {l}")
        A("  v_mov_b32 v12, 0\n  v_mov_b32 v13, 0\n  v_mov_b32 v14, 0\n  v_mov_b32 v15, 0")
        A(f"  s_sub_u32 s61, s57, 256\n  s_lshl_b32 s60, s61, 12\n  s_add_u32 s60, s60, {WS_ACC}\n  v_add_u32 v5, s60, v{vL16}")
        for i in range(4): A(f"  global_store_dwordx4 v5, {vq(12)}, {sp(sWS)} offset:{1024*i} sc1")
        A(f"{l}:")
        def ticket():
            l = self.lab("notick"); lp = self.lab("pollZN"); d = self.lab("gotZN")
            A(f"  s_cmp_lg_u32 s{sHW}, 3\n  s_cbranch_scc1 {l}\n  s_cmp_lt_u32 s57, 256\n  s_cbranch_scc1 {l}\n  s_cmp_ge_u32 s57, {256+8}\n  s_cbranch_scc1 {l}")
            A(f"  s_mov_b32 s65, 1\n  s_atomic_add s65, {sp(sDBG)}, 0x8 glc\n  s_waitcnt lgkmcnt(0)\n  s_cmp_lg_u32 s65, 7\n  s_cbranch_scc1 {l}")
            A(f"{lp}:\n  s_load_dword s44, {sp(sDBG)}, 0x80 glc\n  s_waitcnt lgkmcnt(0)\n  s_cmp_lg_u32 s44, 0\n  s_cbranch_scc1 {d}")
            self.guard()
            A(f"  s_branch {lp}\n{d}:\n  v_mov_b32 v7, s44")
            self.exec1(); A(f"  global_store_dword v{vZ}, v7, {sp(sDBG)} offset:136 sc1"); self.execall()
            A(f"{l}:")
        self.wload32(SRDA, steps, HD, frac=c["HDf"], hooks={HD + 2: ticket}, fl=c["wqfl"])
        A("L_q:")
        self.stamp(4)
        A("  s_add_u32 s61, s45, 1")
        self.lds_spin(F_H, "s61", 7)
        p32 = c["wqpat"] == 32
        A(f"  s_lshl_b32 s60, s{sHW}, 8\n  v_lshl_add_u32 v4, v{vG}, {6 if p32 else 4}, s60\n  v_and_b32 v5, s45, v{vJ}\n  v_lshl_add_u32 v4, v5, 10, v4")
        for m in range(4): A(f"  ds_read_b128 {vq(8+4*m)}, v4 offset:{L_HBUF + (16 if p32 else 64)*m}")
        A(f"  ds_read_b32 v7, v{vZ} offset:{F_N}")
        A(f"  s_lshl_b32 s60, s{sHW}, 11\n  v_lshl_add_u32 v5, v{vJ}, 5, s60\n  v_add_u32 v5, {L_QP}, v5")
        A(f"  s_mov_b32 s{SRDA}, s{sWO}\n  s_mov_b32 s{SRDA+1}, s{sWO+1}\n  s_mov_b32 s{SRDA+2}, 4194304\n  s_mov_b32 s{SRDA+3}, 0x20000")
        A(f"  s_lshl_b32 s40, s{sH}, 17\n  s_lshl_b32 s60, s{sHW}, 8\n  s_add_u32 s40, s40, s60")
        A("  s_waitcnt lgkmcnt(0)")
        A(f"  v_readfirstlane_b32 s44, v7\n  v_lshlrev_b32 v4, 4, v{vJ}\n  v_lshl_add_u32 v4, v{vG}, {self.wo_pattern()[0]}, v4")
        res = self.gemv32()
        A("  s_mov_b64 exec, 0xffff")
        for cc in range(0, 8, 2):
            A(f"  ds_write2_b32 v5, v{res[cc]}, v{res[cc+1]} offset0:{cc} offset1:{cc+1}")
        l = self.lab("onerow")
        A(f"  s_cmp_eq_u32 s45, 0\n  s_cbranch_scc1 {l}")
        for r in range(1, 4):
            A(f"  v_add_u32 v5, 512, v5")
            for cc in range(0, 8, 2):
                A(f"  ds_write2_b32 v5, v{res[cc]+r}, v{res[cc+1]+r} offset0:{cc} offset1:{cc+1}")
        A(f"{l}:")
        self.exec1()
        A(f"  ds_add_rtn_u32 v7, v{vZ}, v{vONE} offset:{F_Q}\n  s_waitcnt lgkmcnt(0)\n  v_readfirstlane_b32 s60, v7")
        self.execall()
        l = self.lab("notlastq")
        A(f"  s_cmp_lg_u32 s60, 3\n  s_cbranch_scc1 {l}")
        A(f"  v_lshlrev_b32 v6, 3, v{vLANE}")
        for part in range(4): A(f"  ds_read_b64 {vp(8+2*part)}, v6 offset:{L_QP + 2048*part}")
        A(f"  s_lshl_b32 s60, s2, 9\n  s_add_u32 s60, s60, {WS_QIN}\n  v_add_u32 v7, s60, v6")
        A(f"  v_lshlrev_b32 v5, 2, v{vLANE}\n  s_waitcnt lgkmcnt(0)")
        A("  v_add_f32 v8, v8, v10\n  v_add_f32 v9, v9, v11\n  v_add_f32 v12, v12, v14\n  v_add_f32 v13, v13, v15\n  v_add_f32 v8, v8, v12\n  v_add_f32 v9, v9, v13")
        A(f"  v_cvt_pk_bf16_f32 v8, v8, v9\n  ds_write_b32 v5, v8 offset:{L_QB}")
        l2 = self.lab("nodon")
        A(f"  s_cmp_eq_u32 s45, 0\n  s_cbranch_scc1 {l2}")
        for r in range(1, 4):
            for part in range(4): A(f"  ds_read_b64 {vp(16+2*part)}, v6 offset:{L_QP + 2048*part + 512*r}")
            A(f"  v_add_u32 v7, {64*512}, v7\n  s_waitcnt lgkmcnt(0)")
            A("  v_add_f32 v16, v16, v18\n  v_add_f32 v17, v17, v19\n  v_add_f32 v20, v20, v22\n  v_add_f32 v21, v21, v23\n  v_add_f32 v16, v16, v20\n  v_add_f32 v17, v17, v21")
            A(f"  v_cvt_pk_bf16_f32 v{24+2*r}, v16, v17\n  v_mov_b32 v{25+2*r}, s44\n  global_store_dwordx2 v7, {vp(24+2*r)}, {sp(sWS)} sc1")
        A(f"{l2}:")
        self.lds_inc(F_Q2)
        self.dumpv(8, 1, 0x80000, 2, 256)
        A(f"{l}:")
        self.stamp(5)
        steps = self.wo_pattern()[1]
        def chkB():
            l0 = self.lab("noB")
            A(f"  s_cmp_lg_u32 s{sHW}, 1\n  s_cbranch_scc1 {l0}")
            if "B" not in c["xskip"]: self.get_flag(7, 136, 45, expect="s44")
            self.lds_inc(F_C)
            A(f"{l0}:")
        def rowloads(fl):
            for i in range(4): A(f"  global_load_dwordx4 {vq(12+4*i)}, v36, {sp(sWS)} offset:{1024*i}{fl}")
            for i in range(4): A(f"  global_load_dword v{28+i}, v37, {sp(sWS)} offset:{32*i}{fl}")
        def rows_a():
            if "R" in c["xskip"]: return
            l = self.lab("norows")
            A(f"  s_cmp_ge_u32 s{sHW}, 2\n  s_cbranch_scc1 {l}\n  s_cmp_eq_u32 s{sFFN}, 0\n  s_cbranch_scc1 {l}")
            A(f"  s_lshl_b32 s41, s{sJ}, 1\n  s_add_u32 s41, s41, s{sHW}")
            A(f"  s_mul_i32 s60, s41, 6144\n  s_add_u32 s60, s60, {WS_MOD + 2048}\n  v_add_u32 v36, s60, v{vL16}")
            A(f"  s_lshl_b32 s60, s41, 8\n  s_add_u32 s60, s60, {WS_MARK + 64}\n  v_lshrrev_b32 v37, 3, v{vLANE}\n  v_lshl_add_u32 v37, v37, 2, s60")
            rowloads("")
            A(f"  s_lshl_b32 s60, s41, 10\n  v_add_u32 v7, s60, v{vL16}\n  global_load_dwordx4 {vq(8)}, v7, {sp(sX)}")
            A(f"{l}:")
        def rows_b():
            if "R" in c["xskip"]: return
            l = self.lab("norows2")
            A(f"  s_cmp_ge_u32 s{sHW}, 2\n  s_cbranch_scc1 {l}\n  s_cmp_eq_u32 s{sFFN}, 0\n  s_cbranch_scc1 {l}")
            lr = self.lab("chkR"); dr = self.lab("gotR")
            A(f"{lr}:")
            self.check_lines([12, 16, 20, 24], [28, 29, 30, 31], 32)
            A(f"  s_cbranch_vccz {dr}")
            self.guard()
            rowloads(" sc1")
            A(f"  s_waitcnt vmcnt(0)\n  s_branch {lr}\n{dr}:")
            self.unpack8(20, 28)
            for i in range(8): A(f"  v_add_f32 v{28+i}, 1.0, v{28+i}")
            for i in range(4): A(f"  v_cvt_pk_bf16_f32 v{20+i}, v{28+2*i}, v{29+2*i}")
            self.lds_spin(F_Q2, 1, 7)
            A(f"  s_mul_i32 s60, s{sHW}, 5120\n  v_add_u32 v36, s60, v{vL16}")
            for i in range(5): A(f"  ds_write_b128 v36, {vq(8+4*i)} offset:{L_ROWS + 1024*i}")
            A(f"{l}:")
        self.wload32(SRDA, steps, c["HDO"], frac=c["HDOf"], hooks={c["PB"]: chkB, c["PR"]: rows_a, c["PR"] + c["HDO"]: rows_b})
        A("  s_branch L_wo")
        A("L_prodh:")
        if c["spref"]:
            l = self.lab("nosp"); pc = self.lab("spc")
            per = -(-c["prefkib"] * 8 // 6)
            A(f"  s_cmp_lg_u32 s{sHW}, 3\n  s_cbranch_scc1 {l}\n  s_getpc_b64 s[60:61]\n{pc}:\n  s_sub_u32 s60, s60, {pc}-{KNAME}\n  s_subb_u32 s61, s61, 0")
            A(f"  s_sub_u32 s65, s{sB}, 2\n  s_mul_i32 s65, s65, {per*128}\n  s_add_u32 s60, s60, s65\n  s_addc_u32 s61, s61, 0")
            for i in range(per):
                A(f"  s_load_dword s41, s[60:61], {128*i:#x}")
                if i % 12 == 11: A("  s_waitcnt lgkmcnt(0)")
            A(f"  s_waitcnt lgkmcnt(0)\n{l}:")
        A(f"  s_mov_b32 s{SRDA}, s{sWO}\n  s_mov_b32 s{SRDA+1}, s{sWO+1}\n  s_mov_b32 s{SRDA+2}, 4194304\n  s_mov_b32 s{SRDA+3}, 0x20000")
        A(f"  s_lshl_b32 s40, s{sH}, 17\n  s_lshl_b32 s60, s{sHW}, 8\n  s_add_u32 s40, s40, s60")
        A(f"  v_lshlrev_b32 v4, 4, v{vJ}\n  v_lshl_add_u32 v4, v{vG}, {self.wo_pattern()[0]}, v4")
        def recvq():
            l0 = self.lab("noq"); l = self.lab("pollPN"); d = self.lab("gotPN"); lq = self.lab("pollPQ"); dq = self.lab("gotPQ")
            A(f"  s_cmp_lg_u32 s{sHW}, 0\n  s_cbranch_scc1 {l0}")
            A(f"  s_load_dword s44, {sp(sDBG)}, 0x80\n  s_waitcnt lgkmcnt(0)\n{l}:\n  s_cmp_lg_u32 s44, 0\n  s_cbranch_scc1 {d}")
            self.guard()
            A(f"  s_load_dword s44, {sp(sDBG)}, 0x80 glc\n  s_waitcnt lgkmcnt(0)\n  s_branch {l}\n{d}:")
            A(f"  v_mov_b32 v26, s44\n  ds_write_b32 v{vZ}, v26 offset:{F_N}")
            A(f"  s_lshl_b32 s60, s2, 9\n  s_add_u32 s60, s60, {WS_QIN}\n  v_lshl_add_u32 v7, v{vLANE}, 3, s60\n  s_add_u32 s61, s60, 4")
            if "PQ" in c["xskip"]: A(f"  s_branch {dq}")
            A(f"{lq}:\n  s_load_dword s60, {sp(sWS)}, s61 glc\n  s_waitcnt lgkmcnt(0)\n  s_cmp_eq_u32 s60, s44\n  s_cbranch_scc0 {lq}_r")
            A(f"  global_load_dwordx2 v[8:9], v7, {sp(sWS)} sc1\n  s_waitcnt vmcnt(0)\n  v_cmp_ne_u32 vcc, s44, v9\n  s_cbranch_vccz {dq}")
            A(f"{lq}_r:")
            self.guard()
            A(f"  s_sleep {c['q_sleep']}\n  s_branch {lq}\n{dq}:")
            A(f"  v_lshlrev_b32 v7, 2, v{vLANE}\n  ds_write_b32 v7, v8 offset:{L_QB}")
            self.lds_inc(F_Q2)
            self.stamp(5)
            self.dumpv(8, 1, 0x80000, 2, 256)
            self.get_flag(7, 136, 45, expect="s44")
            self.lds_inc(F_C)
            A(f"{l0}:")
        self.wload32(SRDA, steps, c["HDP"], frac=c["HDPf"], hooks={c["PQ"]: recvq})
        self.lds_spin(F_Q2, 1, 7, sleep=4)
        A(f"  ds_read_b32 v7, v{vZ} offset:{F_N}\n  s_waitcnt lgkmcnt(0)\n  v_readfirstlane_b32 s44, v7")
        A("L_wo:")
        A("L_wodone:")
        if c["hprio"]: A(f"  s_setprio {c['hprio']}")
        if c["pref2"] and "T" not in c["xskip"]:
            self.prefetch(wait=True)
        self.lds_spin(F_C, 1, 7, sleep=4)
        A(f"  v_lshlrev_b32 v28, {5 if c['oadd'] else 3}, v{vG if c['oadd'] else vLANE}")
        A(f"  s_lshl_b32 s60, s{sHW}, 8\n  v_lshl_add_u32 v29, v{vLANE}, 2, s60\n  v_lshl_add_u32 v30, v{vG}, {6 if c['wopat'] == 32 else 4}, s60")
        A(f"  v_lshrrev_b32 v31, 2, v{vLANE}\n  v_and_b32 v32, 3, v{vLANE}\n  v_lshl_add_u32 v31, v32, 4, v31\n  v_lshlrev_b32 v36, 2, v31")
        A(f"  s_lshl_b32 s61, s{sB}, 12\n  s_add_u32 s61, s61, {WS_ACC}\n  v_add_u32 v32, s61, v29")
        A(f"  v_mov_b32 v33, 1.0\n  v_mov_b32 v34, 1.0\n  v_mov_b32 v35, 1.0\n  v_mov_b32_dpp v35, v{vZ} quad_perm:[0,1,2,3] row_mask:0x4 bank_mask:0xf")
        self.stamp(6)
        if "T" in c["xskip"]: A("  s_branch L_exit")
        if c["dryo"]:
            l = self.lab("nodryo")
            A(f"  s_cmp_lg_u32 s{sHW}, 3\n  s_cbranch_scc1 {l}\n  s_mov_b64 exec, 0\n  s_branch L_dry_o\nL_dry_oend:\n  s_mov_b64 exec, -1\n{l}:")
        self.lds_spin(F_O, 8, 7, sleep=c['o_sleep'])
        self.stamp(9)
        A("L_dry_o:")
        if c["oadd"]:
            rd = lambda q, off: A(f"  ds_read_b128 {vq(q)}, v28 offset:{L_OP + off}")
            rd(12, 0); rd(16, 16); rd(20, 128); rd(24, 144); rd(4, 256)
            A(f"  s_waitcnt lgkmcnt(3)")
            for i in range(4): A(f"  v_cvt_pk_bf16_f32 v{8+i}, v{12+2*i}, v{13+2*i}")
            A(f"  s_waitcnt lgkmcnt(1)")
            for i in range(4): A(f"  v_cvt_pk_bf16_f32 v{12+i}, v{20+2*i}, v{21+2*i}")
            rd(16, 272); rd(20, 384); rd(24, 400)
            self.stamp(10)
            res = [28] + [40 + 4 * k for k in range(7)]
            for m, Am in enumerate((8, 12, 4, 16)):
                for cc in range(8):
                    A(f"  v_mfma_f32_16x16x32_bf16 {vq(res[cc])}, {vq(Am)}, {vq(40+32*m+4*cc)}, {'0' if m == 0 else vq(res[cc])}")
                    if m == 0 and cc == 5:
                        A(f"  s_waitcnt lgkmcnt(0)")
                        A("  v_cvt_pk_bf16_f32 v4, v4, v5\n  v_cvt_pk_bf16_f32 v5, v6, v7\n  v_cvt_pk_bf16_f32 v6, v16, v17\n  v_cvt_pk_bf16_f32 v7, v18, v19")
                    if m == 1 and cc == 1:
                        for i in range(4): A(f"  v_cvt_pk_bf16_f32 v{16+i}, v{20+2*i}, v{21+2*i}")
        else:
            for part in range(8): A(f"  ds_read_b64 {vp(8+2*part)}, v28 offset:{L_OP + 512*part}")
            A("  s_waitcnt lgkmcnt(4)")
            A("  v_add_f32 v8, v8, v10\n  v_add_f32 v9, v9, v11\n  v_add_f32 v12, v12, v14\n  v_add_f32 v13, v13, v15\n  v_add_f32 v8, v8, v12\n  v_add_f32 v9, v9, v13")
            A("  s_waitcnt lgkmcnt(0)")
            A("  v_add_f32 v16, v16, v18\n  v_add_f32 v17, v17, v19\n  v_add_f32 v20, v20, v22\n  v_add_f32 v21, v21, v23\n  v_add_f32 v16, v16, v20\n  v_add_f32 v17, v17, v21")
            A(f"  v_add_f32 v8, v8, v16\n  v_add_f32 v9, v9, v17\n  v_cvt_pk_bf16_f32 v7, v8, v9\n  ds_write_b32 v29, v7 offset:{L_OB}")
            for m in range(4): A(f"  ds_read_b128 {vq(8+4*m)}, v30 offset:{L_OB + (16 if c['wopat'] == 32 else 64)*m}")
            A("  s_waitcnt lgkmcnt(0)")
            self.stamp(10)
            if c["dryo"]: A("  s_cbranch_execz L_dry_o2")
            res = self.gemv32()
            A("L_dry_o2:")
        self.stamp(11)
        for g in range(3):
            for k in range(3):
                if 3 * k + g < 8:
                    A(f"  v_mov_b32_dpp v{33+k}, v{res[3*k+g]} quad_perm:[0,1,2,3] row_mask:{1<<g:#x} bank_mask:0xf")
        for k in range(3): A(f"  ds_bpermute_b32 v{33+k}, v36, v{33+k}")
        if c["dryo"]: A("  s_cbranch_execz L_dry_oend")
        for k in range(3):
            A(f"  s_waitcnt lgkmcnt({2-k})\n  global_atomic_add_f32 v32, v{33+k}, {sp(sWS)} offset:{1024*k}")
        if c["gate"] or c["early"]:
            l = self.lab("g01")
            A(f"  s_cmp_lt_u32 s{sHW}, 2\n  s_cbranch_scc1 {l}")
            self.lds_inc(F_A)
            A(f"{l}:")
        else:
            self.lds_inc(F_A)
        self.stamp(7)
        if c["dump"] and not c["oadd"]:
            l = self.lab("nodumpo")
            A(f"  s_cmp_lg_u32 s{sHW}, 3\n  s_cbranch_scc1 {l}")
            self.dumpv(7, 1, 0x90000, 2, 256)
            A(f"{l}:")
        if c["dry"]:
            l = self.lab("nodry"); l2 = self.lab("dryf")
            A(f"  s_cmp_lg_u32 s{sHW}, 2\n  s_cbranch_scc1 {l}\n  s_cmp_lg_u32 s{sFFN}, 0\n  s_cbranch_scc1 {l2}\n  s_cmp_ge_u32 s57, 100\n  s_cbranch_scc1 L_exit")
            A(f"  s_mov_b64 exec, 0\n  s_branch L_dry_r\n{l2}:\n  s_mov_b64 exec, 0\n  s_branch L_dry_l\n{l}:")
        A(f"  s_cmp_ge_u32 s{sHW}, 2\n  s_cbranch_scc1 L_exit\n  s_cmp_lt_u32 s57, 100\n  s_cbranch_scc1 L_recv\n  s_cmp_eq_u32 s{sFFN}, 0\n  s_cbranch_scc1 L_exit")
        A(f"  s_lshl_b32 s45, s{sJ}, 1\n  s_add_u32 s45, s45, s{sHW}\n  s_lshl_b32 s45, s45, 6\n  s_add_u32 s45, s45, s{sSL}\n  s_lshl_b32 s45, s45, 7\n  s_add_u32 s45, s45, {WS_HINT}")
        if c["gate"]: A(f"  s_load_dword s61, {sp(sWS)}, s45 glc")
        if c["early"]: A(f"  s_lshl_b32 s60, s{sHW}, 2\n  v_mov_b32 v7, s60\n  ds_read_b32 v7, v7 offset:{F_HS}")
        A(f"  s_mul_i32 s60, s{sHW}, 5120\n  v_add_u32 v4, s60, v{vL16}")
        for i in range(4): A(f"  ds_read_b128 {vq(72+4*i)}, v4 offset:{L_ROWS + 1024*i}")
        A(f"  s_lshl_b32 s41, s{sJ}, 1\n  s_add_u32 s41, s41, s{sHW}\n  s_lshl_b32 s41, s41, 12\n  s_add_u32 s41, s41, {WS_ACC}\n  v_add_u32 v5, s41, v{vL16}\n  v_mov_b32 v6, s41")
        A(f"  s_lshl_b32 s60, s{sHW}, 10\n  v_add_u32 v4, s60, v{vL16}")
        A("  s_waitcnt lgkmcnt(0)")
        if c["early"]:
            le = self.lab("notlate"); lj0 = self.lab("lj")
            A(f"  v_readfirstlane_b32 s61, v7\n  s_cmp_eq_u32 s61, s44\n  s_cbranch_scc1 {le}")
            self.lds_inc(F_A)
            A(f"{le}:")
        self.unpack8(72, 88); self.unpack8(76, 96); self.unpack8(80, 104); self.unpack8(84, 112)
        if c["early"]:
            le2 = self.lab("notlate2")
            A(f"  s_cmp_lg_u32 s61, s44\n  s_cbranch_scc1 {le2}")
            if c["late_delay"]: A(f"  s_sleep {c['late_delay']}")
            for k in range(3): A(f"  global_load_dwordx4 {vq(120+4*k)}, v5, {sp(sWS)} offset:{1024*k}{c['accfl']}")
            self.lds_inc(F_A)
            self.stamp(1); self.cstamp(13)
            A(f"  s_branch {lj0}\n{le2}:")
        lp = self.lab("pollH"); ld = self.lab("gotH")
        if c["gate"]:
            lg = self.lab("late")
            A(f"  s_cmp_eq_u32 s61, s44\n  s_cbranch_scc1 {lg}")
            self.lds_inc(F_A)
        A(f"{lp}:\n  s_load_dword s60, {sp(sWS)}, s45 glc\n  s_waitcnt lgkmcnt(0)\n  s_cmp_eq_u32 s60, s44\n  s_cbranch_scc1 {ld}")
        self.guard()
        if c["hint_sleep"]: A(f"  s_sleep {c['hint_sleep']}")
        A(f"  s_branch {lp}\n{ld}:")
        if c["read_delay"]: A(f"  s_sleep {c['read_delay']}")
        if c["gate"]:
            for k in range(3): A(f"  global_load_dwordx4 {vq(120+4*k)}, v5, {sp(sWS)} offset:{1024*k}{c['accfl']}")
            lj = self.lab("gj")
            A(f"  s_branch {lj}\n{lg}:")
            for k in range(3): A(f"  global_load_dwordx4 {vq(120+4*k)}, v5, {sp(sWS)} offset:{1024*k}{c['accfl']}")
            self.lds_inc(F_A)
            A(f"{lj}:")
        self.stamp(1)
        self.cstamp(13)
        lp = self.lab("pollF"); ld = self.lab("gotF")
        if not c["gate"]:
            for k in range(3): A(f"  global_load_dwordx4 {vq(120+4*k)}, v5, {sp(sWS)} offset:{1024*k}{c['accfl']}")
        if c["early"]: A(f"{lj0}:")
        self.lds_inc(F_R)
        A(f"{lp}:")
        A("  s_waitcnt vmcnt(0)\n  v_min3_f32 v7, v123, v127, v131\n  v_cmp_neq_f32 vcc, 0x42000000, v7")
        A(f"  s_cbranch_vccz {ld}")
        self.guard()
        if c["full_sleep"]: A(f"  s_sleep {c['full_sleep']}")
        for k in range(3): A(f"  global_load_dwordx4 {vq(120+4*k)}, v5, {sp(sWS)} offset:{1024*k}{c['accfl']}")
        A(f"  s_branch {lp}\n{ld}:")
        self.stamp(2)
        self.cstamp(15)
        A("L_dry_l:")
        src = [120, 121, 122, 124, 125, 126, 128, 129]
        for i in range(4): A(f"  v_cvt_pk_bf16_f32 v{16+i}, v{src[2*i]}, v{src[2*i+1]}")
        self.unpack8(16, 8)
        self.pk8("mul", 8, 96, 8)
        self.rnd8(8, 16)
        self.pk8("add", 8, 88, 8)
        for i in range(4): A(f"  v_cvt_pk_bf16_f32 v{28+i}, v{8+2*i}, v{9+2*i}")
        self.unpack8(28, 8)
        self.layernorm(8, 16, 24)
        self.pk8("mul", 8, 8, 112)
        self.rnd8(8, 16)
        self.pk8("add", 8, 8, 104)
        for i in range(4): A(f"  v_cvt_pk_bf16_f32 v{24+i}, v{8+2*i}, v{9+2*i}")
        A(f"  ds_write_b128 v4, {vq(24)} offset:{L_H2}\n  ds_write_b128 v4, {vq(28)} offset:{L_X1}\n  s_waitcnt lgkmcnt(0)")
        if c["dry"]: A("  s_cbranch_execz L_dry_red")
        self.stamp(3)
        A("  s_barrier")
        if c["dump"]:
            A(f"  s_lshl_b32 s69, s2, 1\n  s_add_u32 s69, s69, s{sHW}")
            self.dumpv(24, 4, 0x600000, 69, 1024)
        A(f"  s_cmp_eq_u32 s{sHW}, 0\n  s_cbranch_scc1 L_reducer")
        A(f"  s_cmp_ge_u32 s{sSL}, 32\n  s_cbranch_scc1 {'L_h1bar' if c['stamps'] else 'L_exit'}")
        A(f"  s_lshr_b32 s60, s{sSL}, 2\n  s_lshl_b32 s60, s60, 7\n  s_and_b32 s61, s{sSL}, 3\n  s_lshl_b32 s61, s61, 1\n  s_add_u32 s60, s60, s61\n  v_lshl_add_u32 v4, v{vJ}, 3, s60")
        A(f"  ds_read_u16 v8, v4 offset:{L_X1}\n  ds_read_u16 v9, v4 offset:{L_ROWS + 4096}\n  ds_read_u16 v12, v4 offset:{L_X1 + 1024}\n  ds_read_u16 v13, v4 offset:{L_ROWS + 4096 + 5120}")
        A(f"  s_lshl_b32 s60, s{sJ}, 5\n  s_add_u32 s60, s60, s{sSL}\n  s_mul_i32 s60, s60, {INB}\n  s_add_u32 s60, s60, {WS_INBOX + 43*256}\n  v_lshl_add_u32 v5, v{vJ}, 4, s60")
        A(f"  s_xor_b32 s45, s44, {TAGX:#x}\n  v_mov_b32 v10, s44\n  v_mov_b32 v11, s45\n  s_mov_b64 exec, 0xffff\n  s_waitcnt lgkmcnt(0)\n  v_lshl_or_b32 v8, v12, 16, v8\n  v_lshl_or_b32 v9, v13, 16, v9")
        A(f"  global_store_dwordx4 v5, {vq(8)}, {sp(sWS)} sc1")
        A("L_h1bar:\n  s_barrier\n  s_barrier\n  s_branch L_exit2")
        A("L_recv:")
        A(f"  s_lshl_b32 s41, s{sB}, 3\n  s_add_u32 s41, s41, s{sXCD}\n  s_lshl_b32 s41, s41, 1\n  s_add_u32 s41, s41, s{sHW}")
        A(f"  s_mul_i32 s46, s41, {INB}\n  s_add_u32 s46, s46, {WS_INBOX}\n  s_add_u32 s47, s46, {43*256 + 8}\n  s_add_u32 s60, s46, 4096\n  v_add_u32 v5, s60, v{vL16}\n  v_add_u32 v7, 4096, v5")
        A(f"  s_lshr_b32 s60, s41, 5\n  s_lshl_b32 s60, s60, 11\n  s_bfe_u32 s61, s41, 0x30002\n  s_lshl_b32 s61, s61, 7\n  s_add_u32 s60, s60, s61\n  s_and_b32 s61, s41, 3\n  s_lshl_b32 s61, s61, 1\n  s_add_u32 s60, s60, s61")
        A(f"  v_and_b32 v4, 1, v{vG}\n  v_lshl_add_u32 v6, v{vJ}, 3, s60\n  v_lshl_add_u32 v6, v4, 10, v6\n  v_lshlrev_b32 v4, 4, v4\n  v_sub_u32 v4, 16, v4")
        A(f"  s_xor_b32 s45, s44, {TAGX:#x}")
        lp = self.lab("pollX"); ld = self.lab("gotX")
        A(f"{lp}:\n  s_load_dword s60, {sp(sWS)}, s47 glc\n  s_waitcnt lgkmcnt(0)\n  s_cmp_eq_u32 s60, s44\n  s_cbranch_scc1 {ld}")
        self.guard()
        A(f"  s_sleep {c['rx_sleep']}\n  s_branch {lp}\n{ld}:")
        self.stamp(1)
        if c["rx_delay"]: A(f"  s_sleep {c['rx_delay']}")
        lp = self.lab("pollI"); ld = self.lab("gotI")
        A(f"{lp}:")
        for i in range(11): A(f"  global_load_dwordx4 {vq(44+4*i)}, v{5 if i < 8 else 7}, {sp(sWS)} offset:{1024*i - (4096 if i < 8 else 8192)}{c['rxfl']}")
        A("L_dry_r:")
        for i in range(11):
            q = 44 + 4 * i
            A(f"  s_waitcnt vmcnt({10-i})")
            if i == 0:
                A(f"  v_xor_b32 v10, s44, v{q+2}\n  v_xor_b32 v11, s45, v{q+3}\n  v_mov_b32 v8, v{q}\n  v_mov_b32 v9, v{q+1}")
            else:
                A(f"  v_bitop3_b32 v10, v10, v{q+2}, s44 bitop3:0xf6\n  v_bitop3_b32 v11, v11, v{q+3}, s45 bitop3:0xf6")
                if i < 10: A(f"  v_add_f32 v8, v8, v{q}\n  v_add_f32 v9, v9, v{q+1}")
                else: A(f"  v_add_f32_dpp v8, v{q}, v8 quad_perm:[0,1,2,3] row_mask:0x7 bank_mask:0xf\n  v_add_f32_dpp v9, v{q+1}, v9 quad_perm:[0,1,2,3] row_mask:0x7 bank_mask:0xf")
        A(f"  v_or_b32 v10, v10, v11\n  v_cmp_ne_u32 vcc, 0, v10\n  s_cbranch_vccz {ld}")
        self.guard()
        A(f"  s_branch {lp}\n{ld}:")
        self.stamp(4); self.cstamp(15)
        if c["xdelay"]: A(f"  s_sleep {c['xdelay']}")
        A("  v_mov_b32 v12, v84\n  v_mov_b32 v13, v85\n  v_permlane16_swap_b32 v8, v9\n  v_permlane32_swap_b32 v12, v84\n  v_permlane32_swap_b32 v13, v85")
        A("  v_add_f32 v8, v8, v9\n  v_mov_b32 v12, v84\n  v_mov_b32 v13, v85\n  v_mov_b32 v9, v8")
        A("  v_permlane16_swap_b32 v12, v84\n  v_permlane16_swap_b32 v13, v85\n  v_permlane32_swap_b32 v9, v8")
        A("  v_lshlrev_b32 v84, v4, v84\n  v_lshlrev_b32 v85, v4, v85\n  v_add_f32 v8, v8, v9\n  v_and_b32 v84, 0xffff0000, v84\n  v_and_b32 v85, 0xffff0000, v85")
        self.rnd1(8, 9)
        A("  v_mul_f32 v8, v85, v8"); self.rnd1(8, 9)
        A("  v_add_f32 v8, v84, v8\n  v_cvt_pk_bf16_f32 v8, v8, v8")
        if c["dry"]: A("  s_cbranch_execz L_exit")
        A("  s_mov_b32 exec_hi, 0")
        A(f"  global_store_short v6, v8, {sp(sOUT)}{c['outfl']}")
        self.execall()
        self.stamp(5)
        A("  s_branch L_exit")
        A("L_reducer:")
        A(f"  v_lshlrev_b32 v4, 2, v{vLANE}\n  v_add_u32 v4, {L_GUP}, v4")
        A(f"  v_and_b32 v5, 1, v{vLANE}\n  v_lshlrev_b32 v5, 6, v5\n  v_and_b32 v6, 62, v{vLANE}\n  v_add_u32 v5, v5, v6")
        A("  s_barrier")
        A("L_dry_red:")
        for w in range(8): A(f"  ds_read2st64_b32 {vp(8+2*w)}, v4 offset0:{2*w} offset1:{2*w+1}")
        A("  s_waitcnt lgkmcnt(4)")
        A("  v_add_f32 v8, v8, v10\n  v_add_f32 v9, v9, v11\n  v_add_f32 v12, v12, v14\n  v_add_f32 v13, v13, v15\n  v_add_f32 v8, v8, v12\n  v_add_f32 v9, v9, v13")
        A("  s_waitcnt lgkmcnt(0)")
        A("  v_add_f32 v16, v16, v18\n  v_add_f32 v17, v17, v19\n  v_add_f32 v20, v20, v22\n  v_add_f32 v21, v21, v23\n  v_add_f32 v16, v16, v20\n  v_add_f32 v17, v17, v21")
        A("  v_add_f32 v8, v8, v16\n  v_add_f32 v9, v9, v17")
        self.rnd2(8, 9, 10)
        A(f"  v_mul_f32 v8, s{sLOG2E}, v8\n  v_exp_f32 v8, -v8\n  v_add_f32 v8, 1.0, v8\n  v_rcp_f32 v8, v8")
        self.rnd1(8, 10)
        A(f"  v_mul_f32 v8, v8, v9\n  v_cvt_pk_bf16_f32 v8, v8, v8\n  ds_write_b16 v5, v8 offset:{L_HH}\n  s_waitcnt lgkmcnt(0)")
        if c["dry"]: A("  s_cbranch_execz L_dry_s")
        A("  s_barrier")
        self.stamp(4)
        self.dumpv(8, 1, 0xE0000, 2, 256)
        A("  s_branch L_exit2")

    def build(self):
        A = self.A; c = self.c
        A(f"{KNAME}:")
        if c["stamps"]:
            for k in range(1, 16): A(f"  s_mov_b64 s[{70+2*k}:{71+2*k}], 0")
        self.stamp(0)
        A("  s_cmp_ge_u32 s2, 256\n  s_cbranch_scc1 L_end")
        A("  s_load_dwordx16 s[4:19], s[0:1], 0\n  s_load_dwordx8 s[20:27], s[0:1], 64\n  s_load_dwordx4 s[28:31], s[0:1], 96")
        A(f"  v_lshrrev_b32 v2, 6, v0\n  v_and_b32 v0, 63, v0\n  v_readfirstlane_b32 s{sWAVE}, v2")
        A(f"  v_lshlrev_b32 v{vL16}, 4, v0")
        A(f"  s_and_b32 s{sXCD}, s2, 7\n  s_lshr_b32 s{sIDX}, s2, 3\n  s_lshr_b32 s{sB}, s{sIDX}, 2\n  s_and_b32 s{sJ}, s{sIDX}, 3")
        if c["hmap"] == 0: A(f"  s_lshl_b32 s{sH}, s{sXCD}, 2\n  s_add_u32 s{sH}, s{sH}, s{sJ}")
        elif c["hmap"] == 1: A(f"  s_lshl_b32 s{sH}, s{sJ}, 3\n  s_add_u32 s{sH}, s{sH}, s{sXCD}")
        elif c["hmap"] == 2: A(f"  s_lshr_b32 s{sH}, s{sXCD}, 1\n  s_lshl_b32 s{sH}, s{sH}, 3\n  s_and_b32 s60, s{sXCD}, 1\n  s_add_u32 s{sH}, s{sH}, s60\n  s_lshl_b32 s60, s{sJ}, 1\n  s_add_u32 s{sH}, s{sH}, s60")
        elif c["hmap"] == 3: A(f"  s_lshl_b32 s{sH}, s{sXCD}, 2\n  s_add_u32 s60, s{sJ}, 1\n  s_and_b32 s60, s60, 3\n  s_add_u32 s{sH}, s{sH}, s60")
        if c["fast0"]:
            l = self.lab("nofast")
            A(f"  s_cmp_ge_u32 s{sWAVE}, 8\n  s_cbranch_scc1 {l}")
            A(f"  s_lshl_b32 s56, s{sB}, 5\n  s_add_u32 s56, s56, s{sH}\n  s_lshl_b32 s56, s56, 20\n  s_add_u32 s56, s56, 0xC0000\n  s_lshl_b32 s{sOFF}, s{sWAVE}, {10 + c['gran'].bit_length() - 1}")
            A(f"  s_mov_b32 s{SRDA+2}, 0x40000\n  s_mov_b32 s{SRDA+3}, 0x20000\n  s_waitcnt lgkmcnt(0)\n  s_add_u32 s{SRDA}, s{sK}, s56\n  s_addc_u32 s{SRDA+1}, s{sK+1}, 0")
            for n in range(2): A(f"  buffer_load_dwordx4 {vq(40+4*n)}, v{vL16}, {sq(SRDA)}, s{sOFF} offen offset:{1024*n}{c['kfl']}")
            self.stamp(8)
            A(f"{l}:")
        if c["pref"]: self.prefetch()
        A(f"  v_mov_b32 v36, 0\n  v_mov_b32 v37, 0\n  v_lshrrev_b32 v{vG}, 4, v0\n  v_and_b32 v{vJ}, 15, v0\n  v_mov_b32 v{vZ}, 0\n  v_mov_b32 v{vONE}, 1")
        A(f"  s_mul_i32 s65, s{sB}, 3\n  s_add_u32 s65, s65, s{sJ}\n  s_lshr_b32 s60, s{sJ}, 1\n  s_sub_u32 s65, s65, s60\n  s_lshr_b32 s61, s65, 2")
        A(f"  s_lshr_b32 s60, s{sXCD}, 1\n  s_mul_i32 s{sSL}, s{sXCD}, 5\n  s_add_u32 s{sSL}, s{sSL}, s60\n  s_add_u32 s{sSL}, s{sSL}, s61\n  s_sub_u32 s{sSL}, s{sSL}, 1")
        A(f"  s_and_b32 s60, s{sXCD}, 1\n  s_add_u32 s60, s60, 5\n  s_cmp_lt_u32 s61, s60\n  s_cselect_b32 s{sFFN}, 1, 0\n  s_cmp_lt_u32 s{sSL}, 43\n  s_cselect_b32 s{sFFN}, s{sFFN}, 0")
        A(f"  s_add_u32 s60, s{sXCD}, 256\n  s_cmp_eq_u32 s{sIDX}, 28\n  s_cselect_b32 s57, s60, 100")
        A(f"  s_sub_u32 s60, s{sB}, {c['prodb']}\n  s_lshl_b32 s60, s60, 3\n  s_add_u32 s60, s60, s{sXCD}\n  s_cmp_lt_u32 s{sB}, {c['prodb']}\n  s_cselect_b32 s60, 64, s60")
        A(f"  s_cmp_eq_u32 s{sJ}, 1\n  s_cselect_b32 s57, s60, s57\n  s_cselect_b32 s{sFFN}, 0, s{sFFN}\n  s_and_b32 s{sJ}, s65, 3")
        if "M" in c["xskip"]: A("  s_cmp_lt_u32 s57, 48\n  s_cselect_b32 s57, 100, s57")
        if "F" in c["xskip"]: A("  s_cmp_ge_u32 s57, 256\n  s_cselect_b32 s57, 100, s57")
        A(f"  s_mov_b32 s{sGUARD}, 0\n  s_mov_b32 s{sPLO}, 0x05040100\n  s_mov_b32 s{sPHI}, 0x07060302\n  s_mov_b32 s{sLOG2E}, {LOG2E:#x}")
        A(f"  s_cmp_ge_u32 s{sWAVE}, 8\n  s_cbranch_scc1 L_helper")
        if c["sprio"]:
            l = self.lab("sp")
            A(f"  s_cmp_lt_u32 s{sWAVE}, 4\n  s_cbranch_scc1 {l}\n  s_setprio {c['sprio']}\n{l}:")
        A(f"  s_lshl_b32 s60, s{sB}, 5\n  s_add_u32 s60, s60, s{sH}\n  s_lshl_b32 s60, s60, 20\n  s_add_u32 s60, s60, 0xC0000")
        A(f"  s_lshl_b32 s{sOFF}, s{sWAVE}, {10 + c['gran'].bit_length() - 1}\n  s_mul_i32 s56, s{sWAVE}, {c['NV']*1024}\n  s_add_u32 s56, s56, {L_V}")
        gr = c["gran"] // 4
        for G in range(1, 8): A(f"  s_add_u32 s{sOFF+G}, s{sOFF}, {(G // gr) * 32768 * gr + (G % gr) * 4096}")
        A(f"  s_mov_b32 s{SRDA+2}, 0x40000\n  s_mov_b32 s{SRDA+3}, 0x20000\n  s_mov_b32 s{SRDB+2}, 0x40000\n  s_mov_b32 s{SRDB+3}, 0x20000")
        A("  s_waitcnt lgkmcnt(0)")
        D = c["D"]
        d2 = c["depth2"] or c["depth"]
        def mask(f1, f2):
            m = 0; acc = 0.5
            for n in range(64):
                acc += f1 if n < c["dsw"] else f2
                if acc >= 1.0 - 1e-9:
                    acc -= 1.0
                    if n < c["sprint"]: m |= 1 << n
            return m
        m1 = [mask(min(1.0, D - a), min(1.0, D - b)) for a, b in zip(c["depth"], d2)]
        m2 = [mask(max(0.0, D - 1 - a), max(0.0, D - 1 - b)) & x for a, b, x in zip(c["depth"], d2, m1)]
        for reg, ms in ((58, m1), (14, m2)):
            for half in range(2):
                w = [(m >> (32 * half)) & 0xffffffff for m in ms]
                A(f"  s_bitcmp1_b32 s{sXCD}, 0\n  s_mov_b32 s{reg+half}, {w[0]:#x}\n  s_cselect_b32 s{reg+half}, {w[1]:#x}, s{reg+half}")
                A(f"  s_cmp_lt_u32 s57, 48\n  s_cselect_b32 s{reg+half}, {w[2]:#x}, s{reg+half}\n  s_cmp_eq_u32 s57, 64\n  s_cselect_b32 s{reg+half}, {w[3]:#x}, s{reg+half}")
        A("  s_waitcnt lgkmcnt(0)")
        A(f"  s_add_u32 s{SRDA}, s{sK}, s60\n  s_addc_u32 s{SRDA+1}, s{sK+1}, 0\n  s_add_u32 s{SRDB}, s{sV}, s60\n  s_addc_u32 s{SRDB+1}, s{sV+1}, 0")
        if c["Dodd"]:
            A(f"  s_bitcmp1_b32 s{sXCD}, 0\n  s_cbranch_scc1 L_sodd")
        self.streamer(c["D"], "e")
        if c["Dodd"]:
            A("L_sodd:")
            self.streamer(c["Dodd"], "o")
        self.streamer_ffn()
        self.helper()
        if c["sub"]:
            A("L_gemv:"); self.gemv32(body=True); A("  s_setpc_b64 s[42:43]")
        A("L_exit2:")
        if c["stamps"]: A("  s_sleep 100")
        A("L_exit:")
        if c["stamps"] and c["diag"]:
            A(f"  s_sleep 127\n  s_sleep 127\n  s_load_dword s44, {sp(sDBG)}, 0x80\n  s_waitcnt lgkmcnt(0)\n  s_cmp_ge_u32 s{sWAVE}, 8\n  s_cbranch_scc1 L_diagh\n  s_cmp_lg_u32 s{sWAVE}, 7\n  s_cbranch_scc1 L_end")
            def rec(k, slot):
                l = self.lab("dg")
                A(f"  s_cmp_eq_u32 s{70+2*k}, 0\n  s_cbranch_scc1 {l}\n  s_sub_u32 s60, s{70+2*k}, s44\n  s_add_u32 s60, s60, 1000\n  s_atomic_umax s60, {sp(sDBG)}, {4*slot:#x}\n{l}:")
            for k, slot in ((0, 4), (11, 5), (1, 6), (3, 7), (5, 8), (7, 9)): rec(k, slot)
            A("  s_endpgm\nL_diagh:")
            A(f"  s_cmp_lg_u32 s{sWAVE}, 8\n  s_cbranch_scc1 L_end")
            for k, slot in ((6, 10), (7, 11), (2, 12), (3, 13), (4, 14), (5, 15)): rec(k, slot)
        elif c["stamps"]:
            A("  s_mov_b64 exec, 1\n  s_waitcnt lgkmcnt(0)")
            A(f"  s_mul_i32 s60, s2, 12\n  s_add_u32 s60, s60, s{sWAVE}\n  s_lshl_b32 s60, s60, 7\n  s_add_u32 s60, s60, {WS_STAMP}\n  v_mov_b32 v4, s60")
            for k in range(16):
                A(f"  v_mov_b32 v6, s{70+2*k}\n  v_mov_b32 v7, s{71+2*k}\n  global_store_dwordx2 v4, v[6:7], {sp(sWS)} offset:{8*k}")
        A("L_end:\n  s_endpgm")
        body = fix_hazards(self.L)
        nk = c["prefkib"]
        out = HEADER + f"; @launch grid=(256,1,1) block=(768,1,1) lds={L_V + 8192*c['NV']}\n"
        out += '.amdgcn_target "amdgcn-amd-amdhsa--gfx950"\n.text\n'
        out += f".globl {KNAME}\n.p2align 8\n.type {KNAME},@function\n" + body
        out += "  .fill 64, 4, 0xbf800000\n"
        if c["spref"]: nk += 1
        if c["pref"] or c["pref2"] or c["spref"]:
            out += f"L_codeend:\n.if (L_codeend - {KNAME}) < {nk*1024}\n.fill ({nk*1024} - (L_codeend - {KNAME}))/4, 4, 0xbf800000\n.endif\n"
        out += f""".section .rodata,"a"
.p2align 6
.amdhsa_kernel {KNAME}
  .amdhsa_next_free_vgpr 168
  .amdhsa_next_free_sgpr 102
  .amdhsa_accum_offset 168
  .amdhsa_group_segment_fixed_size 0
  .amdhsa_kernarg_size 112
  .amdhsa_user_sgpr_count 2
  .amdhsa_user_sgpr_kernarg_segment_ptr 1
  .amdhsa_system_sgpr_workgroup_id_x 1
  .amdhsa_float_denorm_mode_32 3
.end_amdhsa_kernel
"""
        return out

def gen(**cfg): return Gen(**cfg).build()

if __name__ == "__main__":
    import json
    cfg = json.loads(sys.argv[2]) if len(sys.argv) > 2 else {}
    open(sys.argv[1], "w").write(gen(**cfg))
```

```python
import sys, struct
from asmlib import fix_hazards

KNAME = "adaLN_cond__sliding_block_cached__glu_gated_glu__decode_kernel"

HEADER = """; Kernarg layout for this problem (112 bytes, ptrs only, base s[0:1]):
;   offset  32: d_in[4] A_wo  shape=(4096, 512) dtype=bfloat16
;   offset  80: d_in[10] w_mod  shape=(512, 3072) dtype=bfloat16
;   offset 104: d_ws      workspace
; One persistent launch, one workgroup per (batch b, head h), 12 waves:
;  * waves 8-11 (helpers) hold the wq / wo slice of the head in registers: LayerNorm + adaLN modulation, q projection,
;  Every bf16 rounding of the reference is reproduced. Hand-offs between workgroups go through d_ws and are validated
;  with a per-launch nonce published in d_debug (checksums / tagged granules), so stale workspace contents are never used.
;  The s_sleep instructions are back-offs of the spin-waits (polling too early slows the writers down).
"""

WS_MOD, WS_STAT, WS_MARK, WS_ACC, WS_QTAG, WS_HINT, WS_INBOX, WS_QIN, WS_DUMP, WS_STAMP = 0x0, 0xC000, 0xD000, 0x10000, 0x18000, 0x20000, 0x40000, 0x1C0000, 0x200000, 0x20000000
F_H, F_Q, F_Q2, F_ST, F_O, F_MOD, F_MOD2, F_C, F_P, F_W, F_K, F_A, F_R, F_N, F_HS = 0, 4, 8, 12, 16, 20, 24, 28, 32, 36, 40, 44, 48, 52, 56
L_STATS, L_QB, L_OP, L_OB, L_HBUF, L_QP = 0x40, 0x100, 0x200, 0x1200, 0x1600, 0x2600
L_MODR, L_H2, L_X1, L_GUP, L_HH, L_MODP = 0x2200, 0x4A00, 0x5200, 0x5A00, 0x6A00, 0x7000
L_V = 0x7000
L_ROWS = 0x1600

def f2u(x): return struct.unpack("<I", struct.pack("<f", x))[0]
INB = 11264
TAGX = 0x5bd1e995
LOG2E = f2u(1.4426950408889634)
SCALE = f2u(128 ** -0.5)

sX, sK, sV, sWQ, sWO, sG, sU, sDN, sC, sWM, sOUT, sDBG, sWS = 4, 6, 8, 10, 12, 16, 18, 20, 22, 24, 26, 28, 30
sWAVE, sXCD, sIDX, sB, sJ, sH, sSL, sFFN = 32, 33, 34, 35, 36, 37, 38, 39
sOFF = 40
SRDA, SRDB = 48, 52
sPLO, sPHI, sGUARD, sLOG2E = 62, 63, 64, 66
sHW = 67
vLANE, vL16, vG, vJ, vZ, vONE = 0, 1, 2, 3, 38, 39

def sp(r): return f"s[{r}:{r+1}]"
def sq(r): return f"s[{r}:{r+3}]"
def vp(r): return f"v[{r}:{r+1}]"
def vq(r): return f"v[{r}:{r+3}]"

class Gen:
    def __init__(self, **cfg):
        self.c = dict(D=4, HD=4, HD0=6, HDO=4, P0=24, stamps=False, dump=False, guard=200000, pref=False,
                      inbox_sleep=6, hint_sleep=2, Dodd=None, pref2=False, prefwg=16, prefkib=26, hint_at=28, poll_sleep=8, NV=16, depth=[3.15, 3.15, 4, 3.15], FD=4, NF0=0, HDOf=4, H0D=4, H0D1=2, prio=2, nowo=False, wo_at=None, abl=None, init_mode='full', ablD=7, H0DQ=18, H0pre=True, fillD=4, nofill=False, q_sleep0=8, q_sleep=8, a_sleep=16, xskip=[], plainA=True, down_late=False, wofl='', tlb=0, modlag=2, HDf=4, ffnfl='', HDP=2, HDPf=2, PQ=25, kfl=' nt', vfl=' nt', hmap=0, wqpat=32, full_sleep=0, hint_lag=3, PB=2, fmode='flood', PR=8, wqpf=3, wqpfD=16, wqfl='', wqx=0, sprint=58, prodb=2, o_sleep=1, depth2=[3.15, 3.15, 4, 3.6], dsw=34, gran=4, outfl=' sc1', hprio=2, sprio=1, sprio_off=31, dry=True, prefidx=13, diag=False, early=True, xdelay=0, modil=False, spref=0, wopat=8, rxfl=' sc1', accfl=' sc1', txfl=' sc1', late_delay=10, sub=False, dryo=False, gate=False, oadd=False, fast0=True, read_delay=18, barD=False, rx_sleep=8, rx_delay=14)
        self.c.update(cfg)
        self.L = []
        self.nlab = 0

    def A(self, s): self.L.append(s)
    def lab(self, base):
        self.nlab += 1
        return f"L_{base}_{self.nlab}"
    def stamp(self, k):
        if self.c["stamps"]: self.A(f"  s_memrealtime s[{70+2*k}:{71+2*k}]")
    def cstamp(self, k):
        if self.c["stamps"]:
            self.A(f"  s_waitcnt lgkmcnt(0)\n  s_mul_i32 s{70+2*k}, s{sGUARD}, 100\n  s_add_u32 s{70+2*k}, s{70+2*k}, s70\n  s_addc_u32 s{71+2*k}, s71, 0")
    def guard(self):
        if self.c["guard"]:
            self.A(f"  s_add_u32 s{sGUARD}, s{sGUARD}, 1\n  s_cmp_gt_u32 s{sGUARD}, {self.c['guard']}\n  s_cbranch_scc1 L_exit")
    def exec1(self): self.A("  s_mov_b64 exec, 1")
    def execall(self): self.A("  s_mov_b64 exec, -1")

    def lds_spin(self, off, target, tmp, sleep=1):
        l = self.lab("spin"); d = self.lab("spun")
        self.A(f"{l}:")
        self.A(f"  ds_read_b32 v{tmp}, v{vZ} offset:{off}\n  s_waitcnt lgkmcnt(0)\n  v_readfirstlane_b32 s60, v{tmp}")
        self.A(f"  s_cmp_ge_u32 s60, {target}\n  s_cbranch_scc1 {d}")
        self.guard()
        if sleep: self.A(f"  s_sleep {sleep}")
        self.A(f"  s_branch {l}\n{d}:")

    def lds_inc(self, off):
        self.exec1(); self.A(f"  ds_add_u32 v{vZ}, v{vONE} offset:{off}"); self.execall()

    def dumpv(self, reg, n, base, sidx=None, stride=0, tmp=36):
        if not self.c["dump"]: return
        A = self.A
        if sidx is not None:
            A(f"  s_mul_i32 s68, s{sidx}, {stride}\n  s_add_u32 s68, s68, {WS_DUMP + base}")
        else:
            A(f"  s_mov_b32 s68, {WS_DUMP + base}")
        A(f"  v_lshlrev_b32 v{tmp}, {dict([(1,2),(2,3),(4,4)])[n]}, v{vLANE}\n  v_add_u32 v{tmp}, s68, v{tmp}")
        op = {1: "dword", 2: "dwordx2", 4: "dwordx4"}[n]
        r = f"v{reg}" if n == 1 else f"v[{reg}:{reg+n-1}]"
        A(f"  global_store_{op} v{tmp}, {r}, {sp(sWS)}\n  s_waitcnt vmcnt(0)")

    def prefetch(self, wait=False):
        A = self.A
        l = self.lab("nopref"); lp = self.lab("pref"); pc = self.lab("pc")
        A(f"  s_cmp_lg_u32 s{sWAVE}, 11\n  s_cbranch_scc1 {l}\n  s_cmp_lg_u32 s{sIDX}, {self.c['prefidx']}\n  s_cbranch_scc1 {l}")
        A(f"  s_getpc_b64 s[60:61]\n{pc}:\n  s_sub_u32 s60, s60, {pc}-{KNAME}\n  s_subb_u32 s61, s61, 0\n  v_mov_b32 v36, v{vL16}\n  s_mov_b32 s65, {self.c['prefkib']}")
        A(f"{lp}:\n  global_load_dword v35, v36, s[60:61]\n  v_add_u32 v36, 1024, v36\n  s_sub_u32 s65, s65, 1\n  s_cmp_lg_u32 s65, 0\n  s_cbranch_scc1 {lp}")
        if wait: A("  s_waitcnt vmcnt(0)")
        A(f"{l}:")

    def rnd1(self, x, t):
        self.A(f"  v_cvt_pk_bf16_f32 v{t}, v{x}, v{x}\n  v_and_b32 v{x}, 0xffff0000, v{t}")
    def rnd2(self, x, y, t):
        self.A(f"  v_cvt_pk_bf16_f32 v{t}, v{x}, v{y}\n  v_lshlrev_b32 v{x}, 16, v{t}\n  v_and_b32 v{y}, 0xffff0000, v{t}")
    def rnd8(self, X, T):
        for i in range(4): self.A(f"  v_cvt_pk_bf16_f32 v{T+i}, v{X+2*i}, v{X+2*i+1}")
        self.unpack8(T, X)
    def unpack8(self, src, dst):
        for i in range(4):
            self.A(f"  v_lshlrev_b32 v{dst+2*i}, 16, v{src+i}\n  v_and_b32 v{dst+2*i+1}, 0xffff0000, v{src+i}")
    def wave_reduce(self, op, regs, full=True):
        steps = []
        if full: steps += ["quad_perm:[1,0,3,2] row_mask:0xf bank_mask:0xf", "quad_perm:[2,3,0,1] row_mask:0xf bank_mask:0xf"]
        steps += ["row_ror:4 row_mask:0xf bank_mask:0xf", "row_ror:8 row_mask:0xf bank_mask:0xf",
                  "row_bcast:15 row_mask:0xa bank_mask:0xf", "row_bcast:31 row_mask:0xc bank_mask:0xf"]
        for s in steps:
            for r in regs: self.A(f"  {op}_dpp v{r}, v{r}, v{r} {s}")

    def pk8(self, op, D, Aq, Bq):
        for i in range(0, 8, 2): self.A(f"  v_pk_{op}_f32 {vp(D+i)}, {vp(Aq+i)}, {vp(Bq+i)}")

    def layernorm(self, X, T, S):
        A = self.A
        A(f"  v_readfirstlane_b32 s60, v{X}")
        for i in range(0, 8, 2): A(f"  v_pk_add_f32 {vp(T+i)}, {vp(X+i)}, s[60:61] op_sel_hi:[1,0] neg_lo:[0,1] neg_hi:[0,1]")
        A(f"  v_pk_add_f32 {vp(S)}, {vp(T)}, {vp(T+2)}\n  v_pk_mul_f32 {vp(S+2)}, {vp(T)}, {vp(T)}")
        A(f"  v_pk_add_f32 {vp(S)}, {vp(S)}, {vp(T+4)}\n  v_pk_fma_f32 {vp(S+2)}, {vp(T+2)}, {vp(T+2)}, {vp(S+2)}")
        A(f"  v_pk_add_f32 {vp(S)}, {vp(S)}, {vp(T+6)}\n  v_pk_fma_f32 {vp(S+2)}, {vp(T+4)}, {vp(T+4)}, {vp(S+2)}")
        A(f"  v_add_f32 v{S}, v{S}, v{S+1}\n  v_pk_fma_f32 {vp(S+2)}, {vp(T+6)}, {vp(T+6)}, {vp(S+2)}\n  v_add_f32 v{S+1}, v{S+2}, v{S+3}")
        self.wave_reduce("v_add_f32", [S, S + 1])
        A(f"  v_readlane_b32 s61, v{S}, 63\n  v_readlane_b32 s65, v{S+1}, 63")
        inv = f2u(1.0 / 512)
        A(f"  v_mov_b32 v{S+2}, {inv:#x}")
        A(f"  v_mul_f32 v{S}, s61, v{S+2}\n  v_mul_f32 v{S+1}, s65, v{S+2}")
        A(f"  v_fma_f32 v{S+1}, -v{S}, v{S}, v{S+1}\n  v_add_f32 v{S}, s60, v{S}\n  v_max_f32 v{S+1}, 0, v{S+1}")
        self.rnd2(S, S + 1, S + 2)
        A(f"  v_add_f32 v{S+1}, {f2u(1e-5):#x}, v{S+1}")
        for i in range(0, 4, 2): A(f"  v_pk_add_f32 {vp(X+i)}, {vp(X+i)}, {vp(S)} op_sel_hi:[1,0] neg_lo:[0,1] neg_hi:[0,1]")
        A(f"  v_cvt_pk_bf16_f32 v{S+2}, v{S+1}, v{S+1}")
        for i in range(4, 8, 2): A(f"  v_pk_add_f32 {vp(X+i)}, {vp(X+i)}, {vp(S)} op_sel_hi:[1,0] neg_lo:[0,1] neg_hi:[0,1]")
        A(f"  v_and_b32 v{S+1}, 0xffff0000, v{S+2}\n  v_sqrt_f32 v{S+1}, v{S+1}")
        for i in range(4): A(f"  v_cvt_pk_bf16_f32 v{T+i}, v{X+2*i}, v{X+2*i+1}")
        self.rnd1(S + 1, S + 2)
        A(f"  v_rcp_f32 v{S+2}, v{S+1}")
        self.unpack8(T, X)
        A(f"  v_fma_f32 v{S+3}, -v{S+1}, v{S+2}, 1.0\n  v_fmac_f32 v{S+2}, v{S+3}, v{S+2}")
        for i in range(0, 8, 2): A(f"  v_pk_mul_f32 {vp(T+i)}, {vp(X+i)}, {vp(S+2)} op_sel_hi:[1,0]")
        for i in range(0, 8, 2): A(f"  v_pk_fma_f32 {vp(X+i)}, {vp(T+i)}, {vp(S)}, {vp(X+i)} op_sel:[0,1,0] op_sel_hi:[1,1,1] neg_lo:[1,0,0] neg_hi:[1,0,0]")
        for i in range(0, 8, 2): A(f"  v_pk_fma_f32 {vp(X+i)}, {vp(X+i)}, {vp(S+2)}, {vp(T+i)} op_sel_hi:[1,0,1]")
        self.rnd8(X, T)

    def transpose_block(self, B, t0, t1):
        A = self.A
        R = lambda e, t: B + 4 * e + t
        lo = lambda d, a, b: A(f"  v_perm_b32 v{d}, v{b}, v{a}, s{sPLO}")
        hi = lambda d, a, b: A(f"  v_perm_b32 v{d}, v{b}, v{a}, s{sPHI}")
        for p in range(4):
            a, b = R(2 * p, p), R(2 * p + 1, p)
            lo(t0, a, b); hi(b, a, b); A(f"  v_mov_b32 v{a}, v{t0}")
            for t in range(p + 1, 4):
                a, b, c, d = R(2 * p, t), R(2 * p + 1, t), R(2 * t, p), R(2 * t + 1, p)
                lo(t0, a, b); hi(t1, a, b); lo(a, c, d); hi(b, c, d)
                A(f"  v_mov_b32 v{c}, v{t0}\n  v_mov_b32 v{d}, v{t1}")

    def transpose_x2(self, Rb, Bb):
        for c in range(4):
            for p in range(4):
                a, b = Rb + 2 * (2 * p) + (c >> 1), Rb + 2 * (2 * p + 1) + (c >> 1)
                self.A(f"  v_perm_b32 v{Bb+4*c+p}, v{b}, v{a}, s{sPHI if c & 1 else sPLO}")

    def gemv32(self, body=False):
        res = [24] + [40 + 4 * k for k in range(7)]
        if self.c["sub"] and not body:
            pc = self.lab("call")
            self.A(f"  s_getpc_b64 s[60:61]\n{pc}:\n  s_add_u32 s60, s60, L_gemv-{pc}\n  s_addc_u32 s61, s61, 0\n  s_swappc_b64 s[42:43], s[60:61]\n  s_nop 7")
            return res
        for c in range(8):
            for m in range(4):
                self.A(f"  v_mfma_f32_16x16x32_bf16 {vq(res[c])}, {vq(8+4*m)}, {vq(40+32*m+4*c)}, {'0' if m == 0 else vq(res[c])}")
        return res

    def wload32(self, srd, steps, D, frac=None, hooks=None, fl=None):
        A = self.A
        done = 0
        for i in range(32):
            dd = D
            if frac is not None and int((i + 1) * (D - frac)) != int(i * (D - frac)): dd = D - 1
            if i >= dd: A(f"  s_waitcnt vmcnt({dd-1})")
            if hooks and i in hooks: hooks[i]()
            A(f"  buffer_load_dwordx4 {vq(40+4*i)}, v4, {sq(srd)}, s40 offen{self.c['wofl'] if fl is None else fl}")
            if i < 31: A(f"  s_add_u32 s40, s40, {steps[i]}")
            landed = i - D + 1 if i >= D else 0
            if landed >= 8 * (done + 1):
                self.transpose_block(40 + 32 * done, 5, 6); done += 1
        while done < 4:
            A(f"  s_waitcnt vmcnt({8*(3-done)})")
            self.transpose_block(40 + 32 * done, 5, 6); done += 1

    def init_duty(self, wave):
        A = self.A
        l2 = self.lab("inited"); l3 = self.lab("noinit")
        A(f"  s_cmp_lg_u32 s{sWAVE}, {wave}\n  s_cbranch_scc1 {l3}")
        mark = len(self.L)
        A("  v_mov_b32 v8, -1\n  v_mov_b32 v9, -1\n  v_mov_b32 v10, -1\n  v_mov_b32 v11, -1")
        A(f"  s_lshl_b32 s60, s2, 12\n  s_add_u32 s60, s60, {WS_QIN}\n  v_add_u32 v5, s60, v{vL16}")
        for i in range(4): A(f"  global_store_dwordx4 v5, {vq(8)}, {sp(sWS)} offset:{1024*i} sc1")
        A(f"  s_cmp_eq_u32 s{sFFN}, 0\n  s_cbranch_scc1 {l2}\n  s_cmp_ge_u32 s{sSL}, 32\n  s_cbranch_scc1 {l2}")
        A(f"  s_lshl_b32 s60, s{sJ}, 5\n  s_add_u32 s60, s60, s{sSL}\n  s_mul_i32 s60, s60, 6144\n  s_add_u32 s60, s60, {WS_INBOX + 2048}\n  v_add_u32 v5, s60, v{vL16}")
        for i in range(6): A(f"  global_store_dwordx4 v5, {vq(8)}, {sp(sWS)} offset:{1024*i - 2048} sc1")
        A(f"  s_cmp_ge_u32 s{sSL}, 8\n  s_cbranch_scc1 {l2}")
        A("  v_mov_b32 v12, 0\n  v_mov_b32 v13, 0\n  v_mov_b32 v14, 0\n  v_mov_b32 v15, 0")
        A(f"  s_lshl_b32 s60, s{sJ}, 3\n  s_add_u32 s60, s60, s{sSL}\n  s_lshl_b32 s60, s60, 10\n  s_add_u32 s60, s60, {WS_ACC}\n  v_add_u32 v5, s60, v{vL16}")
        A(f"  global_store_dwordx4 v5, {vq(12)}, {sp(sWS)} sc1")
        if self.c["init_mode"] == "nostore": self.L[mark:] = []
        A(f"{l2}:\n  s_waitcnt vmcnt(0)")
        if self.c["init_mode"] != "noticket":
            A(f"  s_mov_b32 s65, 1\n  s_atomic_add s65, {sp(sDBG)}, 0x4 glc\n  s_waitcnt lgkmcnt(0)")
            A(f"  s_cmp_lg_u32 s65, 255\n  s_cbranch_scc1 {l3}\n  s_mov_b32 s65, 1\n  s_atomic_add s65, {sp(sDBG)}, 0x84")
        A(f"{l3}:")

    def streamer(self, D, tag):
        A = self.A; c = self.c
        T = lambda n: 40 + 4 * n
        issued = []
        def issue(name, srd, n):
            A(f"  buffer_load_dwordx4 {vq(T(n))}, v{vL16}, {sq(srd)}, s{sOFF + (n >> 2)} offen offset:{1024*(n&3)}{c['kfl']}")
            issued.append(name)
        def pace():
            n = len(issued)
            if n >= D: A(f"  s_waitcnt vmcnt({D-1})")
            if n >= D - 2 and n < 64:
                l = self.lab("pc")
                A(f"  s_bitcmp1_b64 s[58:59], {n}\n  s_cbranch_scc0 {l}\n  s_waitcnt vmcnt({D-2})")
                A(f"  s_bitcmp1_b64 s[14:15], {n}\n  s_cbranch_scc0 {l}\n  s_waitcnt vmcnt({D-3})\n{l}:")
        def waitfor(name):
            A(f"  s_waitcnt vmcnt({len(issued) - 1 - issued.index(name)})")
        lnp = self.lab("noprod"); lj = self.lab("joined")
        E = 2 if c["fast0"] else 0
        NJ = (E + 8 + D - 1 if c["modil"] else D) + c["modlag"]
        assert NJ <= 16
        A(f"  s_cmp_ge_u32 s57, {48 if (c['abl'] is None or 'mod' in c['abl']) else 0}\n  s_cbranch_scc1 {lnp}")
        self.mod_loads()
        if c["modil"]:
            self.mod_w(0)
            A("  s_barrier")
            for i in range(8):
                if i:
                    A(f"  s_waitcnt vmcnt({D-1})"); self.mod_w(i)
                A(f"  s_waitcnt vmcnt({D-1})"); issue(f"K{E+i}", SRDA, E + i)
                if i == 2:
                    self.mod_compute_a(); A(f"  s_load_dword s3, {sp(sDBG)}, 0x80")
            for n in range(E + 8, E + 8 + D - 1):
                A(f"  s_waitcnt vmcnt({D-1})"); issue(f"K{n}", SRDA, n)
            self.stamp(9)
            self.mod_compute_b()
            for n in range(E + 8 + D - 1, NJ):
                A(f"  s_waitcnt vmcnt({D-1})"); issue(f"K{n}", SRDA, n)
        else:
            A("  s_barrier")
            self.mod_compute_a()
            A(f"  s_waitcnt vmcnt({c['prio']})")
            for n in range(E, D - 1): issue(f"K{n}", SRDA, n)
            A(f"  s_load_dword s3, {sp(sDBG)}, 0x80")
            A(f"  s_waitcnt vmcnt({D-1-E})")
            self.stamp(9)
            self.mod_compute_b()
            for n in range(D - 1, NJ):
                A(f"  s_waitcnt vmcnt({D-1})"); issue(f"K{n}", SRDA, n)
        self.mod_compute_c()
        self.stamp(14)
        if c["wo_at"] is not None and c["wo_at"] < NJ: self.lds_inc(F_K)
        A(f"  s_branch {lj}\n{lnp}:")
        issued.clear()
        for n in range(32):
            if n == NJ: A(f"{lj}:")
            if n < E: issued.append(f"K{n}")
            else: pace(); issue(f"K{n}", SRDA, n)
            if n == 0 and not E: self.stamp(8)
            if n in (4, 8, 16, 24): self.stamp({4: 10, 8: 11, 16: 12, 24: 13}[n])
            if n == c["wo_at"]: self.lds_inc(F_K)
            if c["sprio"] and n == c["sprio_off"]: A("  s_setprio 0")
            if n == D - 3:
                A("  s_barrier")
                self.stamp(9)
            if n == NJ:
                A(f"  v_lshrrev_b32 v12, 1, v{vJ}\n  v_and_b32 v13, 1, v{vJ}\n  v_mov_b32 v14, 0xffff\n  v_lshlrev_b32 v13, 4, v13\n  v_lshlrev_b32 v14, v13, v14")
                for j in range(4):
                    A(f"  v_cmp_eq_u32 vcc, {j}, v12\n  v_cndmask_b32 v{4+j}, 0, v14, vcc")
        NV = c["NV"]
        slot = lambda n: T(32 - NV + n) if n < NV else T(n - NV)
        l = self.lab("nomodchk")
        A(f"  s_cmp_ge_u32 s57, {48 if (c['abl'] is None or 'mod' in c['abl']) else 0}\n  s_cbranch_scc1 {l}")
        self.lds_spin(F_MOD2, 8, 12)
        A(f"{l}:")
        for n in range(NV):
            if n % 4 == 0: A(f"  s_add_u32 m0, s56, {4096 * (n // 4)}")
            pace()
            A(f"  buffer_load_dwordx4 v{vL16}, {sq(SRDB)}, s{sOFF + (n >> 2)} offen offset:{1024*(n&3)}{c['vfl']} lds")
            issued.append(f"V{n}")
        self.stamp(1)
        self.lds_spin(F_Q2, 1, 12)
        self.stamp(2)
        A(f"  v_lshlrev_b32 v12, 4, v{vJ}\n  ds_read_b128 {vq(8)}, v12 offset:{L_QB}\n  s_waitcnt lgkmcnt(0)")
        def qk(G):
            z = 18 + G
            for r in range(4):
                for t in range(4):
                    A(f"  v_dot2_f32_bf16 v{12+t}, v{T(4*G+t)+r}, v{8+r}, {'0' if r == 0 else f'v{12+t}'}")
            A(f"  v_add_f32_dpp v16, v12, v12 row_ror:8 row_mask:0xf bank_mask:0x3")
            A(f"  v_add_f32_dpp v17, v14, v14 row_ror:8 row_mask:0xf bank_mask:0x3")
            A(f"  v_add_f32_dpp v16, v13, v13 row_ror:8 row_mask:0xf bank_mask:0xc")
            A(f"  v_add_f32_dpp v17, v15, v15 row_ror:8 row_mask:0xf bank_mask:0xc")
            A(f"  v_add_f32_dpp v{z}, v16, v16 row_shl:4 row_mask:0xf bank_mask:0x5")
            A(f"  v_add_f32_dpp v{z}, v17, v17 row_shr:4 row_mask:0xf bank_mask:0xa")
            A(f"  v_add_f32_dpp v{z}, v{z}, v{z} quad_perm:[1,0,3,2] row_mask:0xf bank_mask:0xf")
            A(f"  v_add_f32_dpp v{z}, v{z}, v{z} quad_perm:[2,3,0,1] row_mask:0xf bank_mask:0xf")
        nv = NV
        def nextv():
            nonlocal nv
            pace()
            A(f"  buffer_load_dwordx4 {vq(slot(nv))}, v{vL16}, {sq(SRDB)}, s{sOFF + (nv >> 2)} offen offset:{1024*(nv&3)}{c['vfl']}")
            issued.append(f"V{nv}"); nv += 1
        qk(0)
        groups = list(range(1, 7))
        per = -(-len(groups) // D)
        for i in range(D):
            nextv()
            for G in groups[i * per:(i + 1) * per]: qk(G)
        qk(7)
        if NV:
            A(f"  v_add_u32 v34, s56, v{vL16}")
            for n in range(NV): A(f"  ds_read_b128 {vq(slot(n))}, v34 offset:{1024*n}")
        A(f"  s_mov_b32 s60, {SCALE:#x}")
        for i in range(4): self.rnd2(18 + 2 * i, 19 + 2 * i, 12 + i)
        for i in range(8): A(f"  v_mul_f32 v{18+i}, s60, v{18+i}")
        for i in range(4): self.rnd2(18 + 2 * i, 19 + 2 * i, 12 + i)
        A("  v_max3_f32 v12, v18, v19, v20\n  v_max3_f32 v13, v21, v22, v23\n  v_max3_f32 v12, v12, v24, v25\n  v_max_f32 v12, v12, v13")
        self.wave_reduce("v_max_f32", [12], full=False)
        A("  v_readlane_b32 s61, v12, 63")
        for i in range(8): A(f"  v_subrev_f32 v{26+i}, s61, v{18+i}")
        for i in range(8): A(f"  v_mul_f32 v{26+i}, s{sLOG2E}, v{26+i}")
        for i in range(8): A(f"  v_exp_f32 v{26+i}, v{26+i}")
        A("  v_add_f32 v13, v26, v27\n  v_add_f32 v14, v28, v29\n  v_add_f32 v15, v30, v31\n  v_add_f32 v16, v32, v33")
        A("  v_add_f32 v13, v13, v14\n  v_add_f32 v15, v15, v16\n  v_add_f32 v13, v13, v15")
        self.wave_reduce("v_add_f32", [13], full=False)
        A(f"  s_lshl_b32 s60, s{sWAVE}, 3\n  v_mov_b32 v14, s60")
        A("  s_mov_b32 exec_lo, 0\n  s_mov_b32 exec_hi, 0x80000000")
        A(f"  ds_write_b64 v14, v[12:13] offset:{L_STATS}\n  ds_add_u32 v{vZ}, v{vONE} offset:{F_ST}")
        self.execall()
        nextv(); nextv()
        self.lds_spin(F_ST, 8, 12)
        A(f"  v_and_b32 v14, 7, v{vLANE}\n  v_lshlrev_b32 v14, 3, v14\n  ds_read_b64 v[12:13], v14 offset:{L_STATS}\n  s_waitcnt lgkmcnt(0)")
        red8 = ["quad_perm:[1,0,3,2]", "quad_perm:[2,3,0,1]", "row_ror:4"]
        A("  v_mov_b32 v14, v12")
        for s in red8: A(f"  v_max_f32_dpp v14, v14, v14 {s} row_mask:0xf bank_mask:0xf")
        A(f"  v_sub_f32 v12, v12, v14\n  v_mul_f32 v12, s{sLOG2E}, v12\n  v_exp_f32 v12, v12")
        for i in range(8): A(f"  v_sub_f32 v{26+i}, v{18+i}, v14")
        A("  v_mul_f32 v13, v13, v12")
        for i in range(8): A(f"  v_mul_f32 v{26+i}, s{sLOG2E}, v{26+i}")
        for s in red8: A(f"  v_add_f32_dpp v13, v13, v13 {s} row_mask:0xf bank_mask:0xf")
        for i in range(8): A(f"  v_exp_f32 v{26+i}, v{26+i}")
        A("  v_rcp_f32 v15, v13\n  v_fma_f32 v16, -v13, v15, 1.0\n  v_fmac_f32 v15, v16, v15")
        if c["dump"]:
            for i in range(8):
                A(f"  s_lshl_b32 s69, s2, 3\n  s_add_u32 s69, s69, s{sWAVE}\n  s_lshl_b32 s69, s69, 3\n  s_add_u32 s69, s69, {i}")
                self.dumpv(18 + i, 1, 0x100000, 69, 256, tmp=36)
        for i in range(8): A(f"  v_mul_f32 v{26+i}, v{26+i}, v15")
        for i in range(8): A(f"  v_cvt_pk_bf16_f32 v{18+i}, v{26+i}, v{26+i}")
        self.stamp(3)
        npv = 0
        def pv():
            nonlocal npv
            n = npv; npv += 1
            Ab = 26 + 4 * (n & 1)
            bank = [0, 2, 1, 3][n & 3]
            for j in range(4):
                A(f"  v_and_b32_dpp v{Ab+j}, v{18+(n>>2)}, v{4+j} row_newbcast:{4*bank} row_mask:0xf bank_mask:0xf")
            A(f"  v_mfma_f32_16x16x32_bf16 {vq(34)}, {vq(Ab)}, {vq(slot(n))}, {'0' if n == 0 else vq(34)}")
            if n == c["hint_at"] and "HT" not in c["xskip"]:
                l = self.lab("ht")
                self.exec1()
                A(f"  ds_add_rtn_u32 v12, v{vZ}, v{vONE} offset:{F_P}\n  s_mov_b32 s5, 0\n  s_waitcnt lgkmcnt(0)\n  v_readfirstlane_b32 s60, v12")
                self.execall()
                A(f"  s_cmp_lg_u32 s60, 7\n  s_cbranch_scc1 {l}")
                A(f"  s_lshl_b32 s60, s{sB}, 12\n  s_add_u32 s60, s60, {WS_ACC + 3072}\n  s_mov_b32 s5, 1\n  s_atomic_add s5, {sp(sWS)}, s60 glc\n{l}:")
            if n == c["hint_at"] + c["hint_lag"] and "HT" not in c["xskip"]:
                l = self.lab("hf")
                A(f"  s_waitcnt lgkmcnt(0)\n  s_cmp_lg_u32 s5, 31\n  s_cbranch_scc1 {l}")
                A(f"  s_mul_i32 s60, s{sB}, {64*128}\n  s_add_u32 s60, s60, {WS_HINT}\n  v_lshl_add_u32 v12, v{vLANE}, 7, s60")
                A(f"  s_mov_b32 exec_hi, 0x7ff\n  global_store_dword v12, v11, {sp(sWS)} sc1"); self.execall()
                A(f"{l}:")
        self.ffn_addr()
        self.lds_spin(F_C, 1, 12)
        A(f"  ds_read_b32 v11, v{vZ} offset:{F_N}")
        def vstep():
            nextv()
            landed = nv - D
            k = 0
            while npv < landed and k < 3:
                pv(); k += 1
        def finish(ffn=False):
            if ffn and c["early"]:
                l = self.lab("eh")
                A(f"  s_cmp_lg_u32 s{sWAVE}, 0\n  s_cbranch_scc1 {l}")
                A(f"  s_lshl_b32 s60, s{sJ}, 7\n  s_add_u32 s60, s60, s{sSL}\n  s_lshl_b32 s60, s60, 7\n  s_add_u32 s60, s60, {WS_HINT}\n  s_add_u32 s61, s60, {64*128}")
                A(f"  s_load_dword s8, {sp(sWS)}, s60 glc\n  s_load_dword s9, {sp(sWS)}, s61 glc\n{l}:")
            while npv < 32:
                waitfor(f"V{npv}"); pv()
            A(f"  v_lshlrev_b32 v12, 5, v{vJ}\n  v_lshl_add_u32 v13, v{vG}, 4, v12\n  s_lshl_b32 s60, s{sWAVE}, 9\n  v_add_u32 v12, s60, v13")
            A("  s_mov_b32 exec_hi, 0")
            if c["oadd"]:
                for r in range(4): A(f"  ds_add_f32 v13, v{34+r} offset:{L_OP + 4*r}")
            else:
                A(f"  ds_write_b128 v12, {vq(34)} offset:{L_OP}")
            self.lds_inc(F_O)
            self.stamp(5)
            if ffn and c["early"]:
                l = self.lab("eh2")
                A(f"  s_cmp_lg_u32 s{sWAVE}, 0\n  s_cbranch_scc1 {l}\n  s_waitcnt lgkmcnt(0)\n  v_mov_b32 v12, s8\n  v_mov_b32 v13, s9")
                self.exec1(); A(f"  ds_write_b64 v{vZ}, v[12:13] offset:{F_HS}"); self.execall()
                A(f"{l}:")
        NF0 = c["NF0"]
        while nv < 32 - NF0: vstep()
        assert npv >= NV or NF0 == 0, (npv, NV)
        lf = self.lab("vffn")
        if c["abl"] is None and "T" not in c["xskip"]: A(f"  s_cmp_lg_u32 s{sFFN}, 0\n  s_cbranch_scc1 {lf}")
        st = (nv, npv, list(issued))
        while nv < 32: vstep()
        self.stamp(4)
        finish()
        A("  s_branch L_exit")
        A(f"{lf}:")
        nv, npv = st[0], st[1]; issued[:] = st[2]
        nf = 0
        while nv < 32:
            waitfor(f"V{nv - (D - 1)}")
            A(f"  buffer_load_dwordx4 {vq(slot(nv))}, v{vL16}, {sq(SRDB)}, s{sOFF + (nv >> 2)} offen offset:{1024*(nv&3)}{c['vfl']}")
            issued.append(f"V{nv}"); nv += 1
            self.ffn_load(nf); issued.append(f"F{nf}"); nf += 1
            k = 0
            while npv < nv - D + 1 and k < 3:
                pv(); k += 1
        self.stamp(4)
        finish(True)
        FD = c["FD"]
        if c["fmode"] == "paced":
            while nf < 24:
                if nf >= FD: waitfor(f"F{nf - FD}")
                self.ffn_load(nf); issued.append(f"F{nf}"); nf += 1
                if nf == FD: self.ffn_lds_addr()
                if nf == 8 + FD: self.transpose_x2(120, 40)
                if nf == 16 + FD: self.stamp(15); self.transpose_x2(136, 56)
            return
        while nf < FD:
            self.ffn_load(nf); issued.append(f"F{nf}"); nf += 1
        self.lds_spin(F_A, 4, 12)
        self.stamp(10)
        while nf < 16:
            self.ffn_load(nf); issued.append(f"F{nf}"); nf += 1
        self.ffn_lds_addr()
        if c["stamps"]: waitfor("F15"); self.stamp(15)
        waitfor("F7"); self.transpose_x2(120, 40)
        if c["down_late"]: self.lds_spin(F_R, 2, 12)
        while nf < 24:
            self.ffn_load(nf); issued.append(f"F{nf}"); nf += 1
        waitfor("F15"); self.transpose_x2(136, 56)

    def ffn_addr(self):
        A = self.A
        A(f"  v_cmp_gt_u32 vcc, 8, v{vJ}")
        A(f"  v_mov_b32 v12, s{sU}\n  v_mov_b32 v13, s{sU+1}\n  v_mov_b32 v14, s{sG}\n  v_mov_b32 v15, s{sG+1}")
        A(f"  v_cndmask_b32 v8, v12, v14, vcc\n  v_cndmask_b32 v9, v13, v15, vcc")
        A(f"  s_lshr_b32 s16, s{sJ}, 1\n  s_and_b32 s17, s{sJ}, 1")
        A(f"  s_lshl_b32 s60, s{sWAVE}, 6\n  s_lshl_b32 s61, s16, 5\n  s_add_u32 s60, s60, s61\n  s_lshl_b32 s61, s17, 2\n  s_add_u32 s60, s60, s61")
        A(f"  v_lshl_add_u32 v12, v{vG}, 3, s60\n  v_mul_u32_u24 v12, 2752, v12")
        A(f"  v_and_b32 v13, 7, v{vJ}\n  v_lshl_add_u32 v12, v13, 3, v12\n  s_lshl_b32 s60, s{sSL}, 6\n  v_add_u32 v12, s60, v12\n  v_mov_b32 v13, 0")
        A(f"  v_lshl_add_u64 v[8:9], v[8:9], 0, v[12:13]")
        A(f"  s_mov_b32 s10, 5504\n  s_mov_b32 s11, 0")
        A(f"  s_cmp_eq_u32 s17, 0\n  s_cselect_b32 s60, 4, -4\n  s_cmp_eq_u32 s16, 0\n  s_cselect_b32 s61, 32, -32")
        A(f"  s_sub_i32 s61, s61, s60\n  s_sub_i32 s60, s60, 2\n  s_sub_i32 s61, s61, 2")
        A(f"  s_mul_i32 s12, s60, 2752\n  s_ashr_i32 s13, s12, 31\n  s_mul_i32 s6, s61, 2752\n  s_ashr_i32 s7, s6, 31")
        A(f"  s_mov_b32 s{SRDA}, s{sDN}\n  s_mov_b32 s{SRDA+1}, s{sDN+1}\n  s_mov_b32 s{SRDA+2}, 1409024\n  s_mov_b32 s{SRDA+3}, 0x20000")
        A(f"  v_lshlrev_b32 v10, 13, v{vG}\n  v_lshl_add_u32 v10, v{vJ}, 3, v10")
        A(f"  s_lshl_b32 s18, s{sSL}, 15\n  s_lshl_b32 s19, s{sWAVE}, 7\n  s_add_u32 s18, s18, s19\n  s_add_u32 s19, s18, 4096")

    def ffn_load(self, i):
        A = self.A
        if "W" in self.c["xskip"]:
            A(f"  global_load_dword v17, v{vZ}, {sp(sC)}"); return
        if i < 16:
            A(f"  global_load_dwordx2 {vp(120+2*i)}, v[8:9], off{' offset:2752' if i & 1 else ''}{self.c['ffnfl']}")
            if i & 1 and i < 15:
                step = "s[10:11]" if (i & 3) == 1 else ("s[6:7]" if i == 7 else "s[12:13]")
                A(f"  v_lshl_add_u64 v[8:9], v[8:9], 0, {step}")
        else:
            e = i - 16
            A(f"  buffer_load_dwordx2 {vp(152+2*e)}, v10, {sq(SRDA)}, s{18 + (e >> 2)} offen offset:{1024*(e&3)}{self.c['ffnfl']}")

    def ffn_lds_addr(self):
        A = self.A
        A(f"  v_and_b32 v12, 1, v{vJ}\n  v_lshlrev_b32 v112, 10, v12\n  v_lshl_add_u32 v112, v{vG}, 4, v112\n  s_lshl_b32 s60, s{sWAVE}, 7\n  v_add_u32 v112, s60, v112")
        A(f"  s_lshl_b32 s60, s16, 6\n  s_lshl_b32 s61, s17, 3\n  s_add_u32 s60, s60, s61\n  v_add_u32 v112, s60, v112")
        A(f"  v_xor_b32 v113, 8, v112\n  v_xor_b32 v114, 64, v112\n  v_xor_b32 v115, 0x48, v112")
        A(f"  v_lshlrev_b32 v116, 6, v12\n  v_lshl_add_u32 v116, v{vG}, 4, v116")
        A(f"  v_lshlrev_b32 v117, 5, v{vJ}\n  v_lshl_add_u32 v117, v{vG}, 3, v117\n  s_lshl_b32 s60, s{sWAVE}, 9\n  v_add_u32 v117, s60, v117")
        A(f"  s_lshl_b32 s60, s{sJ}, 5\n  s_lshl_b32 s61, s{sWAVE}, 2\n  s_add_u32 s60, s60, s61\n  v_add_u32 v118, s60, v{vG}\n  v_mul_u32_u24 v118, {INB}, v118")
        A(f"  s_lshl_b32 s60, s{sSL}, 8\n  s_add_u32 s60, s60, {WS_INBOX}\n  v_lshl_add_u32 v12, v{vJ}, 4, s60\n  v_add_u32 v118, v12, v118")

    def streamer_ffn(self):
        A = self.A
        self.stamp(6)
        A("  s_barrier")
        A("L_dry_s:")
        for i in range(4): A(f"  ds_read_b64 {vp(88+2*i)}, v{112+i} offset:{L_H2}")
        A("  s_waitcnt lgkmcnt(2)")
        for cc in range(4): A(f"  v_mfma_f32_16x16x32_bf16 {vq(96+4*cc)}, {vq(88)}, {vq(40+4*cc)}, 0")
        A("  s_waitcnt lgkmcnt(0)")
        for cc in range(4): A(f"  v_mfma_f32_16x16x32_bf16 {vq(96+4*cc)}, {vq(92)}, {vq(56+4*cc)}, {vq(96+4*cc)}")
        def select():
            for g in range(1, 4):
                for r in range(2):
                    A(f"  v_mov_b32_dpp v{96+r}, v{96+4*g+r} quad_perm:[0,1,2,3] row_mask:{1<<g:#x} bank_mask:0xf")
        select()
        A(f"  ds_write_b64 v117, v[96:97] offset:{L_GUP}\n  s_waitcnt lgkmcnt(0)")
        dry = self.c["dry"]
        if dry: A("  s_cbranch_execz L_dry_s2")
        A("  s_barrier")
        A("  s_waitcnt vmcnt(0)"); self.transpose_x2(152, 72)
        A("  s_barrier")
        A("L_dry_s2:")
        A(f"  ds_read_b128 {vq(88)}, v116 offset:{L_HH}\n  s_waitcnt lgkmcnt(0)")
        for cc in range(4): A(f"  v_mfma_f32_16x16x32_bf16 {vq(96+4*cc)}, {vq(88)}, {vq(72+4*cc)}, 0")
        select()
        A(f"  v_mov_b32 v98, v11\n  v_xor_b32 v99, {TAGX:#x}, v11")
        if dry: A("  s_cbranch_execz L_exit")
        A(f"  global_store_dwordx4 v118, {vq(96)}, {sp(sWS)}{self.c['txfl']}")
        self.stamp(7)
        A("  s_branch L_exit2")

    def mod_loads(self):
        A = self.A
        A(f"  v_and_b32 v4, 7, v{vJ}\n  v_lshrrev_b32 v5, 3, v{vJ}\n  v_lshlrev_b32 v6, 10, v4\n  v_lshl_add_u32 v6, v5, 6, v6\n  v_lshl_add_u32 v6, v{vG}, 4, v6")
        A(f"  s_lshl_b32 s60, s{sWAVE}, 7\n  v_add_u32 v6, s60, v6")
        A(f"  global_load_dwordx4 {vq(8)}, v6, {sp(sC)}")
        A(f"  v_lshlrev_b32 v7, 5, v5\n  v_lshl_add_u32 v7, v{vG}, 3, v7\n  v_mul_u32_u24 v7, 6144, v7\n  v_lshl_add_u32 v7, v4, 4, v7")
        A(f"  s_mul_i32 s60, s{sWAVE}, {64*6144}\n  s_lshl_b32 s61, s57, 7\n  s_add_u32 s60, s60, s61\n  v_add_u32 v7, s60, v7")
        if not self.c["modil"]:
            for i in range(8): self.mod_w(i)

    def mod_w(self, i):
        self.A(f"  global_load_dwordx4 {vq(136+4*i)}, v7, {sp(sWM)} nt")
        if i < 7: self.A(f"  v_add_u32 v7, 6144, v7")

    def mod_compute_a(self):
        A = self.A
        A(f"  s_lshl_b32 s60, s{sWAVE}, 12\n  s_add_u32 s60, s60, {L_V}\n  v_lshlrev_b32 v28, 11, v5\n  v_lshl_add_u32 v28, v4, 8, v28\n  v_and_b32 v29, 1, v{vG}\n  v_lshl_add_u32 v28, v29, 4, v28\n  v_add_u32 v28, s60, v28")
        A(f"  v_lshrrev_b32 v29, 1, v{vG}\n  v_cmp_eq_u32 s[68:69], v29, v5")
        if not self.c["modil"]: A("  s_waitcnt vmcnt(8)")
        for i in range(4):
            r = 8 + i
            A(f"  v_lshlrev_b32 v16, 16, v{r}\n  v_and_b32 v17, 0xffff0000, v{r}")
            A(f"  v_mul_f32 v18, s{sLOG2E}, v16\n  v_mul_f32 v19, s{sLOG2E}, v17")
            A(f"  v_exp_f32 v18, -v18\n  v_exp_f32 v19, -v19")
            A(f"  v_add_f32 v18, 1.0, v18\n  v_add_f32 v19, 1.0, v19\n  v_rcp_f32 v18, v18\n  v_rcp_f32 v19, v19")
            A(f"  v_mul_f32 v16, v16, v18\n  v_mul_f32 v17, v17, v19\n  v_cvt_pk_bf16_f32 v{r}, v16, v17")

    def mod_compute_b(self):
        A = self.A
        self.transpose_block(136, 5, 6)
        for cc in range(8):
            A(f"  v_mfma_f32_16x16x32_bf16 {vq(104+4*cc)}, {vq(8)}, {vq(136+4*cc)}, 0")
        A("  s_mov_b64 exec, s[68:69]")
        for cc in range(8):
            A(f"  ds_write_b128 v28, {vq(104+4*cc)} offset:{32*cc}")
        self.lds_inc(F_MOD)

    def mod_compute_c(self):
        A = self.A
        A(f"  v_and_b32 v4, 31, v{vLANE}\n  v_lshrrev_b32 v5, 5, v{vLANE}\n  v_lshlrev_b32 v6, 6, v4\n  v_lshl_add_u32 v6, v5, 14, v6\n  s_lshl_b32 s60, s{sWAVE}, 2\n  s_add_u32 s60, s60, {L_V}\n  v_add_u32 v6, s60, v6")
        A(f"  s_mul_i32 s60, s{sWAVE}, 6144\n  s_lshl_b32 s61, s57, 7\n  s_add_u32 s60, s60, s61\n  s_add_u32 s60, s60, {WS_MOD}\n  v_lshl_add_u32 v5, v4, 2, s60")
        self.lds_spin(F_MOD, 8, 7)
        for part in range(8):
            if part: A(f"  v_add_u32 v6, 2048, v6")
            A(f"  ds_read2_b32 {vp(8+2*part)}, v6 offset0:0 offset1:8")
        l = self.lab("pollSN"); d = self.lab("gotSN")
        A(f"{l}:\n  s_cmp_lg_u32 s3, 0\n  s_cbranch_scc1 {d}")
        self.guard()
        A(f"  s_load_dword s3, {sp(sDBG)}, 0x80 glc\n  s_waitcnt lgkmcnt(0)\n  s_branch {l}\n{d}:")
        A("  s_waitcnt lgkmcnt(0)")
        self.lds_inc(F_MOD2)
        for part in range(1, 8):
            A(f"  v_add_f32 v8, v8, v{8+2*part}\n  v_add_f32 v9, v9, v{9+2*part}")
        A("  v_mov_b32 v10, v8\n  v_mov_b32 v11, v9\n  v_permlane32_swap_b32 v10, v8\n  v_permlane32_swap_b32 v11, v9\n  v_add_f32 v8, v8, v10\n  v_add_f32 v9, v9, v11")
        A(f"  v_cvt_pk_bf16_f32 v8, v8, v9\n  s_mov_b32 exec_hi, 0\n  global_store_dword v5, v8, {sp(sWS)} sc1")
        self.execall()
        A("  v_mov_b32 v9, v8")
        for st in ("quad_perm:[1,0,3,2]", "quad_perm:[2,3,0,1]", "row_ror:4", "row_ror:8"):
            A(f"  v_xor_b32_dpp v9, v9, v9 {st} row_mask:0xf bank_mask:0xf")
        A("  v_mov_b32 v10, v9\n  v_permlane16_swap_b32 v10, v9\n  v_bitop3_b32 v9, v9, v10, s3 bitop3:0x96")
        A(f"  s_lshl_b32 s60, s{sWAVE}, 8\n  s_lshl_b32 s61, s57, 2\n  s_add_u32 s60, s60, s61\n  s_add_u32 s60, s60, {WS_MARK}\n  v_mov_b32 v5, s60")
        self.exec1(); A(f"  global_store_dword v5, v9, {sp(sWS)} sc1"); self.execall()

    def check_lines(self, data, tags, tmp):
        A = self.A
        n = len(data)
        for k in range(n): A(f"  v_xor_b32 v{tmp+k}, v{data[k]}, v{data[k]+1}")
        for k in range(n): A(f"  v_bitop3_b32 v{tmp+k}, v{tmp+k}, v{data[k]+2}, v{data[k]+3} bitop3:0x96")
        for st in ("quad_perm:[1,0,3,2]", "quad_perm:[2,3,0,1]", "row_half_mirror"):
            for k in range(n): A(f"  v_xor_b32_dpp v{tmp+k}, v{tmp+k}, v{tmp+k} {st} row_mask:0xf bank_mask:0xf")
        for k in range(n): A(f"  v_bitop3_b32 v{tmp+k}, v{tmp+k}, v{tags[k]}, s44 bitop3:0x96")
        for k in range(1, n): A(f"  v_or_b32 v{tmp}, v{tmp}, v{tmp+k}")
        A(f"  v_cmp_ne_u32 vcc, 0, v{tmp}")

    def get_flag(self, tmp, off, sreg, expect=None):
        A = self.A
        l = self.lab("pollN"); d = self.lab("gotN")
        cmp = f"s_cmp_lg_u32 s{sreg}, 0" if expect is None else f"s_cmp_eq_u32 s{sreg}, {expect}"
        self.exec1()
        A(f"  global_load_dword v{tmp}, v{vZ}, {sp(sDBG)} offset:{off}")
        A(f"{l}:\n  s_waitcnt vmcnt(0)\n  v_readfirstlane_b32 s{sreg}, v{tmp}\n  {cmp}\n  s_cbranch_scc1 {d}")
        self.guard()
        A(f"  s_sleep {self.c['poll_sleep']}\n  global_load_dword v{tmp}, v{vZ}, {sp(sDBG)} offset:{off} sc1\n  s_branch {l}\n{d}:"); self.execall()
    def get_nonce(self, tmp): self.get_flag(tmp, 128, 44)

    def xor_rows(self, r, t):
        A = self.A
        A(f"  v_mov_b32 v{t}, v{r}\n  v_permlane16_swap_b32 v{t}, v{r}\n  v_xor_b32 v{r}, v{r}, v{t}")
        A(f"  v_mov_b32 v{t}, v{r}\n  v_permlane32_swap_b32 v{t}, v{r}\n  v_xor_b32 v{r}, v{r}, v{t}")

    def allreduce8(self, r, t, op="v_add_f32"):
        A = self.A
        A(f"  {op}_dpp v{r}, v{r}, v{r} row_ror:8 row_mask:0xf bank_mask:0xf")
        A(f"  v_mov_b32 v{t}, v{r}\n  v_permlane16_swap_b32 v{t}, v{r}\n  {op} v{r}, v{r}, v{t}")
        A(f"  v_mov_b32 v{t}, v{r}\n  v_permlane32_swap_b32 v{t}, v{r}\n  {op} v{r}, v{r}, v{t}")

    def wq_pattern(self):
        p = self.c["wqpat"]
        if p == 8: return 16, [8192 if i % 8 < 7 else 8192 * 25 for i in range(32)]
        if p == 32: return 18, [8192] * 32
        if p == 1: return 13, [8192 * 4] * 32
        if p == 33: return 18, [8192 * 5 if i % 8 < 7 else (1 << 32) - 8192 * 27 for i in range(32)]
        if p == 16: return 17, [8192 if i % 16 < 15 else 8192 * 49 for i in range(32)]

    def wo_pattern(self):
        p = self.c["wopat"]
        if p == 8: return 13, [1024 if i % 8 < 7 else 1024 * 25 for i in range(32)]
        if p == 32: return 15, [1024] * 32
        if p == 1: return 10, [4096] * 32

    def h0_issue(self, fl):
        A = self.A
        if "G" in self.c["xskip"]: return
        A(f"  global_load_dwordx4 {vq(28)}, v36, {sp(sWS)}{fl}\n  global_load_dwordx4 {vq(32)}, v36, {sp(sWS)} offset:1024{fl}")
        A(f"  global_load_dword v24, v37, {sp(sWS)}{fl}\n  global_load_dword v25, v37, {sp(sWS)} offset:32{fl}")

    def h0_finish(self):
        A = self.A; c = self.c
        l = self.lab("chkA"); d = self.lab("gotA")
        A(f"{l}:")
        self.check_lines([28, 32], [24, 25], 26)
        A(f"  s_cbranch_vccz {d}" if "G" not in c["xskip"] else f"  s_branch {d}")
        self.guard()
        A(f"  s_sleep {c['a_sleep']}")
        self.h0_issue(" sc1")
        A(f"  s_waitcnt vmcnt(0)\n  s_branch {l}\n{d}:")
        self.stamp(2); self.cstamp(14)
        self.unpack8(32, 16)
        for i in range(8): A(f"  v_add_f32 v{16+i}, 1.0, v{16+i}")
        self.rnd8(16, 24)
        for i in range(8): A(f"  v_mul_f32 v{8+i}, v{8+i}, v{16+i}")
        self.rnd8(8, 24)
        self.unpack8(28, 16)
        for i in range(8): A(f"  v_add_f32 v{8+i}, v{8+i}, v{16+i}")
        for i in range(4): A(f"  v_cvt_pk_bf16_f32 v{24+i}, v{8+2*i}, v{9+2*i}")
        A(f"  v_add_u32 v16, s47, v{vL16}\n  ds_write_b128 v16, {vq(24)} offset:{L_HBUF}")
        self.lds_inc(F_H)
        if c["dump"]:
            l = self.lab("nodh"); A(f"  s_cmp_lg_u32 s{sHW}, 0\n  s_cbranch_scc1 {l}"); self.dumpv(24, 4, 0x0, 2, 1024); A(f"{l}:")
        self.stamp(3)

    def helper(self):
        A = self.A; c = self.c
        A("L_helper:")
        self.stamp(8)
        A(f"  s_sub_u32 s{sHW}, s{sWAVE}, 8")
        l = self.lab("h3")
        A(f"  s_cmp_lg_u32 s{sHW}, 3\n  s_cbranch_scc1 {l}")
        A(f"  v_lshlrev_b32 v4, 2, v{vLANE}\n  ds_write_b32 v4, v{vZ}\n  ds_write_b32 v4, v{vZ} offset:{L_OP}\n  ds_write_b32 v4, v{vZ} offset:{L_OP+256}\n  s_waitcnt lgkmcnt(0)\n{l}:")
        A("  s_waitcnt lgkmcnt(0)")
        if c["tlb"]:
            l = self.lab("notlb")
            A(f"  s_cmp_lg_u32 s{sHW}, 2\n  s_cbranch_scc1 {l}")
            self.exec1()
            A(f"  s_lshl_b32 s60, s{sB}, 5\n  s_add_u32 s60, s60, s{sH}\n  s_lshl_b32 s60, s60, 20\n  s_add_u32 s60, s60, 0xC0000\n  v_mov_b32 v4, s60")
            A(f"  global_load_dword v40, v4, {sp(sV)} nt")
            A(f"  s_lshl_b32 s60, s2, 12\n  s_add_u32 s60, s60, {WS_QIN}\n  v_mov_b32 v5, s60\n  global_load_dword v41, v5, {sp(sWS)} nt")
            A(f"  s_lshl_b32 s60, s{sH}, 17\n  v_mov_b32 v6, s60\n  global_load_dword v42, v6, {sp(sWO)} nt")
            A(f"  s_lshl_b32 s60, s2, 2\n  s_and_b32 s60, s60, 0xfc\n  v_mov_b32 v7, s60")
            A(f"  global_load_dword v43, v7, {sp(sDBG)}")
            if c["tlb"] > 1:
                A(f"  s_lshl_b32 s60, s2, 7\n  v_mov_b32 v8, s60")
                for k, p in enumerate((sG, sU, sDN, sWS)): A(f"  global_load_dword v{44+k}, v8, {sp(p)} nt")
                A(f"  v_add_u32 v8, 0x100000, v8")
                for k, p in enumerate((sG, sU, sDN)): A(f"  global_load_dword v{48+k}, v8, {sp(p)} nt")
                A(f"  s_lshl_b32 s60, s2, 5\n  v_mov_b32 v9, s60\n  global_load_dword v52, v9, {sp(sOUT)} nt")
            self.execall()
            A(f"{l}:")
        if c["wqpf"]:
            l = self.lab("nowqpf")
            A(f"  s_cmp_lg_u32 s{sHW}, {c['wqpf']}\n  s_cbranch_scc1 {l}")
            A(f"  s_lshl_b32 s60, s{sIDX}, 17\n  s_lshl_b32 s61, s{sXCD}, 10\n  s_add_u32 s60, s60, s61\n  v_add_u32 v4, s60, v{vL16}")
            for i in range(16):
                if i >= c["wqpfD"]: A(f"  s_waitcnt vmcnt({c['wqpfD']-1})")
                A(f"  global_load_dword v35, v4, {sp(sWQ)}")
                if i < 15: A("  v_add_u32 v4, 8192, v4")
            A(f"{l}:")
        l = self.lab("nononce")
        A(f"  s_cmp_lg_u32 s2, 0\n  s_cbranch_scc1 {l}\n  s_cmp_lg_u32 s{sHW}, 1\n  s_cbranch_scc1 {l}")
        A(f"  s_memrealtime s[42:43]\n  s_waitcnt lgkmcnt(0)\n  s_or_b32 s42, s42, 1\n  v_mov_b32 v6, s42")
        self.exec1(); A(f"  global_store_dword v{vZ}, v6, {sp(sDBG)} offset:128 sc1"); self.execall()
        A(f"{l}:")
        A("  s_barrier")
        abl = c["abl"]
        if abl is not None:
            if "init" in abl: self.init_duty(11)
            l = self.lab("abl")
            A(f"  s_cmp_lg_u32 s{sHW}, 0\n  s_cbranch_scc1 {l}")
            self.lds_inc(F_Q2); self.lds_inc(F_C)
            if "h0l" in abl:
                A(f"  v_and_b32 v5, 7, v{vJ}\n  v_lshrrev_b32 v6, 3, v{vJ}\n  v_lshl_add_u32 v7, v{vG}, 1, v6\n  v_lshlrev_b32 v7, 4, v7\n  v_lshl_add_u32 v7, v5, 10, v7")
                if "nox" not in abl:
                    for i in range(8): A(f"  global_load_dwordx4 {vq(40+4*i)}, v7, {sp(sX)} offset:{128*i} nt")
                A(f"  s_mov_b32 s{SRDB}, s{sWQ}\n  s_mov_b32 s{SRDB+1}, s{sWQ+1}\n  s_mov_b32 s{SRDB+2}, 4194304\n  s_mov_b32 s{SRDB+3}, 0x20000")
                A(f"  v_lshlrev_b32 v7, 4, v{vJ}\n  v_lshl_add_u32 v7, v{vG}, 16, v7")
                A(f"  s_lshl_b32 s41, s{sB}, 19\n  s_lshl_b32 s60, s{sH}, 8\n  s_add_u32 s41, s41, s60")
                for i in range(0 if "nowq" in abl else 16):
                    A(f"  s_waitcnt vmcnt({c['ablD']})")
                    A(f"  buffer_load_dwordx4 {vq(104+4*i)}, v7, {sq(SRDB)}, s41 offen nt")
                    if i < 15: A(f"  s_add_u32 s41, s41, {8192 if i != 7 else 8192*25}")
                A("  s_waitcnt vmcnt(0)")
            if "poll" in abl:
                lp = self.lab("ablp")
                self.exec1()
                A(f"  s_mov_b32 s65, 12\n{lp}:\n  global_load_dwordx2 v[24:25], v{vZ}, {sp(sDBG)} offset:128 sc1\n  s_waitcnt vmcnt(0)\n  s_sleep {c['poll_sleep']}\n s_sub_u32 s65, s65, 1\n s_cmp_lg_u32 s65, 0\n s_cbranch_scc1 {lp}")
                self.execall()
            A(f"{l}:")
            if "wqr" in abl:
                A(f"  s_mov_b32 s{SRDA}, s{sWQ}\n  s_mov_b32 s{SRDA+1}, s{sWQ+1}\n  s_mov_b32 s{SRDA+2}, 4194304\n  s_mov_b32 s{SRDA+3}, 0x20000")
                sh, steps_ = self.wq_pattern()
                A(f"  v_lshlrev_b32 v4, 4, v{vJ}\n  v_lshl_add_u32 v4, v{vG}, {sh}, v4")
                A(f"  s_lshl_b32 s40, s{sHW}, 20\n  s_xor_b32 s60, s{sH}, {c['wqx']}\n  s_lshl_b32 s60, s60, 8\n  s_add_u32 s40, s40, s60")
                self.wload32(SRDA, steps_, c["HDO"], frac=c["HDOf"], fl=c["wqfl"])
                self.stamp(5)
            if "wqh" in abl:
                lq = self.lab("noq")
                A(f"  s_cmp_ge_u32 s{sB}, 4\n  s_cbranch_scc1 {lq}")
                A(f"  s_mov_b32 s{SRDA}, s{sWQ}\n  s_mov_b32 s{SRDA+1}, s{sWQ+1}\n  s_mov_b32 s{SRDA+2}, 4194304\n  s_mov_b32 s{SRDA+3}, 0x20000")
                A(f"  v_lshlrev_b32 v4, 4, v{vJ}\n  v_lshl_add_u32 v4, v{vG}, 17, v4")
                A(f"  s_lshl_b32 s40, s{sHW}, 19\n  s_and_b32 s60, s{sB}, 1\n  s_lshl_b32 s60, s60, 21\n  s_add_u32 s40, s40, s60\n  s_lshl_b32 s60, s{sH}, 8\n  s_add_u32 s40, s40, s60")
                for i in range(16):
                    if i >= c["HD"]: A(f"  s_waitcnt vmcnt({c['HD']-1})")
                    A(f"  buffer_load_dwordx4 {vq(104+4*i)}, v4, {sq(SRDA)}, s40 offen\n  s_add_u32 s40, s40, 8192")
                self.stamp(5)
                A(f"{lq}:")
            if "wqp" in abl:
                lq = self.lab("noq")
                A(f"  s_cmp_lt_u32 s57, 48\n  s_cbranch_scc1 {lq}")
                sh, steps_ = self.wq_pattern()
                A(f"  s_mov_b32 s{SRDA}, s{sWQ}\n  s_mov_b32 s{SRDA+1}, s{sWQ+1}\n  s_mov_b32 s{SRDA+2}, 4194304\n  s_mov_b32 s{SRDA+3}, 0x20000")
                A(f"  v_lshlrev_b32 v4, 4, v{vJ}\n  v_lshl_add_u32 v4, v{vG}, {sh}, v4")
                A(f"  s_lshl_b32 s40, s{sHW}, 20\n  s_lshl_b32 s60, s{sH}, 8\n  s_add_u32 s40, s40, s60")
                self.wload32(SRDA, steps_, c["HD"], frac=c["HDf"], fl=c["wqfl"])
                self.stamp(5)
                A(f"{lq}:")
            if "wo" in abl:
                A(f"  s_mov_b32 s{SRDA}, s{sWO}\n  s_mov_b32 s{SRDA+1}, s{sWO+1}\n  s_mov_b32 s{SRDA+2}, 4194304\n  s_mov_b32 s{SRDA+3}, 0x20000")
                A(f"  v_lshlrev_b32 v4, 4, v{vJ}\n  v_lshl_add_u32 v4, v{vG}, {self.wo_pattern()[0]}, v4")
                A(f"  s_lshl_b32 s40, s{sH}, 17\n  s_lshl_b32 s60, s{sHW}, 8\n  s_add_u32 s40, s40, s60")
                self.wload32(SRDA, self.wo_pattern()[1], c["HDO"], frac=c["HDOf"])
                self.stamp(6)
            A("  s_branch L_exit")
        A(f"  s_mov_b32 s{SRDA}, s{sWQ}\n  s_mov_b32 s{SRDA+1}, s{sWQ+1}\n  s_mov_b32 s{SRDA+2}, 4194304\n  s_mov_b32 s{SRDA+3}, 0x20000")
        sh, steps = self.wq_pattern()
        A(f"  v_lshlrev_b32 v4, 4, v{vJ}\n  v_lshl_add_u32 v4, v{vG}, {sh}, v4")
        A(f"  s_lshl_b32 s40, s{sHW}, 20\n  s_lshl_b32 s60, s{sH}, 8\n  s_add_u32 s40, s40, s60")
        A(f"  s_cmp_lt_u32 s57, 48\n  s_cbranch_scc1 L_prodh")
        A(f"  s_cmp_eq_u32 s57, 64\n  s_cselect_b32 s45, 3, 0")
        A(f"  s_cmp_gt_u32 s{sHW}, s45\n  s_cbranch_scc1 L_wq123")
        A(f"  s_lshl_b32 s46, s{sHW}, 1\n  s_add_u32 s46, s46, s{sB}\n  s_lshl_b32 s47, s{sHW}, 10")
        A(f"  s_lshl_b32 s60, s46, 10\n  v_add_u32 v36, s60, v{vL16}\n  global_load_dwordx4 {vq(28)}, v36, {sp(sX)}")
        A(f"  s_mul_i32 s60, s46, 6144\n  s_add_u32 s60, s60, {WS_MOD}\n  v_add_u32 v36, s60, v{vL16}")
        A(f"  s_lshl_b32 s60, s46, 8\n  s_add_u32 s60, s60, {WS_MARK}\n  v_lshrrev_b32 v37, 3, v{vLANE}\n  v_lshl_add_u32 v37, v37, 2, s60")
        HD = c["HD"]
        def ln():
            self.unpack8(28, 8); self.layernorm(8, 16, 24)
            A(f"  s_load_dword s44, {sp(sDBG)}, 0x80")
        def gather():
            l = self.lab("pollHN"); d = self.lab("gotHN")
            A(f"  s_waitcnt lgkmcnt(0)\n{l}:\n  s_cmp_lg_u32 s44, 0\n  s_cbranch_scc1 {d}")
            self.guard()
            A(f"  s_load_dword s44, {sp(sDBG)}, 0x80 glc\n  s_waitcnt lgkmcnt(0)\n  s_branch {l}\n{d}:")
            self.stamp(1)
            self.h0_issue("")
            A(f"  v_mov_b32 v26, s44\n  ds_write_b32 v{vZ}, v26 offset:{F_N}")
        self.wload32(SRDA, steps, HD, frac=c["HDf"], hooks={HD + 3: ln, c["P0"]: gather, c["P0"] + HD: self.h0_finish}, fl=c["wqfl"])
        A("  s_branch L_q")
        A("L_wq123:")
        l = self.lab("nozero")
        A(f"  s_cmp_lg_u32 s{sHW}, 3\n  s_cbranch_scc1 {l}\n  s_cmp_lt_u32 s57, 256\n  s_cbranch_scc1 {l}\n  s_cmp_ge_u32 s57, {256+8}\n  s_cbranch_scc1 {l}")
        A("  v_mov_b32 v12, 0\n  v_mov_b32 v13, 0\n  v_mov_b32 v14, 0\n  v_mov_b32 v15, 0")
        A(f"  s_sub_u32 s61, s57, 256\n  s_lshl_b32 s60, s61, 12\n  s_add_u32 s60, s60, {WS_ACC}\n  v_add_u32 v5, s60, v{vL16}")
        for i in range(4): A(f"  global_store_dwordx4 v5, {vq(12)}, {sp(sWS)} offset:{1024*i} sc1")
        A(f"{l}:")
        def ticket():
            l = self.lab("notick"); lp = self.lab("pollZN"); d = self.lab("gotZN")
            A(f"  s_cmp_lg_u32 s{sHW}, 3\n  s_cbranch_scc1 {l}\n  s_cmp_lt_u32 s57, 256\n  s_cbranch_scc1 {l}\n  s_cmp_ge_u32 s57, {256+8}\n  s_cbranch_scc1 {l}")
            A(f"  s_mov_b32 s65, 1\n  s_atomic_add s65, {sp(sDBG)}, 0x8 glc\n  s_waitcnt lgkmcnt(0)\n  s_cmp_lg_u32 s65, 7\n  s_cbranch_scc1 {l}")
            A(f"{lp}:\n  s_load_dword s44, {sp(sDBG)}, 0x80 glc\n  s_waitcnt lgkmcnt(0)\n  s_cmp_lg_u32 s44, 0\n  s_cbranch_scc1 {d}")
            self.guard()
            A(f"  s_branch {lp}\n{d}:\n  v_mov_b32 v7, s44")
            self.exec1(); A(f"  global_store_dword v{vZ}, v7, {sp(sDBG)} offset:136 sc1"); self.execall()
            A(f"{l}:")
        self.wload32(SRDA, steps, HD, frac=c["HDf"], hooks={HD + 2: ticket}, fl=c["wqfl"])
        A("L_q:")
        self.stamp(4)
        A("  s_add_u32 s61, s45, 1")
        self.lds_spin(F_H, "s61", 7)
        p32 = c["wqpat"] == 32
        A(f"  s_lshl_b32 s60, s{sHW}, 8\n  v_lshl_add_u32 v4, v{vG}, {6 if p32 else 4}, s60\n  v_and_b32 v5, s45, v{vJ}\n  v_lshl_add_u32 v4, v5, 10, v4")
        for m in range(4): A(f"  ds_read_b128 {vq(8+4*m)}, v4 offset:{L_HBUF + (16 if p32 else 64)*m}")
        A(f"  ds_read_b32 v7, v{vZ} offset:{F_N}")
        A(f"  s_lshl_b32 s60, s{sHW}, 11\n  v_lshl_add_u32 v5, v{vJ}, 5, s60\n  v_add_u32 v5, {L_QP}, v5")
        A(f"  s_mov_b32 s{SRDA}, s{sWO}\n  s_mov_b32 s{SRDA+1}, s{sWO+1}\n  s_mov_b32 s{SRDA+2}, 4194304\n  s_mov_b32 s{SRDA+3}, 0x20000")
        A(f"  s_lshl_b32 s40, s{sH}, 17\n  s_lshl_b32 s60, s{sHW}, 8\n  s_add_u32 s40, s40, s60")
        A("  s_waitcnt lgkmcnt(0)")
        A(f"  v_readfirstlane_b32 s44, v7\n  v_lshlrev_b32 v4, 4, v{vJ}\n  v_lshl_add_u32 v4, v{vG}, {self.wo_pattern()[0]}, v4")
        res = self.gemv32()
        A("  s_mov_b64 exec, 0xffff")
        for cc in range(0, 8, 2):
            A(f"  ds_write2_b32 v5, v{res[cc]}, v{res[cc+1]} offset0:{cc} offset1:{cc+1}")
        l = self.lab("onerow")
        A(f"  s_cmp_eq_u32 s45, 0\n  s_cbranch_scc1 {l}")
        for r in range(1, 4):
            A(f"  v_add_u32 v5, 512, v5")
            for cc in range(0, 8, 2):
                A(f"  ds_write2_b32 v5, v{res[cc]+r}, v{res[cc+1]+r} offset0:{cc} offset1:{cc+1}")
        A(f"{l}:")
        self.exec1()
        A(f"  ds_add_rtn_u32 v7, v{vZ}, v{vONE} offset:{F_Q}\n  s_waitcnt lgkmcnt(0)\n  v_readfirstlane_b32 s60, v7")
        self.execall()
        l = self.lab("notlastq")
        A(f"  s_cmp_lg_u32 s60, 3\n  s_cbranch_scc1 {l}")
        A(f"  v_lshlrev_b32 v6, 3, v{vLANE}")
        for part in range(4): A(f"  ds_read_b64 {vp(8+2*part)}, v6 offset:{L_QP + 2048*part}")
        A(f"  s_lshl_b32 s60, s2, 9\n  s_add_u32 s60, s60, {WS_QIN}\n  v_add_u32 v7, s60, v6")
        A(f"  v_lshlrev_b32 v5, 2, v{vLANE}\n  s_waitcnt lgkmcnt(0)")
        A("  v_add_f32 v8, v8, v10\n  v_add_f32 v9, v9, v11\n  v_add_f32 v12, v12, v14\n  v_add_f32 v13, v13, v15\n  v_add_f32 v8, v8, v12\n  v_add_f32 v9, v9, v13")
        A(f"  v_cvt_pk_bf16_f32 v8, v8, v9\n  ds_write_b32 v5, v8 offset:{L_QB}")
        l2 = self.lab("nodon")
        A(f"  s_cmp_eq_u32 s45, 0\n  s_cbranch_scc1 {l2}")
        for r in range(1, 4):
            for part in range(4): A(f"  ds_read_b64 {vp(16+2*part)}, v6 offset:{L_QP + 2048*part + 512*r}")
            A(f"  v_add_u32 v7, {64*512}, v7\n  s_waitcnt lgkmcnt(0)")
            A("  v_add_f32 v16, v16, v18\n  v_add_f32 v17, v17, v19\n  v_add_f32 v20, v20, v22\n  v_add_f32 v21, v21, v23\n  v_add_f32 v16, v16, v20\n  v_add_f32 v17, v17, v21")
            A(f"  v_cvt_pk_bf16_f32 v{24+2*r}, v16, v17\n  v_mov_b32 v{25+2*r}, s44\n  global_store_dwordx2 v7, {vp(24+2*r)}, {sp(sWS)} sc1")
        A(f"{l2}:")
        self.lds_inc(F_Q2)
        self.dumpv(8, 1, 0x80000, 2, 256)
        A(f"{l}:")
        self.stamp(5)
        steps = self.wo_pattern()[1]
        def chkB():
            l0 = self.lab("noB")
            A(f"  s_cmp_lg_u32 s{sHW}, 1\n  s_cbranch_scc1 {l0}")
            if "B" not in c["xskip"]: self.get_flag(7, 136, 45, expect="s44")
            self.lds_inc(F_C)
            A(f"{l0}:")
        def rowloads(fl):
            for i in range(4): A(f"  global_load_dwordx4 {vq(12+4*i)}, v36, {sp(sWS)} offset:{1024*i}{fl}")
            for i in range(4): A(f"  global_load_dword v{28+i}, v37, {sp(sWS)} offset:{32*i}{fl}")
        def rows_a():
            if "R" in c["xskip"]: return
            l = self.lab("norows")
            A(f"  s_cmp_ge_u32 s{sHW}, 2\n  s_cbranch_scc1 {l}\n  s_cmp_eq_u32 s{sFFN}, 0\n  s_cbranch_scc1 {l}")
            A(f"  s_lshl_b32 s41, s{sJ}, 1\n  s_add_u32 s41, s41, s{sHW}")
            A(f"  s_mul_i32 s60, s41, 6144\n  s_add_u32 s60, s60, {WS_MOD + 2048}\n  v_add_u32 v36, s60, v{vL16}")
            A(f"  s_lshl_b32 s60, s41, 8\n  s_add_u32 s60, s60, {WS_MARK + 64}\n  v_lshrrev_b32 v37, 3, v{vLANE}\n  v_lshl_add_u32 v37, v37, 2, s60")
            rowloads("")
            A(f"  s_lshl_b32 s60, s41, 10\n  v_add_u32 v7, s60, v{vL16}\n  global_load_dwordx4 {vq(8)}, v7, {sp(sX)}")
            A(f"{l}:")
        def rows_b():
            if "R" in c["xskip"]: return
            l = self.lab("norows2")
            A(f"  s_cmp_ge_u32 s{sHW}, 2\n  s_cbranch_scc1 {l}\n  s_cmp_eq_u32 s{sFFN}, 0\n  s_cbranch_scc1 {l}")
            lr = self.lab("chkR"); dr = self.lab("gotR")
            A(f"{lr}:")
            self.check_lines([12, 16, 20, 24], [28, 29, 30, 31], 32)
            A(f"  s_cbranch_vccz {dr}")
            self.guard()
            rowloads(" sc1")
            A(f"  s_waitcnt vmcnt(0)\n  s_branch {lr}\n{dr}:")
            self.unpack8(20, 28)
            for i in range(8): A(f"  v_add_f32 v{28+i}, 1.0, v{28+i}")
            for i in range(4): A(f"  v_cvt_pk_bf16_f32 v{20+i}, v{28+2*i}, v{29+2*i}")
            self.lds_spin(F_Q2, 1, 7)
            A(f"  s_mul_i32 s60, s{sHW}, 5120\n  v_add_u32 v36, s60, v{vL16}")
            for i in range(5): A(f"  ds_write_b128 v36, {vq(8+4*i)} offset:{L_ROWS + 1024*i}")
            A(f"{l}:")
        self.wload32(SRDA, steps, c["HDO"], frac=c["HDOf"], hooks={c["PB"]: chkB, c["PR"]: rows_a, c["PR"] + c["HDO"]: rows_b})
        A("  s_branch L_wo")
        A("L_prodh:")
        if c["spref"]:
            l = self.lab("nosp"); pc = self.lab("spc")
            per = -(-c["prefkib"] * 8 // 6)
            A(f"  s_cmp_lg_u32 s{sHW}, 3\n  s_cbranch_scc1 {l}\n  s_getpc_b64 s[60:61]\n{pc}:\n  s_sub_u32 s60, s60, {pc}-{KNAME}\n  s_subb_u32 s61, s61, 0")
            A(f"  s_sub_u32 s65, s{sB}, 2\n  s_mul_i32 s65, s65, {per*128}\n  s_add_u32 s60, s60, s65\n  s_addc_u32 s61, s61, 0")
            for i in range(per):
                A(f"  s_load_dword s41, s[60:61], {128*i:#x}")
                if i % 12 == 11: A("  s_waitcnt lgkmcnt(0)")
            A(f"  s_waitcnt lgkmcnt(0)\n{l}:")
        A(f"  s_mov_b32 s{SRDA}, s{sWO}\n  s_mov_b32 s{SRDA+1}, s{sWO+1}\n  s_mov_b32 s{SRDA+2}, 4194304\n  s_mov_b32 s{SRDA+3}, 0x20000")
        A(f"  s_lshl_b32 s40, s{sH}, 17\n  s_lshl_b32 s60, s{sHW}, 8\n  s_add_u32 s40, s40, s60")
        A(f"  v_lshlrev_b32 v4, 4, v{vJ}\n  v_lshl_add_u32 v4, v{vG}, {self.wo_pattern()[0]}, v4")
        def recvq():
            l0 = self.lab("noq"); l = self.lab("pollPN"); d = self.lab("gotPN"); lq = self.lab("pollPQ"); dq = self.lab("gotPQ")
            A(f"  s_cmp_lg_u32 s{sHW}, 0\n  s_cbranch_scc1 {l0}")
            A(f"  s_load_dword s44, {sp(sDBG)}, 0x80\n  s_waitcnt lgkmcnt(0)\n{l}:\n  s_cmp_lg_u32 s44, 0\n  s_cbranch_scc1 {d}")
            self.guard()
            A(f"  s_load_dword s44, {sp(sDBG)}, 0x80 glc\n  s_waitcnt lgkmcnt(0)\n  s_branch {l}\n{d}:")
            A(f"  v_mov_b32 v26, s44\n  ds_write_b32 v{vZ}, v26 offset:{F_N}")
            A(f"  s_lshl_b32 s60, s2, 9\n  s_add_u32 s60, s60, {WS_QIN}\n  v_lshl_add_u32 v7, v{vLANE}, 3, s60\n  s_add_u32 s61, s60, 4")
            if "PQ" in c["xskip"]: A(f"  s_branch {dq}")
            A(f"{lq}:\n  s_load_dword s60, {sp(sWS)}, s61 glc\n  s_waitcnt lgkmcnt(0)\n  s_cmp_eq_u32 s60, s44\n  s_cbranch_scc0 {lq}_r")
            A(f"  global_load_dwordx2 v[8:9], v7, {sp(sWS)} sc1\n  s_waitcnt vmcnt(0)\n  v_cmp_ne_u32 vcc, s44, v9\n  s_cbranch_vccz {dq}")
            A(f"{lq}_r:")
            self.guard()
            A(f"  s_sleep {c['q_sleep']}\n  s_branch {lq}\n{dq}:")
            A(f"  v_lshlrev_b32 v7, 2, v{vLANE}\n  ds_write_b32 v7, v8 offset:{L_QB}")
            self.lds_inc(F_Q2)
            self.stamp(5)
            self.dumpv(8, 1, 0x80000, 2, 256)
            self.get_flag(7, 136, 45, expect="s44")
            self.lds_inc(F_C)
            A(f"{l0}:")
        self.wload32(SRDA, steps, c["HDP"], frac=c["HDPf"], hooks={c["PQ"]: recvq})
        self.lds_spin(F_Q2, 1, 7, sleep=4)
        A(f"  ds_read_b32 v7, v{vZ} offset:{F_N}\n  s_waitcnt lgkmcnt(0)\n  v_readfirstlane_b32 s44, v7")
        A("L_wo:")
        A("L_wodone:")
        if c["hprio"]: A(f"  s_setprio {c['hprio']}")
        if c["pref2"] and "T" not in c["xskip"]:
            self.prefetch(wait=True)
        self.lds_spin(F_C, 1, 7, sleep=4)
        A(f"  v_lshlrev_b32 v28, {5 if c['oadd'] else 3}, v{vG if c['oadd'] else vLANE}")
        A(f"  s_lshl_b32 s60, s{sHW}, 8\n  v_lshl_add_u32 v29, v{vLANE}, 2, s60\n  v_lshl_add_u32 v30, v{vG}, {6 if c['wopat'] == 32 else 4}, s60")
        A(f"  v_lshrrev_b32 v31, 2, v{vLANE}\n  v_and_b32 v32, 3, v{vLANE}\n  v_lshl_add_u32 v31, v32, 4, v31\n  v_lshlrev_b32 v36, 2, v31")
        A(f"  s_lshl_b32 s61, s{sB}, 12\n  s_add_u32 s61, s61, {WS_ACC}\n  v_add_u32 v32, s61, v29")
        A(f"  v_mov_b32 v33, 1.0\n  v_mov_b32 v34, 1.0\n  v_mov_b32 v35, 1.0\n  v_mov_b32_dpp v35, v{vZ} quad_perm:[0,1,2,3] row_mask:0x4 bank_mask:0xf")
        self.stamp(6)
        if "T" in c["xskip"]: A("  s_branch L_exit")
        if c["dryo"]:
            l = self.lab("nodryo")
            A(f"  s_cmp_lg_u32 s{sHW}, 3\n  s_cbranch_scc1 {l}\n  s_mov_b64 exec, 0\n  s_branch L_dry_o\nL_dry_oend:\n  s_mov_b64 exec, -1\n{l}:")
        self.lds_spin(F_O, 8, 7, sleep=c['o_sleep'])
        self.stamp(9)
        A("L_dry_o:")
        if c["oadd"]:
            rd = lambda q, off: A(f"  ds_read_b128 {vq(q)}, v28 offset:{L_OP + off}")
            rd(12, 0); rd(16, 16); rd(20, 128); rd(24, 144); rd(4, 256)
            A(f"  s_waitcnt lgkmcnt(3)")
            for i in range(4): A(f"  v_cvt_pk_bf16_f32 v{8+i}, v{12+2*i}, v{13+2*i}")
            A(f"  s_waitcnt lgkmcnt(1)")
            for i in range(4): A(f"  v_cvt_pk_bf16_f32 v{12+i}, v{20+2*i}, v{21+2*i}")
            rd(16, 272); rd(20, 384); rd(24, 400)
            self.stamp(10)
            res = [28] + [40 + 4 * k for k in range(7)]
            for m, Am in enumerate((8, 12, 4, 16)):
                for cc in range(8):
                    A(f"  v_mfma_f32_16x16x32_bf16 {vq(res[cc])}, {vq(Am)}, {vq(40+32*m+4*cc)}, {'0' if m == 0 else vq(res[cc])}")
                    if m == 0 and cc == 5:
                        A(f"  s_waitcnt lgkmcnt(0)")
                        A("  v_cvt_pk_bf16_f32 v4, v4, v5\n  v_cvt_pk_bf16_f32 v5, v6, v7\n  v_cvt_pk_bf16_f32 v6, v16, v17\n  v_cvt_pk_bf16_f32 v7, v18, v19")
                    if m == 1 and cc == 1:
                        for i in range(4): A(f"  v_cvt_pk_bf16_f32 v{16+i}, v{20+2*i}, v{21+2*i}")
        else:
            for part in range(8): A(f"  ds_read_b64 {vp(8+2*part)}, v28 offset:{L_OP + 512*part}")
            A("  s_waitcnt lgkmcnt(4)")
            A("  v_add_f32 v8, v8, v10\n  v_add_f32 v9, v9, v11\n  v_add_f32 v12, v12, v14\n  v_add_f32 v13, v13, v15\n  v_add_f32 v8, v8, v12\n  v_add_f32 v9, v9, v13")
            A("  s_waitcnt lgkmcnt(0)")
            A("  v_add_f32 v16, v16, v18\n  v_add_f32 v17, v17, v19\n  v_add_f32 v20, v20, v22\n  v_add_f32 v21, v21, v23\n  v_add_f32 v16, v16, v20\n  v_add_f32 v17, v17, v21")
            A(f"  v_add_f32 v8, v8, v16\n  v_add_f32 v9, v9, v17\n  v_cvt_pk_bf16_f32 v7, v8, v9\n  ds_write_b32 v29, v7 offset:{L_OB}")
            for m in range(4): A(f"  ds_read_b128 {vq(8+4*m)}, v30 offset:{L_OB + (16 if c['wopat'] == 32 else 64)*m}")
            A("  s_waitcnt lgkmcnt(0)")
            self.stamp(10)
            if c["dryo"]: A("  s_cbranch_execz L_dry_o2")
            res = self.gemv32()
            A("L_dry_o2:")
        self.stamp(11)
        for g in range(3):
            for k in range(3):
                if 3 * k + g < 8:
                    A(f"  v_mov_b32_dpp v{33+k}, v{res[3*k+g]} quad_perm:[0,1,2,3] row_mask:{1<<g:#x} bank_mask:0xf")
        for k in range(3): A(f"  ds_bpermute_b32 v{33+k}, v36, v{33+k}")
        if c["dryo"]: A("  s_cbranch_execz L_dry_oend")
        for k in range(3):
            A(f"  s_waitcnt lgkmcnt({2-k})\n  global_atomic_add_f32 v32, v{33+k}, {sp(sWS)} offset:{1024*k}")
        if c["gate"] or c["early"]:
            l = self.lab("g01")
            A(f"  s_cmp_lt_u32 s{sHW}, 2\n  s_cbranch_scc1 {l}")
            self.lds_inc(F_A)
            A(f"{l}:")
        else:
            self.lds_inc(F_A)
        self.stamp(7)
        if c["dump"] and not c["oadd"]:
            l = self.lab("nodumpo")
            A(f"  s_cmp_lg_u32 s{sHW}, 3\n  s_cbranch_scc1 {l}")
            self.dumpv(7, 1, 0x90000, 2, 256)
            A(f"{l}:")
        if c["dry"]:
            l = self.lab("nodry"); l2 = self.lab("dryf")
            A(f"  s_cmp_lg_u32 s{sHW}, 2\n  s_cbranch_scc1 {l}\n  s_cmp_lg_u32 s{sFFN}, 0\n  s_cbranch_scc1 {l2}\n  s_cmp_ge_u32 s57, 100\n  s_cbranch_scc1 L_exit")
            A(f"  s_mov_b64 exec, 0\n  s_branch L_dry_r\n{l2}:\n  s_mov_b64 exec, 0\n  s_branch L_dry_l\n{l}:")
        A(f"  s_cmp_ge_u32 s{sHW}, 2\n  s_cbranch_scc1 L_exit\n  s_cmp_lt_u32 s57, 100\n  s_cbranch_scc1 L_recv\n  s_cmp_eq_u32 s{sFFN}, 0\n  s_cbranch_scc1 L_exit")
        A(f"  s_lshl_b32 s45, s{sJ}, 1\n  s_add_u32 s45, s45, s{sHW}\n  s_lshl_b32 s45, s45, 6\n  s_add_u32 s45, s45, s{sSL}\n  s_lshl_b32 s45, s45, 7\n  s_add_u32 s45, s45, {WS_HINT}")
        if c["gate"]: A(f"  s_load_dword s61, {sp(sWS)}, s45 glc")
        if c["early"]: A(f"  s_lshl_b32 s60, s{sHW}, 2\n  v_mov_b32 v7, s60\n  ds_read_b32 v7, v7 offset:{F_HS}")
        A(f"  s_mul_i32 s60, s{sHW}, 5120\n  v_add_u32 v4, s60, v{vL16}")
        for i in range(4): A(f"  ds_read_b128 {vq(72+4*i)}, v4 offset:{L_ROWS + 1024*i}")
        A(f"  s_lshl_b32 s41, s{sJ}, 1\n  s_add_u32 s41, s41, s{sHW}\n  s_lshl_b32 s41, s41, 12\n  s_add_u32 s41, s41, {WS_ACC}\n  v_add_u32 v5, s41, v{vL16}\n  v_mov_b32 v6, s41")
        A(f"  s_lshl_b32 s60, s{sHW}, 10\n  v_add_u32 v4, s60, v{vL16}")
        A("  s_waitcnt lgkmcnt(0)")
        if c["early"]:
            le = self.lab("notlate"); lj0 = self.lab("lj")
            A(f"  v_readfirstlane_b32 s61, v7\n  s_cmp_eq_u32 s61, s44\n  s_cbranch_scc1 {le}")
            self.lds_inc(F_A)
            A(f"{le}:")
        self.unpack8(72, 88); self.unpack8(76, 96); self.unpack8(80, 104); self.unpack8(84, 112)
        if c["early"]:
            le2 = self.lab("notlate2")
            A(f"  s_cmp_lg_u32 s61, s44\n  s_cbranch_scc1 {le2}")
            if c["late_delay"]: A(f"  s_sleep {c['late_delay']}")
            for k in range(3): A(f"  global_load_dwordx4 {vq(120+4*k)}, v5, {sp(sWS)} offset:{1024*k}{c['accfl']}")
            self.lds_inc(F_A)
            self.stamp(1); self.cstamp(13)
            A(f"  s_branch {lj0}\n{le2}:")
        lp = self.lab("pollH"); ld = self.lab("gotH")
        if c["gate"]:
            lg = self.lab("late")
            A(f"  s_cmp_eq_u32 s61, s44\n  s_cbranch_scc1 {lg}")
            self.lds_inc(F_A)
        A(f"{lp}:\n  s_load_dword s60, {sp(sWS)}, s45 glc\n  s_waitcnt lgkmcnt(0)\n  s_cmp_eq_u32 s60, s44\n  s_cbranch_scc1 {ld}")
        self.guard()
        if c["hint_sleep"]: A(f"  s_sleep {c['hint_sleep']}")
        A(f"  s_branch {lp}\n{ld}:")
        if c["read_delay"]: A(f"  s_sleep {c['read_delay']}")
        if c["gate"]:
            for k in range(3): A(f"  global_load_dwordx4 {vq(120+4*k)}, v5, {sp(sWS)} offset:{1024*k}{c['accfl']}")
            lj = self.lab("gj")
            A(f"  s_branch {lj}\n{lg}:")
            for k in range(3): A(f"  global_load_dwordx4 {vq(120+4*k)}, v5, {sp(sWS)} offset:{1024*k}{c['accfl']}")
            self.lds_inc(F_A)
            A(f"{lj}:")
        self.stamp(1)
        self.cstamp(13)
        lp = self.lab("pollF"); ld = self.lab("gotF")
        if not c["gate"]:
            for k in range(3): A(f"  global_load_dwordx4 {vq(120+4*k)}, v5, {sp(sWS)} offset:{1024*k}{c['accfl']}")
        if c["early"]: A(f"{lj0}:")
        self.lds_inc(F_R)
        A(f"{lp}:")
        A("  s_waitcnt vmcnt(0)\n  v_min3_f32 v7, v123, v127, v131\n  v_cmp_neq_f32 vcc, 0x42000000, v7")
        A(f"  s_cbranch_vccz {ld}")
        self.guard()
        if c["full_sleep"]: A(f"  s_sleep {c['full_sleep']}")
        for k in range(3): A(f"  global_load_dwordx4 {vq(120+4*k)}, v5, {sp(sWS)} offset:{1024*k}{c['accfl']}")
        A(f"  s_branch {lp}\n{ld}:")
        self.stamp(2)
        self.cstamp(15)
        A("L_dry_l:")
        src = [120, 121, 122, 124, 125, 126, 128, 129]
        for i in range(4): A(f"  v_cvt_pk_bf16_f32 v{16+i}, v{src[2*i]}, v{src[2*i+1]}")
        self.unpack8(16, 8)
        self.pk8("mul", 8, 96, 8)
        self.rnd8(8, 16)
        self.pk8("add", 8, 88, 8)
        for i in range(4): A(f"  v_cvt_pk_bf16_f32 v{28+i}, v{8+2*i}, v{9+2*i}")
        self.unpack8(28, 8)
        self.layernorm(8, 16, 24)
        self.pk8("mul", 8, 8, 112)
        self.rnd8(8, 16)
        self.pk8("add", 8, 8, 104)
        for i in range(4): A(f"  v_cvt_pk_bf16_f32 v{24+i}, v{8+2*i}, v{9+2*i}")
        A(f"  ds_write_b128 v4, {vq(24)} offset:{L_H2}\n  ds_write_b128 v4, {vq(28)} offset:{L_X1}\n  s_waitcnt lgkmcnt(0)")
        if c["dry"]: A("  s_cbranch_execz L_dry_red")
        self.stamp(3)
        A("  s_barrier")
        if c["dump"]:
            A(f"  s_lshl_b32 s69, s2, 1\n  s_add_u32 s69, s69, s{sHW}")
            self.dumpv(24, 4, 0x600000, 69, 1024)
        A(f"  s_cmp_eq_u32 s{sHW}, 0\n  s_cbranch_scc1 L_reducer")
        A(f"  s_cmp_ge_u32 s{sSL}, 32\n  s_cbranch_scc1 {'L_h1bar' if c['stamps'] else 'L_exit'}")
        A(f"  s_lshr_b32 s60, s{sSL}, 2\n  s_lshl_b32 s60, s60, 7\n  s_and_b32 s61, s{sSL}, 3\n  s_lshl_b32 s61, s61, 1\n  s_add_u32 s60, s60, s61\n  v_lshl_add_u32 v4, v{vJ}, 3, s60")
        A(f"  ds_read_u16 v8, v4 offset:{L_X1}\n  ds_read_u16 v9, v4 offset:{L_ROWS + 4096}\n  ds_read_u16 v12, v4 offset:{L_X1 + 1024}\n  ds_read_u16 v13, v4 offset:{L_ROWS + 4096 + 5120}")
        A(f"  s_lshl_b32 s60, s{sJ}, 5\n  s_add_u32 s60, s60, s{sSL}\n  s_mul_i32 s60, s60, {INB}\n  s_add_u32 s60, s60, {WS_INBOX + 43*256}\n  v_lshl_add_u32 v5, v{vJ}, 4, s60")
        A(f"  s_xor_b32 s45, s44, {TAGX:#x}\n  v_mov_b32 v10, s44\n  v_mov_b32 v11, s45\n  s_mov_b64 exec, 0xffff\n  s_waitcnt lgkmcnt(0)\n  v_lshl_or_b32 v8, v12, 16, v8\n  v_lshl_or_b32 v9, v13, 16, v9")
        A(f"  global_store_dwordx4 v5, {vq(8)}, {sp(sWS)} sc1")
        A("L_h1bar:\n  s_barrier\n  s_barrier\n  s_branch L_exit2")
        A("L_recv:")
        A(f"  s_lshl_b32 s41, s{sB}, 3\n  s_add_u32 s41, s41, s{sXCD}\n  s_lshl_b32 s41, s41, 1\n  s_add_u32 s41, s41, s{sHW}")
        A(f"  s_mul_i32 s46, s41, {INB}\n  s_add_u32 s46, s46, {WS_INBOX}\n  s_add_u32 s47, s46, {43*256 + 8}\n  s_add_u32 s60, s46, 4096\n  v_add_u32 v5, s60, v{vL16}\n  v_add_u32 v7, 4096, v5")
        A(f"  s_lshr_b32 s60, s41, 5\n  s_lshl_b32 s60, s60, 11\n  s_bfe_u32 s61, s41, 0x30002\n  s_lshl_b32 s61, s61, 7\n  s_add_u32 s60, s60, s61\n  s_and_b32 s61, s41, 3\n  s_lshl_b32 s61, s61, 1\n  s_add_u32 s60, s60, s61")
        A(f"  v_and_b32 v4, 1, v{vG}\n  v_lshl_add_u32 v6, v{vJ}, 3, s60\n  v_lshl_add_u32 v6, v4, 10, v6\n  v_lshlrev_b32 v4, 4, v4\n  v_sub_u32 v4, 16, v4")
        A(f"  s_xor_b32 s45, s44, {TAGX:#x}")
        lp = self.lab("pollX"); ld = self.lab("gotX")
        A(f"{lp}:\n  s_load_dword s60, {sp(sWS)}, s47 glc\n  s_waitcnt lgkmcnt(0)\n  s_cmp_eq_u32 s60, s44\n  s_cbranch_scc1 {ld}")
        self.guard()
        A(f"  s_sleep {c['rx_sleep']}\n  s_branch {lp}\n{ld}:")
        self.stamp(1)
        if c["rx_delay"]: A(f"  s_sleep {c['rx_delay']}")
        lp = self.lab("pollI"); ld = self.lab("gotI")
        A(f"{lp}:")
        for i in range(11): A(f"  global_load_dwordx4 {vq(44+4*i)}, v{5 if i < 8 else 7}, {sp(sWS)} offset:{1024*i - (4096 if i < 8 else 8192)}{c['rxfl']}")
        A("L_dry_r:")
        for i in range(11):
            q = 44 + 4 * i
            A(f"  s_waitcnt vmcnt({10-i})")
            if i == 0:
                A(f"  v_xor_b32 v10, s44, v{q+2}\n  v_xor_b32 v11, s45, v{q+3}\n  v_mov_b32 v8, v{q}\n  v_mov_b32 v9, v{q+1}")
            else:
                A(f"  v_bitop3_b32 v10, v10, v{q+2}, s44 bitop3:0xf6\n  v_bitop3_b32 v11, v11, v{q+3}, s45 bitop3:0xf6")
                if i < 10: A(f"  v_add_f32 v8, v8, v{q}\n  v_add_f32 v9, v9, v{q+1}")
                else: A(f"  v_add_f32_dpp v8, v{q}, v8 quad_perm:[0,1,2,3] row_mask:0x7 bank_mask:0xf\n  v_add_f32_dpp v9, v{q+1}, v9 quad_perm:[0,1,2,3] row_mask:0x7 bank_mask:0xf")
        A(f"  v_or_b32 v10, v10, v11\n  v_cmp_ne_u32 vcc, 0, v10\n  s_cbranch_vccz {ld}")
        self.guard()
        A(f"  s_branch {lp}\n{ld}:")
        self.stamp(4); self.cstamp(15)
        if c["xdelay"]: A(f"  s_sleep {c['xdelay']}")
        A("  v_mov_b32 v12, v84\n  v_mov_b32 v13, v85\n  v_permlane16_swap_b32 v8, v9\n  v_permlane32_swap_b32 v12, v84\n  v_permlane32_swap_b32 v13, v85")
        A("  v_add_f32 v8, v8, v9\n  v_mov_b32 v12, v84\n  v_mov_b32 v13, v85\n  v_mov_b32 v9, v8")
        A("  v_permlane16_swap_b32 v12, v84\n  v_permlane16_swap_b32 v13, v85\n  v_permlane32_swap_b32 v9, v8")
        A("  v_lshlrev_b32 v84, v4, v84\n  v_lshlrev_b32 v85, v4, v85\n  v_add_f32 v8, v8, v9\n  v_and_b32 v84, 0xffff0000, v84\n  v_and_b32 v85, 0xffff0000, v85")
        self.rnd1(8, 9)
        A("  v_mul_f32 v8, v85, v8"); self.rnd1(8, 9)
        A("  v_add_f32 v8, v84, v8\n  v_cvt_pk_bf16_f32 v8, v8, v8")
        if c["dry"]: A("  s_cbranch_execz L_exit")
        A("  s_mov_b32 exec_hi, 0")
        A(f"  global_store_short v6, v8, {sp(sOUT)}{c['outfl']}")
        self.execall()
        self.stamp(5)
        A("  s_branch L_exit")
        A("L_reducer:")
        A(f"  v_lshlrev_b32 v4, 2, v{vLANE}\n  v_add_u32 v4, {L_GUP}, v4")
        A(f"  v_and_b32 v5, 1, v{vLANE}\n  v_lshlrev_b32 v5, 6, v5\n  v_and_b32 v6, 62, v{vLANE}\n  v_add_u32 v5, v5, v6")
        A("  s_barrier")
        A("L_dry_red:")
        for w in range(8): A(f"  ds_read2st64_b32 {vp(8+2*w)}, v4 offset0:{2*w} offset1:{2*w+1}")
        A("  s_waitcnt lgkmcnt(4)")
        A("  v_add_f32 v8, v8, v10\n  v_add_f32 v9, v9, v11\n  v_add_f32 v12, v12, v14\n  v_add_f32 v13, v13, v15\n  v_add_f32 v8, v8, v12\n  v_add_f32 v9, v9, v13")
        A("  s_waitcnt lgkmcnt(0)")
        A("  v_add_f32 v16, v16, v18\n  v_add_f32 v17, v17, v19\n  v_add_f32 v20, v20, v22\n  v_add_f32 v21, v21, v23\n  v_add_f32 v16, v16, v20\n  v_add_f32 v17, v17, v21")
        A("  v_add_f32 v8, v8, v16\n  v_add_f32 v9, v9, v17")
        self.rnd2(8, 9, 10)
        A(f"  v_mul_f32 v8, s{sLOG2E}, v8\n  v_exp_f32 v8, -v8\n  v_add_f32 v8, 1.0, v8\n  v_rcp_f32 v8, v8")
        self.rnd1(8, 10)
        A(f"  v_mul_f32 v8, v8, v9\n  v_cvt_pk_bf16_f32 v8, v8, v8\n  ds_write_b16 v5, v8 offset:{L_HH}\n  s_waitcnt lgkmcnt(0)")
        if c["dry"]: A("  s_cbranch_execz L_dry_s")
        A("  s_barrier")
        self.stamp(4)
        self.dumpv(8, 1, 0xE0000, 2, 256)
        A("  s_branch L_exit2")

    def build(self):
        A = self.A; c = self.c
        A(f"{KNAME}:")
        if c["stamps"]:
            for k in range(1, 16): A(f"  s_mov_b64 s[{70+2*k}:{71+2*k}], 0")
        self.stamp(0)
        A("  s_cmp_ge_u32 s2, 256\n  s_cbranch_scc1 L_end")
        A("  s_load_dwordx16 s[4:19], s[0:1], 0\n  s_load_dwordx8 s[20:27], s[0:1], 64\n  s_load_dwordx4 s[28:31], s[0:1], 96")
        A(f"  v_lshrrev_b32 v2, 6, v0\n  v_and_b32 v0, 63, v0\n  v_readfirstlane_b32 s{sWAVE}, v2")
        A(f"  v_lshlrev_b32 v{vL16}, 4, v0")
        A(f"  s_and_b32 s{sXCD}, s2, 7\n  s_lshr_b32 s{sIDX}, s2, 3\n  s_lshr_b32 s{sB}, s{sIDX}, 2\n  s_and_b32 s{sJ}, s{sIDX}, 3")
        if c["hmap"] == 0: A(f"  s_lshl_b32 s{sH}, s{sXCD}, 2\n  s_add_u32 s{sH}, s{sH}, s{sJ}")
        elif c["hmap"] == 1: A(f"  s_lshl_b32 s{sH}, s{sJ}, 3\n  s_add_u32 s{sH}, s{sH}, s{sXCD}")
        elif c["hmap"] == 2: A(f"  s_lshr_b32 s{sH}, s{sXCD}, 1\n  s_lshl_b32 s{sH}, s{sH}, 3\n  s_and_b32 s60, s{sXCD}, 1\n  s_add_u32 s{sH}, s{sH}, s60\n  s_lshl_b32 s60, s{sJ}, 1\n  s_add_u32 s{sH}, s{sH}, s60")
        elif c["hmap"] == 3: A(f"  s_lshl_b32 s{sH}, s{sXCD}, 2\n  s_add_u32 s60, s{sJ}, 1\n  s_and_b32 s60, s60, 3\n  s_add_u32 s{sH}, s{sH}, s60")
        if c["fast0"]:
            l = self.lab("nofast")
            A(f"  s_cmp_ge_u32 s{sWAVE}, 8\n  s_cbranch_scc1 {l}")
            A(f"  s_lshl_b32 s56, s{sB}, 5\n  s_add_u32 s56, s56, s{sH}\n  s_lshl_b32 s56, s56, 20\n  s_add_u32 s56, s56, 0xC0000\n  s_lshl_b32 s{sOFF}, s{sWAVE}, {10 + c['gran'].bit_length() - 1}")
            A(f"  s_mov_b32 s{SRDA+2}, 0x40000\n  s_mov_b32 s{SRDA+3}, 0x20000\n  s_waitcnt lgkmcnt(0)\n  s_add_u32 s{SRDA}, s{sK}, s56\n  s_addc_u32 s{SRDA+1}, s{sK+1}, 0")
            for n in range(2): A(f"  buffer_load_dwordx4 {vq(40+4*n)}, v{vL16}, {sq(SRDA)}, s{sOFF} offen offset:{1024*n}{c['kfl']}")
            self.stamp(8)
            A(f"{l}:")
        if c["pref"]: self.prefetch()
        A(f"  v_mov_b32 v36, 0\n  v_mov_b32 v37, 0\n  v_lshrrev_b32 v{vG}, 4, v0\n  v_and_b32 v{vJ}, 15, v0\n  v_mov_b32 v{vZ}, 0\n  v_mov_b32 v{vONE}, 1")
        A(f"  s_mul_i32 s65, s{sB}, 3\n  s_add_u32 s65, s65, s{sJ}\n  s_lshr_b32 s60, s{sJ}, 1\n  s_sub_u32 s65, s65, s60\n  s_lshr_b32 s61, s65, 2")
        A(f"  s_lshr_b32 s60, s{sXCD}, 1\n  s_mul_i32 s{sSL}, s{sXCD}, 5\n  s_add_u32 s{sSL}, s{sSL}, s60\n  s_add_u32 s{sSL}, s{sSL}, s61\n  s_sub_u32 s{sSL}, s{sSL}, 1")
        A(f"  s_and_b32 s60, s{sXCD}, 1\n  s_add_u32 s60, s60, 5\n  s_cmp_lt_u32 s61, s60\n  s_cselect_b32 s{sFFN}, 1, 0\n  s_cmp_lt_u32 s{sSL}, 43\n  s_cselect_b32 s{sFFN}, s{sFFN}, 0")
        A(f"  s_add_u32 s60, s{sXCD}, 256\n  s_cmp_eq_u32 s{sIDX}, 28\n  s_cselect_b32 s57, s60, 100")
        A(f"  s_sub_u32 s60, s{sB}, {c['prodb']}\n  s_lshl_b32 s60, s60, 3\n  s_add_u32 s60, s60, s{sXCD}\n  s_cmp_lt_u32 s{sB}, {c['prodb']}\n  s_cselect_b32 s60, 64, s60")
        A(f"  s_cmp_eq_u32 s{sJ}, 1\n  s_cselect_b32 s57, s60, s57\n  s_cselect_b32 s{sFFN}, 0, s{sFFN}\n  s_and_b32 s{sJ}, s65, 3")
        if "M" in c["xskip"]: A("  s_cmp_lt_u32 s57, 48\n  s_cselect_b32 s57, 100, s57")
        if "F" in c["xskip"]: A("  s_cmp_ge_u32 s57, 256\n  s_cselect_b32 s57, 100, s57")
        A(f"  s_mov_b32 s{sGUARD}, 0\n  s_mov_b32 s{sPLO}, 0x05040100\n  s_mov_b32 s{sPHI}, 0x07060302\n  s_mov_b32 s{sLOG2E}, {LOG2E:#x}")
        A(f"  s_cmp_ge_u32 s{sWAVE}, 8\n  s_cbranch_scc1 L_helper")
        if c["sprio"]:
            l = self.lab("sp")
            A(f"  s_cmp_lt_u32 s{sWAVE}, 4\n  s_cbranch_scc1 {l}\n  s_setprio {c['sprio']}\n{l}:")
        A(f"  s_lshl_b32 s60, s{sB}, 5\n  s_add_u32 s60, s60, s{sH}\n  s_lshl_b32 s60, s60, 20\n  s_add_u32 s60, s60, 0xC0000")
        A(f"  s_lshl_b32 s{sOFF}, s{sWAVE}, {10 + c['gran'].bit_length() - 1}\n  s_mul_i32 s56, s{sWAVE}, {c['NV']*1024}\n  s_add_u32 s56, s56, {L_V}")
        gr = c["gran"] // 4
        for G in range(1, 8): A(f"  s_add_u32 s{sOFF+G}, s{sOFF}, {(G // gr) * 32768 * gr + (G % gr) * 4096}")
        A(f"  s_mov_b32 s{SRDA+2}, 0x40000\n  s_mov_b32 s{SRDA+3}, 0x20000\n  s_mov_b32 s{SRDB+2}, 0x40000\n  s_mov_b32 s{SRDB+3}, 0x20000")
        A("  s_waitcnt lgkmcnt(0)")
        D = c["D"]
        d2 = c["depth2"] or c["depth"]
        def mask(f1, f2):
            m = 0; acc = 0.5
            for n in range(64):
                acc += f1 if n < c["dsw"] else f2
                if acc >= 1.0 - 1e-9:
                    acc -= 1.0
                    if n < c["sprint"]: m |= 1 << n
            return m
        m1 = [mask(min(1.0, D - a), min(1.0, D - b)) for a, b in zip(c["depth"], d2)]
        m2 = [mask(max(0.0, D - 1 - a), max(0.0, D - 1 - b)) & x for a, b, x in zip(c["depth"], d2, m1)]
        for reg, ms in ((58, m1), (14, m2)):
            for half in range(2):
                w = [(m >> (32 * half)) & 0xffffffff for m in ms]
                A(f"  s_bitcmp1_b32 s{sXCD}, 0\n  s_mov_b32 s{reg+half}, {w[0]:#x}\n  s_cselect_b32 s{reg+half}, {w[1]:#x}, s{reg+half}")
                A(f"  s_cmp_lt_u32 s57, 48\n  s_cselect_b32 s{reg+half}, {w[2]:#x}, s{reg+half}\n  s_cmp_eq_u32 s57, 64\n  s_cselect_b32 s{reg+half}, {w[3]:#x}, s{reg+half}")
        A("  s_waitcnt lgkmcnt(0)")
        A(f"  s_add_u32 s{SRDA}, s{sK}, s60\n  s_addc_u32 s{SRDA+1}, s{sK+1}, 0\n  s_add_u32 s{SRDB}, s{sV}, s60\n  s_addc_u32 s{SRDB+1}, s{sV+1}, 0")
        if c["Dodd"]:
            A(f"  s_bitcmp1_b32 s{sXCD}, 0\n  s_cbranch_scc1 L_sodd")
        self.streamer(c["D"], "e")
        if c["Dodd"]:
            A("L_sodd:")
            self.streamer(c["Dodd"], "o")
        self.streamer_ffn()
        self.helper()
        if c["sub"]:
            A("L_gemv:"); self.gemv32(body=True); A("  s_setpc_b64 s[42:43]")
        A("L_exit2:")
        if c["stamps"]: A("  s_sleep 100")
        A("L_exit:")
        if c["stamps"] and c["diag"]:
            A(f"  s_sleep 127\n  s_sleep 127\n  s_load_dword s44, {sp(sDBG)}, 0x80\n  s_waitcnt lgkmcnt(0)\n  s_cmp_ge_u32 s{sWAVE}, 8\n  s_cbranch_scc1 L_diagh\n  s_cmp_lg_u32 s{sWAVE}, 7\n  s_cbranch_scc1 L_end")
            def rec(k, slot):
                l = self.lab("dg")
                A(f"  s_cmp_eq_u32 s{70+2*k}, 0\n  s_cbranch_scc1 {l}\n  s_sub_u32 s60, s{70+2*k}, s44\n  s_add_u32 s60, s60, 1000\n  s_atomic_umax s60, {sp(sDBG)}, {4*slot:#x}\n{l}:")
            for k, slot in ((0, 4), (11, 5), (1, 6), (3, 7), (5, 8), (7, 9)): rec(k, slot)
            A("  s_endpgm\nL_diagh:")
            A(f"  s_cmp_lg_u32 s{sWAVE}, 8\n  s_cbranch_scc1 L_end")
            for k, slot in ((6, 10), (7, 11), (2, 12), (3, 13), (4, 14), (5, 15)): rec(k, slot)
        elif c["stamps"]:
            A("  s_mov_b64 exec, 1\n  s_waitcnt lgkmcnt(0)")
            A(f"  s_mul_i32 s60, s2, 12\n  s_add_u32 s60, s60, s{sWAVE}\n  s_lshl_b32 s60, s60, 7\n  s_add_u32 s60, s60, {WS_STAMP}\n  v_mov_b32 v4, s60")
            for k in range(16):
                A(f"  v_mov_b32 v6, s{70+2*k}\n  v_mov_b32 v7, s{71+2*k}\n  global_store_dwordx2 v4, v[6:7], {sp(sWS)} offset:{8*k}")
        A("L_end:\n  s_endpgm")
        body = fix_hazards(self.L)
        nk = c["prefkib"]
        out = HEADER + f"; @launch grid=(256,1,1) block=(768,1,1) lds={L_V + 8192*c['NV']}\n"
        out += '.amdgcn_target "amdgcn-amd-amdhsa--gfx950"\n.text\n'
        out += f".globl {KNAME}\n.p2align 8\n.type {KNAME},@function\n" + body
        out += "  .fill 64, 4, 0xbf800000\n"
        if c["spref"]: nk += 1
        if c["pref"] or c["pref2"] or c["spref"]:
            out += f"L_codeend:\n.if (L_codeend - {KNAME}) < {nk*1024}\n.fill ({nk*1024} - (L_codeend - {KNAME}))/4, 4, 0xbf800000\n.endif\n"
        out += f""".section .rodata,"a"
.p2align 6
.amdhsa_kernel {KNAME}
  .amdhsa_next_free_vgpr 168
  .amdhsa_next_free_sgpr 102
  .amdhsa_accum_offset 168
  .amdhsa_group_segment_fixed_size 0
  .amdhsa_kernarg_size 112
  .amdhsa_user_sgpr_count 2
  .amdhsa_user_sgpr_kernarg_segment_ptr 1
  .amdhsa_system_sgpr_workgroup_id_x 1
  .amdhsa_float_denorm_mode_32 3
.end_amdhsa_kernel
"""
        return out

def gen(**cfg): return Gen(**cfg).build()

if __name__ == "__main__":
    import json
    cfg = json.loads(sys.argv[2]) if len(sys.argv) > 2 else {}
    open(sys.argv[1], "w").write(gen(**cfg))
```

```python
import sys, struct
from asmlib import fix_hazards

KNAME = "adaLN_cond__sliding_block_cached__glu_gated_glu__decode_kernel"

HEADER = """; Kernarg layout for this problem (112 bytes, ptrs only, base s[0:1]):
;   offset  32: d_in[4] A_wo  shape=(4096, 512) dtype=bfloat16
;   offset  80: d_in[10] w_mod  shape=(512, 3072) dtype=bfloat16
;   offset 104: d_ws      workspace
; One persistent launch, one workgroup per (batch b, head h), 12 waves:
;  * waves 8-11 (helpers) hold the wq / wo slice of the head in registers: LayerNorm + adaLN modulation, q projection,
;  Every bf16 rounding of the reference is reproduced. Hand-offs between workgroups go through d_ws and are validated
;  with a per-launch nonce published in d_debug (checksums / tagged granules), so stale workspace contents are never used.
;  The s_sleep instructions are back-offs of the spin-waits (polling too early slows the writers down).
"""

WS_MOD, WS_STAT, WS_MARK, WS_ACC, WS_QTAG, WS_HINT, WS_INBOX, WS_QIN, WS_DUMP, WS_STAMP = 0x0, 0xC000, 0xD000, 0x10000, 0x18000, 0x20000, 0x40000, 0x1C0000, 0x200000, 0x20000000
F_H, F_Q, F_Q2, F_ST, F_O, F_MOD, F_MOD2, F_C, F_P, F_W, F_K, F_A, F_R, F_N, F_HS, F_RK = 0, 4, 8, 12, 16, 20, 24, 28, 32, 36, 40, 44, 48, 52, 56, 0x80
L_STATS, L_QB, L_OP, L_OB, L_HBUF, L_QP = 0x40, 0x100, 0x200, 0x1200, 0x1600, 0x2600
L_MODR, L_H2, L_X1, L_GUP, L_HH, L_MODP = 0x2200, 0x4A00, 0x5200, 0x5A00, 0x6A00, 0x7000
L_V = 0x7000
L_ROWS = 0x1600

def f2u(x): return struct.unpack("<I", struct.pack("<f", x))[0]
INB = 11264
TAGX = 0x5bd1e995
LOG2E = f2u(1.4426950408889634)
SCALE = f2u(128 ** -0.5)

sX, sK, sV, sWQ, sWO, sG, sU, sDN, sC, sWM, sOUT, sDBG, sWS = 4, 6, 8, 10, 12, 16, 18, 20, 22, 24, 26, 28, 30
sWAVE, sXCD, sIDX, sB, sJ, sH, sSL, sFFN = 32, 33, 34, 35, 36, 37, 38, 39
sOFF = 40
SRDA, SRDB = 48, 52
sPLO, sPHI, sGUARD, sLOG2E = 62, 63, 64, 66
sHW = 67
vLANE, vL16, vG, vJ, vZ, vONE = 0, 1, 2, 3, 38, 39

def sp(r): return f"s[{r}:{r+1}]"
def sq(r): return f"s[{r}:{r+3}]"
def vp(r): return f"v[{r}:{r+1}]"
def vq(r): return f"v[{r}:{r+3}]"

class Gen:
    def __init__(self, **cfg):
        self.c = dict(D=4, HD=4, HD0=6, HDO=4, P0=24, stamps=False, dump=False, guard=200000, pref=False,
                      inbox_sleep=6, hint_sleep=2, Dodd=None, pref2=False, prefwg=16, prefkib=26, hint_at=28, poll_sleep=8, NV=16, depth=[3.15, 3.15, 4, 3.15], FD=4, NF0=0, HDOf=4, H0D=4, H0D1=2, prio=2, nowo=False, wo_at=None, abl=None, init_mode='full', ablD=7, H0DQ=18, H0pre=True, fillD=4, nofill=False, q_sleep0=8, q_sleep=8, a_sleep=16, xskip=[], plainA=True, down_late=False, wofl='', tlb=0, modlag=2, HDf=4, ffnfl='', HDP=2, HDPf=2, PQ=23, kfl=' nt', vfl=' nt', hmap=0, wqpat=32, full_sleep=0, hint_lag=3, PB=2, fmode='flood', PR=8, wqpf=3, wqpfD=16, wqfl='', wqx=0, sprint=58, prodb=2, o_sleep=1, depth2=[3.15, 3.15, 4, 3.6], dsw=34, gran=4, outfl=' sc1', hprio=2, sprio=1, sprio_off=31, dry=True, prefidx=13, diag=False, early=True, xdelay=0, modsl=True, rank=[24, 38], rankd=[2.7, 2.95, 3.2, 3.6], PBQ=12, wopf=None, wopfw=2, pffl='', wmfl=' nt', hop=False, modil=False, spref=0, wopat=8, rxfl=' sc1', accfl=' sc1', txfl=' sc1', late_delay=10, sub=False, dryo=False, gate=False, oadd=False, fast0=True, read_delay=18, barD=False, rx_sleep=8, rx_delay=14)
        self.c.update(cfg)
        self.L = []
        self.nlab = 0

    def A(self, s): self.L.append(s)
    def lab(self, base):
        self.nlab += 1
        return f"L_{base}_{self.nlab}"
    def stamp(self, k):
        if self.c["stamps"]: self.A(f"  s_memrealtime s[{70+2*k}:{71+2*k}]")
    def cstamp(self, k):
        if self.c["stamps"]:
            self.A(f"  s_waitcnt lgkmcnt(0)\n  s_mul_i32 s{70+2*k}, s{sGUARD}, 100\n  s_add_u32 s{70+2*k}, s{70+2*k}, s70\n  s_addc_u32 s{71+2*k}, s71, 0")
    def guard(self):
        if self.c["guard"]:
            self.A(f"  s_add_u32 s{sGUARD}, s{sGUARD}, 1\n  s_cmp_gt_u32 s{sGUARD}, {self.c['guard']}\n  s_cbranch_scc1 L_exit")
    def exec1(self): self.A("  s_mov_b64 exec, 1")
    def execall(self): self.A("  s_mov_b64 exec, -1")

    def lds_spin(self, off, target, tmp, sleep=1):
        l = self.lab("spin"); d = self.lab("spun")
        self.A(f"{l}:")
        self.A(f"  ds_read_b32 v{tmp}, v{vZ} offset:{off}\n  s_waitcnt lgkmcnt(0)\n  v_readfirstlane_b32 s60, v{tmp}")
        self.A(f"  s_cmp_ge_u32 s60, {target}\n  s_cbranch_scc1 {d}")
        self.guard()
        if sleep: self.A(f"  s_sleep {sleep}")
        self.A(f"  s_branch {l}\n{d}:")

    def lds_inc(self, off):
        self.exec1(); self.A(f"  ds_add_u32 v{vZ}, v{vONE} offset:{off}"); self.execall()

    def dumpv(self, reg, n, base, sidx=None, stride=0, tmp=36):
        if not self.c["dump"]: return
        A = self.A
        if sidx is not None:
            A(f"  s_mul_i32 s68, s{sidx}, {stride}\n  s_add_u32 s68, s68, {WS_DUMP + base}")
        else:
            A(f"  s_mov_b32 s68, {WS_DUMP + base}")
        A(f"  v_lshlrev_b32 v{tmp}, {dict([(1,2),(2,3),(4,4)])[n]}, v{vLANE}\n  v_add_u32 v{tmp}, s68, v{tmp}")
        op = {1: "dword", 2: "dwordx2", 4: "dwordx4"}[n]
        r = f"v{reg}" if n == 1 else f"v[{reg}:{reg+n-1}]"
        A(f"  global_store_{op} v{tmp}, {r}, {sp(sWS)}\n  s_waitcnt vmcnt(0)")

    def prefetch(self, wait=False):
        A = self.A
        l = self.lab("nopref"); lp = self.lab("pref"); pc = self.lab("pc")
        A(f"  s_cmp_lg_u32 s{sWAVE}, 11\n  s_cbranch_scc1 {l}\n  s_cmp_lg_u32 s{sIDX}, {self.c['prefidx']}\n  s_cbranch_scc1 {l}")
        A(f"  s_getpc_b64 s[60:61]\n{pc}:\n  s_sub_u32 s60, s60, {pc}-{KNAME}\n  s_subb_u32 s61, s61, 0\n  v_mov_b32 v36, v{vL16}\n  s_mov_b32 s65, {self.c['prefkib']}")
        A(f"{lp}:\n  global_load_dword v35, v36, s[60:61]\n  v_add_u32 v36, 1024, v36\n  s_sub_u32 s65, s65, 1\n  s_cmp_lg_u32 s65, 0\n  s_cbranch_scc1 {lp}")
        if wait: A("  s_waitcnt vmcnt(0)")
        A(f"{l}:")

    def rnd1(self, x, t):
        self.A(f"  v_cvt_pk_bf16_f32 v{t}, v{x}, v{x}\n  v_and_b32 v{x}, 0xffff0000, v{t}")
    def rnd2(self, x, y, t):
        self.A(f"  v_cvt_pk_bf16_f32 v{t}, v{x}, v{y}\n  v_lshlrev_b32 v{x}, 16, v{t}\n  v_and_b32 v{y}, 0xffff0000, v{t}")
    def rnd8(self, X, T):
        for i in range(4): self.A(f"  v_cvt_pk_bf16_f32 v{T+i}, v{X+2*i}, v{X+2*i+1}")
        self.unpack8(T, X)
    def unpack8(self, src, dst):
        for i in range(4):
            self.A(f"  v_lshlrev_b32 v{dst+2*i}, 16, v{src+i}\n  v_and_b32 v{dst+2*i+1}, 0xffff0000, v{src+i}")
    def wave_reduce(self, op, regs, full=True):
        steps = []
        if full: steps += ["quad_perm:[1,0,3,2] row_mask:0xf bank_mask:0xf", "quad_perm:[2,3,0,1] row_mask:0xf bank_mask:0xf"]
        steps += ["row_ror:4 row_mask:0xf bank_mask:0xf", "row_ror:8 row_mask:0xf bank_mask:0xf",
                  "row_bcast:15 row_mask:0xa bank_mask:0xf", "row_bcast:31 row_mask:0xc bank_mask:0xf"]
        for s in steps:
            for r in regs: self.A(f"  {op}_dpp v{r}, v{r}, v{r} {s}")

    def pk8(self, op, D, Aq, Bq):
        for i in range(0, 8, 2): self.A(f"  v_pk_{op}_f32 {vp(D+i)}, {vp(Aq+i)}, {vp(Bq+i)}")

    def layernorm(self, X, T, S):
        A = self.A
        A(f"  v_readfirstlane_b32 s60, v{X}")
        for i in range(0, 8, 2): A(f"  v_pk_add_f32 {vp(T+i)}, {vp(X+i)}, s[60:61] op_sel_hi:[1,0] neg_lo:[0,1] neg_hi:[0,1]")
        A(f"  v_pk_add_f32 {vp(S)}, {vp(T)}, {vp(T+2)}\n  v_pk_mul_f32 {vp(S+2)}, {vp(T)}, {vp(T)}")
        A(f"  v_pk_add_f32 {vp(S)}, {vp(S)}, {vp(T+4)}\n  v_pk_fma_f32 {vp(S+2)}, {vp(T+2)}, {vp(T+2)}, {vp(S+2)}")
        A(f"  v_pk_add_f32 {vp(S)}, {vp(S)}, {vp(T+6)}\n  v_pk_fma_f32 {vp(S+2)}, {vp(T+4)}, {vp(T+4)}, {vp(S+2)}")
        A(f"  v_add_f32 v{S}, v{S}, v{S+1}\n  v_pk_fma_f32 {vp(S+2)}, {vp(T+6)}, {vp(T+6)}, {vp(S+2)}\n  v_add_f32 v{S+1}, v{S+2}, v{S+3}")
        self.wave_reduce("v_add_f32", [S, S + 1])
        A(f"  v_readlane_b32 s61, v{S}, 63\n  v_readlane_b32 s65, v{S+1}, 63")
        inv = f2u(1.0 / 512)
        A(f"  v_mov_b32 v{S+2}, {inv:#x}")
        A(f"  v_mul_f32 v{S}, s61, v{S+2}\n  v_mul_f32 v{S+1}, s65, v{S+2}")
        A(f"  v_fma_f32 v{S+1}, -v{S}, v{S}, v{S+1}\n  v_add_f32 v{S}, s60, v{S}\n  v_max_f32 v{S+1}, 0, v{S+1}")
        self.rnd2(S, S + 1, S + 2)
        A(f"  v_add_f32 v{S+1}, {f2u(1e-5):#x}, v{S+1}")
        for i in range(0, 4, 2): A(f"  v_pk_add_f32 {vp(X+i)}, {vp(X+i)}, {vp(S)} op_sel_hi:[1,0] neg_lo:[0,1] neg_hi:[0,1]")
        A(f"  v_cvt_pk_bf16_f32 v{S+2}, v{S+1}, v{S+1}")
        for i in range(4, 8, 2): A(f"  v_pk_add_f32 {vp(X+i)}, {vp(X+i)}, {vp(S)} op_sel_hi:[1,0] neg_lo:[0,1] neg_hi:[0,1]")
        A(f"  v_and_b32 v{S+1}, 0xffff0000, v{S+2}\n  v_sqrt_f32 v{S+1}, v{S+1}")
        for i in range(4): A(f"  v_cvt_pk_bf16_f32 v{T+i}, v{X+2*i}, v{X+2*i+1}")
        self.rnd1(S + 1, S + 2)
        A(f"  v_rcp_f32 v{S+2}, v{S+1}")
        self.unpack8(T, X)
        A(f"  v_fma_f32 v{S+3}, -v{S+1}, v{S+2}, 1.0\n  v_fmac_f32 v{S+2}, v{S+3}, v{S+2}")
        for i in range(0, 8, 2): A(f"  v_pk_mul_f32 {vp(T+i)}, {vp(X+i)}, {vp(S+2)} op_sel_hi:[1,0]")
        for i in range(0, 8, 2): A(f"  v_pk_fma_f32 {vp(X+i)}, {vp(T+i)}, {vp(S)}, {vp(X+i)} op_sel:[0,1,0] op_sel_hi:[1,1,1] neg_lo:[1,0,0] neg_hi:[1,0,0]")
        for i in range(0, 8, 2): A(f"  v_pk_fma_f32 {vp(X+i)}, {vp(X+i)}, {vp(S+2)}, {vp(T+i)} op_sel_hi:[1,0,1]")
        self.rnd8(X, T)

    def transpose_block(self, B, t0, t1):
        A = self.A
        R = lambda e, t: B + 4 * e + t
        lo = lambda d, a, b: A(f"  v_perm_b32 v{d}, v{b}, v{a}, s{sPLO}")
        hi = lambda d, a, b: A(f"  v_perm_b32 v{d}, v{b}, v{a}, s{sPHI}")
        for p in range(4):
            a, b = R(2 * p, p), R(2 * p + 1, p)
            lo(t0, a, b); hi(b, a, b); A(f"  v_mov_b32 v{a}, v{t0}")
            for t in range(p + 1, 4):
                a, b, c, d = R(2 * p, t), R(2 * p + 1, t), R(2 * t, p), R(2 * t + 1, p)
                lo(t0, a, b); hi(t1, a, b); lo(a, c, d); hi(b, c, d)
                A(f"  v_mov_b32 v{c}, v{t0}\n  v_mov_b32 v{d}, v{t1}")

    def transpose_x2(self, Rb, Bb):
        for c in range(4):
            for p in range(4):
                a, b = Rb + 2 * (2 * p) + (c >> 1), Rb + 2 * (2 * p + 1) + (c >> 1)
                self.A(f"  v_perm_b32 v{Bb+4*c+p}, v{b}, v{a}, s{sPHI if c & 1 else sPLO}")

    def gemv32(self, body=False):
        res = [24] + [40 + 4 * k for k in range(7)]
        if self.c["sub"] and not body:
            pc = self.lab("call")
            self.A(f"  s_getpc_b64 s[60:61]\n{pc}:\n  s_add_u32 s60, s60, L_gemv-{pc}\n  s_addc_u32 s61, s61, 0\n  s_swappc_b64 s[42:43], s[60:61]\n  s_nop 7")
            return res
        for c in range(8):
            for m in range(4):
                self.A(f"  v_mfma_f32_16x16x32_bf16 {vq(res[c])}, {vq(8+4*m)}, {vq(40+32*m+4*c)}, {'0' if m == 0 else vq(res[c])}")
        return res

    def wload32(self, srd, steps, D, frac=None, hooks=None, fl=None):
        A = self.A
        done = 0
        for i in range(32):
            dd = D
            if frac is not None and int((i + 1) * (D - frac)) != int(i * (D - frac)): dd = D - 1
            if i >= dd: A(f"  s_waitcnt vmcnt({dd-1})")
            if hooks and i in hooks: hooks[i]()
            A(f"  buffer_load_dwordx4 {vq(40+4*i)}, v4, {sq(srd)}, s40 offen{self.c['wofl'] if fl is None else fl}")
            if i < 31: A(f"  s_add_u32 s40, s40, {steps[i]}")
            landed = i - D + 1 if i >= D else 0
            if landed >= 8 * (done + 1):
                self.transpose_block(40 + 32 * done, 5, 6); done += 1
        while done < 4:
            A(f"  s_waitcnt vmcnt({8*(3-done)})")
            self.transpose_block(40 + 32 * done, 5, 6); done += 1

    def init_duty(self, wave):
        A = self.A
        l2 = self.lab("inited"); l3 = self.lab("noinit")
        A(f"  s_cmp_lg_u32 s{sWAVE}, {wave}\n  s_cbranch_scc1 {l3}")
        mark = len(self.L)
        A("  v_mov_b32 v8, -1\n  v_mov_b32 v9, -1\n  v_mov_b32 v10, -1\n  v_mov_b32 v11, -1")
        A(f"  s_lshl_b32 s60, s2, 12\n  s_add_u32 s60, s60, {WS_QIN}\n  v_add_u32 v5, s60, v{vL16}")
        for i in range(4): A(f"  global_store_dwordx4 v5, {vq(8)}, {sp(sWS)} offset:{1024*i} sc1")
        A(f"  s_cmp_eq_u32 s{sFFN}, 0\n  s_cbranch_scc1 {l2}\n  s_cmp_ge_u32 s{sSL}, 32\n  s_cbranch_scc1 {l2}")
        A(f"  s_lshl_b32 s60, s{sJ}, 5\n  s_add_u32 s60, s60, s{sSL}\n  s_mul_i32 s60, s60, 6144\n  s_add_u32 s60, s60, {WS_INBOX + 2048}\n  v_add_u32 v5, s60, v{vL16}")
        for i in range(6): A(f"  global_store_dwordx4 v5, {vq(8)}, {sp(sWS)} offset:{1024*i - 2048} sc1")
        A(f"  s_cmp_ge_u32 s{sSL}, 8\n  s_cbranch_scc1 {l2}")
        A("  v_mov_b32 v12, 0\n  v_mov_b32 v13, 0\n  v_mov_b32 v14, 0\n  v_mov_b32 v15, 0")
        A(f"  s_lshl_b32 s60, s{sJ}, 3\n  s_add_u32 s60, s60, s{sSL}\n  s_lshl_b32 s60, s60, 10\n  s_add_u32 s60, s60, {WS_ACC}\n  v_add_u32 v5, s60, v{vL16}")
        A(f"  global_store_dwordx4 v5, {vq(12)}, {sp(sWS)} sc1")
        if self.c["init_mode"] == "nostore": self.L[mark:] = []
        A(f"{l2}:\n  s_waitcnt vmcnt(0)")
        if self.c["init_mode"] != "noticket":
            A(f"  s_mov_b32 s65, 1\n  s_atomic_add s65, {sp(sDBG)}, 0x4 glc\n  s_waitcnt lgkmcnt(0)")
            A(f"  s_cmp_lg_u32 s65, 255\n  s_cbranch_scc1 {l3}\n  s_mov_b32 s65, 1\n  s_atomic_add s65, {sp(sDBG)}, 0x84")
        A(f"{l3}:")

    def streamer(self, D, tag):
        A = self.A; c = self.c
        T = lambda n: 40 + 4 * n
        issued = []
        def issue(name, srd, n):
            A(f"  buffer_load_dwordx4 {vq(T(n))}, v{vL16}, {sq(srd)}, s{sOFF + (n >> 2)} offen offset:{1024*(n&3)}{c['kfl']}")
            issued.append(name)
        def rmask(d):
            def mk(fr):
                m = 0; acc = 0.5
                for n in range(64):
                    acc += fr
                    if acc >= 1.0 - 1e-9:
                        acc -= 1.0
                        if n < c["sprint"]: m |= 1 << n
                return m
            m1 = mk(min(1.0, D - d)); return m1, mk(max(0.0, D - 1 - d)) & m1
        def rank_hook(n):
            for st, n0 in enumerate(c["rank"]):
                if n == n0:
                    l = self.lab("rk")
                    A(f"  s_cmp_lg_u32 s{sWAVE}, 0\n  s_cbranch_scc1 {l}\n  ds_read_b32 v12, v{vZ} offset:{F_C}\n  s_mov_b32 s4, -1\n  s_waitcnt lgkmcnt(0)\n  v_readfirstlane_b32 s60, v12\n  s_cmp_eq_u32 s60, 0\n  s_cbranch_scc1 {l}\n  s_cmp_lt_u32 s57, 100\n  s_cbranch_scc1 {l}")
                    A(f"  s_lshl_b32 s60, s{sB}, 12\n  s_add_u32 s60, s60, {WS_ACC + 3328 + 128 * st}\n  s_mov_b32 s4, 1\n  s_atomic_add s4, {sp(sWS)}, s60 glc\n{l}:")
                if n == n0 + 3:
                    l = self.lab("rk")
                    A(f"  s_cmp_lg_u32 s{sWAVE}, 0\n  s_cbranch_scc1 {l}\n  s_waitcnt lgkmcnt(0)\n  s_add_u32 s4, s4, 1\n  v_mov_b32 v12, s4\n  ds_write_b32 v{vZ}, v12 offset:{F_RK + 4 * st}\n{l}:")
                if n == n0 + 4: A(f"  ds_read_b32 v13, v{vZ} offset:{F_RK + 4 * st}")
                if n == n0 + 5:
                    l = self.lab("rk")
                    A(f"  s_waitcnt lgkmcnt(0)\n  v_readfirstlane_b32 s60, v13\n  s_cmp_eq_u32 s60, 0\n  s_cbranch_scc1 {l}")
                    nq = len(c["rankd"])
                    for qi, d in enumerate(c["rankd"]):
                        m1, m2 = rmask(d)
                        if qi == 0:
                            A(f"  s_mov_b32 s58, {m1 & 0xffffffff:#x}\n  s_mov_b32 s59, {m1 >> 32:#x}\n  s_mov_b32 s14, {m2 & 0xffffffff:#x}\n  s_mov_b32 s15, {m2 >> 32:#x}")
                        else:
                            A(f"  s_cmp_gt_u32 s60, {24 * qi // nq}\n  s_cselect_b32 s58, {m1 & 0xffffffff:#x}, s58\n  s_cselect_b32 s59, {m1 >> 32:#x}, s59\n  s_cselect_b32 s14, {m2 & 0xffffffff:#x}, s14\n  s_cselect_b32 s15, {m2 >> 32:#x}, s15")
                    A(f"{l}:")
        def pace():
            n = len(issued)
            rank_hook(n)
            if n >= D: A(f"  s_waitcnt vmcnt({D-1})")
            if n >= D - 2 and n < 64:
                l = self.lab("pc")
                A(f"  s_bitcmp1_b64 s[58:59], {n}\n  s_cbranch_scc0 {l}\n  s_waitcnt vmcnt({D-2})")
                A(f"  s_bitcmp1_b64 s[14:15], {n}\n  s_cbranch_scc0 {l}\n  s_waitcnt vmcnt({D-3})\n{l}:")
        def waitfor(name):
            A(f"  s_waitcnt vmcnt({len(issued) - 1 - issued.index(name)})")
        lnp = self.lab("noprod"); lj = self.lab("joined")
        E = 2 if c["fast0"] else 0
        NJ = (E + 8 + D - 1 if c["modil"] else (E + D if c["modsl"] else D)) + c["modlag"]
        assert NJ <= 16
        A(f"  s_cmp_ge_u32 s57, {48 if (c['abl'] is None or 'mod' in c['abl']) else 0}\n  s_cbranch_scc1 {lnp}")
        self.mod_loads()
        if c["modil"]:
            self.mod_w(0)
            A("  s_barrier")
            for i in range(8):
                if i:
                    A(f"  s_waitcnt vmcnt({D-1})"); self.mod_w(i)
                A(f"  s_waitcnt vmcnt({D-1})"); issue(f"K{E+i}", SRDA, E + i)
                if i == 2:
                    self.mod_compute_a(); A(f"  s_load_dword s3, {sp(sDBG)}, 0x80")
            for n in range(E + 8, E + 8 + D - 1):
                A(f"  s_waitcnt vmcnt({D-1})"); issue(f"K{n}", SRDA, n)
            self.stamp(9)
            self.mod_compute_b()
            for n in range(E + 8 + D - 1, NJ):
                A(f"  s_waitcnt vmcnt({D-1})"); issue(f"K{n}", SRDA, n)
        elif c["modsl"]:
            A("  s_barrier")
            self.mod_compute_a()
            A(f"  s_load_dword s3, {sp(sDBG)}, 0x80")
            for n in range(E, E + D):
                A(f"  s_waitcnt vmcnt({D-1})"); issue(f"K{n}", SRDA, n)
            self.stamp(9)
            self.mod_compute_b()
            for n in range(E + D, NJ):
                A(f"  s_waitcnt vmcnt({D-1})"); issue(f"K{n}", SRDA, n)
        else:
            A("  s_barrier")
            self.mod_compute_a()
            A(f"  s_waitcnt vmcnt({c['prio']})")
            for n in range(E, D - 1): issue(f"K{n}", SRDA, n)
            A(f"  s_load_dword s3, {sp(sDBG)}, 0x80")
            A(f"  s_waitcnt vmcnt({D-1-E})")
            self.stamp(9)
            self.mod_compute_b()
            for n in range(D - 1, NJ):
                A(f"  s_waitcnt vmcnt({D-1})"); issue(f"K{n}", SRDA, n)
        self.mod_compute_c()
        self.stamp(14)
        if c["wo_at"] is not None and c["wo_at"] < NJ: self.lds_inc(F_K)
        A(f"  s_branch {lj}\n{lnp}:")
        issued.clear()
        for n in range(32):
            if n == NJ: A(f"{lj}:")
            if n < E: issued.append(f"K{n}")
            else: pace(); issue(f"K{n}", SRDA, n)
            if n == 0 and not E: self.stamp(8)
            if n in (4, 8, 16, 24): self.stamp({4: 10, 8: 11, 16: 12, 24: 13}[n])
            if n == c["wo_at"]: self.lds_inc(F_K)
            if c["sprio"] and n == c["sprio_off"]: A("  s_setprio 0")
            if n == D - 3:
                A("  s_barrier")
                self.stamp(9)
            if n == NJ:
                A(f"  v_lshrrev_b32 v12, 1, v{vJ}\n  v_and_b32 v13, 1, v{vJ}\n  v_mov_b32 v14, 0xffff\n  v_lshlrev_b32 v13, 4, v13\n  v_lshlrev_b32 v14, v13, v14")
                for j in range(4):
                    A(f"  v_cmp_eq_u32 vcc, {j}, v12\n  v_cndmask_b32 v{4+j}, 0, v14, vcc")
        NV = c["NV"]
        slot = lambda n: T(32 - NV + n) if n < NV else T(n - NV)
        l = self.lab("nomodchk")
        A(f"  s_cmp_ge_u32 s57, {48 if (c['abl'] is None or 'mod' in c['abl']) else 0}\n  s_cbranch_scc1 {l}")
        self.lds_spin(F_MOD2, 8, 12)
        A(f"{l}:")
        for n in range(NV):
            if n % 4 == 0: A(f"  s_add_u32 m0, s56, {4096 * (n // 4)}")
            pace()
            A(f"  buffer_load_dwordx4 v{vL16}, {sq(SRDB)}, s{sOFF + (n >> 2)} offen offset:{1024*(n&3)}{c['vfl']} lds")
            issued.append(f"V{n}")
        self.stamp(1)
        self.lds_spin(F_Q2, 1, 12)
        self.stamp(2)
        A(f"  v_lshlrev_b32 v12, 4, v{vJ}\n  ds_read_b128 {vq(8)}, v12 offset:{L_QB}\n  s_waitcnt lgkmcnt(0)")
        def qk(G):
            z = 18 + G
            for r in range(4):
                for t in range(4):
                    A(f"  v_dot2_f32_bf16 v{12+t}, v{T(4*G+t)+r}, v{8+r}, {'0' if r == 0 else f'v{12+t}'}")
            A(f"  v_add_f32_dpp v16, v12, v12 row_ror:8 row_mask:0xf bank_mask:0x3")
            A(f"  v_add_f32_dpp v17, v14, v14 row_ror:8 row_mask:0xf bank_mask:0x3")
            A(f"  v_add_f32_dpp v16, v13, v13 row_ror:8 row_mask:0xf bank_mask:0xc")
            A(f"  v_add_f32_dpp v17, v15, v15 row_ror:8 row_mask:0xf bank_mask:0xc")
            A(f"  v_add_f32_dpp v{z}, v16, v16 row_shl:4 row_mask:0xf bank_mask:0x5")
            A(f"  v_add_f32_dpp v{z}, v17, v17 row_shr:4 row_mask:0xf bank_mask:0xa")
            A(f"  v_add_f32_dpp v{z}, v{z}, v{z} quad_perm:[1,0,3,2] row_mask:0xf bank_mask:0xf")
            A(f"  v_add_f32_dpp v{z}, v{z}, v{z} quad_perm:[2,3,0,1] row_mask:0xf bank_mask:0xf")
        nv = NV
        def nextv():
            nonlocal nv
            pace()
            A(f"  buffer_load_dwordx4 {vq(slot(nv))}, v{vL16}, {sq(SRDB)}, s{sOFF + (nv >> 2)} offen offset:{1024*(nv&3)}{c['vfl']}")
            issued.append(f"V{nv}"); nv += 1
        qk(0)
        groups = list(range(1, 7))
        per = -(-len(groups) // D)
        for i in range(D):
            nextv()
            for G in groups[i * per:(i + 1) * per]: qk(G)
        qk(7)
        if NV:
            A(f"  v_add_u32 v34, s56, v{vL16}")
            for n in range(NV): A(f"  ds_read_b128 {vq(slot(n))}, v34 offset:{1024*n}")
        A(f"  s_mov_b32 s60, {SCALE:#x}")
        for i in range(4): self.rnd2(18 + 2 * i, 19 + 2 * i, 12 + i)
        for i in range(8): A(f"  v_mul_f32 v{18+i}, s60, v{18+i}")
        for i in range(4): self.rnd2(18 + 2 * i, 19 + 2 * i, 12 + i)
        A("  v_max3_f32 v12, v18, v19, v20\n  v_max3_f32 v13, v21, v22, v23\n  v_max3_f32 v12, v12, v24, v25\n  v_max_f32 v12, v12, v13")
        self.wave_reduce("v_max_f32", [12], full=False)
        A("  v_readlane_b32 s61, v12, 63")
        for i in range(8): A(f"  v_subrev_f32 v{26+i}, s61, v{18+i}")
        for i in range(8): A(f"  v_mul_f32 v{26+i}, s{sLOG2E}, v{26+i}")
        for i in range(8): A(f"  v_exp_f32 v{26+i}, v{26+i}")
        A("  v_add_f32 v13, v26, v27\n  v_add_f32 v14, v28, v29\n  v_add_f32 v15, v30, v31\n  v_add_f32 v16, v32, v33")
        A("  v_add_f32 v13, v13, v14\n  v_add_f32 v15, v15, v16\n  v_add_f32 v13, v13, v15")
        self.wave_reduce("v_add_f32", [13], full=False)
        A(f"  s_lshl_b32 s60, s{sWAVE}, 3\n  v_mov_b32 v14, s60")
        A("  s_mov_b32 exec_lo, 0\n  s_mov_b32 exec_hi, 0x80000000")
        A(f"  ds_write_b64 v14, v[12:13] offset:{L_STATS}\n  ds_add_u32 v{vZ}, v{vONE} offset:{F_ST}")
        self.execall()
        nextv(); nextv()
        self.lds_spin(F_ST, 8, 12)
        A(f"  v_and_b32 v14, 7, v{vLANE}\n  v_lshlrev_b32 v14, 3, v14\n  ds_read_b64 v[12:13], v14 offset:{L_STATS}\n  s_waitcnt lgkmcnt(0)")
        red8 = ["quad_perm:[1,0,3,2]", "quad_perm:[2,3,0,1]", "row_ror:4"]
        A("  v_mov_b32 v14, v12")
        for s in red8: A(f"  v_max_f32_dpp v14, v14, v14 {s} row_mask:0xf bank_mask:0xf")
        A(f"  v_sub_f32 v12, v12, v14\n  v_mul_f32 v12, s{sLOG2E}, v12\n  v_exp_f32 v12, v12")
        for i in range(8): A(f"  v_sub_f32 v{26+i}, v{18+i}, v14")
        A("  v_mul_f32 v13, v13, v12")
        for i in range(8): A(f"  v_mul_f32 v{26+i}, s{sLOG2E}, v{26+i}")
        for s in red8: A(f"  v_add_f32_dpp v13, v13, v13 {s} row_mask:0xf bank_mask:0xf")
        for i in range(8): A(f"  v_exp_f32 v{26+i}, v{26+i}")
        A("  v_rcp_f32 v15, v13\n  v_fma_f32 v16, -v13, v15, 1.0\n  v_fmac_f32 v15, v16, v15")
        if c["dump"]:
            for i in range(8):
                A(f"  s_lshl_b32 s69, s2, 3\n  s_add_u32 s69, s69, s{sWAVE}\n  s_lshl_b32 s69, s69, 3\n  s_add_u32 s69, s69, {i}")
                self.dumpv(18 + i, 1, 0x100000, 69, 256, tmp=36)
        for i in range(8): A(f"  v_mul_f32 v{26+i}, v{26+i}, v15")
        for i in range(8): A(f"  v_cvt_pk_bf16_f32 v{18+i}, v{26+i}, v{26+i}")
        self.stamp(3)
        npv = 0
        def pv():
            nonlocal npv
            n = npv; npv += 1
            Ab = 26 + 4 * (n & 1)
            bank = [0, 2, 1, 3][n & 3]
            for j in range(4):
                A(f"  v_and_b32_dpp v{Ab+j}, v{18+(n>>2)}, v{4+j} row_newbcast:{4*bank} row_mask:0xf bank_mask:0xf")
            A(f"  v_mfma_f32_16x16x32_bf16 {vq(34)}, {vq(Ab)}, {vq(slot(n))}, {'0' if n == 0 else vq(34)}")
            if n == c["hint_at"] and "HT" not in c["xskip"]:
                l = self.lab("ht")
                self.exec1()
                A(f"  ds_add_rtn_u32 v12, v{vZ}, v{vONE} offset:{F_P}\n  s_mov_b32 s5, 0\n  s_waitcnt lgkmcnt(0)\n  v_readfirstlane_b32 s60, v12")
                self.execall()
                A(f"  s_cmp_lg_u32 s60, 7\n  s_cbranch_scc1 {l}")
                if "HS" in c["xskip"]:
                    A(f"  s_lshl_b32 s60, s{sB}, 12\n  s_lshl_b32 s61, s{sH}, 2\n  s_add_u32 s60, s60, s61\n  s_add_u32 s60, s60, {WS_ACC + 3328}\n  v_mov_b32 v12, s60")
                    self.exec1(); A(f"  global_store_dword v12, v11, {sp(sWS)} sc1"); self.execall(); A(f"{l}:")
                else:
                    A(f"  s_lshl_b32 s60, s{sB}, 12\n  s_add_u32 s60, s60, {WS_ACC + 3072}\n  s_mov_b32 s5, 1\n  s_atomic_add s5, {sp(sWS)}, s60 glc\n{l}:")
            if n == c["hint_at"] + c["hint_lag"] and "HT" not in c["xskip"]:
                l = self.lab("hf")
                A(f"  s_waitcnt lgkmcnt(0)\n  s_cmp_lg_u32 s5, 31\n  s_cbranch_scc1 {l}")
                A(f"  s_mul_i32 s60, s{sB}, {64*128}\n  s_add_u32 s60, s60, {WS_HINT}\n  v_lshl_add_u32 v12, v{vLANE}, 7, s60")
                A(f"  s_mov_b32 exec_hi, 0x7ff\n  global_store_dword v12, v11, {sp(sWS)} sc1"); self.execall()
                A(f"{l}:")
        self.ffn_addr()
        self.lds_spin(F_C, 1, 12)
        A(f"  ds_read_b32 v11, v{vZ} offset:{F_N}")
        def vstep():
            nextv()
            landed = nv - D
            k = 0
            while npv < landed and k < 3:
                pv(); k += 1
        def finish(ffn=False):
            if ffn and c["early"]:
                l = self.lab("eh")
                A(f"  s_cmp_lg_u32 s{sWAVE}, 0\n  s_cbranch_scc1 {l}")
                A(f"  s_lshl_b32 s60, s{sJ}, 7\n  s_add_u32 s60, s60, s{sSL}\n  s_lshl_b32 s60, s60, 7\n  s_add_u32 s60, s60, {WS_HINT}\n  s_add_u32 s61, s60, {64*128}")
                A(f"  s_load_dword s8, {sp(sWS)}, s60 glc\n  s_load_dword s9, {sp(sWS)}, s61 glc\n{l}:")
            while npv < 32:
                waitfor(f"V{npv}"); pv()
            A(f"  v_lshlrev_b32 v12, 5, v{vJ}\n  v_lshl_add_u32 v13, v{vG}, 4, v12\n  s_lshl_b32 s60, s{sWAVE}, 9\n  v_add_u32 v12, s60, v13")
            A("  s_mov_b32 exec_hi, 0")
            if c["oadd"]:
                for r in range(4): A(f"  ds_add_f32 v13, v{34+r} offset:{L_OP + 4*r}")
            else:
                A(f"  ds_write_b128 v12, {vq(34)} offset:{L_OP}")
            self.lds_inc(F_O)
            self.stamp(5)
            if ffn and c["early"]:
                l = self.lab("eh2")
                A(f"  s_cmp_lg_u32 s{sWAVE}, 0\n  s_cbranch_scc1 {l}\n  s_waitcnt lgkmcnt(0)\n  v_mov_b32 v12, s8\n  v_mov_b32 v13, s9")
                self.exec1(); A(f"  ds_write_b64 v{vZ}, v[12:13] offset:{F_HS}"); self.execall()
                A(f"{l}:")
        NF0 = c["NF0"]
        while nv < 32 - NF0: vstep()
        assert npv >= NV or NF0 == 0, (npv, NV)
        lf = self.lab("vffn")
        if c["abl"] is None and "T" not in c["xskip"]: A(f"  s_cmp_lg_u32 s{sFFN}, 0\n  s_cbranch_scc1 {lf}")
        st = (nv, npv, list(issued))
        while nv < 32: vstep()
        self.stamp(4)
        finish()
        A("  s_branch L_exit")
        A(f"{lf}:")
        nv, npv = st[0], st[1]; issued[:] = st[2]
        nf = 0
        while nv < 32:
            waitfor(f"V{nv - (D - 1)}")
            A(f"  buffer_load_dwordx4 {vq(slot(nv))}, v{vL16}, {sq(SRDB)}, s{sOFF + (nv >> 2)} offen offset:{1024*(nv&3)}{c['vfl']}")
            issued.append(f"V{nv}"); nv += 1
            self.ffn_load(nf); issued.append(f"F{nf}"); nf += 1
            k = 0
            while npv < nv - D + 1 and k < 3:
                pv(); k += 1
        self.stamp(4)
        finish(True)
        FD = c["FD"]
        if c["fmode"] == "paced":
            while nf < 24:
                if nf >= FD: waitfor(f"F{nf - FD}")
                self.ffn_load(nf); issued.append(f"F{nf}"); nf += 1
                if nf == FD: self.ffn_lds_addr()
                if nf == 8 + FD: self.transpose_x2(120, 40)
                if nf == 16 + FD: self.stamp(15); self.transpose_x2(136, 56)
            return
        while nf < FD:
            self.ffn_load(nf); issued.append(f"F{nf}"); nf += 1
        self.lds_spin(F_A, 4, 12)
        self.stamp(10)
        while nf < 16:
            self.ffn_load(nf); issued.append(f"F{nf}"); nf += 1
        self.ffn_lds_addr()
        if c["stamps"]: waitfor("F15"); self.stamp(15)
        waitfor("F7"); self.transpose_x2(120, 40)
        if c["down_late"]: self.lds_spin(F_R, 2, 12)
        while nf < 24:
            self.ffn_load(nf); issued.append(f"F{nf}"); nf += 1
        waitfor("F15"); self.transpose_x2(136, 56)

    def ffn_addr(self):
        A = self.A
        A(f"  v_cmp_gt_u32 vcc, 8, v{vJ}")
        A(f"  v_mov_b32 v12, s{sU}\n  v_mov_b32 v13, s{sU+1}\n  v_mov_b32 v14, s{sG}\n  v_mov_b32 v15, s{sG+1}")
        A(f"  v_cndmask_b32 v8, v12, v14, vcc\n  v_cndmask_b32 v9, v13, v15, vcc")
        A(f"  s_lshr_b32 s16, s{sJ}, 1\n  s_and_b32 s17, s{sJ}, 1")
        A(f"  s_lshl_b32 s60, s{sWAVE}, 6\n  s_lshl_b32 s61, s16, 5\n  s_add_u32 s60, s60, s61\n  s_lshl_b32 s61, s17, 2\n  s_add_u32 s60, s60, s61")
        A(f"  v_lshl_add_u32 v12, v{vG}, 3, s60\n  v_mul_u32_u24 v12, 2752, v12")
        A(f"  v_and_b32 v13, 7, v{vJ}\n  v_lshl_add_u32 v12, v13, 3, v12\n  s_lshl_b32 s60, s{sSL}, 6\n  v_add_u32 v12, s60, v12\n  v_mov_b32 v13, 0")
        A(f"  v_lshl_add_u64 v[8:9], v[8:9], 0, v[12:13]")
        A(f"  s_mov_b32 s10, 5504\n  s_mov_b32 s11, 0")
        A(f"  s_cmp_eq_u32 s17, 0\n  s_cselect_b32 s60, 4, -4\n  s_cmp_eq_u32 s16, 0\n  s_cselect_b32 s61, 32, -32")
        A(f"  s_sub_i32 s61, s61, s60\n  s_sub_i32 s60, s60, 2\n  s_sub_i32 s61, s61, 2")
        A(f"  s_mul_i32 s12, s60, 2752\n  s_ashr_i32 s13, s12, 31\n  s_mul_i32 s6, s61, 2752\n  s_ashr_i32 s7, s6, 31")
        A(f"  s_mov_b32 s{SRDA}, s{sDN}\n  s_mov_b32 s{SRDA+1}, s{sDN+1}\n  s_mov_b32 s{SRDA+2}, 1409024\n  s_mov_b32 s{SRDA+3}, 0x20000")
        A(f"  v_lshlrev_b32 v10, 13, v{vG}\n  v_lshl_add_u32 v10, v{vJ}, 3, v10")
        A(f"  s_lshl_b32 s18, s{sSL}, 15\n  s_lshl_b32 s19, s{sWAVE}, 7\n  s_add_u32 s18, s18, s19\n  s_add_u32 s19, s18, 4096")

    def ffn_load(self, i):
        A = self.A
        if "W" in self.c["xskip"]:
            A(f"  global_load_dword v17, v{vZ}, {sp(sC)}"); return
        if i < 16:
            A(f"  global_load_dwordx2 {vp(120+2*i)}, v[8:9], off{' offset:2752' if i & 1 else ''}{self.c['ffnfl']}")
            if i & 1 and i < 15:
                step = "s[10:11]" if (i & 3) == 1 else ("s[6:7]" if i == 7 else "s[12:13]")
                A(f"  v_lshl_add_u64 v[8:9], v[8:9], 0, {step}")
        else:
            e = i - 16
            A(f"  buffer_load_dwordx2 {vp(152+2*e)}, v10, {sq(SRDA)}, s{18 + (e >> 2)} offen offset:{1024*(e&3)}{self.c['ffnfl']}")

    def ffn_lds_addr(self):
        A = self.A
        A(f"  v_and_b32 v12, 1, v{vJ}\n  v_lshlrev_b32 v112, 10, v12\n  v_lshl_add_u32 v112, v{vG}, 4, v112\n  s_lshl_b32 s60, s{sWAVE}, 7\n  v_add_u32 v112, s60, v112")
        A(f"  s_lshl_b32 s60, s16, 6\n  s_lshl_b32 s61, s17, 3\n  s_add_u32 s60, s60, s61\n  v_add_u32 v112, s60, v112")
        A(f"  v_xor_b32 v113, 8, v112\n  v_xor_b32 v114, 64, v112\n  v_xor_b32 v115, 0x48, v112")
        A(f"  v_lshlrev_b32 v116, 6, v12\n  v_lshl_add_u32 v116, v{vG}, 4, v116")
        A(f"  v_lshlrev_b32 v117, 5, v{vJ}\n  v_lshl_add_u32 v117, v{vG}, 3, v117\n  s_lshl_b32 s60, s{sWAVE}, 9\n  v_add_u32 v117, s60, v117")
        A(f"  s_lshl_b32 s60, s{sJ}, 5\n  s_lshl_b32 s61, s{sWAVE}, 2\n  s_add_u32 s60, s60, s61\n  v_add_u32 v118, s60, v{vG}\n  v_mul_u32_u24 v118, {INB}, v118")
        A(f"  s_lshl_b32 s60, s{sSL}, 8\n  s_add_u32 s60, s60, {WS_INBOX}\n  v_lshl_add_u32 v12, v{vJ}, 4, s60\n  v_add_u32 v118, v12, v118")

    def streamer_ffn(self):
        A = self.A
        self.stamp(6)
        A("  s_barrier")
        A("L_dry_s:")
        for i in range(4): A(f"  ds_read_b64 {vp(88+2*i)}, v{112+i} offset:{L_H2}")
        A("  s_waitcnt lgkmcnt(2)")
        for cc in range(4): A(f"  v_mfma_f32_16x16x32_bf16 {vq(96+4*cc)}, {vq(88)}, {vq(40+4*cc)}, 0")
        A("  s_waitcnt lgkmcnt(0)")
        for cc in range(4): A(f"  v_mfma_f32_16x16x32_bf16 {vq(96+4*cc)}, {vq(92)}, {vq(56+4*cc)}, {vq(96+4*cc)}")
        def select():
            for g in range(1, 4):
                for r in range(2):
                    A(f"  v_mov_b32_dpp v{96+r}, v{96+4*g+r} quad_perm:[0,1,2,3] row_mask:{1<<g:#x} bank_mask:0xf")
        select()
        A(f"  ds_write_b64 v117, v[96:97] offset:{L_GUP}\n  s_waitcnt lgkmcnt(0)")
        dry = self.c["dry"]
        if dry: A("  s_cbranch_execz L_dry_s2")
        A("  s_barrier")
        A("  s_waitcnt vmcnt(0)"); self.transpose_x2(152, 72)
        A("  s_barrier")
        A("L_dry_s2:")
        A(f"  ds_read_b128 {vq(88)}, v116 offset:{L_HH}\n  s_waitcnt lgkmcnt(0)")
        for cc in range(4): A(f"  v_mfma_f32_16x16x32_bf16 {vq(96+4*cc)}, {vq(88)}, {vq(72+4*cc)}, 0")
        select()
        A(f"  v_mov_b32 v98, v11\n  v_xor_b32 v99, {TAGX:#x}, v11")
        if dry: A("  s_cbranch_execz L_exit")
        A(f"  global_store_dwordx4 v118, {vq(96)}, {sp(sWS)}{self.c['txfl']}")
        self.stamp(7)
        A("  s_branch L_exit2")

    def mod_loads(self):
        A = self.A
        A(f"  v_and_b32 v4, 7, v{vJ}\n  v_lshrrev_b32 v5, 3, v{vJ}\n  v_lshlrev_b32 v6, 10, v4\n  v_lshl_add_u32 v6, v5, 6, v6\n  v_lshl_add_u32 v6, v{vG}, 4, v6")
        A(f"  s_lshl_b32 s60, s{sWAVE}, 7\n  v_add_u32 v6, s60, v6")
        A(f"  global_load_dwordx4 {vq(8)}, v6, {sp(sC)}")
        A(f"  v_lshlrev_b32 v7, 5, v5\n  v_lshl_add_u32 v7, v{vG}, 3, v7\n  v_mul_u32_u24 v7, 6144, v7\n  v_lshl_add_u32 v7, v4, 4, v7")
        A(f"  s_mul_i32 s60, s{sWAVE}, {64*6144}\n  s_lshl_b32 s61, s57, 7\n  s_add_u32 s60, s60, s61\n  v_add_u32 v7, s60, v7")
        if not self.c["modil"]:
            for i in range(8): self.mod_w(i)

    def mod_w(self, i):
        self.A(f"  global_load_dwordx4 {vq(136+4*i)}, v7, {sp(sWM)}{self.c['wmfl']}")
        if i < 7: self.A(f"  v_add_u32 v7, 6144, v7")

    def mod_compute_a(self):
        A = self.A
        A(f"  s_lshl_b32 s60, s{sWAVE}, 12\n  s_add_u32 s60, s60, {L_V}\n  v_lshlrev_b32 v28, 11, v5\n  v_lshl_add_u32 v28, v4, 8, v28\n  v_and_b32 v29, 1, v{vG}\n  v_lshl_add_u32 v28, v29, 4, v28\n  v_add_u32 v28, s60, v28")
        A(f"  v_lshrrev_b32 v29, 1, v{vG}\n  v_cmp_eq_u32 s[68:69], v29, v5")
        if not self.c["modil"]: A("  s_waitcnt vmcnt(8)")
        for i in range(4):
            r = 8 + i
            A(f"  v_lshlrev_b32 v16, 16, v{r}\n  v_and_b32 v17, 0xffff0000, v{r}")
            A(f"  v_mul_f32 v18, s{sLOG2E}, v16\n  v_mul_f32 v19, s{sLOG2E}, v17")
            A(f"  v_exp_f32 v18, -v18\n  v_exp_f32 v19, -v19")
            A(f"  v_add_f32 v18, 1.0, v18\n  v_add_f32 v19, 1.0, v19\n  v_rcp_f32 v18, v18\n  v_rcp_f32 v19, v19")
            A(f"  v_mul_f32 v16, v16, v18\n  v_mul_f32 v17, v17, v19\n  v_cvt_pk_bf16_f32 v{r}, v16, v17")

    def mod_compute_b(self):
        A = self.A
        self.transpose_block(136, 5, 6)
        for cc in range(8):
            A(f"  v_mfma_f32_16x16x32_bf16 {vq(104+4*cc)}, {vq(8)}, {vq(136+4*cc)}, 0")
        A("  s_mov_b64 exec, s[68:69]")
        for cc in range(8):
            A(f"  ds_write_b128 v28, {vq(104+4*cc)} offset:{32*cc}")
        self.lds_inc(F_MOD)

    def mod_compute_c(self):
        A = self.A
        A(f"  v_and_b32 v4, 31, v{vLANE}\n  v_lshrrev_b32 v5, 5, v{vLANE}\n  v_lshlrev_b32 v6, 6, v4\n  v_lshl_add_u32 v6, v5, 14, v6\n  s_lshl_b32 s60, s{sWAVE}, 2\n  s_add_u32 s60, s60, {L_V}\n  v_add_u32 v6, s60, v6")
        A(f"  s_mul_i32 s60, s{sWAVE}, 6144\n  s_lshl_b32 s61, s57, 7\n  s_add_u32 s60, s60, s61\n  s_add_u32 s60, s60, {WS_MOD}\n  v_lshl_add_u32 v5, v4, 2, s60")
        self.lds_spin(F_MOD, 8, 7)
        for part in range(8):
            if part: A(f"  v_add_u32 v6, 2048, v6")
            A(f"  ds_read2_b32 {vp(8+2*part)}, v6 offset0:0 offset1:8")
        l = self.lab("pollSN"); d = self.lab("gotSN")
        A(f"{l}:\n  s_cmp_lg_u32 s3, 0\n  s_cbranch_scc1 {d}")
        self.guard()
        A(f"  s_load_dword s3, {sp(sDBG)}, 0x80 glc\n  s_waitcnt lgkmcnt(0)\n  s_branch {l}\n{d}:")
        A("  s_waitcnt lgkmcnt(0)")
        self.lds_inc(F_MOD2)
        for part in range(1, 8):
            A(f"  v_add_f32 v8, v8, v{8+2*part}\n  v_add_f32 v9, v9, v{9+2*part}")
        A("  v_mov_b32 v10, v8\n  v_mov_b32 v11, v9\n  v_permlane32_swap_b32 v10, v8\n  v_permlane32_swap_b32 v11, v9\n  v_add_f32 v8, v8, v10\n  v_add_f32 v9, v9, v11")
        A(f"  v_cvt_pk_bf16_f32 v8, v8, v9\n  s_mov_b32 exec_hi, 0\n  global_store_dword v5, v8, {sp(sWS)} sc1")
        self.execall()
        A("  v_mov_b32 v9, v8")
        for st in ("quad_perm:[1,0,3,2]", "quad_perm:[2,3,0,1]", "row_ror:4", "row_ror:8"):
            A(f"  v_xor_b32_dpp v9, v9, v9 {st} row_mask:0xf bank_mask:0xf")
        A("  v_mov_b32 v10, v9\n  v_permlane16_swap_b32 v10, v9\n  v_bitop3_b32 v9, v9, v10, s3 bitop3:0x96")
        A(f"  s_lshl_b32 s60, s{sWAVE}, 8\n  s_lshl_b32 s61, s57, 2\n  s_add_u32 s60, s60, s61\n  s_add_u32 s60, s60, {WS_MARK}\n  v_mov_b32 v5, s60")
        self.exec1(); A(f"  global_store_dword v5, v9, {sp(sWS)} sc1"); self.execall()

    def check_lines(self, data, tags, tmp):
        A = self.A
        n = len(data)
        for k in range(n): A(f"  v_xor_b32 v{tmp+k}, v{data[k]}, v{data[k]+1}")
        for k in range(n): A(f"  v_bitop3_b32 v{tmp+k}, v{tmp+k}, v{data[k]+2}, v{data[k]+3} bitop3:0x96")
        for st in ("quad_perm:[1,0,3,2]", "quad_perm:[2,3,0,1]", "row_half_mirror"):
            for k in range(n): A(f"  v_xor_b32_dpp v{tmp+k}, v{tmp+k}, v{tmp+k} {st} row_mask:0xf bank_mask:0xf")
        for k in range(n): A(f"  v_bitop3_b32 v{tmp+k}, v{tmp+k}, v{tags[k]}, s44 bitop3:0x96")
        for k in range(1, n): A(f"  v_or_b32 v{tmp}, v{tmp}, v{tmp+k}")
        A(f"  v_cmp_ne_u32 vcc, 0, v{tmp}")

    def get_flag(self, tmp, off, sreg, expect=None):
        A = self.A
        l = self.lab("pollN"); d = self.lab("gotN")
        cmp = f"s_cmp_lg_u32 s{sreg}, 0" if expect is None else f"s_cmp_eq_u32 s{sreg}, {expect}"
        self.exec1()
        A(f"  global_load_dword v{tmp}, v{vZ}, {sp(sDBG)} offset:{off}")
        A(f"{l}:\n  s_waitcnt vmcnt(0)\n  v_readfirstlane_b32 s{sreg}, v{tmp}\n  {cmp}\n  s_cbranch_scc1 {d}")
        self.guard()
        A(f"  s_sleep {self.c['poll_sleep']}\n  global_load_dword v{tmp}, v{vZ}, {sp(sDBG)} offset:{off} sc1\n  s_branch {l}\n{d}:"); self.execall()
    def get_nonce(self, tmp): self.get_flag(tmp, 128, 44)

    def xor_rows(self, r, t):
        A = self.A
        A(f"  v_mov_b32 v{t}, v{r}\n  v_permlane16_swap_b32 v{t}, v{r}\n  v_xor_b32 v{r}, v{r}, v{t}")
        A(f"  v_mov_b32 v{t}, v{r}\n  v_permlane32_swap_b32 v{t}, v{r}\n  v_xor_b32 v{r}, v{r}, v{t}")

    def allreduce8(self, r, t, op="v_add_f32"):
        A = self.A
        A(f"  {op}_dpp v{r}, v{r}, v{r} row_ror:8 row_mask:0xf bank_mask:0xf")
        A(f"  v_mov_b32 v{t}, v{r}\n  v_permlane16_swap_b32 v{t}, v{r}\n  {op} v{r}, v{r}, v{t}")
        A(f"  v_mov_b32 v{t}, v{r}\n  v_permlane32_swap_b32 v{t}, v{r}\n  {op} v{r}, v{r}, v{t}")

    def wq_pattern(self):
        p = self.c["wqpat"]
        if p == 8: return 16, [8192 if i % 8 < 7 else 8192 * 25 for i in range(32)]
        if p == 32: return 18, [8192] * 32
        if p == 1: return 13, [8192 * 4] * 32
        if p == 33: return 18, [8192 * 5 if i % 8 < 7 else (1 << 32) - 8192 * 27 for i in range(32)]
        if p == 16: return 17, [8192 if i % 16 < 15 else 8192 * 49 for i in range(32)]

    def wo_pattern(self):
        p = self.c["wopat"]
        if p == 8: return 13, [1024 if i % 8 < 7 else 1024 * 25 for i in range(32)]
        if p == 32: return 15, [1024] * 32
        if p == 1: return 10, [4096] * 32

    def wo_prefetch(self):
        A = self.A
        l = self.lab("nowopf")
        A(f"  s_cmp_lg_u32 s{sHW}, {self.c['wopfw']}\n  s_cbranch_scc1 {l}")
        A(f"  s_lshl_b32 s60, s{sXCD}, 19\n  s_lshl_b32 s61, s{sIDX}, 14\n  s_add_u32 s60, s60, s61\n  s_add_u32 s60, s60, 4096\n  v_add_u32 v7, s60, v{vL16}")
        for i in range(16):
            if i == 8: A("  v_add_u32 v7, 8192, v7")
            A(f"  global_load_dword v35, v7, {sp(sWO)} offset:{(i % 8) * 1024 - 4096}")
        A(f"{l}:")

    def h0_issue(self, fl):
        A = self.A
        if "G" in self.c["xskip"]: return
        A(f"  global_load_dwordx4 {vq(28)}, v36, {sp(sWS)}{fl}\n  global_load_dwordx4 {vq(32)}, v36, {sp(sWS)} offset:1024{fl}")
        A(f"  global_load_dword v24, v37, {sp(sWS)}{fl}\n  global_load_dword v25, v37, {sp(sWS)} offset:32{fl}")

    def h0_finish(self):
        A = self.A; c = self.c
        l = self.lab("chkA"); d = self.lab("gotA")
        A(f"{l}:")
        self.check_lines([28, 32], [24, 25], 26)
        A(f"  s_cbranch_vccz {d}" if "G" not in c["xskip"] else f"  s_branch {d}")
        self.guard()
        A(f"  s_sleep {c['a_sleep']}")
        self.h0_issue(" sc1")
        A(f"  s_waitcnt vmcnt(0)\n  s_branch {l}\n{d}:")
        self.stamp(2); self.cstamp(14)
        self.unpack8(32, 16)
        for i in range(8): A(f"  v_add_f32 v{16+i}, 1.0, v{16+i}")
        self.rnd8(16, 24)
        for i in range(8): A(f"  v_mul_f32 v{8+i}, v{8+i}, v{16+i}")
        self.rnd8(8, 24)
        self.unpack8(28, 16)
        for i in range(8): A(f"  v_add_f32 v{8+i}, v{8+i}, v{16+i}")
        for i in range(4): A(f"  v_cvt_pk_bf16_f32 v{24+i}, v{8+2*i}, v{9+2*i}")
        A(f"  v_add_u32 v16, s47, v{vL16}\n  ds_write_b128 v16, {vq(24)} offset:{L_HBUF}")
        self.lds_inc(F_H)
        if c["dump"]:
            l = self.lab("nodh"); A(f"  s_cmp_lg_u32 s{sHW}, 0\n  s_cbranch_scc1 {l}"); self.dumpv(24, 4, 0x0, 2, 1024); A(f"{l}:")
        self.stamp(3)

    def helper(self):
        A = self.A; c = self.c
        A("L_helper:")
        self.stamp(8)
        A(f"  s_sub_u32 s{sHW}, s{sWAVE}, 8")
        l = self.lab("h3")
        A(f"  s_cmp_lg_u32 s{sHW}, 3\n  s_cbranch_scc1 {l}")
        A(f"  v_lshlrev_b32 v4, 2, v{vLANE}\n  ds_write_b32 v4, v{vZ}\n  ds_write_b32 v4, v{vZ} offset:{L_OP}\n  ds_write_b32 v4, v{vZ} offset:{L_OP+256}\n  s_waitcnt lgkmcnt(0)\n{l}:")
        A("  s_waitcnt lgkmcnt(0)")
        if c["tlb"]:
            l = self.lab("notlb")
            A(f"  s_cmp_lg_u32 s{sHW}, 2\n  s_cbranch_scc1 {l}")
            self.exec1()
            A(f"  s_lshl_b32 s60, s{sB}, 5\n  s_add_u32 s60, s60, s{sH}\n  s_lshl_b32 s60, s60, 20\n  s_add_u32 s60, s60, 0xC0000\n  v_mov_b32 v4, s60")
            A(f"  global_load_dword v35, v4, {sp(sV)} nt")
            if c["tlb"] == 3: A(f"  s_branch {l}_e")
            A(f"  s_lshl_b32 s60, s2, 12\n  s_add_u32 s60, s60, {WS_QIN}\n  v_mov_b32 v5, s60\n  global_load_dword v41, v5, {sp(sWS)} nt")
            A(f"  s_lshl_b32 s60, s{sH}, 17\n  v_mov_b32 v6, s60\n  global_load_dword v42, v6, {sp(sWO)} nt")
            A(f"  s_lshl_b32 s60, s2, 2\n  s_and_b32 s60, s60, 0xfc\n  v_mov_b32 v7, s60")
            A(f"  global_load_dword v43, v7, {sp(sDBG)}")
            if c["tlb"] > 1:
                A(f"  s_lshl_b32 s60, s2, 7\n  v_mov_b32 v8, s60")
                for k, p in enumerate((sG, sU, sDN, sWS)): A(f"  global_load_dword v{44+k}, v8, {sp(p)} nt")
                A(f"  v_add_u32 v8, 0x100000, v8")
                for k, p in enumerate((sG, sU, sDN)): A(f"  global_load_dword v{48+k}, v8, {sp(p)} nt")
                A(f"  s_lshl_b32 s60, s2, 5\n  v_mov_b32 v9, s60\n  global_load_dword v52, v9, {sp(sOUT)} nt")
            A(f"{l}_e:")
            self.execall()
            A(f"{l}:")
        if c["wqpf"]:
            l = self.lab("nowqpf")
            A(f"  s_cmp_lg_u32 s{sHW}, {c['wqpf']}\n  s_cbranch_scc1 {l}")
            A(f"  s_lshl_b32 s60, s{sIDX}, 17\n  s_lshl_b32 s61, s{sXCD}, 10\n  s_add_u32 s60, s60, s61\n  v_add_u32 v4, s60, v{vL16}")
            for i in range(16):
                if i >= c["wqpfD"]: A(f"  s_waitcnt vmcnt({c['wqpfD']-1})")
                A(f"  global_load_dword v35, v4, {sp(sWQ)}{c['pffl']}")
                if i < 15: A("  v_add_u32 v4, 8192, v4")
            A(f"{l}:")
        if c["wopf"] == -1: self.wo_prefetch()
        l = self.lab("nononce")
        A(f"  s_cmp_lg_u32 s2, 0\n  s_cbranch_scc1 {l}\n  s_cmp_lg_u32 s{sHW}, 1\n  s_cbranch_scc1 {l}")
        A(f"  s_memrealtime s[42:43]\n  s_waitcnt lgkmcnt(0)\n  s_or_b32 s42, s42, 1\n  v_mov_b32 v6, s42")
        self.exec1(); A(f"  global_store_dword v{vZ}, v6, {sp(sDBG)} offset:128 sc1"); self.execall()
        A(f"{l}:")
        A("  s_barrier")
        abl = c["abl"]
        if abl is not None:
            if "init" in abl: self.init_duty(11)
            l = self.lab("abl")
            A(f"  s_cmp_lg_u32 s{sHW}, 0\n  s_cbranch_scc1 {l}")
            self.lds_inc(F_Q2); self.lds_inc(F_C)
            if "h0l" in abl:
                A(f"  v_and_b32 v5, 7, v{vJ}\n  v_lshrrev_b32 v6, 3, v{vJ}\n  v_lshl_add_u32 v7, v{vG}, 1, v6\n  v_lshlrev_b32 v7, 4, v7\n  v_lshl_add_u32 v7, v5, 10, v7")
                if "nox" not in abl:
                    for i in range(8): A(f"  global_load_dwordx4 {vq(40+4*i)}, v7, {sp(sX)} offset:{128*i} nt")
                A(f"  s_mov_b32 s{SRDB}, s{sWQ}\n  s_mov_b32 s{SRDB+1}, s{sWQ+1}\n  s_mov_b32 s{SRDB+2}, 4194304\n  s_mov_b32 s{SRDB+3}, 0x20000")
                A(f"  v_lshlrev_b32 v7, 4, v{vJ}\n  v_lshl_add_u32 v7, v{vG}, 16, v7")
                A(f"  s_lshl_b32 s41, s{sB}, 19\n  s_lshl_b32 s60, s{sH}, 8\n  s_add_u32 s41, s41, s60")
                for i in range(0 if "nowq" in abl else 16):
                    A(f"  s_waitcnt vmcnt({c['ablD']})")
                    A(f"  buffer_load_dwordx4 {vq(104+4*i)}, v7, {sq(SRDB)}, s41 offen nt")
                    if i < 15: A(f"  s_add_u32 s41, s41, {8192 if i != 7 else 8192*25}")
                A("  s_waitcnt vmcnt(0)")
            if "poll" in abl:
                lp = self.lab("ablp")
                self.exec1()
                A(f"  s_mov_b32 s65, 12\n{lp}:\n  global_load_dwordx2 v[24:25], v{vZ}, {sp(sDBG)} offset:128 sc1\n  s_waitcnt vmcnt(0)\n  s_sleep {c['poll_sleep']}\n s_sub_u32 s65, s65, 1\n s_cmp_lg_u32 s65, 0\n s_cbranch_scc1 {lp}")
                self.execall()
            A(f"{l}:")
            if "wqr" in abl:
                A(f"  s_mov_b32 s{SRDA}, s{sWQ}\n  s_mov_b32 s{SRDA+1}, s{sWQ+1}\n  s_mov_b32 s{SRDA+2}, 4194304\n  s_mov_b32 s{SRDA+3}, 0x20000")
                sh, steps_ = self.wq_pattern()
                A(f"  v_lshlrev_b32 v4, 4, v{vJ}\n  v_lshl_add_u32 v4, v{vG}, {sh}, v4")
                A(f"  s_lshl_b32 s40, s{sHW}, 20\n  s_xor_b32 s60, s{sH}, {c['wqx']}\n  s_lshl_b32 s60, s60, 8\n  s_add_u32 s40, s40, s60")
                self.wload32(SRDA, steps_, c["HDO"], frac=c["HDOf"], fl=c["wqfl"])
                self.stamp(5)
            if "wqh" in abl:
                lq = self.lab("noq")
                A(f"  s_cmp_ge_u32 s{sB}, 4\n  s_cbranch_scc1 {lq}")
                A(f"  s_mov_b32 s{SRDA}, s{sWQ}\n  s_mov_b32 s{SRDA+1}, s{sWQ+1}\n  s_mov_b32 s{SRDA+2}, 4194304\n  s_mov_b32 s{SRDA+3}, 0x20000")
                A(f"  v_lshlrev_b32 v4, 4, v{vJ}\n  v_lshl_add_u32 v4, v{vG}, 17, v4")
                A(f"  s_lshl_b32 s40, s{sHW}, 19\n  s_and_b32 s60, s{sB}, 1\n  s_lshl_b32 s60, s60, 21\n  s_add_u32 s40, s40, s60\n  s_lshl_b32 s60, s{sH}, 8\n  s_add_u32 s40, s40, s60")
                for i in range(16):
                    if i >= c["HD"]: A(f"  s_waitcnt vmcnt({c['HD']-1})")
                    A(f"  buffer_load_dwordx4 {vq(104+4*i)}, v4, {sq(SRDA)}, s40 offen\n  s_add_u32 s40, s40, 8192")
                self.stamp(5)
                A(f"{lq}:")
            if "wqp" in abl:
                lq = self.lab("noq")
                A(f"  s_cmp_lt_u32 s57, 48\n  s_cbranch_scc1 {lq}")
                sh, steps_ = self.wq_pattern()
                A(f"  s_mov_b32 s{SRDA}, s{sWQ}\n  s_mov_b32 s{SRDA+1}, s{sWQ+1}\n  s_mov_b32 s{SRDA+2}, 4194304\n  s_mov_b32 s{SRDA+3}, 0x20000")
                A(f"  v_lshlrev_b32 v4, 4, v{vJ}\n  v_lshl_add_u32 v4, v{vG}, {sh}, v4")
                A(f"  s_lshl_b32 s40, s{sHW}, 20\n  s_lshl_b32 s60, s{sH}, 8\n  s_add_u32 s40, s40, s60")
                self.wload32(SRDA, steps_, c["HD"], frac=c["HDf"], fl=c["wqfl"])
                self.stamp(5)
                A(f"{lq}:")
            if "wo" in abl:
                A(f"  s_mov_b32 s{SRDA}, s{sWO}\n  s_mov_b32 s{SRDA+1}, s{sWO+1}\n  s_mov_b32 s{SRDA+2}, 4194304\n  s_mov_b32 s{SRDA+3}, 0x20000")
                A(f"  v_lshlrev_b32 v4, 4, v{vJ}\n  v_lshl_add_u32 v4, v{vG}, {self.wo_pattern()[0]}, v4")
                A(f"  s_lshl_b32 s40, s{sH}, 17\n  s_lshl_b32 s60, s{sHW}, 8\n  s_add_u32 s40, s40, s60")
                self.wload32(SRDA, self.wo_pattern()[1], c["HDO"], frac=c["HDOf"])
                self.stamp(6)
            A("  s_branch L_exit")
        A(f"  s_mov_b32 s{SRDA}, s{sWQ}\n  s_mov_b32 s{SRDA+1}, s{sWQ+1}\n  s_mov_b32 s{SRDA+2}, 4194304\n  s_mov_b32 s{SRDA+3}, 0x20000")
        sh, steps = self.wq_pattern()
        A(f"  v_lshlrev_b32 v4, 4, v{vJ}\n  v_lshl_add_u32 v4, v{vG}, {sh}, v4")
        A(f"  s_lshl_b32 s40, s{sHW}, 20\n  s_lshl_b32 s60, s{sH}, 8\n  s_add_u32 s40, s40, s60")
        A(f"  s_cmp_lt_u32 s57, 48\n  s_cbranch_scc1 L_prodh")
        if c["wo_at"] is not None: self.lds_spin(F_K, 1, 7, sleep=2)
        A(f"  s_cmp_eq_u32 s57, 64\n  s_cselect_b32 s45, 3, 0")
        A(f"  s_cmp_gt_u32 s{sHW}, s45\n  s_cbranch_scc1 L_wq123")
        A(f"  s_lshl_b32 s46, s{sHW}, 1\n  s_add_u32 s46, s46, s{sB}\n  s_lshl_b32 s47, s{sHW}, 10")
        A(f"  s_lshl_b32 s60, s46, 10\n  v_add_u32 v36, s60, v{vL16}\n  global_load_dwordx4 {vq(28)}, v36, {sp(sX)}")
        A(f"  s_mul_i32 s60, s46, 6144\n  s_add_u32 s60, s60, {WS_MOD}\n  v_add_u32 v36, s60, v{vL16}")
        A(f"  s_lshl_b32 s60, s46, 8\n  s_add_u32 s60, s60, {WS_MARK}\n  v_lshrrev_b32 v37, 3, v{vLANE}\n  v_lshl_add_u32 v37, v37, 2, s60")
        def chkB0():
            l0 = self.lab("noB0"); l = self.lab("pollBN"); d = self.lab("gotBN")
            A(f"  s_cmp_lg_u32 s{sHW}, 1\n  s_cbranch_scc1 {l0}")
            A(f"  s_load_dword s44, {sp(sDBG)}, 0x80\n  s_waitcnt lgkmcnt(0)\n{l}:\n  s_cmp_lg_u32 s44, 0\n  s_cbranch_scc1 {d}")
            self.guard()
            A(f"  s_load_dword s44, {sp(sDBG)}, 0x80 glc\n  s_waitcnt lgkmcnt(0)\n  s_branch {l}\n{d}:")
            self.get_flag(7, 136, 41, expect="s44")
            self.lds_inc(F_C)
            A(f"{l0}:")
        early_b = [(c["PBQ"], chkB0)] if c["rank"] else []
        HD = c["HD"]
        def ln():
            self.unpack8(28, 8); self.layernorm(8, 16, 24)
            A(f"  s_load_dword s44, {sp(sDBG)}, 0x80")
        def gather():
            l = self.lab("pollHN"); d = self.lab("gotHN")
            A(f"  s_waitcnt lgkmcnt(0)\n{l}:\n  s_cmp_lg_u32 s44, 0\n  s_cbranch_scc1 {d}")
            self.guard()
            A(f"  s_load_dword s44, {sp(sDBG)}, 0x80 glc\n  s_waitcnt lgkmcnt(0)\n  s_branch {l}\n{d}:")
            self.stamp(1)
            self.h0_issue("")
            A(f"  v_mov_b32 v26, s44\n  ds_write_b32 v{vZ}, v26 offset:{F_N}")
        self.wload32(SRDA, steps, HD, frac=c["HDf"], hooks=dict(early_b + [(HD + 3, ln), (c["P0"], gather), (c["P0"] + HD, self.h0_finish)] + ([(c["wopf"], self.wo_prefetch)] if (c["wopf"] or -1) > 0 else [])), fl=c["wqfl"])
        A("  s_branch L_q")
        A("L_wq123:")
        l = self.lab("nozero")
        A(f"  s_cmp_lg_u32 s{sHW}, 3\n  s_cbranch_scc1 {l}\n  s_cmp_lt_u32 s57, 256\n  s_cbranch_scc1 {l}\n  s_cmp_ge_u32 s57, {256+8}\n  s_cbranch_scc1 {l}")
        A("  v_mov_b32 v12, 0\n  v_mov_b32 v13, 0\n  v_mov_b32 v14, 0\n  v_mov_b32 v15, 0")
        A(f"  s_sub_u32 s61, s57, 256\n  s_lshl_b32 s60, s61, 12\n  s_add_u32 s60, s60, {WS_ACC}\n  v_add_u32 v5, s60, v{vL16}")
        for i in range(4): A(f"  global_store_dwordx4 v5, {vq(12)}, {sp(sWS)} offset:{1024*i} sc1")
        A(f"{l}:")
        def ticket():
            l = self.lab("notick"); lp = self.lab("pollZN"); d = self.lab("gotZN")
            A(f"  s_cmp_lg_u32 s{sHW}, 3\n  s_cbranch_scc1 {l}\n  s_cmp_lt_u32 s57, 256\n  s_cbranch_scc1 {l}\n  s_cmp_ge_u32 s57, {256+8}\n  s_cbranch_scc1 {l}")
            A(f"  s_mov_b32 s65, 1\n  s_atomic_add s65, {sp(sDBG)}, 0x8 glc\n  s_waitcnt lgkmcnt(0)\n  s_cmp_lg_u32 s65, 7\n  s_cbranch_scc1 {l}")
            A(f"{lp}:\n  s_load_dword s44, {sp(sDBG)}, 0x80 glc\n  s_waitcnt lgkmcnt(0)\n  s_cmp_lg_u32 s44, 0\n  s_cbranch_scc1 {d}")
            self.guard()
            A(f"  s_branch {lp}\n{d}:\n  v_mov_b32 v7, s44")
            self.exec1(); A(f"  global_store_dword v{vZ}, v7, {sp(sDBG)} offset:136 sc1"); self.execall()
            A(f"{l}:")
        self.wload32(SRDA, steps, HD, frac=c["HDf"], hooks=dict(early_b + [(HD + 2, ticket)] + ([(c["wopf"], self.wo_prefetch)] if (c["wopf"] or -1) > 0 else [])), fl=c["wqfl"])
        A("L_q:")
        self.stamp(4)
        A("  s_add_u32 s61, s45, 1")
        self.lds_spin(F_H, "s61", 7)
        p32 = c["wqpat"] == 32
        A(f"  s_lshl_b32 s60, s{sHW}, 8\n  v_lshl_add_u32 v4, v{vG}, {6 if p32 else 4}, s60\n  v_and_b32 v5, s45, v{vJ}\n  v_lshl_add_u32 v4, v5, 10, v4")
        for m in range(4): A(f"  ds_read_b128 {vq(8+4*m)}, v4 offset:{L_HBUF + (16 if p32 else 64)*m}")
        A(f"  ds_read_b32 v7, v{vZ} offset:{F_N}")
        A(f"  s_lshl_b32 s60, s{sHW}, 11\n  v_lshl_add_u32 v5, v{vJ}, 5, s60\n  v_add_u32 v5, {L_QP}, v5")
        A(f"  s_mov_b32 s{SRDA}, s{sWO}\n  s_mov_b32 s{SRDA+1}, s{sWO+1}\n  s_mov_b32 s{SRDA+2}, 4194304\n  s_mov_b32 s{SRDA+3}, 0x20000")
        A(f"  s_lshl_b32 s40, s{sH}, 17\n  s_lshl_b32 s60, s{sHW}, 8\n  s_add_u32 s40, s40, s60")
        A("  s_waitcnt lgkmcnt(0)")
        A(f"  v_readfirstlane_b32 s44, v7\n  v_lshlrev_b32 v4, 4, v{vJ}\n  v_lshl_add_u32 v4, v{vG}, {self.wo_pattern()[0]}, v4")
        res = self.gemv32()
        A("  s_mov_b64 exec, 0xffff")
        for cc in range(0, 8, 2):
            A(f"  ds_write2_b32 v5, v{res[cc]}, v{res[cc+1]} offset0:{cc} offset1:{cc+1}")
        l = self.lab("onerow")
        A(f"  s_cmp_eq_u32 s45, 0\n  s_cbranch_scc1 {l}")
        for r in range(1, 4):
            A(f"  v_add_u32 v5, 512, v5")
            for cc in range(0, 8, 2):
                A(f"  ds_write2_b32 v5, v{res[cc]+r}, v{res[cc+1]+r} offset0:{cc} offset1:{cc+1}")
        A(f"{l}:")
        self.exec1()
        A(f"  ds_add_rtn_u32 v7, v{vZ}, v{vONE} offset:{F_Q}\n  s_waitcnt lgkmcnt(0)\n  v_readfirstlane_b32 s60, v7")
        self.execall()
        l = self.lab("notlastq")
        A(f"  s_cmp_lg_u32 s60, 3\n  s_cbranch_scc1 {l}")
        A(f"  v_lshlrev_b32 v6, 3, v{vLANE}")
        for part in range(4): A(f"  ds_read_b64 {vp(8+2*part)}, v6 offset:{L_QP + 2048*part}")
        A(f"  s_lshl_b32 s60, s2, 9\n  s_add_u32 s60, s60, {WS_QIN}\n  v_add_u32 v7, s60, v6")
        A(f"  v_lshlrev_b32 v5, 2, v{vLANE}\n  s_waitcnt lgkmcnt(0)")
        A("  v_add_f32 v8, v8, v10\n  v_add_f32 v9, v9, v11\n  v_add_f32 v12, v12, v14\n  v_add_f32 v13, v13, v15\n  v_add_f32 v8, v8, v12\n  v_add_f32 v9, v9, v13")
        A(f"  v_cvt_pk_bf16_f32 v8, v8, v9\n  ds_write_b32 v5, v8 offset:{L_QB}")
        l2 = self.lab("nodon")
        A(f"  s_cmp_eq_u32 s45, 0\n  s_cbranch_scc1 {l2}")
        for r in range(1, 4):
            for part in range(4): A(f"  ds_read_b64 {vp(16+2*part)}, v6 offset:{L_QP + 2048*part + 512*r}")
            A(f"  v_add_u32 v7, {64*512}, v7\n  s_waitcnt lgkmcnt(0)")
            A("  v_add_f32 v16, v16, v18\n  v_add_f32 v17, v17, v19\n  v_add_f32 v20, v20, v22\n  v_add_f32 v21, v21, v23\n  v_add_f32 v16, v16, v20\n  v_add_f32 v17, v17, v21")
            A(f"  v_cvt_pk_bf16_f32 v{24+2*r}, v16, v17\n  v_mov_b32 v{25+2*r}, s44\n  global_store_dwordx2 v7, {vp(24+2*r)}, {sp(sWS)} sc1")
        A(f"{l2}:")
        self.lds_inc(F_Q2)
        self.dumpv(8, 1, 0x80000, 2, 256)
        A(f"{l}:")
        self.stamp(5)
        steps = self.wo_pattern()[1]
        def chkB():
            if c["rank"]: return
            l0 = self.lab("noB")
            A(f"  s_cmp_lg_u32 s{sHW}, 1\n  s_cbranch_scc1 {l0}")
            if "B" not in c["xskip"]: self.get_flag(7, 136, 45, expect="s44")
            self.lds_inc(F_C)
            A(f"{l0}:")
        def rowloads(fl):
            for i in range(4): A(f"  global_load_dwordx4 {vq(12+4*i)}, v36, {sp(sWS)} offset:{1024*i}{fl}")
            for i in range(4): A(f"  global_load_dword v{28+i}, v37, {sp(sWS)} offset:{32*i}{fl}")
        def rows_a():
            if "R" in c["xskip"]: return
            l = self.lab("norows")
            A(f"  s_cmp_ge_u32 s{sHW}, 2\n  s_cbranch_scc1 {l}\n  s_cmp_eq_u32 s{sFFN}, 0\n  s_cbranch_scc1 {l}")
            A(f"  s_lshl_b32 s41, s{sJ}, 1\n  s_add_u32 s41, s41, s{sHW}")
            A(f"  s_mul_i32 s60, s41, 6144\n  s_add_u32 s60, s60, {WS_MOD + 2048}\n  v_add_u32 v36, s60, v{vL16}")
            A(f"  s_lshl_b32 s60, s41, 8\n  s_add_u32 s60, s60, {WS_MARK + 64}\n  v_lshrrev_b32 v37, 3, v{vLANE}\n  v_lshl_add_u32 v37, v37, 2, s60")
            rowloads("")
            A(f"  s_lshl_b32 s60, s41, 10\n  v_add_u32 v7, s60, v{vL16}\n  global_load_dwordx4 {vq(8)}, v7, {sp(sX)}")
            A(f"{l}:")
        def rows_b():
            if "R" in c["xskip"]: return
            l = self.lab("norows2")
            A(f"  s_cmp_ge_u32 s{sHW}, 2\n  s_cbranch_scc1 {l}\n  s_cmp_eq_u32 s{sFFN}, 0\n  s_cbranch_scc1 {l}")
            lr = self.lab("chkR"); dr = self.lab("gotR")
            A(f"{lr}:")
            self.check_lines([12, 16, 20, 24], [28, 29, 30, 31], 32)
            A(f"  s_cbranch_vccz {dr}")
            self.guard()
            rowloads(" sc1")
            A(f"  s_waitcnt vmcnt(0)\n  s_branch {lr}\n{dr}:")
            self.unpack8(20, 28)
            for i in range(8): A(f"  v_add_f32 v{28+i}, 1.0, v{28+i}")
            for i in range(4): A(f"  v_cvt_pk_bf16_f32 v{20+i}, v{28+2*i}, v{29+2*i}")
            self.lds_spin(F_Q2, 1, 7)
            A(f"  s_mul_i32 s60, s{sHW}, 5120\n  v_add_u32 v36, s60, v{vL16}")
            for i in range(5): A(f"  ds_write_b128 v36, {vq(8+4*i)} offset:{L_ROWS + 1024*i}")
            A(f"{l}:")
        self.wload32(SRDA, steps, c["HDO"], frac=c["HDOf"], hooks={c["PB"]: chkB, c["PR"]: rows_a, c["PR"] + c["HDO"]: rows_b})
        A("  s_branch L_wo")
        A("L_prodh:")
        if c["spref"]:
            l = self.lab("nosp"); pc = self.lab("spc")
            per = -(-c["prefkib"] * 8 // 6)
            A(f"  s_cmp_lg_u32 s{sHW}, 3\n  s_cbranch_scc1 {l}\n  s_getpc_b64 s[60:61]\n{pc}:\n  s_sub_u32 s60, s60, {pc}-{KNAME}\n  s_subb_u32 s61, s61, 0")
            A(f"  s_sub_u32 s65, s{sB}, 2\n  s_mul_i32 s65, s65, {per*128}\n  s_add_u32 s60, s60, s65\n  s_addc_u32 s61, s61, 0")
            for i in range(per):
                A(f"  s_load_dword s41, s[60:61], {128*i:#x}")
                if i % 12 == 11: A("  s_waitcnt lgkmcnt(0)")
            A(f"  s_waitcnt lgkmcnt(0)\n{l}:")
        A(f"  s_mov_b32 s{SRDA}, s{sWO}\n  s_mov_b32 s{SRDA+1}, s{sWO+1}\n  s_mov_b32 s{SRDA+2}, 4194304\n  s_mov_b32 s{SRDA+3}, 0x20000")
        A(f"  s_lshl_b32 s40, s{sH}, 17\n  s_lshl_b32 s60, s{sHW}, 8\n  s_add_u32 s40, s40, s60")
        A(f"  v_lshlrev_b32 v4, 4, v{vJ}\n  v_lshl_add_u32 v4, v{vG}, {self.wo_pattern()[0]}, v4")
        def recvq():
            l0 = self.lab("noq"); l = self.lab("pollPN"); d = self.lab("gotPN"); lq = self.lab("pollPQ"); dq = self.lab("gotPQ")
            A(f"  s_cmp_lg_u32 s{sHW}, 0\n  s_cbranch_scc1 {l0}")
            A(f"  s_load_dword s44, {sp(sDBG)}, 0x80\n  s_waitcnt lgkmcnt(0)\n{l}:\n  s_cmp_lg_u32 s44, 0\n  s_cbranch_scc1 {d}")
            self.guard()
            A(f"  s_load_dword s44, {sp(sDBG)}, 0x80 glc\n  s_waitcnt lgkmcnt(0)\n  s_branch {l}\n{d}:")
            A(f"  v_mov_b32 v26, s44\n  ds_write_b32 v{vZ}, v26 offset:{F_N}")
            A(f"  s_lshl_b32 s60, s2, 9\n  s_add_u32 s60, s60, {WS_QIN}\n  v_lshl_add_u32 v7, v{vLANE}, 3, s60\n  s_add_u32 s61, s60, 4")
            if "PQ" in c["xskip"]: A(f"  s_branch {dq}")
            A(f"{lq}:\n  s_load_dword s60, {sp(sWS)}, s61 glc\n  s_waitcnt lgkmcnt(0)\n  s_cmp_eq_u32 s60, s44\n  s_cbranch_scc0 {lq}_r")
            A(f"  global_load_dwordx2 v[8:9], v7, {sp(sWS)} sc1\n  s_waitcnt vmcnt(0)\n  v_cmp_ne_u32 vcc, s44, v9\n  s_cbranch_vccz {dq}")
            A(f"{lq}_r:")
            self.guard()
            A(f"  s_sleep {c['q_sleep']}\n  s_branch {lq}\n{dq}:")
            A(f"  v_lshlrev_b32 v7, 2, v{vLANE}\n  ds_write_b32 v7, v8 offset:{L_QB}")
            self.lds_inc(F_Q2)
            self.stamp(5)
            self.dumpv(8, 1, 0x80000, 2, 256)
            if not c["rank"]:
                self.get_flag(7, 136, 45, expect="s44")
                self.lds_inc(F_C)
            A(f"{l0}:")
        self.wload32(SRDA, steps, c["HDP"], frac=c["HDPf"], hooks=dict(([(8, chkB0)] if c["rank"] else []) + [(c["PQ"], recvq)] + ([(c["wopf"] // 2, self.wo_prefetch)] if (c["wopf"] or -1) > 0 else [])))
        self.lds_spin(F_Q2, 1, 7, sleep=4)
        A(f"  ds_read_b32 v7, v{vZ} offset:{F_N}\n  s_waitcnt lgkmcnt(0)\n  v_readfirstlane_b32 s44, v7")
        A("L_wo:")
        A("L_wodone:")
        if c["hprio"]: A(f"  s_setprio {c['hprio']}")
        if c["pref2"] and "T" not in c["xskip"]:
            self.prefetch(wait=True)
        self.lds_spin(F_C, 1, 7, sleep=4)
        A(f"  v_lshlrev_b32 v28, {5 if c['oadd'] else 3}, v{vG if c['oadd'] else vLANE}")
        A(f"  s_lshl_b32 s60, s{sHW}, 8\n  v_lshl_add_u32 v29, v{vLANE}, 2, s60\n  v_lshl_add_u32 v30, v{vG}, {6 if c['wopat'] == 32 else 4}, s60")
        A(f"  v_lshrrev_b32 v31, 2, v{vLANE}\n  v_and_b32 v32, 3, v{vLANE}\n  v_lshl_add_u32 v31, v32, 4, v31\n  v_lshlrev_b32 v36, 2, v31")
        A(f"  s_lshl_b32 s61, s{sB}, 12\n  s_add_u32 s61, s61, {WS_ACC}\n  v_add_u32 v32, s61, v29")
        A(f"  v_mov_b32 v33, 1.0\n  v_mov_b32 v34, 1.0\n  v_mov_b32 v35, 1.0\n  v_mov_b32_dpp v35, v{vZ} quad_perm:[0,1,2,3] row_mask:0x4 bank_mask:0xf")
        self.stamp(6)
        if "T" in c["xskip"]: A("  s_branch L_exit")
        if c["dryo"]:
            l = self.lab("nodryo")
            A(f"  s_cmp_lg_u32 s{sHW}, 3\n  s_cbranch_scc1 {l}\n  s_mov_b64 exec, 0\n  s_branch L_dry_o\nL_dry_oend:\n  s_mov_b64 exec, -1\n{l}:")
        self.lds_spin(F_O, 8, 7, sleep=c['o_sleep'])
        self.stamp(9)
        A("L_dry_o:")
        if c["oadd"]:
            rd = lambda q, off: A(f"  ds_read_b128 {vq(q)}, v28 offset:{L_OP + off}")
            rd(12, 0); rd(16, 16); rd(20, 128); rd(24, 144); rd(4, 256)
            A(f"  s_waitcnt lgkmcnt(3)")
            for i in range(4): A(f"  v_cvt_pk_bf16_f32 v{8+i}, v{12+2*i}, v{13+2*i}")
            A(f"  s_waitcnt lgkmcnt(1)")
            for i in range(4): A(f"  v_cvt_pk_bf16_f32 v{12+i}, v{20+2*i}, v{21+2*i}")
            rd(16, 272); rd(20, 384); rd(24, 400)
            self.stamp(10)
            res = [28] + [40 + 4 * k for k in range(7)]
            for m, Am in enumerate((8, 12, 4, 16)):
                for cc in range(8):
                    A(f"  v_mfma_f32_16x16x32_bf16 {vq(res[cc])}, {vq(Am)}, {vq(40+32*m+4*cc)}, {'0' if m == 0 else vq(res[cc])}")
                    if m == 0 and cc == 5:
                        A(f"  s_waitcnt lgkmcnt(0)")
                        A("  v_cvt_pk_bf16_f32 v4, v4, v5\n  v_cvt_pk_bf16_f32 v5, v6, v7\n  v_cvt_pk_bf16_f32 v6, v16, v17\n  v_cvt_pk_bf16_f32 v7, v18, v19")
                    if m == 1 and cc == 1:
                        for i in range(4): A(f"  v_cvt_pk_bf16_f32 v{16+i}, v{20+2*i}, v{21+2*i}")
        else:
            for part in range(8): A(f"  ds_read_b64 {vp(8+2*part)}, v28 offset:{L_OP + 512*part}")
            A("  s_waitcnt lgkmcnt(4)")
            A("  v_add_f32 v8, v8, v10\n  v_add_f32 v9, v9, v11\n  v_add_f32 v12, v12, v14\n  v_add_f32 v13, v13, v15\n  v_add_f32 v8, v8, v12\n  v_add_f32 v9, v9, v13")
            A("  s_waitcnt lgkmcnt(0)")
            A("  v_add_f32 v16, v16, v18\n  v_add_f32 v17, v17, v19\n  v_add_f32 v20, v20, v22\n  v_add_f32 v21, v21, v23\n  v_add_f32 v16, v16, v20\n  v_add_f32 v17, v17, v21")
            A(f"  v_add_f32 v8, v8, v16\n  v_add_f32 v9, v9, v17\n  v_cvt_pk_bf16_f32 v7, v8, v9\n  ds_write_b32 v29, v7 offset:{L_OB}")
            for m in range(4): A(f"  ds_read_b128 {vq(8+4*m)}, v30 offset:{L_OB + (16 if c['wopat'] == 32 else 64)*m}")
            A("  s_waitcnt lgkmcnt(0)")
            self.stamp(10)
            if c["dryo"]: A("  s_cbranch_execz L_dry_o2")
            res = self.gemv32()
            A("L_dry_o2:")
        self.stamp(11)
        for g in range(3):
            for k in range(3):
                if 3 * k + g < 8:
                    A(f"  v_mov_b32_dpp v{33+k}, v{res[3*k+g]} quad_perm:[0,1,2,3] row_mask:{1<<g:#x} bank_mask:0xf")
        for k in range(3): A(f"  ds_bpermute_b32 v{33+k}, v36, v{33+k}")
        if c["dryo"]: A("  s_cbranch_execz L_dry_oend")
        for k in range(3):
            A(f"  s_waitcnt lgkmcnt({2-k})\n  global_atomic_add_f32 v32, v{33+k}, {sp(sWS)} offset:{1024*k}")
        if c["gate"] or c["early"]:
            l = self.lab("g01")
            A(f"  s_cmp_lt_u32 s{sHW}, 2\n  s_cbranch_scc1 {l}")
            self.lds_inc(F_A)
            A(f"{l}:")
        else:
            self.lds_inc(F_A)
        self.stamp(7)
        if c["dump"] and not c["oadd"]:
            l = self.lab("nodumpo")
            A(f"  s_cmp_lg_u32 s{sHW}, 3\n  s_cbranch_scc1 {l}")
            self.dumpv(7, 1, 0x90000, 2, 256)
            A(f"{l}:")
        if c["dry"]:
            l = self.lab("nodry"); l2 = self.lab("dryf")
            A(f"  s_cmp_lg_u32 s{sHW}, 2\n  s_cbranch_scc1 {l}\n  s_cmp_lg_u32 s{sFFN}, 0\n  s_cbranch_scc1 {l2}\n  s_cmp_ge_u32 s57, 100\n  s_cbranch_scc1 L_exit")
            A(f"  s_mov_b64 exec, 0\n  s_branch L_dry_r\n{l2}:\n  s_mov_b64 exec, 0\n  s_branch L_dry_l\n{l}:")
        A(f"  s_cmp_ge_u32 s{sHW}, 2\n  s_cbranch_scc1 L_exit\n  s_cmp_lt_u32 s57, 100\n  s_cbranch_scc1 L_recv\n  s_cmp_eq_u32 s{sFFN}, 0\n  s_cbranch_scc1 L_exit")
        A(f"  s_lshl_b32 s45, s{sJ}, 1\n  s_add_u32 s45, s45, s{sHW}\n  s_lshl_b32 s45, s45, 6\n  s_add_u32 s45, s45, s{sSL}\n  s_lshl_b32 s45, s45, 7\n  s_add_u32 s45, s45, {WS_HINT}")
        if c["gate"]: A(f"  s_load_dword s61, {sp(sWS)}, s45 glc")
        if c["early"]: A(f"  s_lshl_b32 s60, s{sHW}, 2\n  v_mov_b32 v7, s60\n  ds_read_b32 v7, v7 offset:{F_HS}")
        A(f"  s_mul_i32 s60, s{sHW}, 5120\n  v_add_u32 v4, s60, v{vL16}")
        for i in range(4): A(f"  ds_read_b128 {vq(72+4*i)}, v4 offset:{L_ROWS + 1024*i}")
        A(f"  s_lshl_b32 s41, s{sJ}, 1\n  s_add_u32 s41, s41, s{sHW}\n  s_lshl_b32 s41, s41, 12\n  s_add_u32 s41, s41, {WS_ACC}\n  v_add_u32 v5, s41, v{vL16}\n  v_mov_b32 v6, s41")
        A(f"  s_lshl_b32 s60, s{sHW}, 10\n  v_add_u32 v4, s60, v{vL16}")
        A("  s_waitcnt lgkmcnt(0)")
        if c["early"]:
            le = self.lab("notlate"); lj0 = self.lab("lj")
            A(f"  v_readfirstlane_b32 s61, v7\n  s_cmp_eq_u32 s61, s44\n  s_cbranch_scc1 {le}")
            self.lds_inc(F_A)
            A(f"{le}:")
        self.unpack8(72, 88); self.unpack8(76, 96); self.unpack8(80, 104); self.unpack8(84, 112)
        if c["early"]:
            le2 = self.lab("notlate2")
            A(f"  s_cmp_lg_u32 s61, s44\n  s_cbranch_scc1 {le2}")
            if c["late_delay"]: A(f"  s_sleep {c['late_delay']}")
            for k in range(3): A(f"  global_load_dwordx4 {vq(120+4*k)}, v5, {sp(sWS)} offset:{1024*k}{c['accfl']}")
            self.lds_inc(F_A)
            self.stamp(1); self.cstamp(13)
            A(f"  s_branch {lj0}\n{le2}:")
        lp = self.lab("pollH"); ld = self.lab("gotH")
        if c["gate"]:
            lg = self.lab("late")
            A(f"  s_cmp_eq_u32 s61, s44\n  s_cbranch_scc1 {lg}")
            self.lds_inc(F_A)
        A(f"{lp}:\n  s_load_dword s60, {sp(sWS)}, s45 glc\n  s_waitcnt lgkmcnt(0)\n  s_cmp_eq_u32 s60, s44\n  s_cbranch_scc1 {ld}")
        self.guard()
        if c["hint_sleep"]: A(f"  s_sleep {c['hint_sleep']}")
        A(f"  s_branch {lp}\n{ld}:")
        if c["read_delay"]: A(f"  s_sleep {c['read_delay']}")
        if c["gate"]:
            for k in range(3): A(f"  global_load_dwordx4 {vq(120+4*k)}, v5, {sp(sWS)} offset:{1024*k}{c['accfl']}")
            lj = self.lab("gj")
            A(f"  s_branch {lj}\n{lg}:")
            for k in range(3): A(f"  global_load_dwordx4 {vq(120+4*k)}, v5, {sp(sWS)} offset:{1024*k}{c['accfl']}")
            self.lds_inc(F_A)
            A(f"{lj}:")
        self.stamp(1)
        self.cstamp(13)
        lp = self.lab("pollF"); ld = self.lab("gotF")
        if not c["gate"]:
            for k in range(3): A(f"  global_load_dwordx4 {vq(120+4*k)}, v5, {sp(sWS)} offset:{1024*k}{c['accfl']}")
        if c["early"]: A(f"{lj0}:")
        self.lds_inc(F_R)
        A(f"{lp}:")
        A("  s_waitcnt vmcnt(0)\n  v_min3_f32 v7, v123, v127, v131\n  v_cmp_neq_f32 vcc, 0x42000000, v7")
        A(f"  s_cbranch_vccz {ld}")
        self.guard()
        if c["full_sleep"]: A(f"  s_sleep {c['full_sleep']}")
        for k in range(3): A(f"  global_load_dwordx4 {vq(120+4*k)}, v5, {sp(sWS)} offset:{1024*k}{c['accfl']}")
        A(f"  s_branch {lp}\n{ld}:")
        self.stamp(2)
        self.cstamp(15)
        A("L_dry_l:")
        src = [120, 121, 122, 124, 125, 126, 128, 129]
        for i in range(4): A(f"  v_cvt_pk_bf16_f32 v{16+i}, v{src[2*i]}, v{src[2*i+1]}")
        self.unpack8(16, 8)
        self.pk8("mul", 8, 96, 8)
        self.rnd8(8, 16)
        self.pk8("add", 8, 88, 8)
        for i in range(4): A(f"  v_cvt_pk_bf16_f32 v{28+i}, v{8+2*i}, v{9+2*i}")
        self.unpack8(28, 8)
        self.layernorm(8, 16, 24)
        self.pk8("mul", 8, 8, 112)
        self.rnd8(8, 16)
        self.pk8("add", 8, 8, 104)
        for i in range(4): A(f"  v_cvt_pk_bf16_f32 v{24+i}, v{8+2*i}, v{9+2*i}")
        A(f"  ds_write_b128 v4, {vq(24)} offset:{L_H2}\n  ds_write_b128 v4, {vq(28)} offset:{L_X1}\n  s_waitcnt lgkmcnt(0)")
        if c["dry"]: A("  s_cbranch_execz L_dry_red")
        self.stamp(3)
        A("  s_barrier")
        if c["dump"]:
            A(f"  s_lshl_b32 s69, s2, 1\n  s_add_u32 s69, s69, s{sHW}")
            self.dumpv(24, 4, 0x600000, 69, 1024)
        A(f"  s_cmp_eq_u32 s{sHW}, 0\n  s_cbranch_scc1 L_reducer")
        A(f"  s_cmp_ge_u32 s{sSL}, 32\n  s_cbranch_scc1 {'L_h1bar' if c['stamps'] else 'L_exit'}")
        A(f"  s_lshr_b32 s60, s{sSL}, 2\n  s_lshl_b32 s60, s60, 7\n  s_and_b32 s61, s{sSL}, 3\n  s_lshl_b32 s61, s61, 1\n  s_add_u32 s60, s60, s61\n  v_lshl_add_u32 v4, v{vJ}, 3, s60")
        A(f"  ds_read_u16 v8, v4 offset:{L_X1}\n  ds_read_u16 v9, v4 offset:{L_ROWS + 4096}\n  ds_read_u16 v12, v4 offset:{L_X1 + 1024}\n  ds_read_u16 v13, v4 offset:{L_ROWS + 4096 + 5120}")
        A(f"  s_lshl_b32 s60, s{sJ}, 5\n  s_add_u32 s60, s60, s{sSL}\n  s_mul_i32 s60, s60, {INB}\n  s_add_u32 s60, s60, {WS_INBOX + 43*256}\n  v_lshl_add_u32 v5, v{vJ}, 4, s60")
        A(f"  s_xor_b32 s45, s44, {TAGX:#x}\n  v_mov_b32 v10, s44\n  v_mov_b32 v11, s45\n  s_mov_b64 exec, 0xffff\n  s_waitcnt lgkmcnt(0)\n  v_lshl_or_b32 v8, v12, 16, v8\n  v_lshl_or_b32 v9, v13, 16, v9")
        A(f"  global_store_dwordx4 v5, {vq(8)}, {sp(sWS)} sc1")
        A("L_h1bar:\n  s_barrier\n  s_barrier\n  s_branch L_exit2")
        A("L_recv:")
        A(f"  s_lshl_b32 s41, s{sB}, 3\n  s_add_u32 s41, s41, s{sXCD}\n  s_lshl_b32 s41, s41, 1\n  s_add_u32 s41, s41, s{sHW}")
        A(f"  s_mul_i32 s46, s41, {INB}\n  s_add_u32 s46, s46, {WS_INBOX}\n  s_add_u32 s47, s46, {43*256 + 8}\n  s_add_u32 s60, s46, 4096\n  v_add_u32 v5, s60, v{vL16}\n  v_add_u32 v7, 4096, v5")
        A(f"  s_lshr_b32 s60, s41, 5\n  s_lshl_b32 s60, s60, 11\n  s_bfe_u32 s61, s41, 0x30002\n  s_lshl_b32 s61, s61, 7\n  s_add_u32 s60, s60, s61\n  s_and_b32 s61, s41, 3\n  s_lshl_b32 s61, s61, 1\n  s_add_u32 s60, s60, s61")
        A(f"  v_and_b32 v4, 1, v{vG}\n  v_lshl_add_u32 v6, v{vJ}, 3, s60\n  v_lshl_add_u32 v6, v4, 10, v6\n  v_lshlrev_b32 v4, 4, v4\n  v_sub_u32 v4, 16, v4")
        A(f"  s_xor_b32 s45, s44, {TAGX:#x}")
        lp = self.lab("pollX"); ld = self.lab("gotX")
        A(f"{lp}:\n  s_load_dword s60, {sp(sWS)}, s47 glc\n  s_waitcnt lgkmcnt(0)\n  s_cmp_eq_u32 s60, s44\n  s_cbranch_scc1 {ld}")
        self.guard()
        A(f"  s_sleep {c['rx_sleep']}\n  s_branch {lp}\n{ld}:")
        self.stamp(1)
        if c["rx_delay"]: A(f"  s_sleep {c['rx_delay']}")
        lp = self.lab("pollI"); ld = self.lab("gotI")
        A(f"{lp}:")
        for i in range(11): A(f"  global_load_dwordx4 {vq(44+4*i)}, v{5 if i < 8 else 7}, {sp(sWS)} offset:{1024*i - (4096 if i < 8 else 8192)}{c['rxfl']}")
        A("L_dry_r:")
        for i in range(11):
            q = 44 + 4 * i
            A(f"  s_waitcnt vmcnt({10-i})")
            if i == 0:
                A(f"  v_xor_b32 v10, s44, v{q+2}\n  v_xor_b32 v11, s45, v{q+3}\n  v_mov_b32 v8, v{q}\n  v_mov_b32 v9, v{q+1}")
            else:
                A(f"  v_bitop3_b32 v10, v10, v{q+2}, s44 bitop3:0xf6\n  v_bitop3_b32 v11, v11, v{q+3}, s45 bitop3:0xf6")
                if i < 10: A(f"  v_add_f32 v8, v8, v{q}\n  v_add_f32 v9, v9, v{q+1}")
                else: A(f"  v_add_f32_dpp v8, v{q}, v8 quad_perm:[0,1,2,3] row_mask:0x7 bank_mask:0xf\n  v_add_f32_dpp v9, v{q+1}, v9 quad_perm:[0,1,2,3] row_mask:0x7 bank_mask:0xf")
        A(f"  v_or_b32 v10, v10, v11\n  v_cmp_ne_u32 vcc, 0, v10\n  s_cbranch_vccz {ld}")
        self.guard()
        A(f"  s_branch {lp}\n{ld}:")
        self.stamp(4); self.cstamp(15)
        if c["xdelay"]: A(f"  s_sleep {c['xdelay']}")
        A("  v_mov_b32 v12, v84\n  v_mov_b32 v13, v85\n  v_permlane16_swap_b32 v8, v9\n  v_permlane32_swap_b32 v12, v84\n  v_permlane32_swap_b32 v13, v85")
        A("  v_add_f32 v8, v8, v9\n  v_mov_b32 v12, v84\n  v_mov_b32 v13, v85\n  v_mov_b32 v9, v8")
        A("  v_permlane16_swap_b32 v12, v84\n  v_permlane16_swap_b32 v13, v85\n  v_permlane32_swap_b32 v9, v8")
        A("  v_lshlrev_b32 v84, v4, v84\n  v_lshlrev_b32 v85, v4, v85\n  v_add_f32 v8, v8, v9\n  v_and_b32 v84, 0xffff0000, v84\n  v_and_b32 v85, 0xffff0000, v85")
        self.rnd1(8, 9)
        A("  v_mul_f32 v8, v85, v8"); self.rnd1(8, 9)
        A("  v_add_f32 v8, v84, v8\n  v_cvt_pk_bf16_f32 v8, v8, v8")
        if c["dry"]: A("  s_cbranch_execz L_exit")
        A("  s_mov_b32 exec_hi, 0")
        A(f"  global_store_short v6, v8, {sp(sOUT)}{c['outfl']}")
        self.execall()
        self.stamp(5)
        A("  s_branch L_exit")
        A("L_reducer:")
        A(f"  v_lshlrev_b32 v4, 2, v{vLANE}\n  v_add_u32 v4, {L_GUP}, v4")
        A(f"  v_and_b32 v5, 1, v{vLANE}\n  v_lshlrev_b32 v5, 6, v5\n  v_and_b32 v6, 62, v{vLANE}\n  v_add_u32 v5, v5, v6")
        A("  s_barrier")
        A("L_dry_red:")
        for w in range(8): A(f"  ds_read2st64_b32 {vp(8+2*w)}, v4 offset0:{2*w} offset1:{2*w+1}")
        A("  s_waitcnt lgkmcnt(4)")
        A("  v_add_f32 v8, v8, v10\n  v_add_f32 v9, v9, v11\n  v_add_f32 v12, v12, v14\n  v_add_f32 v13, v13, v15\n  v_add_f32 v8, v8, v12\n  v_add_f32 v9, v9, v13")
        A("  s_waitcnt lgkmcnt(0)")
        A("  v_add_f32 v16, v16, v18\n  v_add_f32 v17, v17, v19\n  v_add_f32 v20, v20, v22\n  v_add_f32 v21, v21, v23\n  v_add_f32 v16, v16, v20\n  v_add_f32 v17, v17, v21")
        A("  v_add_f32 v8, v8, v16\n  v_add_f32 v9, v9, v17")
        self.rnd2(8, 9, 10)
        A(f"  v_mul_f32 v8, s{sLOG2E}, v8\n  v_exp_f32 v8, -v8\n  v_add_f32 v8, 1.0, v8\n  v_rcp_f32 v8, v8")
        self.rnd1(8, 10)
        A(f"  v_mul_f32 v8, v8, v9\n  v_cvt_pk_bf16_f32 v8, v8, v8\n  ds_write_b16 v5, v8 offset:{L_HH}\n  s_waitcnt lgkmcnt(0)")
        if c["dry"]: A("  s_cbranch_execz L_dry_s")
        A("  s_barrier")
        self.stamp(4)
        self.dumpv(8, 1, 0xE0000, 2, 256)
        A("  s_branch L_exit2")

    def build(self):
        A = self.A; c = self.c
        A(f"{KNAME}:")
        if c["stamps"]:
            for k in range(1, 16): A(f"  s_mov_b64 s[{70+2*k}:{71+2*k}], 0")
        self.stamp(0)
        A("  s_cmp_ge_u32 s2, 256\n  s_cbranch_scc1 L_end")
        A("  s_load_dwordx16 s[4:19], s[0:1], 0\n  s_load_dwordx8 s[20:27], s[0:1], 64\n  s_load_dwordx4 s[28:31], s[0:1], 96")
        A(f"  v_lshrrev_b32 v2, 6, v0\n  v_and_b32 v0, 63, v0\n  v_readfirstlane_b32 s{sWAVE}, v2")
        A(f"  v_lshlrev_b32 v{vL16}, 4, v0")
        A(f"  s_and_b32 s{sXCD}, s2, 7\n  s_lshr_b32 s{sIDX}, s2, 3\n  s_lshr_b32 s{sB}, s{sIDX}, 2\n  s_and_b32 s{sJ}, s{sIDX}, 3")
        if c["hmap"] == 0: A(f"  s_lshl_b32 s{sH}, s{sXCD}, 2\n  s_add_u32 s{sH}, s{sH}, s{sJ}")
        elif c["hmap"] == 1: A(f"  s_lshl_b32 s{sH}, s{sJ}, 3\n  s_add_u32 s{sH}, s{sH}, s{sXCD}")
        elif c["hmap"] == 2: A(f"  s_lshr_b32 s{sH}, s{sXCD}, 1\n  s_lshl_b32 s{sH}, s{sH}, 3\n  s_and_b32 s60, s{sXCD}, 1\n  s_add_u32 s{sH}, s{sH}, s60\n  s_lshl_b32 s60, s{sJ}, 1\n  s_add_u32 s{sH}, s{sH}, s60")
        elif c["hmap"] == 3: A(f"  s_lshl_b32 s{sH}, s{sXCD}, 2\n  s_add_u32 s60, s{sJ}, 1\n  s_and_b32 s60, s60, 3\n  s_add_u32 s{sH}, s{sH}, s60")
        if c["fast0"]:
            l = self.lab("nofast")
            A(f"  s_cmp_ge_u32 s{sWAVE}, 8\n  s_cbranch_scc1 {l}")
            A(f"  s_lshl_b32 s56, s{sB}, 5\n  s_add_u32 s56, s56, s{sH}\n  s_lshl_b32 s56, s56, 20\n  s_add_u32 s56, s56, 0xC0000\n  s_lshl_b32 s{sOFF}, s{sWAVE}, {10 + c['gran'].bit_length() - 1}")
            A(f"  s_mov_b32 s{SRDA+2}, 0x40000\n  s_mov_b32 s{SRDA+3}, 0x20000\n  s_waitcnt lgkmcnt(0)\n  s_add_u32 s{SRDA}, s{sK}, s56\n  s_addc_u32 s{SRDA+1}, s{sK+1}, 0")
            for n in range(2): A(f"  buffer_load_dwordx4 {vq(40+4*n)}, v{vL16}, {sq(SRDA)}, s{sOFF} offen offset:{1024*n}{c['kfl']}")
            self.stamp(8)
            A(f"{l}:")
        if c["pref"]: self.prefetch()
        A(f"  v_mov_b32 v36, 0\n  v_mov_b32 v37, 0\n  v_lshrrev_b32 v{vG}, 4, v0\n  v_and_b32 v{vJ}, 15, v0\n  v_mov_b32 v{vZ}, 0\n  v_mov_b32 v{vONE}, 1")
        A(f"  s_mul_i32 s65, s{sB}, 3\n  s_add_u32 s65, s65, s{sJ}\n  s_lshr_b32 s60, s{sJ}, 1\n  s_sub_u32 s65, s65, s60\n  s_lshr_b32 s61, s65, 2")
        A(f"  s_lshr_b32 s60, s{sXCD}, 1\n  s_mul_i32 s{sSL}, s{sXCD}, 5\n  s_add_u32 s{sSL}, s{sSL}, s60\n  s_add_u32 s{sSL}, s{sSL}, s61\n  s_sub_u32 s{sSL}, s{sSL}, 1")
        A(f"  s_and_b32 s60, s{sXCD}, 1\n  s_add_u32 s60, s60, 5\n  s_cmp_lt_u32 s61, s60\n  s_cselect_b32 s{sFFN}, 1, 0\n  s_cmp_lt_u32 s{sSL}, 43\n  s_cselect_b32 s{sFFN}, s{sFFN}, 0")
        A(f"  s_add_u32 s60, s{sXCD}, 256\n  s_cmp_eq_u32 s{sIDX}, 28\n  s_cselect_b32 s57, s60, 100")
        A(f"  s_sub_u32 s60, s{sB}, {c['prodb']}\n  s_lshl_b32 s60, s60, 3\n  s_add_u32 s60, s60, s{sXCD}\n  s_cmp_lt_u32 s{sB}, {c['prodb']}\n  s_cselect_b32 s60, 64, s60")
        A(f"  s_cmp_eq_u32 s{sJ}, 1\n  s_cselect_b32 s57, s60, s57\n  s_cselect_b32 s{sFFN}, 0, s{sFFN}\n  s_and_b32 s{sJ}, s65, 3")
        if "M" in c["xskip"]: A("  s_cmp_lt_u32 s57, 48\n  s_cselect_b32 s57, 100, s57")
        if "F" in c["xskip"]: A("  s_cmp_ge_u32 s57, 256\n  s_cselect_b32 s57, 100, s57")
        A(f"  s_mov_b32 s{sGUARD}, 0\n  s_mov_b32 s{sPLO}, 0x05040100\n  s_mov_b32 s{sPHI}, 0x07060302\n  s_mov_b32 s{sLOG2E}, {LOG2E:#x}")
        A(f"  s_cmp_ge_u32 s{sWAVE}, 8\n  s_cbranch_scc1 L_helper")
        if c["hop"]: A("  HOPS")
        if c["sprio"]:
            l = self.lab("sp")
            A(f"  s_cmp_lt_u32 s{sWAVE}, 4\n  s_cbranch_scc1 {l}\n  s_setprio {c['sprio']}\n{l}:")
        A(f"  s_lshl_b32 s60, s{sB}, 5\n  s_add_u32 s60, s60, s{sH}\n  s_lshl_b32 s60, s60, 20\n  s_add_u32 s60, s60, 0xC0000")
        A(f"  s_lshl_b32 s{sOFF}, s{sWAVE}, {10 + c['gran'].bit_length() - 1}\n  s_mul_i32 s56, s{sWAVE}, {c['NV']*1024}\n  s_add_u32 s56, s56, {L_V}")
        gr = c["gran"] // 4
        for G in range(1, 8): A(f"  s_add_u32 s{sOFF+G}, s{sOFF}, {(G // gr) * 32768 * gr + (G % gr) * 4096}")
        A(f"  s_mov_b32 s{SRDA+2}, 0x40000\n  s_mov_b32 s{SRDA+3}, 0x20000\n  s_mov_b32 s{SRDB+2}, 0x40000\n  s_mov_b32 s{SRDB+3}, 0x20000")
        A("  s_waitcnt lgkmcnt(0)")
        D = c["D"]
        d2 = c["depth2"] or c["depth"]
        def mask(f1, f2):
            m = 0; acc = 0.5
            for n in range(64):
                acc += f1 if n < c["dsw"] else f2
                if acc >= 1.0 - 1e-9:
                    acc -= 1.0
                    if n < c["sprint"]: m |= 1 << n
            return m
        m1 = [mask(min(1.0, D - a), min(1.0, D - b)) for a, b in zip(c["depth"], d2)]
        m2 = [mask(max(0.0, D - 1 - a), max(0.0, D - 1 - b)) & x for a, b, x in zip(c["depth"], d2, m1)]
        for reg, ms in ((58, m1), (14, m2)):
            for half in range(2):
                w = [(m >> (32 * half)) & 0xffffffff for m in ms]
                A(f"  s_bitcmp1_b32 s{sXCD}, 0\n  s_mov_b32 s{reg+half}, {w[0]:#x}\n  s_cselect_b32 s{reg+half}, {w[1]:#x}, s{reg+half}")
                A(f"  s_cmp_lt_u32 s57, 48\n  s_cselect_b32 s{reg+half}, {w[2]:#x}, s{reg+half}\n  s_cmp_eq_u32 s57, 64\n  s_cselect_b32 s{reg+half}, {w[3]:#x}, s{reg+half}")
        A("  s_waitcnt lgkmcnt(0)")
        A(f"  s_add_u32 s{SRDA}, s{sK}, s60\n  s_addc_u32 s{SRDA+1}, s{sK+1}, 0\n  s_add_u32 s{SRDB}, s{sV}, s60\n  s_addc_u32 s{SRDB+1}, s{sV+1}, 0")
        if c["Dodd"]:
            A(f"  s_bitcmp1_b32 s{sXCD}, 0\n  s_cbranch_scc1 L_sodd")
        self.streamer(c["D"], "e")
        if c["Dodd"]:
            A("L_sodd:")
            self.streamer(c["Dodd"], "o")
        self.streamer_ffn()
        self.helper()
        if c["sub"]:
            A("L_gemv:"); self.gemv32(body=True); A("  s_setpc_b64 s[42:43]")
        A("L_exit2:")
        if c["stamps"]: A("  s_sleep 100")
        A("L_exit:")
        if c["stamps"] and c["diag"]:
            A(f"  s_sleep 127\n  s_sleep 127\n  s_load_dword s44, {sp(sDBG)}, 0x80\n  s_waitcnt lgkmcnt(0)\n  s_cmp_ge_u32 s{sWAVE}, 8\n  s_cbranch_scc1 L_diagh\n  s_cmp_lg_u32 s{sWAVE}, 7\n  s_cbranch_scc1 L_end")
            def rec(k, slot):
                l = self.lab("dg")
                A(f"  s_cmp_eq_u32 s{70+2*k}, 0\n  s_cbranch_scc1 {l}\n  s_sub_u32 s60, s{70+2*k}, s44\n  s_add_u32 s60, s60, 1000\n  s_atomic_umax s60, {sp(sDBG)}, {4*slot:#x}\n{l}:")
            for k, slot in ((0, 4), (11, 5), (1, 6), (3, 7), (5, 8), (7, 9)): rec(k, slot)
            A("  s_endpgm\nL_diagh:")
            A(f"  s_cmp_lg_u32 s{sWAVE}, 8\n  s_cbranch_scc1 L_end")
            for k, slot in ((6, 10), (7, 11), (2, 12), (3, 13), (4, 14), (5, 15)): rec(k, slot)
        elif c["stamps"]:
            A("  s_mov_b64 exec, 1\n  s_waitcnt lgkmcnt(0)")
            A(f"  s_mul_i32 s60, s2, 12\n  s_add_u32 s60, s60, s{sWAVE}\n  s_lshl_b32 s60, s60, 7\n  s_add_u32 s60, s60, {WS_STAMP}\n  v_mov_b32 v4, s60")
            for k in range(16):
                A(f"  v_mov_b32 v6, s{70+2*k}\n  v_mov_b32 v7, s{71+2*k}\n  global_store_dwordx2 v4, v[6:7], {sp(sWS)} offset:{8*k}")
        A("L_end:\n  s_endpgm")
        body = fix_hazards(self.L)
        if c["hop"]:
            lines = body.split("\n"); out_ = []; pos = 0; last = -10**9; stubs = []
            for ln in lines:
                out_.append(ln)
                t = ln.strip()
                if t and not t.endswith(":") and not t.startswith("."):
                    pos += 4 if t.startswith(("s_", "v_mov_b32 ", "v_add_f32 ", "v_and_b32 ", "v_lshlrev_b32 ", "v_exp", "v_mul_f32 ")) and "0x" not in t else 8
                if t.startswith("s_branch") and pos - last >= c.get("hopgap", 1700):
                    stubs.append(f"L_stub_{len(stubs)}"); out_.append(f"{stubs[-1]}:\n  s_setpc_b64 s[68:69]"); last = pos
            stubs = stubs[1:]
            h = []
            for w in range(8):
                h.append(f"  s_cmp_lg_u32 s{sWAVE}, {w}\n  s_cbranch_scc1 L_hop_{w}")
                h += [f"  s_call_b64 s[68:69], {st}" for st in stubs[w::8]]
                h.append(f"  s_branch L_hop_end\nL_hop_{w}:")
            h.append("L_hop_end:")
            body = "\n".join(out_).replace("  HOPS", "\n".join(h))
        nk = c["prefkib"]
        out = HEADER + f"; @launch grid=(256,1,1) block=(768,1,1) lds={L_V + 8192*c['NV']}\n"
        out += '.amdgcn_target "amdgcn-amd-amdhsa--gfx950"\n.text\n'
        out += f".globl {KNAME}\n.p2align 8\n.type {KNAME},@function\n" + body
        out += "  .fill 64, 4, 0xbf800000\n"
        if c["spref"]: nk += 1
        if c["pref"] or c["pref2"] or c["spref"]:
            out += f"L_codeend:\n.if (L_codeend - {KNAME}) < {nk*1024}\n.fill ({nk*1024} - (L_codeend - {KNAME}))/4, 4, 0xbf800000\n.endif\n"
        out += f""".section .rodata,"a"
.p2align 6
.amdhsa_kernel {KNAME}
  .amdhsa_next_free_vgpr 168
  .amdhsa_next_free_sgpr 102
  .amdhsa_accum_offset 168
  .amdhsa_group_segment_fixed_size 0
  .amdhsa_kernarg_size 112
  .amdhsa_user_sgpr_count 2
  .amdhsa_user_sgpr_kernarg_segment_ptr 1
  .amdhsa_system_sgpr_workgroup_id_x 1
  .amdhsa_float_denorm_mode_32 3
.end_amdhsa_kernel
"""
        return out

def gen(**cfg): return Gen(**cfg).build()

if __name__ == "__main__":
    import json
    cfg = json.loads(sys.argv[2]) if len(sys.argv) > 2 else {}
    open(sys.argv[1], "w").write(gen(**cfg))
```

```python
import sys, struct
from asmlib import fix_hazards

KNAME = "adaLN_cond__sliding_block_cached__glu_gated_glu__decode_kernel"

HEADER = """; Kernarg layout for this problem (112 bytes, ptrs only, base s[0:1]):
;   offset  32: d_in[4] A_wo  shape=(4096, 512) dtype=bfloat16
;   offset  80: d_in[10] w_mod  shape=(512, 3072) dtype=bfloat16
;   offset 104: d_ws      workspace
; One persistent launch, one workgroup per (batch b, head h), 12 waves:
;  * waves 8-11 (helpers) hold the wq / wo slice of the head in registers: LayerNorm + adaLN modulation, q projection,
;  Every bf16 rounding of the reference is reproduced. Hand-offs between workgroups go through d_ws and are validated
;  with a per-launch nonce published in d_debug (checksums / tagged granules), so stale workspace contents are never used.
;  The s_sleep instructions are back-offs of the spin-waits (polling too early slows the writers down).
"""

WS_MOD, WS_STAT, WS_MARK, WS_ACC, WS_QTAG, WS_HINT, WS_INBOX, WS_QIN, WS_DUMP, WS_STAMP = 0x0, 0xC000, 0xD000, 0x10000, 0x18000, 0x20000, 0x40000, 0x1C0000, 0x200000, 0x20000000
F_H, F_Q, F_Q2, F_ST, F_O, F_MOD, F_MOD2, F_C, F_P, F_W, F_K, F_A, F_R, F_N, F_HS, F_RK = 0, 4, 8, 12, 16, 20, 24, 28, 32, 36, 40, 44, 48, 52, 56, 0x80
L_STATS, L_QB, L_OP, L_OB, L_HBUF, L_QP = 0x40, 0x100, 0x200, 0x1200, 0x1600, 0x2600
L_MODR, L_H2, L_X1, L_GUP, L_HH, L_MODP = 0x2200, 0x4A00, 0x5200, 0x5A00, 0x6A00, 0x7000
L_V = 0x7000
L_ROWS = 0x1600

def f2u(x): return struct.unpack("<I", struct.pack("<f", x))[0]
INB = 11264
TAGX = 0x5bd1e995
LOG2E = f2u(1.4426950408889634)
SCALE = f2u(128 ** -0.5)
LOG2E_LO = f2u(1.4426950408889634074 - struct.unpack('<f', struct.pack('<I', LOG2E))[0])
LN2 = f2u(0.6931471805599453)

sX, sK, sV, sWQ, sWO, sG, sU, sDN, sC, sWM, sOUT, sDBG, sWS = 4, 6, 8, 10, 12, 16, 18, 20, 22, 24, 26, 28, 30
sWAVE, sXCD, sIDX, sB, sJ, sH, sSL, sFFN = 32, 33, 34, 35, 36, 37, 38, 39
sOFF = 40
SRDA, SRDB = 48, 52
sPLO, sPHI, sGUARD, sLOG2E = 62, 63, 64, 66
sHW = 67
vLANE, vL16, vG, vJ, vZ, vONE = 0, 1, 2, 3, 38, 39

def sp(r): return f"s[{r}:{r+1}]"
def sq(r): return f"s[{r}:{r+3}]"
def vp(r): return f"v[{r}:{r+1}]"
def vq(r): return f"v[{r}:{r+3}]"

class Gen:
    def __init__(self, **cfg):
        self.c = dict(D=4, HD=4, HD0=6, HDO=4, P0=24, stamps=False, dump=False, guard=200000, pref=False,
                      inbox_sleep=6, hint_sleep=2, Dodd=None, pref2=False, prefwg=16, prefkib=26, hint_at=28, poll_sleep=8, NV=16, depth=[3.15, 3.15, 4, 3.15], FD=4, NF0=0, HDOf=4, H0D=4, H0D1=2, prio=2, nowo=False, wo_at=None, abl=None, init_mode='full', ablD=7, H0DQ=18, H0pre=True, fillD=4, nofill=False, q_sleep0=8, q_sleep=8, a_sleep=16, xskip=[], plainA=True, down_late=False, wofl='', tlb=0, modlag=2, HDf=4, ffnfl='', HDP=2, HDPf=2, PQ=23, kfl=' nt', vfl=' nt', hmap=0, wqpat=32, full_sleep=0, hint_lag=3, PB=2, fmode='flood', PR=8, wqpf=3, wqpfD=16, wqfl='', wqx=0, sprint=58, prodb=2, o_sleep=1, depth2=[3.15, 3.15, 4, 3.6], dsw=34, gran=4, outfl=' sc1', hprio=2, sprio=1, sprio_off=31, dry=True, prefidx=13, diag=False, early=True, xdelay=0, modsl=True, rank=[], rankd=[2.7, 2.95, 3.2, 3.6], PBQ=12, wopf=None, wopfw=2, pffl='', wmfl=' nt', hop=False, modil=False, spref=0, wopat=8, rxfl=' sc1', accfl=' sc1', txfl=' sc1', late_delay=10, sub=False, dryo=False, gate=False, oadd=False, fast0=True, read_delay=18, barD=False, rx_sleep=8, rx_delay=14)
        self.c.update(cfg)
        self.L = []
        self.nlab = 0

    def A(self, s): self.L.append(s)
    def lab(self, base):
        self.nlab += 1
        return f"L_{base}_{self.nlab}"
    def stamp(self, k):
        if self.c["stamps"]: self.A(f"  s_memrealtime s[{70+2*k}:{71+2*k}]")
    def cstamp(self, k):
        if self.c["stamps"]:
            self.A(f"  s_waitcnt lgkmcnt(0)\n  s_mul_i32 s{70+2*k}, s{sGUARD}, 100\n  s_add_u32 s{70+2*k}, s{70+2*k}, s70\n  s_addc_u32 s{71+2*k}, s71, 0")
    def guard(self):
        if self.c["guard"]:
            self.A(f"  s_add_u32 s{sGUARD}, s{sGUARD}, 1\n  s_cmp_gt_u32 s{sGUARD}, {self.c['guard']}\n  s_cbranch_scc1 L_exit")
    def exec1(self): self.A("  s_mov_b64 exec, 1")
    def execall(self): self.A("  s_mov_b64 exec, -1")

    def lds_spin(self, off, target, tmp, sleep=1):
        l = self.lab("spin"); d = self.lab("spun")
        self.A(f"{l}:")
        self.A(f"  ds_read_b32 v{tmp}, v{vZ} offset:{off}\n  s_waitcnt lgkmcnt(0)\n  v_readfirstlane_b32 s60, v{tmp}")
        self.A(f"  s_cmp_ge_u32 s60, {target}\n  s_cbranch_scc1 {d}")
        self.guard()
        if sleep: self.A(f"  s_sleep {sleep}")
        self.A(f"  s_branch {l}\n{d}:")

    def lds_inc(self, off):
        self.exec1(); self.A(f"  ds_add_u32 v{vZ}, v{vONE} offset:{off}"); self.execall()

    def dumpv(self, reg, n, base, sidx=None, stride=0, tmp=36):
        if not self.c["dump"]: return
        A = self.A
        if sidx is not None:
            A(f"  s_mul_i32 s68, s{sidx}, {stride}\n  s_add_u32 s68, s68, {WS_DUMP + base}")
        else:
            A(f"  s_mov_b32 s68, {WS_DUMP + base}")
        A(f"  v_lshlrev_b32 v{tmp}, {dict([(1,2),(2,3),(4,4)])[n]}, v{vLANE}\n  v_add_u32 v{tmp}, s68, v{tmp}")
        op = {1: "dword", 2: "dwordx2", 4: "dwordx4"}[n]
        r = f"v{reg}" if n == 1 else f"v[{reg}:{reg+n-1}]"
        A(f"  global_store_{op} v{tmp}, {r}, {sp(sWS)}\n  s_waitcnt vmcnt(0)")

    def prefetch(self, wait=False):
        A = self.A
        l = self.lab("nopref"); lp = self.lab("pref"); pc = self.lab("pc")
        A(f"  s_cmp_lg_u32 s{sWAVE}, 11\n  s_cbranch_scc1 {l}\n  s_cmp_lg_u32 s{sIDX}, {self.c['prefidx']}\n  s_cbranch_scc1 {l}")
        A(f"  s_getpc_b64 s[60:61]\n{pc}:\n  s_sub_u32 s60, s60, {pc}-{KNAME}\n  s_subb_u32 s61, s61, 0\n  v_mov_b32 v36, v{vL16}\n  s_mov_b32 s65, {self.c['prefkib']}")
        A(f"{lp}:\n  global_load_dword v35, v36, s[60:61]\n  v_add_u32 v36, 1024, v36\n  s_sub_u32 s65, s65, 1\n  s_cmp_lg_u32 s65, 0\n  s_cbranch_scc1 {lp}")
        if wait: A("  s_waitcnt vmcnt(0)")
        A(f"{l}:")

    def rnd1(self, x, t):
        self.A(f"  v_cvt_pk_bf16_f32 v{t}, v{x}, v{x}\n  v_and_b32 v{x}, 0xffff0000, v{t}")
    def rnd2(self, x, y, t):
        self.A(f"  v_cvt_pk_bf16_f32 v{t}, v{x}, v{y}\n  v_lshlrev_b32 v{x}, 16, v{t}\n  v_and_b32 v{y}, 0xffff0000, v{t}")
    def rnd8(self, X, T):
        for i in range(4): self.A(f"  v_cvt_pk_bf16_f32 v{T+i}, v{X+2*i}, v{X+2*i+1}")
        self.unpack8(T, X)
    def unpack8(self, src, dst):
        for i in range(4):
            self.A(f"  v_lshlrev_b32 v{dst+2*i}, 16, v{src+i}\n  v_and_b32 v{dst+2*i+1}, 0xffff0000, v{src+i}")
    def expv(self, pairs, neg=False):
        A = self.A; n = "-" if neg else ""
        for d, x, t in pairs: A(f"  v_mul_f32 v{d}, s{sLOG2E}, v{x}")
        for d, x, t in pairs: A(f"  v_fma_f32 v{t}, v{x}, s{sLOG2E}, -v{d}")
        for d, x, t in pairs: A(f"  v_exp_f32 v{d}, {n}v{d}")
        for d, x, t in pairs: A(f"  v_fmac_f32 v{t}, {LOG2E_LO:#x}, v{x}")
        for d, x, t in pairs: A(f"  v_mul_f32 v{t}, {(LN2 | 0x80000000) if neg else LN2:#x}, v{t}")
        for d, x, t in pairs: A(f"  v_fmac_f32 v{d}, v{d}, v{t}")
    def divv(self, items):
        A = self.A
        for q, a, b, r, t in items: A(f"  v_rcp_f32 v{r}, v{b}")
        for q, a, b, r, t in items: A(f"  v_fma_f32 v{t}, -v{b}, v{r}, 1.0")
        for q, a, b, r, t in items: A(f"  v_fmac_f32 v{r}, v{t}, v{r}")
        for q, a, b, r, t in items:
            if a == "1.0": A(f"  v_fma_f32 v{t}, -v{b}, v{r}, 1.0")
            else: A(f"  v_mul_f32 v{q}, v{a}, v{r}")
        for q, a, b, r, t in items:
            if a == "1.0": A(f"  v_fma_f32 v{q}, v{t}, v{r}, v{r}")
            else: A(f"  v_fma_f32 v{t}, -v{q}, v{b}, v{a}")
        for q, a, b, r, t in items:
            if a != "1.0": A(f"  v_fmac_f32 v{q}, v{t}, v{r}")

    def wave_reduce(self, op, regs, full=True):
        steps = []
        if full: steps += ["quad_perm:[1,0,3,2] row_mask:0xf bank_mask:0xf", "quad_perm:[2,3,0,1] row_mask:0xf bank_mask:0xf"]
        steps += ["row_ror:4 row_mask:0xf bank_mask:0xf", "row_ror:8 row_mask:0xf bank_mask:0xf",
                  "row_bcast:15 row_mask:0xa bank_mask:0xf", "row_bcast:31 row_mask:0xc bank_mask:0xf"]
        for s in steps:
            for r in regs: self.A(f"  {op}_dpp v{r}, v{r}, v{r} {s}")

    def pk8(self, op, D, Aq, Bq):
        for i in range(0, 8, 2): self.A(f"  v_pk_{op}_f32 {vp(D+i)}, {vp(Aq+i)}, {vp(Bq+i)}")

    def layernorm(self, X, T, S):
        A = self.A
        A(f"  v_readfirstlane_b32 s60, v{X}")
        for i in range(0, 8, 2): A(f"  v_pk_add_f32 {vp(T+i)}, {vp(X+i)}, s[60:61] op_sel_hi:[1,0] neg_lo:[0,1] neg_hi:[0,1]")
        A(f"  v_pk_add_f32 {vp(S)}, {vp(T)}, {vp(T+2)}\n  v_pk_mul_f32 {vp(S+2)}, {vp(T)}, {vp(T)}")
        A(f"  v_pk_add_f32 {vp(S)}, {vp(S)}, {vp(T+4)}\n  v_pk_fma_f32 {vp(S+2)}, {vp(T+2)}, {vp(T+2)}, {vp(S+2)}")
        A(f"  v_pk_add_f32 {vp(S)}, {vp(S)}, {vp(T+6)}\n  v_pk_fma_f32 {vp(S+2)}, {vp(T+4)}, {vp(T+4)}, {vp(S+2)}")
        A(f"  v_add_f32 v{S}, v{S}, v{S+1}\n  v_pk_fma_f32 {vp(S+2)}, {vp(T+6)}, {vp(T+6)}, {vp(S+2)}\n  v_add_f32 v{S+1}, v{S+2}, v{S+3}")
        self.wave_reduce("v_add_f32", [S, S + 1])
        A(f"  v_readlane_b32 s61, v{S}, 63\n  v_readlane_b32 s65, v{S+1}, 63")
        inv = f2u(1.0 / 512)
        A(f"  v_mov_b32 v{S+2}, {inv:#x}")
        A(f"  v_mul_f32 v{S}, s61, v{S+2}\n  v_mul_f32 v{S+1}, s65, v{S+2}")
        A(f"  v_fma_f32 v{S+1}, -v{S}, v{S}, v{S+1}\n  v_add_f32 v{S}, s60, v{S}\n  v_max_f32 v{S+1}, 0, v{S+1}")
        self.rnd2(S, S + 1, S + 2)
        A(f"  v_add_f32 v{S+1}, {f2u(1e-5):#x}, v{S+1}")
        for i in range(0, 4, 2): A(f"  v_pk_add_f32 {vp(X+i)}, {vp(X+i)}, {vp(S)} op_sel_hi:[1,0] neg_lo:[0,1] neg_hi:[0,1]")
        A(f"  v_cvt_pk_bf16_f32 v{S+2}, v{S+1}, v{S+1}")
        for i in range(4, 8, 2): A(f"  v_pk_add_f32 {vp(X+i)}, {vp(X+i)}, {vp(S)} op_sel_hi:[1,0] neg_lo:[0,1] neg_hi:[0,1]")
        A(f"  v_and_b32 v{S+1}, 0xffff0000, v{S+2}\n  v_sqrt_f32 v{S+1}, v{S+1}")
        for i in range(4): A(f"  v_cvt_pk_bf16_f32 v{T+i}, v{X+2*i}, v{X+2*i+1}")
        self.rnd1(S + 1, S + 2)
        A(f"  v_rcp_f32 v{S+2}, v{S+1}")
        self.unpack8(T, X)
        for i in range(0, 8, 2): A(f"  v_pk_mul_f32 {vp(X+i)}, {vp(X+i)}, {vp(S+2)} op_sel_hi:[1,0]")
        self.rnd8(X, T)

    def transpose_block(self, B, t0, t1):
        A = self.A
        R = lambda e, t: B + 4 * e + t
        lo = lambda d, a, b: A(f"  v_perm_b32 v{d}, v{b}, v{a}, s{sPLO}")
        hi = lambda d, a, b: A(f"  v_perm_b32 v{d}, v{b}, v{a}, s{sPHI}")
        for p in range(4):
            a, b = R(2 * p, p), R(2 * p + 1, p)
            lo(t0, a, b); hi(b, a, b); A(f"  v_mov_b32 v{a}, v{t0}")
            for t in range(p + 1, 4):
                a, b, c, d = R(2 * p, t), R(2 * p + 1, t), R(2 * t, p), R(2 * t + 1, p)
                lo(t0, a, b); hi(t1, a, b); lo(a, c, d); hi(b, c, d)
                A(f"  v_mov_b32 v{c}, v{t0}\n  v_mov_b32 v{d}, v{t1}")

    def transpose_x2(self, Rb, Bb):
        for c in range(4):
            for p in range(4):
                a, b = Rb + 2 * (2 * p) + (c >> 1), Rb + 2 * (2 * p + 1) + (c >> 1)
                self.A(f"  v_perm_b32 v{Bb+4*c+p}, v{b}, v{a}, s{sPHI if c & 1 else sPLO}")

    def gemv32(self, body=False):
        res = [24] + [40 + 4 * k for k in range(7)]
        if self.c["sub"] and not body:
            pc = self.lab("call")
            self.A(f"  s_getpc_b64 s[60:61]\n{pc}:\n  s_add_u32 s60, s60, L_gemv-{pc}\n  s_addc_u32 s61, s61, 0\n  s_swappc_b64 s[42:43], s[60:61]\n  s_nop 7")
            return res
        for c in range(8):
            for m in range(4):
                self.A(f"  v_mfma_f32_16x16x32_bf16 {vq(res[c])}, {vq(8+4*m)}, {vq(40+32*m+4*c)}, {'0' if m == 0 else vq(res[c])}")
        return res

    def wload32(self, srd, steps, D, frac=None, hooks=None, fl=None):
        A = self.A
        done = 0
        for i in range(32):
            dd = D
            if frac is not None and int((i + 1) * (D - frac)) != int(i * (D - frac)): dd = D - 1
            if i >= dd: A(f"  s_waitcnt vmcnt({dd-1})")
            if hooks and i in hooks: hooks[i]()
            A(f"  buffer_load_dwordx4 {vq(40+4*i)}, v4, {sq(srd)}, s40 offen{self.c['wofl'] if fl is None else fl}")
            if i < 31: A(f"  s_add_u32 s40, s40, {steps[i]}")
            landed = i - D + 1 if i >= D else 0
            if landed >= 8 * (done + 1):
                self.transpose_block(40 + 32 * done, 5, 6); done += 1
        while done < 4:
            A(f"  s_waitcnt vmcnt({8*(3-done)})")
            self.transpose_block(40 + 32 * done, 5, 6); done += 1

    def init_duty(self, wave):
        A = self.A
        l2 = self.lab("inited"); l3 = self.lab("noinit")
        A(f"  s_cmp_lg_u32 s{sWAVE}, {wave}\n  s_cbranch_scc1 {l3}")
        mark = len(self.L)
        A("  v_mov_b32 v8, -1\n  v_mov_b32 v9, -1\n  v_mov_b32 v10, -1\n  v_mov_b32 v11, -1")
        A(f"  s_lshl_b32 s60, s2, 12\n  s_add_u32 s60, s60, {WS_QIN}\n  v_add_u32 v5, s60, v{vL16}")
        for i in range(4): A(f"  global_store_dwordx4 v5, {vq(8)}, {sp(sWS)} offset:{1024*i} sc1")
        A(f"  s_cmp_eq_u32 s{sFFN}, 0\n  s_cbranch_scc1 {l2}\n  s_cmp_ge_u32 s{sSL}, 32\n  s_cbranch_scc1 {l2}")
        A(f"  s_lshl_b32 s60, s{sJ}, 5\n  s_add_u32 s60, s60, s{sSL}\n  s_mul_i32 s60, s60, 6144\n  s_add_u32 s60, s60, {WS_INBOX + 2048}\n  v_add_u32 v5, s60, v{vL16}")
        for i in range(6): A(f"  global_store_dwordx4 v5, {vq(8)}, {sp(sWS)} offset:{1024*i - 2048} sc1")
        A(f"  s_cmp_ge_u32 s{sSL}, 8\n  s_cbranch_scc1 {l2}")
        A("  v_mov_b32 v12, 0\n  v_mov_b32 v13, 0\n  v_mov_b32 v14, 0\n  v_mov_b32 v15, 0")
        A(f"  s_lshl_b32 s60, s{sJ}, 3\n  s_add_u32 s60, s60, s{sSL}\n  s_lshl_b32 s60, s60, 10\n  s_add_u32 s60, s60, {WS_ACC}\n  v_add_u32 v5, s60, v{vL16}")
        A(f"  global_store_dwordx4 v5, {vq(12)}, {sp(sWS)} sc1")
        if self.c["init_mode"] == "nostore": self.L[mark:] = []
        A(f"{l2}:\n  s_waitcnt vmcnt(0)")
        if self.c["init_mode"] != "noticket":
            A(f"  s_mov_b32 s65, 1\n  s_atomic_add s65, {sp(sDBG)}, 0x4 glc\n  s_waitcnt lgkmcnt(0)")
            A(f"  s_cmp_lg_u32 s65, 255\n  s_cbranch_scc1 {l3}\n  s_mov_b32 s65, 1\n  s_atomic_add s65, {sp(sDBG)}, 0x84")
        A(f"{l3}:")

    def streamer(self, D, tag):
        A = self.A; c = self.c
        T = lambda n: 40 + 4 * n
        issued = []
        def issue(name, srd, n):
            A(f"  buffer_load_dwordx4 {vq(T(n))}, v{vL16}, {sq(srd)}, s{sOFF + (n >> 2)} offen offset:{1024*(n&3)}{c['kfl']}")
            issued.append(name)
        def rmask(d):
            def mk(fr):
                m = 0; acc = 0.5
                for n in range(64):
                    acc += fr
                    if acc >= 1.0 - 1e-9:
                        acc -= 1.0
                        if n < c["sprint"]: m |= 1 << n
                return m
            m1 = mk(min(1.0, D - d)); return m1, mk(max(0.0, D - 1 - d)) & m1
        def rank_hook(n):
            for st, n0 in enumerate(c["rank"]):
                if n == n0:
                    l = self.lab("rk")
                    A(f"  s_cmp_lg_u32 s{sWAVE}, 0\n  s_cbranch_scc1 {l}\n  ds_read_b32 v12, v{vZ} offset:{F_C}\n  s_mov_b32 s4, -1\n  s_waitcnt lgkmcnt(0)\n  v_readfirstlane_b32 s60, v12\n  s_cmp_eq_u32 s60, 0\n  s_cbranch_scc1 {l}\n  s_cmp_lt_u32 s57, 100\n  s_cbranch_scc1 {l}")
                    A(f"  s_lshl_b32 s60, s{sB}, 12\n  s_add_u32 s60, s60, {WS_ACC + 3328 + 128 * st}\n  s_mov_b32 s4, 1\n  s_atomic_add s4, {sp(sWS)}, s60 glc\n{l}:")
                if n == n0 + 3:
                    l = self.lab("rk")
                    A(f"  s_cmp_lg_u32 s{sWAVE}, 0\n  s_cbranch_scc1 {l}\n  s_waitcnt lgkmcnt(0)\n  s_add_u32 s4, s4, 1\n  v_mov_b32 v12, s4\n  ds_write_b32 v{vZ}, v12 offset:{F_RK + 4 * st}\n{l}:")
                if n == n0 + 4: A(f"  ds_read_b32 v13, v{vZ} offset:{F_RK + 4 * st}")
                if n == n0 + 5:
                    l = self.lab("rk")
                    A(f"  s_waitcnt lgkmcnt(0)\n  v_readfirstlane_b32 s60, v13\n  s_cmp_eq_u32 s60, 0\n  s_cbranch_scc1 {l}")
                    nq = len(c["rankd"])
                    for qi, d in enumerate(c["rankd"]):
                        m1, m2 = rmask(d)
                        if qi == 0:
                            A(f"  s_mov_b32 s58, {m1 & 0xffffffff:#x}\n  s_mov_b32 s59, {m1 >> 32:#x}\n  s_mov_b32 s14, {m2 & 0xffffffff:#x}\n  s_mov_b32 s15, {m2 >> 32:#x}")
                        else:
                            A(f"  s_cmp_gt_u32 s60, {24 * qi // nq}\n  s_cselect_b32 s58, {m1 & 0xffffffff:#x}, s58\n  s_cselect_b32 s59, {m1 >> 32:#x}, s59\n  s_cselect_b32 s14, {m2 & 0xffffffff:#x}, s14\n  s_cselect_b32 s15, {m2 >> 32:#x}, s15")
                    A(f"{l}:")
        def pace():
            n = len(issued)
            rank_hook(n)
            if n >= D: A(f"  s_waitcnt vmcnt({D-1})")
            if n >= D - 2 and n < 64:
                l = self.lab("pc")
                A(f"  s_bitcmp1_b64 s[58:59], {n}\n  s_cbranch_scc0 {l}\n  s_waitcnt vmcnt({D-2})")
                A(f"  s_bitcmp1_b64 s[14:15], {n}\n  s_cbranch_scc0 {l}\n  s_waitcnt vmcnt({D-3})\n{l}:")
        def waitfor(name):
            A(f"  s_waitcnt vmcnt({len(issued) - 1 - issued.index(name)})")
        lnp = self.lab("noprod"); lj = self.lab("joined")
        E = 2 if c["fast0"] else 0
        NJ = (E + 8 + D - 1 if c["modil"] else (E + D if c["modsl"] else D)) + c["modlag"]
        assert NJ <= 16
        A(f"  s_cmp_ge_u32 s57, {48 if (c['abl'] is None or 'mod' in c['abl']) else 0}\n  s_cbranch_scc1 {lnp}")
        self.mod_loads()
        if c["modil"]:
            self.mod_w(0)
            A("  s_barrier")
            for i in range(8):
                if i:
                    A(f"  s_waitcnt vmcnt({D-1})"); self.mod_w(i)
                A(f"  s_waitcnt vmcnt({D-1})"); issue(f"K{E+i}", SRDA, E + i)
                if i == 2:
                    self.mod_compute_a(); A(f"  s_load_dword s3, {sp(sDBG)}, 0x80")
            for n in range(E + 8, E + 8 + D - 1):
                A(f"  s_waitcnt vmcnt({D-1})"); issue(f"K{n}", SRDA, n)
            self.stamp(9)
            self.mod_compute_b()
            for n in range(E + 8 + D - 1, NJ):
                A(f"  s_waitcnt vmcnt({D-1})"); issue(f"K{n}", SRDA, n)
        elif c["modsl"]:
            A("  s_barrier")
            self.mod_compute_a()
            A(f"  s_load_dword s3, {sp(sDBG)}, 0x80")
            for n in range(E, E + D):
                A(f"  s_waitcnt vmcnt({D-1})"); issue(f"K{n}", SRDA, n)
            self.stamp(9)
            self.mod_compute_b()
            for n in range(E + D, NJ):
                A(f"  s_waitcnt vmcnt({D-1})"); issue(f"K{n}", SRDA, n)
        else:
            A("  s_barrier")
            self.mod_compute_a()
            A(f"  s_waitcnt vmcnt({c['prio']})")
            for n in range(E, D - 1): issue(f"K{n}", SRDA, n)
            A(f"  s_load_dword s3, {sp(sDBG)}, 0x80")
            A(f"  s_waitcnt vmcnt({D-1-E})")
            self.stamp(9)
            self.mod_compute_b()
            for n in range(D - 1, NJ):
                A(f"  s_waitcnt vmcnt({D-1})"); issue(f"K{n}", SRDA, n)
        self.mod_compute_c()
        self.stamp(14)
        if c["wo_at"] is not None and c["wo_at"] < NJ: self.lds_inc(F_K)
        A(f"  s_branch {lj}\n{lnp}:")
        issued.clear()
        for n in range(32):
            if n == NJ: A(f"{lj}:")
            if n < E: issued.append(f"K{n}")
            else: pace(); issue(f"K{n}", SRDA, n)
            if n == 0 and not E: self.stamp(8)
            if n in (4, 8, 16, 24): self.stamp({4: 10, 8: 11, 16: 12, 24: 13}[n])
            if n == c["wo_at"]: self.lds_inc(F_K)
            if c["sprio"] and n == c["sprio_off"]: A("  s_setprio 0")
            if n == D - 3:
                A("  s_barrier")
                self.stamp(9)
            if n == NJ:
                A(f"  v_lshrrev_b32 v12, 1, v{vJ}\n  v_and_b32 v13, 1, v{vJ}\n  v_mov_b32 v14, 0xffff\n  v_lshlrev_b32 v13, 4, v13\n  v_lshlrev_b32 v14, v13, v14")
                for j in range(4):
                    A(f"  v_cmp_eq_u32 vcc, {j}, v12\n  v_cndmask_b32 v{4+j}, 0, v14, vcc")
        NV = c["NV"]
        slot = lambda n: T(32 - NV + n) if n < NV else T(n - NV)
        l = self.lab("nomodchk")
        A(f"  s_cmp_ge_u32 s57, {48 if (c['abl'] is None or 'mod' in c['abl']) else 0}\n  s_cbranch_scc1 {l}")
        self.lds_spin(F_MOD2, 8, 12)
        A(f"{l}:")
        for n in range(NV):
            if n % 4 == 0: A(f"  s_add_u32 m0, s56, {4096 * (n // 4)}")
            pace()
            A(f"  buffer_load_dwordx4 v{vL16}, {sq(SRDB)}, s{sOFF + (n >> 2)} offen offset:{1024*(n&3)}{c['vfl']} lds")
            issued.append(f"V{n}")
        self.stamp(1)
        self.lds_spin(F_Q2, 1, 12)
        self.stamp(2)
        A(f"  v_lshlrev_b32 v12, 4, v{vJ}\n  ds_read_b128 {vq(8)}, v12 offset:{L_QB}\n  s_waitcnt lgkmcnt(0)")
        def qk(G):
            z = 18 + G
            for r in range(4):
                for t in range(4):
                    A(f"  v_dot2_f32_bf16 v{12+t}, v{T(4*G+t)+r}, v{8+r}, {'0' if r == 0 else f'v{12+t}'}")
            A(f"  v_add_f32_dpp v16, v12, v12 row_ror:8 row_mask:0xf bank_mask:0x3")
            A(f"  v_add_f32_dpp v17, v14, v14 row_ror:8 row_mask:0xf bank_mask:0x3")
            A(f"  v_add_f32_dpp v16, v13, v13 row_ror:8 row_mask:0xf bank_mask:0xc")
            A(f"  v_add_f32_dpp v17, v15, v15 row_ror:8 row_mask:0xf bank_mask:0xc")
            A(f"  v_add_f32_dpp v{z}, v16, v16 row_shl:4 row_mask:0xf bank_mask:0x5")
            A(f"  v_add_f32_dpp v{z}, v17, v17 row_shr:4 row_mask:0xf bank_mask:0xa")
            A(f"  v_add_f32_dpp v{z}, v{z}, v{z} quad_perm:[1,0,3,2] row_mask:0xf bank_mask:0xf")
            A(f"  v_add_f32_dpp v{z}, v{z}, v{z} quad_perm:[2,3,0,1] row_mask:0xf bank_mask:0xf")
        nv = NV
        def nextv():
            nonlocal nv
            pace()
            A(f"  buffer_load_dwordx4 {vq(slot(nv))}, v{vL16}, {sq(SRDB)}, s{sOFF + (nv >> 2)} offen offset:{1024*(nv&3)}{c['vfl']}")
            issued.append(f"V{nv}"); nv += 1
        qk(0)
        groups = list(range(1, 7))
        per = -(-len(groups) // D)
        for i in range(D):
            nextv()
            for G in groups[i * per:(i + 1) * per]: qk(G)
        qk(7)
        if NV:
            A(f"  v_add_u32 v34, s56, v{vL16}")
            for n in range(NV): A(f"  ds_read_b128 {vq(slot(n))}, v34 offset:{1024*n}")
        A(f"  s_mov_b32 s60, {SCALE:#x}")
        for i in range(4): self.rnd2(18 + 2 * i, 19 + 2 * i, 12 + i)
        for i in range(8): A(f"  v_mul_f32 v{18+i}, s60, v{18+i}")
        for i in range(4): self.rnd2(18 + 2 * i, 19 + 2 * i, 12 + i)
        A("  v_max3_f32 v12, v18, v19, v20\n  v_max3_f32 v13, v21, v22, v23\n  v_max3_f32 v12, v12, v24, v25\n  v_max_f32 v12, v12, v13")
        self.wave_reduce("v_max_f32", [12], full=False)
        A("  v_readlane_b32 s61, v12, 63")
        for half in range(2):
            for i in range(4): A(f"  v_subrev_f32 v{26+i}, s61, v{18+4*half+i}")
            for i in range(4): A(f"  v_max_f32 v{26+i}, 0xc3480000, v{26+i}")
            self.expv([(30 + i, 26 + i, 8 + i) for i in range(4)])
            A("  v_add_f32 v14, v30, v31\n  v_add_f32 v15, v32, v33")
            A("  v_add_f32 v13, v14, v15" if half == 0 else "  v_add_f32 v14, v14, v15\n  v_add_f32 v13, v13, v14")
        self.wave_reduce("v_add_f32", [13], full=False)
        A(f"  s_lshl_b32 s60, s{sWAVE}, 3\n  v_mov_b32 v14, s60")
        A("  s_mov_b32 exec_lo, 0\n  s_mov_b32 exec_hi, 0x80000000")
        A(f"  ds_write_b64 v14, v[12:13] offset:{L_STATS}\n  ds_add_u32 v{vZ}, v{vONE} offset:{F_ST}")
        self.execall()
        nextv(); nextv()
        self.lds_spin(F_ST, 8, 12)
        A(f"  v_and_b32 v14, 7, v{vLANE}\n  v_lshlrev_b32 v14, 3, v14\n  ds_read_b64 v[12:13], v14 offset:{L_STATS}\n  s_waitcnt lgkmcnt(0)")
        red8 = ["quad_perm:[1,0,3,2]", "quad_perm:[2,3,0,1]", "row_ror:4"]
        A("  v_mov_b32 v14, v12")
        for s in red8: A(f"  v_max_f32_dpp v14, v14, v14 {s} row_mask:0xf bank_mask:0xf")
        A(f"  v_sub_f32 v12, v12, v14\n  v_max_f32 v12, 0xc3480000, v12")
        self.expv([(15, 12, 16)])
        A("  v_mul_f32 v13, v13, v15")
        for s in red8: A(f"  v_add_f32_dpp v13, v13, v13 {s} row_mask:0xf bank_mask:0xf")
        for half in range(2):
            for i in range(4): A(f"  v_sub_f32 v{8+i}, v{18+4*half+i}, v14")
            for i in range(4): A(f"  v_max_f32 v{8+i}, 0xc3480000, v{8+i}")
            self.expv([(26 + 4 * half + i, 8 + i, 34 + i) for i in range(4)])
        self.divv([(15, "1.0", 13, 16, 17)])
        if c["dump"]:
            for i in range(8):
                A(f"  s_lshl_b32 s69, s2, 3\n  s_add_u32 s69, s69, s{sWAVE}\n  s_lshl_b32 s69, s69, 3\n  s_add_u32 s69, s69, {i}")
                self.dumpv(18 + i, 1, 0x100000, 69, 256, tmp=36)
        for i in range(8): A(f"  v_mul_f32 v{26+i}, v{26+i}, v15")
        for i in range(8): A(f"  v_cvt_pk_bf16_f32 v{18+i}, v{26+i}, v{26+i}")
        self.stamp(3)
        npv = 0
        def pv():
            nonlocal npv
            n = npv; npv += 1
            Ab = 26 + 4 * (n & 1)
            bank = [0, 2, 1, 3][n & 3]
            for j in range(4):
                A(f"  v_and_b32_dpp v{Ab+j}, v{18+(n>>2)}, v{4+j} row_newbcast:{4*bank} row_mask:0xf bank_mask:0xf")
            A(f"  v_mfma_f32_16x16x32_bf16 {vq(34)}, {vq(Ab)}, {vq(slot(n))}, {'0' if n == 0 else vq(34)}")
            if n == c["hint_at"] and "HT" not in c["xskip"]:
                l = self.lab("ht")
                self.exec1()
                A(f"  ds_add_rtn_u32 v12, v{vZ}, v{vONE} offset:{F_P}\n  s_mov_b32 s5, 0\n  s_waitcnt lgkmcnt(0)\n  v_readfirstlane_b32 s60, v12")
                self.execall()
                A(f"  s_cmp_lg_u32 s60, 7\n  s_cbranch_scc1 {l}")
                if "HS" in c["xskip"]:
                    A(f"  s_lshl_b32 s60, s{sB}, 12\n  s_lshl_b32 s61, s{sH}, 2\n  s_add_u32 s60, s60, s61\n  s_add_u32 s60, s60, {WS_ACC + 3328}\n  v_mov_b32 v12, s60")
                    self.exec1(); A(f"  global_store_dword v12, v11, {sp(sWS)} sc1"); self.execall(); A(f"{l}:")
                else:
                    A(f"  s_lshl_b32 s60, s{sB}, 12\n  s_add_u32 s60, s60, {WS_ACC + 3072}\n  s_mov_b32 s5, 1\n  s_atomic_add s5, {sp(sWS)}, s60 glc\n{l}:")
            if n == c["hint_at"] + c["hint_lag"] and "HT" not in c["xskip"]:
                l = self.lab("hf")
                A(f"  s_waitcnt lgkmcnt(0)\n  s_cmp_lg_u32 s5, 31\n  s_cbranch_scc1 {l}")
                A(f"  s_mul_i32 s60, s{sB}, {64*128}\n  s_add_u32 s60, s60, {WS_HINT}\n  v_lshl_add_u32 v12, v{vLANE}, 7, s60")
                A(f"  s_mov_b32 exec_hi, 0x7ff\n  global_store_dword v12, v11, {sp(sWS)} sc1"); self.execall()
                A(f"{l}:")
        self.ffn_addr()
        self.lds_spin(F_C, 1, 12)
        A(f"  ds_read_b32 v11, v{vZ} offset:{F_N}")
        def vstep():
            nextv()
            landed = nv - D
            k = 0
            while npv < landed and k < 3:
                pv(); k += 1
        def finish(ffn=False):
            if ffn and c["early"]:
                l = self.lab("eh")
                A(f"  s_cmp_lg_u32 s{sWAVE}, 0\n  s_cbranch_scc1 {l}")
                A(f"  s_lshl_b32 s60, s{sJ}, 7\n  s_add_u32 s60, s60, s{sSL}\n  s_lshl_b32 s60, s60, 7\n  s_add_u32 s60, s60, {WS_HINT}\n  s_add_u32 s61, s60, {64*128}")
                A(f"  s_load_dword s8, {sp(sWS)}, s60 glc\n  s_load_dword s9, {sp(sWS)}, s61 glc\n{l}:")
            while npv < 32:
                waitfor(f"V{npv}"); pv()
            A(f"  v_lshlrev_b32 v12, 5, v{vJ}\n  v_lshl_add_u32 v13, v{vG}, 4, v12\n  s_lshl_b32 s60, s{sWAVE}, 9\n  v_add_u32 v12, s60, v13")
            A("  s_mov_b32 exec_hi, 0")
            if c["oadd"]:
                for r in range(4): A(f"  ds_add_f32 v13, v{34+r} offset:{L_OP + 4*r}")
            else:
                A(f"  ds_write_b128 v12, {vq(34)} offset:{L_OP}")
            self.lds_inc(F_O)
            self.stamp(5)
            if ffn and c["early"]:
                l = self.lab("eh2")
                A(f"  s_cmp_lg_u32 s{sWAVE}, 0\n  s_cbranch_scc1 {l}\n  s_waitcnt lgkmcnt(0)\n  v_mov_b32 v12, s8\n  v_mov_b32 v13, s9")
                self.exec1(); A(f"  ds_write_b64 v{vZ}, v[12:13] offset:{F_HS}"); self.execall()
                A(f"{l}:")
        NF0 = c["NF0"]
        while nv < 32 - NF0: vstep()
        assert npv >= NV or NF0 == 0, (npv, NV)
        lf = self.lab("vffn")
        if c["abl"] is None and "T" not in c["xskip"]: A(f"  s_cmp_lg_u32 s{sFFN}, 0\n  s_cbranch_scc1 {lf}")
        st = (nv, npv, list(issued))
        while nv < 32: vstep()
        self.stamp(4)
        finish()
        A("  s_branch L_exit")
        A(f"{lf}:")
        nv, npv = st[0], st[1]; issued[:] = st[2]
        nf = 0
        while nv < 32:
            waitfor(f"V{nv - (D - 1)}")
            A(f"  buffer_load_dwordx4 {vq(slot(nv))}, v{vL16}, {sq(SRDB)}, s{sOFF + (nv >> 2)} offen offset:{1024*(nv&3)}{c['vfl']}")
            issued.append(f"V{nv}"); nv += 1
            self.ffn_load(nf); issued.append(f"F{nf}"); nf += 1
            k = 0
            while npv < nv - D + 1 and k < 3:
                pv(); k += 1
        self.stamp(4)
        finish(True)
        FD = c["FD"]
        if c["fmode"] == "paced":
            while nf < 24:
                if nf >= FD: waitfor(f"F{nf - FD}")
                self.ffn_load(nf); issued.append(f"F{nf}"); nf += 1
                if nf == FD: self.ffn_lds_addr()
                if nf == 8 + FD: self.transpose_x2(120, 40)
                if nf == 16 + FD: self.stamp(15); self.transpose_x2(136, 56)
            return
        while nf < FD:
            self.ffn_load(nf); issued.append(f"F{nf}"); nf += 1
        self.lds_spin(F_A, 4, 12)
        self.stamp(10)
        while nf < 16:
            self.ffn_load(nf); issued.append(f"F{nf}"); nf += 1
        self.ffn_lds_addr()
        if c["stamps"]: waitfor("F15"); self.stamp(15)
        waitfor("F7"); self.transpose_x2(120, 40)
        if c["down_late"]: self.lds_spin(F_R, 2, 12)
        while nf < 24:
            self.ffn_load(nf); issued.append(f"F{nf}"); nf += 1
        waitfor("F15"); self.transpose_x2(136, 56)

    def ffn_addr(self):
        A = self.A
        A(f"  v_cmp_gt_u32 vcc, 8, v{vJ}")
        A(f"  v_mov_b32 v12, s{sU}\n  v_mov_b32 v13, s{sU+1}\n  v_mov_b32 v14, s{sG}\n  v_mov_b32 v15, s{sG+1}")
        A(f"  v_cndmask_b32 v8, v12, v14, vcc\n  v_cndmask_b32 v9, v13, v15, vcc")
        A(f"  s_lshr_b32 s16, s{sJ}, 1\n  s_and_b32 s17, s{sJ}, 1")
        A(f"  s_lshl_b32 s60, s{sWAVE}, 6\n  s_lshl_b32 s61, s16, 5\n  s_add_u32 s60, s60, s61\n  s_lshl_b32 s61, s17, 2\n  s_add_u32 s60, s60, s61")
        A(f"  v_lshl_add_u32 v12, v{vG}, 3, s60\n  v_mul_u32_u24 v12, 2752, v12")
        A(f"  v_and_b32 v13, 7, v{vJ}\n  v_lshl_add_u32 v12, v13, 3, v12\n  s_lshl_b32 s60, s{sSL}, 6\n  v_add_u32 v12, s60, v12\n  v_mov_b32 v13, 0")
        A(f"  v_lshl_add_u64 v[8:9], v[8:9], 0, v[12:13]")
        A(f"  s_mov_b32 s10, 5504\n  s_mov_b32 s11, 0")
        A(f"  s_cmp_eq_u32 s17, 0\n  s_cselect_b32 s60, 4, -4\n  s_cmp_eq_u32 s16, 0\n  s_cselect_b32 s61, 32, -32")
        A(f"  s_sub_i32 s61, s61, s60\n  s_sub_i32 s60, s60, 2\n  s_sub_i32 s61, s61, 2")
        A(f"  s_mul_i32 s12, s60, 2752\n  s_ashr_i32 s13, s12, 31\n  s_mul_i32 s6, s61, 2752\n  s_ashr_i32 s7, s6, 31")
        A(f"  s_mov_b32 s{SRDA}, s{sDN}\n  s_mov_b32 s{SRDA+1}, s{sDN+1}\n  s_mov_b32 s{SRDA+2}, 1409024\n  s_mov_b32 s{SRDA+3}, 0x20000")
        A(f"  v_lshlrev_b32 v10, 13, v{vG}\n  v_lshl_add_u32 v10, v{vJ}, 3, v10")
        A(f"  s_lshl_b32 s18, s{sSL}, 15\n  s_lshl_b32 s19, s{sWAVE}, 7\n  s_add_u32 s18, s18, s19\n  s_add_u32 s19, s18, 4096")

    def ffn_load(self, i):
        A = self.A
        if "W" in self.c["xskip"]:
            A(f"  global_load_dword v17, v{vZ}, {sp(sC)}"); return
        if i < 16:
            A(f"  global_load_dwordx2 {vp(120+2*i)}, v[8:9], off{' offset:2752' if i & 1 else ''}{self.c['ffnfl']}")
            if i & 1 and i < 15:
                step = "s[10:11]" if (i & 3) == 1 else ("s[6:7]" if i == 7 else "s[12:13]")
                A(f"  v_lshl_add_u64 v[8:9], v[8:9], 0, {step}")
        else:
            e = i - 16
            A(f"  buffer_load_dwordx2 {vp(152+2*e)}, v10, {sq(SRDA)}, s{18 + (e >> 2)} offen offset:{1024*(e&3)}{self.c['ffnfl']}")

    def ffn_lds_addr(self):
        A = self.A
        A(f"  v_and_b32 v12, 1, v{vJ}\n  v_lshlrev_b32 v112, 10, v12\n  v_lshl_add_u32 v112, v{vG}, 4, v112\n  s_lshl_b32 s60, s{sWAVE}, 7\n  v_add_u32 v112, s60, v112")
        A(f"  s_lshl_b32 s60, s16, 6\n  s_lshl_b32 s61, s17, 3\n  s_add_u32 s60, s60, s61\n  v_add_u32 v112, s60, v112")
        A(f"  v_xor_b32 v113, 8, v112\n  v_xor_b32 v114, 64, v112\n  v_xor_b32 v115, 0x48, v112")
        A(f"  v_lshlrev_b32 v116, 6, v12\n  v_lshl_add_u32 v116, v{vG}, 4, v116")
        A(f"  v_lshlrev_b32 v117, 5, v{vJ}\n  v_lshl_add_u32 v117, v{vG}, 3, v117\n  s_lshl_b32 s60, s{sWAVE}, 9\n  v_add_u32 v117, s60, v117")
        A(f"  s_lshl_b32 s60, s{sJ}, 5\n  s_lshl_b32 s61, s{sWAVE}, 2\n  s_add_u32 s60, s60, s61\n  v_add_u32 v118, s60, v{vG}\n  v_mul_u32_u24 v118, {INB}, v118")
        A(f"  s_lshl_b32 s60, s{sSL}, 8\n  s_add_u32 s60, s60, {WS_INBOX}\n  v_lshl_add_u32 v12, v{vJ}, 4, s60\n  v_add_u32 v118, v12, v118")

    def streamer_ffn(self):
        A = self.A
        self.stamp(6)
        A("  s_barrier")
        A("L_dry_s:")
        for i in range(4): A(f"  ds_read_b64 {vp(88+2*i)}, v{112+i} offset:{L_H2}")
        A("  s_waitcnt lgkmcnt(2)")
        for cc in range(4): A(f"  v_mfma_f32_16x16x32_bf16 {vq(96+4*cc)}, {vq(88)}, {vq(40+4*cc)}, 0")
        A("  s_waitcnt lgkmcnt(0)")
        for cc in range(4): A(f"  v_mfma_f32_16x16x32_bf16 {vq(96+4*cc)}, {vq(92)}, {vq(56+4*cc)}, {vq(96+4*cc)}")
        def select():
            for g in range(1, 4):
                for r in range(2):
                    A(f"  v_mov_b32_dpp v{96+r}, v{96+4*g+r} quad_perm:[0,1,2,3] row_mask:{1<<g:#x} bank_mask:0xf")
        select()
        A(f"  ds_write_b64 v117, v[96:97] offset:{L_GUP}\n  s_waitcnt lgkmcnt(0)")
        dry = self.c["dry"]
        if dry: A("  s_cbranch_execz L_dry_s2")
        A("  s_barrier")
        A("  s_waitcnt vmcnt(0)"); self.transpose_x2(152, 72)
        A("  s_barrier")
        A("L_dry_s2:")
        A(f"  ds_read_b128 {vq(88)}, v116 offset:{L_HH}\n  s_waitcnt lgkmcnt(0)")
        for cc in range(4): A(f"  v_mfma_f32_16x16x32_bf16 {vq(96+4*cc)}, {vq(88)}, {vq(72+4*cc)}, 0")
        select()
        A(f"  v_mov_b32 v98, v11\n  v_xor_b32 v99, {TAGX:#x}, v11")
        if dry: A("  s_cbranch_execz L_exit")
        A(f"  global_store_dwordx4 v118, {vq(96)}, {sp(sWS)}{self.c['txfl']}")
        self.stamp(7)
        A("  s_branch L_exit2")

    def mod_loads(self):
        A = self.A
        A(f"  v_and_b32 v4, 7, v{vJ}\n  v_lshrrev_b32 v5, 3, v{vJ}\n  v_lshlrev_b32 v6, 10, v4\n  v_lshl_add_u32 v6, v5, 6, v6\n  v_lshl_add_u32 v6, v{vG}, 4, v6")
        A(f"  s_lshl_b32 s60, s{sWAVE}, 7\n  v_add_u32 v6, s60, v6")
        A(f"  global_load_dwordx4 {vq(8)}, v6, {sp(sC)}")
        A(f"  v_lshlrev_b32 v7, 5, v5\n  v_lshl_add_u32 v7, v{vG}, 3, v7\n  v_mul_u32_u24 v7, 6144, v7\n  v_lshl_add_u32 v7, v4, 4, v7")
        A(f"  s_mul_i32 s60, s{sWAVE}, {64*6144}\n  s_lshl_b32 s61, s57, 7\n  s_add_u32 s60, s60, s61\n  v_add_u32 v7, s60, v7")
        if not self.c["modil"]:
            for i in range(8): self.mod_w(i)

    def mod_w(self, i):
        self.A(f"  global_load_dwordx4 {vq(136+4*i)}, v7, {sp(sWM)}{self.c['wmfl']}")
        if i < 7: self.A(f"  v_add_u32 v7, 6144, v7")

    def mod_compute_a(self):
        A = self.A
        A(f"  s_lshl_b32 s60, s{sWAVE}, 12\n  s_add_u32 s60, s60, {L_V}\n  v_lshlrev_b32 v28, 11, v5\n  v_lshl_add_u32 v28, v4, 8, v28\n  v_and_b32 v29, 1, v{vG}\n  v_lshl_add_u32 v28, v29, 4, v28\n  v_add_u32 v28, s60, v28")
        A(f"  v_lshrrev_b32 v29, 1, v{vG}\n  v_cmp_eq_u32 s[68:69], v29, v5")
        if not self.c["modil"]: A("  s_waitcnt vmcnt(8)")
        for i in range(4):
            r = 8 + i
            A(f"  v_lshlrev_b32 v16, 16, v{r}\n  v_and_b32 v17, 0xffff0000, v{r}")
            A(f"  v_max_f32 v20, 0xc2ae0000, v16\n  v_max_f32 v21, 0xc2ae0000, v17")
            self.expv([(18, 20, 22), (19, 21, 23)], neg=True)
            A(f"  v_add_f32 v18, 1.0, v18\n  v_add_f32 v19, 1.0, v19")
            self.divv([(24, 16, 18, 20, 22), (25, 17, 19, 21, 23)])
            A(f"  v_cvt_pk_bf16_f32 v{r}, v24, v25")

    def mod_compute_b(self):
        A = self.A
        self.transpose_block(136, 5, 6)
        for cc in range(8):
            A(f"  v_mfma_f32_16x16x32_bf16 {vq(104+4*cc)}, {vq(8)}, {vq(136+4*cc)}, 0")
        A("  s_mov_b64 exec, s[68:69]")
        for cc in range(8):
            A(f"  ds_write_b128 v28, {vq(104+4*cc)} offset:{32*cc}")
        self.lds_inc(F_MOD)

    def mod_compute_c(self):
        A = self.A
        A(f"  v_and_b32 v4, 31, v{vLANE}\n  v_lshrrev_b32 v5, 5, v{vLANE}\n  v_lshlrev_b32 v6, 6, v4\n  v_lshl_add_u32 v6, v5, 14, v6\n  s_lshl_b32 s60, s{sWAVE}, 2\n  s_add_u32 s60, s60, {L_V}\n  v_add_u32 v6, s60, v6")
        A(f"  s_mul_i32 s60, s{sWAVE}, 6144\n  s_lshl_b32 s61, s57, 7\n  s_add_u32 s60, s60, s61\n  s_add_u32 s60, s60, {WS_MOD}\n  v_lshl_add_u32 v5, v4, 2, s60")
        self.lds_spin(F_MOD, 8, 7)
        for part in range(8):
            if part: A(f"  v_add_u32 v6, 2048, v6")
            A(f"  ds_read2_b32 {vp(8+2*part)}, v6 offset0:0 offset1:8")
        l = self.lab("pollSN"); d = self.lab("gotSN")
        A(f"{l}:\n  s_cmp_lg_u32 s3, 0\n  s_cbranch_scc1 {d}")
        self.guard()
        A(f"  s_load_dword s3, {sp(sDBG)}, 0x80 glc\n  s_waitcnt lgkmcnt(0)\n  s_branch {l}\n{d}:")
        A("  s_waitcnt lgkmcnt(0)")
        self.lds_inc(F_MOD2)
        for part in range(1, 8):
            A(f"  v_add_f32 v8, v8, v{8+2*part}\n  v_add_f32 v9, v9, v{9+2*part}")
        A("  v_mov_b32 v10, v8\n  v_mov_b32 v11, v9\n  v_permlane32_swap_b32 v10, v8\n  v_permlane32_swap_b32 v11, v9\n  v_add_f32 v8, v8, v10\n  v_add_f32 v9, v9, v11")
        A(f"  v_cvt_pk_bf16_f32 v8, v8, v9\n  s_mov_b32 exec_hi, 0\n  global_store_dword v5, v8, {sp(sWS)} sc1")
        self.execall()
        A("  v_mov_b32 v9, v8")
        for st in ("quad_perm:[1,0,3,2]", "quad_perm:[2,3,0,1]", "row_ror:4", "row_ror:8"):
            A(f"  v_xor_b32_dpp v9, v9, v9 {st} row_mask:0xf bank_mask:0xf")
        A("  v_mov_b32 v10, v9\n  v_permlane16_swap_b32 v10, v9\n  v_bitop3_b32 v9, v9, v10, s3 bitop3:0x96")
        A(f"  s_lshl_b32 s60, s{sWAVE}, 8\n  s_lshl_b32 s61, s57, 2\n  s_add_u32 s60, s60, s61\n  s_add_u32 s60, s60, {WS_MARK}\n  v_mov_b32 v5, s60")
        self.exec1(); A(f"  global_store_dword v5, v9, {sp(sWS)} sc1"); self.execall()

    def check_lines(self, data, tags, tmp):
        A = self.A
        n = len(data)
        for k in range(n): A(f"  v_xor_b32 v{tmp+k}, v{data[k]}, v{data[k]+1}")
        for k in range(n): A(f"  v_bitop3_b32 v{tmp+k}, v{tmp+k}, v{data[k]+2}, v{data[k]+3} bitop3:0x96")
        for st in ("quad_perm:[1,0,3,2]", "quad_perm:[2,3,0,1]", "row_half_mirror"):
            for k in range(n): A(f"  v_xor_b32_dpp v{tmp+k}, v{tmp+k}, v{tmp+k} {st} row_mask:0xf bank_mask:0xf")
        for k in range(n): A(f"  v_bitop3_b32 v{tmp+k}, v{tmp+k}, v{tags[k]}, s44 bitop3:0x96")
        for k in range(1, n): A(f"  v_or_b32 v{tmp}, v{tmp}, v{tmp+k}")
        A(f"  v_cmp_ne_u32 vcc, 0, v{tmp}")

    def get_flag(self, tmp, off, sreg, expect=None):
        A = self.A
        l = self.lab("pollN"); d = self.lab("gotN")
        cmp = f"s_cmp_lg_u32 s{sreg}, 0" if expect is None else f"s_cmp_eq_u32 s{sreg}, {expect}"
        self.exec1()
        A(f"  global_load_dword v{tmp}, v{vZ}, {sp(sDBG)} offset:{off}")
        A(f"{l}:\n  s_waitcnt vmcnt(0)\n  v_readfirstlane_b32 s{sreg}, v{tmp}\n  {cmp}\n  s_cbranch_scc1 {d}")
        self.guard()
        A(f"  s_sleep {self.c['poll_sleep']}\n  global_load_dword v{tmp}, v{vZ}, {sp(sDBG)} offset:{off} sc1\n  s_branch {l}\n{d}:"); self.execall()
    def get_nonce(self, tmp): self.get_flag(tmp, 128, 44)

    def xor_rows(self, r, t):
        A = self.A
        A(f"  v_mov_b32 v{t}, v{r}\n  v_permlane16_swap_b32 v{t}, v{r}\n  v_xor_b32 v{r}, v{r}, v{t}")
        A(f"  v_mov_b32 v{t}, v{r}\n  v_permlane32_swap_b32 v{t}, v{r}\n  v_xor_b32 v{r}, v{r}, v{t}")

    def allreduce8(self, r, t, op="v_add_f32"):
        A = self.A
        A(f"  {op}_dpp v{r}, v{r}, v{r} row_ror:8 row_mask:0xf bank_mask:0xf")
        A(f"  v_mov_b32 v{t}, v{r}\n  v_permlane16_swap_b32 v{t}, v{r}\n  {op} v{r}, v{r}, v{t}")
        A(f"  v_mov_b32 v{t}, v{r}\n  v_permlane32_swap_b32 v{t}, v{r}\n  {op} v{r}, v{r}, v{t}")

    def wq_pattern(self):
        p = self.c["wqpat"]
        if p == 8: return 16, [8192 if i % 8 < 7 else 8192 * 25 for i in range(32)]
        if p == 32: return 18, [8192] * 32
        if p == 1: return 13, [8192 * 4] * 32
        if p == 33: return 18, [8192 * 5 if i % 8 < 7 else (1 << 32) - 8192 * 27 for i in range(32)]
        if p == 16: return 17, [8192 if i % 16 < 15 else 8192 * 49 for i in range(32)]

    def wo_pattern(self):
        p = self.c["wopat"]
        if p == 8: return 13, [1024 if i % 8 < 7 else 1024 * 25 for i in range(32)]
        if p == 32: return 15, [1024] * 32
        if p == 1: return 10, [4096] * 32

    def wo_prefetch(self):
        A = self.A
        l = self.lab("nowopf")
        A(f"  s_cmp_lg_u32 s{sHW}, {self.c['wopfw']}\n  s_cbranch_scc1 {l}")
        A(f"  s_lshl_b32 s60, s{sXCD}, 19\n  s_lshl_b32 s61, s{sIDX}, 14\n  s_add_u32 s60, s60, s61\n  s_add_u32 s60, s60, 4096\n  v_add_u32 v7, s60, v{vL16}")
        for i in range(16):
            if i == 8: A("  v_add_u32 v7, 8192, v7")
            A(f"  global_load_dword v35, v7, {sp(sWO)} offset:{(i % 8) * 1024 - 4096}")
        A(f"{l}:")

    def h0_issue(self, fl):
        A = self.A
        if "G" in self.c["xskip"]: return
        A(f"  global_load_dwordx4 {vq(28)}, v36, {sp(sWS)}{fl}\n  global_load_dwordx4 {vq(32)}, v36, {sp(sWS)} offset:1024{fl}")
        A(f"  global_load_dword v24, v37, {sp(sWS)}{fl}\n  global_load_dword v25, v37, {sp(sWS)} offset:32{fl}")

    def h0_finish(self):
        A = self.A; c = self.c
        l = self.lab("chkA"); d = self.lab("gotA")
        A(f"{l}:")
        self.check_lines([28, 32], [24, 25], 26)
        A(f"  s_cbranch_vccz {d}" if "G" not in c["xskip"] else f"  s_branch {d}")
        self.guard()
        A(f"  s_sleep {c['a_sleep']}")
        self.h0_issue(" sc1")
        A(f"  s_waitcnt vmcnt(0)\n  s_branch {l}\n{d}:")
        self.stamp(2); self.cstamp(14)
        self.unpack8(32, 16)
        for i in range(8): A(f"  v_add_f32 v{16+i}, 1.0, v{16+i}")
        self.rnd8(16, 24)
        for i in range(8): A(f"  v_mul_f32 v{8+i}, v{8+i}, v{16+i}")
        self.rnd8(8, 24)
        self.unpack8(28, 16)
        for i in range(8): A(f"  v_add_f32 v{8+i}, v{8+i}, v{16+i}")
        for i in range(4): A(f"  v_cvt_pk_bf16_f32 v{24+i}, v{8+2*i}, v{9+2*i}")
        A(f"  v_add_u32 v16, s47, v{vL16}\n  ds_write_b128 v16, {vq(24)} offset:{L_HBUF}")
        self.lds_inc(F_H)
        if c["dump"]:
            l = self.lab("nodh"); A(f"  s_cmp_lg_u32 s{sHW}, 0\n  s_cbranch_scc1 {l}"); self.dumpv(24, 4, 0x0, 2, 1024); A(f"{l}:")
        self.stamp(3)

    def helper(self):
        A = self.A; c = self.c
        A("L_helper:")
        self.stamp(8)
        A(f"  s_sub_u32 s{sHW}, s{sWAVE}, 8")
        l = self.lab("h3")
        A(f"  s_cmp_lg_u32 s{sHW}, 3\n  s_cbranch_scc1 {l}")
        A(f"  v_lshlrev_b32 v4, 2, v{vLANE}\n  ds_write_b32 v4, v{vZ}\n  ds_write_b32 v4, v{vZ} offset:{L_OP}\n  ds_write_b32 v4, v{vZ} offset:{L_OP+256}\n  s_waitcnt lgkmcnt(0)\n{l}:")
        A("  s_waitcnt lgkmcnt(0)")
        if c["tlb"]:
            l = self.lab("notlb")
            A(f"  s_cmp_lg_u32 s{sHW}, 2\n  s_cbranch_scc1 {l}")
            self.exec1()
            A(f"  s_lshl_b32 s60, s{sB}, 5\n  s_add_u32 s60, s60, s{sH}\n  s_lshl_b32 s60, s60, 20\n  s_add_u32 s60, s60, 0xC0000\n  v_mov_b32 v4, s60")
            A(f"  global_load_dword v35, v4, {sp(sV)} nt")
            if c["tlb"] == 3: A(f"  s_branch {l}_e")
            A(f"  s_lshl_b32 s60, s2, 12\n  s_add_u32 s60, s60, {WS_QIN}\n  v_mov_b32 v5, s60\n  global_load_dword v41, v5, {sp(sWS)} nt")
            A(f"  s_lshl_b32 s60, s{sH}, 17\n  v_mov_b32 v6, s60\n  global_load_dword v42, v6, {sp(sWO)} nt")
            A(f"  s_lshl_b32 s60, s2, 2\n  s_and_b32 s60, s60, 0xfc\n  v_mov_b32 v7, s60")
            A(f"  global_load_dword v43, v7, {sp(sDBG)}")
            if c["tlb"] > 1:
                A(f"  s_lshl_b32 s60, s2, 7\n  v_mov_b32 v8, s60")
                for k, p in enumerate((sG, sU, sDN, sWS)): A(f"  global_load_dword v{44+k}, v8, {sp(p)} nt")
                A(f"  v_add_u32 v8, 0x100000, v8")
                for k, p in enumerate((sG, sU, sDN)): A(f"  global_load_dword v{48+k}, v8, {sp(p)} nt")
                A(f"  s_lshl_b32 s60, s2, 5\n  v_mov_b32 v9, s60\n  global_load_dword v52, v9, {sp(sOUT)} nt")
            A(f"{l}_e:")
            self.execall()
            A(f"{l}:")
        if c["wqpf"]:
            l = self.lab("nowqpf")
            A(f"  s_cmp_lg_u32 s{sHW}, {c['wqpf']}\n  s_cbranch_scc1 {l}")
            A(f"  s_lshl_b32 s60, s{sIDX}, 17\n  s_lshl_b32 s61, s{sXCD}, 10\n  s_add_u32 s60, s60, s61\n  v_add_u32 v4, s60, v{vL16}")
            for i in range(16):
                if i >= c["wqpfD"]: A(f"  s_waitcnt vmcnt({c['wqpfD']-1})")
                A(f"  global_load_dword v35, v4, {sp(sWQ)}{c['pffl']}")
                if i < 15: A("  v_add_u32 v4, 8192, v4")
            A(f"{l}:")
        if c["wopf"] == -1: self.wo_prefetch()
        l = self.lab("nononce")
        A(f"  s_cmp_lg_u32 s2, 0\n  s_cbranch_scc1 {l}\n  s_cmp_lg_u32 s{sHW}, 1\n  s_cbranch_scc1 {l}")
        A(f"  s_memrealtime s[42:43]\n  s_waitcnt lgkmcnt(0)\n  s_or_b32 s42, s42, 1\n  v_mov_b32 v6, s42")
        self.exec1(); A(f"  global_store_dword v{vZ}, v6, {sp(sDBG)} offset:128 sc1"); self.execall()
        A(f"{l}:")
        A("  s_barrier")
        abl = c["abl"]
        if abl is not None:
            if "init" in abl: self.init_duty(11)
            l = self.lab("abl")
            A(f"  s_cmp_lg_u32 s{sHW}, 0\n  s_cbranch_scc1 {l}")
            self.lds_inc(F_Q2); self.lds_inc(F_C)
            if "h0l" in abl:
                A(f"  v_and_b32 v5, 7, v{vJ}\n  v_lshrrev_b32 v6, 3, v{vJ}\n  v_lshl_add_u32 v7, v{vG}, 1, v6\n  v_lshlrev_b32 v7, 4, v7\n  v_lshl_add_u32 v7, v5, 10, v7")
                if "nox" not in abl:
                    for i in range(8): A(f"  global_load_dwordx4 {vq(40+4*i)}, v7, {sp(sX)} offset:{128*i} nt")
                A(f"  s_mov_b32 s{SRDB}, s{sWQ}\n  s_mov_b32 s{SRDB+1}, s{sWQ+1}\n  s_mov_b32 s{SRDB+2}, 4194304\n  s_mov_b32 s{SRDB+3}, 0x20000")
                A(f"  v_lshlrev_b32 v7, 4, v{vJ}\n  v_lshl_add_u32 v7, v{vG}, 16, v7")
                A(f"  s_lshl_b32 s41, s{sB}, 19\n  s_lshl_b32 s60, s{sH}, 8\n  s_add_u32 s41, s41, s60")
                for i in range(0 if "nowq" in abl else 16):
                    A(f"  s_waitcnt vmcnt({c['ablD']})")
                    A(f"  buffer_load_dwordx4 {vq(104+4*i)}, v7, {sq(SRDB)}, s41 offen nt")
                    if i < 15: A(f"  s_add_u32 s41, s41, {8192 if i != 7 else 8192*25}")
                A("  s_waitcnt vmcnt(0)")
            if "poll" in abl:
                lp = self.lab("ablp")
                self.exec1()
                A(f"  s_mov_b32 s65, 12\n{lp}:\n  global_load_dwordx2 v[24:25], v{vZ}, {sp(sDBG)} offset:128 sc1\n  s_waitcnt vmcnt(0)\n  s_sleep {c['poll_sleep']}\n s_sub_u32 s65, s65, 1\n s_cmp_lg_u32 s65, 0\n s_cbranch_scc1 {lp}")
                self.execall()
            A(f"{l}:")
            if "wqr" in abl:
                A(f"  s_mov_b32 s{SRDA}, s{sWQ}\n  s_mov_b32 s{SRDA+1}, s{sWQ+1}\n  s_mov_b32 s{SRDA+2}, 4194304\n  s_mov_b32 s{SRDA+3}, 0x20000")
                sh, steps_ = self.wq_pattern()
                A(f"  v_lshlrev_b32 v4, 4, v{vJ}\n  v_lshl_add_u32 v4, v{vG}, {sh}, v4")
                A(f"  s_lshl_b32 s40, s{sHW}, 20\n  s_xor_b32 s60, s{sH}, {c['wqx']}\n  s_lshl_b32 s60, s60, 8\n  s_add_u32 s40, s40, s60")
                self.wload32(SRDA, steps_, c["HDO"], frac=c["HDOf"], fl=c["wqfl"])
                self.stamp(5)
            if "wqh" in abl:
                lq = self.lab("noq")
                A(f"  s_cmp_ge_u32 s{sB}, 4\n  s_cbranch_scc1 {lq}")
                A(f"  s_mov_b32 s{SRDA}, s{sWQ}\n  s_mov_b32 s{SRDA+1}, s{sWQ+1}\n  s_mov_b32 s{SRDA+2}, 4194304\n  s_mov_b32 s{SRDA+3}, 0x20000")
                A(f"  v_lshlrev_b32 v4, 4, v{vJ}\n  v_lshl_add_u32 v4, v{vG}, 17, v4")
                A(f"  s_lshl_b32 s40, s{sHW}, 19\n  s_and_b32 s60, s{sB}, 1\n  s_lshl_b32 s60, s60, 21\n  s_add_u32 s40, s40, s60\n  s_lshl_b32 s60, s{sH}, 8\n  s_add_u32 s40, s40, s60")
                for i in range(16):
                    if i >= c["HD"]: A(f"  s_waitcnt vmcnt({c['HD']-1})")
                    A(f"  buffer_load_dwordx4 {vq(104+4*i)}, v4, {sq(SRDA)}, s40 offen\n  s_add_u32 s40, s40, 8192")
                self.stamp(5)
                A(f"{lq}:")
            if "wqp" in abl:
                lq = self.lab("noq")
                A(f"  s_cmp_lt_u32 s57, 48\n  s_cbranch_scc1 {lq}")
                sh, steps_ = self.wq_pattern()
                A(f"  s_mov_b32 s{SRDA}, s{sWQ}\n  s_mov_b32 s{SRDA+1}, s{sWQ+1}\n  s_mov_b32 s{SRDA+2}, 4194304\n  s_mov_b32 s{SRDA+3}, 0x20000")
                A(f"  v_lshlrev_b32 v4, 4, v{vJ}\n  v_lshl_add_u32 v4, v{vG}, {sh}, v4")
                A(f"  s_lshl_b32 s40, s{sHW}, 20\n  s_lshl_b32 s60, s{sH}, 8\n  s_add_u32 s40, s40, s60")
                self.wload32(SRDA, steps_, c["HD"], frac=c["HDf"], fl=c["wqfl"])
                self.stamp(5)
                A(f"{lq}:")
            if "wo" in abl:
                A(f"  s_mov_b32 s{SRDA}, s{sWO}\n  s_mov_b32 s{SRDA+1}, s{sWO+1}\n  s_mov_b32 s{SRDA+2}, 4194304\n  s_mov_b32 s{SRDA+3}, 0x20000")
                A(f"  v_lshlrev_b32 v4, 4, v{vJ}\n  v_lshl_add_u32 v4, v{vG}, {self.wo_pattern()[0]}, v4")
                A(f"  s_lshl_b32 s40, s{sH}, 17\n  s_lshl_b32 s60, s{sHW}, 8\n  s_add_u32 s40, s40, s60")
                self.wload32(SRDA, self.wo_pattern()[1], c["HDO"], frac=c["HDOf"])
                self.stamp(6)
            A("  s_branch L_exit")
        A(f"  s_mov_b32 s{SRDA}, s{sWQ}\n  s_mov_b32 s{SRDA+1}, s{sWQ+1}\n  s_mov_b32 s{SRDA+2}, 4194304\n  s_mov_b32 s{SRDA+3}, 0x20000")
        sh, steps = self.wq_pattern()
        A(f"  v_lshlrev_b32 v4, 4, v{vJ}\n  v_lshl_add_u32 v4, v{vG}, {sh}, v4")
        A(f"  s_lshl_b32 s40, s{sHW}, 20\n  s_lshl_b32 s60, s{sH}, 8\n  s_add_u32 s40, s40, s60")
        A(f"  s_cmp_lt_u32 s57, 48\n  s_cbranch_scc1 L_prodh")
        if c["wo_at"] is not None: self.lds_spin(F_K, 1, 7, sleep=2)
        A(f"  s_cmp_eq_u32 s57, 64\n  s_cselect_b32 s45, 3, 0")
        A(f"  s_cmp_gt_u32 s{sHW}, s45\n  s_cbranch_scc1 L_wq123")
        A(f"  s_lshl_b32 s46, s{sHW}, 1\n  s_add_u32 s46, s46, s{sB}\n  s_lshl_b32 s47, s{sHW}, 10")
        A(f"  s_lshl_b32 s60, s46, 10\n  v_add_u32 v36, s60, v{vL16}\n  global_load_dwordx4 {vq(28)}, v36, {sp(sX)}")
        A(f"  s_mul_i32 s60, s46, 6144\n  s_add_u32 s60, s60, {WS_MOD}\n  v_add_u32 v36, s60, v{vL16}")
        A(f"  s_lshl_b32 s60, s46, 8\n  s_add_u32 s60, s60, {WS_MARK}\n  v_lshrrev_b32 v37, 3, v{vLANE}\n  v_lshl_add_u32 v37, v37, 2, s60")
        def chkB0():
            l0 = self.lab("noB0"); l = self.lab("pollBN"); d = self.lab("gotBN")
            A(f"  s_cmp_lg_u32 s{sHW}, 1\n  s_cbranch_scc1 {l0}")
            A(f"  s_load_dword s44, {sp(sDBG)}, 0x80\n  s_waitcnt lgkmcnt(0)\n{l}:\n  s_cmp_lg_u32 s44, 0\n  s_cbranch_scc1 {d}")
            self.guard()
            A(f"  s_load_dword s44, {sp(sDBG)}, 0x80 glc\n  s_waitcnt lgkmcnt(0)\n  s_branch {l}\n{d}:")
            self.get_flag(7, 136, 41, expect="s44")
            self.lds_inc(F_C)
            A(f"{l0}:")
        early_b = [(c["PBQ"], chkB0)] if c["rank"] else []
        HD = c["HD"]
        def ln():
            self.unpack8(28, 8); self.layernorm(8, 16, 24)
            A(f"  s_load_dword s44, {sp(sDBG)}, 0x80")
        def gather():
            l = self.lab("pollHN"); d = self.lab("gotHN")
            A(f"  s_waitcnt lgkmcnt(0)\n{l}:\n  s_cmp_lg_u32 s44, 0\n  s_cbranch_scc1 {d}")
            self.guard()
            A(f"  s_load_dword s44, {sp(sDBG)}, 0x80 glc\n  s_waitcnt lgkmcnt(0)\n  s_branch {l}\n{d}:")
            self.stamp(1)
            self.h0_issue("")
            A(f"  v_mov_b32 v26, s44\n  ds_write_b32 v{vZ}, v26 offset:{F_N}")
        self.wload32(SRDA, steps, HD, frac=c["HDf"], hooks=dict(early_b + [(HD + 3, ln), (c["P0"], gather), (c["P0"] + HD, self.h0_finish)] + ([(c["wopf"], self.wo_prefetch)] if (c["wopf"] or -1) > 0 else [])), fl=c["wqfl"])
        A("  s_branch L_q")
        A("L_wq123:")
        l = self.lab("nozero")
        A(f"  s_cmp_lg_u32 s{sHW}, 3\n  s_cbranch_scc1 {l}\n  s_cmp_lt_u32 s57, 256\n  s_cbranch_scc1 {l}\n  s_cmp_ge_u32 s57, {256+8}\n  s_cbranch_scc1 {l}")
        A("  v_mov_b32 v12, 0\n  v_mov_b32 v13, 0\n  v_mov_b32 v14, 0\n  v_mov_b32 v15, 0")
        A(f"  s_sub_u32 s61, s57, 256\n  s_lshl_b32 s60, s61, 12\n  s_add_u32 s60, s60, {WS_ACC}\n  v_add_u32 v5, s60, v{vL16}")
        for i in range(4): A(f"  global_store_dwordx4 v5, {vq(12)}, {sp(sWS)} offset:{1024*i} sc1")
        A(f"{l}:")
        def ticket():
            l = self.lab("notick"); lp = self.lab("pollZN"); d = self.lab("gotZN")
            A(f"  s_cmp_lg_u32 s{sHW}, 3\n  s_cbranch_scc1 {l}\n  s_cmp_lt_u32 s57, 256\n  s_cbranch_scc1 {l}\n  s_cmp_ge_u32 s57, {256+8}\n  s_cbranch_scc1 {l}")
            A(f"  s_mov_b32 s65, 1\n  s_atomic_add s65, {sp(sDBG)}, 0x8 glc\n  s_waitcnt lgkmcnt(0)\n  s_cmp_lg_u32 s65, 7\n  s_cbranch_scc1 {l}")
            A(f"{lp}:\n  s_load_dword s44, {sp(sDBG)}, 0x80 glc\n  s_waitcnt lgkmcnt(0)\n  s_cmp_lg_u32 s44, 0\n  s_cbranch_scc1 {d}")
            self.guard()
            A(f"  s_branch {lp}\n{d}:\n  v_mov_b32 v7, s44")
            self.exec1(); A(f"  global_store_dword v{vZ}, v7, {sp(sDBG)} offset:136 sc1"); self.execall()
            A(f"{l}:")
        self.wload32(SRDA, steps, HD, frac=c["HDf"], hooks=dict(early_b + [(HD + 2, ticket)] + ([(c["wopf"], self.wo_prefetch)] if (c["wopf"] or -1) > 0 else [])), fl=c["wqfl"])
        A("L_q:")
        self.stamp(4)
        A("  s_add_u32 s61, s45, 1")
        self.lds_spin(F_H, "s61", 7)
        p32 = c["wqpat"] == 32
        A(f"  s_lshl_b32 s60, s{sHW}, 8\n  v_lshl_add_u32 v4, v{vG}, {6 if p32 else 4}, s60\n  v_and_b32 v5, s45, v{vJ}\n  v_lshl_add_u32 v4, v5, 10, v4")
        for m in range(4): A(f"  ds_read_b128 {vq(8+4*m)}, v4 offset:{L_HBUF + (16 if p32 else 64)*m}")
        A(f"  ds_read_b32 v7, v{vZ} offset:{F_N}")
        A(f"  s_lshl_b32 s60, s{sHW}, 11\n  v_lshl_add_u32 v5, v{vJ}, 5, s60\n  v_add_u32 v5, {L_QP}, v5")
        A(f"  s_mov_b32 s{SRDA}, s{sWO}\n  s_mov_b32 s{SRDA+1}, s{sWO+1}\n  s_mov_b32 s{SRDA+2}, 4194304\n  s_mov_b32 s{SRDA+3}, 0x20000")
        A(f"  s_lshl_b32 s40, s{sH}, 17\n  s_lshl_b32 s60, s{sHW}, 8\n  s_add_u32 s40, s40, s60")
        A("  s_waitcnt lgkmcnt(0)")
        A(f"  v_readfirstlane_b32 s44, v7\n  v_lshlrev_b32 v4, 4, v{vJ}\n  v_lshl_add_u32 v4, v{vG}, {self.wo_pattern()[0]}, v4")
        res = self.gemv32()
        A("  s_mov_b64 exec, 0xffff")
        for cc in range(0, 8, 2):
            A(f"  ds_write2_b32 v5, v{res[cc]}, v{res[cc+1]} offset0:{cc} offset1:{cc+1}")
        l = self.lab("onerow")
        A(f"  s_cmp_eq_u32 s45, 0\n  s_cbranch_scc1 {l}")
        for r in range(1, 4):
            A(f"  v_add_u32 v5, 512, v5")
            for cc in range(0, 8, 2):
                A(f"  ds_write2_b32 v5, v{res[cc]+r}, v{res[cc+1]+r} offset0:{cc} offset1:{cc+1}")
        A(f"{l}:")
        self.exec1()
        A(f"  ds_add_rtn_u32 v7, v{vZ}, v{vONE} offset:{F_Q}\n  s_waitcnt lgkmcnt(0)\n  v_readfirstlane_b32 s60, v7")
        self.execall()
        l = self.lab("notlastq")
        A(f"  s_cmp_lg_u32 s60, 3\n  s_cbranch_scc1 {l}")
        A(f"  v_lshlrev_b32 v6, 3, v{vLANE}")
        for part in range(4): A(f"  ds_read_b64 {vp(8+2*part)}, v6 offset:{L_QP + 2048*part}")
        A(f"  s_lshl_b32 s60, s2, 9\n  s_add_u32 s60, s60, {WS_QIN}\n  v_add_u32 v7, s60, v6")
        A(f"  v_lshlrev_b32 v5, 2, v{vLANE}\n  s_waitcnt lgkmcnt(0)")
        A("  v_add_f32 v8, v8, v10\n  v_add_f32 v9, v9, v11\n  v_add_f32 v12, v12, v14\n  v_add_f32 v13, v13, v15\n  v_add_f32 v8, v8, v12\n  v_add_f32 v9, v9, v13")
        A(f"  v_cvt_pk_bf16_f32 v8, v8, v9\n  ds_write_b32 v5, v8 offset:{L_QB}")
        l2 = self.lab("nodon")
        A(f"  s_cmp_eq_u32 s45, 0\n  s_cbranch_scc1 {l2}")
        for r in range(1, 4):
            for part in range(4): A(f"  ds_read_b64 {vp(16+2*part)}, v6 offset:{L_QP + 2048*part + 512*r}")
            A(f"  v_add_u32 v7, {64*512}, v7\n  s_waitcnt lgkmcnt(0)")
            A("  v_add_f32 v16, v16, v18\n  v_add_f32 v17, v17, v19\n  v_add_f32 v20, v20, v22\n  v_add_f32 v21, v21, v23\n  v_add_f32 v16, v16, v20\n  v_add_f32 v17, v17, v21")
            A(f"  v_cvt_pk_bf16_f32 v{24+2*r}, v16, v17\n  v_mov_b32 v{25+2*r}, s44\n  global_store_dwordx2 v7, {vp(24+2*r)}, {sp(sWS)} sc1")
        A(f"{l2}:")
        self.lds_inc(F_Q2)
        self.dumpv(8, 1, 0x80000, 2, 256)
        A(f"{l}:")
        self.stamp(5)
        steps = self.wo_pattern()[1]
        def chkB():
            if c["rank"]: return
            l0 = self.lab("noB")
            A(f"  s_cmp_lg_u32 s{sHW}, 1\n  s_cbranch_scc1 {l0}")
            if "B" not in c["xskip"]: self.get_flag(7, 136, 45, expect="s44")
            self.lds_inc(F_C)
            A(f"{l0}:")
        def rowloads(fl):
            for i in range(4): A(f"  global_load_dwordx4 {vq(12+4*i)}, v36, {sp(sWS)} offset:{1024*i}{fl}")
            for i in range(4): A(f"  global_load_dword v{28+i}, v37, {sp(sWS)} offset:{32*i}{fl}")
        def rows_a():
            if "R" in c["xskip"]: return
            l = self.lab("norows")
            A(f"  s_cmp_ge_u32 s{sHW}, 2\n  s_cbranch_scc1 {l}\n  s_cmp_eq_u32 s{sFFN}, 0\n  s_cbranch_scc1 {l}")
            A(f"  s_lshl_b32 s41, s{sJ}, 1\n  s_add_u32 s41, s41, s{sHW}")
            A(f"  s_mul_i32 s60, s41, 6144\n  s_add_u32 s60, s60, {WS_MOD + 2048}\n  v_add_u32 v36, s60, v{vL16}")
            A(f"  s_lshl_b32 s60, s41, 8\n  s_add_u32 s60, s60, {WS_MARK + 64}\n  v_lshrrev_b32 v37, 3, v{vLANE}\n  v_lshl_add_u32 v37, v37, 2, s60")
            rowloads("")
            A(f"  s_lshl_b32 s60, s41, 10\n  v_add_u32 v7, s60, v{vL16}\n  global_load_dwordx4 {vq(8)}, v7, {sp(sX)}")
            A(f"{l}:")
        def rows_b():
            if "R" in c["xskip"]: return
            l = self.lab("norows2")
            A(f"  s_cmp_ge_u32 s{sHW}, 2\n  s_cbranch_scc1 {l}\n  s_cmp_eq_u32 s{sFFN}, 0\n  s_cbranch_scc1 {l}")
            lr = self.lab("chkR"); dr = self.lab("gotR")
            A(f"{lr}:")
            self.check_lines([12, 16, 20, 24], [28, 29, 30, 31], 32)
            A(f"  s_cbranch_vccz {dr}")
            self.guard()
            rowloads(" sc1")
            A(f"  s_waitcnt vmcnt(0)\n  s_branch {lr}\n{dr}:")
            self.unpack8(20, 28)
            for i in range(8): A(f"  v_add_f32 v{28+i}, 1.0, v{28+i}")
            for i in range(4): A(f"  v_cvt_pk_bf16_f32 v{20+i}, v{28+2*i}, v{29+2*i}")
            self.lds_spin(F_Q2, 1, 7)
            A(f"  s_mul_i32 s60, s{sHW}, 5120\n  v_add_u32 v36, s60, v{vL16}")
            for i in range(5): A(f"  ds_write_b128 v36, {vq(8+4*i)} offset:{L_ROWS + 1024*i}")
            A(f"{l}:")
        self.wload32(SRDA, steps, c["HDO"], frac=c["HDOf"], hooks={c["PB"]: chkB, c["PR"]: rows_a, c["PR"] + c["HDO"]: rows_b})
        A("  s_branch L_wo")
        A("L_prodh:")
        if c["spref"]:
            l = self.lab("nosp"); pc = self.lab("spc")
            per = -(-c["prefkib"] * 8 // 6)
            A(f"  s_cmp_lg_u32 s{sHW}, 3\n  s_cbranch_scc1 {l}\n  s_getpc_b64 s[60:61]\n{pc}:\n  s_sub_u32 s60, s60, {pc}-{KNAME}\n  s_subb_u32 s61, s61, 0")
            A(f"  s_sub_u32 s65, s{sB}, 2\n  s_mul_i32 s65, s65, {per*128}\n  s_add_u32 s60, s60, s65\n  s_addc_u32 s61, s61, 0")
            for i in range(per):
                A(f"  s_load_dword s41, s[60:61], {128*i:#x}")
                if i % 12 == 11: A("  s_waitcnt lgkmcnt(0)")
            A(f"  s_waitcnt lgkmcnt(0)\n{l}:")
        A(f"  s_mov_b32 s{SRDA}, s{sWO}\n  s_mov_b32 s{SRDA+1}, s{sWO+1}\n  s_mov_b32 s{SRDA+2}, 4194304\n  s_mov_b32 s{SRDA+3}, 0x20000")
        A(f"  s_lshl_b32 s40, s{sH}, 17\n  s_lshl_b32 s60, s{sHW}, 8\n  s_add_u32 s40, s40, s60")
        A(f"  v_lshlrev_b32 v4, 4, v{vJ}\n  v_lshl_add_u32 v4, v{vG}, {self.wo_pattern()[0]}, v4")
        def recvq():
            l0 = self.lab("noq"); l = self.lab("pollPN"); d = self.lab("gotPN"); lq = self.lab("pollPQ"); dq = self.lab("gotPQ")
            A(f"  s_cmp_lg_u32 s{sHW}, 0\n  s_cbranch_scc1 {l0}")
            A(f"  s_load_dword s44, {sp(sDBG)}, 0x80\n  s_waitcnt lgkmcnt(0)\n{l}:\n  s_cmp_lg_u32 s44, 0\n  s_cbranch_scc1 {d}")
            self.guard()
            A(f"  s_load_dword s44, {sp(sDBG)}, 0x80 glc\n  s_waitcnt lgkmcnt(0)\n  s_branch {l}\n{d}:")
            A(f"  v_mov_b32 v26, s44\n  ds_write_b32 v{vZ}, v26 offset:{F_N}")
            A(f"  s_lshl_b32 s60, s2, 9\n  s_add_u32 s60, s60, {WS_QIN}\n  v_lshl_add_u32 v7, v{vLANE}, 3, s60\n  s_add_u32 s61, s60, 4")
            if "PQ" in c["xskip"]: A(f"  s_branch {dq}")
            A(f"{lq}:\n  s_load_dword s60, {sp(sWS)}, s61 glc\n  s_waitcnt lgkmcnt(0)\n  s_cmp_eq_u32 s60, s44\n  s_cbranch_scc0 {lq}_r")
            A(f"  global_load_dwordx2 v[8:9], v7, {sp(sWS)} sc1\n  s_waitcnt vmcnt(0)\n  v_cmp_ne_u32 vcc, s44, v9\n  s_cbranch_vccz {dq}")
            A(f"{lq}_r:")
            self.guard()
            A(f"  s_sleep {c['q_sleep']}\n  s_branch {lq}\n{dq}:")
            A(f"  v_lshlrev_b32 v7, 2, v{vLANE}\n  ds_write_b32 v7, v8 offset:{L_QB}")
            self.lds_inc(F_Q2)
            self.stamp(5)
            self.dumpv(8, 1, 0x80000, 2, 256)
            if not c["rank"]:
                self.get_flag(7, 136, 45, expect="s44")
                self.lds_inc(F_C)
            A(f"{l0}:")
        self.wload32(SRDA, steps, c["HDP"], frac=c["HDPf"], hooks=dict(([(8, chkB0)] if c["rank"] else []) + [(c["PQ"], recvq)] + ([(c["wopf"] // 2, self.wo_prefetch)] if (c["wopf"] or -1) > 0 else [])))
        self.lds_spin(F_Q2, 1, 7, sleep=4)
        A(f"  ds_read_b32 v7, v{vZ} offset:{F_N}\n  s_waitcnt lgkmcnt(0)\n  v_readfirstlane_b32 s44, v7")
        A("L_wo:")
        A("L_wodone:")
        if c["hprio"]: A(f"  s_setprio {c['hprio']}")
        if c["pref2"] and "T" not in c["xskip"]:
            self.prefetch(wait=True)
        self.lds_spin(F_C, 1, 7, sleep=4)
        A(f"  v_lshlrev_b32 v28, {5 if c['oadd'] else 3}, v{vG if c['oadd'] else vLANE}")
        A(f"  s_lshl_b32 s60, s{sHW}, 8\n  v_lshl_add_u32 v29, v{vLANE}, 2, s60\n  v_lshl_add_u32 v30, v{vG}, {6 if c['wopat'] == 32 else 4}, s60")
        A(f"  v_lshrrev_b32 v31, 2, v{vLANE}\n  v_and_b32 v32, 3, v{vLANE}\n  v_lshl_add_u32 v31, v32, 4, v31\n  v_lshlrev_b32 v36, 2, v31")
        A(f"  s_lshl_b32 s61, s{sB}, 12\n  s_add_u32 s61, s61, {WS_ACC}\n  v_add_u32 v32, s61, v29")
        A(f"  v_mov_b32 v33, 1.0\n  v_mov_b32 v34, 1.0\n  v_mov_b32 v35, 1.0\n  v_mov_b32_dpp v35, v{vZ} quad_perm:[0,1,2,3] row_mask:0x4 bank_mask:0xf")
        self.stamp(6)
        if "T" in c["xskip"]: A("  s_branch L_exit")
        if c["dryo"]:
            l = self.lab("nodryo")
            A(f"  s_cmp_lg_u32 s{sHW}, 3\n  s_cbranch_scc1 {l}\n  s_mov_b64 exec, 0\n  s_branch L_dry_o\nL_dry_oend:\n  s_mov_b64 exec, -1\n{l}:")
        self.lds_spin(F_O, 8, 7, sleep=c['o_sleep'])
        self.stamp(9)
        A("L_dry_o:")
        if c["oadd"]:
            rd = lambda q, off: A(f"  ds_read_b128 {vq(q)}, v28 offset:{L_OP + off}")
            rd(12, 0); rd(16, 16); rd(20, 128); rd(24, 144); rd(4, 256)
            A(f"  s_waitcnt lgkmcnt(3)")
            for i in range(4): A(f"  v_cvt_pk_bf16_f32 v{8+i}, v{12+2*i}, v{13+2*i}")
            A(f"  s_waitcnt lgkmcnt(1)")
            for i in range(4): A(f"  v_cvt_pk_bf16_f32 v{12+i}, v{20+2*i}, v{21+2*i}")
            rd(16, 272); rd(20, 384); rd(24, 400)
            self.stamp(10)
            res = [28] + [40 + 4 * k for k in range(7)]
            for m, Am in enumerate((8, 12, 4, 16)):
                for cc in range(8):
                    A(f"  v_mfma_f32_16x16x32_bf16 {vq(res[cc])}, {vq(Am)}, {vq(40+32*m+4*cc)}, {'0' if m == 0 else vq(res[cc])}")
                    if m == 0 and cc == 5:
                        A(f"  s_waitcnt lgkmcnt(0)")
                        A("  v_cvt_pk_bf16_f32 v4, v4, v5\n  v_cvt_pk_bf16_f32 v5, v6, v7\n  v_cvt_pk_bf16_f32 v6, v16, v17\n  v_cvt_pk_bf16_f32 v7, v18, v19")
                    if m == 1 and cc == 1:
                        for i in range(4): A(f"  v_cvt_pk_bf16_f32 v{16+i}, v{20+2*i}, v{21+2*i}")
        else:
            for part in range(8): A(f"  ds_read_b64 {vp(8+2*part)}, v28 offset:{L_OP + 512*part}")
            A("  s_waitcnt lgkmcnt(4)")
            A("  v_add_f32 v8, v8, v10\n  v_add_f32 v9, v9, v11\n  v_add_f32 v12, v12, v14\n  v_add_f32 v13, v13, v15\n  v_add_f32 v8, v8, v12\n  v_add_f32 v9, v9, v13")
            A("  s_waitcnt lgkmcnt(0)")
            A("  v_add_f32 v16, v16, v18\n  v_add_f32 v17, v17, v19\n  v_add_f32 v20, v20, v22\n  v_add_f32 v21, v21, v23\n  v_add_f32 v16, v16, v20\n  v_add_f32 v17, v17, v21")
            A(f"  v_add_f32 v8, v8, v16\n  v_add_f32 v9, v9, v17\n  v_cvt_pk_bf16_f32 v7, v8, v9\n  ds_write_b32 v29, v7 offset:{L_OB}")
            for m in range(4): A(f"  ds_read_b128 {vq(8+4*m)}, v30 offset:{L_OB + (16 if c['wopat'] == 32 else 64)*m}")
            A("  s_waitcnt lgkmcnt(0)")
            self.stamp(10)
            if c["dryo"]: A("  s_cbranch_execz L_dry_o2")
            res = self.gemv32()
            A("L_dry_o2:")
        self.stamp(11)
        for g in range(3):
            for k in range(3):
                if 3 * k + g < 8:
                    A(f"  v_mov_b32_dpp v{33+k}, v{res[3*k+g]} quad_perm:[0,1,2,3] row_mask:{1<<g:#x} bank_mask:0xf")
        for k in range(3): A(f"  ds_bpermute_b32 v{33+k}, v36, v{33+k}")
        if c["dryo"]: A("  s_cbranch_execz L_dry_oend")
        for k in range(3):
            A(f"  s_waitcnt lgkmcnt({2-k})\n  global_atomic_add_f32 v32, v{33+k}, {sp(sWS)} offset:{1024*k}")
        if c["gate"] or c["early"]:
            l = self.lab("g01")
            A(f"  s_cmp_lt_u32 s{sHW}, 2\n  s_cbranch_scc1 {l}")
            self.lds_inc(F_A)
            A(f"{l}:")
        else:
            self.lds_inc(F_A)
        self.stamp(7)
        if c["dump"] and not c["oadd"]:
            l = self.lab("nodumpo")
            A(f"  s_cmp_lg_u32 s{sHW}, 3\n  s_cbranch_scc1 {l}")
            self.dumpv(7, 1, 0x90000, 2, 256)
            A(f"{l}:")
        if c["dry"]:
            l = self.lab("nodry"); l2 = self.lab("dryf")
            A(f"  s_cmp_lg_u32 s{sHW}, 2\n  s_cbranch_scc1 {l}\n  s_cmp_lg_u32 s{sFFN}, 0\n  s_cbranch_scc1 {l2}\n  s_cmp_ge_u32 s57, 100\n  s_cbranch_scc1 L_exit")
            A(f"  s_mov_b64 exec, 0\n  s_branch L_dry_r\n{l2}:\n  s_mov_b64 exec, 0\n  s_branch L_dry_l\n{l}:")
        A(f"  s_cmp_ge_u32 s{sHW}, 2\n  s_cbranch_scc1 L_exit\n  s_cmp_lt_u32 s57, 100\n  s_cbranch_scc1 L_recv\n  s_cmp_eq_u32 s{sFFN}, 0\n  s_cbranch_scc1 L_exit")
        A(f"  s_lshl_b32 s45, s{sJ}, 1\n  s_add_u32 s45, s45, s{sHW}\n  s_lshl_b32 s45, s45, 6\n  s_add_u32 s45, s45, s{sSL}\n  s_lshl_b32 s45, s45, 7\n  s_add_u32 s45, s45, {WS_HINT}")
        if c["gate"]: A(f"  s_load_dword s61, {sp(sWS)}, s45 glc")
        if c["early"]: A(f"  s_lshl_b32 s60, s{sHW}, 2\n  v_mov_b32 v7, s60\n  ds_read_b32 v7, v7 offset:{F_HS}")
        A(f"  s_mul_i32 s60, s{sHW}, 5120\n  v_add_u32 v4, s60, v{vL16}")
        for i in range(4): A(f"  ds_read_b128 {vq(72+4*i)}, v4 offset:{L_ROWS + 1024*i}")
        A(f"  s_lshl_b32 s41, s{sJ}, 1\n  s_add_u32 s41, s41, s{sHW}\n  s_lshl_b32 s41, s41, 12\n  s_add_u32 s41, s41, {WS_ACC}\n  v_add_u32 v5, s41, v{vL16}\n  v_mov_b32 v6, s41")
        A(f"  s_lshl_b32 s60, s{sHW}, 10\n  v_add_u32 v4, s60, v{vL16}")
        A("  s_waitcnt lgkmcnt(0)")
        if c["early"]:
            le = self.lab("notlate"); lj0 = self.lab("lj")
            A(f"  v_readfirstlane_b32 s61, v7\n  s_cmp_eq_u32 s61, s44\n  s_cbranch_scc1 {le}")
            self.lds_inc(F_A)
            A(f"{le}:")
        self.unpack8(72, 88); self.unpack8(76, 96); self.unpack8(80, 104); self.unpack8(84, 112)
        if c["early"]:
            le2 = self.lab("notlate2")
            A(f"  s_cmp_lg_u32 s61, s44\n  s_cbranch_scc1 {le2}")
            if c["late_delay"]: A(f"  s_sleep {c['late_delay']}")
            for k in range(3): A(f"  global_load_dwordx4 {vq(120+4*k)}, v5, {sp(sWS)} offset:{1024*k}{c['accfl']}")
            self.lds_inc(F_A)
            self.stamp(1); self.cstamp(13)
            A(f"  s_branch {lj0}\n{le2}:")
        lp = self.lab("pollH"); ld = self.lab("gotH")
        if c["gate"]:
            lg = self.lab("late")
            A(f"  s_cmp_eq_u32 s61, s44\n  s_cbranch_scc1 {lg}")
            self.lds_inc(F_A)
        A(f"{lp}:\n  s_load_dword s60, {sp(sWS)}, s45 glc\n  s_waitcnt lgkmcnt(0)\n  s_cmp_eq_u32 s60, s44\n  s_cbranch_scc1 {ld}")
        self.guard()
        if c["hint_sleep"]: A(f"  s_sleep {c['hint_sleep']}")
        A(f"  s_branch {lp}\n{ld}:")
        if c["read_delay"]: A(f"  s_sleep {c['read_delay']}")
        if c["gate"]:
            for k in range(3): A(f"  global_load_dwordx4 {vq(120+4*k)}, v5, {sp(sWS)} offset:{1024*k}{c['accfl']}")
            lj = self.lab("gj")
            A(f"  s_branch {lj}\n{lg}:")
            for k in range(3): A(f"  global_load_dwordx4 {vq(120+4*k)}, v5, {sp(sWS)} offset:{1024*k}{c['accfl']}")
            self.lds_inc(F_A)
            A(f"{lj}:")
        self.stamp(1)
        self.cstamp(13)
        lp = self.lab("pollF"); ld = self.lab("gotF")
        if not c["gate"]:
            for k in range(3): A(f"  global_load_dwordx4 {vq(120+4*k)}, v5, {sp(sWS)} offset:{1024*k}{c['accfl']}")
        if c["early"]: A(f"{lj0}:")
        self.lds_inc(F_R)
        A(f"{lp}:")
        A("  s_waitcnt vmcnt(0)\n  v_min3_f32 v7, v123, v127, v131\n  v_cmp_neq_f32 vcc, 0x42000000, v7")
        A(f"  s_cbranch_vccz {ld}")
        self.guard()
        if c["full_sleep"]: A(f"  s_sleep {c['full_sleep']}")
        for k in range(3): A(f"  global_load_dwordx4 {vq(120+4*k)}, v5, {sp(sWS)} offset:{1024*k}{c['accfl']}")
        A(f"  s_branch {lp}\n{ld}:")
        self.stamp(2)
        self.cstamp(15)
        A("L_dry_l:")
        src = [120, 121, 122, 124, 125, 126, 128, 129]
        for i in range(4): A(f"  v_cvt_pk_bf16_f32 v{16+i}, v{src[2*i]}, v{src[2*i+1]}")
        self.unpack8(16, 8)
        self.pk8("mul", 8, 96, 8)
        self.rnd8(8, 16)
        self.pk8("add", 8, 88, 8)
        for i in range(4): A(f"  v_cvt_pk_bf16_f32 v{28+i}, v{8+2*i}, v{9+2*i}")
        self.unpack8(28, 8)
        self.layernorm(8, 16, 24)
        self.pk8("mul", 8, 8, 112)
        self.rnd8(8, 16)
        self.pk8("add", 8, 8, 104)
        for i in range(4): A(f"  v_cvt_pk_bf16_f32 v{24+i}, v{8+2*i}, v{9+2*i}")
        A(f"  ds_write_b128 v4, {vq(24)} offset:{L_H2}\n  ds_write_b128 v4, {vq(28)} offset:{L_X1}\n  s_waitcnt lgkmcnt(0)")
        if c["dry"]: A("  s_cbranch_execz L_dry_red")
        self.stamp(3)
        A("  s_barrier")
        if c["dump"]:
            A(f"  s_lshl_b32 s69, s2, 1\n  s_add_u32 s69, s69, s{sHW}")
            self.dumpv(24, 4, 0x600000, 69, 1024)
        A(f"  s_cmp_eq_u32 s{sHW}, 0\n  s_cbranch_scc1 L_reducer")
        A(f"  s_cmp_ge_u32 s{sSL}, 32\n  s_cbranch_scc1 {'L_h1bar' if c['stamps'] else 'L_exit'}")
        A(f"  s_lshr_b32 s60, s{sSL}, 2\n  s_lshl_b32 s60, s60, 7\n  s_and_b32 s61, s{sSL}, 3\n  s_lshl_b32 s61, s61, 1\n  s_add_u32 s60, s60, s61\n  v_lshl_add_u32 v4, v{vJ}, 3, s60")
        A(f"  ds_read_u16 v8, v4 offset:{L_X1}\n  ds_read_u16 v9, v4 offset:{L_ROWS + 4096}\n  ds_read_u16 v12, v4 offset:{L_X1 + 1024}\n  ds_read_u16 v13, v4 offset:{L_ROWS + 4096 + 5120}")
        A(f"  s_lshl_b32 s60, s{sJ}, 5\n  s_add_u32 s60, s60, s{sSL}\n  s_mul_i32 s60, s60, {INB}\n  s_add_u32 s60, s60, {WS_INBOX + 43*256}\n  v_lshl_add_u32 v5, v{vJ}, 4, s60")
        A(f"  s_xor_b32 s45, s44, {TAGX:#x}\n  v_mov_b32 v10, s44\n  v_mov_b32 v11, s45\n  s_mov_b64 exec, 0xffff\n  s_waitcnt lgkmcnt(0)\n  v_lshl_or_b32 v8, v12, 16, v8\n  v_lshl_or_b32 v9, v13, 16, v9")
        A(f"  global_store_dwordx4 v5, {vq(8)}, {sp(sWS)} sc1")
        A("L_h1bar:\n  s_barrier\n  s_barrier\n  s_branch L_exit2")
        A("L_recv:")
        A(f"  s_lshl_b32 s41, s{sB}, 3\n  s_add_u32 s41, s41, s{sXCD}\n  s_lshl_b32 s41, s41, 1\n  s_add_u32 s41, s41, s{sHW}")
        A(f"  s_mul_i32 s46, s41, {INB}\n  s_add_u32 s46, s46, {WS_INBOX}\n  s_add_u32 s47, s46, {43*256 + 8}\n  s_add_u32 s60, s46, 4096\n  v_add_u32 v5, s60, v{vL16}\n  v_add_u32 v7, 4096, v5")
        A(f"  s_lshr_b32 s60, s41, 5\n  s_lshl_b32 s60, s60, 11\n  s_bfe_u32 s61, s41, 0x30002\n  s_lshl_b32 s61, s61, 7\n  s_add_u32 s60, s60, s61\n  s_and_b32 s61, s41, 3\n  s_lshl_b32 s61, s61, 1\n  s_add_u32 s60, s60, s61")
        A(f"  v_and_b32 v4, 1, v{vG}\n  v_lshl_add_u32 v6, v{vJ}, 3, s60\n  v_lshl_add_u32 v6, v4, 10, v6\n  v_lshlrev_b32 v4, 4, v4\n  v_sub_u32 v4, 16, v4")
        A(f"  s_xor_b32 s45, s44, {TAGX:#x}")
        lp = self.lab("pollX"); ld = self.lab("gotX")
        A(f"{lp}:\n  s_load_dword s60, {sp(sWS)}, s47 glc\n  s_waitcnt lgkmcnt(0)\n  s_cmp_eq_u32 s60, s44\n  s_cbranch_scc1 {ld}")
        self.guard()
        A(f"  s_sleep {c['rx_sleep']}\n  s_branch {lp}\n{ld}:")
        self.stamp(1)
        if c["rx_delay"]: A(f"  s_sleep {c['rx_delay']}")
        lp = self.lab("pollI"); ld = self.lab("gotI")
        A(f"{lp}:")
        for i in range(11): A(f"  global_load_dwordx4 {vq(44+4*i)}, v{5 if i < 8 else 7}, {sp(sWS)} offset:{1024*i - (4096 if i < 8 else 8192)}{c['rxfl']}")
        A("L_dry_r:")
        for i in range(11):
            q = 44 + 4 * i
            A(f"  s_waitcnt vmcnt({10-i})")
            if i == 0:
                A(f"  v_xor_b32 v10, s44, v{q+2}\n  v_xor_b32 v11, s45, v{q+3}\n  v_mov_b32 v8, v{q}\n  v_mov_b32 v9, v{q+1}")
            else:
                A(f"  v_bitop3_b32 v10, v10, v{q+2}, s44 bitop3:0xf6\n  v_bitop3_b32 v11, v11, v{q+3}, s45 bitop3:0xf6")
                if i < 10: A(f"  v_add_f32 v8, v8, v{q}\n  v_add_f32 v9, v9, v{q+1}")
                else: A(f"  v_add_f32_dpp v8, v{q}, v8 quad_perm:[0,1,2,3] row_mask:0x7 bank_mask:0xf\n  v_add_f32_dpp v9, v{q+1}, v9 quad_perm:[0,1,2,3] row_mask:0x7 bank_mask:0xf")
        A(f"  v_or_b32 v10, v10, v11\n  v_cmp_ne_u32 vcc, 0, v10\n  s_cbranch_vccz {ld}")
        self.guard()
        A(f"  s_branch {lp}\n{ld}:")
        self.stamp(4); self.cstamp(15)
        if c["xdelay"]: A(f"  s_sleep {c['xdelay']}")
        A("  v_mov_b32 v12, v84\n  v_mov_b32 v13, v85\n  v_permlane16_swap_b32 v8, v9\n  v_permlane32_swap_b32 v12, v84\n  v_permlane32_swap_b32 v13, v85")
        A("  v_add_f32 v8, v8, v9\n  v_mov_b32 v12, v84\n  v_mov_b32 v13, v85\n  v_mov_b32 v9, v8")
        A("  v_permlane16_swap_b32 v12, v84\n  v_permlane16_swap_b32 v13, v85\n  v_permlane32_swap_b32 v9, v8")
        A("  v_lshlrev_b32 v84, v4, v84\n  v_lshlrev_b32 v85, v4, v85\n  v_add_f32 v8, v8, v9\n  v_and_b32 v84, 0xffff0000, v84\n  v_and_b32 v85, 0xffff0000, v85")
        self.rnd1(8, 9)
        A("  v_mul_f32 v8, v85, v8"); self.rnd1(8, 9)
        A("  v_add_f32 v8, v84, v8\n  v_cvt_pk_bf16_f32 v8, v8, v8")
        if c["dry"]: A("  s_cbranch_execz L_exit")
        A("  s_mov_b32 exec_hi, 0")
        A(f"  global_store_short v6, v8, {sp(sOUT)}{c['outfl']}")
        self.execall()
        self.stamp(5)
        A("  s_branch L_exit")
        A("L_reducer:")
        A(f"  v_lshlrev_b32 v4, 2, v{vLANE}\n  v_add_u32 v4, {L_GUP}, v4")
        A(f"  v_and_b32 v5, 1, v{vLANE}\n  v_lshlrev_b32 v5, 6, v5\n  v_and_b32 v6, 62, v{vLANE}\n  v_add_u32 v5, v5, v6")
        A("  s_barrier")
        A("L_dry_red:")
        for w in range(8): A(f"  ds_read2st64_b32 {vp(8+2*w)}, v4 offset0:{2*w} offset1:{2*w+1}")
        A("  s_waitcnt lgkmcnt(4)")
        A("  v_add_f32 v8, v8, v10\n  v_add_f32 v9, v9, v11\n  v_add_f32 v12, v12, v14\n  v_add_f32 v13, v13, v15\n  v_add_f32 v8, v8, v12\n  v_add_f32 v9, v9, v13")
        A("  s_waitcnt lgkmcnt(0)")
        A("  v_add_f32 v16, v16, v18\n  v_add_f32 v17, v17, v19\n  v_add_f32 v20, v20, v22\n  v_add_f32 v21, v21, v23\n  v_add_f32 v16, v16, v20\n  v_add_f32 v17, v17, v21")
        A("  v_add_f32 v8, v8, v16\n  v_add_f32 v9, v9, v17")
        self.rnd2(8, 9, 10)
        A(f"  v_max_f32 v8, 0xc2ae0000, v8")
        self.expv([(11, 8, 12)], neg=True)
        A(f"  v_add_f32 v11, 1.0, v11")
        self.divv([(8, "1.0", 11, 12, 13)])
        self.rnd1(8, 10)
        A(f"  v_mul_f32 v8, v8, v9\n  v_cvt_pk_bf16_f32 v8, v8, v8\n  ds_write_b16 v5, v8 offset:{L_HH}\n  s_waitcnt lgkmcnt(0)")
        if c["dry"]: A("  s_cbranch_execz L_dry_s")
        A("  s_barrier")
        self.stamp(4)
        self.dumpv(8, 1, 0xE0000, 2, 256)
        A("  s_branch L_exit2")

    def build(self):
        A = self.A; c = self.c
        A(f"{KNAME}:")
        if c["stamps"]:
            for k in range(1, 16): A(f"  s_mov_b64 s[{70+2*k}:{71+2*k}], 0")
        self.stamp(0)
        A("  s_cmp_ge_u32 s2, 256\n  s_cbranch_scc1 L_end")
        A("  s_load_dwordx16 s[4:19], s[0:1], 0\n  s_load_dwordx8 s[20:27], s[0:1], 64\n  s_load_dwordx4 s[28:31], s[0:1], 96")
        A(f"  v_lshrrev_b32 v2, 6, v0\n  v_and_b32 v0, 63, v0\n  v_readfirstlane_b32 s{sWAVE}, v2")
        A(f"  v_lshlrev_b32 v{vL16}, 4, v0")
        A(f"  s_and_b32 s{sXCD}, s2, 7\n  s_lshr_b32 s{sIDX}, s2, 3\n  s_lshr_b32 s{sB}, s{sIDX}, 2\n  s_and_b32 s{sJ}, s{sIDX}, 3")
        if c["hmap"] == 0: A(f"  s_lshl_b32 s{sH}, s{sXCD}, 2\n  s_add_u32 s{sH}, s{sH}, s{sJ}")
        elif c["hmap"] == 1: A(f"  s_lshl_b32 s{sH}, s{sJ}, 3\n  s_add_u32 s{sH}, s{sH}, s{sXCD}")
        elif c["hmap"] == 2: A(f"  s_lshr_b32 s{sH}, s{sXCD}, 1\n  s_lshl_b32 s{sH}, s{sH}, 3\n  s_and_b32 s60, s{sXCD}, 1\n  s_add_u32 s{sH}, s{sH}, s60\n  s_lshl_b32 s60, s{sJ}, 1\n  s_add_u32 s{sH}, s{sH}, s60")
        elif c["hmap"] == 3: A(f"  s_lshl_b32 s{sH}, s{sXCD}, 2\n  s_add_u32 s60, s{sJ}, 1\n  s_and_b32 s60, s60, 3\n  s_add_u32 s{sH}, s{sH}, s60")
        if c["fast0"]:
            l = self.lab("nofast")
            A(f"  s_cmp_ge_u32 s{sWAVE}, 8\n  s_cbranch_scc1 {l}")
            A(f"  s_lshl_b32 s56, s{sB}, 5\n  s_add_u32 s56, s56, s{sH}\n  s_lshl_b32 s56, s56, 20\n  s_add_u32 s56, s56, 0xC0000\n  s_lshl_b32 s{sOFF}, s{sWAVE}, {10 + c['gran'].bit_length() - 1}")
            A(f"  s_mov_b32 s{SRDA+2}, 0x40000\n  s_mov_b32 s{SRDA+3}, 0x20000\n  s_waitcnt lgkmcnt(0)\n  s_add_u32 s{SRDA}, s{sK}, s56\n  s_addc_u32 s{SRDA+1}, s{sK+1}, 0")
            for n in range(2): A(f"  buffer_load_dwordx4 {vq(40+4*n)}, v{vL16}, {sq(SRDA)}, s{sOFF} offen offset:{1024*n}{c['kfl']}")
            self.stamp(8)
            A(f"{l}:")
        if c["pref"]: self.prefetch()
        A(f"  v_mov_b32 v36, 0\n  v_mov_b32 v37, 0\n  v_lshrrev_b32 v{vG}, 4, v0\n  v_and_b32 v{vJ}, 15, v0\n  v_mov_b32 v{vZ}, 0\n  v_mov_b32 v{vONE}, 1")
        A(f"  s_mul_i32 s65, s{sB}, 3\n  s_add_u32 s65, s65, s{sJ}\n  s_lshr_b32 s60, s{sJ}, 1\n  s_sub_u32 s65, s65, s60\n  s_lshr_b32 s61, s65, 2")
        A(f"  s_lshr_b32 s60, s{sXCD}, 1\n  s_mul_i32 s{sSL}, s{sXCD}, 5\n  s_add_u32 s{sSL}, s{sSL}, s60\n  s_add_u32 s{sSL}, s{sSL}, s61\n  s_sub_u32 s{sSL}, s{sSL}, 1")
        A(f"  s_and_b32 s60, s{sXCD}, 1\n  s_add_u32 s60, s60, 5\n  s_cmp_lt_u32 s61, s60\n  s_cselect_b32 s{sFFN}, 1, 0\n  s_cmp_lt_u32 s{sSL}, 43\n  s_cselect_b32 s{sFFN}, s{sFFN}, 0")
        A(f"  s_add_u32 s60, s{sXCD}, 256\n  s_cmp_eq_u32 s{sIDX}, 28\n  s_cselect_b32 s57, s60, 100")
        A(f"  s_sub_u32 s60, s{sB}, {c['prodb']}\n  s_lshl_b32 s60, s60, 3\n  s_add_u32 s60, s60, s{sXCD}\n  s_cmp_lt_u32 s{sB}, {c['prodb']}\n  s_cselect_b32 s60, 64, s60")
        A(f"  s_cmp_eq_u32 s{sJ}, 1\n  s_cselect_b32 s57, s60, s57\n  s_cselect_b32 s{sFFN}, 0, s{sFFN}\n  s_and_b32 s{sJ}, s65, 3")
        if "M" in c["xskip"]: A("  s_cmp_lt_u32 s57, 48\n  s_cselect_b32 s57, 100, s57")
        if "F" in c["xskip"]: A("  s_cmp_ge_u32 s57, 256\n  s_cselect_b32 s57, 100, s57")
        A(f"  s_mov_b32 s{sGUARD}, 0\n  s_mov_b32 s{sPLO}, 0x05040100\n  s_mov_b32 s{sPHI}, 0x07060302\n  s_mov_b32 s{sLOG2E}, {LOG2E:#x}")
        A(f"  s_cmp_ge_u32 s{sWAVE}, 8\n  s_cbranch_scc1 L_helper")
        if c["hop"]: A("  HOPS")
        if c["sprio"]:
            l = self.lab("sp")
            A(f"  s_cmp_lt_u32 s{sWAVE}, 4\n  s_cbranch_scc1 {l}\n  s_setprio {c['sprio']}\n{l}:")
        A(f"  s_lshl_b32 s60, s{sB}, 5\n  s_add_u32 s60, s60, s{sH}\n  s_lshl_b32 s60, s60, 20\n  s_add_u32 s60, s60, 0xC0000")
        A(f"  s_lshl_b32 s{sOFF}, s{sWAVE}, {10 + c['gran'].bit_length() - 1}\n  s_mul_i32 s56, s{sWAVE}, {c['NV']*1024}\n  s_add_u32 s56, s56, {L_V}")
        gr = c["gran"] // 4
        for G in range(1, 8): A(f"  s_add_u32 s{sOFF+G}, s{sOFF}, {(G // gr) * 32768 * gr + (G % gr) * 4096}")
        A(f"  s_mov_b32 s{SRDA+2}, 0x40000\n  s_mov_b32 s{SRDA+3}, 0x20000\n  s_mov_b32 s{SRDB+2}, 0x40000\n  s_mov_b32 s{SRDB+3}, 0x20000")
        A("  s_waitcnt lgkmcnt(0)")
        D = c["D"]
        d2 = c["depth2"] or c["depth"]
        def mask(f1, f2):
            m = 0; acc = 0.5
            for n in range(64):
                acc += f1 if n < c["dsw"] else f2
                if acc >= 1.0 - 1e-9:
                    acc -= 1.0
                    if n < c["sprint"]: m |= 1 << n
            return m
        m1 = [mask(min(1.0, D - a), min(1.0, D - b)) for a, b in zip(c["depth"], d2)]
        m2 = [mask(max(0.0, D - 1 - a), max(0.0, D - 1 - b)) & x for a, b, x in zip(c["depth"], d2, m1)]
        for reg, ms in ((58, m1), (14, m2)):
            for half in range(2):
                w = [(m >> (32 * half)) & 0xffffffff for m in ms]
                A(f"  s_bitcmp1_b32 s{sXCD}, 0\n  s_mov_b32 s{reg+half}, {w[0]:#x}\n  s_cselect_b32 s{reg+half}, {w[1]:#x}, s{reg+half}")
                A(f"  s_cmp_lt_u32 s57, 48\n  s_cselect_b32 s{reg+half}, {w[2]:#x}, s{reg+half}\n  s_cmp_eq_u32 s57, 64\n  s_cselect_b32 s{reg+half}, {w[3]:#x}, s{reg+half}")
        A("  s_waitcnt lgkmcnt(0)")
        A(f"  s_add_u32 s{SRDA}, s{sK}, s60\n  s_addc_u32 s{SRDA+1}, s{sK+1}, 0\n  s_add_u32 s{SRDB}, s{sV}, s60\n  s_addc_u32 s{SRDB+1}, s{sV+1}, 0")
        if c["Dodd"]:
            A(f"  s_bitcmp1_b32 s{sXCD}, 0\n  s_cbranch_scc1 L_sodd")
        self.streamer(c["D"], "e")
        if c["Dodd"]:
            A("L_sodd:")
            self.streamer(c["Dodd"], "o")
        self.streamer_ffn()
        self.helper()
        if c["sub"]:
            A("L_gemv:"); self.gemv32(body=True); A("  s_setpc_b64 s[42:43]")
        A("L_exit2:")
        if c["stamps"]: A("  s_sleep 100")
        A("L_exit:")
        if c["stamps"] and c["diag"]:
            A(f"  s_sleep 127\n  s_sleep 127\n  s_load_dword s44, {sp(sDBG)}, 0x80\n  s_waitcnt lgkmcnt(0)\n  s_cmp_ge_u32 s{sWAVE}, 8\n  s_cbranch_scc1 L_diagh\n  s_cmp_lg_u32 s{sWAVE}, 7\n  s_cbranch_scc1 L_end")
            def rec(k, slot):
                l = self.lab("dg")
                A(f"  s_cmp_eq_u32 s{70+2*k}, 0\n  s_cbranch_scc1 {l}\n  s_sub_u32 s60, s{70+2*k}, s44\n  s_add_u32 s60, s60, 1000\n  s_atomic_umax s60, {sp(sDBG)}, {4*slot:#x}\n{l}:")
            for k, slot in ((0, 4), (11, 5), (1, 6), (3, 7), (5, 8), (7, 9)): rec(k, slot)
            A("  s_endpgm\nL_diagh:")
            A(f"  s_cmp_lg_u32 s{sWAVE}, 8\n  s_cbranch_scc1 L_end")
            for k, slot in ((6, 10), (7, 11), (2, 12), (3, 13), (4, 14), (5, 15)): rec(k, slot)
        elif c["stamps"]:
            A("  s_mov_b64 exec, 1\n  s_waitcnt lgkmcnt(0)")
            A(f"  s_mul_i32 s60, s2, 12\n  s_add_u32 s60, s60, s{sWAVE}\n  s_lshl_b32 s60, s60, 7\n  s_add_u32 s60, s60, {WS_STAMP}\n  v_mov_b32 v4, s60")
            for k in range(16):
                A(f"  v_mov_b32 v6, s{70+2*k}\n  v_mov_b32 v7, s{71+2*k}\n  global_store_dwordx2 v4, v[6:7], {sp(sWS)} offset:{8*k}")
        A("L_end:\n  s_endpgm")
        body = fix_hazards(self.L)
        if c["hop"]:
            lines = body.split("\n"); out_ = []; pos = 0; last = -10**9; stubs = []
            for ln in lines:
                out_.append(ln)
                t = ln.strip()
                if t and not t.endswith(":") and not t.startswith("."):
                    pos += 4 if t.startswith(("s_", "v_mov_b32 ", "v_add_f32 ", "v_and_b32 ", "v_lshlrev_b32 ", "v_exp", "v_mul_f32 ")) and "0x" not in t else 8
                if t.startswith("s_branch") and pos - last >= c.get("hopgap", 1700):
                    stubs.append(f"L_stub_{len(stubs)}"); out_.append(f"{stubs[-1]}:\n  s_setpc_b64 s[68:69]"); last = pos
            stubs = stubs[1:]
            h = []
            for w in range(8):
                h.append(f"  s_cmp_lg_u32 s{sWAVE}, {w}\n  s_cbranch_scc1 L_hop_{w}")
                h += [f"  s_call_b64 s[68:69], {st}" for st in stubs[w::8]]
                h.append(f"  s_branch L_hop_end\nL_hop_{w}:")
            h.append("L_hop_end:")
            body = "\n".join(out_).replace("  HOPS", "\n".join(h))
        nk = c["prefkib"]
        out = HEADER + f"; @launch grid=(256,1,1) block=(768,1,1) lds={L_V + 8192*c['NV']}\n"
        out += '.amdgcn_target "amdgcn-amd-amdhsa--gfx950"\n.text\n'
        out += f".globl {KNAME}\n.p2align 8\n.type {KNAME},@function\n" + body
        out += "  .fill 64, 4, 0xbf800000\n"
        if c["spref"]: nk += 1
        if c["pref"] or c["pref2"] or c["spref"]:
            out += f"L_codeend:\n.if (L_codeend - {KNAME}) < {nk*1024}\n.fill ({nk*1024} - (L_codeend - {KNAME}))/4, 4, 0xbf800000\n.endif\n"
        out += f""".section .rodata,"a"
.p2align 6
.amdhsa_kernel {KNAME}
  .amdhsa_next_free_vgpr 168
  .amdhsa_next_free_sgpr 102
  .amdhsa_accum_offset 168
  .amdhsa_group_segment_fixed_size 0
  .amdhsa_kernarg_size 112
  .amdhsa_user_sgpr_count 2
  .amdhsa_user_sgpr_kernarg_segment_ptr 1
  .amdhsa_system_sgpr_workgroup_id_x 1
  .amdhsa_float_denorm_mode_32 3
.end_amdhsa_kernel
"""
        return out

def gen(**cfg): return Gen(**cfg).build()

if __name__ == "__main__":
    import json
    cfg = json.loads(sys.argv[2]) if len(sys.argv) > 2 else {}
    open(sys.argv[1], "w").write(gen(**cfg))
```

```python
import sys, struct
from asmlib import fix_hazards

KNAME = "adaLN_cond__sliding_block_cached__glu_gated_glu__decode_kernel"

HEADER = """; Kernarg layout for this problem (112 bytes, ptrs only, base s[0:1]):
;   offset  32: d_in[4] A_wo  shape=(4096, 512) dtype=bfloat16
;   offset  80: d_in[10] w_mod  shape=(512, 3072) dtype=bfloat16
;   offset 104: d_ws      workspace
; One persistent launch, one workgroup per (batch b, head h), 12 waves:
;  * waves 8-11 (helpers) hold the wq / wo slice of the head in registers: LayerNorm + adaLN modulation, q projection,
;  Every bf16 rounding of the reference is reproduced. Hand-offs between workgroups go through d_ws and are validated
;  with a per-launch nonce published in d_debug (checksums / tagged granules), so stale workspace contents are never used.
;  The s_sleep instructions are back-offs of the spin-waits (polling too early slows the writers down).
"""

WS_MOD, WS_STAT, WS_MARK, WS_ACC, WS_QTAG, WS_HINT, WS_INBOX, WS_QIN, WS_DUMP, WS_STAMP = 0x0, 0xC000, 0xD000, 0x10000, 0x18000, 0x20000, 0x40000, 0x1C0000, 0x200000, 0x20000000
F_H, F_Q, F_Q2, F_ST, F_O, F_MOD, F_MOD2, F_C, F_P, F_W, F_K, F_A, F_R, F_N, F_HS, F_RK = 0, 4, 8, 12, 16, 20, 24, 28, 32, 36, 40, 44, 48, 52, 56, 0x80
L_STATS, L_QB, L_OP, L_OB, L_HBUF, L_QP = 0x40, 0x100, 0x200, 0x1200, 0x1600, 0x2600
L_MODR, L_H2, L_X1, L_GUP, L_HH, L_MODP = 0x2200, 0x4A00, 0x5200, 0x5A00, 0x6A00, 0x7000
L_V = 0x7000
L_ROWS = 0x1600

def f2u(x): return struct.unpack("<I", struct.pack("<f", x))[0]
INB = 11264
TAGX = 0x5bd1e995
LOG2E = f2u(1.4426950408889634)
SCALE = f2u(128 ** -0.5)
LOG2E_LO = f2u(1.4426950408889634074 - struct.unpack('<f', struct.pack('<I', LOG2E))[0])
LN2 = f2u(0.6931471805599453)

sX, sK, sV, sWQ, sWO, sG, sU, sDN, sC, sWM, sOUT, sDBG, sWS = 4, 6, 8, 10, 12, 16, 18, 20, 22, 24, 26, 28, 30
sWAVE, sXCD, sIDX, sB, sJ, sH, sSL, sFFN = 32, 33, 34, 35, 36, 37, 38, 39
sOFF = 40
SRDA, SRDB = 48, 52
sPLO, sPHI, sGUARD, sLOG2E = 62, 63, 64, 66
sHW = 67
vLANE, vL16, vG, vJ, vZ, vONE = 0, 1, 2, 3, 38, 39

def sp(r): return f"s[{r}:{r+1}]"
def sq(r): return f"s[{r}:{r+3}]"
def vp(r): return f"v[{r}:{r+1}]"
def vq(r): return f"v[{r}:{r+3}]"

class Gen:
    def __init__(self, **cfg):
        self.c = dict(D=4, HD=4, HD0=6, HDO=4, P0=24, stamps=False, dump=False, guard=200000, pref=False,
                      inbox_sleep=6, hint_sleep=2, Dodd=None, pref2=False, prefwg=16, prefkib=26, hint_at=28, poll_sleep=8, NV=16, depth=[3.15, 3.15, 4, 3.15], FD=4, NF0=0, HDOf=4, H0D=4, H0D1=2, prio=2, nowo=False, wo_at=None, abl=None, init_mode='full', ablD=7, H0DQ=18, H0pre=True, fillD=4, nofill=False, q_sleep0=8, q_sleep=8, a_sleep=16, xskip=[], plainA=True, down_late=False, wofl='', tlb=0, modlag=2, HDf=4, ffnfl='', HDP=2, HDPf=2, PQ=23, kfl=' nt', vfl=' nt', hmap=0, wqpat=32, full_sleep=0, hint_lag=3, PB=2, fmode='flood', PR=8, wqpf=3, wqpfD=16, wqfl='', wqx=0, sprint=58, prodb=2, o_sleep=1, depth2=[3.15, 3.15, 4, 3.6], dsw=34, gran=4, outfl=' sc1', hprio=2, sprio=1, sprio_off=31, dry=True, prefidx=13, diag=False, early=True, xdelay=0, ool=True, lazy=True, hfirst=True, BN=4, E=4, pfbar=False, modsl=True, rank=[], rankd=[2.7, 2.95, 3.2, 3.6], PBQ=12, wopf=None, wopfw=2, pffl='', wmfl=' nt', hop=False, modil=False, spref=0, wopat=8, rxfl=' sc1', accfl=' sc1', txfl=' sc1', late_delay=10, sub=False, dryo=False, gate=False, oadd=False, fast0=True, read_delay=18, barD=False, rx_sleep=8, rx_delay=14)
        self.c.update(cfg)
        self.L = []
        self.nlab = 0

    def A(self, s): self.L.append(s)
    def lab(self, base):
        self.nlab += 1
        return f"L_{base}_{self.nlab}"
    def stamp(self, k):
        if self.c["stamps"]: self.A(f"  s_memrealtime s[{70+2*k}:{71+2*k}]")
    def cstamp(self, k):
        if self.c["stamps"]:
            self.A(f"  s_waitcnt lgkmcnt(0)\n  s_mul_i32 s{70+2*k}, s{sGUARD}, 100\n  s_add_u32 s{70+2*k}, s{70+2*k}, s70\n  s_addc_u32 s{71+2*k}, s71, 0")
    def guard(self):
        if self.c["guard"]:
            self.A(f"  s_add_u32 s{sGUARD}, s{sGUARD}, 1\n  s_cmp_gt_u32 s{sGUARD}, {self.c['guard']}\n  s_cbranch_scc1 L_exit")
    def exec1(self): self.A("  s_mov_b64 exec, 1")
    def execall(self): self.A("  s_mov_b64 exec, -1")

    def lds_spin(self, off, target, tmp, sleep=1):
        l = self.lab("spin"); d = self.lab("spun")
        self.A(f"{l}:")
        self.A(f"  ds_read_b32 v{tmp}, v{vZ} offset:{off}\n  s_waitcnt lgkmcnt(0)\n  v_readfirstlane_b32 s60, v{tmp}")
        self.A(f"  s_cmp_ge_u32 s60, {target}\n  s_cbranch_scc1 {d}")
        self.guard()
        if sleep: self.A(f"  s_sleep {sleep}")
        self.A(f"  s_branch {l}\n{d}:")

    def lds_inc(self, off):
        self.exec1(); self.A(f"  ds_add_u32 v{vZ}, v{vONE} offset:{off}"); self.execall()

    def dumpv(self, reg, n, base, sidx=None, stride=0, tmp=36):
        if not self.c["dump"]: return
        A = self.A
        if sidx is not None:
            A(f"  s_mul_i32 s68, s{sidx}, {stride}\n  s_add_u32 s68, s68, {WS_DUMP + base}")
        else:
            A(f"  s_mov_b32 s68, {WS_DUMP + base}")
        A(f"  v_lshlrev_b32 v{tmp}, {dict([(1,2),(2,3),(4,4)])[n]}, v{vLANE}\n  v_add_u32 v{tmp}, s68, v{tmp}")
        op = {1: "dword", 2: "dwordx2", 4: "dwordx4"}[n]
        r = f"v{reg}" if n == 1 else f"v[{reg}:{reg+n-1}]"
        A(f"  global_store_{op} v{tmp}, {r}, {sp(sWS)}\n  s_waitcnt vmcnt(0)")

    def prefetch(self, wait=False):
        A = self.A
        l = self.lab("nopref"); lp = self.lab("pref"); pc = self.lab("pc")
        A(f"  s_cmp_lg_u32 s{sWAVE}, 11\n  s_cbranch_scc1 {l}\n  s_cmp_lg_u32 s{sIDX}, {self.c['prefidx']}\n  s_cbranch_scc1 {l}")
        A(f"  s_getpc_b64 s[60:61]\n{pc}:\n  s_sub_u32 s60, s60, {pc}-{KNAME}\n  s_subb_u32 s61, s61, 0\n  v_mov_b32 v36, v{vL16}\n  s_mov_b32 s65, {self.c['prefkib']}")
        A(f"{lp}:\n  global_load_dword v35, v36, s[60:61]\n  v_add_u32 v36, 1024, v36\n  s_sub_u32 s65, s65, 1\n  s_cmp_lg_u32 s65, 0\n  s_cbranch_scc1 {lp}")
        if wait: A("  s_waitcnt vmcnt(0)")
        A(f"{l}:")

    def rnd1(self, x, t):
        self.A(f"  v_cvt_pk_bf16_f32 v{t}, v{x}, v{x}\n  v_and_b32 v{x}, 0xffff0000, v{t}")
    def rnd2(self, x, y, t):
        self.A(f"  v_cvt_pk_bf16_f32 v{t}, v{x}, v{y}\n  v_lshlrev_b32 v{x}, 16, v{t}\n  v_and_b32 v{y}, 0xffff0000, v{t}")
    def rnd8(self, X, T):
        for i in range(4): self.A(f"  v_cvt_pk_bf16_f32 v{T+i}, v{X+2*i}, v{X+2*i+1}")
        self.unpack8(T, X)
    def unpack8(self, src, dst):
        for i in range(4):
            self.A(f"  v_lshlrev_b32 v{dst+2*i}, 16, v{src+i}\n  v_and_b32 v{dst+2*i+1}, 0xffff0000, v{src+i}")
    def expv(self, pairs, neg=False):
        A = self.A; n = "-" if neg else ""
        for d, x, t in pairs: A(f"  v_mul_f32 v{d}, s{sLOG2E}, v{x}")
        for d, x, t in pairs: A(f"  v_fma_f32 v{t}, v{x}, s{sLOG2E}, -v{d}")
        for d, x, t in pairs: A(f"  v_exp_f32 v{d}, {n}v{d}")
        for d, x, t in pairs: A(f"  v_fmac_f32 v{t}, {LOG2E_LO:#x}, v{x}")
        for d, x, t in pairs: A(f"  v_mul_f32 v{t}, {(LN2 | 0x80000000) if neg else LN2:#x}, v{t}")
        for d, x, t in pairs: A(f"  v_fmac_f32 v{d}, v{d}, v{t}")
    def divv(self, items):
        A = self.A
        for q, a, b, r, t in items: A(f"  v_rcp_f32 v{r}, v{b}")
        for q, a, b, r, t in items: A(f"  v_fma_f32 v{t}, -v{b}, v{r}, 1.0")
        for q, a, b, r, t in items: A(f"  v_fmac_f32 v{r}, v{t}, v{r}")
        for q, a, b, r, t in items:
            if a == "1.0": A(f"  v_fma_f32 v{t}, -v{b}, v{r}, 1.0")
            else: A(f"  v_mul_f32 v{q}, v{a}, v{r}")
        for q, a, b, r, t in items:
            if a == "1.0": A(f"  v_fma_f32 v{q}, v{t}, v{r}, v{r}")
            else: A(f"  v_fma_f32 v{t}, -v{q}, v{b}, v{a}")
        for q, a, b, r, t in items:
            if a != "1.0": A(f"  v_fmac_f32 v{q}, v{t}, v{r}")

    def wave_reduce(self, op, regs, full=True):
        steps = []
        if full: steps += ["quad_perm:[1,0,3,2] row_mask:0xf bank_mask:0xf", "quad_perm:[2,3,0,1] row_mask:0xf bank_mask:0xf"]
        steps += ["row_ror:4 row_mask:0xf bank_mask:0xf", "row_ror:8 row_mask:0xf bank_mask:0xf",
                  "row_bcast:15 row_mask:0xa bank_mask:0xf", "row_bcast:31 row_mask:0xc bank_mask:0xf"]
        for s in steps:
            for r in regs: self.A(f"  {op}_dpp v{r}, v{r}, v{r} {s}")

    def pk8(self, op, D, Aq, Bq):
        for i in range(0, 8, 2): self.A(f"  v_pk_{op}_f32 {vp(D+i)}, {vp(Aq+i)}, {vp(Bq+i)}")

    def layernorm(self, X, T, S):
        A = self.A
        A(f"  v_readfirstlane_b32 s60, v{X}")
        for i in range(0, 8, 2): A(f"  v_pk_add_f32 {vp(T+i)}, {vp(X+i)}, s[60:61] op_sel_hi:[1,0] neg_lo:[0,1] neg_hi:[0,1]")
        A(f"  v_pk_add_f32 {vp(S)}, {vp(T)}, {vp(T+2)}\n  v_pk_mul_f32 {vp(S+2)}, {vp(T)}, {vp(T)}")
        A(f"  v_pk_add_f32 {vp(S)}, {vp(S)}, {vp(T+4)}\n  v_pk_fma_f32 {vp(S+2)}, {vp(T+2)}, {vp(T+2)}, {vp(S+2)}")
        A(f"  v_pk_add_f32 {vp(S)}, {vp(S)}, {vp(T+6)}\n  v_pk_fma_f32 {vp(S+2)}, {vp(T+4)}, {vp(T+4)}, {vp(S+2)}")
        A(f"  v_add_f32 v{S}, v{S}, v{S+1}\n  v_pk_fma_f32 {vp(S+2)}, {vp(T+6)}, {vp(T+6)}, {vp(S+2)}\n  v_add_f32 v{S+1}, v{S+2}, v{S+3}")
        self.wave_reduce("v_add_f32", [S, S + 1])
        A(f"  v_readlane_b32 s61, v{S}, 63\n  v_readlane_b32 s65, v{S+1}, 63")
        inv = f2u(1.0 / 512)
        A(f"  v_mov_b32 v{S+2}, {inv:#x}")
        A(f"  v_mul_f32 v{S}, s61, v{S+2}\n  v_mul_f32 v{S+1}, s65, v{S+2}")
        A(f"  v_fma_f32 v{S+1}, -v{S}, v{S}, v{S+1}\n  v_add_f32 v{S}, s60, v{S}\n  v_max_f32 v{S+1}, 0, v{S+1}")
        self.rnd2(S, S + 1, S + 2)
        A(f"  v_add_f32 v{S+1}, {f2u(1e-5):#x}, v{S+1}")
        for i in range(0, 4, 2): A(f"  v_pk_add_f32 {vp(X+i)}, {vp(X+i)}, {vp(S)} op_sel_hi:[1,0] neg_lo:[0,1] neg_hi:[0,1]")
        A(f"  v_cvt_pk_bf16_f32 v{S+2}, v{S+1}, v{S+1}")
        for i in range(4, 8, 2): A(f"  v_pk_add_f32 {vp(X+i)}, {vp(X+i)}, {vp(S)} op_sel_hi:[1,0] neg_lo:[0,1] neg_hi:[0,1]")
        A(f"  v_and_b32 v{S+1}, 0xffff0000, v{S+2}\n  v_sqrt_f32 v{S+1}, v{S+1}")
        for i in range(4): A(f"  v_cvt_pk_bf16_f32 v{T+i}, v{X+2*i}, v{X+2*i+1}")
        self.rnd1(S + 1, S + 2)
        A(f"  v_rcp_f32 v{S+2}, v{S+1}")
        self.unpack8(T, X)
        for i in range(0, 8, 2): A(f"  v_pk_mul_f32 {vp(X+i)}, {vp(X+i)}, {vp(S+2)} op_sel_hi:[1,0]")
        self.rnd8(X, T)

    def transpose_block(self, B, t0, t1):
        A = self.A
        R = lambda e, t: B + 4 * e + t
        lo = lambda d, a, b: A(f"  v_perm_b32 v{d}, v{b}, v{a}, s{sPLO}")
        hi = lambda d, a, b: A(f"  v_perm_b32 v{d}, v{b}, v{a}, s{sPHI}")
        for p in range(4):
            a, b = R(2 * p, p), R(2 * p + 1, p)
            lo(t0, a, b); hi(b, a, b); A(f"  v_mov_b32 v{a}, v{t0}")
            for t in range(p + 1, 4):
                a, b, c, d = R(2 * p, t), R(2 * p + 1, t), R(2 * t, p), R(2 * t + 1, p)
                lo(t0, a, b); hi(t1, a, b); lo(a, c, d); hi(b, c, d)
                A(f"  v_mov_b32 v{c}, v{t0}\n  v_mov_b32 v{d}, v{t1}")

    def transpose_x2(self, Rb, Bb):
        for c in range(4):
            for p in range(4):
                a, b = Rb + 2 * (2 * p) + (c >> 1), Rb + 2 * (2 * p + 1) + (c >> 1)
                self.A(f"  v_perm_b32 v{Bb+4*c+p}, v{b}, v{a}, s{sPHI if c & 1 else sPLO}")

    def gemv32(self, body=False):
        res = [24] + [40 + 4 * k for k in range(7)]
        if self.c["sub"] and not body:
            pc = self.lab("call")
            self.A(f"  s_getpc_b64 s[60:61]\n{pc}:\n  s_add_u32 s60, s60, L_gemv-{pc}\n  s_addc_u32 s61, s61, 0\n  s_swappc_b64 s[42:43], s[60:61]\n  s_nop 7")
            return res
        for c in range(8):
            for m in range(4):
                self.A(f"  v_mfma_f32_16x16x32_bf16 {vq(res[c])}, {vq(8+4*m)}, {vq(40+32*m+4*c)}, {'0' if m == 0 else vq(res[c])}")
        return res

    def wload32(self, srd, steps, D, frac=None, hooks=None, fl=None):
        A = self.A
        done = 0
        for i in range(32):
            dd = D
            if frac is not None and int((i + 1) * (D - frac)) != int(i * (D - frac)): dd = D - 1
            if i >= dd: A(f"  s_waitcnt vmcnt({dd-1})")
            if hooks and i in hooks: hooks[i]()
            A(f"  buffer_load_dwordx4 {vq(40+4*i)}, v4, {sq(srd)}, s40 offen{self.c['wofl'] if fl is None else fl}")
            if i < 31: A(f"  s_add_u32 s40, s40, {steps[i]}")
            landed = i - D + 1 if i >= D else 0
            if landed >= 8 * (done + 1):
                self.transpose_block(40 + 32 * done, 5, 6); done += 1
        while done < 4:
            A(f"  s_waitcnt vmcnt({8*(3-done)})")
            self.transpose_block(40 + 32 * done, 5, 6); done += 1

    def init_duty(self, wave):
        A = self.A
        l2 = self.lab("inited"); l3 = self.lab("noinit")
        A(f"  s_cmp_lg_u32 s{sWAVE}, {wave}\n  s_cbranch_scc1 {l3}")
        mark = len(self.L)
        A("  v_mov_b32 v8, -1\n  v_mov_b32 v9, -1\n  v_mov_b32 v10, -1\n  v_mov_b32 v11, -1")
        A(f"  s_lshl_b32 s60, s2, 12\n  s_add_u32 s60, s60, {WS_QIN}\n  v_add_u32 v5, s60, v{vL16}")
        for i in range(4): A(f"  global_store_dwordx4 v5, {vq(8)}, {sp(sWS)} offset:{1024*i} sc1")
        A(f"  s_cmp_eq_u32 s{sFFN}, 0\n  s_cbranch_scc1 {l2}\n  s_cmp_ge_u32 s{sSL}, 32\n  s_cbranch_scc1 {l2}")
        A(f"  s_lshl_b32 s60, s{sJ}, 5\n  s_add_u32 s60, s60, s{sSL}\n  s_mul_i32 s60, s60, 6144\n  s_add_u32 s60, s60, {WS_INBOX + 2048}\n  v_add_u32 v5, s60, v{vL16}")
        for i in range(6): A(f"  global_store_dwordx4 v5, {vq(8)}, {sp(sWS)} offset:{1024*i - 2048} sc1")
        A(f"  s_cmp_ge_u32 s{sSL}, 8\n  s_cbranch_scc1 {l2}")
        A("  v_mov_b32 v12, 0\n  v_mov_b32 v13, 0\n  v_mov_b32 v14, 0\n  v_mov_b32 v15, 0")
        A(f"  s_lshl_b32 s60, s{sJ}, 3\n  s_add_u32 s60, s60, s{sSL}\n  s_lshl_b32 s60, s60, 10\n  s_add_u32 s60, s60, {WS_ACC}\n  v_add_u32 v5, s60, v{vL16}")
        A(f"  global_store_dwordx4 v5, {vq(12)}, {sp(sWS)} sc1")
        if self.c["init_mode"] == "nostore": self.L[mark:] = []
        A(f"{l2}:\n  s_waitcnt vmcnt(0)")
        if self.c["init_mode"] != "noticket":
            A(f"  s_mov_b32 s65, 1\n  s_atomic_add s65, {sp(sDBG)}, 0x4 glc\n  s_waitcnt lgkmcnt(0)")
            A(f"  s_cmp_lg_u32 s65, 255\n  s_cbranch_scc1 {l3}\n  s_mov_b32 s65, 1\n  s_atomic_add s65, {sp(sDBG)}, 0x84")
        A(f"{l3}:")

    def streamer(self, D, tag):
        A = self.A; c = self.c
        T = lambda n: 40 + 4 * n
        issued = []
        def issue(name, srd, n):
            A(f"  buffer_load_dwordx4 {vq(T(n))}, v{vL16}, {sq(srd)}, s{sOFF + (n >> 2)} offen offset:{1024*(n&3)}{c['kfl']}")
            issued.append(name)
        def rmask(d):
            def mk(fr):
                m = 0; acc = 0.5
                for n in range(64):
                    acc += fr
                    if acc >= 1.0 - 1e-9:
                        acc -= 1.0
                        if n < c["sprint"]: m |= 1 << n
                return m
            m1 = mk(min(1.0, D - d)); return m1, mk(max(0.0, D - 1 - d)) & m1
        def rank_hook(n):
            for st, n0 in enumerate(c["rank"]):
                if n == n0:
                    l = self.lab("rk")
                    A(f"  s_cmp_lg_u32 s{sWAVE}, 0\n  s_cbranch_scc1 {l}\n  ds_read_b32 v12, v{vZ} offset:{F_C}\n  s_mov_b32 s4, -1\n  s_waitcnt lgkmcnt(0)\n  v_readfirstlane_b32 s60, v12\n  s_cmp_eq_u32 s60, 0\n  s_cbranch_scc1 {l}\n  s_cmp_lt_u32 s57, 100\n  s_cbranch_scc1 {l}")
                    A(f"  s_lshl_b32 s60, s{sB}, 12\n  s_add_u32 s60, s60, {WS_ACC + 3328 + 128 * st}\n  s_mov_b32 s4, 1\n  s_atomic_add s4, {sp(sWS)}, s60 glc\n{l}:")
                if n == n0 + 3:
                    l = self.lab("rk")
                    A(f"  s_cmp_lg_u32 s{sWAVE}, 0\n  s_cbranch_scc1 {l}\n  s_waitcnt lgkmcnt(0)\n  s_add_u32 s4, s4, 1\n  v_mov_b32 v12, s4\n  ds_write_b32 v{vZ}, v12 offset:{F_RK + 4 * st}\n{l}:")
                if n == n0 + 4: A(f"  ds_read_b32 v13, v{vZ} offset:{F_RK + 4 * st}")
                if n == n0 + 5:
                    l = self.lab("rk")
                    A(f"  s_waitcnt lgkmcnt(0)\n  v_readfirstlane_b32 s60, v13\n  s_cmp_eq_u32 s60, 0\n  s_cbranch_scc1 {l}")
                    nq = len(c["rankd"])
                    for qi, d in enumerate(c["rankd"]):
                        m1, m2 = rmask(d)
                        if qi == 0:
                            A(f"  s_mov_b32 s58, {m1 & 0xffffffff:#x}\n  s_mov_b32 s59, {m1 >> 32:#x}\n  s_mov_b32 s14, {m2 & 0xffffffff:#x}\n  s_mov_b32 s15, {m2 >> 32:#x}")
                        else:
                            A(f"  s_cmp_gt_u32 s60, {24 * qi // nq}\n  s_cselect_b32 s58, {m1 & 0xffffffff:#x}, s58\n  s_cselect_b32 s59, {m1 >> 32:#x}, s59\n  s_cselect_b32 s14, {m2 & 0xffffffff:#x}, s14\n  s_cselect_b32 s15, {m2 >> 32:#x}, s15")
                    A(f"{l}:")
        def pace():
            n = len(issued)
            rank_hook(n)
            if n >= D: A(f"  s_waitcnt vmcnt({D-1})")
            if n >= D - 2 and n < 64:
                l = self.lab("pc")
                A(f"  s_bitcmp1_b64 s[58:59], {n}\n  s_cbranch_scc0 {l}\n  s_waitcnt vmcnt({D-2})")
                A(f"  s_bitcmp1_b64 s[14:15], {n}\n  s_cbranch_scc0 {l}\n  s_waitcnt vmcnt({D-3})\n{l}:")
        def waitfor(name):
            A(f"  s_waitcnt vmcnt({len(issued) - 1 - issued.index(name)})")
        lnp = self.lab("noprod"); lj = self.lab("joined")
        E = c["E"] if c["fast0"] else 0
        NJ = (E + 8 + D - 1 if c["modil"] else (E + D if c["modsl"] else D)) + c["modlag"]
        assert NJ <= 16
        if c["ool"]:
            A(f"  s_cmp_lt_u32 s57, {48 if (c['abl'] is None or 'mod' in c['abl']) else 0}\n  s_cbranch_scc1 {lnp}")
            mark = len(self.L); A(f"{lnp}:")
        else:
            A(f"  s_cmp_ge_u32 s57, {48 if (c['abl'] is None or 'mod' in c['abl']) else 0}\n  s_cbranch_scc1 {lnp}")
        if c["lazy"]: self.consts()
        self.mod_loads()
        if c["modil"]:
            self.mod_w(0)
            A("  s_barrier")
            for i in range(8):
                if i:
                    A(f"  s_waitcnt vmcnt({D-1})"); self.mod_w(i)
                A(f"  s_waitcnt vmcnt({D-1})"); issue(f"K{E+i}", SRDA, E + i)
                if i == 2:
                    self.mod_compute_a(); A(f"  s_load_dword s3, {sp(sDBG)}, 0x80")
            for n in range(E + 8, E + 8 + D - 1):
                A(f"  s_waitcnt vmcnt({D-1})"); issue(f"K{n}", SRDA, n)
            self.stamp(9)
            self.mod_compute_b()
            for n in range(E + 8 + D - 1, NJ):
                A(f"  s_waitcnt vmcnt({D-1})"); issue(f"K{n}", SRDA, n)
        elif c["modsl"]:
            A("  s_barrier")
            self.mod_compute_a()
            A(f"  s_load_dword s3, {sp(sDBG)}, 0x80")
            for n in range(E, E + D):
                A(f"  s_waitcnt vmcnt({D-1})"); issue(f"K{n}", SRDA, n)
            self.stamp(9)
            self.mod_compute_b()
            for n in range(E + D, NJ):
                A(f"  s_waitcnt vmcnt({D-1})"); issue(f"K{n}", SRDA, n)
        else:
            A("  s_barrier")
            self.mod_compute_a()
            A(f"  s_waitcnt vmcnt({c['prio']})")
            for n in range(E, D - 1): issue(f"K{n}", SRDA, n)
            A(f"  s_load_dword s3, {sp(sDBG)}, 0x80")
            A(f"  s_waitcnt vmcnt({D-1-E})")
            self.stamp(9)
            self.mod_compute_b()
            for n in range(D - 1, NJ):
                A(f"  s_waitcnt vmcnt({D-1})"); issue(f"K{n}", SRDA, n)
        self.mod_compute_c()
        self.stamp(14)
        if c["wo_at"] is not None and c["wo_at"] < NJ: self.lds_inc(F_K)
        if c["ool"]:
            A(f"  s_branch {lj}")
            self.ool_block = self.L[mark:]; del self.L[mark:]
        else:
            A(f"  s_branch {lj}\n{lnp}:")
        issued.clear()
        for n in range(32):
            if n == NJ:
                A(f"{lj}:")
                if self.late_setup: self.late_setup()
            if n < E: issued.append(f"K{n}")
            elif n < NJ and self.late_setup: A(f"  s_waitcnt vmcnt({D-2})"); issue(f"K{n}", SRDA, n)
            else: pace(); issue(f"K{n}", SRDA, n)
            if n == 0 and not E: self.stamp(8)
            if n in (4, 8, 16, 24): self.stamp({4: 10, 8: 11, 16: 12, 24: 13}[n])
            if n == c["wo_at"]: self.lds_inc(F_K)
            if c["sprio"] and n == c["sprio_off"]: A("  s_setprio 0")
            if n == max(D - 3, E - 1, c["BN"]):
                assert n < NJ
                A("  s_barrier")
                self.stamp(9)
            if n == NJ:
                A(f"  v_lshrrev_b32 v12, 1, v{vJ}\n  v_and_b32 v13, 1, v{vJ}\n  v_mov_b32 v14, 0xffff\n  v_lshlrev_b32 v13, 4, v13\n  v_lshlrev_b32 v14, v13, v14")
                for j in range(4):
                    A(f"  v_cmp_eq_u32 vcc, {j}, v12\n  v_cndmask_b32 v{4+j}, 0, v14, vcc")
        NV = c["NV"]
        slot = lambda n: T(32 - NV + n) if n < NV else T(n - NV)
        l = self.lab("nomodchk")
        A(f"  s_cmp_ge_u32 s57, {48 if (c['abl'] is None or 'mod' in c['abl']) else 0}\n  s_cbranch_scc1 {l}")
        self.lds_spin(F_MOD2, 8, 12)
        A(f"{l}:")
        for n in range(NV):
            if n % 4 == 0: A(f"  s_add_u32 m0, s56, {4096 * (n // 4)}")
            pace()
            A(f"  buffer_load_dwordx4 v{vL16}, {sq(SRDB)}, s{sOFF + (n >> 2)} offen offset:{1024*(n&3)}{c['vfl']} lds")
            issued.append(f"V{n}")
        self.stamp(1)
        self.lds_spin(F_Q2, 1, 12)
        self.stamp(2)
        A(f"  v_lshlrev_b32 v12, 4, v{vJ}\n  ds_read_b128 {vq(8)}, v12 offset:{L_QB}\n  s_waitcnt lgkmcnt(0)")
        def qk(G):
            z = 18 + G
            for r in range(4):
                for t in range(4):
                    A(f"  v_dot2_f32_bf16 v{12+t}, v{T(4*G+t)+r}, v{8+r}, {'0' if r == 0 else f'v{12+t}'}")
            A(f"  v_add_f32_dpp v16, v12, v12 row_ror:8 row_mask:0xf bank_mask:0x3")
            A(f"  v_add_f32_dpp v17, v14, v14 row_ror:8 row_mask:0xf bank_mask:0x3")
            A(f"  v_add_f32_dpp v16, v13, v13 row_ror:8 row_mask:0xf bank_mask:0xc")
            A(f"  v_add_f32_dpp v17, v15, v15 row_ror:8 row_mask:0xf bank_mask:0xc")
            A(f"  v_add_f32_dpp v{z}, v16, v16 row_shl:4 row_mask:0xf bank_mask:0x5")
            A(f"  v_add_f32_dpp v{z}, v17, v17 row_shr:4 row_mask:0xf bank_mask:0xa")
            A(f"  v_add_f32_dpp v{z}, v{z}, v{z} quad_perm:[1,0,3,2] row_mask:0xf bank_mask:0xf")
            A(f"  v_add_f32_dpp v{z}, v{z}, v{z} quad_perm:[2,3,0,1] row_mask:0xf bank_mask:0xf")
        nv = NV
        def nextv():
            nonlocal nv
            pace()
            A(f"  buffer_load_dwordx4 {vq(slot(nv))}, v{vL16}, {sq(SRDB)}, s{sOFF + (nv >> 2)} offen offset:{1024*(nv&3)}{c['vfl']}")
            issued.append(f"V{nv}"); nv += 1
        qk(0)
        groups = list(range(1, 7))
        per = -(-len(groups) // D)
        for i in range(D):
            nextv()
            for G in groups[i * per:(i + 1) * per]: qk(G)
        qk(7)
        if NV:
            A(f"  v_add_u32 v34, s56, v{vL16}")
            for n in range(NV): A(f"  ds_read_b128 {vq(slot(n))}, v34 offset:{1024*n}")
        A(f"  s_mov_b32 s60, {SCALE:#x}")
        for i in range(4): self.rnd2(18 + 2 * i, 19 + 2 * i, 12 + i)
        for i in range(8): A(f"  v_mul_f32 v{18+i}, s60, v{18+i}")
        for i in range(4): self.rnd2(18 + 2 * i, 19 + 2 * i, 12 + i)
        A("  v_max3_f32 v12, v18, v19, v20\n  v_max3_f32 v13, v21, v22, v23\n  v_max3_f32 v12, v12, v24, v25\n  v_max_f32 v12, v12, v13")
        self.wave_reduce("v_max_f32", [12], full=False)
        A("  v_readlane_b32 s61, v12, 63")
        for half in range(2):
            for i in range(4): A(f"  v_subrev_f32 v{26+i}, s61, v{18+4*half+i}")
            for i in range(4): A(f"  v_max_f32 v{26+i}, 0xc3480000, v{26+i}")
            self.expv([(30 + i, 26 + i, 8 + i) for i in range(4)])
            A("  v_add_f32 v14, v30, v31\n  v_add_f32 v15, v32, v33")
            A("  v_add_f32 v13, v14, v15" if half == 0 else "  v_add_f32 v14, v14, v15\n  v_add_f32 v13, v13, v14")
        self.wave_reduce("v_add_f32", [13], full=False)
        A(f"  s_lshl_b32 s60, s{sWAVE}, 3\n  v_mov_b32 v14, s60")
        A("  s_mov_b32 exec_lo, 0\n  s_mov_b32 exec_hi, 0x80000000")
        A(f"  ds_write_b64 v14, v[12:13] offset:{L_STATS}\n  ds_add_u32 v{vZ}, v{vONE} offset:{F_ST}")
        self.execall()
        nextv(); nextv()
        self.lds_spin(F_ST, 8, 12)
        A(f"  v_and_b32 v14, 7, v{vLANE}\n  v_lshlrev_b32 v14, 3, v14\n  ds_read_b64 v[12:13], v14 offset:{L_STATS}\n  s_waitcnt lgkmcnt(0)")
        red8 = ["quad_perm:[1,0,3,2]", "quad_perm:[2,3,0,1]", "row_ror:4"]
        A("  v_mov_b32 v14, v12")
        for s in red8: A(f"  v_max_f32_dpp v14, v14, v14 {s} row_mask:0xf bank_mask:0xf")
        A(f"  v_sub_f32 v12, v12, v14\n  v_max_f32 v12, 0xc3480000, v12")
        self.expv([(15, 12, 16)])
        A("  v_mul_f32 v13, v13, v15")
        for s in red8: A(f"  v_add_f32_dpp v13, v13, v13 {s} row_mask:0xf bank_mask:0xf")
        for half in range(2):
            for i in range(4): A(f"  v_sub_f32 v{8+i}, v{18+4*half+i}, v14")
            for i in range(4): A(f"  v_max_f32 v{8+i}, 0xc3480000, v{8+i}")
            self.expv([(26 + 4 * half + i, 8 + i, 34 + i) for i in range(4)])
        self.divv([(15, "1.0", 13, 16, 17)])
        if c["dump"]:
            for i in range(8):
                A(f"  s_lshl_b32 s69, s2, 3\n  s_add_u32 s69, s69, s{sWAVE}\n  s_lshl_b32 s69, s69, 3\n  s_add_u32 s69, s69, {i}")
                self.dumpv(18 + i, 1, 0x100000, 69, 256, tmp=36)
        for i in range(8): A(f"  v_mul_f32 v{26+i}, v{26+i}, v15")
        for i in range(8): A(f"  v_cvt_pk_bf16_f32 v{18+i}, v{26+i}, v{26+i}")
        self.stamp(3)
        npv = 0
        def pv():
            nonlocal npv
            n = npv; npv += 1
            Ab = 26 + 4 * (n & 1)
            bank = [0, 2, 1, 3][n & 3]
            for j in range(4):
                A(f"  v_and_b32_dpp v{Ab+j}, v{18+(n>>2)}, v{4+j} row_newbcast:{4*bank} row_mask:0xf bank_mask:0xf")
            A(f"  v_mfma_f32_16x16x32_bf16 {vq(34)}, {vq(Ab)}, {vq(slot(n))}, {'0' if n == 0 else vq(34)}")
            if n == c["hint_at"] and "HT" not in c["xskip"]:
                l = self.lab("ht")
                self.exec1()
                A(f"  ds_add_rtn_u32 v12, v{vZ}, v{vONE} offset:{F_P}\n  s_mov_b32 s5, 0\n  s_waitcnt lgkmcnt(0)\n  v_readfirstlane_b32 s60, v12")
                self.execall()
                A(f"  s_cmp_lg_u32 s60, 7\n  s_cbranch_scc1 {l}")
                if "HS" in c["xskip"]:
                    A(f"  s_lshl_b32 s60, s{sB}, 12\n  s_lshl_b32 s61, s{sH}, 2\n  s_add_u32 s60, s60, s61\n  s_add_u32 s60, s60, {WS_ACC + 3328}\n  v_mov_b32 v12, s60")
                    self.exec1(); A(f"  global_store_dword v12, v11, {sp(sWS)} sc1"); self.execall(); A(f"{l}:")
                else:
                    A(f"  s_lshl_b32 s60, s{sB}, 12\n  s_add_u32 s60, s60, {WS_ACC + 3072}\n  s_mov_b32 s5, 1\n  s_atomic_add s5, {sp(sWS)}, s60 glc\n{l}:")
            if n == c["hint_at"] + c["hint_lag"] and "HT" not in c["xskip"]:
                l = self.lab("hf")
                A(f"  s_waitcnt lgkmcnt(0)\n  s_cmp_lg_u32 s5, 31\n  s_cbranch_scc1 {l}")
                A(f"  s_mul_i32 s60, s{sB}, {64*128}\n  s_add_u32 s60, s60, {WS_HINT}\n  v_lshl_add_u32 v12, v{vLANE}, 7, s60")
                A(f"  s_mov_b32 exec_hi, 0x7ff\n  global_store_dword v12, v11, {sp(sWS)} sc1"); self.execall()
                A(f"{l}:")
        self.ffn_addr()
        self.lds_spin(F_C, 1, 12)
        A(f"  ds_read_b32 v11, v{vZ} offset:{F_N}")
        def vstep():
            nextv()
            landed = nv - D
            k = 0
            while npv < landed and k < 3:
                pv(); k += 1
        def finish(ffn=False):
            if ffn and c["early"]:
                l = self.lab("eh")
                A(f"  s_cmp_lg_u32 s{sWAVE}, 0\n  s_cbranch_scc1 {l}")
                A(f"  s_lshl_b32 s60, s{sJ}, 7\n  s_add_u32 s60, s60, s{sSL}\n  s_lshl_b32 s60, s60, 7\n  s_add_u32 s60, s60, {WS_HINT}\n  s_add_u32 s61, s60, {64*128}")
                A(f"  s_load_dword s8, {sp(sWS)}, s60 glc\n  s_load_dword s9, {sp(sWS)}, s61 glc\n{l}:")
            while npv < 32:
                waitfor(f"V{npv}"); pv()
            A(f"  v_lshlrev_b32 v12, 5, v{vJ}\n  v_lshl_add_u32 v13, v{vG}, 4, v12\n  s_lshl_b32 s60, s{sWAVE}, 9\n  v_add_u32 v12, s60, v13")
            A("  s_mov_b32 exec_hi, 0")
            if c["oadd"]:
                for r in range(4): A(f"  ds_add_f32 v13, v{34+r} offset:{L_OP + 4*r}")
            else:
                A(f"  ds_write_b128 v12, {vq(34)} offset:{L_OP}")
            self.lds_inc(F_O)
            self.stamp(5)
            if ffn and c["early"]:
                l = self.lab("eh2")
                A(f"  s_cmp_lg_u32 s{sWAVE}, 0\n  s_cbranch_scc1 {l}\n  s_waitcnt lgkmcnt(0)\n  v_mov_b32 v12, s8\n  v_mov_b32 v13, s9")
                self.exec1(); A(f"  ds_write_b64 v{vZ}, v[12:13] offset:{F_HS}"); self.execall()
                A(f"{l}:")
        NF0 = c["NF0"]
        while nv < 32 - NF0: vstep()
        assert npv >= NV or NF0 == 0, (npv, NV)
        lf = self.lab("vffn")
        if c["abl"] is None and "T" not in c["xskip"]: A(f"  s_cmp_lg_u32 s{sFFN}, 0\n  s_cbranch_scc1 {lf}")
        st = (nv, npv, list(issued))
        while nv < 32: vstep()
        self.stamp(4)
        finish()
        A("  s_branch L_exit")
        A(f"{lf}:")
        nv, npv = st[0], st[1]; issued[:] = st[2]
        nf = 0
        while nv < 32:
            waitfor(f"V{nv - (D - 1)}")
            A(f"  buffer_load_dwordx4 {vq(slot(nv))}, v{vL16}, {sq(SRDB)}, s{sOFF + (nv >> 2)} offen offset:{1024*(nv&3)}{c['vfl']}")
            issued.append(f"V{nv}"); nv += 1
            self.ffn_load(nf); issued.append(f"F{nf}"); nf += 1
            k = 0
            while npv < nv - D + 1 and k < 3:
                pv(); k += 1
        self.stamp(4)
        finish(True)
        FD = c["FD"]
        if c["fmode"] == "paced":
            while nf < 24:
                if nf >= FD: waitfor(f"F{nf - FD}")
                self.ffn_load(nf); issued.append(f"F{nf}"); nf += 1
                if nf == FD: self.ffn_lds_addr()
                if nf == 8 + FD: self.transpose_x2(120, 40)
                if nf == 16 + FD: self.stamp(15); self.transpose_x2(136, 56)
            return
        while nf < FD:
            self.ffn_load(nf); issued.append(f"F{nf}"); nf += 1
        self.lds_spin(F_A, 4, 12)
        self.stamp(10)
        while nf < 16:
            self.ffn_load(nf); issued.append(f"F{nf}"); nf += 1
        self.ffn_lds_addr()
        if c["stamps"]: waitfor("F15"); self.stamp(15)
        waitfor("F7"); self.transpose_x2(120, 40)
        if c["down_late"]: self.lds_spin(F_R, 2, 12)
        while nf < 24:
            self.ffn_load(nf); issued.append(f"F{nf}"); nf += 1
        waitfor("F15"); self.transpose_x2(136, 56)

    def ffn_addr(self):
        A = self.A
        A(f"  v_cmp_gt_u32 vcc, 8, v{vJ}")
        A(f"  v_mov_b32 v12, s{sU}\n  v_mov_b32 v13, s{sU+1}\n  v_mov_b32 v14, s{sG}\n  v_mov_b32 v15, s{sG+1}")
        A(f"  v_cndmask_b32 v8, v12, v14, vcc\n  v_cndmask_b32 v9, v13, v15, vcc")
        A(f"  s_lshr_b32 s16, s{sJ}, 1\n  s_and_b32 s17, s{sJ}, 1")
        A(f"  s_lshl_b32 s60, s{sWAVE}, 6\n  s_lshl_b32 s61, s16, 5\n  s_add_u32 s60, s60, s61\n  s_lshl_b32 s61, s17, 2\n  s_add_u32 s60, s60, s61")
        A(f"  v_lshl_add_u32 v12, v{vG}, 3, s60\n  v_mul_u32_u24 v12, 2752, v12")
        A(f"  v_and_b32 v13, 7, v{vJ}\n  v_lshl_add_u32 v12, v13, 3, v12\n  s_lshl_b32 s60, s{sSL}, 6\n  v_add_u32 v12, s60, v12\n  v_mov_b32 v13, 0")
        A(f"  v_lshl_add_u64 v[8:9], v[8:9], 0, v[12:13]")
        A(f"  s_mov_b32 s10, 5504\n  s_mov_b32 s11, 0")
        A(f"  s_cmp_eq_u32 s17, 0\n  s_cselect_b32 s60, 4, -4\n  s_cmp_eq_u32 s16, 0\n  s_cselect_b32 s61, 32, -32")
        A(f"  s_sub_i32 s61, s61, s60\n  s_sub_i32 s60, s60, 2\n  s_sub_i32 s61, s61, 2")
        A(f"  s_mul_i32 s12, s60, 2752\n  s_ashr_i32 s13, s12, 31\n  s_mul_i32 s6, s61, 2752\n  s_ashr_i32 s7, s6, 31")
        A(f"  s_mov_b32 s{SRDA}, s{sDN}\n  s_mov_b32 s{SRDA+1}, s{sDN+1}\n  s_mov_b32 s{SRDA+2}, 1409024\n  s_mov_b32 s{SRDA+3}, 0x20000")
        A(f"  v_lshlrev_b32 v10, 13, v{vG}\n  v_lshl_add_u32 v10, v{vJ}, 3, v10")
        A(f"  s_lshl_b32 s18, s{sSL}, 15\n  s_lshl_b32 s19, s{sWAVE}, 7\n  s_add_u32 s18, s18, s19\n  s_add_u32 s19, s18, 4096")

    def ffn_load(self, i):
        A = self.A
        if "W" in self.c["xskip"]:
            A(f"  global_load_dword v17, v{vZ}, {sp(sC)}"); return
        if i < 16:
            A(f"  global_load_dwordx2 {vp(120+2*i)}, v[8:9], off{' offset:2752' if i & 1 else ''}{self.c['ffnfl']}")
            if i & 1 and i < 15:
                step = "s[10:11]" if (i & 3) == 1 else ("s[6:7]" if i == 7 else "s[12:13]")
                A(f"  v_lshl_add_u64 v[8:9], v[8:9], 0, {step}")
        else:
            e = i - 16
            A(f"  buffer_load_dwordx2 {vp(152+2*e)}, v10, {sq(SRDA)}, s{18 + (e >> 2)} offen offset:{1024*(e&3)}{self.c['ffnfl']}")

    def ffn_lds_addr(self):
        A = self.A
        A(f"  v_and_b32 v12, 1, v{vJ}\n  v_lshlrev_b32 v112, 10, v12\n  v_lshl_add_u32 v112, v{vG}, 4, v112\n  s_lshl_b32 s60, s{sWAVE}, 7\n  v_add_u32 v112, s60, v112")
        A(f"  s_lshl_b32 s60, s16, 6\n  s_lshl_b32 s61, s17, 3\n  s_add_u32 s60, s60, s61\n  v_add_u32 v112, s60, v112")
        A(f"  v_xor_b32 v113, 8, v112\n  v_xor_b32 v114, 64, v112\n  v_xor_b32 v115, 0x48, v112")
        A(f"  v_lshlrev_b32 v116, 6, v12\n  v_lshl_add_u32 v116, v{vG}, 4, v116")
        A(f"  v_lshlrev_b32 v117, 5, v{vJ}\n  v_lshl_add_u32 v117, v{vG}, 3, v117\n  s_lshl_b32 s60, s{sWAVE}, 9\n  v_add_u32 v117, s60, v117")
        A(f"  s_lshl_b32 s60, s{sJ}, 5\n  s_lshl_b32 s61, s{sWAVE}, 2\n  s_add_u32 s60, s60, s61\n  v_add_u32 v118, s60, v{vG}\n  v_mul_u32_u24 v118, {INB}, v118")
        A(f"  s_lshl_b32 s60, s{sSL}, 8\n  s_add_u32 s60, s60, {WS_INBOX}\n  v_lshl_add_u32 v12, v{vJ}, 4, s60\n  v_add_u32 v118, v12, v118")

    def streamer_ffn(self):
        A = self.A
        self.stamp(6)
        A("  s_barrier")
        A("L_dry_s:")
        for i in range(4): A(f"  ds_read_b64 {vp(88+2*i)}, v{112+i} offset:{L_H2}")
        A("  s_waitcnt lgkmcnt(2)")
        for cc in range(4): A(f"  v_mfma_f32_16x16x32_bf16 {vq(96+4*cc)}, {vq(88)}, {vq(40+4*cc)}, 0")
        A("  s_waitcnt lgkmcnt(0)")
        for cc in range(4): A(f"  v_mfma_f32_16x16x32_bf16 {vq(96+4*cc)}, {vq(92)}, {vq(56+4*cc)}, {vq(96+4*cc)}")
        def select():
            for g in range(1, 4):
                for r in range(2):
                    A(f"  v_mov_b32_dpp v{96+r}, v{96+4*g+r} quad_perm:[0,1,2,3] row_mask:{1<<g:#x} bank_mask:0xf")
        select()
        A(f"  ds_write_b64 v117, v[96:97] offset:{L_GUP}\n  s_waitcnt lgkmcnt(0)")
        dry = self.c["dry"]
        if dry: A("  s_cbranch_execz L_dry_s2")
        A("  s_barrier")
        A("  s_waitcnt vmcnt(0)"); self.transpose_x2(152, 72)
        A("  s_barrier")
        A("L_dry_s2:")
        A(f"  ds_read_b128 {vq(88)}, v116 offset:{L_HH}\n  s_waitcnt lgkmcnt(0)")
        for cc in range(4): A(f"  v_mfma_f32_16x16x32_bf16 {vq(96+4*cc)}, {vq(88)}, {vq(72+4*cc)}, 0")
        select()
        A(f"  v_mov_b32 v98, v11\n  v_xor_b32 v99, {TAGX:#x}, v11")
        if dry: A("  s_cbranch_execz L_exit")
        A(f"  global_store_dwordx4 v118, {vq(96)}, {sp(sWS)}{self.c['txfl']}")
        self.stamp(7)
        A("  s_branch L_exit2")

    def mod_loads(self):
        A = self.A
        A(f"  v_and_b32 v4, 7, v{vJ}\n  v_lshrrev_b32 v5, 3, v{vJ}\n  v_lshlrev_b32 v6, 10, v4\n  v_lshl_add_u32 v6, v5, 6, v6\n  v_lshl_add_u32 v6, v{vG}, 4, v6")
        A(f"  s_lshl_b32 s60, s{sWAVE}, 7\n  v_add_u32 v6, s60, v6")
        A(f"  global_load_dwordx4 {vq(8)}, v6, {sp(sC)}")
        A(f"  v_lshlrev_b32 v7, 5, v5\n  v_lshl_add_u32 v7, v{vG}, 3, v7\n  v_mul_u32_u24 v7, 6144, v7\n  v_lshl_add_u32 v7, v4, 4, v7")
        A(f"  s_mul_i32 s60, s{sWAVE}, {64*6144}\n  s_lshl_b32 s61, s57, 7\n  s_add_u32 s60, s60, s61\n  v_add_u32 v7, s60, v7")
        if not self.c["modil"]:
            for i in range(8): self.mod_w(i)

    def mod_w(self, i):
        self.A(f"  global_load_dwordx4 {vq(136+4*i)}, v7, {sp(sWM)}{self.c['wmfl']}")
        if i < 7: self.A(f"  v_add_u32 v7, 6144, v7")

    def mod_compute_a(self):
        A = self.A
        A(f"  s_lshl_b32 s60, s{sWAVE}, 12\n  s_add_u32 s60, s60, {L_V}\n  v_lshlrev_b32 v28, 11, v5\n  v_lshl_add_u32 v28, v4, 8, v28\n  v_and_b32 v29, 1, v{vG}\n  v_lshl_add_u32 v28, v29, 4, v28\n  v_add_u32 v28, s60, v28")
        A(f"  v_lshrrev_b32 v29, 1, v{vG}\n  v_cmp_eq_u32 s[68:69], v29, v5")
        if not self.c["modil"]: A("  s_waitcnt vmcnt(8)")
        for i in range(4):
            r = 8 + i
            A(f"  v_lshlrev_b32 v16, 16, v{r}\n  v_and_b32 v17, 0xffff0000, v{r}")
            A(f"  v_max_f32 v20, 0xc2ae0000, v16\n  v_max_f32 v21, 0xc2ae0000, v17")
            self.expv([(18, 20, 22), (19, 21, 23)], neg=True)
            A(f"  v_add_f32 v18, 1.0, v18\n  v_add_f32 v19, 1.0, v19")
            self.divv([(24, 16, 18, 20, 22), (25, 17, 19, 21, 23)])
            A(f"  v_cvt_pk_bf16_f32 v{r}, v24, v25")

    def mod_compute_b(self):
        A = self.A
        self.transpose_block(136, 5, 6)
        for cc in range(8):
            A(f"  v_mfma_f32_16x16x32_bf16 {vq(104+4*cc)}, {vq(8)}, {vq(136+4*cc)}, 0")
        A("  s_mov_b64 exec, s[68:69]")
        for cc in range(8):
            A(f"  ds_write_b128 v28, {vq(104+4*cc)} offset:{32*cc}")
        self.lds_inc(F_MOD)

    def mod_compute_c(self):
        A = self.A
        A(f"  v_and_b32 v4, 31, v{vLANE}\n  v_lshrrev_b32 v5, 5, v{vLANE}\n  v_lshlrev_b32 v6, 6, v4\n  v_lshl_add_u32 v6, v5, 14, v6\n  s_lshl_b32 s60, s{sWAVE}, 2\n  s_add_u32 s60, s60, {L_V}\n  v_add_u32 v6, s60, v6")
        A(f"  s_mul_i32 s60, s{sWAVE}, 6144\n  s_lshl_b32 s61, s57, 7\n  s_add_u32 s60, s60, s61\n  s_add_u32 s60, s60, {WS_MOD}\n  v_lshl_add_u32 v5, v4, 2, s60")
        self.lds_spin(F_MOD, 8, 7)
        for part in range(8):
            if part: A(f"  v_add_u32 v6, 2048, v6")
            A(f"  ds_read2_b32 {vp(8+2*part)}, v6 offset0:0 offset1:8")
        l = self.lab("pollSN"); d = self.lab("gotSN")
        A(f"{l}:\n  s_cmp_lg_u32 s3, 0\n  s_cbranch_scc1 {d}")
        self.guard()
        A(f"  s_load_dword s3, {sp(sDBG)}, 0x80 glc\n  s_waitcnt lgkmcnt(0)\n  s_branch {l}\n{d}:")
        A("  s_waitcnt lgkmcnt(0)")
        self.lds_inc(F_MOD2)
        for part in range(1, 8):
            A(f"  v_add_f32 v8, v8, v{8+2*part}\n  v_add_f32 v9, v9, v{9+2*part}")
        A("  v_mov_b32 v10, v8\n  v_mov_b32 v11, v9\n  v_permlane32_swap_b32 v10, v8\n  v_permlane32_swap_b32 v11, v9\n  v_add_f32 v8, v8, v10\n  v_add_f32 v9, v9, v11")
        A(f"  v_cvt_pk_bf16_f32 v8, v8, v9\n  s_mov_b32 exec_hi, 0\n  global_store_dword v5, v8, {sp(sWS)} sc1")
        self.execall()
        A("  v_mov_b32 v9, v8")
        for st in ("quad_perm:[1,0,3,2]", "quad_perm:[2,3,0,1]", "row_ror:4", "row_ror:8"):
            A(f"  v_xor_b32_dpp v9, v9, v9 {st} row_mask:0xf bank_mask:0xf")
        A("  v_mov_b32 v10, v9\n  v_permlane16_swap_b32 v10, v9\n  v_bitop3_b32 v9, v9, v10, s3 bitop3:0x96")
        A(f"  s_lshl_b32 s60, s{sWAVE}, 8\n  s_lshl_b32 s61, s57, 2\n  s_add_u32 s60, s60, s61\n  s_add_u32 s60, s60, {WS_MARK}\n  v_mov_b32 v5, s60")
        self.exec1(); A(f"  global_store_dword v5, v9, {sp(sWS)} sc1"); self.execall()

    def check_lines(self, data, tags, tmp):
        A = self.A
        n = len(data)
        for k in range(n): A(f"  v_xor_b32 v{tmp+k}, v{data[k]}, v{data[k]+1}")
        for k in range(n): A(f"  v_bitop3_b32 v{tmp+k}, v{tmp+k}, v{data[k]+2}, v{data[k]+3} bitop3:0x96")
        for st in ("quad_perm:[1,0,3,2]", "quad_perm:[2,3,0,1]", "row_half_mirror"):
            for k in range(n): A(f"  v_xor_b32_dpp v{tmp+k}, v{tmp+k}, v{tmp+k} {st} row_mask:0xf bank_mask:0xf")
        for k in range(n): A(f"  v_bitop3_b32 v{tmp+k}, v{tmp+k}, v{tags[k]}, s44 bitop3:0x96")
        for k in range(1, n): A(f"  v_or_b32 v{tmp}, v{tmp}, v{tmp+k}")
        A(f"  v_cmp_ne_u32 vcc, 0, v{tmp}")

    def get_flag(self, tmp, off, sreg, expect=None):
        A = self.A
        l = self.lab("pollN"); d = self.lab("gotN")
        cmp = f"s_cmp_lg_u32 s{sreg}, 0" if expect is None else f"s_cmp_eq_u32 s{sreg}, {expect}"
        self.exec1()
        A(f"  global_load_dword v{tmp}, v{vZ}, {sp(sDBG)} offset:{off}")
        A(f"{l}:\n  s_waitcnt vmcnt(0)\n  v_readfirstlane_b32 s{sreg}, v{tmp}\n  {cmp}\n  s_cbranch_scc1 {d}")
        self.guard()
        A(f"  s_sleep {self.c['poll_sleep']}\n  global_load_dword v{tmp}, v{vZ}, {sp(sDBG)} offset:{off} sc1\n  s_branch {l}\n{d}:"); self.execall()
    def get_nonce(self, tmp): self.get_flag(tmp, 128, 44)

    def xor_rows(self, r, t):
        A = self.A
        A(f"  v_mov_b32 v{t}, v{r}\n  v_permlane16_swap_b32 v{t}, v{r}\n  v_xor_b32 v{r}, v{r}, v{t}")
        A(f"  v_mov_b32 v{t}, v{r}\n  v_permlane32_swap_b32 v{t}, v{r}\n  v_xor_b32 v{r}, v{r}, v{t}")

    def allreduce8(self, r, t, op="v_add_f32"):
        A = self.A
        A(f"  {op}_dpp v{r}, v{r}, v{r} row_ror:8 row_mask:0xf bank_mask:0xf")
        A(f"  v_mov_b32 v{t}, v{r}\n  v_permlane16_swap_b32 v{t}, v{r}\n  {op} v{r}, v{r}, v{t}")
        A(f"  v_mov_b32 v{t}, v{r}\n  v_permlane32_swap_b32 v{t}, v{r}\n  {op} v{r}, v{r}, v{t}")

    def wq_pattern(self):
        p = self.c["wqpat"]
        if p == 8: return 16, [8192 if i % 8 < 7 else 8192 * 25 for i in range(32)]
        if p == 32: return 18, [8192] * 32
        if p == 1: return 13, [8192 * 4] * 32
        if p == 33: return 18, [8192 * 5 if i % 8 < 7 else (1 << 32) - 8192 * 27 for i in range(32)]
        if p == 16: return 17, [8192 if i % 16 < 15 else 8192 * 49 for i in range(32)]

    def wo_pattern(self):
        p = self.c["wopat"]
        if p == 8: return 13, [1024 if i % 8 < 7 else 1024 * 25 for i in range(32)]
        if p == 32: return 15, [1024] * 32
        if p == 1: return 10, [4096] * 32

    def wo_prefetch(self):
        A = self.A
        l = self.lab("nowopf")
        A(f"  s_cmp_lg_u32 s{sHW}, {self.c['wopfw']}\n  s_cbranch_scc1 {l}")
        A(f"  s_lshl_b32 s60, s{sXCD}, 19\n  s_lshl_b32 s61, s{sIDX}, 14\n  s_add_u32 s60, s60, s61\n  s_add_u32 s60, s60, 4096\n  v_add_u32 v7, s60, v{vL16}")
        for i in range(16):
            if i == 8: A("  v_add_u32 v7, 8192, v7")
            A(f"  global_load_dword v35, v7, {sp(sWO)} offset:{(i % 8) * 1024 - 4096}")
        A(f"{l}:")

    def h0_issue(self, fl):
        A = self.A
        if "G" in self.c["xskip"]: return
        A(f"  global_load_dwordx4 {vq(28)}, v36, {sp(sWS)}{fl}\n  global_load_dwordx4 {vq(32)}, v36, {sp(sWS)} offset:1024{fl}")
        A(f"  global_load_dword v24, v37, {sp(sWS)}{fl}\n  global_load_dword v25, v37, {sp(sWS)} offset:32{fl}")

    def h0_finish(self):
        A = self.A; c = self.c
        l = self.lab("chkA"); d = self.lab("gotA")
        A(f"{l}:")
        self.check_lines([28, 32], [24, 25], 26)
        A(f"  s_cbranch_vccz {d}" if "G" not in c["xskip"] else f"  s_branch {d}")
        self.guard()
        A(f"  s_sleep {c['a_sleep']}")
        self.h0_issue(" sc1")
        A(f"  s_waitcnt vmcnt(0)\n  s_branch {l}\n{d}:")
        self.stamp(2); self.cstamp(14)
        self.unpack8(32, 16)
        for i in range(8): A(f"  v_add_f32 v{16+i}, 1.0, v{16+i}")
        self.rnd8(16, 24)
        for i in range(8): A(f"  v_mul_f32 v{8+i}, v{8+i}, v{16+i}")
        self.rnd8(8, 24)
        self.unpack8(28, 16)
        for i in range(8): A(f"  v_add_f32 v{8+i}, v{8+i}, v{16+i}")
        for i in range(4): A(f"  v_cvt_pk_bf16_f32 v{24+i}, v{8+2*i}, v{9+2*i}")
        A(f"  v_add_u32 v16, s47, v{vL16}\n  ds_write_b128 v16, {vq(24)} offset:{L_HBUF}")
        self.lds_inc(F_H)
        if c["dump"]:
            l = self.lab("nodh"); A(f"  s_cmp_lg_u32 s{sHW}, 0\n  s_cbranch_scc1 {l}"); self.dumpv(24, 4, 0x0, 2, 1024); A(f"{l}:")
        self.stamp(3)

    def helper(self):
        A = self.A; c = self.c
        if c["hfirst"]:
            A("L_helper0:"); self.ids(); self.common()
        A("L_helper:")
        self.stamp(8)
        A(f"  s_sub_u32 s{sHW}, s{sWAVE}, 8")
        l = self.lab("h3")
        A(f"  s_cmp_lg_u32 s{sHW}, 3\n  s_cbranch_scc1 {l}")
        A(f"  v_lshlrev_b32 v4, 2, v{vLANE}\n  ds_write_b32 v4, v{vZ}\n  ds_write_b32 v4, v{vZ} offset:{L_OP}\n  ds_write_b32 v4, v{vZ} offset:{L_OP+256}\n  s_waitcnt lgkmcnt(0)\n{l}:")
        A("  s_waitcnt lgkmcnt(0)")
        if c["tlb"]:
            l = self.lab("notlb")
            A(f"  s_cmp_lg_u32 s{sHW}, 2\n  s_cbranch_scc1 {l}")
            self.exec1()
            A(f"  s_lshl_b32 s60, s{sB}, 5\n  s_add_u32 s60, s60, s{sH}\n  s_lshl_b32 s60, s60, 20\n  s_add_u32 s60, s60, 0xC0000\n  v_mov_b32 v4, s60")
            A(f"  global_load_dword v35, v4, {sp(sV)} nt")
            if c["tlb"] == 3: A(f"  s_branch {l}_e")
            A(f"  s_lshl_b32 s60, s2, 12\n  s_add_u32 s60, s60, {WS_QIN}\n  v_mov_b32 v5, s60\n  global_load_dword v41, v5, {sp(sWS)} nt")
            A(f"  s_lshl_b32 s60, s{sH}, 17\n  v_mov_b32 v6, s60\n  global_load_dword v42, v6, {sp(sWO)} nt")
            A(f"  s_lshl_b32 s60, s2, 2\n  s_and_b32 s60, s60, 0xfc\n  v_mov_b32 v7, s60")
            A(f"  global_load_dword v43, v7, {sp(sDBG)}")
            if c["tlb"] > 1:
                A(f"  s_lshl_b32 s60, s2, 7\n  v_mov_b32 v8, s60")
                for k, p in enumerate((sG, sU, sDN, sWS)): A(f"  global_load_dword v{44+k}, v8, {sp(p)} nt")
                A(f"  v_add_u32 v8, 0x100000, v8")
                for k, p in enumerate((sG, sU, sDN)): A(f"  global_load_dword v{48+k}, v8, {sp(p)} nt")
                A(f"  s_lshl_b32 s60, s2, 5\n  v_mov_b32 v9, s60\n  global_load_dword v52, v9, {sp(sOUT)} nt")
            A(f"{l}_e:")
            self.execall()
            A(f"{l}:")
        def wq_prefetch():
            if c["wqpf"]:
                l = self.lab("nowqpf")
                A(f"  s_cmp_lg_u32 s{sHW}, {c['wqpf']}\n  s_cbranch_scc1 {l}")
                A(f"  s_lshl_b32 s60, s{sIDX}, 17\n  s_lshl_b32 s61, s{sXCD}, 10\n  s_add_u32 s60, s60, s61\n  v_add_u32 v4, s60, v{vL16}")
                for i in range(16):
                    if i >= c["wqpfD"]: A(f"  s_waitcnt vmcnt({c['wqpfD']-1})")
                    A(f"  global_load_dword v35, v4, {sp(sWQ)}{c['pffl']}")
                    if i < 15: A("  v_add_u32 v4, 8192, v4")
                A(f"{l}:")
        if not c["pfbar"]: wq_prefetch()
        if c["wopf"] == -1: self.wo_prefetch()
        l = self.lab("nononce")
        A(f"  s_cmp_lg_u32 s2, 0\n  s_cbranch_scc1 {l}\n  s_cmp_lg_u32 s{sHW}, 1\n  s_cbranch_scc1 {l}")
        A(f"  s_memrealtime s[42:43]\n  s_waitcnt lgkmcnt(0)\n  s_or_b32 s42, s42, 1\n  v_mov_b32 v6, s42")
        self.exec1(); A(f"  global_store_dword v{vZ}, v6, {sp(sDBG)} offset:128 sc1"); self.execall()
        A(f"{l}:")
        A("  s_barrier")
        if c["pfbar"]: wq_prefetch()
        abl = c["abl"]
        if abl is not None:
            if "init" in abl: self.init_duty(11)
            l = self.lab("abl")
            A(f"  s_cmp_lg_u32 s{sHW}, 0\n  s_cbranch_scc1 {l}")
            self.lds_inc(F_Q2); self.lds_inc(F_C)
            if "h0l" in abl:
                A(f"  v_and_b32 v5, 7, v{vJ}\n  v_lshrrev_b32 v6, 3, v{vJ}\n  v_lshl_add_u32 v7, v{vG}, 1, v6\n  v_lshlrev_b32 v7, 4, v7\n  v_lshl_add_u32 v7, v5, 10, v7")
                if "nox" not in abl:
                    for i in range(8): A(f"  global_load_dwordx4 {vq(40+4*i)}, v7, {sp(sX)} offset:{128*i} nt")
                A(f"  s_mov_b32 s{SRDB}, s{sWQ}\n  s_mov_b32 s{SRDB+1}, s{sWQ+1}\n  s_mov_b32 s{SRDB+2}, 4194304\n  s_mov_b32 s{SRDB+3}, 0x20000")
                A(f"  v_lshlrev_b32 v7, 4, v{vJ}\n  v_lshl_add_u32 v7, v{vG}, 16, v7")
                A(f"  s_lshl_b32 s41, s{sB}, 19\n  s_lshl_b32 s60, s{sH}, 8\n  s_add_u32 s41, s41, s60")
                for i in range(0 if "nowq" in abl else 16):
                    A(f"  s_waitcnt vmcnt({c['ablD']})")
                    A(f"  buffer_load_dwordx4 {vq(104+4*i)}, v7, {sq(SRDB)}, s41 offen nt")
                    if i < 15: A(f"  s_add_u32 s41, s41, {8192 if i != 7 else 8192*25}")
                A("  s_waitcnt vmcnt(0)")
            if "poll" in abl:
                lp = self.lab("ablp")
                self.exec1()
                A(f"  s_mov_b32 s65, 12\n{lp}:\n  global_load_dwordx2 v[24:25], v{vZ}, {sp(sDBG)} offset:128 sc1\n  s_waitcnt vmcnt(0)\n  s_sleep {c['poll_sleep']}\n s_sub_u32 s65, s65, 1\n s_cmp_lg_u32 s65, 0\n s_cbranch_scc1 {lp}")
                self.execall()
            A(f"{l}:")
            if "wqr" in abl:
                A(f"  s_mov_b32 s{SRDA}, s{sWQ}\n  s_mov_b32 s{SRDA+1}, s{sWQ+1}\n  s_mov_b32 s{SRDA+2}, 4194304\n  s_mov_b32 s{SRDA+3}, 0x20000")
                sh, steps_ = self.wq_pattern()
                A(f"  v_lshlrev_b32 v4, 4, v{vJ}\n  v_lshl_add_u32 v4, v{vG}, {sh}, v4")
                A(f"  s_lshl_b32 s40, s{sHW}, 20\n  s_xor_b32 s60, s{sH}, {c['wqx']}\n  s_lshl_b32 s60, s60, 8\n  s_add_u32 s40, s40, s60")
                self.wload32(SRDA, steps_, c["HDO"], frac=c["HDOf"], fl=c["wqfl"])
                self.stamp(5)
            if "wqh" in abl:
                lq = self.lab("noq")
                A(f"  s_cmp_ge_u32 s{sB}, 4\n  s_cbranch_scc1 {lq}")
                A(f"  s_mov_b32 s{SRDA}, s{sWQ}\n  s_mov_b32 s{SRDA+1}, s{sWQ+1}\n  s_mov_b32 s{SRDA+2}, 4194304\n  s_mov_b32 s{SRDA+3}, 0x20000")
                A(f"  v_lshlrev_b32 v4, 4, v{vJ}\n  v_lshl_add_u32 v4, v{vG}, 17, v4")
                A(f"  s_lshl_b32 s40, s{sHW}, 19\n  s_and_b32 s60, s{sB}, 1\n  s_lshl_b32 s60, s60, 21\n  s_add_u32 s40, s40, s60\n  s_lshl_b32 s60, s{sH}, 8\n  s_add_u32 s40, s40, s60")
                for i in range(16):
                    if i >= c["HD"]: A(f"  s_waitcnt vmcnt({c['HD']-1})")
                    A(f"  buffer_load_dwordx4 {vq(104+4*i)}, v4, {sq(SRDA)}, s40 offen\n  s_add_u32 s40, s40, 8192")
                self.stamp(5)
                A(f"{lq}:")
            if "wqp" in abl:
                lq = self.lab("noq")
                A(f"  s_cmp_lt_u32 s57, 48\n  s_cbranch_scc1 {lq}")
                sh, steps_ = self.wq_pattern()
                A(f"  s_mov_b32 s{SRDA}, s{sWQ}\n  s_mov_b32 s{SRDA+1}, s{sWQ+1}\n  s_mov_b32 s{SRDA+2}, 4194304\n  s_mov_b32 s{SRDA+3}, 0x20000")
                A(f"  v_lshlrev_b32 v4, 4, v{vJ}\n  v_lshl_add_u32 v4, v{vG}, {sh}, v4")
                A(f"  s_lshl_b32 s40, s{sHW}, 20\n  s_lshl_b32 s60, s{sH}, 8\n  s_add_u32 s40, s40, s60")
                self.wload32(SRDA, steps_, c["HD"], frac=c["HDf"], fl=c["wqfl"])
                self.stamp(5)
                A(f"{lq}:")
            if "wo" in abl:
                A(f"  s_mov_b32 s{SRDA}, s{sWO}\n  s_mov_b32 s{SRDA+1}, s{sWO+1}\n  s_mov_b32 s{SRDA+2}, 4194304\n  s_mov_b32 s{SRDA+3}, 0x20000")
                A(f"  v_lshlrev_b32 v4, 4, v{vJ}\n  v_lshl_add_u32 v4, v{vG}, {self.wo_pattern()[0]}, v4")
                A(f"  s_lshl_b32 s40, s{sH}, 17\n  s_lshl_b32 s60, s{sHW}, 8\n  s_add_u32 s40, s40, s60")
                self.wload32(SRDA, self.wo_pattern()[1], c["HDO"], frac=c["HDOf"])
                self.stamp(6)
            A("  s_branch L_exit")
        A(f"  s_mov_b32 s{SRDA}, s{sWQ}\n  s_mov_b32 s{SRDA+1}, s{sWQ+1}\n  s_mov_b32 s{SRDA+2}, 4194304\n  s_mov_b32 s{SRDA+3}, 0x20000")
        sh, steps = self.wq_pattern()
        A(f"  v_lshlrev_b32 v4, 4, v{vJ}\n  v_lshl_add_u32 v4, v{vG}, {sh}, v4")
        A(f"  s_lshl_b32 s40, s{sHW}, 20\n  s_lshl_b32 s60, s{sH}, 8\n  s_add_u32 s40, s40, s60")
        A(f"  s_cmp_lt_u32 s57, 48\n  s_cbranch_scc1 L_prodh")
        if c["wo_at"] is not None: self.lds_spin(F_K, 1, 7, sleep=2)
        A(f"  s_cmp_eq_u32 s57, 64\n  s_cselect_b32 s45, 3, 0")
        A(f"  s_cmp_gt_u32 s{sHW}, s45\n  s_cbranch_scc1 L_wq123")
        A(f"  s_lshl_b32 s46, s{sHW}, 1\n  s_add_u32 s46, s46, s{sB}\n  s_lshl_b32 s47, s{sHW}, 10")
        A(f"  s_lshl_b32 s60, s46, 10\n  v_add_u32 v36, s60, v{vL16}\n  global_load_dwordx4 {vq(28)}, v36, {sp(sX)}")
        A(f"  s_mul_i32 s60, s46, 6144\n  s_add_u32 s60, s60, {WS_MOD}\n  v_add_u32 v36, s60, v{vL16}")
        A(f"  s_lshl_b32 s60, s46, 8\n  s_add_u32 s60, s60, {WS_MARK}\n  v_lshrrev_b32 v37, 3, v{vLANE}\n  v_lshl_add_u32 v37, v37, 2, s60")
        def chkB0():
            l0 = self.lab("noB0"); l = self.lab("pollBN"); d = self.lab("gotBN")
            A(f"  s_cmp_lg_u32 s{sHW}, 1\n  s_cbranch_scc1 {l0}")
            A(f"  s_load_dword s44, {sp(sDBG)}, 0x80\n  s_waitcnt lgkmcnt(0)\n{l}:\n  s_cmp_lg_u32 s44, 0\n  s_cbranch_scc1 {d}")
            self.guard()
            A(f"  s_load_dword s44, {sp(sDBG)}, 0x80 glc\n  s_waitcnt lgkmcnt(0)\n  s_branch {l}\n{d}:")
            self.get_flag(7, 136, 41, expect="s44")
            self.lds_inc(F_C)
            A(f"{l0}:")
        early_b = [(c["PBQ"], chkB0)] if c["rank"] else []
        HD = c["HD"]
        def ln():
            self.unpack8(28, 8); self.layernorm(8, 16, 24)
            A(f"  s_load_dword s44, {sp(sDBG)}, 0x80")
        def gather():
            l = self.lab("pollHN"); d = self.lab("gotHN")
            A(f"  s_waitcnt lgkmcnt(0)\n{l}:\n  s_cmp_lg_u32 s44, 0\n  s_cbranch_scc1 {d}")
            self.guard()
            A(f"  s_load_dword s44, {sp(sDBG)}, 0x80 glc\n  s_waitcnt lgkmcnt(0)\n  s_branch {l}\n{d}:")
            self.stamp(1)
            self.h0_issue("")
            A(f"  v_mov_b32 v26, s44\n  ds_write_b32 v{vZ}, v26 offset:{F_N}")
        self.wload32(SRDA, steps, HD, frac=c["HDf"], hooks=dict(early_b + [(HD + 3, ln), (c["P0"], gather), (c["P0"] + HD, self.h0_finish)] + ([(c["wopf"], self.wo_prefetch)] if (c["wopf"] or -1) > 0 else [])), fl=c["wqfl"])
        A("  s_branch L_q")
        A("L_wq123:")
        l = self.lab("nozero")
        A(f"  s_cmp_lg_u32 s{sHW}, 3\n  s_cbranch_scc1 {l}\n  s_cmp_lt_u32 s57, 256\n  s_cbranch_scc1 {l}\n  s_cmp_ge_u32 s57, {256+8}\n  s_cbranch_scc1 {l}")
        A("  v_mov_b32 v12, 0\n  v_mov_b32 v13, 0\n  v_mov_b32 v14, 0\n  v_mov_b32 v15, 0")
        A(f"  s_sub_u32 s61, s57, 256\n  s_lshl_b32 s60, s61, 12\n  s_add_u32 s60, s60, {WS_ACC}\n  v_add_u32 v5, s60, v{vL16}")
        for i in range(4): A(f"  global_store_dwordx4 v5, {vq(12)}, {sp(sWS)} offset:{1024*i} sc1")
        A(f"{l}:")
        def ticket():
            l = self.lab("notick"); lp = self.lab("pollZN"); d = self.lab("gotZN")
            A(f"  s_cmp_lg_u32 s{sHW}, 3\n  s_cbranch_scc1 {l}\n  s_cmp_lt_u32 s57, 256\n  s_cbranch_scc1 {l}\n  s_cmp_ge_u32 s57, {256+8}\n  s_cbranch_scc1 {l}")
            A(f"  s_mov_b32 s65, 1\n  s_atomic_add s65, {sp(sDBG)}, 0x8 glc\n  s_waitcnt lgkmcnt(0)\n  s_cmp_lg_u32 s65, 7\n  s_cbranch_scc1 {l}")
            A(f"{lp}:\n  s_load_dword s44, {sp(sDBG)}, 0x80 glc\n  s_waitcnt lgkmcnt(0)\n  s_cmp_lg_u32 s44, 0\n  s_cbranch_scc1 {d}")
            self.guard()
            A(f"  s_branch {lp}\n{d}:\n  v_mov_b32 v7, s44")
            self.exec1(); A(f"  global_store_dword v{vZ}, v7, {sp(sDBG)} offset:136 sc1"); self.execall()
            A(f"{l}:")
        self.wload32(SRDA, steps, HD, frac=c["HDf"], hooks=dict(early_b + [(HD + 2, ticket)] + ([(c["wopf"], self.wo_prefetch)] if (c["wopf"] or -1) > 0 else [])), fl=c["wqfl"])
        A("L_q:")
        self.stamp(4)
        A("  s_add_u32 s61, s45, 1")
        self.lds_spin(F_H, "s61", 7)
        p32 = c["wqpat"] == 32
        A(f"  s_lshl_b32 s60, s{sHW}, 8\n  v_lshl_add_u32 v4, v{vG}, {6 if p32 else 4}, s60\n  v_and_b32 v5, s45, v{vJ}\n  v_lshl_add_u32 v4, v5, 10, v4")
        for m in range(4): A(f"  ds_read_b128 {vq(8+4*m)}, v4 offset:{L_HBUF + (16 if p32 else 64)*m}")
        A(f"  ds_read_b32 v7, v{vZ} offset:{F_N}")
        A(f"  s_lshl_b32 s60, s{sHW}, 11\n  v_lshl_add_u32 v5, v{vJ}, 5, s60\n  v_add_u32 v5, {L_QP}, v5")
        A(f"  s_mov_b32 s{SRDA}, s{sWO}\n  s_mov_b32 s{SRDA+1}, s{sWO+1}\n  s_mov_b32 s{SRDA+2}, 4194304\n  s_mov_b32 s{SRDA+3}, 0x20000")
        A(f"  s_lshl_b32 s40, s{sH}, 17\n  s_lshl_b32 s60, s{sHW}, 8\n  s_add_u32 s40, s40, s60")
        A("  s_waitcnt lgkmcnt(0)")
        A(f"  v_readfirstlane_b32 s44, v7\n  v_lshlrev_b32 v4, 4, v{vJ}\n  v_lshl_add_u32 v4, v{vG}, {self.wo_pattern()[0]}, v4")
        res = self.gemv32()
        A("  s_mov_b64 exec, 0xffff")
        for cc in range(0, 8, 2):
            A(f"  ds_write2_b32 v5, v{res[cc]}, v{res[cc+1]} offset0:{cc} offset1:{cc+1}")
        l = self.lab("onerow")
        A(f"  s_cmp_eq_u32 s45, 0\n  s_cbranch_scc1 {l}")
        for r in range(1, 4):
            A(f"  v_add_u32 v5, 512, v5")
            for cc in range(0, 8, 2):
                A(f"  ds_write2_b32 v5, v{res[cc]+r}, v{res[cc+1]+r} offset0:{cc} offset1:{cc+1}")
        A(f"{l}:")
        self.exec1()
        A(f"  ds_add_rtn_u32 v7, v{vZ}, v{vONE} offset:{F_Q}\n  s_waitcnt lgkmcnt(0)\n  v_readfirstlane_b32 s60, v7")
        self.execall()
        l = self.lab("notlastq")
        A(f"  s_cmp_lg_u32 s60, 3\n  s_cbranch_scc1 {l}")
        A(f"  v_lshlrev_b32 v6, 3, v{vLANE}")
        for part in range(4): A(f"  ds_read_b64 {vp(8+2*part)}, v6 offset:{L_QP + 2048*part}")
        A(f"  s_lshl_b32 s60, s2, 9\n  s_add_u32 s60, s60, {WS_QIN}\n  v_add_u32 v7, s60, v6")
        A(f"  v_lshlrev_b32 v5, 2, v{vLANE}\n  s_waitcnt lgkmcnt(0)")
        A("  v_add_f32 v8, v8, v10\n  v_add_f32 v9, v9, v11\n  v_add_f32 v12, v12, v14\n  v_add_f32 v13, v13, v15\n  v_add_f32 v8, v8, v12\n  v_add_f32 v9, v9, v13")
        A(f"  v_cvt_pk_bf16_f32 v8, v8, v9\n  ds_write_b32 v5, v8 offset:{L_QB}")
        l2 = self.lab("nodon")
        A(f"  s_cmp_eq_u32 s45, 0\n  s_cbranch_scc1 {l2}")
        for r in range(1, 4):
            for part in range(4): A(f"  ds_read_b64 {vp(16+2*part)}, v6 offset:{L_QP + 2048*part + 512*r}")
            A(f"  v_add_u32 v7, {64*512}, v7\n  s_waitcnt lgkmcnt(0)")
            A("  v_add_f32 v16, v16, v18\n  v_add_f32 v17, v17, v19\n  v_add_f32 v20, v20, v22\n  v_add_f32 v21, v21, v23\n  v_add_f32 v16, v16, v20\n  v_add_f32 v17, v17, v21")
            A(f"  v_cvt_pk_bf16_f32 v{24+2*r}, v16, v17\n  v_mov_b32 v{25+2*r}, s44\n  global_store_dwordx2 v7, {vp(24+2*r)}, {sp(sWS)} sc1")
        A(f"{l2}:")
        self.lds_inc(F_Q2)
        self.dumpv(8, 1, 0x80000, 2, 256)
        A(f"{l}:")
        self.stamp(5)
        steps = self.wo_pattern()[1]
        def chkB():
            if c["rank"]: return
            l0 = self.lab("noB")
            A(f"  s_cmp_lg_u32 s{sHW}, 1\n  s_cbranch_scc1 {l0}")
            if "B" not in c["xskip"]: self.get_flag(7, 136, 45, expect="s44")
            self.lds_inc(F_C)
            A(f"{l0}:")
        def rowloads(fl):
            for i in range(4): A(f"  global_load_dwordx4 {vq(12+4*i)}, v36, {sp(sWS)} offset:{1024*i}{fl}")
            for i in range(4): A(f"  global_load_dword v{28+i}, v37, {sp(sWS)} offset:{32*i}{fl}")
        def rows_a():
            if "R" in c["xskip"]: return
            l = self.lab("norows")
            A(f"  s_cmp_ge_u32 s{sHW}, 2\n  s_cbranch_scc1 {l}\n  s_cmp_eq_u32 s{sFFN}, 0\n  s_cbranch_scc1 {l}")
            A(f"  s_lshl_b32 s41, s{sJ}, 1\n  s_add_u32 s41, s41, s{sHW}")
            A(f"  s_mul_i32 s60, s41, 6144\n  s_add_u32 s60, s60, {WS_MOD + 2048}\n  v_add_u32 v36, s60, v{vL16}")
            A(f"  s_lshl_b32 s60, s41, 8\n  s_add_u32 s60, s60, {WS_MARK + 64}\n  v_lshrrev_b32 v37, 3, v{vLANE}\n  v_lshl_add_u32 v37, v37, 2, s60")
            rowloads("")
            A(f"  s_lshl_b32 s60, s41, 10\n  v_add_u32 v7, s60, v{vL16}\n  global_load_dwordx4 {vq(8)}, v7, {sp(sX)}")
            A(f"{l}:")
        def rows_b():
            if "R" in c["xskip"]: return
            l = self.lab("norows2")
            A(f"  s_cmp_ge_u32 s{sHW}, 2\n  s_cbranch_scc1 {l}\n  s_cmp_eq_u32 s{sFFN}, 0\n  s_cbranch_scc1 {l}")
            lr = self.lab("chkR"); dr = self.lab("gotR")
            A(f"{lr}:")
            self.check_lines([12, 16, 20, 24], [28, 29, 30, 31], 32)
            A(f"  s_cbranch_vccz {dr}")
            self.guard()
            rowloads(" sc1")
            A(f"  s_waitcnt vmcnt(0)\n  s_branch {lr}\n{dr}:")
            self.unpack8(20, 28)
            for i in range(8): A(f"  v_add_f32 v{28+i}, 1.0, v{28+i}")
            for i in range(4): A(f"  v_cvt_pk_bf16_f32 v{20+i}, v{28+2*i}, v{29+2*i}")
            self.lds_spin(F_Q2, 1, 7)
            A(f"  s_mul_i32 s60, s{sHW}, 5120\n  v_add_u32 v36, s60, v{vL16}")
            for i in range(5): A(f"  ds_write_b128 v36, {vq(8+4*i)} offset:{L_ROWS + 1024*i}")
            A(f"{l}:")
        self.wload32(SRDA, steps, c["HDO"], frac=c["HDOf"], hooks={c["PB"]: chkB, c["PR"]: rows_a, c["PR"] + c["HDO"]: rows_b})
        A("  s_branch L_wo")
        A("L_prodh:")
        if c["spref"]:
            l = self.lab("nosp"); pc = self.lab("spc")
            per = -(-c["prefkib"] * 8 // 6)
            A(f"  s_cmp_lg_u32 s{sHW}, 3\n  s_cbranch_scc1 {l}\n  s_getpc_b64 s[60:61]\n{pc}:\n  s_sub_u32 s60, s60, {pc}-{KNAME}\n  s_subb_u32 s61, s61, 0")
            A(f"  s_sub_u32 s65, s{sB}, 2\n  s_mul_i32 s65, s65, {per*128}\n  s_add_u32 s60, s60, s65\n  s_addc_u32 s61, s61, 0")
            for i in range(per):
                A(f"  s_load_dword s41, s[60:61], {128*i:#x}")
                if i % 12 == 11: A("  s_waitcnt lgkmcnt(0)")
            A(f"  s_waitcnt lgkmcnt(0)\n{l}:")
        A(f"  s_mov_b32 s{SRDA}, s{sWO}\n  s_mov_b32 s{SRDA+1}, s{sWO+1}\n  s_mov_b32 s{SRDA+2}, 4194304\n  s_mov_b32 s{SRDA+3}, 0x20000")
        A(f"  s_lshl_b32 s40, s{sH}, 17\n  s_lshl_b32 s60, s{sHW}, 8\n  s_add_u32 s40, s40, s60")
        A(f"  v_lshlrev_b32 v4, 4, v{vJ}\n  v_lshl_add_u32 v4, v{vG}, {self.wo_pattern()[0]}, v4")
        def recvq():
            l0 = self.lab("noq"); l = self.lab("pollPN"); d = self.lab("gotPN"); lq = self.lab("pollPQ"); dq = self.lab("gotPQ")
            A(f"  s_cmp_lg_u32 s{sHW}, 0\n  s_cbranch_scc1 {l0}")
            A(f"  s_load_dword s44, {sp(sDBG)}, 0x80\n  s_waitcnt lgkmcnt(0)\n{l}:\n  s_cmp_lg_u32 s44, 0\n  s_cbranch_scc1 {d}")
            self.guard()
            A(f"  s_load_dword s44, {sp(sDBG)}, 0x80 glc\n  s_waitcnt lgkmcnt(0)\n  s_branch {l}\n{d}:")
            A(f"  v_mov_b32 v26, s44\n  ds_write_b32 v{vZ}, v26 offset:{F_N}")
            A(f"  s_lshl_b32 s60, s2, 9\n  s_add_u32 s60, s60, {WS_QIN}\n  v_lshl_add_u32 v7, v{vLANE}, 3, s60\n  s_add_u32 s61, s60, 4")
            if "PQ" in c["xskip"]: A(f"  s_branch {dq}")
            A(f"{lq}:\n  s_load_dword s60, {sp(sWS)}, s61 glc\n  s_waitcnt lgkmcnt(0)\n  s_cmp_eq_u32 s60, s44\n  s_cbranch_scc0 {lq}_r")
            A(f"  global_load_dwordx2 v[8:9], v7, {sp(sWS)} sc1\n  s_waitcnt vmcnt(0)\n  v_cmp_ne_u32 vcc, s44, v9\n  s_cbranch_vccz {dq}")
            A(f"{lq}_r:")
            self.guard()
            A(f"  s_sleep {c['q_sleep']}\n  s_branch {lq}\n{dq}:")
            A(f"  v_lshlrev_b32 v7, 2, v{vLANE}\n  ds_write_b32 v7, v8 offset:{L_QB}")
            self.lds_inc(F_Q2)
            self.stamp(5)
            self.dumpv(8, 1, 0x80000, 2, 256)
            if not c["rank"]:
                self.get_flag(7, 136, 45, expect="s44")
                self.lds_inc(F_C)
            A(f"{l0}:")
        self.wload32(SRDA, steps, c["HDP"], frac=c["HDPf"], hooks=dict(([(8, chkB0)] if c["rank"] else []) + [(c["PQ"], recvq)] + ([(c["wopf"] // 2, self.wo_prefetch)] if (c["wopf"] or -1) > 0 else [])))
        self.lds_spin(F_Q2, 1, 7, sleep=4)
        A(f"  ds_read_b32 v7, v{vZ} offset:{F_N}\n  s_waitcnt lgkmcnt(0)\n  v_readfirstlane_b32 s44, v7")
        A("L_wo:")
        A("L_wodone:")
        if c["hprio"]: A(f"  s_setprio {c['hprio']}")
        if c["pref2"] and "T" not in c["xskip"]:
            self.prefetch(wait=True)
        self.lds_spin(F_C, 1, 7, sleep=4)
        A(f"  v_lshlrev_b32 v28, {5 if c['oadd'] else 3}, v{vG if c['oadd'] else vLANE}")
        A(f"  s_lshl_b32 s60, s{sHW}, 8\n  v_lshl_add_u32 v29, v{vLANE}, 2, s60\n  v_lshl_add_u32 v30, v{vG}, {6 if c['wopat'] == 32 else 4}, s60")
        A(f"  v_lshrrev_b32 v31, 2, v{vLANE}\n  v_and_b32 v32, 3, v{vLANE}\n  v_lshl_add_u32 v31, v32, 4, v31\n  v_lshlrev_b32 v36, 2, v31")
        A(f"  s_lshl_b32 s61, s{sB}, 12\n  s_add_u32 s61, s61, {WS_ACC}\n  v_add_u32 v32, s61, v29")
        A(f"  v_mov_b32 v33, 1.0\n  v_mov_b32 v34, 1.0\n  v_mov_b32 v35, 1.0\n  v_mov_b32_dpp v35, v{vZ} quad_perm:[0,1,2,3] row_mask:0x4 bank_mask:0xf")
        self.stamp(6)
        if "T" in c["xskip"]: A("  s_branch L_exit")
        if c["dryo"]:
            l = self.lab("nodryo")
            A(f"  s_cmp_lg_u32 s{sHW}, 3\n  s_cbranch_scc1 {l}\n  s_mov_b64 exec, 0\n  s_branch L_dry_o\nL_dry_oend:\n  s_mov_b64 exec, -1\n{l}:")
        self.lds_spin(F_O, 8, 7, sleep=c['o_sleep'])
        self.stamp(9)
        A("L_dry_o:")
        if c["oadd"]:
            rd = lambda q, off: A(f"  ds_read_b128 {vq(q)}, v28 offset:{L_OP + off}")
            rd(12, 0); rd(16, 16); rd(20, 128); rd(24, 144); rd(4, 256)
            A(f"  s_waitcnt lgkmcnt(3)")
            for i in range(4): A(f"  v_cvt_pk_bf16_f32 v{8+i}, v{12+2*i}, v{13+2*i}")
            A(f"  s_waitcnt lgkmcnt(1)")
            for i in range(4): A(f"  v_cvt_pk_bf16_f32 v{12+i}, v{20+2*i}, v{21+2*i}")
            rd(16, 272); rd(20, 384); rd(24, 400)
            self.stamp(10)
            res = [28] + [40 + 4 * k for k in range(7)]
            for m, Am in enumerate((8, 12, 4, 16)):
                for cc in range(8):
                    A(f"  v_mfma_f32_16x16x32_bf16 {vq(res[cc])}, {vq(Am)}, {vq(40+32*m+4*cc)}, {'0' if m == 0 else vq(res[cc])}")
                    if m == 0 and cc == 5:
                        A(f"  s_waitcnt lgkmcnt(0)")
                        A("  v_cvt_pk_bf16_f32 v4, v4, v5\n  v_cvt_pk_bf16_f32 v5, v6, v7\n  v_cvt_pk_bf16_f32 v6, v16, v17\n  v_cvt_pk_bf16_f32 v7, v18, v19")
                    if m == 1 and cc == 1:
                        for i in range(4): A(f"  v_cvt_pk_bf16_f32 v{16+i}, v{20+2*i}, v{21+2*i}")
        else:
            for part in range(8): A(f"  ds_read_b64 {vp(8+2*part)}, v28 offset:{L_OP + 512*part}")
            A("  s_waitcnt lgkmcnt(4)")
            A("  v_add_f32 v8, v8, v10\n  v_add_f32 v9, v9, v11\n  v_add_f32 v12, v12, v14\n  v_add_f32 v13, v13, v15\n  v_add_f32 v8, v8, v12\n  v_add_f32 v9, v9, v13")
            A("  s_waitcnt lgkmcnt(0)")
            A("  v_add_f32 v16, v16, v18\n  v_add_f32 v17, v17, v19\n  v_add_f32 v20, v20, v22\n  v_add_f32 v21, v21, v23\n  v_add_f32 v16, v16, v20\n  v_add_f32 v17, v17, v21")
            A(f"  v_add_f32 v8, v8, v16\n  v_add_f32 v9, v9, v17\n  v_cvt_pk_bf16_f32 v7, v8, v9\n  ds_write_b32 v29, v7 offset:{L_OB}")
            for m in range(4): A(f"  ds_read_b128 {vq(8+4*m)}, v30 offset:{L_OB + (16 if c['wopat'] == 32 else 64)*m}")
            A("  s_waitcnt lgkmcnt(0)")
            self.stamp(10)
            if c["dryo"]: A("  s_cbranch_execz L_dry_o2")
            res = self.gemv32()
            A("L_dry_o2:")
        self.stamp(11)
        for g in range(3):
            for k in range(3):
                if 3 * k + g < 8:
                    A(f"  v_mov_b32_dpp v{33+k}, v{res[3*k+g]} quad_perm:[0,1,2,3] row_mask:{1<<g:#x} bank_mask:0xf")
        for k in range(3): A(f"  ds_bpermute_b32 v{33+k}, v36, v{33+k}")
        if c["dryo"]: A("  s_cbranch_execz L_dry_oend")
        for k in range(3):
            A(f"  s_waitcnt lgkmcnt({2-k})\n  global_atomic_add_f32 v32, v{33+k}, {sp(sWS)} offset:{1024*k}")
        if c["gate"] or c["early"]:
            l = self.lab("g01")
            A(f"  s_cmp_lt_u32 s{sHW}, 2\n  s_cbranch_scc1 {l}")
            self.lds_inc(F_A)
            A(f"{l}:")
        else:
            self.lds_inc(F_A)
        self.stamp(7)
        if c["dump"] and not c["oadd"]:
            l = self.lab("nodumpo")
            A(f"  s_cmp_lg_u32 s{sHW}, 3\n  s_cbranch_scc1 {l}")
            self.dumpv(7, 1, 0x90000, 2, 256)
            A(f"{l}:")
        if c["dry"]:
            l = self.lab("nodry"); l2 = self.lab("dryf")
            A(f"  s_cmp_lg_u32 s{sHW}, 2\n  s_cbranch_scc1 {l}\n  s_cmp_lg_u32 s{sFFN}, 0\n  s_cbranch_scc1 {l2}\n  s_cmp_ge_u32 s57, 100\n  s_cbranch_scc1 L_exit")
            A(f"  s_mov_b64 exec, 0\n  s_branch L_dry_r\n{l2}:\n  s_mov_b64 exec, 0\n  s_branch L_dry_l\n{l}:")
        A(f"  s_cmp_ge_u32 s{sHW}, 2\n  s_cbranch_scc1 L_exit\n  s_cmp_lt_u32 s57, 100\n  s_cbranch_scc1 L_recv\n  s_cmp_eq_u32 s{sFFN}, 0\n  s_cbranch_scc1 L_exit")
        A(f"  s_lshl_b32 s45, s{sJ}, 1\n  s_add_u32 s45, s45, s{sHW}\n  s_lshl_b32 s45, s45, 6\n  s_add_u32 s45, s45, s{sSL}\n  s_lshl_b32 s45, s45, 7\n  s_add_u32 s45, s45, {WS_HINT}")
        if c["gate"]: A(f"  s_load_dword s61, {sp(sWS)}, s45 glc")
        if c["early"]: A(f"  s_lshl_b32 s60, s{sHW}, 2\n  v_mov_b32 v7, s60\n  ds_read_b32 v7, v7 offset:{F_HS}")
        A(f"  s_mul_i32 s60, s{sHW}, 5120\n  v_add_u32 v4, s60, v{vL16}")
        for i in range(4): A(f"  ds_read_b128 {vq(72+4*i)}, v4 offset:{L_ROWS + 1024*i}")
        A(f"  s_lshl_b32 s41, s{sJ}, 1\n  s_add_u32 s41, s41, s{sHW}\n  s_lshl_b32 s41, s41, 12\n  s_add_u32 s41, s41, {WS_ACC}\n  v_add_u32 v5, s41, v{vL16}\n  v_mov_b32 v6, s41")
        A(f"  s_lshl_b32 s60, s{sHW}, 10\n  v_add_u32 v4, s60, v{vL16}")
        A("  s_waitcnt lgkmcnt(0)")
        if c["early"]:
            le = self.lab("notlate"); lj0 = self.lab("lj")
            A(f"  v_readfirstlane_b32 s61, v7\n  s_cmp_eq_u32 s61, s44\n  s_cbranch_scc1 {le}")
            self.lds_inc(F_A)
            A(f"{le}:")
        self.unpack8(72, 88); self.unpack8(76, 96); self.unpack8(80, 104); self.unpack8(84, 112)
        if c["early"]:
            le2 = self.lab("notlate2")
            A(f"  s_cmp_lg_u32 s61, s44\n  s_cbranch_scc1 {le2}")
            if c["late_delay"]: A(f"  s_sleep {c['late_delay']}")
            for k in range(3): A(f"  global_load_dwordx4 {vq(120+4*k)}, v5, {sp(sWS)} offset:{1024*k}{c['accfl']}")
            self.lds_inc(F_A)
            self.stamp(1); self.cstamp(13)
            A(f"  s_branch {lj0}\n{le2}:")
        lp = self.lab("pollH"); ld = self.lab("gotH")
        if c["gate"]:
            lg = self.lab("late")
            A(f"  s_cmp_eq_u32 s61, s44\n  s_cbranch_scc1 {lg}")
            self.lds_inc(F_A)
        A(f"{lp}:\n  s_load_dword s60, {sp(sWS)}, s45 glc\n  s_waitcnt lgkmcnt(0)\n  s_cmp_eq_u32 s60, s44\n  s_cbranch_scc1 {ld}")
        self.guard()
        if c["hint_sleep"]: A(f"  s_sleep {c['hint_sleep']}")
        A(f"  s_branch {lp}\n{ld}:")
        if c["read_delay"]: A(f"  s_sleep {c['read_delay']}")
        if c["gate"]:
            for k in range(3): A(f"  global_load_dwordx4 {vq(120+4*k)}, v5, {sp(sWS)} offset:{1024*k}{c['accfl']}")
            lj = self.lab("gj")
            A(f"  s_branch {lj}\n{lg}:")
            for k in range(3): A(f"  global_load_dwordx4 {vq(120+4*k)}, v5, {sp(sWS)} offset:{1024*k}{c['accfl']}")
            self.lds_inc(F_A)
            A(f"{lj}:")
        self.stamp(1)
        self.cstamp(13)
        lp = self.lab("pollF"); ld = self.lab("gotF")
        if not c["gate"]:
            for k in range(3): A(f"  global_load_dwordx4 {vq(120+4*k)}, v5, {sp(sWS)} offset:{1024*k}{c['accfl']}")
        if c["early"]: A(f"{lj0}:")
        self.lds_inc(F_R)
        A(f"{lp}:")
        A("  s_waitcnt vmcnt(0)\n  v_min3_f32 v7, v123, v127, v131\n  v_cmp_neq_f32 vcc, 0x42000000, v7")
        A(f"  s_cbranch_vccz {ld}")
        self.guard()
        if c["full_sleep"]: A(f"  s_sleep {c['full_sleep']}")
        for k in range(3): A(f"  global_load_dwordx4 {vq(120+4*k)}, v5, {sp(sWS)} offset:{1024*k}{c['accfl']}")
        A(f"  s_branch {lp}\n{ld}:")
        self.stamp(2)
        self.cstamp(15)
        A("L_dry_l:")
        src = [120, 121, 122, 124, 125, 126, 128, 129]
        for i in range(4): A(f"  v_cvt_pk_bf16_f32 v{16+i}, v{src[2*i]}, v{src[2*i+1]}")
        self.unpack8(16, 8)
        self.pk8("mul", 8, 96, 8)
        self.rnd8(8, 16)
        self.pk8("add", 8, 88, 8)
        for i in range(4): A(f"  v_cvt_pk_bf16_f32 v{28+i}, v{8+2*i}, v{9+2*i}")
        self.unpack8(28, 8)
        self.layernorm(8, 16, 24)
        self.pk8("mul", 8, 8, 112)
        self.rnd8(8, 16)
        self.pk8("add", 8, 8, 104)
        for i in range(4): A(f"  v_cvt_pk_bf16_f32 v{24+i}, v{8+2*i}, v{9+2*i}")
        A(f"  ds_write_b128 v4, {vq(24)} offset:{L_H2}\n  ds_write_b128 v4, {vq(28)} offset:{L_X1}\n  s_waitcnt lgkmcnt(0)")
        if c["dry"]: A("  s_cbranch_execz L_dry_red")
        self.stamp(3)
        A("  s_barrier")
        if c["dump"]:
            A(f"  s_lshl_b32 s69, s2, 1\n  s_add_u32 s69, s69, s{sHW}")
            self.dumpv(24, 4, 0x600000, 69, 1024)
        A(f"  s_cmp_eq_u32 s{sHW}, 0\n  s_cbranch_scc1 L_reducer")
        A(f"  s_cmp_ge_u32 s{sSL}, 32\n  s_cbranch_scc1 {'L_h1bar' if c['stamps'] else 'L_exit'}")
        A(f"  s_lshr_b32 s60, s{sSL}, 2\n  s_lshl_b32 s60, s60, 7\n  s_and_b32 s61, s{sSL}, 3\n  s_lshl_b32 s61, s61, 1\n  s_add_u32 s60, s60, s61\n  v_lshl_add_u32 v4, v{vJ}, 3, s60")
        A(f"  ds_read_u16 v8, v4 offset:{L_X1}\n  ds_read_u16 v9, v4 offset:{L_ROWS + 4096}\n  ds_read_u16 v12, v4 offset:{L_X1 + 1024}\n  ds_read_u16 v13, v4 offset:{L_ROWS + 4096 + 5120}")
        A(f"  s_lshl_b32 s60, s{sJ}, 5\n  s_add_u32 s60, s60, s{sSL}\n  s_mul_i32 s60, s60, {INB}\n  s_add_u32 s60, s60, {WS_INBOX + 43*256}\n  v_lshl_add_u32 v5, v{vJ}, 4, s60")
        A(f"  s_xor_b32 s45, s44, {TAGX:#x}\n  v_mov_b32 v10, s44\n  v_mov_b32 v11, s45\n  s_mov_b64 exec, 0xffff\n  s_waitcnt lgkmcnt(0)\n  v_lshl_or_b32 v8, v12, 16, v8\n  v_lshl_or_b32 v9, v13, 16, v9")
        A(f"  global_store_dwordx4 v5, {vq(8)}, {sp(sWS)} sc1")
        A("L_h1bar:\n  s_barrier\n  s_barrier\n  s_branch L_exit2")
        A("L_recv:")
        A(f"  s_lshl_b32 s41, s{sB}, 3\n  s_add_u32 s41, s41, s{sXCD}\n  s_lshl_b32 s41, s41, 1\n  s_add_u32 s41, s41, s{sHW}")
        A(f"  s_mul_i32 s46, s41, {INB}\n  s_add_u32 s46, s46, {WS_INBOX}\n  s_add_u32 s47, s46, {43*256 + 8}\n  s_add_u32 s60, s46, 4096\n  v_add_u32 v5, s60, v{vL16}\n  v_add_u32 v7, 4096, v5")
        A(f"  s_lshr_b32 s60, s41, 5\n  s_lshl_b32 s60, s60, 11\n  s_bfe_u32 s61, s41, 0x30002\n  s_lshl_b32 s61, s61, 7\n  s_add_u32 s60, s60, s61\n  s_and_b32 s61, s41, 3\n  s_lshl_b32 s61, s61, 1\n  s_add_u32 s60, s60, s61")
        A(f"  v_and_b32 v4, 1, v{vG}\n  v_lshl_add_u32 v6, v{vJ}, 3, s60\n  v_lshl_add_u32 v6, v4, 10, v6\n  v_lshlrev_b32 v4, 4, v4\n  v_sub_u32 v4, 16, v4")
        A(f"  s_xor_b32 s45, s44, {TAGX:#x}")
        lp = self.lab("pollX"); ld = self.lab("gotX")
        A(f"{lp}:\n  s_load_dword s60, {sp(sWS)}, s47 glc\n  s_waitcnt lgkmcnt(0)\n  s_cmp_eq_u32 s60, s44\n  s_cbranch_scc1 {ld}")
        self.guard()
        A(f"  s_sleep {c['rx_sleep']}\n  s_branch {lp}\n{ld}:")
        self.stamp(1)
        if c["rx_delay"]: A(f"  s_sleep {c['rx_delay']}")
        lp = self.lab("pollI"); ld = self.lab("gotI")
        A(f"{lp}:")
        for i in range(11): A(f"  global_load_dwordx4 {vq(44+4*i)}, v{5 if i < 8 else 7}, {sp(sWS)} offset:{1024*i - (4096 if i < 8 else 8192)}{c['rxfl']}")
        A("L_dry_r:")
        for i in range(11):
            q = 44 + 4 * i
            A(f"  s_waitcnt vmcnt({10-i})")
            if i == 0:
                A(f"  v_xor_b32 v10, s44, v{q+2}\n  v_xor_b32 v11, s45, v{q+3}\n  v_mov_b32 v8, v{q}\n  v_mov_b32 v9, v{q+1}")
            else:
                A(f"  v_bitop3_b32 v10, v10, v{q+2}, s44 bitop3:0xf6\n  v_bitop3_b32 v11, v11, v{q+3}, s45 bitop3:0xf6")
                if i < 10: A(f"  v_add_f32 v8, v8, v{q}\n  v_add_f32 v9, v9, v{q+1}")
                else: A(f"  v_add_f32_dpp v8, v{q}, v8 quad_perm:[0,1,2,3] row_mask:0x7 bank_mask:0xf\n  v_add_f32_dpp v9, v{q+1}, v9 quad_perm:[0,1,2,3] row_mask:0x7 bank_mask:0xf")
        A(f"  v_or_b32 v10, v10, v11\n  v_cmp_ne_u32 vcc, 0, v10\n  s_cbranch_vccz {ld}")
        self.guard()
        A(f"  s_branch {lp}\n{ld}:")
        self.stamp(4); self.cstamp(15)
        if c["xdelay"]: A(f"  s_sleep {c['xdelay']}")
        A("  v_mov_b32 v12, v84\n  v_mov_b32 v13, v85\n  v_permlane16_swap_b32 v8, v9\n  v_permlane32_swap_b32 v12, v84\n  v_permlane32_swap_b32 v13, v85")
        A("  v_add_f32 v8, v8, v9\n  v_mov_b32 v12, v84\n  v_mov_b32 v13, v85\n  v_mov_b32 v9, v8")
        A("  v_permlane16_swap_b32 v12, v84\n  v_permlane16_swap_b32 v13, v85\n  v_permlane32_swap_b32 v9, v8")
        A("  v_lshlrev_b32 v84, v4, v84\n  v_lshlrev_b32 v85, v4, v85\n  v_add_f32 v8, v8, v9\n  v_and_b32 v84, 0xffff0000, v84\n  v_and_b32 v85, 0xffff0000, v85")
        self.rnd1(8, 9)
        A("  v_mul_f32 v8, v85, v8"); self.rnd1(8, 9)
        A("  v_add_f32 v8, v84, v8\n  v_cvt_pk_bf16_f32 v8, v8, v8")
        if c["dry"]: A("  s_cbranch_execz L_exit")
        A("  s_mov_b32 exec_hi, 0")
        A(f"  global_store_short v6, v8, {sp(sOUT)}{c['outfl']}")
        self.execall()
        self.stamp(5)
        A("  s_branch L_exit")
        A("L_reducer:")
        A(f"  v_lshlrev_b32 v4, 2, v{vLANE}\n  v_add_u32 v4, {L_GUP}, v4")
        A(f"  v_and_b32 v5, 1, v{vLANE}\n  v_lshlrev_b32 v5, 6, v5\n  v_and_b32 v6, 62, v{vLANE}\n  v_add_u32 v5, v5, v6")
        A("  s_barrier")
        A("L_dry_red:")
        for w in range(8): A(f"  ds_read2st64_b32 {vp(8+2*w)}, v4 offset0:{2*w} offset1:{2*w+1}")
        A("  s_waitcnt lgkmcnt(4)")
        A("  v_add_f32 v8, v8, v10\n  v_add_f32 v9, v9, v11\n  v_add_f32 v12, v12, v14\n  v_add_f32 v13, v13, v15\n  v_add_f32 v8, v8, v12\n  v_add_f32 v9, v9, v13")
        A("  s_waitcnt lgkmcnt(0)")
        A("  v_add_f32 v16, v16, v18\n  v_add_f32 v17, v17, v19\n  v_add_f32 v20, v20, v22\n  v_add_f32 v21, v21, v23\n  v_add_f32 v16, v16, v20\n  v_add_f32 v17, v17, v21")
        A("  v_add_f32 v8, v8, v16\n  v_add_f32 v9, v9, v17")
        self.rnd2(8, 9, 10)
        A(f"  v_max_f32 v8, 0xc2ae0000, v8")
        self.expv([(11, 8, 12)], neg=True)
        A(f"  v_add_f32 v11, 1.0, v11")
        self.divv([(8, "1.0", 11, 12, 13)])
        self.rnd1(8, 10)
        A(f"  v_mul_f32 v8, v8, v9\n  v_cvt_pk_bf16_f32 v8, v8, v8\n  ds_write_b16 v5, v8 offset:{L_HH}\n  s_waitcnt lgkmcnt(0)")
        if c["dry"]: A("  s_cbranch_execz L_dry_s")
        A("  s_barrier")
        self.stamp(4)
        self.dumpv(8, 1, 0xE0000, 2, 256)
        A("  s_branch L_exit2")

    def ids(self):
        A = self.A; c = self.c
        A(f"  v_lshlrev_b32 v{vL16}, 4, v0")
        A(f"  s_and_b32 s{sXCD}, s2, 7\n  s_lshr_b32 s{sIDX}, s2, 3\n  s_lshr_b32 s{sB}, s{sIDX}, 2\n  s_and_b32 s{sJ}, s{sIDX}, 3")
        if c["hmap"] == 0: A(f"  s_lshl_b32 s{sH}, s{sXCD}, 2\n  s_add_u32 s{sH}, s{sH}, s{sJ}")
        elif c["hmap"] == 1: A(f"  s_lshl_b32 s{sH}, s{sJ}, 3\n  s_add_u32 s{sH}, s{sH}, s{sXCD}")
        elif c["hmap"] == 2: A(f"  s_lshr_b32 s{sH}, s{sXCD}, 1\n  s_lshl_b32 s{sH}, s{sH}, 3\n  s_and_b32 s60, s{sXCD}, 1\n  s_add_u32 s{sH}, s{sH}, s60\n  s_lshl_b32 s60, s{sJ}, 1\n  s_add_u32 s{sH}, s{sH}, s60")
        elif c["hmap"] == 3: A(f"  s_lshl_b32 s{sH}, s{sXCD}, 2\n  s_add_u32 s60, s{sJ}, 1\n  s_and_b32 s60, s60, 3\n  s_add_u32 s{sH}, s{sH}, s60")

    def common1(self):
        A = self.A; c = self.c
        A(f"  v_mov_b32 v36, 0\n  v_mov_b32 v37, 0\n  v_lshrrev_b32 v{vG}, 4, v0\n  v_and_b32 v{vJ}, 15, v0\n  v_mov_b32 v{vZ}, 0\n  v_mov_b32 v{vONE}, 1")
        A(f"  s_add_u32 s60, s{sXCD}, 256\n  s_cmp_eq_u32 s{sIDX}, 28\n  s_cselect_b32 s57, s60, 100")
        A(f"  s_sub_u32 s60, s{sB}, {c['prodb']}\n  s_lshl_b32 s60, s60, 3\n  s_add_u32 s60, s60, s{sXCD}\n  s_cmp_lt_u32 s{sB}, {c['prodb']}\n  s_cselect_b32 s60, 64, s60")
        A(f"  s_cmp_eq_u32 s{sJ}, 1\n  s_cselect_b32 s57, s60, s57")
        if "M" in c["xskip"]: A("  s_cmp_lt_u32 s57, 48\n  s_cselect_b32 s57, 100, s57")
        if "F" in c["xskip"]: A("  s_cmp_ge_u32 s57, 256\n  s_cselect_b32 s57, 100, s57")

    def consts(self):
        A = self.A
        A(f"  s_mov_b32 s{sGUARD}, 0\n  s_mov_b32 s{sPLO}, 0x05040100\n  s_mov_b32 s{sPHI}, 0x07060302\n  s_mov_b32 s{sLOG2E}, {LOG2E:#x}")

    def common2(self):
        A = self.A; c = self.c
        A(f"  s_mul_i32 s65, s{sB}, 3\n  s_add_u32 s65, s65, s{sJ}\n  s_lshr_b32 s60, s{sJ}, 1\n  s_sub_u32 s65, s65, s60\n  s_lshr_b32 s61, s65, 2")
        A(f"  s_lshr_b32 s60, s{sXCD}, 1\n  s_mul_i32 s{sSL}, s{sXCD}, 5\n  s_add_u32 s{sSL}, s{sSL}, s60\n  s_add_u32 s{sSL}, s{sSL}, s61\n  s_sub_u32 s{sSL}, s{sSL}, 1")
        A(f"  s_and_b32 s60, s{sXCD}, 1\n  s_add_u32 s60, s60, 5\n  s_cmp_lt_u32 s61, s60\n  s_cselect_b32 s{sFFN}, 1, 0\n  s_cmp_lt_u32 s{sSL}, 43\n  s_cselect_b32 s{sFFN}, s{sFFN}, 0")
        A(f"  s_cmp_eq_u32 s{sJ}, 1\n  s_cselect_b32 s{sFFN}, 0, s{sFFN}\n  s_and_b32 s{sJ}, s65, 3")

    def common(self):
        self.common1(); self.common2(); self.consts()

    def build(self):
        A = self.A; c = self.c
        A(f"{KNAME}:")
        if c["stamps"]:
            for k in range(1, 16): A(f"  s_mov_b64 s[{70+2*k}:{71+2*k}], 0")
        self.stamp(0)
        A("  s_cmp_ge_u32 s2, 256\n  s_cbranch_scc1 L_end")
        A("  s_load_dwordx16 s[4:19], s[0:1], 0\n  s_load_dwordx8 s[20:27], s[0:1], 64\n  s_load_dwordx4 s[28:31], s[0:1], 96")
        A(f"  v_lshrrev_b32 v2, 6, v0\n  v_and_b32 v0, 63, v0\n  v_readfirstlane_b32 s{sWAVE}, v2")
        if c["hfirst"]: A(f"  s_cmp_ge_u32 s{sWAVE}, 8\n  s_cbranch_scc1 L_helper0")
        self.ids()
        if c["fast0"]:
            l = self.lab("nofast")
            A(f"  s_cmp_ge_u32 s{sWAVE}, 8\n  s_cbranch_scc1 {l}")
            A(f"  s_lshl_b32 s56, s{sB}, 5\n  s_add_u32 s56, s56, s{sH}\n  s_lshl_b32 s56, s56, 20\n  s_add_u32 s56, s56, 0xC0000\n  s_lshl_b32 s{sOFF}, s{sWAVE}, {10 + c['gran'].bit_length() - 1}")
            A(f"  s_mov_b32 s{SRDA+2}, 0x40000\n  s_mov_b32 s{SRDA+3}, 0x20000\n  s_waitcnt lgkmcnt(0)\n  s_add_u32 s{SRDA}, s{sK}, s56\n  s_addc_u32 s{SRDA+1}, s{sK+1}, 0")
            for n in range(c["E"]): A(f"  buffer_load_dwordx4 {vq(40+4*n)}, v{vL16}, {sq(SRDA)}, s{sOFF} offen offset:{1024*n}{c['kfl']}")
            self.stamp(8)
            A(f"{l}:")
        if c["pref"]: self.prefetch()
        if c["lazy"]:
            assert c["hfirst"] and c["fast0"]
            self.common1()
            gr = c["gran"] // 4
            for G in range(1, 4): A(f"  s_add_u32 s{sOFF+G}, s{sOFF}, {(G // gr) * 32768 * gr + (G % gr) * 4096}")
            def late():
                self.common2(); self.consts()
                if c["sprio"]:
                    l = self.lab("sp")
                    A(f"  s_cmp_lt_u32 s{sWAVE}, 4\n  s_cbranch_scc1 {l}\n  s_setprio {c['sprio']}\n{l}:")
                A(f"  s_lshl_b32 s60, s{sB}, 5\n  s_add_u32 s60, s60, s{sH}\n  s_lshl_b32 s60, s60, 20\n  s_add_u32 s60, s60, 0xC0000")
                A(f"  s_lshl_b32 s{sOFF}, s{sWAVE}, {10 + c['gran'].bit_length() - 1}\n  s_mul_i32 s56, s{sWAVE}, {c['NV']*1024}\n  s_add_u32 s56, s56, {L_V}")
                gr = c["gran"] // 4
                for G in range(1, 8): A(f"  s_add_u32 s{sOFF+G}, s{sOFF}, {(G // gr) * 32768 * gr + (G % gr) * 4096}")
                A(f"  s_mov_b32 s{SRDA+2}, 0x40000\n  s_mov_b32 s{SRDA+3}, 0x20000\n  s_mov_b32 s{SRDB+2}, 0x40000\n  s_mov_b32 s{SRDB+3}, 0x20000")
                A("  s_waitcnt lgkmcnt(0)")
                D = c["D"]
                d2 = c["depth2"] or c["depth"]
                def mask(f1, f2):
                    m = 0; acc = 0.5
                    for n in range(64):
                        acc += f1 if n < c["dsw"] else f2
                        if acc >= 1.0 - 1e-9:
                            acc -= 1.0
                            if n < c["sprint"]: m |= 1 << n
                    return m
                m1 = [mask(min(1.0, D - a), min(1.0, D - b)) for a, b in zip(c["depth"], d2)]
                m2 = [mask(max(0.0, D - 1 - a), max(0.0, D - 1 - b)) & x for a, b, x in zip(c["depth"], d2, m1)]
                for reg, ms in ((58, m1), (14, m2)):
                    for half in range(2):
                        w = [(m >> (32 * half)) & 0xffffffff for m in ms]
                        A(f"  s_bitcmp1_b32 s{sXCD}, 0\n  s_mov_b32 s{reg+half}, {w[0]:#x}\n  s_cselect_b32 s{reg+half}, {w[1]:#x}, s{reg+half}")
                        A(f"  s_cmp_lt_u32 s57, 48\n  s_cselect_b32 s{reg+half}, {w[2]:#x}, s{reg+half}\n  s_cmp_eq_u32 s57, 64\n  s_cselect_b32 s{reg+half}, {w[3]:#x}, s{reg+half}")
                A("  s_waitcnt lgkmcnt(0)")
                A(f"  s_add_u32 s{SRDA}, s{sK}, s60\n  s_addc_u32 s{SRDA+1}, s{sK+1}, 0\n  s_add_u32 s{SRDB}, s{sV}, s60\n  s_addc_u32 s{SRDB+1}, s{sV+1}, 0")
            self.late_setup = late
        else:
            self.common()
            A(f"  s_cmp_ge_u32 s{sWAVE}, 8\n  s_cbranch_scc1 L_helper")
            if c["hop"]: A("  HOPS")
            if c["sprio"]:
                l = self.lab("sp")
                A(f"  s_cmp_lt_u32 s{sWAVE}, 4\n  s_cbranch_scc1 {l}\n  s_setprio {c['sprio']}\n{l}:")
            A(f"  s_lshl_b32 s60, s{sB}, 5\n  s_add_u32 s60, s60, s{sH}\n  s_lshl_b32 s60, s60, 20\n  s_add_u32 s60, s60, 0xC0000")
            A(f"  s_lshl_b32 s{sOFF}, s{sWAVE}, {10 + c['gran'].bit_length() - 1}\n  s_mul_i32 s56, s{sWAVE}, {c['NV']*1024}\n  s_add_u32 s56, s56, {L_V}")
            gr = c["gran"] // 4
            for G in range(1, 8): A(f"  s_add_u32 s{sOFF+G}, s{sOFF}, {(G // gr) * 32768 * gr + (G % gr) * 4096}")
            A(f"  s_mov_b32 s{SRDA+2}, 0x40000\n  s_mov_b32 s{SRDA+3}, 0x20000\n  s_mov_b32 s{SRDB+2}, 0x40000\n  s_mov_b32 s{SRDB+3}, 0x20000")
            A("  s_waitcnt lgkmcnt(0)")
            D = c["D"]
            d2 = c["depth2"] or c["depth"]
            def mask(f1, f2):
                m = 0; acc = 0.5
                for n in range(64):
                    acc += f1 if n < c["dsw"] else f2
                    if acc >= 1.0 - 1e-9:
                        acc -= 1.0
                        if n < c["sprint"]: m |= 1 << n
                return m
            m1 = [mask(min(1.0, D - a), min(1.0, D - b)) for a, b in zip(c["depth"], d2)]
            m2 = [mask(max(0.0, D - 1 - a), max(0.0, D - 1 - b)) & x for a, b, x in zip(c["depth"], d2, m1)]
            for reg, ms in ((58, m1), (14, m2)):
                for half in range(2):
                    w = [(m >> (32 * half)) & 0xffffffff for m in ms]
                    A(f"  s_bitcmp1_b32 s{sXCD}, 0\n  s_mov_b32 s{reg+half}, {w[0]:#x}\n  s_cselect_b32 s{reg+half}, {w[1]:#x}, s{reg+half}")
                    A(f"  s_cmp_lt_u32 s57, 48\n  s_cselect_b32 s{reg+half}, {w[2]:#x}, s{reg+half}\n  s_cmp_eq_u32 s57, 64\n  s_cselect_b32 s{reg+half}, {w[3]:#x}, s{reg+half}")
            A("  s_waitcnt lgkmcnt(0)")
            A(f"  s_add_u32 s{SRDA}, s{sK}, s60\n  s_addc_u32 s{SRDA+1}, s{sK+1}, 0\n  s_add_u32 s{SRDB}, s{sV}, s60\n  s_addc_u32 s{SRDB+1}, s{sV+1}, 0")
            self.late_setup = None
        if c["Dodd"]:
            A(f"  s_bitcmp1_b32 s{sXCD}, 0\n  s_cbranch_scc1 L_sodd")
        self.streamer(c["D"], "e")
        if c["Dodd"]:
            A("L_sodd:")
            self.streamer(c["Dodd"], "o")
        self.streamer_ffn()
        if c["ool"]: self.L += self.ool_block
        self.helper()
        if c["sub"]:
            A("L_gemv:"); self.gemv32(body=True); A("  s_setpc_b64 s[42:43]")
        A("L_exit2:")
        if c["stamps"]: A("  s_sleep 100")
        A("L_exit:")
        if c["stamps"] and c["diag"]:
            A(f"  s_sleep 127\n  s_sleep 127\n  s_load_dword s44, {sp(sDBG)}, 0x80\n  s_waitcnt lgkmcnt(0)\n  s_cmp_ge_u32 s{sWAVE}, 8\n  s_cbranch_scc1 L_diagh\n  s_cmp_lg_u32 s{sWAVE}, 7\n  s_cbranch_scc1 L_end")
            def rec(k, slot):
                l = self.lab("dg")
                A(f"  s_cmp_eq_u32 s{70+2*k}, 0\n  s_cbranch_scc1 {l}\n  s_sub_u32 s60, s{70+2*k}, s44\n  s_add_u32 s60, s60, 1000\n  s_atomic_umax s60, {sp(sDBG)}, {4*slot:#x}\n{l}:")
            for k, slot in ((0, 4), (11, 5), (1, 6), (3, 7), (5, 8), (7, 9)): rec(k, slot)
            A("  s_endpgm\nL_diagh:")
            A(f"  s_cmp_lg_u32 s{sWAVE}, 8\n  s_cbranch_scc1 L_end")
            for k, slot in ((6, 10), (7, 11), (2, 12), (3, 13), (4, 14), (5, 15)): rec(k, slot)
        elif c["stamps"]:
            A("  s_mov_b64 exec, 1\n  s_waitcnt lgkmcnt(0)")
            A(f"  s_mul_i32 s60, s2, 12\n  s_add_u32 s60, s60, s{sWAVE}\n  s_lshl_b32 s60, s60, 7\n  s_add_u32 s60, s60, {WS_STAMP}\n  v_mov_b32 v4, s60")
            for k in range(16):
                A(f"  v_mov_b32 v6, s{70+2*k}\n  v_mov_b32 v7, s{71+2*k}\n  global_store_dwordx2 v4, v[6:7], {sp(sWS)} offset:{8*k}")
        A("L_end:\n  s_endpgm")
        body = fix_hazards(self.L)
        if c["hop"]:
            lines = body.split("\n"); out_ = []; pos = 0; last = -10**9; stubs = []
            for ln in lines:
                out_.append(ln)
                t = ln.strip()
                if t and not t.endswith(":") and not t.startswith("."):
                    pos += 4 if t.startswith(("s_", "v_mov_b32 ", "v_add_f32 ", "v_and_b32 ", "v_lshlrev_b32 ", "v_exp", "v_mul_f32 ")) and "0x" not in t else 8
                if t.startswith("s_branch") and pos - last >= c.get("hopgap", 1700):
                    stubs.append(f"L_stub_{len(stubs)}"); out_.append(f"{stubs[-1]}:\n  s_setpc_b64 s[68:69]"); last = pos
            stubs = stubs[1:]
            h = []
            for w in range(8):
                h.append(f"  s_cmp_lg_u32 s{sWAVE}, {w}\n  s_cbranch_scc1 L_hop_{w}")
                h += [f"  s_call_b64 s[68:69], {st}" for st in stubs[w::8]]
                h.append(f"  s_branch L_hop_end\nL_hop_{w}:")
            h.append("L_hop_end:")
            body = "\n".join(out_).replace("  HOPS", "\n".join(h))
        nk = c["prefkib"]
        out = HEADER + f"; @launch grid=(256,1,1) block=(768,1,1) lds={L_V + 8192*c['NV']}\n"
        out += '.amdgcn_target "amdgcn-amd-amdhsa--gfx950"\n.text\n'
        out += f".globl {KNAME}\n.p2align 8\n.type {KNAME},@function\n" + body
        out += "  .fill 64, 4, 0xbf800000\n"
        if c["spref"]: nk += 1
        if c["pref"] or c["pref2"] or c["spref"]:
            out += f"L_codeend:\n.if (L_codeend - {KNAME}) < {nk*1024}\n.fill ({nk*1024} - (L_codeend - {KNAME}))/4, 4, 0xbf800000\n.endif\n"
        out += f""".section .rodata,"a"
.p2align 6
.amdhsa_kernel {KNAME}
  .amdhsa_next_free_vgpr 168
  .amdhsa_next_free_sgpr 102
  .amdhsa_accum_offset 168
  .amdhsa_group_segment_fixed_size 0
  .amdhsa_kernarg_size 112
  .amdhsa_user_sgpr_count 2
  .amdhsa_user_sgpr_kernarg_segment_ptr 1
  .amdhsa_system_sgpr_workgroup_id_x 1
  .amdhsa_float_denorm_mode_32 3
.end_amdhsa_kernel
"""
        return out

def gen(**cfg): return Gen(**cfg).build()

if __name__ == "__main__":
    import json
    cfg = json.loads(sys.argv[2]) if len(sys.argv) > 2 else {}
    open(sys.argv[1], "w").write(gen(**cfg))
```

```python
import sys, struct
from asmlib import fix_hazards

KNAME = "adaLN_cond__sliding_block_cached__glu_gated_glu__decode_kernel"

HEADER = """; Kernarg layout for this problem (112 bytes, ptrs only, base s[0:1]):
;   offset  32: d_in[4] A_wo  shape=(4096, 512) dtype=bfloat16
;   offset  80: d_in[10] w_mod  shape=(512, 3072) dtype=bfloat16
;   offset 104: d_ws      workspace
; One persistent launch, one workgroup per (batch b, head h), 12 waves:
;  * waves 8-11 (helpers) hold the wq / wo slice of the head in registers: LayerNorm + adaLN modulation, q projection,
;  Every bf16 rounding of the reference is reproduced. Hand-offs between workgroups go through d_ws and are validated
;  with a per-launch nonce published in d_debug (checksums / tagged granules), so stale workspace contents are never used.
;  The s_sleep instructions are back-offs of the spin-waits (polling too early slows the writers down).
"""

WS_MOD, WS_STAT, WS_MARK, WS_ACC, WS_QTAG, WS_HINT, WS_INBOX, WS_QIN, WS_DUMP, WS_STAMP = 0x0, 0xC000, 0xD000, 0x10000, 0x18000, 0x20000, 0x40000, 0x1C0000, 0x200000, 0x20000000
F_H, F_Q, F_Q2, F_ST, F_O, F_MOD, F_MOD2, F_C, F_P, F_W, F_K, F_A, F_R, F_N, F_HS, F_RK = 0, 4, 8, 12, 16, 20, 24, 28, 32, 36, 40, 44, 48, 52, 56, 0x80
L_STATS, L_QB, L_OP, L_OB, L_HBUF, L_QP = 0x40, 0x100, 0x200, 0x1200, 0x1600, 0x2600
L_MODR, L_H2, L_X1, L_GUP, L_HH, L_MODP = 0x2200, 0x4A00, 0x5200, 0x5A00, 0x6A00, 0x7000
L_V = 0x7000
L_ROWS = 0x1600

def f2u(x): return struct.unpack("<I", struct.pack("<f", x))[0]
INB = 11264
TAGX = 0x5bd1e995
LOG2E = f2u(1.4426950408889634)
SCALE = f2u(128 ** -0.5)
LOG2E_LO = f2u(1.4426950408889634074 - struct.unpack('<f', struct.pack('<I', LOG2E))[0])
LN2 = f2u(0.6931471805599453)

sX, sK, sV, sWQ, sWO, sG, sU, sDN, sC, sWM, sOUT, sDBG, sWS = 4, 6, 8, 10, 12, 16, 18, 20, 22, 24, 26, 28, 30
sWAVE, sXCD, sIDX, sB, sJ, sH, sSL, sFFN = 32, 33, 34, 35, 36, 37, 38, 39
sOFF = 40
SRDA, SRDB = 48, 52
sPLO, sPHI, sGUARD, sLOG2E = 62, 63, 64, 66
sHW = 67
vLANE, vL16, vG, vJ, vZ, vONE = 0, 1, 2, 3, 38, 39

def sp(r): return f"s[{r}:{r+1}]"
def sq(r): return f"s[{r}:{r+3}]"
def vp(r): return f"v[{r}:{r+1}]"
def vq(r): return f"v[{r}:{r+3}]"

class Gen:
    def __init__(self, **cfg):
        self.c = dict(D=4, HD=4, HD0=6, HDO=4, P0=27, stamps=False, dump=False, guard=200000, pref=False,
                      inbox_sleep=6, hint_sleep=2, Dodd=None, pref2=False, prefwg=16, prefkib=26, hint_at=28, poll_sleep=8, NV=16, depth=[3.15, 3.15, 4, 3.15], FD=4, NF0=0, HDOf=4, H0D=4, H0D1=2, prio=2, nowo=False, wo_at=None, abl=None, init_mode='full', ablD=7, H0DQ=18, H0pre=True, fillD=4, nofill=False, q_sleep0=8, q_sleep=8, a_sleep=28, xskip=[], plainA=True, down_late=False, wofl='', tlb=0, modlag=2, HDf=4, ffnfl='', HDP=2, HDPf=2, PQ=23, kfl=' nt', vfl=' nt', hmap=0, wqpat=32, full_sleep=0, hint_lag=3, PB=2, fmode='flood', PR=8, wqpf=3, wqpfD=16, wqfl='', wqx=0, sprint=58, prodb=2, o_sleep=1, depth2=[3.15, 3.15, 4, 3.6], dsw=34, gran=4, outfl=' sc1', hprio=2, sprio=1, sprio_off=31, dry=True, prefidx=13, diag=False, early=True, xdelay=0, Ep=2, ool=False, lazy=True, hfirst=True, BN=4, E=4, pfbar=False, modsl=True, rank=[], rankd=[2.7, 2.95, 3.2, 3.6], PBQ=12, wopf=None, wopfw=2, pffl='', wmfl=' nt', hop=False, modil=False, spref=0, wopat=8, rxfl=' sc1', accfl=' sc1', txfl=' sc1', late_delay=10, sub=False, dryo=False, gate=False, oadd=False, fast0=True, read_delay=18, barD=False, rx_sleep=8, rx_delay=14)
        self.c.update(cfg)
        self.L = []
        self.nlab = 0

    def A(self, s): self.L.append(s)
    def lab(self, base):
        self.nlab += 1
        return f"L_{base}_{self.nlab}"
    def stamp(self, k):
        if self.c["stamps"]: self.A(f"  s_memrealtime s[{70+2*k}:{71+2*k}]")
    def cstamp(self, k):
        if self.c["stamps"]:
            self.A(f"  s_waitcnt lgkmcnt(0)\n  s_mul_i32 s{70+2*k}, s{sGUARD}, 100\n  s_add_u32 s{70+2*k}, s{70+2*k}, s70\n  s_addc_u32 s{71+2*k}, s71, 0")
    def guard(self):
        if self.c["guard"]:
            self.A(f"  s_add_u32 s{sGUARD}, s{sGUARD}, 1\n  s_cmp_gt_u32 s{sGUARD}, {self.c['guard']}\n  s_cbranch_scc1 L_exit")
    def exec1(self): self.A("  s_mov_b64 exec, 1")
    def execall(self): self.A("  s_mov_b64 exec, -1")

    def lds_spin(self, off, target, tmp, sleep=1):
        l = self.lab("spin"); d = self.lab("spun")
        self.A(f"{l}:")
        self.A(f"  ds_read_b32 v{tmp}, v{vZ} offset:{off}\n  s_waitcnt lgkmcnt(0)\n  v_readfirstlane_b32 s60, v{tmp}")
        self.A(f"  s_cmp_ge_u32 s60, {target}\n  s_cbranch_scc1 {d}")
        self.guard()
        if sleep: self.A(f"  s_sleep {sleep}")
        self.A(f"  s_branch {l}\n{d}:")

    def lds_inc(self, off):
        self.exec1(); self.A(f"  ds_add_u32 v{vZ}, v{vONE} offset:{off}"); self.execall()

    def dumpv(self, reg, n, base, sidx=None, stride=0, tmp=36):
        if not self.c["dump"]: return
        A = self.A
        if sidx is not None:
            A(f"  s_mul_i32 s68, s{sidx}, {stride}\n  s_add_u32 s68, s68, {WS_DUMP + base}")
        else:
            A(f"  s_mov_b32 s68, {WS_DUMP + base}")
        A(f"  v_lshlrev_b32 v{tmp}, {dict([(1,2),(2,3),(4,4)])[n]}, v{vLANE}\n  v_add_u32 v{tmp}, s68, v{tmp}")
        op = {1: "dword", 2: "dwordx2", 4: "dwordx4"}[n]
        r = f"v{reg}" if n == 1 else f"v[{reg}:{reg+n-1}]"
        A(f"  global_store_{op} v{tmp}, {r}, {sp(sWS)}\n  s_waitcnt vmcnt(0)")

    def prefetch(self, wait=False):
        A = self.A
        l = self.lab("nopref"); lp = self.lab("pref"); pc = self.lab("pc")
        A(f"  s_cmp_lg_u32 s{sWAVE}, 11\n  s_cbranch_scc1 {l}\n  s_cmp_lg_u32 s{sIDX}, {self.c['prefidx']}\n  s_cbranch_scc1 {l}")
        A(f"  s_getpc_b64 s[60:61]\n{pc}:\n  s_sub_u32 s60, s60, {pc}-{KNAME}\n  s_subb_u32 s61, s61, 0\n  v_mov_b32 v36, v{vL16}\n  s_mov_b32 s65, {self.c['prefkib']}")
        A(f"{lp}:\n  global_load_dword v35, v36, s[60:61]\n  v_add_u32 v36, 1024, v36\n  s_sub_u32 s65, s65, 1\n  s_cmp_lg_u32 s65, 0\n  s_cbranch_scc1 {lp}")
        if wait: A("  s_waitcnt vmcnt(0)")
        A(f"{l}:")

    def rnd1(self, x, t):
        self.A(f"  v_cvt_pk_bf16_f32 v{t}, v{x}, v{x}\n  v_and_b32 v{x}, 0xffff0000, v{t}")
    def rnd2(self, x, y, t):
        self.A(f"  v_cvt_pk_bf16_f32 v{t}, v{x}, v{y}\n  v_lshlrev_b32 v{x}, 16, v{t}\n  v_and_b32 v{y}, 0xffff0000, v{t}")
    def rnd8(self, X, T):
        for i in range(4): self.A(f"  v_cvt_pk_bf16_f32 v{T+i}, v{X+2*i}, v{X+2*i+1}")
        self.unpack8(T, X)
    def unpack8(self, src, dst):
        for i in range(4):
            self.A(f"  v_lshlrev_b32 v{dst+2*i}, 16, v{src+i}\n  v_and_b32 v{dst+2*i+1}, 0xffff0000, v{src+i}")
    def expv(self, pairs, neg=False):
        A = self.A; n = "-" if neg else ""
        for d, x, t in pairs: A(f"  v_mul_f32 v{d}, s{sLOG2E}, v{x}")
        for d, x, t in pairs: A(f"  v_fma_f32 v{t}, v{x}, s{sLOG2E}, -v{d}")
        for d, x, t in pairs: A(f"  v_exp_f32 v{d}, {n}v{d}")
        for d, x, t in pairs: A(f"  v_fmac_f32 v{t}, {LOG2E_LO:#x}, v{x}")
        for d, x, t in pairs: A(f"  v_mul_f32 v{t}, {(LN2 | 0x80000000) if neg else LN2:#x}, v{t}")
        for d, x, t in pairs: A(f"  v_fmac_f32 v{d}, v{d}, v{t}")
    def divv(self, items):
        A = self.A
        for q, a, b, r, t in items: A(f"  v_rcp_f32 v{r}, v{b}")
        for q, a, b, r, t in items: A(f"  v_fma_f32 v{t}, -v{b}, v{r}, 1.0")
        for q, a, b, r, t in items: A(f"  v_fmac_f32 v{r}, v{t}, v{r}")
        for q, a, b, r, t in items:
            if a == "1.0": A(f"  v_fma_f32 v{t}, -v{b}, v{r}, 1.0")
            else: A(f"  v_mul_f32 v{q}, v{a}, v{r}")
        for q, a, b, r, t in items:
            if a == "1.0": A(f"  v_fma_f32 v{q}, v{t}, v{r}, v{r}")
            else: A(f"  v_fma_f32 v{t}, -v{q}, v{b}, v{a}")
        for q, a, b, r, t in items:
            if a != "1.0": A(f"  v_fmac_f32 v{q}, v{t}, v{r}")

    def wave_reduce(self, op, regs, full=True):
        steps = []
        if full: steps += ["quad_perm:[1,0,3,2] row_mask:0xf bank_mask:0xf", "quad_perm:[2,3,0,1] row_mask:0xf bank_mask:0xf"]
        steps += ["row_ror:4 row_mask:0xf bank_mask:0xf", "row_ror:8 row_mask:0xf bank_mask:0xf",
                  "row_bcast:15 row_mask:0xa bank_mask:0xf", "row_bcast:31 row_mask:0xc bank_mask:0xf"]
        for s in steps:
            for r in regs: self.A(f"  {op}_dpp v{r}, v{r}, v{r} {s}")

    def pk8(self, op, D, Aq, Bq):
        for i in range(0, 8, 2): self.A(f"  v_pk_{op}_f32 {vp(D+i)}, {vp(Aq+i)}, {vp(Bq+i)}")

    def layernorm(self, X, T, S):
        A = self.A
        A(f"  v_readfirstlane_b32 s60, v{X}")
        for i in range(0, 8, 2): A(f"  v_pk_add_f32 {vp(T+i)}, {vp(X+i)}, s[60:61] op_sel_hi:[1,0] neg_lo:[0,1] neg_hi:[0,1]")
        A(f"  v_pk_add_f32 {vp(S)}, {vp(T)}, {vp(T+2)}\n  v_pk_mul_f32 {vp(S+2)}, {vp(T)}, {vp(T)}")
        A(f"  v_pk_add_f32 {vp(S)}, {vp(S)}, {vp(T+4)}\n  v_pk_fma_f32 {vp(S+2)}, {vp(T+2)}, {vp(T+2)}, {vp(S+2)}")
        A(f"  v_pk_add_f32 {vp(S)}, {vp(S)}, {vp(T+6)}\n  v_pk_fma_f32 {vp(S+2)}, {vp(T+4)}, {vp(T+4)}, {vp(S+2)}")
        A(f"  v_add_f32 v{S}, v{S}, v{S+1}\n  v_pk_fma_f32 {vp(S+2)}, {vp(T+6)}, {vp(T+6)}, {vp(S+2)}\n  v_add_f32 v{S+1}, v{S+2}, v{S+3}")
        self.wave_reduce("v_add_f32", [S, S + 1])
        A(f"  v_readlane_b32 s61, v{S}, 63\n  v_readlane_b32 s65, v{S+1}, 63")
        inv = f2u(1.0 / 512)
        A(f"  v_mov_b32 v{S+2}, {inv:#x}")
        A(f"  v_mul_f32 v{S}, s61, v{S+2}\n  v_mul_f32 v{S+1}, s65, v{S+2}")
        A(f"  v_fma_f32 v{S+1}, -v{S}, v{S}, v{S+1}\n  v_add_f32 v{S}, s60, v{S}\n  v_max_f32 v{S+1}, 0, v{S+1}")
        self.rnd2(S, S + 1, S + 2)
        A(f"  v_add_f32 v{S+1}, {f2u(1e-5):#x}, v{S+1}")
        for i in range(0, 4, 2): A(f"  v_pk_add_f32 {vp(X+i)}, {vp(X+i)}, {vp(S)} op_sel_hi:[1,0] neg_lo:[0,1] neg_hi:[0,1]")
        A(f"  v_cvt_pk_bf16_f32 v{S+2}, v{S+1}, v{S+1}")
        for i in range(4, 8, 2): A(f"  v_pk_add_f32 {vp(X+i)}, {vp(X+i)}, {vp(S)} op_sel_hi:[1,0] neg_lo:[0,1] neg_hi:[0,1]")
        A(f"  v_and_b32 v{S+1}, 0xffff0000, v{S+2}\n  v_sqrt_f32 v{S+1}, v{S+1}")
        for i in range(4): A(f"  v_cvt_pk_bf16_f32 v{T+i}, v{X+2*i}, v{X+2*i+1}")
        self.rnd1(S + 1, S + 2)
        A(f"  v_rcp_f32 v{S+2}, v{S+1}")
        self.unpack8(T, X)
        for i in range(0, 8, 2): A(f"  v_pk_mul_f32 {vp(X+i)}, {vp(X+i)}, {vp(S+2)} op_sel_hi:[1,0]")
        self.rnd8(X, T)

    def transpose_block(self, B, t0, t1):
        A = self.A
        R = lambda e, t: B + 4 * e + t
        lo = lambda d, a, b: A(f"  v_perm_b32 v{d}, v{b}, v{a}, s{sPLO}")
        hi = lambda d, a, b: A(f"  v_perm_b32 v{d}, v{b}, v{a}, s{sPHI}")
        for p in range(4):
            a, b = R(2 * p, p), R(2 * p + 1, p)
            lo(t0, a, b); hi(b, a, b); A(f"  v_mov_b32 v{a}, v{t0}")
            for t in range(p + 1, 4):
                a, b, c, d = R(2 * p, t), R(2 * p + 1, t), R(2 * t, p), R(2 * t + 1, p)
                lo(t0, a, b); hi(t1, a, b); lo(a, c, d); hi(b, c, d)
                A(f"  v_mov_b32 v{c}, v{t0}\n  v_mov_b32 v{d}, v{t1}")

    def transpose_x2(self, Rb, Bb):
        for c in range(4):
            for p in range(4):
                a, b = Rb + 2 * (2 * p) + (c >> 1), Rb + 2 * (2 * p + 1) + (c >> 1)
                self.A(f"  v_perm_b32 v{Bb+4*c+p}, v{b}, v{a}, s{sPHI if c & 1 else sPLO}")

    def gemv32(self, body=False):
        res = [24] + [40 + 4 * k for k in range(7)]
        if self.c["sub"] and not body:
            pc = self.lab("call")
            self.A(f"  s_getpc_b64 s[60:61]\n{pc}:\n  s_add_u32 s60, s60, L_gemv-{pc}\n  s_addc_u32 s61, s61, 0\n  s_swappc_b64 s[42:43], s[60:61]\n  s_nop 7")
            return res
        for c in range(8):
            for m in range(4):
                self.A(f"  v_mfma_f32_16x16x32_bf16 {vq(res[c])}, {vq(8+4*m)}, {vq(40+32*m+4*c)}, {'0' if m == 0 else vq(res[c])}")
        return res

    def wload32(self, srd, steps, D, frac=None, hooks=None, fl=None):
        A = self.A
        done = 0
        for i in range(32):
            dd = D
            if frac is not None and int((i + 1) * (D - frac)) != int(i * (D - frac)): dd = D - 1
            if i >= dd: A(f"  s_waitcnt vmcnt({dd-1})")
            if hooks and i in hooks: hooks[i]()
            A(f"  buffer_load_dwordx4 {vq(40+4*i)}, v4, {sq(srd)}, s40 offen{self.c['wofl'] if fl is None else fl}")
            if i < 31: A(f"  s_add_u32 s40, s40, {steps[i]}")
            landed = i - D + 1 if i >= D else 0
            if landed >= 8 * (done + 1):
                self.transpose_block(40 + 32 * done, 5, 6); done += 1
        while done < 4:
            A(f"  s_waitcnt vmcnt({8*(3-done)})")
            self.transpose_block(40 + 32 * done, 5, 6); done += 1

    def init_duty(self, wave):
        A = self.A
        l2 = self.lab("inited"); l3 = self.lab("noinit")
        A(f"  s_cmp_lg_u32 s{sWAVE}, {wave}\n  s_cbranch_scc1 {l3}")
        mark = len(self.L)
        A("  v_mov_b32 v8, -1\n  v_mov_b32 v9, -1\n  v_mov_b32 v10, -1\n  v_mov_b32 v11, -1")
        A(f"  s_lshl_b32 s60, s2, 12\n  s_add_u32 s60, s60, {WS_QIN}\n  v_add_u32 v5, s60, v{vL16}")
        for i in range(4): A(f"  global_store_dwordx4 v5, {vq(8)}, {sp(sWS)} offset:{1024*i} sc1")
        A(f"  s_cmp_eq_u32 s{sFFN}, 0\n  s_cbranch_scc1 {l2}\n  s_cmp_ge_u32 s{sSL}, 32\n  s_cbranch_scc1 {l2}")
        A(f"  s_lshl_b32 s60, s{sJ}, 5\n  s_add_u32 s60, s60, s{sSL}\n  s_mul_i32 s60, s60, 6144\n  s_add_u32 s60, s60, {WS_INBOX + 2048}\n  v_add_u32 v5, s60, v{vL16}")
        for i in range(6): A(f"  global_store_dwordx4 v5, {vq(8)}, {sp(sWS)} offset:{1024*i - 2048} sc1")
        A(f"  s_cmp_ge_u32 s{sSL}, 8\n  s_cbranch_scc1 {l2}")
        A("  v_mov_b32 v12, 0\n  v_mov_b32 v13, 0\n  v_mov_b32 v14, 0\n  v_mov_b32 v15, 0")
        A(f"  s_lshl_b32 s60, s{sJ}, 3\n  s_add_u32 s60, s60, s{sSL}\n  s_lshl_b32 s60, s60, 10\n  s_add_u32 s60, s60, {WS_ACC}\n  v_add_u32 v5, s60, v{vL16}")
        A(f"  global_store_dwordx4 v5, {vq(12)}, {sp(sWS)} sc1")
        if self.c["init_mode"] == "nostore": self.L[mark:] = []
        A(f"{l2}:\n  s_waitcnt vmcnt(0)")
        if self.c["init_mode"] != "noticket":
            A(f"  s_mov_b32 s65, 1\n  s_atomic_add s65, {sp(sDBG)}, 0x4 glc\n  s_waitcnt lgkmcnt(0)")
            A(f"  s_cmp_lg_u32 s65, 255\n  s_cbranch_scc1 {l3}\n  s_mov_b32 s65, 1\n  s_atomic_add s65, {sp(sDBG)}, 0x84")
        A(f"{l3}:")

    def streamer(self, D, tag):
        A = self.A; c = self.c
        T = lambda n: 40 + 4 * n
        issued = []
        def issue(name, srd, n):
            A(f"  buffer_load_dwordx4 {vq(T(n))}, v{vL16}, {sq(srd)}, s{sOFF + (n >> 2)} offen offset:{1024*(n&3)}{c['kfl']}")
            issued.append(name)
        def rmask(d):
            def mk(fr):
                m = 0; acc = 0.5
                for n in range(64):
                    acc += fr
                    if acc >= 1.0 - 1e-9:
                        acc -= 1.0
                        if n < c["sprint"]: m |= 1 << n
                return m
            m1 = mk(min(1.0, D - d)); return m1, mk(max(0.0, D - 1 - d)) & m1
        def rank_hook(n):
            for st, n0 in enumerate(c["rank"]):
                if n == n0:
                    l = self.lab("rk")
                    A(f"  s_cmp_lg_u32 s{sWAVE}, 0\n  s_cbranch_scc1 {l}\n  ds_read_b32 v12, v{vZ} offset:{F_C}\n  s_mov_b32 s4, -1\n  s_waitcnt lgkmcnt(0)\n  v_readfirstlane_b32 s60, v12\n  s_cmp_eq_u32 s60, 0\n  s_cbranch_scc1 {l}\n  s_cmp_lt_u32 s57, 100\n  s_cbranch_scc1 {l}")
                    A(f"  s_lshl_b32 s60, s{sB}, 12\n  s_add_u32 s60, s60, {WS_ACC + 3328 + 128 * st}\n  s_mov_b32 s4, 1\n  s_atomic_add s4, {sp(sWS)}, s60 glc\n{l}:")
                if n == n0 + 3:
                    l = self.lab("rk")
                    A(f"  s_cmp_lg_u32 s{sWAVE}, 0\n  s_cbranch_scc1 {l}\n  s_waitcnt lgkmcnt(0)\n  s_add_u32 s4, s4, 1\n  v_mov_b32 v12, s4\n  ds_write_b32 v{vZ}, v12 offset:{F_RK + 4 * st}\n{l}:")
                if n == n0 + 4: A(f"  ds_read_b32 v13, v{vZ} offset:{F_RK + 4 * st}")
                if n == n0 + 5:
                    l = self.lab("rk")
                    A(f"  s_waitcnt lgkmcnt(0)\n  v_readfirstlane_b32 s60, v13\n  s_cmp_eq_u32 s60, 0\n  s_cbranch_scc1 {l}")
                    nq = len(c["rankd"])
                    for qi, d in enumerate(c["rankd"]):
                        m1, m2 = rmask(d)
                        if qi == 0:
                            A(f"  s_mov_b32 s58, {m1 & 0xffffffff:#x}\n  s_mov_b32 s59, {m1 >> 32:#x}\n  s_mov_b32 s14, {m2 & 0xffffffff:#x}\n  s_mov_b32 s15, {m2 >> 32:#x}")
                        else:
                            A(f"  s_cmp_gt_u32 s60, {24 * qi // nq}\n  s_cselect_b32 s58, {m1 & 0xffffffff:#x}, s58\n  s_cselect_b32 s59, {m1 >> 32:#x}, s59\n  s_cselect_b32 s14, {m2 & 0xffffffff:#x}, s14\n  s_cselect_b32 s15, {m2 >> 32:#x}, s15")
                    A(f"{l}:")
        def pace():
            n = len(issued)
            rank_hook(n)
            if n >= D: A(f"  s_waitcnt vmcnt({D-1})")
            if n >= D - 2 and n < 64:
                l = self.lab("pc")
                A(f"  s_bitcmp1_b64 s[58:59], {n}\n  s_cbranch_scc0 {l}\n  s_waitcnt vmcnt({D-2})")
                A(f"  s_bitcmp1_b64 s[14:15], {n}\n  s_cbranch_scc0 {l}\n  s_waitcnt vmcnt({D-3})\n{l}:")
        def waitfor(name):
            A(f"  s_waitcnt vmcnt({len(issued) - 1 - issued.index(name)})")
        lnp = self.lab("noprod"); lj = self.lab("joined")
        E = c["E"] if c["fast0"] else 0
        NJ = (E + 8 + D - 1 if c["modil"] else (min(E, c["Ep"]) + D if c["modsl"] else D)) + c["modlag"]
        assert NJ <= 16
        if c["ool"]:
            A(f"  s_cmp_lt_u32 s57, {48 if (c['abl'] is None or 'mod' in c['abl']) else 0}\n  s_cbranch_scc1 {lnp}")
            mark = len(self.L); A(f"{lnp}:")
        else:
            A(f"  s_cmp_ge_u32 s57, {48 if (c['abl'] is None or 'mod' in c['abl']) else 0}\n  s_cbranch_scc1 {lnp}")
        if c["lazy"]: self.consts()
        self.mod_loads()
        if c["modil"]:
            self.mod_w(0)
            A("  s_barrier")
            for i in range(8):
                if i:
                    A(f"  s_waitcnt vmcnt({D-1})"); self.mod_w(i)
                A(f"  s_waitcnt vmcnt({D-1})"); issue(f"K{E+i}", SRDA, E + i)
                if i == 2:
                    self.mod_compute_a(); A(f"  s_load_dword s3, {sp(sDBG)}, 0x80")
            for n in range(E + 8, E + 8 + D - 1):
                A(f"  s_waitcnt vmcnt({D-1})"); issue(f"K{n}", SRDA, n)
            self.stamp(9)
            self.mod_compute_b()
            for n in range(E + 8 + D - 1, NJ):
                A(f"  s_waitcnt vmcnt({D-1})"); issue(f"K{n}", SRDA, n)
        elif c["modsl"]:
            A("  s_barrier")
            self.mod_compute_a()
            A(f"  s_load_dword s3, {sp(sDBG)}, 0x80")
            Ep = min(E, c["Ep"])
            for n in range(Ep, Ep + D):
                A(f"  s_waitcnt vmcnt({D-1})"); issue(f"K{n}", SRDA, n)
            self.stamp(9)
            self.mod_compute_b()
            for n in range(Ep + D, NJ):
                A(f"  s_waitcnt vmcnt({D-1})"); issue(f"K{n}", SRDA, n)
        else:
            A("  s_barrier")
            self.mod_compute_a()
            A(f"  s_waitcnt vmcnt({c['prio']})")
            for n in range(E, D - 1): issue(f"K{n}", SRDA, n)
            A(f"  s_load_dword s3, {sp(sDBG)}, 0x80")
            A(f"  s_waitcnt vmcnt({D-1-E})")
            self.stamp(9)
            self.mod_compute_b()
            for n in range(D - 1, NJ):
                A(f"  s_waitcnt vmcnt({D-1})"); issue(f"K{n}", SRDA, n)
        self.mod_compute_c()
        self.stamp(14)
        if c["wo_at"] is not None and c["wo_at"] < NJ: self.lds_inc(F_K)
        if c["ool"]:
            A(f"  s_branch {lj}")
            self.ool_block = self.L[mark:]; del self.L[mark:]
        else:
            A(f"  s_branch {lj}\n{lnp}:")
        issued.clear()
        for n in range(32):
            if n == NJ:
                A(f"{lj}:")
                if self.late_setup: self.late_setup()
            if n < E: issued.append(f"K{n}")
            elif n < NJ and self.late_setup: A(f"  s_waitcnt vmcnt({D-2})"); issue(f"K{n}", SRDA, n)
            else: pace(); issue(f"K{n}", SRDA, n)
            if n == 0 and not E: self.stamp(8)
            if n in (4, 8, 16, 24): self.stamp({4: 10, 8: 11, 16: 12, 24: 13}[n])
            if n == c["wo_at"]: self.lds_inc(F_K)
            if c["sprio"] and n == c["sprio_off"]: A("  s_setprio 0")
            if n == max(D - 3, E - 1, c["BN"]):
                assert n < NJ
                A("  s_barrier")
                self.stamp(9)
            if n == NJ:
                A(f"  v_lshrrev_b32 v12, 1, v{vJ}\n  v_and_b32 v13, 1, v{vJ}\n  v_mov_b32 v14, 0xffff\n  v_lshlrev_b32 v13, 4, v13\n  v_lshlrev_b32 v14, v13, v14")
                for j in range(4):
                    A(f"  v_cmp_eq_u32 vcc, {j}, v12\n  v_cndmask_b32 v{4+j}, 0, v14, vcc")
        NV = c["NV"]
        slot = lambda n: T(32 - NV + n) if n < NV else T(n - NV)
        l = self.lab("nomodchk")
        A(f"  s_cmp_ge_u32 s57, {48 if (c['abl'] is None or 'mod' in c['abl']) else 0}\n  s_cbranch_scc1 {l}")
        self.lds_spin(F_MOD2, 8, 12)
        A(f"{l}:")
        for n in range(NV):
            if n % 4 == 0: A(f"  s_add_u32 m0, s56, {4096 * (n // 4)}")
            pace()
            A(f"  buffer_load_dwordx4 v{vL16}, {sq(SRDB)}, s{sOFF + (n >> 2)} offen offset:{1024*(n&3)}{c['vfl']} lds")
            issued.append(f"V{n}")
        self.stamp(1)
        self.lds_spin(F_Q2, 1, 12)
        self.stamp(2)
        A(f"  v_lshlrev_b32 v12, 4, v{vJ}\n  ds_read_b128 {vq(8)}, v12 offset:{L_QB}\n  s_waitcnt lgkmcnt(0)")
        def qk(G):
            z = 18 + G
            for r in range(4):
                for t in range(4):
                    A(f"  v_dot2_f32_bf16 v{12+t}, v{T(4*G+t)+r}, v{8+r}, {'0' if r == 0 else f'v{12+t}'}")
            A(f"  v_add_f32_dpp v16, v12, v12 row_ror:8 row_mask:0xf bank_mask:0x3")
            A(f"  v_add_f32_dpp v17, v14, v14 row_ror:8 row_mask:0xf bank_mask:0x3")
            A(f"  v_add_f32_dpp v16, v13, v13 row_ror:8 row_mask:0xf bank_mask:0xc")
            A(f"  v_add_f32_dpp v17, v15, v15 row_ror:8 row_mask:0xf bank_mask:0xc")
            A(f"  v_add_f32_dpp v{z}, v16, v16 row_shl:4 row_mask:0xf bank_mask:0x5")
            A(f"  v_add_f32_dpp v{z}, v17, v17 row_shr:4 row_mask:0xf bank_mask:0xa")
            A(f"  v_add_f32_dpp v{z}, v{z}, v{z} quad_perm:[1,0,3,2] row_mask:0xf bank_mask:0xf")
            A(f"  v_add_f32_dpp v{z}, v{z}, v{z} quad_perm:[2,3,0,1] row_mask:0xf bank_mask:0xf")
        nv = NV
        def nextv():
            nonlocal nv
            pace()
            A(f"  buffer_load_dwordx4 {vq(slot(nv))}, v{vL16}, {sq(SRDB)}, s{sOFF + (nv >> 2)} offen offset:{1024*(nv&3)}{c['vfl']}")
            issued.append(f"V{nv}"); nv += 1
        qk(0)
        groups = list(range(1, 7))
        per = -(-len(groups) // D)
        for i in range(D):
            nextv()
            for G in groups[i * per:(i + 1) * per]: qk(G)
        qk(7)
        if NV:
            A(f"  v_add_u32 v34, s56, v{vL16}")
            for n in range(NV): A(f"  ds_read_b128 {vq(slot(n))}, v34 offset:{1024*n}")
        A(f"  s_mov_b32 s60, {SCALE:#x}")
        for i in range(4): self.rnd2(18 + 2 * i, 19 + 2 * i, 12 + i)
        for i in range(8): A(f"  v_mul_f32 v{18+i}, s60, v{18+i}")
        for i in range(4): self.rnd2(18 + 2 * i, 19 + 2 * i, 12 + i)
        A("  v_max3_f32 v12, v18, v19, v20\n  v_max3_f32 v13, v21, v22, v23\n  v_max3_f32 v12, v12, v24, v25\n  v_max_f32 v12, v12, v13")
        self.wave_reduce("v_max_f32", [12], full=False)
        A("  v_readlane_b32 s61, v12, 63")
        for half in range(2):
            for i in range(4): A(f"  v_subrev_f32 v{26+i}, s61, v{18+4*half+i}")
            for i in range(4): A(f"  v_max_f32 v{26+i}, 0xc3480000, v{26+i}")
            self.expv([(30 + i, 26 + i, 8 + i) for i in range(4)])
            A("  v_add_f32 v14, v30, v31\n  v_add_f32 v15, v32, v33")
            A("  v_add_f32 v13, v14, v15" if half == 0 else "  v_add_f32 v14, v14, v15\n  v_add_f32 v13, v13, v14")
        self.wave_reduce("v_add_f32", [13], full=False)
        A(f"  s_lshl_b32 s60, s{sWAVE}, 3\n  v_mov_b32 v14, s60")
        A("  s_mov_b32 exec_lo, 0\n  s_mov_b32 exec_hi, 0x80000000")
        A(f"  ds_write_b64 v14, v[12:13] offset:{L_STATS}\n  ds_add_u32 v{vZ}, v{vONE} offset:{F_ST}")
        self.execall()
        nextv(); nextv()
        self.lds_spin(F_ST, 8, 12)
        A(f"  v_and_b32 v14, 7, v{vLANE}\n  v_lshlrev_b32 v14, 3, v14\n  ds_read_b64 v[12:13], v14 offset:{L_STATS}\n  s_waitcnt lgkmcnt(0)")
        red8 = ["quad_perm:[1,0,3,2]", "quad_perm:[2,3,0,1]", "row_ror:4"]
        A("  v_mov_b32 v14, v12")
        for s in red8: A(f"  v_max_f32_dpp v14, v14, v14 {s} row_mask:0xf bank_mask:0xf")
        A(f"  v_sub_f32 v12, v12, v14\n  v_max_f32 v12, 0xc3480000, v12")
        self.expv([(15, 12, 16)])
        A("  v_mul_f32 v13, v13, v15")
        for s in red8: A(f"  v_add_f32_dpp v13, v13, v13 {s} row_mask:0xf bank_mask:0xf")
        for half in range(2):
            for i in range(4): A(f"  v_sub_f32 v{8+i}, v{18+4*half+i}, v14")
            for i in range(4): A(f"  v_max_f32 v{8+i}, 0xc3480000, v{8+i}")
            self.expv([(26 + 4 * half + i, 8 + i, 34 + i) for i in range(4)])
        self.divv([(15, "1.0", 13, 16, 17)])
        if c["dump"]:
            for i in range(8):
                A(f"  s_lshl_b32 s69, s2, 3\n  s_add_u32 s69, s69, s{sWAVE}\n  s_lshl_b32 s69, s69, 3\n  s_add_u32 s69, s69, {i}")
                self.dumpv(18 + i, 1, 0x100000, 69, 256, tmp=36)
        for i in range(8): A(f"  v_mul_f32 v{26+i}, v{26+i}, v15")
        for i in range(8): A(f"  v_cvt_pk_bf16_f32 v{18+i}, v{26+i}, v{26+i}")
        self.stamp(3)
        npv = 0
        def pv():
            nonlocal npv
            n = npv; npv += 1
            Ab = 26 + 4 * (n & 1)
            bank = [0, 2, 1, 3][n & 3]
            for j in range(4):
                A(f"  v_and_b32_dpp v{Ab+j}, v{18+(n>>2)}, v{4+j} row_newbcast:{4*bank} row_mask:0xf bank_mask:0xf")
            A(f"  v_mfma_f32_16x16x32_bf16 {vq(34)}, {vq(Ab)}, {vq(slot(n))}, {'0' if n == 0 else vq(34)}")
            if n == c["hint_at"] and "HT" not in c["xskip"]:
                l = self.lab("ht")
                self.exec1()
                A(f"  ds_add_rtn_u32 v12, v{vZ}, v{vONE} offset:{F_P}\n  s_mov_b32 s5, 0\n  s_waitcnt lgkmcnt(0)\n  v_readfirstlane_b32 s60, v12")
                self.execall()
                A(f"  s_cmp_lg_u32 s60, 7\n  s_cbranch_scc1 {l}")
                if "HS" in c["xskip"]:
                    A(f"  s_lshl_b32 s60, s{sB}, 12\n  s_lshl_b32 s61, s{sH}, 2\n  s_add_u32 s60, s60, s61\n  s_add_u32 s60, s60, {WS_ACC + 3328}\n  v_mov_b32 v12, s60")
                    self.exec1(); A(f"  global_store_dword v12, v11, {sp(sWS)} sc1"); self.execall(); A(f"{l}:")
                else:
                    A(f"  s_lshl_b32 s60, s{sB}, 12\n  s_add_u32 s60, s60, {WS_ACC + 3072}\n  s_mov_b32 s5, 1\n  s_atomic_add s5, {sp(sWS)}, s60 glc\n{l}:")
            if n == c["hint_at"] + c["hint_lag"] and "HT" not in c["xskip"]:
                l = self.lab("hf")
                A(f"  s_waitcnt lgkmcnt(0)\n  s_cmp_lg_u32 s5, 31\n  s_cbranch_scc1 {l}")
                A(f"  s_mul_i32 s60, s{sB}, {64*128}\n  s_add_u32 s60, s60, {WS_HINT}\n  v_lshl_add_u32 v12, v{vLANE}, 7, s60")
                A(f"  s_mov_b32 exec_hi, 0x7ff\n  global_store_dword v12, v11, {sp(sWS)} sc1"); self.execall()
                A(f"{l}:")
        self.ffn_addr()
        self.lds_spin(F_C, 1, 12)
        A(f"  ds_read_b32 v11, v{vZ} offset:{F_N}")
        def vstep():
            nextv()
            landed = nv - D
            k = 0
            while npv < landed and k < 3:
                pv(); k += 1
        def finish(ffn=False):
            if ffn and c["early"]:
                l = self.lab("eh")
                A(f"  s_cmp_lg_u32 s{sWAVE}, 0\n  s_cbranch_scc1 {l}")
                A(f"  s_lshl_b32 s60, s{sJ}, 7\n  s_add_u32 s60, s60, s{sSL}\n  s_lshl_b32 s60, s60, 7\n  s_add_u32 s60, s60, {WS_HINT}\n  s_add_u32 s61, s60, {64*128}")
                A(f"  s_load_dword s8, {sp(sWS)}, s60 glc\n  s_load_dword s9, {sp(sWS)}, s61 glc\n{l}:")
            while npv < 32:
                waitfor(f"V{npv}"); pv()
            A(f"  v_lshlrev_b32 v12, 5, v{vJ}\n  v_lshl_add_u32 v13, v{vG}, 4, v12\n  s_lshl_b32 s60, s{sWAVE}, 9\n  v_add_u32 v12, s60, v13")
            A("  s_mov_b32 exec_hi, 0")
            if c["oadd"]:
                for r in range(4): A(f"  ds_add_f32 v13, v{34+r} offset:{L_OP + 4*r}")
            else:
                A(f"  ds_write_b128 v12, {vq(34)} offset:{L_OP}")
            self.lds_inc(F_O)
            self.stamp(5)
            if ffn and c["early"]:
                l = self.lab("eh2")
                A(f"  s_cmp_lg_u32 s{sWAVE}, 0\n  s_cbranch_scc1 {l}\n  s_waitcnt lgkmcnt(0)\n  v_mov_b32 v12, s8\n  v_mov_b32 v13, s9")
                self.exec1(); A(f"  ds_write_b64 v{vZ}, v[12:13] offset:{F_HS}"); self.execall()
                A(f"{l}:")
        NF0 = c["NF0"]
        while nv < 32 - NF0: vstep()
        assert npv >= NV or NF0 == 0, (npv, NV)
        lf = self.lab("vffn")
        if c["abl"] is None and "T" not in c["xskip"]: A(f"  s_cmp_lg_u32 s{sFFN}, 0\n  s_cbranch_scc1 {lf}")
        st = (nv, npv, list(issued))
        while nv < 32: vstep()
        self.stamp(4)
        finish()
        A("  s_branch L_exit")
        A(f"{lf}:")
        nv, npv = st[0], st[1]; issued[:] = st[2]
        nf = 0
        while nv < 32:
            waitfor(f"V{nv - (D - 1)}")
            A(f"  buffer_load_dwordx4 {vq(slot(nv))}, v{vL16}, {sq(SRDB)}, s{sOFF + (nv >> 2)} offen offset:{1024*(nv&3)}{c['vfl']}")
            issued.append(f"V{nv}"); nv += 1
            self.ffn_load(nf); issued.append(f"F{nf}"); nf += 1
            k = 0
            while npv < nv - D + 1 and k < 3:
                pv(); k += 1
        self.stamp(4)
        finish(True)
        FD = c["FD"]
        if c["fmode"] == "paced":
            while nf < 24:
                if nf >= FD: waitfor(f"F{nf - FD}")
                self.ffn_load(nf); issued.append(f"F{nf}"); nf += 1
                if nf == FD: self.ffn_lds_addr()
                if nf == 8 + FD: self.transpose_x2(120, 40)
                if nf == 16 + FD: self.stamp(15); self.transpose_x2(136, 56)
            return
        while nf < FD:
            self.ffn_load(nf); issued.append(f"F{nf}"); nf += 1
        self.lds_spin(F_A, 4, 12)
        self.stamp(10)
        while nf < 16:
            self.ffn_load(nf); issued.append(f"F{nf}"); nf += 1
        self.ffn_lds_addr()
        if c["stamps"]: waitfor("F15"); self.stamp(15)
        waitfor("F7"); self.transpose_x2(120, 40)
        if c["down_late"]: self.lds_spin(F_R, 2, 12)
        while nf < 24:
            self.ffn_load(nf); issued.append(f"F{nf}"); nf += 1
        waitfor("F15"); self.transpose_x2(136, 56)

    def ffn_addr(self):
        A = self.A
        A(f"  v_cmp_gt_u32 vcc, 8, v{vJ}")
        A(f"  v_mov_b32 v12, s{sU}\n  v_mov_b32 v13, s{sU+1}\n  v_mov_b32 v14, s{sG}\n  v_mov_b32 v15, s{sG+1}")
        A(f"  v_cndmask_b32 v8, v12, v14, vcc\n  v_cndmask_b32 v9, v13, v15, vcc")
        A(f"  s_lshr_b32 s16, s{sJ}, 1\n  s_and_b32 s17, s{sJ}, 1")
        A(f"  s_lshl_b32 s60, s{sWAVE}, 6\n  s_lshl_b32 s61, s16, 5\n  s_add_u32 s60, s60, s61\n  s_lshl_b32 s61, s17, 2\n  s_add_u32 s60, s60, s61")
        A(f"  v_lshl_add_u32 v12, v{vG}, 3, s60\n  v_mul_u32_u24 v12, 2752, v12")
        A(f"  v_and_b32 v13, 7, v{vJ}\n  v_lshl_add_u32 v12, v13, 3, v12\n  s_lshl_b32 s60, s{sSL}, 6\n  v_add_u32 v12, s60, v12\n  v_mov_b32 v13, 0")
        A(f"  v_lshl_add_u64 v[8:9], v[8:9], 0, v[12:13]")
        A(f"  s_mov_b32 s10, 5504\n  s_mov_b32 s11, 0")
        A(f"  s_cmp_eq_u32 s17, 0\n  s_cselect_b32 s60, 4, -4\n  s_cmp_eq_u32 s16, 0\n  s_cselect_b32 s61, 32, -32")
        A(f"  s_sub_i32 s61, s61, s60\n  s_sub_i32 s60, s60, 2\n  s_sub_i32 s61, s61, 2")
        A(f"  s_mul_i32 s12, s60, 2752\n  s_ashr_i32 s13, s12, 31\n  s_mul_i32 s6, s61, 2752\n  s_ashr_i32 s7, s6, 31")
        A(f"  s_mov_b32 s{SRDA}, s{sDN}\n  s_mov_b32 s{SRDA+1}, s{sDN+1}\n  s_mov_b32 s{SRDA+2}, 1409024\n  s_mov_b32 s{SRDA+3}, 0x20000")
        A(f"  v_lshlrev_b32 v10, 13, v{vG}\n  v_lshl_add_u32 v10, v{vJ}, 3, v10")
        A(f"  s_lshl_b32 s18, s{sSL}, 15\n  s_lshl_b32 s19, s{sWAVE}, 7\n  s_add_u32 s18, s18, s19\n  s_add_u32 s19, s18, 4096")

    def ffn_load(self, i):
        A = self.A
        if "W" in self.c["xskip"]:
            A(f"  global_load_dword v17, v{vZ}, {sp(sC)}"); return
        if i < 16:
            A(f"  global_load_dwordx2 {vp(120+2*i)}, v[8:9], off{' offset:2752' if i & 1 else ''}{self.c['ffnfl']}")
            if i & 1 and i < 15:
                step = "s[10:11]" if (i & 3) == 1 else ("s[6:7]" if i == 7 else "s[12:13]")
                A(f"  v_lshl_add_u64 v[8:9], v[8:9], 0, {step}")
        else:
            e = i - 16
            A(f"  buffer_load_dwordx2 {vp(152+2*e)}, v10, {sq(SRDA)}, s{18 + (e >> 2)} offen offset:{1024*(e&3)}{self.c['ffnfl']}")

    def ffn_lds_addr(self):
        A = self.A
        A(f"  v_and_b32 v12, 1, v{vJ}\n  v_lshlrev_b32 v112, 10, v12\n  v_lshl_add_u32 v112, v{vG}, 4, v112\n  s_lshl_b32 s60, s{sWAVE}, 7\n  v_add_u32 v112, s60, v112")
        A(f"  s_lshl_b32 s60, s16, 6\n  s_lshl_b32 s61, s17, 3\n  s_add_u32 s60, s60, s61\n  v_add_u32 v112, s60, v112")
        A(f"  v_xor_b32 v113, 8, v112\n  v_xor_b32 v114, 64, v112\n  v_xor_b32 v115, 0x48, v112")
        A(f"  v_lshlrev_b32 v116, 6, v12\n  v_lshl_add_u32 v116, v{vG}, 4, v116")
        A(f"  v_lshlrev_b32 v117, 5, v{vJ}\n  v_lshl_add_u32 v117, v{vG}, 3, v117\n  s_lshl_b32 s60, s{sWAVE}, 9\n  v_add_u32 v117, s60, v117")
        A(f"  s_lshl_b32 s60, s{sJ}, 5\n  s_lshl_b32 s61, s{sWAVE}, 2\n  s_add_u32 s60, s60, s61\n  v_add_u32 v118, s60, v{vG}\n  v_mul_u32_u24 v118, {INB}, v118")
        A(f"  s_lshl_b32 s60, s{sSL}, 8\n  s_add_u32 s60, s60, {WS_INBOX}\n  v_lshl_add_u32 v12, v{vJ}, 4, s60\n  v_add_u32 v118, v12, v118")

    def streamer_ffn(self):
        A = self.A
        self.stamp(6)
        A("  s_barrier")
        A("L_dry_s:")
        for i in range(4): A(f"  ds_read_b64 {vp(88+2*i)}, v{112+i} offset:{L_H2}")
        A("  s_waitcnt lgkmcnt(2)")
        for cc in range(4): A(f"  v_mfma_f32_16x16x32_bf16 {vq(96+4*cc)}, {vq(88)}, {vq(40+4*cc)}, 0")
        A("  s_waitcnt lgkmcnt(0)")
        for cc in range(4): A(f"  v_mfma_f32_16x16x32_bf16 {vq(96+4*cc)}, {vq(92)}, {vq(56+4*cc)}, {vq(96+4*cc)}")
        def select():
            for g in range(1, 4):
                for r in range(2):
                    A(f"  v_mov_b32_dpp v{96+r}, v{96+4*g+r} quad_perm:[0,1,2,3] row_mask:{1<<g:#x} bank_mask:0xf")
        select()
        A(f"  ds_write_b64 v117, v[96:97] offset:{L_GUP}\n  s_waitcnt lgkmcnt(0)")
        dry = self.c["dry"]
        if dry: A("  s_cbranch_execz L_dry_s2")
        A("  s_barrier")
        A("  s_waitcnt vmcnt(0)"); self.transpose_x2(152, 72)
        A("  s_barrier")
        A("L_dry_s2:")
        A(f"  ds_read_b128 {vq(88)}, v116 offset:{L_HH}\n  s_waitcnt lgkmcnt(0)")
        for cc in range(4): A(f"  v_mfma_f32_16x16x32_bf16 {vq(96+4*cc)}, {vq(88)}, {vq(72+4*cc)}, 0")
        select()
        A(f"  v_mov_b32 v98, v11\n  v_xor_b32 v99, {TAGX:#x}, v11")
        if dry: A("  s_cbranch_execz L_exit")
        A(f"  global_store_dwordx4 v118, {vq(96)}, {sp(sWS)}{self.c['txfl']}")
        self.stamp(7)
        A("  s_branch L_exit2")

    def mod_loads(self):
        A = self.A
        A(f"  v_and_b32 v4, 7, v{vJ}\n  v_lshrrev_b32 v5, 3, v{vJ}\n  v_lshlrev_b32 v6, 10, v4\n  v_lshl_add_u32 v6, v5, 6, v6\n  v_lshl_add_u32 v6, v{vG}, 4, v6")
        A(f"  s_lshl_b32 s60, s{sWAVE}, 7\n  v_add_u32 v6, s60, v6")
        A(f"  global_load_dwordx4 {vq(8)}, v6, {sp(sC)}")
        A(f"  v_lshlrev_b32 v7, 5, v5\n  v_lshl_add_u32 v7, v{vG}, 3, v7\n  v_mul_u32_u24 v7, 6144, v7\n  v_lshl_add_u32 v7, v4, 4, v7")
        A(f"  s_mul_i32 s60, s{sWAVE}, {64*6144}\n  s_lshl_b32 s61, s57, 7\n  s_add_u32 s60, s60, s61\n  v_add_u32 v7, s60, v7")
        if not self.c["modil"]:
            for i in range(8): self.mod_w(i)

    def mod_w(self, i):
        self.A(f"  global_load_dwordx4 {vq(136+4*i)}, v7, {sp(sWM)}{self.c['wmfl']}")
        if i < 7: self.A(f"  v_add_u32 v7, 6144, v7")

    def mod_compute_a(self):
        A = self.A
        A(f"  s_lshl_b32 s60, s{sWAVE}, 12\n  s_add_u32 s60, s60, {L_V}\n  v_lshlrev_b32 v28, 11, v5\n  v_lshl_add_u32 v28, v4, 8, v28\n  v_and_b32 v29, 1, v{vG}\n  v_lshl_add_u32 v28, v29, 4, v28\n  v_add_u32 v28, s60, v28")
        A(f"  v_lshrrev_b32 v29, 1, v{vG}\n  v_cmp_eq_u32 s[68:69], v29, v5")
        if not self.c["modil"]: A("  s_waitcnt vmcnt(8)")
        for i in range(4):
            r = 8 + i
            A(f"  v_lshlrev_b32 v16, 16, v{r}\n  v_and_b32 v17, 0xffff0000, v{r}")
            A(f"  v_max_f32 v20, 0xc2ae0000, v16\n  v_max_f32 v21, 0xc2ae0000, v17")
            self.expv([(18, 20, 22), (19, 21, 23)], neg=True)
            A(f"  v_add_f32 v18, 1.0, v18\n  v_add_f32 v19, 1.0, v19")
            self.divv([(24, 16, 18, 20, 22), (25, 17, 19, 21, 23)])
            A(f"  v_cvt_pk_bf16_f32 v{r}, v24, v25")

    def mod_compute_b(self):
        A = self.A
        self.transpose_block(136, 5, 6)
        for cc in range(8):
            A(f"  v_mfma_f32_16x16x32_bf16 {vq(104+4*cc)}, {vq(8)}, {vq(136+4*cc)}, 0")
        A("  s_mov_b64 exec, s[68:69]")
        for cc in range(8):
            A(f"  ds_write_b128 v28, {vq(104+4*cc)} offset:{32*cc}")
        self.lds_inc(F_MOD)

    def mod_compute_c(self):
        A = self.A
        A(f"  v_and_b32 v4, 31, v{vLANE}\n  v_lshrrev_b32 v5, 5, v{vLANE}\n  v_lshlrev_b32 v6, 6, v4\n  v_lshl_add_u32 v6, v5, 14, v6\n  s_lshl_b32 s60, s{sWAVE}, 2\n  s_add_u32 s60, s60, {L_V}\n  v_add_u32 v6, s60, v6")
        A(f"  s_mul_i32 s60, s{sWAVE}, 6144\n  s_lshl_b32 s61, s57, 7\n  s_add_u32 s60, s60, s61\n  s_add_u32 s60, s60, {WS_MOD}\n  v_lshl_add_u32 v5, v4, 2, s60")
        self.lds_spin(F_MOD, 8, 7)
        for part in range(8):
            if part: A(f"  v_add_u32 v6, 2048, v6")
            A(f"  ds_read2_b32 {vp(8+2*part)}, v6 offset0:0 offset1:8")
        l = self.lab("pollSN"); d = self.lab("gotSN")
        A(f"{l}:\n  s_cmp_lg_u32 s3, 0\n  s_cbranch_scc1 {d}")
        self.guard()
        A(f"  s_load_dword s3, {sp(sDBG)}, 0x80 glc\n  s_waitcnt lgkmcnt(0)\n  s_branch {l}\n{d}:")
        A("  s_waitcnt lgkmcnt(0)")
        self.lds_inc(F_MOD2)
        for part in range(1, 8):
            A(f"  v_add_f32 v8, v8, v{8+2*part}\n  v_add_f32 v9, v9, v{9+2*part}")
        A("  v_mov_b32 v10, v8\n  v_mov_b32 v11, v9\n  v_permlane32_swap_b32 v10, v8\n  v_permlane32_swap_b32 v11, v9\n  v_add_f32 v8, v8, v10\n  v_add_f32 v9, v9, v11")
        A(f"  v_cvt_pk_bf16_f32 v8, v8, v9\n  s_mov_b32 exec_hi, 0\n  global_store_dword v5, v8, {sp(sWS)} sc1")
        self.execall()
        A("  v_mov_b32 v9, v8")
        for st in ("quad_perm:[1,0,3,2]", "quad_perm:[2,3,0,1]", "row_ror:4", "row_ror:8"):
            A(f"  v_xor_b32_dpp v9, v9, v9 {st} row_mask:0xf bank_mask:0xf")
        A("  v_mov_b32 v10, v9\n  v_permlane16_swap_b32 v10, v9\n  v_bitop3_b32 v9, v9, v10, s3 bitop3:0x96")
        A(f"  s_lshl_b32 s60, s{sWAVE}, 8\n  s_lshl_b32 s61, s57, 2\n  s_add_u32 s60, s60, s61\n  s_add_u32 s60, s60, {WS_MARK}\n  v_mov_b32 v5, s60")
        self.exec1(); A(f"  global_store_dword v5, v9, {sp(sWS)} sc1"); self.execall()

    def check_lines(self, data, tags, tmp):
        A = self.A
        n = len(data)
        for k in range(n): A(f"  v_xor_b32 v{tmp+k}, v{data[k]}, v{data[k]+1}")
        for k in range(n): A(f"  v_bitop3_b32 v{tmp+k}, v{tmp+k}, v{data[k]+2}, v{data[k]+3} bitop3:0x96")
        for st in ("quad_perm:[1,0,3,2]", "quad_perm:[2,3,0,1]", "row_half_mirror"):
            for k in range(n): A(f"  v_xor_b32_dpp v{tmp+k}, v{tmp+k}, v{tmp+k} {st} row_mask:0xf bank_mask:0xf")
        for k in range(n): A(f"  v_bitop3_b32 v{tmp+k}, v{tmp+k}, v{tags[k]}, s44 bitop3:0x96")
        for k in range(1, n): A(f"  v_or_b32 v{tmp}, v{tmp}, v{tmp+k}")
        A(f"  v_cmp_ne_u32 vcc, 0, v{tmp}")

    def get_flag(self, tmp, off, sreg, expect=None):
        A = self.A
        l = self.lab("pollN"); d = self.lab("gotN")
        cmp = f"s_cmp_lg_u32 s{sreg}, 0" if expect is None else f"s_cmp_eq_u32 s{sreg}, {expect}"
        self.exec1()
        A(f"  global_load_dword v{tmp}, v{vZ}, {sp(sDBG)} offset:{off}")
        A(f"{l}:\n  s_waitcnt vmcnt(0)\n  v_readfirstlane_b32 s{sreg}, v{tmp}\n  {cmp}\n  s_cbranch_scc1 {d}")
        self.guard()
        A(f"  s_sleep {self.c['poll_sleep']}\n  global_load_dword v{tmp}, v{vZ}, {sp(sDBG)} offset:{off} sc1\n  s_branch {l}\n{d}:"); self.execall()
    def get_nonce(self, tmp): self.get_flag(tmp, 128, 44)

    def xor_rows(self, r, t):
        A = self.A
        A(f"  v_mov_b32 v{t}, v{r}\n  v_permlane16_swap_b32 v{t}, v{r}\n  v_xor_b32 v{r}, v{r}, v{t}")
        A(f"  v_mov_b32 v{t}, v{r}\n  v_permlane32_swap_b32 v{t}, v{r}\n  v_xor_b32 v{r}, v{r}, v{t}")

    def allreduce8(self, r, t, op="v_add_f32"):
        A = self.A
        A(f"  {op}_dpp v{r}, v{r}, v{r} row_ror:8 row_mask:0xf bank_mask:0xf")
        A(f"  v_mov_b32 v{t}, v{r}\n  v_permlane16_swap_b32 v{t}, v{r}\n  {op} v{r}, v{r}, v{t}")
        A(f"  v_mov_b32 v{t}, v{r}\n  v_permlane32_swap_b32 v{t}, v{r}\n  {op} v{r}, v{r}, v{t}")

    def wq_pattern(self):
        p = self.c["wqpat"]
        if p == 8: return 16, [8192 if i % 8 < 7 else 8192 * 25 for i in range(32)]
        if p == 32: return 18, [8192] * 32
        if p == 1: return 13, [8192 * 4] * 32
        if p == 33: return 18, [8192 * 5 if i % 8 < 7 else (1 << 32) - 8192 * 27 for i in range(32)]
        if p == 16: return 17, [8192 if i % 16 < 15 else 8192 * 49 for i in range(32)]

    def wo_pattern(self):
        p = self.c["wopat"]
        if p == 8: return 13, [1024 if i % 8 < 7 else 1024 * 25 for i in range(32)]
        if p == 32: return 15, [1024] * 32
        if p == 1: return 10, [4096] * 32

    def wo_prefetch(self):
        A = self.A
        l = self.lab("nowopf")
        A(f"  s_cmp_lg_u32 s{sHW}, {self.c['wopfw']}\n  s_cbranch_scc1 {l}")
        A(f"  s_lshl_b32 s60, s{sXCD}, 19\n  s_lshl_b32 s61, s{sIDX}, 14\n  s_add_u32 s60, s60, s61\n  s_add_u32 s60, s60, 4096\n  v_add_u32 v7, s60, v{vL16}")
        for i in range(16):
            if i == 8: A("  v_add_u32 v7, 8192, v7")
            A(f"  global_load_dword v35, v7, {sp(sWO)} offset:{(i % 8) * 1024 - 4096}")
        A(f"{l}:")

    def h0_issue(self, fl):
        A = self.A
        if "G" in self.c["xskip"]: return
        A(f"  global_load_dwordx4 {vq(28)}, v36, {sp(sWS)}{fl}\n  global_load_dwordx4 {vq(32)}, v36, {sp(sWS)} offset:1024{fl}")
        A(f"  global_load_dword v24, v37, {sp(sWS)}{fl}\n  global_load_dword v25, v37, {sp(sWS)} offset:32{fl}")

    def h0_finish(self):
        A = self.A; c = self.c
        l = self.lab("chkA"); d = self.lab("gotA")
        A(f"{l}:")
        self.check_lines([28, 32], [24, 25], 26)
        A(f"  s_cbranch_vccz {d}" if "G" not in c["xskip"] else f"  s_branch {d}")
        self.guard()
        A(f"  s_sleep {c['a_sleep']}")
        self.h0_issue(" sc1")
        A(f"  s_waitcnt vmcnt(0)\n  s_branch {l}\n{d}:")
        self.stamp(2); self.cstamp(14)
        self.unpack8(32, 16)
        for i in range(8): A(f"  v_add_f32 v{16+i}, 1.0, v{16+i}")
        self.rnd8(16, 24)
        for i in range(8): A(f"  v_mul_f32 v{8+i}, v{8+i}, v{16+i}")
        self.rnd8(8, 24)
        self.unpack8(28, 16)
        for i in range(8): A(f"  v_add_f32 v{8+i}, v{8+i}, v{16+i}")
        for i in range(4): A(f"  v_cvt_pk_bf16_f32 v{24+i}, v{8+2*i}, v{9+2*i}")
        A(f"  v_add_u32 v16, s47, v{vL16}\n  ds_write_b128 v16, {vq(24)} offset:{L_HBUF}")
        self.lds_inc(F_H)
        if c["dump"]:
            l = self.lab("nodh"); A(f"  s_cmp_lg_u32 s{sHW}, 0\n  s_cbranch_scc1 {l}"); self.dumpv(24, 4, 0x0, 2, 1024); A(f"{l}:")
        self.stamp(3)

    def helper(self):
        A = self.A; c = self.c
        if c["hfirst"]:
            A("L_helper0:"); self.ids(); self.common()
        A("L_helper:")
        self.stamp(8)
        A(f"  s_sub_u32 s{sHW}, s{sWAVE}, 8")
        l = self.lab("h3")
        A(f"  s_cmp_lg_u32 s{sHW}, 3\n  s_cbranch_scc1 {l}")
        A(f"  v_lshlrev_b32 v4, 2, v{vLANE}\n  ds_write_b32 v4, v{vZ}\n  ds_write_b32 v4, v{vZ} offset:{L_OP}\n  ds_write_b32 v4, v{vZ} offset:{L_OP+256}\n  s_waitcnt lgkmcnt(0)\n{l}:")
        A("  s_waitcnt lgkmcnt(0)")
        if c["tlb"]:
            l = self.lab("notlb")
            A(f"  s_cmp_lg_u32 s{sHW}, 2\n  s_cbranch_scc1 {l}")
            self.exec1()
            A(f"  s_lshl_b32 s60, s{sB}, 5\n  s_add_u32 s60, s60, s{sH}\n  s_lshl_b32 s60, s60, 20\n  s_add_u32 s60, s60, 0xC0000\n  v_mov_b32 v4, s60")
            A(f"  global_load_dword v35, v4, {sp(sV)} nt")
            if c["tlb"] == 3: A(f"  s_branch {l}_e")
            A(f"  s_lshl_b32 s60, s2, 12\n  s_add_u32 s60, s60, {WS_QIN}\n  v_mov_b32 v5, s60\n  global_load_dword v41, v5, {sp(sWS)} nt")
            A(f"  s_lshl_b32 s60, s{sH}, 17\n  v_mov_b32 v6, s60\n  global_load_dword v42, v6, {sp(sWO)} nt")
            A(f"  s_lshl_b32 s60, s2, 2\n  s_and_b32 s60, s60, 0xfc\n  v_mov_b32 v7, s60")
            A(f"  global_load_dword v43, v7, {sp(sDBG)}")
            if c["tlb"] > 1:
                A(f"  s_lshl_b32 s60, s2, 7\n  v_mov_b32 v8, s60")
                for k, p in enumerate((sG, sU, sDN, sWS)): A(f"  global_load_dword v{44+k}, v8, {sp(p)} nt")
                A(f"  v_add_u32 v8, 0x100000, v8")
                for k, p in enumerate((sG, sU, sDN)): A(f"  global_load_dword v{48+k}, v8, {sp(p)} nt")
                A(f"  s_lshl_b32 s60, s2, 5\n  v_mov_b32 v9, s60\n  global_load_dword v52, v9, {sp(sOUT)} nt")
            A(f"{l}_e:")
            self.execall()
            A(f"{l}:")
        def wq_prefetch():
            if c["wqpf"]:
                l = self.lab("nowqpf")
                A(f"  s_cmp_lg_u32 s{sHW}, {c['wqpf']}\n  s_cbranch_scc1 {l}")
                A(f"  s_lshl_b32 s60, s{sIDX}, 17\n  s_lshl_b32 s61, s{sXCD}, 10\n  s_add_u32 s60, s60, s61\n  v_add_u32 v4, s60, v{vL16}")
                for i in range(16):
                    if i >= c["wqpfD"]: A(f"  s_waitcnt vmcnt({c['wqpfD']-1})")
                    A(f"  global_load_dword v35, v4, {sp(sWQ)}{c['pffl']}")
                    if i < 15: A("  v_add_u32 v4, 8192, v4")
                A(f"{l}:")
        if not c["pfbar"]: wq_prefetch()
        if c["wopf"] == -1: self.wo_prefetch()
        l = self.lab("nononce")
        A(f"  s_cmp_lg_u32 s2, 0\n  s_cbranch_scc1 {l}\n  s_cmp_lg_u32 s{sHW}, 1\n  s_cbranch_scc1 {l}")
        A(f"  s_memrealtime s[42:43]\n  s_waitcnt lgkmcnt(0)\n  s_or_b32 s42, s42, 1\n  v_mov_b32 v6, s42")
        self.exec1(); A(f"  global_store_dword v{vZ}, v6, {sp(sDBG)} offset:128 sc1"); self.execall()
        A(f"{l}:")
        A("  s_barrier")
        if c["pfbar"]: wq_prefetch()
        abl = c["abl"]
        if abl is not None:
            if "init" in abl: self.init_duty(11)
            l = self.lab("abl")
            A(f"  s_cmp_lg_u32 s{sHW}, 0\n  s_cbranch_scc1 {l}")
            self.lds_inc(F_Q2); self.lds_inc(F_C)
            if "h0l" in abl:
                A(f"  v_and_b32 v5, 7, v{vJ}\n  v_lshrrev_b32 v6, 3, v{vJ}\n  v_lshl_add_u32 v7, v{vG}, 1, v6\n  v_lshlrev_b32 v7, 4, v7\n  v_lshl_add_u32 v7, v5, 10, v7")
                if "nox" not in abl:
                    for i in range(8): A(f"  global_load_dwordx4 {vq(40+4*i)}, v7, {sp(sX)} offset:{128*i} nt")
                A(f"  s_mov_b32 s{SRDB}, s{sWQ}\n  s_mov_b32 s{SRDB+1}, s{sWQ+1}\n  s_mov_b32 s{SRDB+2}, 4194304\n  s_mov_b32 s{SRDB+3}, 0x20000")
                A(f"  v_lshlrev_b32 v7, 4, v{vJ}\n  v_lshl_add_u32 v7, v{vG}, 16, v7")
                A(f"  s_lshl_b32 s41, s{sB}, 19\n  s_lshl_b32 s60, s{sH}, 8\n  s_add_u32 s41, s41, s60")
                for i in range(0 if "nowq" in abl else 16):
                    A(f"  s_waitcnt vmcnt({c['ablD']})")
                    A(f"  buffer_load_dwordx4 {vq(104+4*i)}, v7, {sq(SRDB)}, s41 offen nt")
                    if i < 15: A(f"  s_add_u32 s41, s41, {8192 if i != 7 else 8192*25}")
                A("  s_waitcnt vmcnt(0)")
            if "poll" in abl:
                lp = self.lab("ablp")
                self.exec1()
                A(f"  s_mov_b32 s65, 12\n{lp}:\n  global_load_dwordx2 v[24:25], v{vZ}, {sp(sDBG)} offset:128 sc1\n  s_waitcnt vmcnt(0)\n  s_sleep {c['poll_sleep']}\n s_sub_u32 s65, s65, 1\n s_cmp_lg_u32 s65, 0\n s_cbranch_scc1 {lp}")
                self.execall()
            A(f"{l}:")
            if "wqr" in abl:
                A(f"  s_mov_b32 s{SRDA}, s{sWQ}\n  s_mov_b32 s{SRDA+1}, s{sWQ+1}\n  s_mov_b32 s{SRDA+2}, 4194304\n  s_mov_b32 s{SRDA+3}, 0x20000")
                sh, steps_ = self.wq_pattern()
                A(f"  v_lshlrev_b32 v4, 4, v{vJ}\n  v_lshl_add_u32 v4, v{vG}, {sh}, v4")
                A(f"  s_lshl_b32 s40, s{sHW}, 20\n  s_xor_b32 s60, s{sH}, {c['wqx']}\n  s_lshl_b32 s60, s60, 8\n  s_add_u32 s40, s40, s60")
                self.wload32(SRDA, steps_, c["HDO"], frac=c["HDOf"], fl=c["wqfl"])
                self.stamp(5)
            if "wqh" in abl:
                lq = self.lab("noq")
                A(f"  s_cmp_ge_u32 s{sB}, 4\n  s_cbranch_scc1 {lq}")
                A(f"  s_mov_b32 s{SRDA}, s{sWQ}\n  s_mov_b32 s{SRDA+1}, s{sWQ+1}\n  s_mov_b32 s{SRDA+2}, 4194304\n  s_mov_b32 s{SRDA+3}, 0x20000")
                A(f"  v_lshlrev_b32 v4, 4, v{vJ}\n  v_lshl_add_u32 v4, v{vG}, 17, v4")
                A(f"  s_lshl_b32 s40, s{sHW}, 19\n  s_and_b32 s60, s{sB}, 1\n  s_lshl_b32 s60, s60, 21\n  s_add_u32 s40, s40, s60\n  s_lshl_b32 s60, s{sH}, 8\n  s_add_u32 s40, s40, s60")
                for i in range(16):
                    if i >= c["HD"]: A(f"  s_waitcnt vmcnt({c['HD']-1})")
                    A(f"  buffer_load_dwordx4 {vq(104+4*i)}, v4, {sq(SRDA)}, s40 offen\n  s_add_u32 s40, s40, 8192")
                self.stamp(5)
                A(f"{lq}:")
            if "wqp" in abl:
                lq = self.lab("noq")
                A(f"  s_cmp_lt_u32 s57, 48\n  s_cbranch_scc1 {lq}")
                sh, steps_ = self.wq_pattern()
                A(f"  s_mov_b32 s{SRDA}, s{sWQ}\n  s_mov_b32 s{SRDA+1}, s{sWQ+1}\n  s_mov_b32 s{SRDA+2}, 4194304\n  s_mov_b32 s{SRDA+3}, 0x20000")
                A(f"  v_lshlrev_b32 v4, 4, v{vJ}\n  v_lshl_add_u32 v4, v{vG}, {sh}, v4")
                A(f"  s_lshl_b32 s40, s{sHW}, 20\n  s_lshl_b32 s60, s{sH}, 8\n  s_add_u32 s40, s40, s60")
                self.wload32(SRDA, steps_, c["HD"], frac=c["HDf"], fl=c["wqfl"])
                self.stamp(5)
                A(f"{lq}:")
            if "wo" in abl:
                A(f"  s_mov_b32 s{SRDA}, s{sWO}\n  s_mov_b32 s{SRDA+1}, s{sWO+1}\n  s_mov_b32 s{SRDA+2}, 4194304\n  s_mov_b32 s{SRDA+3}, 0x20000")
                A(f"  v_lshlrev_b32 v4, 4, v{vJ}\n  v_lshl_add_u32 v4, v{vG}, {self.wo_pattern()[0]}, v4")
                A(f"  s_lshl_b32 s40, s{sH}, 17\n  s_lshl_b32 s60, s{sHW}, 8\n  s_add_u32 s40, s40, s60")
                self.wload32(SRDA, self.wo_pattern()[1], c["HDO"], frac=c["HDOf"])
                self.stamp(6)
            A("  s_branch L_exit")
        A(f"  s_mov_b32 s{SRDA}, s{sWQ}\n  s_mov_b32 s{SRDA+1}, s{sWQ+1}\n  s_mov_b32 s{SRDA+2}, 4194304\n  s_mov_b32 s{SRDA+3}, 0x20000")
        sh, steps = self.wq_pattern()
        A(f"  v_lshlrev_b32 v4, 4, v{vJ}\n  v_lshl_add_u32 v4, v{vG}, {sh}, v4")
        A(f"  s_lshl_b32 s40, s{sHW}, 20\n  s_lshl_b32 s60, s{sH}, 8\n  s_add_u32 s40, s40, s60")
        A(f"  s_cmp_lt_u32 s57, 48\n  s_cbranch_scc1 L_prodh")
        if c["wo_at"] is not None: self.lds_spin(F_K, 1, 7, sleep=2)
        A(f"  s_cmp_eq_u32 s57, 64\n  s_cselect_b32 s45, 3, 0")
        A(f"  s_cmp_gt_u32 s{sHW}, s45\n  s_cbranch_scc1 L_wq123")
        A(f"  s_lshl_b32 s46, s{sHW}, 1\n  s_add_u32 s46, s46, s{sB}\n  s_lshl_b32 s47, s{sHW}, 10")
        A(f"  s_lshl_b32 s60, s46, 10\n  v_add_u32 v36, s60, v{vL16}\n  global_load_dwordx4 {vq(28)}, v36, {sp(sX)}")
        A(f"  s_mul_i32 s60, s46, 6144\n  s_add_u32 s60, s60, {WS_MOD}\n  v_add_u32 v36, s60, v{vL16}")
        A(f"  s_lshl_b32 s60, s46, 8\n  s_add_u32 s60, s60, {WS_MARK}\n  v_lshrrev_b32 v37, 3, v{vLANE}\n  v_lshl_add_u32 v37, v37, 2, s60")
        def chkB0():
            l0 = self.lab("noB0"); l = self.lab("pollBN"); d = self.lab("gotBN")
            A(f"  s_cmp_lg_u32 s{sHW}, 1\n  s_cbranch_scc1 {l0}")
            A(f"  s_load_dword s44, {sp(sDBG)}, 0x80\n  s_waitcnt lgkmcnt(0)\n{l}:\n  s_cmp_lg_u32 s44, 0\n  s_cbranch_scc1 {d}")
            self.guard()
            A(f"  s_load_dword s44, {sp(sDBG)}, 0x80 glc\n  s_waitcnt lgkmcnt(0)\n  s_branch {l}\n{d}:")
            self.get_flag(7, 136, 41, expect="s44")
            self.lds_inc(F_C)
            A(f"{l0}:")
        early_b = [(c["PBQ"], chkB0)] if c["rank"] else []
        HD = c["HD"]
        def ln():
            self.unpack8(28, 8); self.layernorm(8, 16, 24)
            A(f"  s_load_dword s44, {sp(sDBG)}, 0x80")
        def gather():
            l = self.lab("pollHN"); d = self.lab("gotHN")
            A(f"  s_waitcnt lgkmcnt(0)\n{l}:\n  s_cmp_lg_u32 s44, 0\n  s_cbranch_scc1 {d}")
            self.guard()
            A(f"  s_load_dword s44, {sp(sDBG)}, 0x80 glc\n  s_waitcnt lgkmcnt(0)\n  s_branch {l}\n{d}:")
            self.stamp(1)
            self.h0_issue("")
            A(f"  v_mov_b32 v26, s44\n  ds_write_b32 v{vZ}, v26 offset:{F_N}")
        self.wload32(SRDA, steps, HD, frac=c["HDf"], hooks=dict(early_b + [(HD + 3, ln), (c["P0"], gather), (c["P0"] + HD, self.h0_finish)] + ([(c["wopf"], self.wo_prefetch)] if (c["wopf"] or -1) > 0 else [])), fl=c["wqfl"])
        A("  s_branch L_q")
        A("L_wq123:")
        l = self.lab("nozero")
        A(f"  s_cmp_lg_u32 s{sHW}, 3\n  s_cbranch_scc1 {l}\n  s_cmp_lt_u32 s57, 256\n  s_cbranch_scc1 {l}\n  s_cmp_ge_u32 s57, {256+8}\n  s_cbranch_scc1 {l}")
        A("  v_mov_b32 v12, 0\n  v_mov_b32 v13, 0\n  v_mov_b32 v14, 0\n  v_mov_b32 v15, 0")
        A(f"  s_sub_u32 s61, s57, 256\n  s_lshl_b32 s60, s61, 12\n  s_add_u32 s60, s60, {WS_ACC}\n  v_add_u32 v5, s60, v{vL16}")
        for i in range(4): A(f"  global_store_dwordx4 v5, {vq(12)}, {sp(sWS)} offset:{1024*i} sc1")
        A(f"{l}:")
        def ticket():
            l = self.lab("notick"); lp = self.lab("pollZN"); d = self.lab("gotZN")
            A(f"  s_cmp_lg_u32 s{sHW}, 3\n  s_cbranch_scc1 {l}\n  s_cmp_lt_u32 s57, 256\n  s_cbranch_scc1 {l}\n  s_cmp_ge_u32 s57, {256+8}\n  s_cbranch_scc1 {l}")
            A(f"  s_mov_b32 s65, 1\n  s_atomic_add s65, {sp(sDBG)}, 0x8 glc\n  s_waitcnt lgkmcnt(0)\n  s_cmp_lg_u32 s65, 7\n  s_cbranch_scc1 {l}")
            A(f"{lp}:\n  s_load_dword s44, {sp(sDBG)}, 0x80 glc\n  s_waitcnt lgkmcnt(0)\n  s_cmp_lg_u32 s44, 0\n  s_cbranch_scc1 {d}")
            self.guard()
            A(f"  s_branch {lp}\n{d}:\n  v_mov_b32 v7, s44")
            self.exec1(); A(f"  global_store_dword v{vZ}, v7, {sp(sDBG)} offset:136 sc1"); self.execall()
            A(f"{l}:")
        self.wload32(SRDA, steps, HD, frac=c["HDf"], hooks=dict(early_b + [(HD + 2, ticket)] + ([(c["wopf"], self.wo_prefetch)] if (c["wopf"] or -1) > 0 else [])), fl=c["wqfl"])
        A("L_q:")
        self.stamp(4)
        A("  s_add_u32 s61, s45, 1")
        self.lds_spin(F_H, "s61", 7)
        p32 = c["wqpat"] == 32
        A(f"  s_lshl_b32 s60, s{sHW}, 8\n  v_lshl_add_u32 v4, v{vG}, {6 if p32 else 4}, s60\n  v_and_b32 v5, s45, v{vJ}\n  v_lshl_add_u32 v4, v5, 10, v4")
        for m in range(4): A(f"  ds_read_b128 {vq(8+4*m)}, v4 offset:{L_HBUF + (16 if p32 else 64)*m}")
        A(f"  ds_read_b32 v7, v{vZ} offset:{F_N}")
        A(f"  s_lshl_b32 s60, s{sHW}, 11\n  v_lshl_add_u32 v5, v{vJ}, 5, s60\n  v_add_u32 v5, {L_QP}, v5")
        A(f"  s_mov_b32 s{SRDA}, s{sWO}\n  s_mov_b32 s{SRDA+1}, s{sWO+1}\n  s_mov_b32 s{SRDA+2}, 4194304\n  s_mov_b32 s{SRDA+3}, 0x20000")
        A(f"  s_lshl_b32 s40, s{sH}, 17\n  s_lshl_b32 s60, s{sHW}, 8\n  s_add_u32 s40, s40, s60")
        A("  s_waitcnt lgkmcnt(0)")
        A(f"  v_readfirstlane_b32 s44, v7\n  v_lshlrev_b32 v4, 4, v{vJ}\n  v_lshl_add_u32 v4, v{vG}, {self.wo_pattern()[0]}, v4")
        res = self.gemv32()
        A("  s_mov_b64 exec, 0xffff")
        for cc in range(0, 8, 2):
            A(f"  ds_write2_b32 v5, v{res[cc]}, v{res[cc+1]} offset0:{cc} offset1:{cc+1}")
        l = self.lab("onerow")
        A(f"  s_cmp_eq_u32 s45, 0\n  s_cbranch_scc1 {l}")
        for r in range(1, 4):
            A(f"  v_add_u32 v5, 512, v5")
            for cc in range(0, 8, 2):
                A(f"  ds_write2_b32 v5, v{res[cc]+r}, v{res[cc+1]+r} offset0:{cc} offset1:{cc+1}")
        A(f"{l}:")
        self.exec1()
        A(f"  ds_add_rtn_u32 v7, v{vZ}, v{vONE} offset:{F_Q}\n  s_waitcnt lgkmcnt(0)\n  v_readfirstlane_b32 s60, v7")
        self.execall()
        l = self.lab("notlastq")
        A(f"  s_cmp_lg_u32 s60, 3\n  s_cbranch_scc1 {l}")
        A(f"  v_lshlrev_b32 v6, 3, v{vLANE}")
        for part in range(4): A(f"  ds_read_b64 {vp(8+2*part)}, v6 offset:{L_QP + 2048*part}")
        A(f"  s_lshl_b32 s60, s2, 9\n  s_add_u32 s60, s60, {WS_QIN}\n  v_add_u32 v7, s60, v6")
        A(f"  v_lshlrev_b32 v5, 2, v{vLANE}\n  s_waitcnt lgkmcnt(0)")
        A("  v_add_f32 v8, v8, v10\n  v_add_f32 v9, v9, v11\n  v_add_f32 v12, v12, v14\n  v_add_f32 v13, v13, v15\n  v_add_f32 v8, v8, v12\n  v_add_f32 v9, v9, v13")
        A(f"  v_cvt_pk_bf16_f32 v8, v8, v9\n  ds_write_b32 v5, v8 offset:{L_QB}")
        l2 = self.lab("nodon")
        A(f"  s_cmp_eq_u32 s45, 0\n  s_cbranch_scc1 {l2}")
        for r in range(1, 4):
            for part in range(4): A(f"  ds_read_b64 {vp(16+2*part)}, v6 offset:{L_QP + 2048*part + 512*r}")
            A(f"  v_add_u32 v7, {64*512}, v7\n  s_waitcnt lgkmcnt(0)")
            A("  v_add_f32 v16, v16, v18\n  v_add_f32 v17, v17, v19\n  v_add_f32 v20, v20, v22\n  v_add_f32 v21, v21, v23\n  v_add_f32 v16, v16, v20\n  v_add_f32 v17, v17, v21")
            A(f"  v_cvt_pk_bf16_f32 v{24+2*r}, v16, v17\n  v_mov_b32 v{25+2*r}, s44\n  global_store_dwordx2 v7, {vp(24+2*r)}, {sp(sWS)} sc1")
        A(f"{l2}:")
        self.lds_inc(F_Q2)
        self.dumpv(8, 1, 0x80000, 2, 256)
        A(f"{l}:")
        self.stamp(5)
        steps = self.wo_pattern()[1]
        def chkB():
            if c["rank"]: return
            l0 = self.lab("noB")
            A(f"  s_cmp_lg_u32 s{sHW}, 1\n  s_cbranch_scc1 {l0}")
            if "B" not in c["xskip"]: self.get_flag(7, 136, 45, expect="s44")
            self.lds_inc(F_C)
            A(f"{l0}:")
        def rowloads(fl):
            for i in range(4): A(f"  global_load_dwordx4 {vq(12+4*i)}, v36, {sp(sWS)} offset:{1024*i}{fl}")
            for i in range(4): A(f"  global_load_dword v{28+i}, v37, {sp(sWS)} offset:{32*i}{fl}")
        def rows_a():
            if "R" in c["xskip"]: return
            l = self.lab("norows")
            A(f"  s_cmp_ge_u32 s{sHW}, 2\n  s_cbranch_scc1 {l}\n  s_cmp_eq_u32 s{sFFN}, 0\n  s_cbranch_scc1 {l}")
            A(f"  s_lshl_b32 s41, s{sJ}, 1\n  s_add_u32 s41, s41, s{sHW}")
            A(f"  s_mul_i32 s60, s41, 6144\n  s_add_u32 s60, s60, {WS_MOD + 2048}\n  v_add_u32 v36, s60, v{vL16}")
            A(f"  s_lshl_b32 s60, s41, 8\n  s_add_u32 s60, s60, {WS_MARK + 64}\n  v_lshrrev_b32 v37, 3, v{vLANE}\n  v_lshl_add_u32 v37, v37, 2, s60")
            rowloads("")
            A(f"  s_lshl_b32 s60, s41, 10\n  v_add_u32 v7, s60, v{vL16}\n  global_load_dwordx4 {vq(8)}, v7, {sp(sX)}")
            A(f"{l}:")
        def rows_b():
            if "R" in c["xskip"]: return
            l = self.lab("norows2")
            A(f"  s_cmp_ge_u32 s{sHW}, 2\n  s_cbranch_scc1 {l}\n  s_cmp_eq_u32 s{sFFN}, 0\n  s_cbranch_scc1 {l}")
            lr = self.lab("chkR"); dr = self.lab("gotR")
            A(f"{lr}:")
            self.check_lines([12, 16, 20, 24], [28, 29, 30, 31], 32)
            A(f"  s_cbranch_vccz {dr}")
            self.guard()
            rowloads(" sc1")
            A(f"  s_waitcnt vmcnt(0)\n  s_branch {lr}\n{dr}:")
            self.unpack8(20, 28)
            for i in range(8): A(f"  v_add_f32 v{28+i}, 1.0, v{28+i}")
            for i in range(4): A(f"  v_cvt_pk_bf16_f32 v{20+i}, v{28+2*i}, v{29+2*i}")
            self.lds_spin(F_Q2, 1, 7)
            A(f"  s_mul_i32 s60, s{sHW}, 5120\n  v_add_u32 v36, s60, v{vL16}")
            for i in range(5): A(f"  ds_write_b128 v36, {vq(8+4*i)} offset:{L_ROWS + 1024*i}")
            A(f"{l}:")
        self.wload32(SRDA, steps, c["HDO"], frac=c["HDOf"], hooks={c["PB"]: chkB, c["PR"]: rows_a, c["PR"] + c["HDO"]: rows_b})
        A("  s_branch L_wo")
        A("L_prodh:")
        if c["spref"]:
            l = self.lab("nosp"); pc = self.lab("spc")
            per = -(-c["prefkib"] * 8 // 6)
            A(f"  s_cmp_lg_u32 s{sHW}, 3\n  s_cbranch_scc1 {l}\n  s_getpc_b64 s[60:61]\n{pc}:\n  s_sub_u32 s60, s60, {pc}-{KNAME}\n  s_subb_u32 s61, s61, 0")
            A(f"  s_sub_u32 s65, s{sB}, 2\n  s_mul_i32 s65, s65, {per*128}\n  s_add_u32 s60, s60, s65\n  s_addc_u32 s61, s61, 0")
            for i in range(per):
                A(f"  s_load_dword s41, s[60:61], {128*i:#x}")
                if i % 12 == 11: A("  s_waitcnt lgkmcnt(0)")
            A(f"  s_waitcnt lgkmcnt(0)\n{l}:")
        A(f"  s_mov_b32 s{SRDA}, s{sWO}\n  s_mov_b32 s{SRDA+1}, s{sWO+1}\n  s_mov_b32 s{SRDA+2}, 4194304\n  s_mov_b32 s{SRDA+3}, 0x20000")
        A(f"  s_lshl_b32 s40, s{sH}, 17\n  s_lshl_b32 s60, s{sHW}, 8\n  s_add_u32 s40, s40, s60")
        A(f"  v_lshlrev_b32 v4, 4, v{vJ}\n  v_lshl_add_u32 v4, v{vG}, {self.wo_pattern()[0]}, v4")
        def recvq():
            l0 = self.lab("noq"); l = self.lab("pollPN"); d = self.lab("gotPN"); lq = self.lab("pollPQ"); dq = self.lab("gotPQ")
            A(f"  s_cmp_lg_u32 s{sHW}, 0\n  s_cbranch_scc1 {l0}")
            A(f"  s_load_dword s44, {sp(sDBG)}, 0x80\n  s_waitcnt lgkmcnt(0)\n{l}:\n  s_cmp_lg_u32 s44, 0\n  s_cbranch_scc1 {d}")
            self.guard()
            A(f"  s_load_dword s44, {sp(sDBG)}, 0x80 glc\n  s_waitcnt lgkmcnt(0)\n  s_branch {l}\n{d}:")
            A(f"  v_mov_b32 v26, s44\n  ds_write_b32 v{vZ}, v26 offset:{F_N}")
            A(f"  s_lshl_b32 s60, s2, 9\n  s_add_u32 s60, s60, {WS_QIN}\n  v_lshl_add_u32 v7, v{vLANE}, 3, s60\n  s_add_u32 s61, s60, 4")
            if "PQ" in c["xskip"]: A(f"  s_branch {dq}")
            A(f"{lq}:\n  s_load_dword s60, {sp(sWS)}, s61 glc\n  s_waitcnt lgkmcnt(0)\n  s_cmp_eq_u32 s60, s44\n  s_cbranch_scc0 {lq}_r")
            A(f"  global_load_dwordx2 v[8:9], v7, {sp(sWS)} sc1\n  s_waitcnt vmcnt(0)\n  v_cmp_ne_u32 vcc, s44, v9\n  s_cbranch_vccz {dq}")
            A(f"{lq}_r:")
            self.guard()
            A(f"  s_sleep {c['q_sleep']}\n  s_branch {lq}\n{dq}:")
            A(f"  v_lshlrev_b32 v7, 2, v{vLANE}\n  ds_write_b32 v7, v8 offset:{L_QB}")
            self.lds_inc(F_Q2)
            self.stamp(5)
            self.dumpv(8, 1, 0x80000, 2, 256)
            if not c["rank"]:
                self.get_flag(7, 136, 45, expect="s44")
                self.lds_inc(F_C)
            A(f"{l0}:")
        self.wload32(SRDA, steps, c["HDP"], frac=c["HDPf"], hooks=dict(([(8, chkB0)] if c["rank"] else []) + [(c["PQ"], recvq)] + ([(c["wopf"] // 2, self.wo_prefetch)] if (c["wopf"] or -1) > 0 else [])))
        self.lds_spin(F_Q2, 1, 7, sleep=4)
        A(f"  ds_read_b32 v7, v{vZ} offset:{F_N}\n  s_waitcnt lgkmcnt(0)\n  v_readfirstlane_b32 s44, v7")
        A("L_wo:")
        A("L_wodone:")
        if c["hprio"]: A(f"  s_setprio {c['hprio']}")
        if c["pref2"] and "T" not in c["xskip"]:
            self.prefetch(wait=True)
        self.lds_spin(F_C, 1, 7, sleep=4)
        A(f"  v_lshlrev_b32 v28, {5 if c['oadd'] else 3}, v{vG if c['oadd'] else vLANE}")
        A(f"  s_lshl_b32 s60, s{sHW}, 8\n  v_lshl_add_u32 v29, v{vLANE}, 2, s60\n  v_lshl_add_u32 v30, v{vG}, {6 if c['wopat'] == 32 else 4}, s60")
        A(f"  v_lshrrev_b32 v31, 2, v{vLANE}\n  v_and_b32 v32, 3, v{vLANE}\n  v_lshl_add_u32 v31, v32, 4, v31\n  v_lshlrev_b32 v36, 2, v31")
        A(f"  s_lshl_b32 s61, s{sB}, 12\n  s_add_u32 s61, s61, {WS_ACC}\n  v_add_u32 v32, s61, v29")
        A(f"  v_mov_b32 v33, 1.0\n  v_mov_b32 v34, 1.0\n  v_mov_b32 v35, 1.0\n  v_mov_b32_dpp v35, v{vZ} quad_perm:[0,1,2,3] row_mask:0x4 bank_mask:0xf")
        self.stamp(6)
        if "T" in c["xskip"]: A("  s_branch L_exit")
        if c["dryo"]:
            l = self.lab("nodryo")
            A(f"  s_cmp_lg_u32 s{sHW}, 3\n  s_cbranch_scc1 {l}\n  s_mov_b64 exec, 0\n  s_branch L_dry_o\nL_dry_oend:\n  s_mov_b64 exec, -1\n{l}:")
        self.lds_spin(F_O, 8, 7, sleep=c['o_sleep'])
        self.stamp(9)
        A("L_dry_o:")
        if c["oadd"]:
            rd = lambda q, off: A(f"  ds_read_b128 {vq(q)}, v28 offset:{L_OP + off}")
            rd(12, 0); rd(16, 16); rd(20, 128); rd(24, 144); rd(4, 256)
            A(f"  s_waitcnt lgkmcnt(3)")
            for i in range(4): A(f"  v_cvt_pk_bf16_f32 v{8+i}, v{12+2*i}, v{13+2*i}")
            A(f"  s_waitcnt lgkmcnt(1)")
            for i in range(4): A(f"  v_cvt_pk_bf16_f32 v{12+i}, v{20+2*i}, v{21+2*i}")
            rd(16, 272); rd(20, 384); rd(24, 400)
            self.stamp(10)
            res = [28] + [40 + 4 * k for k in range(7)]
            for m, Am in enumerate((8, 12, 4, 16)):
                for cc in range(8):
                    A(f"  v_mfma_f32_16x16x32_bf16 {vq(res[cc])}, {vq(Am)}, {vq(40+32*m+4*cc)}, {'0' if m == 0 else vq(res[cc])}")
                    if m == 0 and cc == 5:
                        A(f"  s_waitcnt lgkmcnt(0)")
                        A("  v_cvt_pk_bf16_f32 v4, v4, v5\n  v_cvt_pk_bf16_f32 v5, v6, v7\n  v_cvt_pk_bf16_f32 v6, v16, v17\n  v_cvt_pk_bf16_f32 v7, v18, v19")
                    if m == 1 and cc == 1:
                        for i in range(4): A(f"  v_cvt_pk_bf16_f32 v{16+i}, v{20+2*i}, v{21+2*i}")
        else:
            for part in range(8): A(f"  ds_read_b64 {vp(8+2*part)}, v28 offset:{L_OP + 512*part}")
            A("  s_waitcnt lgkmcnt(4)")
            A("  v_add_f32 v8, v8, v10\n  v_add_f32 v9, v9, v11\n  v_add_f32 v12, v12, v14\n  v_add_f32 v13, v13, v15\n  v_add_f32 v8, v8, v12\n  v_add_f32 v9, v9, v13")
            A("  s_waitcnt lgkmcnt(0)")
            A("  v_add_f32 v16, v16, v18\n  v_add_f32 v17, v17, v19\n  v_add_f32 v20, v20, v22\n  v_add_f32 v21, v21, v23\n  v_add_f32 v16, v16, v20\n  v_add_f32 v17, v17, v21")
            A(f"  v_add_f32 v8, v8, v16\n  v_add_f32 v9, v9, v17\n  v_cvt_pk_bf16_f32 v7, v8, v9\n  ds_write_b32 v29, v7 offset:{L_OB}")
            for m in range(4): A(f"  ds_read_b128 {vq(8+4*m)}, v30 offset:{L_OB + (16 if c['wopat'] == 32 else 64)*m}")
            A("  s_waitcnt lgkmcnt(0)")
            self.stamp(10)
            if c["dryo"]: A("  s_cbranch_execz L_dry_o2")
            res = self.gemv32()
            A("L_dry_o2:")
        self.stamp(11)
        for g in range(3):
            for k in range(3):
                if 3 * k + g < 8:
                    A(f"  v_mov_b32_dpp v{33+k}, v{res[3*k+g]} quad_perm:[0,1,2,3] row_mask:{1<<g:#x} bank_mask:0xf")
        for k in range(3): A(f"  ds_bpermute_b32 v{33+k}, v36, v{33+k}")
        if c["dryo"]: A("  s_cbranch_execz L_dry_oend")
        for k in range(3):
            A(f"  s_waitcnt lgkmcnt({2-k})\n  global_atomic_add_f32 v32, v{33+k}, {sp(sWS)} offset:{1024*k}")
        if c["gate"] or c["early"]:
            l = self.lab("g01")
            A(f"  s_cmp_lt_u32 s{sHW}, 2\n  s_cbranch_scc1 {l}")
            self.lds_inc(F_A)
            A(f"{l}:")
        else:
            self.lds_inc(F_A)
        self.stamp(7)
        if c["dump"] and not c["oadd"]:
            l = self.lab("nodumpo")
            A(f"  s_cmp_lg_u32 s{sHW}, 3\n  s_cbranch_scc1 {l}")
            self.dumpv(7, 1, 0x90000, 2, 256)
            A(f"{l}:")
        if c["dry"]:
            l = self.lab("nodry"); l2 = self.lab("dryf")
            A(f"  s_cmp_lg_u32 s{sHW}, 2\n  s_cbranch_scc1 {l}\n  s_cmp_lg_u32 s{sFFN}, 0\n  s_cbranch_scc1 {l2}\n  s_cmp_ge_u32 s57, 100\n  s_cbranch_scc1 L_exit")
            A(f"  s_mov_b64 exec, 0\n  s_branch L_dry_r\n{l2}:\n  s_mov_b64 exec, 0\n  s_branch L_dry_l\n{l}:")
        A(f"  s_cmp_ge_u32 s{sHW}, 2\n  s_cbranch_scc1 L_exit\n  s_cmp_lt_u32 s57, 100\n  s_cbranch_scc1 L_recv\n  s_cmp_eq_u32 s{sFFN}, 0\n  s_cbranch_scc1 L_exit")
        A(f"  s_lshl_b32 s45, s{sJ}, 1\n  s_add_u32 s45, s45, s{sHW}\n  s_lshl_b32 s45, s45, 6\n  s_add_u32 s45, s45, s{sSL}\n  s_lshl_b32 s45, s45, 7\n  s_add_u32 s45, s45, {WS_HINT}")
        if c["gate"]: A(f"  s_load_dword s61, {sp(sWS)}, s45 glc")
        if c["early"]: A(f"  s_lshl_b32 s60, s{sHW}, 2\n  v_mov_b32 v7, s60\n  ds_read_b32 v7, v7 offset:{F_HS}")
        A(f"  s_mul_i32 s60, s{sHW}, 5120\n  v_add_u32 v4, s60, v{vL16}")
        for i in range(4): A(f"  ds_read_b128 {vq(72+4*i)}, v4 offset:{L_ROWS + 1024*i}")
        A(f"  s_lshl_b32 s41, s{sJ}, 1\n  s_add_u32 s41, s41, s{sHW}\n  s_lshl_b32 s41, s41, 12\n  s_add_u32 s41, s41, {WS_ACC}\n  v_add_u32 v5, s41, v{vL16}\n  v_mov_b32 v6, s41")
        A(f"  s_lshl_b32 s60, s{sHW}, 10\n  v_add_u32 v4, s60, v{vL16}")
        A("  s_waitcnt lgkmcnt(0)")
        if c["early"]:
            le = self.lab("notlate"); lj0 = self.lab("lj")
            A(f"  v_readfirstlane_b32 s61, v7\n  s_cmp_eq_u32 s61, s44\n  s_cbranch_scc1 {le}")
            self.lds_inc(F_A)
            A(f"{le}:")
        self.unpack8(72, 88); self.unpack8(76, 96); self.unpack8(80, 104); self.unpack8(84, 112)
        if c["early"]:
            le2 = self.lab("notlate2")
            A(f"  s_cmp_lg_u32 s61, s44\n  s_cbranch_scc1 {le2}")
            if c["late_delay"]: A(f"  s_sleep {c['late_delay']}")
            for k in range(3): A(f"  global_load_dwordx4 {vq(120+4*k)}, v5, {sp(sWS)} offset:{1024*k}{c['accfl']}")
            self.lds_inc(F_A)
            self.stamp(1); self.cstamp(13)
            A(f"  s_branch {lj0}\n{le2}:")
        lp = self.lab("pollH"); ld = self.lab("gotH")
        if c["gate"]:
            lg = self.lab("late")
            A(f"  s_cmp_eq_u32 s61, s44\n  s_cbranch_scc1 {lg}")
            self.lds_inc(F_A)
        A(f"{lp}:\n  s_load_dword s60, {sp(sWS)}, s45 glc\n  s_waitcnt lgkmcnt(0)\n  s_cmp_eq_u32 s60, s44\n  s_cbranch_scc1 {ld}")
        self.guard()
        if c["hint_sleep"]: A(f"  s_sleep {c['hint_sleep']}")
        A(f"  s_branch {lp}\n{ld}:")
        if c["read_delay"]: A(f"  s_sleep {c['read_delay']}")
        if c["gate"]:
            for k in range(3): A(f"  global_load_dwordx4 {vq(120+4*k)}, v5, {sp(sWS)} offset:{1024*k}{c['accfl']}")
            lj = self.lab("gj")
            A(f"  s_branch {lj}\n{lg}:")
            for k in range(3): A(f"  global_load_dwordx4 {vq(120+4*k)}, v5, {sp(sWS)} offset:{1024*k}{c['accfl']}")
            self.lds_inc(F_A)
            A(f"{lj}:")
        self.stamp(1)
        self.cstamp(13)
        lp = self.lab("pollF"); ld = self.lab("gotF")
        if not c["gate"]:
            for k in range(3): A(f"  global_load_dwordx4 {vq(120+4*k)}, v5, {sp(sWS)} offset:{1024*k}{c['accfl']}")
        if c["early"]: A(f"{lj0}:")
        self.lds_inc(F_R)
        A(f"{lp}:")
        A("  s_waitcnt vmcnt(0)\n  v_min3_f32 v7, v123, v127, v131\n  v_cmp_neq_f32 vcc, 0x42000000, v7")
        A(f"  s_cbranch_vccz {ld}")
        self.guard()
        if c["full_sleep"]: A(f"  s_sleep {c['full_sleep']}")
        for k in range(3): A(f"  global_load_dwordx4 {vq(120+4*k)}, v5, {sp(sWS)} offset:{1024*k}{c['accfl']}")
        A(f"  s_branch {lp}\n{ld}:")
        self.stamp(2)
        self.cstamp(15)
        A("L_dry_l:")
        src = [120, 121, 122, 124, 125, 126, 128, 129]
        for i in range(4): A(f"  v_cvt_pk_bf16_f32 v{16+i}, v{src[2*i]}, v{src[2*i+1]}")
        self.unpack8(16, 8)
        self.pk8("mul", 8, 96, 8)
        self.rnd8(8, 16)
        self.pk8("add", 8, 88, 8)
        for i in range(4): A(f"  v_cvt_pk_bf16_f32 v{28+i}, v{8+2*i}, v{9+2*i}")
        self.unpack8(28, 8)
        self.layernorm(8, 16, 24)
        self.pk8("mul", 8, 8, 112)
        self.rnd8(8, 16)
        self.pk8("add", 8, 8, 104)
        for i in range(4): A(f"  v_cvt_pk_bf16_f32 v{24+i}, v{8+2*i}, v{9+2*i}")
        A(f"  ds_write_b128 v4, {vq(24)} offset:{L_H2}\n  ds_write_b128 v4, {vq(28)} offset:{L_X1}\n  s_waitcnt lgkmcnt(0)")
        if c["dry"]: A("  s_cbranch_execz L_dry_red")
        self.stamp(3)
        A("  s_barrier")
        if c["dump"]:
            A(f"  s_lshl_b32 s69, s2, 1\n  s_add_u32 s69, s69, s{sHW}")
            self.dumpv(24, 4, 0x600000, 69, 1024)
        A(f"  s_cmp_eq_u32 s{sHW}, 0\n  s_cbranch_scc1 L_reducer")
        A(f"  s_cmp_ge_u32 s{sSL}, 32\n  s_cbranch_scc1 {'L_h1bar' if c['stamps'] else 'L_exit'}")
        A(f"  s_lshr_b32 s60, s{sSL}, 2\n  s_lshl_b32 s60, s60, 7\n  s_and_b32 s61, s{sSL}, 3\n  s_lshl_b32 s61, s61, 1\n  s_add_u32 s60, s60, s61\n  v_lshl_add_u32 v4, v{vJ}, 3, s60")
        A(f"  ds_read_u16 v8, v4 offset:{L_X1}\n  ds_read_u16 v9, v4 offset:{L_ROWS + 4096}\n  ds_read_u16 v12, v4 offset:{L_X1 + 1024}\n  ds_read_u16 v13, v4 offset:{L_ROWS + 4096 + 5120}")
        A(f"  s_lshl_b32 s60, s{sJ}, 5\n  s_add_u32 s60, s60, s{sSL}\n  s_mul_i32 s60, s60, {INB}\n  s_add_u32 s60, s60, {WS_INBOX + 43*256}\n  v_lshl_add_u32 v5, v{vJ}, 4, s60")
        A(f"  s_xor_b32 s45, s44, {TAGX:#x}\n  v_mov_b32 v10, s44\n  v_mov_b32 v11, s45\n  s_mov_b64 exec, 0xffff\n  s_waitcnt lgkmcnt(0)\n  v_lshl_or_b32 v8, v12, 16, v8\n  v_lshl_or_b32 v9, v13, 16, v9")
        A(f"  global_store_dwordx4 v5, {vq(8)}, {sp(sWS)} sc1")
        A("L_h1bar:\n  s_barrier\n  s_barrier\n  s_branch L_exit2")
        A("L_recv:")
        A(f"  s_lshl_b32 s41, s{sB}, 3\n  s_add_u32 s41, s41, s{sXCD}\n  s_lshl_b32 s41, s41, 1\n  s_add_u32 s41, s41, s{sHW}")
        A(f"  s_mul_i32 s46, s41, {INB}\n  s_add_u32 s46, s46, {WS_INBOX}\n  s_add_u32 s47, s46, {43*256 + 8}\n  s_add_u32 s60, s46, 4096\n  v_add_u32 v5, s60, v{vL16}\n  v_add_u32 v7, 4096, v5")
        A(f"  s_lshr_b32 s60, s41, 5\n  s_lshl_b32 s60, s60, 11\n  s_bfe_u32 s61, s41, 0x30002\n  s_lshl_b32 s61, s61, 7\n  s_add_u32 s60, s60, s61\n  s_and_b32 s61, s41, 3\n  s_lshl_b32 s61, s61, 1\n  s_add_u32 s60, s60, s61")
        A(f"  v_and_b32 v4, 1, v{vG}\n  v_lshl_add_u32 v6, v{vJ}, 3, s60\n  v_lshl_add_u32 v6, v4, 10, v6\n  v_lshlrev_b32 v4, 4, v4\n  v_sub_u32 v4, 16, v4")
        A(f"  s_xor_b32 s45, s44, {TAGX:#x}")
        lp = self.lab("pollX"); ld = self.lab("gotX")
        A(f"{lp}:\n  s_load_dword s60, {sp(sWS)}, s47 glc\n  s_waitcnt lgkmcnt(0)\n  s_cmp_eq_u32 s60, s44\n  s_cbranch_scc1 {ld}")
        self.guard()
        A(f"  s_sleep {c['rx_sleep']}\n  s_branch {lp}\n{ld}:")
        self.stamp(1)
        if c["rx_delay"]: A(f"  s_sleep {c['rx_delay']}")
        lp = self.lab("pollI"); ld = self.lab("gotI")
        A(f"{lp}:")
        for i in range(11): A(f"  global_load_dwordx4 {vq(44+4*i)}, v{5 if i < 8 else 7}, {sp(sWS)} offset:{1024*i - (4096 if i < 8 else 8192)}{c['rxfl']}")
        A("L_dry_r:")
        for i in range(11):
            q = 44 + 4 * i
            A(f"  s_waitcnt vmcnt({10-i})")
            if i == 0:
                A(f"  v_xor_b32 v10, s44, v{q+2}\n  v_xor_b32 v11, s45, v{q+3}\n  v_mov_b32 v8, v{q}\n  v_mov_b32 v9, v{q+1}")
            else:
                A(f"  v_bitop3_b32 v10, v10, v{q+2}, s44 bitop3:0xf6\n  v_bitop3_b32 v11, v11, v{q+3}, s45 bitop3:0xf6")
                if i < 10: A(f"  v_add_f32 v8, v8, v{q}\n  v_add_f32 v9, v9, v{q+1}")
                else: A(f"  v_add_f32_dpp v8, v{q}, v8 quad_perm:[0,1,2,3] row_mask:0x7 bank_mask:0xf\n  v_add_f32_dpp v9, v{q+1}, v9 quad_perm:[0,1,2,3] row_mask:0x7 bank_mask:0xf")
        A(f"  v_or_b32 v10, v10, v11\n  v_cmp_ne_u32 vcc, 0, v10\n  s_cbranch_vccz {ld}")
        self.guard()
        A(f"  s_branch {lp}\n{ld}:")
        self.stamp(4); self.cstamp(15)
        if c["xdelay"]: A(f"  s_sleep {c['xdelay']}")
        A("  v_mov_b32 v12, v84\n  v_mov_b32 v13, v85\n  v_permlane16_swap_b32 v8, v9\n  v_permlane32_swap_b32 v12, v84\n  v_permlane32_swap_b32 v13, v85")
        A("  v_add_f32 v8, v8, v9\n  v_mov_b32 v12, v84\n  v_mov_b32 v13, v85\n  v_mov_b32 v9, v8")
        A("  v_permlane16_swap_b32 v12, v84\n  v_permlane16_swap_b32 v13, v85\n  v_permlane32_swap_b32 v9, v8")
        A("  v_lshlrev_b32 v84, v4, v84\n  v_lshlrev_b32 v85, v4, v85\n  v_add_f32 v8, v8, v9\n  v_and_b32 v84, 0xffff0000, v84\n  v_and_b32 v85, 0xffff0000, v85")
        self.rnd1(8, 9)
        A("  v_mul_f32 v8, v85, v8"); self.rnd1(8, 9)
        A("  v_add_f32 v8, v84, v8\n  v_cvt_pk_bf16_f32 v8, v8, v8")
        if c["dry"]: A("  s_cbranch_execz L_exit")
        A("  s_mov_b32 exec_hi, 0")
        A(f"  global_store_short v6, v8, {sp(sOUT)}{c['outfl']}")
        self.execall()
        self.stamp(5)
        A("  s_branch L_exit")
        A("L_reducer:")
        A(f"  v_lshlrev_b32 v4, 2, v{vLANE}\n  v_add_u32 v4, {L_GUP}, v4")
        A(f"  v_and_b32 v5, 1, v{vLANE}\n  v_lshlrev_b32 v5, 6, v5\n  v_and_b32 v6, 62, v{vLANE}\n  v_add_u32 v5, v5, v6")
        A("  s_barrier")
        A("L_dry_red:")
        for w in range(8): A(f"  ds_read2st64_b32 {vp(8+2*w)}, v4 offset0:{2*w} offset1:{2*w+1}")
        A("  s_waitcnt lgkmcnt(4)")
        A("  v_add_f32 v8, v8, v10\n  v_add_f32 v9, v9, v11\n  v_add_f32 v12, v12, v14\n  v_add_f32 v13, v13, v15\n  v_add_f32 v8, v8, v12\n  v_add_f32 v9, v9, v13")
        A("  s_waitcnt lgkmcnt(0)")
        A("  v_add_f32 v16, v16, v18\n  v_add_f32 v17, v17, v19\n  v_add_f32 v20, v20, v22\n  v_add_f32 v21, v21, v23\n  v_add_f32 v16, v16, v20\n  v_add_f32 v17, v17, v21")
        A("  v_add_f32 v8, v8, v16\n  v_add_f32 v9, v9, v17")
        self.rnd2(8, 9, 10)
        A(f"  v_max_f32 v8, 0xc2ae0000, v8")
        self.expv([(11, 8, 12)], neg=True)
        A(f"  v_add_f32 v11, 1.0, v11")
        self.divv([(8, "1.0", 11, 12, 13)])
        self.rnd1(8, 10)
        A(f"  v_mul_f32 v8, v8, v9\n  v_cvt_pk_bf16_f32 v8, v8, v8\n  ds_write_b16 v5, v8 offset:{L_HH}\n  s_waitcnt lgkmcnt(0)")
        if c["dry"]: A("  s_cbranch_execz L_dry_s")
        A("  s_barrier")
        self.stamp(4)
        self.dumpv(8, 1, 0xE0000, 2, 256)
        A("  s_branch L_exit2")

    def ids(self):
        A = self.A; c = self.c
        A(f"  v_lshlrev_b32 v{vL16}, 4, v0")
        A(f"  s_and_b32 s{sXCD}, s2, 7\n  s_lshr_b32 s{sIDX}, s2, 3\n  s_lshr_b32 s{sB}, s{sIDX}, 2\n  s_and_b32 s{sJ}, s{sIDX}, 3")
        if c["hmap"] == 0: A(f"  s_lshl_b32 s{sH}, s{sXCD}, 2\n  s_add_u32 s{sH}, s{sH}, s{sJ}")
        elif c["hmap"] == 1: A(f"  s_lshl_b32 s{sH}, s{sJ}, 3\n  s_add_u32 s{sH}, s{sH}, s{sXCD}")
        elif c["hmap"] == 2: A(f"  s_lshr_b32 s{sH}, s{sXCD}, 1\n  s_lshl_b32 s{sH}, s{sH}, 3\n  s_and_b32 s60, s{sXCD}, 1\n  s_add_u32 s{sH}, s{sH}, s60\n  s_lshl_b32 s60, s{sJ}, 1\n  s_add_u32 s{sH}, s{sH}, s60")
        elif c["hmap"] == 3: A(f"  s_lshl_b32 s{sH}, s{sXCD}, 2\n  s_add_u32 s60, s{sJ}, 1\n  s_and_b32 s60, s60, 3\n  s_add_u32 s{sH}, s{sH}, s60")

    def common1(self):
        A = self.A; c = self.c
        A(f"  v_mov_b32 v36, 0\n  v_mov_b32 v37, 0\n  v_lshrrev_b32 v{vG}, 4, v0\n  v_and_b32 v{vJ}, 15, v0\n  v_mov_b32 v{vZ}, 0\n  v_mov_b32 v{vONE}, 1")
        A(f"  s_add_u32 s60, s{sXCD}, 256\n  s_cmp_eq_u32 s{sIDX}, 28\n  s_cselect_b32 s57, s60, 100")
        A(f"  s_sub_u32 s60, s{sB}, {c['prodb']}\n  s_lshl_b32 s60, s60, 3\n  s_add_u32 s60, s60, s{sXCD}\n  s_cmp_lt_u32 s{sB}, {c['prodb']}\n  s_cselect_b32 s60, 64, s60")
        A(f"  s_cmp_eq_u32 s{sJ}, 1\n  s_cselect_b32 s57, s60, s57")
        if "M" in c["xskip"]: A("  s_cmp_lt_u32 s57, 48\n  s_cselect_b32 s57, 100, s57")
        if "F" in c["xskip"]: A("  s_cmp_ge_u32 s57, 256\n  s_cselect_b32 s57, 100, s57")

    def consts(self):
        A = self.A
        A(f"  s_mov_b32 s{sGUARD}, 0\n  s_mov_b32 s{sPLO}, 0x05040100\n  s_mov_b32 s{sPHI}, 0x07060302\n  s_mov_b32 s{sLOG2E}, {LOG2E:#x}")

    def common2(self):
        A = self.A; c = self.c
        A(f"  s_mul_i32 s65, s{sB}, 3\n  s_add_u32 s65, s65, s{sJ}\n  s_lshr_b32 s60, s{sJ}, 1\n  s_sub_u32 s65, s65, s60\n  s_lshr_b32 s61, s65, 2")
        A(f"  s_lshr_b32 s60, s{sXCD}, 1\n  s_mul_i32 s{sSL}, s{sXCD}, 5\n  s_add_u32 s{sSL}, s{sSL}, s60\n  s_add_u32 s{sSL}, s{sSL}, s61\n  s_sub_u32 s{sSL}, s{sSL}, 1")
        A(f"  s_and_b32 s60, s{sXCD}, 1\n  s_add_u32 s60, s60, 5\n  s_cmp_lt_u32 s61, s60\n  s_cselect_b32 s{sFFN}, 1, 0\n  s_cmp_lt_u32 s{sSL}, 43\n  s_cselect_b32 s{sFFN}, s{sFFN}, 0")
        A(f"  s_cmp_eq_u32 s{sJ}, 1\n  s_cselect_b32 s{sFFN}, 0, s{sFFN}\n  s_and_b32 s{sJ}, s65, 3")

    def common(self):
        self.common1(); self.common2(); self.consts()

    def build(self):
        A = self.A; c = self.c
        A(f"{KNAME}:")
        if c["stamps"]:
            for k in range(1, 16): A(f"  s_mov_b64 s[{70+2*k}:{71+2*k}], 0")
        self.stamp(0)
        A("  s_cmp_ge_u32 s2, 256\n  s_cbranch_scc1 L_end")
        A("  s_load_dwordx16 s[4:19], s[0:1], 0\n  s_load_dwordx8 s[20:27], s[0:1], 64\n  s_load_dwordx4 s[28:31], s[0:1], 96")
        A(f"  v_lshrrev_b32 v2, 6, v0\n  v_and_b32 v0, 63, v0\n  v_readfirstlane_b32 s{sWAVE}, v2")
        if c["hfirst"]: A(f"  s_cmp_ge_u32 s{sWAVE}, 8\n  s_cbranch_scc1 L_helper0")
        self.ids()
        if c["fast0"]:
            l = self.lab("nofast")
            A(f"  s_cmp_ge_u32 s{sWAVE}, 8\n  s_cbranch_scc1 {l}")
            A(f"  s_lshl_b32 s56, s{sB}, 5\n  s_add_u32 s56, s56, s{sH}\n  s_lshl_b32 s56, s56, 20\n  s_add_u32 s56, s56, 0xC0000\n  s_lshl_b32 s{sOFF}, s{sWAVE}, {10 + c['gran'].bit_length() - 1}")
            A(f"  s_mov_b32 s{SRDA+2}, 0x40000\n  s_mov_b32 s{SRDA+3}, 0x20000\n  s_waitcnt lgkmcnt(0)\n  s_add_u32 s{SRDA}, s{sK}, s56\n  s_addc_u32 s{SRDA+1}, s{sK+1}, 0")
            for n in range(c["E"]):
                if n == c["Ep"]:
                    A(f"  s_cmp_eq_u32 s{sJ}, 1\n  s_cselect_b32 s60, s{sB}, 0\n  s_cmp_ge_u32 s60, {c['prodb']}\n  s_cbranch_scc1 {l}")
                A(f"  buffer_load_dwordx4 {vq(40+4*n)}, v{vL16}, {sq(SRDA)}, s{sOFF} offen offset:{1024*n}{c['kfl']}")
            self.stamp(8)
            A(f"{l}:")
        if c["pref"]: self.prefetch()
        if c["lazy"]:
            assert c["hfirst"] and c["fast0"]
            self.common1()
            gr = c["gran"] // 4
            for G in range(1, 4): A(f"  s_add_u32 s{sOFF+G}, s{sOFF}, {(G // gr) * 32768 * gr + (G % gr) * 4096}")
            def late():
                self.common2(); self.consts()
                if c["sprio"]:
                    l = self.lab("sp")
                    A(f"  s_cmp_lt_u32 s{sWAVE}, 4\n  s_cbranch_scc1 {l}\n  s_setprio {c['sprio']}\n{l}:")
                A(f"  s_lshl_b32 s60, s{sB}, 5\n  s_add_u32 s60, s60, s{sH}\n  s_lshl_b32 s60, s60, 20\n  s_add_u32 s60, s60, 0xC0000")
                A(f"  s_lshl_b32 s{sOFF}, s{sWAVE}, {10 + c['gran'].bit_length() - 1}\n  s_mul_i32 s56, s{sWAVE}, {c['NV']*1024}\n  s_add_u32 s56, s56, {L_V}")
                gr = c["gran"] // 4
                for G in range(1, 8): A(f"  s_add_u32 s{sOFF+G}, s{sOFF}, {(G // gr) * 32768 * gr + (G % gr) * 4096}")
                A(f"  s_mov_b32 s{SRDA+2}, 0x40000\n  s_mov_b32 s{SRDA+3}, 0x20000\n  s_mov_b32 s{SRDB+2}, 0x40000\n  s_mov_b32 s{SRDB+3}, 0x20000")
                A("  s_waitcnt lgkmcnt(0)")
                D = c["D"]
                d2 = c["depth2"] or c["depth"]
                def mask(f1, f2):
                    m = 0; acc = 0.5
                    for n in range(64):
                        acc += f1 if n < c["dsw"] else f2
                        if acc >= 1.0 - 1e-9:
                            acc -= 1.0
                            if n < c["sprint"]: m |= 1 << n
                    return m
                m1 = [mask(min(1.0, D - a), min(1.0, D - b)) for a, b in zip(c["depth"], d2)]
                m2 = [mask(max(0.0, D - 1 - a), max(0.0, D - 1 - b)) & x for a, b, x in zip(c["depth"], d2, m1)]
                for reg, ms in ((58, m1), (14, m2)):
                    for half in range(2):
                        w = [(m >> (32 * half)) & 0xffffffff for m in ms]
                        A(f"  s_bitcmp1_b32 s{sXCD}, 0\n  s_mov_b32 s{reg+half}, {w[0]:#x}\n  s_cselect_b32 s{reg+half}, {w[1]:#x}, s{reg+half}")
                        A(f"  s_cmp_lt_u32 s57, 48\n  s_cselect_b32 s{reg+half}, {w[2]:#x}, s{reg+half}\n  s_cmp_eq_u32 s57, 64\n  s_cselect_b32 s{reg+half}, {w[3]:#x}, s{reg+half}")
                A("  s_waitcnt lgkmcnt(0)")
                A(f"  s_add_u32 s{SRDA}, s{sK}, s60\n  s_addc_u32 s{SRDA+1}, s{sK+1}, 0\n  s_add_u32 s{SRDB}, s{sV}, s60\n  s_addc_u32 s{SRDB+1}, s{sV+1}, 0")
            self.late_setup = late
        else:
            self.common()
            A(f"  s_cmp_ge_u32 s{sWAVE}, 8\n  s_cbranch_scc1 L_helper")
            if c["hop"]: A("  HOPS")
            if c["sprio"]:
                l = self.lab("sp")
                A(f"  s_cmp_lt_u32 s{sWAVE}, 4\n  s_cbranch_scc1 {l}\n  s_setprio {c['sprio']}\n{l}:")
            A(f"  s_lshl_b32 s60, s{sB}, 5\n  s_add_u32 s60, s60, s{sH}\n  s_lshl_b32 s60, s60, 20\n  s_add_u32 s60, s60, 0xC0000")
            A(f"  s_lshl_b32 s{sOFF}, s{sWAVE}, {10 + c['gran'].bit_length() - 1}\n  s_mul_i32 s56, s{sWAVE}, {c['NV']*1024}\n  s_add_u32 s56, s56, {L_V}")
            gr = c["gran"] // 4
            for G in range(1, 8): A(f"  s_add_u32 s{sOFF+G}, s{sOFF}, {(G // gr) * 32768 * gr + (G % gr) * 4096}")
            A(f"  s_mov_b32 s{SRDA+2}, 0x40000\n  s_mov_b32 s{SRDA+3}, 0x20000\n  s_mov_b32 s{SRDB+2}, 0x40000\n  s_mov_b32 s{SRDB+3}, 0x20000")
            A("  s_waitcnt lgkmcnt(0)")
            D = c["D"]
            d2 = c["depth2"] or c["depth"]
            def mask(f1, f2):
                m = 0; acc = 0.5
                for n in range(64):
                    acc += f1 if n < c["dsw"] else f2
                    if acc >= 1.0 - 1e-9:
                        acc -= 1.0
                        if n < c["sprint"]: m |= 1 << n
                return m
            m1 = [mask(min(1.0, D - a), min(1.0, D - b)) for a, b in zip(c["depth"], d2)]
            m2 = [mask(max(0.0, D - 1 - a), max(0.0, D - 1 - b)) & x for a, b, x in zip(c["depth"], d2, m1)]
            for reg, ms in ((58, m1), (14, m2)):
                for half in range(2):
                    w = [(m >> (32 * half)) & 0xffffffff for m in ms]
                    A(f"  s_bitcmp1_b32 s{sXCD}, 0\n  s_mov_b32 s{reg+half}, {w[0]:#x}\n  s_cselect_b32 s{reg+half}, {w[1]:#x}, s{reg+half}")
                    A(f"  s_cmp_lt_u32 s57, 48\n  s_cselect_b32 s{reg+half}, {w[2]:#x}, s{reg+half}\n  s_cmp_eq_u32 s57, 64\n  s_cselect_b32 s{reg+half}, {w[3]:#x}, s{reg+half}")
            A("  s_waitcnt lgkmcnt(0)")
            A(f"  s_add_u32 s{SRDA}, s{sK}, s60\n  s_addc_u32 s{SRDA+1}, s{sK+1}, 0\n  s_add_u32 s{SRDB}, s{sV}, s60\n  s_addc_u32 s{SRDB+1}, s{sV+1}, 0")
            self.late_setup = None
        if c["Dodd"]:
            A(f"  s_bitcmp1_b32 s{sXCD}, 0\n  s_cbranch_scc1 L_sodd")
        self.streamer(c["D"], "e")
        if c["Dodd"]:
            A("L_sodd:")
            self.streamer(c["Dodd"], "o")
        self.streamer_ffn()
        if c["ool"]: self.L += self.ool_block
        self.helper()
        if c["sub"]:
            A("L_gemv:"); self.gemv32(body=True); A("  s_setpc_b64 s[42:43]")
        A("L_exit2:")
        if c["stamps"]: A("  s_sleep 100")
        A("L_exit:")
        if c["stamps"] and c["diag"]:
            A(f"  s_sleep 127\n  s_sleep 127\n  s_load_dword s44, {sp(sDBG)}, 0x80\n  s_waitcnt lgkmcnt(0)\n  s_cmp_ge_u32 s{sWAVE}, 8\n  s_cbranch_scc1 L_diagh\n  s_cmp_lg_u32 s{sWAVE}, 7\n  s_cbranch_scc1 L_end")
            def rec(k, slot):
                l = self.lab("dg")
                A(f"  s_cmp_eq_u32 s{70+2*k}, 0\n  s_cbranch_scc1 {l}\n  s_sub_u32 s60, s{70+2*k}, s44\n  s_add_u32 s60, s60, 1000\n  s_atomic_umax s60, {sp(sDBG)}, {4*slot:#x}\n{l}:")
            for k, slot in ((0, 4), (11, 5), (1, 6), (3, 7), (5, 8), (7, 9)): rec(k, slot)
            A("  s_endpgm\nL_diagh:")
            A(f"  s_cmp_lg_u32 s{sWAVE}, 8\n  s_cbranch_scc1 L_end")
            for k, slot in ((6, 10), (7, 11), (2, 12), (3, 13), (4, 14), (5, 15)): rec(k, slot)
        elif c["stamps"]:
            A("  s_mov_b64 exec, 1\n  s_waitcnt lgkmcnt(0)")
            A(f"  s_mul_i32 s60, s2, 12\n  s_add_u32 s60, s60, s{sWAVE}\n  s_lshl_b32 s60, s60, 7\n  s_add_u32 s60, s60, {WS_STAMP}\n  v_mov_b32 v4, s60")
            for k in range(16):
                A(f"  v_mov_b32 v6, s{70+2*k}\n  v_mov_b32 v7, s{71+2*k}\n  global_store_dwordx2 v4, v[6:7], {sp(sWS)} offset:{8*k}")
        A("L_end:\n  s_endpgm")
        body = fix_hazards(self.L)
        if c["hop"]:
            lines = body.split("\n"); out_ = []; pos = 0; last = -10**9; stubs = []
            for ln in lines:
                out_.append(ln)
                t = ln.strip()
                if t and not t.endswith(":") and not t.startswith("."):
                    pos += 4 if t.startswith(("s_", "v_mov_b32 ", "v_add_f32 ", "v_and_b32 ", "v_lshlrev_b32 ", "v_exp", "v_mul_f32 ")) and "0x" not in t else 8
                if t.startswith("s_branch") and pos - last >= c.get("hopgap", 1700):
                    stubs.append(f"L_stub_{len(stubs)}"); out_.append(f"{stubs[-1]}:\n  s_setpc_b64 s[68:69]"); last = pos
            stubs = stubs[1:]
            h = []
            for w in range(8):
                h.append(f"  s_cmp_lg_u32 s{sWAVE}, {w}\n  s_cbranch_scc1 L_hop_{w}")
                h += [f"  s_call_b64 s[68:69], {st}" for st in stubs[w::8]]
                h.append(f"  s_branch L_hop_end\nL_hop_{w}:")
            h.append("L_hop_end:")
            body = "\n".join(out_).replace("  HOPS", "\n".join(h))
        nk = c["prefkib"]
        out = HEADER + f"; @launch grid=(256,1,1) block=(768,1,1) lds={L_V + 8192*c['NV']}\n"
        out += '.amdgcn_target "amdgcn-amd-amdhsa--gfx950"\n.text\n'
        out += f".globl {KNAME}\n.p2align 8\n.type {KNAME},@function\n" + body
        out += "  .fill 64, 4, 0xbf800000\n"
        if c["spref"]: nk += 1
        if c["pref"] or c["pref2"] or c["spref"]:
            out += f"L_codeend:\n.if (L_codeend - {KNAME}) < {nk*1024}\n.fill ({nk*1024} - (L_codeend - {KNAME}))/4, 4, 0xbf800000\n.endif\n"
        out += f""".section .rodata,"a"
.p2align 6
.amdhsa_kernel {KNAME}
  .amdhsa_next_free_vgpr 168
  .amdhsa_next_free_sgpr 102
  .amdhsa_accum_offset 168
  .amdhsa_group_segment_fixed_size 0
  .amdhsa_kernarg_size 112
  .amdhsa_user_sgpr_count 2
  .amdhsa_user_sgpr_kernarg_segment_ptr 1
  .amdhsa_system_sgpr_workgroup_id_x 1
  .amdhsa_float_denorm_mode_32 3
.end_amdhsa_kernel
"""
        return out

def gen(**cfg): return Gen(**cfg).build()

if __name__ == "__main__":
    import json
    cfg = json.loads(sys.argv[2]) if len(sys.argv) > 2 else {}
    open(sys.argv[1], "w").write(gen(**cfg))
```
